```python
import torch

def _softmax(x, axis=-1):
    return torch.softmax(x, dim=axis)

def _gelu(x):
    return torch.nn.functional.gelu(x, approximate='tanh')

def _silu(x):
    return torch.nn.functional.silu(x)

def _sigmoid(x):
    return torch.sigmoid(x)

def _layernorm(x, axis=-1, eps=1e-05):
    m = x.mean(dim=axis, keepdim=True)
    v = x.var(dim=axis, keepdim=True, unbiased=False)
    return (x - m) / torch.sqrt(v + eps)

def _scatter_add(tgt, idx, src, axis=0):
    return tgt.clone().index_add_(axis, idx, src)

def _segment_sum(src, seg, n):
    out = torch.zeros((n,) + src.shape[1:], dtype=src.dtype)
    return out.index_add_(0, seg, src)

def _pad(x, pw):
    flat = tuple((v for pair in reversed(pw) for v in pair))
    return torch.nn.functional.pad(x, flat)
kernel_name = 'concat_heads__memory_aug_recurrent_mem_tr__mha_block__prompt'

def setup_inputs():

    _w = lambda a: (lambda t: t.to(torch.bfloat16) if t.is_floating_point() else t)(torch.as_tensor(a))

    def _A_setup():
        B, S, Dm = (1, 2048, 1024)
        H, Dh = (32, 128)
        M, seg = (8, 32)
        seg = min(seg, S)
        S = S // seg * seg
        return {'x': _w((lambda *s: torch.randn(*s, dtype=torch.bfloat16) * 0.05)(B, S, Dm)), 'mem0': _w((lambda *s: torch.randn(*s, dtype=torch.bfloat16) * 1.6)(B, M, Dm)), 'Wq': _w((lambda *s: torch.randn(*s, dtype=torch.bfloat16) * 0.8)(Dm, H, Dh) * Dm ** (-0.5)), 'Wk': _w((lambda *s: torch.randn(*s, dtype=torch.bfloat16) * 0.8)(Dm, H, Dh) * Dm ** (-0.5)), 'Wv': _w((lambda *s: torch.randn(*s, dtype=torch.bfloat16) * 1.6)(Dm, H, Dh) * Dm ** (-0.5)), 'Wo': _w((lambda *s: torch.randn(*s, dtype=torch.bfloat16) * 1.6)(H, Dh, Dm) * (H * Dh) ** (-0.5)), 'seg_len': seg}
    _A_in = _A_setup()

    def _B_setup():
        B, S, D, H = (1, 2048, 1024, 32)
        return {'x': _w((lambda *s: torch.randn(*s, dtype=torch.bfloat16) * 0.2)(B, S, D)), 'wqkv': _w((lambda *s: torch.randn(*s, dtype=torch.bfloat16) * 0.2)(D, 3 * D)), 'wo': _w((lambda *s: torch.randn(*s, dtype=torch.bfloat16) * 0.05)(D, D))}
    _B_in = _B_setup()
    return {'A_x': _A_in['x'], 'A_mem0': _A_in['mem0'], 'A_Wq': _A_in['Wq'], 'A_Wk': _A_in['Wk'], 'A_Wv': _A_in['Wv'], 'A_Wo': _A_in['Wo'], 'A_seg_len': _A_in['seg_len'], 'B_x': _B_in['x'], 'B_wqkv': _B_in['wqkv'], 'B_wo': _B_in['wo']}

def reference(A_x, A_mem0, A_Wq, A_Wk, A_Wv, A_Wo, A_seg_len, B_x, B_wqkv, B_wo):

    def _A_ref(x, mem0, Wq, Wk, Wv, Wo, seg_len):
        B, S, Dm = x.shape
        H, Dh = (Wq.shape[1], Wq.shape[2])
        M = mem0.shape[1]
        scale = Dh ** (-0.5)
        n_seg = S // seg_len
        L = M + seg_len
        idx = torch.arange(L)
        mask = (idx[:, None] < M) | (idx[:, None] >= idx[None, :])
        mem = mem0
        outs = []
        for s in range(n_seg):
            xs = x[:, s * seg_len:(s + 1) * seg_len, :].clone()
            h = torch.concatenate([mem, xs], axis=1)
            q = torch.einsum('btd,dhe->bhte', h, Wq)
            k = torch.einsum('btd,dhe->bhte', h, Wk)
            v = torch.einsum('btd,dhe->bhte', h, Wv)
            scores = torch.einsum('bhqe,bhke->bhqk', q, k) * scale
            scores = torch.where(mask[None, None], scores, -1000000000.0)
            p = _softmax(scores, axis=-1)
            o = torch.einsum('bhqk,bhke->bhqe', p, v)
            o = torch.einsum('bhte,hed->btd', o, Wo)
            mem = o[:, :M, :].clone()
            outs.append(o[:, M:, :])
        return torch.concatenate(outs, axis=1)

    def _B_ref(x, wqkv, wo):
        B, S, D = x.shape
        H = 32
        Dh = D // H
        qkv = (lambda x, *d: x.permute(*d))((x @ wqkv).reshape(B, S, 3, H, Dh), 2, 0, 3, 1, 4)
        q, k, v = (qkv[0], qkv[1], qkv[2])
        scores = torch.einsum('bhqd,bhkd->bhqk', q, k) * Dh ** (-0.5)
        p = _softmax(scores, axis=-1)
        o = torch.einsum('bhqk,bhkd->bhqd', p, v)
        return (lambda x, *d: x.permute(*d))(o, 0, 2, 1, 3).reshape(B, S, D) @ wo
    a = _A_ref(A_x, A_mem0, A_Wq, A_Wk, A_Wv, A_Wo, A_seg_len)
    b = _B_ref(B_x, B_wqkv, B_wo)
    return torch.concatenate([a, b], axis=-1)
```

```python
import re

TRANS = ("v_exp_", "v_log_", "v_rcp_", "v_rsq_", "v_sqrt_", "v_sin_", "v_cos_")
_reg_re = re.compile(r"^(-|abs\()?\|?([vas])(\d+)\|?\)?$")
_rng_re = re.compile(r"^(-|abs\()?\|?([vas])\[(\d+):(\d+)\]\|?\)?$")
SPECIAL = {"vcc": [("s", 106), ("s", 107)], "vcc_lo": [("s", 106)], "vcc_hi": [("s", 107)],
           "exec": [("s", 126), ("s", 127)], "exec_lo": [("s", 126)], "exec_hi": [("s", 127)],
           "m0": [("s", 124)]}
EXEC = set(SPECIAL["exec"])
M0 = set(SPECIAL["m0"])


def regs_of(tok):
    tok = tok.strip()
    if tok in SPECIAL:
        return list(SPECIAL[tok])
    m = _reg_re.match(tok)
    if m:
        return [(m.group(2), int(m.group(3)))]
    m = _rng_re.match(tok)
    if m:
        return [(m.group(2), i) for i in range(int(m.group(3)), int(m.group(4)) + 1)]
    return []


class Inst:
    __slots__ = ("text", "mn", "ops", "mods", "cls", "w", "r", "passes", "srcC", "srcAB", "D", "ws",
                 "trans", "dpp", "perm", "rdlane", "wide_store_data", "ldsdma", "target", "sread_const", "isload")

    def __init__(self, text):
        self.text = text
        t = text.split(";")[0].strip()
        parts = t.split(None, 1)
        mn = parts[0]
        rest = parts[1] if len(parts) > 1 else ""
        rest = re.sub(r"(\w+):\[([^\]]*)\]", lambda m: m.group(1) + ":[" + m.group(2).replace(",", "|") + "]", rest)
        rest = re.sub(r"\(([^)]*)\)", lambda m: "(" + m.group(1).replace(",", "|") + ")", rest)
        ops = [o.strip() for o in rest.split(",")] if rest else []
        mods = []
        if ops:
            last = ops[-1].split()
            ops[-1] = last[0] if last else ""
            mods = last[1:]
        self.mn, self.ops, self.mods = mn, ops, mods
        self.w, self.r = set(), set()
        self.passes = 0
        self.srcC = self.srcAB = self.D = None
        self.ws = 1
        self.trans = self.dpp = self.perm = self.rdlane = self.ldsdma = self.isload = False
        self.wide_store_data = None
        self.target = None
        self.sread_const = set()
        R = [set(regs_of(o)) for o in ops]
        allr = lambda k: set().union(*R[k:]) if len(R) > k else set()
        if mn.startswith("v_mfma") or mn.startswith("v_smfmac"):
            self.cls = "xdl"
            self.passes = 8 if "32x32" in mn else 4
            self.D = R[0]
            self.w = set(R[0])
            if mn.startswith("v_mfma"):
                self.srcAB = R[1] | R[2]
                self.srcC = R[3]
            else:
                self.srcAB = R[1] | R[2] | R[3]
                self.srcC = R[0]
            self.r = self.srcAB | self.srcC
        elif mn.startswith("v_"):
            self.cls = "valu"
            if mn == "v_nop":
                pass
            elif mn.startswith("v_cmpx"):
                self.w = R[0] | EXEC
                self.r = allr(1)
            elif mn.startswith("v_permlane") and "swap" in mn:
                self.w = R[0] | R[1]
                self.r = R[0] | R[1]
                self.perm = True
            elif re.match(r"v_(add|sub|subrev|addc|subb|subbrev)_co_", mn) or mn.startswith("v_div_scale") or mn.startswith("v_mad_u64"):
                self.w = R[0] | R[1]
                self.r = allr(2)
            else:
                self.w = set(R[0])
                self.r = allr(1)
                if re.match(r"v_(fmac|mac|pk_fmac|dot\dc)", mn) or mn.startswith("v_writelane"):
                    self.r |= R[0]
            if mn.startswith("v_readlane") or mn.startswith("v_readfirstlane"):
                self.rdlane = True
            self.trans = mn.startswith(TRANS)
            self.dpp = mn.endswith("_dpp") or any(m.startswith(("row_", "quad_perm", "wave_")) for m in mods)
            if self.dpp:
                self.r |= R[0]
            self.sread_const = {x for x in self.r if x[0] == "s"}
        elif mn.startswith("ds_"):
            self.cls = "ds"
            if mn.startswith(("ds_read", "ds_bpermute", "ds_permute", "ds_swizzle")) or "_rtn" in mn:
                self.w = set(R[0]); self.r = allr(1); self.isload = True
                if "d16" in mn: self.r |= R[0]
            else:
                self.r = allr(0)
        elif mn.startswith(("global_", "buffer_", "flat_", "scratch_")):
            self.cls = "vmem"
            lds = ("lds" in mods) or ("_lds_" in mn)
            if mn.startswith(("buffer_inv", "buffer_wbl2")):
                pass
            elif "_load" in mn:
                if lds:
                    self.r = allr(0) | M0; self.ldsdma = True
                else:
                    self.w = set(R[0]); self.r = allr(1); self.isload = True
            elif "_store" in mn:
                self.r = allr(0)
                if "x3" in mn or "x4" in mn:
                    self.wide_store_data = R[1] if mn.startswith("global_") else R[0]
            elif "_atomic" in mn:
                self.r = allr(0)
                if "sc0" in mods:
                    self.w = set(R[0]); self.isload = True
        elif mn.startswith("s_"):
            self.cls = "salu"
            if mn == "s_nop":
                self.ws = int(ops[0], 0) + 1
            elif mn.startswith(("s_cbranch", "s_branch")):
                self.target = ops[0]
                if "vcc" in mn: self.r = set(SPECIAL["vcc"])
            elif mn.startswith(("s_cmp", "s_waitcnt", "s_barrier", "s_setprio", "s_sleep", "s_endpgm", "s_bitcmp", "s_setreg")):
                self.r = allr(0)
            else:
                self.w = set(R[0]) if R else set()
                self.r = allr(1)
                if "saveexec" in mn: self.w |= EXEC
        else:
            raise ValueError("unknown instruction: " + text)


def need(p, c):
    n = 0
    if p.cls == "valu":
        vw = {x for x in p.w if x[0] != "s"}
        sw = {x for x in p.w if x[0] == "s"}
        if c.cls == "xdl":
            if vw & c.r: n = max(n, 2)
            if sw & EXEC: n = max(n, 4)
        if c.cls == "valu":
            if (c.dpp or c.perm) and (vw & c.r): n = max(n, 2)
            if c.rdlane and (vw & c.r): n = max(n, 1)
            if p.trans and not c.trans and (vw & c.r): n = max(n, 1)
            if sw & c.sread_const: n = max(n, 4 if (c.rdlane or c.mn.startswith("v_writelane")) else 2)
            if (sw & EXEC) and c.dpp: n = max(n, 5)
            if (sw & EXEC) and (c.perm or c.rdlane): n = max(n, 4)
            if ("sdwa" in p.mn or any(m.startswith("op_sel") or m.startswith("dst_sel") for m in p.mods)) and not p.mn.startswith("v_pk") and (vw & (c.r | c.w)): n = max(n, 1)
            if p.mn.startswith("v_dot") and (vw & (c.r | c.w)): n = max(n, 3)
        if c.cls == "vmem" and (sw & c.r): n = max(n, 5)
        if p.trans and c.cls in ("vmem", "ds") and (vw & c.r): n = max(n, 1)
        if p.mn.startswith("v_dot") and c.cls in ("vmem", "ds", "xdl") and (vw & c.r): n = max(n, 3)
    if p.cls == "xdl":
        big = {4: 8, 8: 12}[p.passes]
        if c.cls == "xdl":
            if p.D & c.srcAB: n = max(n, big)
            if p.D & c.srcC:
                if not (p.D == c.srcC and p.passes == c.passes): n = max(n, big - 2)
            elif p.D & c.D: n = max(n, big - 2)
        elif c.cls == "valu":
            if p.D & (c.r | c.w): n = max(n, big)
            if p.srcC & c.w: n = max(n, p.passes - 1)
        elif c.cls in ("vmem", "ds"):
            if p.D & (c.r | c.w): n = max(n, big)
    if p.wide_store_data:
        if p.wide_store_data & c.w and c.cls in ("valu", "xdl"): n = max(n, 2)
        elif p.wide_store_data & c.w: n = max(n, 1)
    if p.cls == "salu" and (p.w & M0) and c.ldsdma: n = max(n, 1)
    return n


WINDOW = 14


class Asm:
    def __init__(self):
        self.items = []
        self._uid = 0

    def I(self, text):
        for ln in text.strip().split("\n"):
            ln = ln.strip()
            if not ln or ln.startswith(";"):
                continue
            if ln.endswith(":"):
                self.items.append(("label", ln[:-1]))
            elif ln.startswith("."):
                self.items.append(("raw", ln))
            else:
                self.items.append(Inst(ln))

    __call__ = I

    def label(self, name):
        self.items.append(("label", name))

    def raw(self, text):
        self.items.append(("raw", text))

    def defer(self, fn):
        self._deferred = getattr(self, "_deferred", []) + [fn]

    def flush_deferred(self):
        d = getattr(self, "_deferred", [])
        self._deferred = []
        for fn in d:
            fn()

    def uid(self, p="L"):
        self._uid += 1
        return f"{p}_{self._uid}"

    @staticmethod
    def _required(hist, c):
        dist = 0
        extra = 0
        for p in reversed(hist):
            if dist >= WINDOW:
                break
            n = need(p, c)
            if n > dist:
                extra = max(extra, n - dist)
            dist += p.ws
        return extra

    def finalize(self):
        out = []
        hist = []
        for it in self.items:
            if isinstance(it, Inst):
                e = self._required(hist, it)
                if e:
                    nop = Inst(f"s_nop {e - 1}")
                    out.append(nop); hist.append(nop)
                out.append(it); hist.append(it)
                if it.mn in ("s_branch", "s_endpgm"):
                    hist = []
                hist = hist[-WINDOW:]
            else:
                out.append(it)
        labels = {it[1]: i for i, it in enumerate(out) if not isinstance(it, Inst) and it[0] == "label"}
        inserts = {}
        for i, it in enumerate(out):
            if isinstance(it, Inst) and it.target is not None:
                if it.target not in labels:
                    raise ValueError("unknown label " + it.target)
                before = []
                j = i
                while j >= 0 and len(before) < WINDOW:
                    if isinstance(out[j], Inst):
                        if j != i and out[j].mn in ("s_branch", "s_endpgm"):
                            break
                        before.append(out[j])
                    j -= 1
                before.reverse()
                h = list(before)
                worst = 0
                j = labels[it.target]
                cnt = 0
                while j < len(out) and cnt < WINDOW:
                    c = out[j]
                    if isinstance(c, Inst):
                        worst = max(worst, self._required(h, c))
                        h.append(c); cnt += c.ws
                        if c.mn in ("s_branch", "s_endpgm"):
                            break
                    j += 1
                if worst:
                    inserts[i] = worst
        res = []
        for i, it in enumerate(out):
            if i in inserts:
                res.append(f"  s_nop {inserts[i] - 1}")
            if isinstance(it, Inst):
                res.append("  " + it.text)
            elif it[0] == "label":
                res.append(it[1] + ":")
            else:
                res.append(it[1])
        return "\n".join(res) + "\n"


def vr(b, n=1, k="v"):
    return f"{k}{b}" if n == 1 else f"{k}[{b}:{b + n - 1}]"


def ar(b, n=1):
    return vr(b, n, "a")


def sr(b, n=1):
    return vr(b, n, "s")
```

```python
from asmgen import *
from chain import xlane_reduce, f32bits

WS_QB = 0x7000000
WS_KB = 0x7400000
WS_VB = 0x7800000
WS_OB = 0x7C00000

B_KOFF, B_VOFF, B_CNT, B_M0, B_FLOOR, B_THR = 52, 53, 55, 82, 56, 57
VL, V_L16 = 0, 4
vKA, vVA, vMX, vT1, vT2, vOO = 8, 9, 10, 11, 12, 13
ONES = 16
Q, NEGM, O, L, S0, KF, VF, P = 20, 36, 52, 84, 100, 164, 180, 196
DL = 204


def battn_task(a, ws, s_wave, s_head, s_qb, cfg, ldflags="", stflags=""):
    WS = f"s[{ws}:{ws+3}]"
    T = cfg.get("thr", 16.0)
    a(f"""s_lshl_b32 s36, s{s_head}, 17
s_lshl_b32 s37, s{s_wave}, 12
s_add_u32 s36, s36, s37
s_add_u32 s{B_KOFF}, s36, {WS_KB:#x}
s_add_u32 s{B_VOFF}, s36, {WS_VB:#x}
s_mov_b32 s{B_M0}, s37""")

    def dma_chunk():
        out = []
        for isv in range(2):
            for i in range(4):
                pre = f"s_add_u32 m0, s{B_M0}, {0x10000 * isv:#x}\n" if i == 0 else ""
                out.append(pre + f"buffer_load_dwordx4 v{V_L16}, {WS}, s{B_VOFF if isv else B_KOFF} offen offset:{i*1024} {ldflags} lds")
        out.append(f"""s_add_u32 s{B_KOFF}, s{B_KOFF}, 0x4000
s_add_u32 s{B_VOFF}, s{B_VOFF}, 0x4000
s_add_u32 s{B_M0}, s{B_M0}, 0x4000
s_and_b32 s{B_M0}, s{B_M0}, 0xffff""")
        return out
    a(f"""s_lshl_b32 s36, s{s_head}, 17
s_lshl_b32 s38, s{s_qb}, 14
s_add_u32 s36, s36, s38
s_add_u32 s36, s36, s37
s_add_u32 s36, s36, {WS_QB:#x}""")
    for qt in range(4):
        a(f"buffer_load_dwordx4 {vr(Q+4*qt,4)}, v{V_L16}, {WS}, s36 offen offset:{qt*1024} {ldflags}")
    for c in range(3):
        for d in dma_chunk(): a(d)
    for i in range(4): a(f"v_mov_b32 v{ONES+i}, 0x3f803f80")
    for i in range(16): a(f"v_mov_b32 v{NEGM+i}, 0")
    for i in range(32): a(f"v_mov_b32 v{O+i}, 0")
    for i in range(16): a(f"v_mov_b32 v{L+i}, 0")
    a(f"""v_mov_b32 v{vKA}, v{V_L16}
v_add_u32 v{vVA}, 0x10000, v{V_L16}
s_mov_b32 s{B_FLOOR}, 0xff800000
s_mov_b32 s{B_THR}, {f32bits(T):#x}
s_mov_b32 s{B_CNT}, 0
s_waitcnt vmcnt(16)
s_barrier""")
    a(f"""v_and_b32 v{vT1}, 15, v{VL}
v_lshlrev_b32 v{vOO}, 11, v{vT1}
v_lshrrev_b32 v{vT1}, 4, v{VL}
v_lshl_add_u32 v{vOO}, v{vT1}, 4, v{vOO}""")

    def kread(par):
        return [f"ds_read_b128 {vr(KF+8*par+4*i,4)}, v{vKA} offset:{i*1024}" for i in range(2)] + \
               [f"v_add_u32 v{vKA}, 0x800, v{vKA}\nv_and_b32 v{vKA}, 0xffff, v{vKA}"]
    def vread(par):
        return [f"ds_read_b128 {vr(VF+8*par+4*i,4)}, v{vVA} offset:{i*1024}" for i in range(2)] + \
               [f"v_add_u32 v{vVA}, 0x800, v{vVA}\nv_and_b32 v{vVA}, 0xffff, v{vVA}\nv_or_b32 v{vVA}, 0x10000, v{vVA}"]
    def smf(par, qt, i):
        d = S0 + 32 * par + 8 * qt + 4 * i
        return f"v_mfma_f32_16x16x32_bf16 {vr(d,4)}, {vr(KF+8*par+4*i,4)}, {vr(Q+4*qt,4)}, {vr(NEGM+4*qt,4)}"
    def maxes(par, qt):
        b = S0 + 32 * par + 8 * qt
        out = []
        for i in range(4):
            if qt == 0 and i == 0:
                out.append(f"v_max_f32 v{vMX}, v{b}, v{b+1}")
            else:
                out.append(f"v_max3_f32 v{vMX}, v{vMX}, v{b+2*i}, v{b+2*i+1}")
        return out

    def rare(par, back):
        for qt in range(4):
            b = S0 + 32 * par + 8 * qt
            a(f"""v_max3_f32 v{vT1}, v{b}, v{b+1}, v{b+2}
v_max3_f32 v{vT1}, v{vT1}, v{b+3}, v{b+4}
v_max3_f32 v{vT1}, v{vT1}, v{b+5}, v{b+6}
v_max_f32 v{vT1}, v{vT1}, v{b+7}""")
            xlane_reduce(a, "v_max_f32", vT1, vT2)
            a(f"""v_max_f32 v{DL}, s{B_FLOOR}, v{vT1}
v_max_f32 v{vT1}, 0, v{vT1}
v_exp_f32 v{DL+2}, -v{vT1}""")
            for i in range(8): a(f"v_sub_f32 v{b+i}, v{b+i}, v{DL}")
            for i in range(4): a(f"v_sub_f32 v{NEGM+4*qt+i}, v{NEGM+4*qt+i}, v{DL}")
            for i in range(8): a(f"v_mul_f32 v{O+8*qt+i}, v{O+8*qt+i}, v{DL+2}")
            for i in range(4): a(f"v_mul_f32 v{L+4*qt+i}, v{L+4*qt+i}, v{DL+2}")
        a(f"s_mov_b32 s{B_FLOOR}, 0")
        a(f"s_branch {back}")

    for x in kread(0) + kread(1) + vread(0): a(x)
    a("s_waitcnt lgkmcnt(0)")
    for qt in range(4):
        for i in range(2): a(smf(0, qt, i))
    lp, r0, r1, b0, b1, fin = (a.uid("ba") for _ in range(6))
    a("s_nop 7")
    a(f"s_branch {r0}")
    a.label(lp)
    for par in range(2):
        a.label(b0 if par == 0 else b1)
        if par == 0:
            sk = a.uid("bs")
            a(f"""s_and_b32 s36, s{B_CNT}, 3
s_cmp_lg_u32 s36, 3
s_cbranch_scc1 {sk}
s_waitcnt vmcnt(8)
s_barrier
s_cmp_ge_u32 s{B_CNT}, 23
s_cselect_b32 s{B_KOFF}, 0x7f000000, s{B_KOFF}
s_cselect_b32 s{B_VOFF}, 0x7f000000, s{B_VOFF}""")
            for d in dma_chunk(): a(d)
            a.label(sk)
        a("s_waitcnt lgkmcnt(0)")
        extra = kread(par) + vread(1 - par)
        for qt in range(4):
            b = S0 + 32 * par + 8 * qt
            p = P + 4 * (qt % 2)
            mx = maxes(1 - par, qt - 1) if qt > 0 else []
            ex = [f"v_exp_f32 v{b+i}, v{b+i}" for i in range(8)]
            cv = [f"v_cvt_pk_bf16_f32 v{p+i}, v{b+2*i}, v{b+2*i+1}" for i in range(4)]
            a(smf(1 - par, qt, 0)); a(ex[0]); a(ex[1])
            if extra: a(extra.pop(0))
            a(smf(1 - par, qt, 1)); a(ex[2]); a(ex[3])
            if extra: a(extra.pop(0))
            if qt > 0:
                pp = P + 4 * ((qt - 1) % 2)
                pv = lambda i: f"v_mfma_f32_16x16x32_bf16 {vr(O+8*(qt-1)+4*i,4)}, {vr(VF+8*par+4*i,4)}, {vr(pp,4)}, {vr(O+8*(qt-1)+4*i,4)}"
                a(pv(0)); a(ex[4]); a(ex[5]); a(pv(1)); a(ex[6]); a(ex[7])
                a(f"v_mfma_f32_16x16x32_bf16 {vr(L+4*(qt-1),4)}, {vr(ONES,4)}, {vr(pp,4)}, {vr(L+4*(qt-1),4)}")
            else:
                for i in range(4, 8): a(ex[i])
            for x in mx: a(x)
            for x in cv: a(x)
        qt = 3; pp = P + 4
        mx = maxes(1 - par, 3)
        a(mx[0]); a(mx[1])
        a(f"v_mfma_f32_16x16x32_bf16 {vr(O+24,4)}, {vr(VF+8*par,4)}, {vr(pp,4)}, {vr(O+24,4)}")
        a(mx[2]); a(mx[3])
        a(f"v_mfma_f32_16x16x32_bf16 {vr(O+28,4)}, {vr(VF+8*par+4,4)}, {vr(pp,4)}, {vr(O+28,4)}")
        a(f"v_cmp_lt_f32 vcc, s{B_THR}, v{vMX}")
        a(f"v_mfma_f32_16x16x32_bf16 {vr(L+12,4)}, {vr(ONES,4)}, {vr(pp,4)}, {vr(L+12,4)}")
        if par == 0:
            a(f"s_cbranch_vccnz {r1}")
        else:
            a(f"""s_add_u32 s{B_CNT}, s{B_CNT}, 1
s_cmp_eq_u32 s{B_CNT}, 32
s_cbranch_scc1 {fin}
s_cbranch_vccz {lp}""")
    a.label(r0)
    rare(0, b0)
    a.label(r1)
    rare(1, b1)
    a.label(fin)
    a(f"""s_lshl_b32 s36, s{s_qb}, 19
s_lshl_b32 s37, s{s_wave}, 17
s_add_u32 s36, s36, s37
s_lshl_b32 s37, s{s_head}, 6
s_add_u32 s36, s36, s37
s_add_u32 s36, s36, {WS_OB:#x}""")
    for qt in range(4):
        a(f"v_rcp_f32 v{DL}, v{L+4*qt}")
        for i in range(0, 8, 2):
            a(f"v_pk_mul_f32 {vr(O+8*qt+i,2)}, {vr(O+8*qt+i,2)}, {vr(DL,2)} op_sel_hi:[1,0]")
        d = S0 + 4 * qt
        for i in range(4):
            a(f"v_cvt_pk_bf16_f32 v{d+i}, v{O+8*qt+2*i}, v{O+8*qt+2*i+1}")
        a(f"buffer_store_dwordx4 {vr(d,4)}, v{vOO}, {WS}, s36 offen {stflags}")
        a("s_add_u32 s36, s36, 0x8000")
    a("s_waitcnt lgkmcnt(0)")
```

```python
from asmgen import *

WS_KX = 0x0000000
WS_QX = 0x1000000
WS_VX = 0x2000000
WS_OX = 0x3000000
WS_MEMT = 0x4000000
WS_VM = 0x4400000
WS_OM = 0x4800000
WS_PART = 0x5000000
WS_STAMP = 0x6000000
WS_SIZE = 0x10000000
NSEG = 64
NT = 4
NCHAIN = NT * 24

S_WS = 8
S_DBG = 12
S_W0 = 16
S_W1 = 20
S_W2 = 24
S_WAVE, S_TEAM, S_J, S_MODE, S_STEP = 28, 29, 30, 31, 32
S_C = 34
S_T0, S_T1, S_T2, S_T3, S_T4, S_T5 = 36, 37, 38, 39, 40, 41
S_OFF_A, S_OFF_B, S_OFF_C, S_OFF_D, S_OFF_E, S_OFF_F = 42, 43, 44, 45, 46, 47
S_BUDGET = 48
S_HEAD = 49
S_TS = 50
POLL_BUDGET = 400000

LOG2E = 1.4426950408889634
import struct
def f32bits(x):
    return struct.unpack("<I", struct.pack("<f", x))[0]


def srd(a, dst, ptr_off, size, tmp=4):
    a(f"""s_load_dwordx2 s[{tmp}:{tmp+1}], s[0:1], {ptr_off}
s_waitcnt lgkmcnt(0)
s_mov_b32 s{dst}, s{tmp}
s_and_b32 s{dst+1}, s{tmp+1}, 0xffff
s_mov_b32 s{dst+2}, {size:#x}
s_mov_b32 s{dst+3}, 0x20000""")


def store_mode(a, instr):
    l1, l2 = a.uid("sm"), a.uid("sm")
    a(f"""s_cmp_eq_u32 s{S_MODE}, 1
s_cbranch_scc0 {l1}
{instr}
{l2}:""")
    a.defer(lambda: a(f"""{l1}:
{instr} sc1
s_branch {l2}"""))


def check_regs(a, regs, tmp, retry_label):
    regs = list(regs)
    if len(regs) == 1:
        cur = regs[0]
    else:
        if len(regs) == 2:
            a(f"v_max_u32 v{tmp}, v{regs[0]}, v{regs[1]}"); rest = []
        else:
            a(f"v_max3_u32 v{tmp}, v{regs[0]}, v{regs[1]}, v{regs[2]}"); rest = regs[3:]
        while rest:
            if len(rest) >= 2:
                a(f"v_max3_u32 v{tmp}, v{tmp}, v{rest[0]}, v{rest[1]}"); rest = rest[2:]
            else:
                a(f"v_max_u32 v{tmp}, v{tmp}, v{rest[0]}"); rest = rest[1:]
        cur = tmp
    a(f"v_cmp_eq_u32 vcc, -1, v{cur}")
    a(f"s_cbranch_vccnz {retry_label}")


def poll(a, loads, vt, on_ready=None, staged=True, cap=12, sleep=0, pre_sleep=0, prefill=True, first_issued=False):
    n = len(loads)
    if not first_issued:
        if prefill:
            for _, regs in loads:
                for r in regs: a(f"v_mov_b32 v{r}, -1")
        if pre_sleep: a(f"s_sleep {pre_sleep}")
    groups = [[i] for i in range(n)] if staged else [list(range(n))]
    for gi, grp in enumerate(groups):
        lp, chk = a.uid("pl"), a.uid("pc")
        def body(grp=grp, lp=lp):
            a.label(lp)
            budget_head(a)
            for i in range(grp[0], n):
                a(loads[i][0])
            if sleep: a(f"s_sleep {sleep}")
            a(f"s_waitcnt vmcnt({min(63, cap * (n - grp[0]))})")
        if gi > 0 or first_issued:
            def ool(body=body, chk=chk):
                body(); a(f"s_branch {chk}")
            a.defer(ool)
        else:
            body()
        a.label(chk)
        check_regs(a, [r for i in grp for r in loads[i][1]], vt, lp)
        if on_ready:
            for i in grp: on_ready(i)


def budget_head(a, fail="L_fail"):
    a(f"""s_sub_u32 s{S_BUDGET}, s{S_BUDGET}, 1
s_cbranch_scc1 {fail}""")


def stamp(a, idx, cfg):
    if not cfg.get("stamps"):
        return
    a(f"{'s_memrealtime' if cfg.get('rt') else 's_memtime'} s[{S_TS}:{S_TS+1}]")
    a("s_waitcnt lgkmcnt(0)")
    a(f"s_mov_b32 s{60+idx}, s{S_TS}")


def stamp_flush(a, cfg):
    if not cfg.get("stamps"):
        return
    r = cfg["stamp_reg"]
    for i in range(8):
        a(f"v_writelane_b32 v{r}, s{60+i}, {i}")
    a(f"""s_lshl_b32 s{S_T0}, s2, 2
s_add_u32 s{S_T0}, s{S_T0}, s{S_WAVE}
s_lshl_b32 s{S_T0}, s{S_T0}, 6
s_add_u32 s{S_T0}, s{S_T0}, s{S_STEP}
s_lshl_b32 s{S_T0}, s{S_T0}, 8
s_add_u32 s{S_T0}, s{S_T0}, {WS_STAMP:#x}
buffer_store_dword v{r}, v{cfg['lane4_reg']}, s[{S_WS}:{S_WS+3}], s{S_T0} offen""")


def startup_barrier(a, vt0, vt1, vt2):
    lp = a.uid("sb"); skip = a.uid("sb")
    a(f"""s_waitcnt vmcnt(0) lgkmcnt(0)
s_barrier
s_cmp_lg_u32 s{S_WAVE}, 0
s_cbranch_scc1 {skip}
s_getreg_b32 s{S_T0}, hwreg(HW_REG_XCC_ID)
s_and_b32 s{S_T0}, s{S_T0}, 7
s_lshl_b32 s{S_T1}, s{S_TEAM}, 3
s_add_u32 s{S_T0}, s{S_T0}, s{S_T1}
s_lshl_b32 s{S_T0}, 1, s{S_T0}
v_mov_b32 v{vt0}, s{S_T0}
v_mov_b32 v{vt1}, 1
v_mov_b32 v{vt2}, 0
s_mov_b64 exec, 1
buffer_atomic_or v{vt0}, v{vt2}, s[{S_DBG}:{S_DBG+3}], 0 offen offset:4 sc1
s_waitcnt vmcnt(0)
buffer_atomic_add v{vt1}, v{vt2}, s[{S_DBG}:{S_DBG+3}], 0 offen sc1
s_mov_b64 exec, -1
{skip}:
v_mov_b32 v{vt2}, 0
{lp}:""")
    budget_head(a)
    a(f"""s_sleep 2
buffer_load_dwordx2 v[{vt0}:{vt1}], v{vt2}, s[{S_DBG}:{S_DBG+3}], 0 offen sc1
s_waitcnt vmcnt(0)
v_readfirstlane_b32 s{S_T0}, v{vt0}
v_readfirstlane_b32 s{S_T1}, v{vt1}
s_nop 3
s_cmp_lt_u32 s{S_T0}, {NCHAIN}
s_cbranch_scc1 {lp}
s_lshl_b32 s{S_T2}, s{S_TEAM}, 3
s_lshr_b32 s{S_T1}, s{S_T1}, s{S_T2}
s_and_b32 s{S_T1}, s{S_T1}, 0xff
s_bcnt1_i32_b32 s{S_T1}, s{S_T1}
s_cmp_eq_u32 s{S_T1}, 1
s_cselect_b32 s{S_MODE}, 1, 0""")


def xlane_reduce(a, op, m, m2):
    a(f"""v_mov_b32 v{m2}, v{m}
v_permlane16_swap_b32 v{m}, v{m2}
{op} v{m}, v{m}, v{m2}
v_mov_b32 v{m2}, v{m}
v_permlane32_swap_b32 v{m}, v{m2}
{op} v{m}, v{m}, v{m2}""")


L_MEM = 0
L_QK = 0x4000
L_QX = 0x5000
L_RED = 0x4000
L_W = 0x8000
LDS_BYTES = 160 * 1024
S_MK0 = 70
S_MKC = 72
S_WOFF = 80


def gather_mem(a, G, vGOFF, vLW, vt, cfg, who):
    loads = [(f"buffer_load_dwordx4 {vr(G+4*i,4)}, v{vGOFF}, s[{S_WS}:{S_WS+3}], s{S_OFF_A} offen offset:{1024*i} sc1",
              list(range(G + 4 * i, G + 4 * i + 4))) for i in range(4)]
    o = cfg.get(who + "_mem", {})
    poll(a, loads, vt, lambda i: a(f"ds_write_b128 v{vLW}, {vr(G+4*i,4)} offset:{1024*i}"),
         staged=o.get("staged", True), cap=o.get("cap", 1), sleep=o.get("sleep", 0), pre_sleep=o.get("pre", 0))
    a("s_waitcnt lgkmcnt(0)")
    a("s_barrier")


def common_lane_consts(a, vLANE, vt):
    a(f"""v_and_b32 v{vLANE}, 63, v0""")


def atr_addr(a, dst, vLANE, t0, t1):
    a(f"""v_lshrrev_b32 v{t0}, 4, v{vLANE}
v_lshlrev_b32 v{dst}, 7, v{t0}
v_bfe_u32 v{t0}, v{vLANE}, 1, 1
v_lshl_add_u32 v{dst}, v{t0}, 6, v{dst}
v_bfe_u32 v{t0}, v{vLANE}, 2, 2
v_lshl_add_u32 v{dst}, v{t0}, 4, v{dst}
v_and_b32 v{t0}, 1, v{vLANE}
v_lshl_add_u32 v{dst}, v{t0}, 3, v{dst}
v_add_u32 v{dst}, {L_MEM:#x}, v{dst}""")


def idx_reg(a, dst, vLANE, t0):
    a(f"""v_and_b32 v{t0}, 8, v{vLANE}
v_cmp_eq_u32 vcc, 0, v{t0}
v_mov_b32 v{dst}, 0xeeeeeeee
v_mov_b32 v{t0}, 0x44444444
v_cndmask_b32 v{dst}, v{dst}, v{t0}, vcc""")


def brow_mem(gb, j):
    return 32 * (gb % 2) + 16 * (j // 8) + 8 * (gb // 2) + 4 * ((j % 4) // 2) + 2 * ((j % 8) // 4) + j % 2
def brow_om(gb, j):
    return 32 * ((j % 4) // 2) + 8 * (2 * (j // 8) + gb // 2) + 4 * (gb % 2) + 2 * ((j % 8) // 4) + j % 2


def s_cu(a, cfg):
    vT, vGOFF, vATR, vBL0, vBL1, vQKW, vQKR, vIDX, vL16, vOXO, vVMO, vNEG = range(0, 12)
    KX, VX = 12, 44
    P = 52
    ACC, G, BR, AR = P, P + 16, P + 32, P + 56
    NB, NA = 3, 5
    T, VM, QF, KMF, PX, PZ, MI = P, P + 16, P + 32, P + 48, P + 64, P + 68, P + 20
    vLANE, vT2 = P + 30, P + 31
    cfg = dict(cfg); cfg["stamp_reg"] = MI + 5; cfg["lane4_reg"] = MI + 6
    WS = f"s[{S_WS}:{S_WS+3}]"

    def wreg(ks, tile):
        if ks < 8: return ("a", (ks * 4 + tile) * 8)
        if ks < 12: return ("v", 128 + ((ks - 8) * 4 + tile) * 8)
        return None

    a(f"""s_lshl_b32 s{S_HEAD}, s{S_TEAM}, 3
s_add_u32 s{S_HEAD}, s{S_HEAD}, s{S_J}""")
    srd(a, S_W0, 16, 1024 * 8192)
    srd(a, S_W1, 24, 1024 * 8192)
    a(f"v_and_b32 v{vLANE}, 63, v0")
    a(f"v_lshlrev_b32 v{vL16}, 4, v{vLANE}")
    vD = P + 27
    a(f"""v_lshrrev_b32 v{vT}, 4, v{vLANE}
v_lshlrev_b32 v{vD}, 13, v{vT}
v_and_b32 v{vT}, 15, v{vLANE}
v_lshl_add_u32 v{vD}, v{vT}, 4, v{vD}
s_lshl_b32 s{S_T0}, s{S_HEAD}, 8
s_lshr_b32 s{S_T1}, s{S_WAVE}, 1
s_lshl_b32 s{S_T1}, s{S_T1}, 19
s_add_u32 s{S_T0}, s{S_T0}, s{S_T1}
v_add_u32 v{vD}, s{S_T0}, v{vD}
s_and_b32 s{S_T1}, s{S_WAVE}, 1
s_cmp_eq_u32 s{S_T1}, 1
s_cselect_b32 s{S_W2}, s{S_W1}, s{S_W0}
s_cselect_b32 s{S_W2+1}, s{S_W1+1}, s{S_W0+1}
s_mov_b32 s{S_W2+2}, {1024*8192:#x}
s_mov_b32 s{S_W2+3}, 0x20000
s_lshl_b32 s{S_T2}, s{S_WAVE}, 14""")

    def issue_hc(hc):
        a(f"s_add_u32 s{S_T3}, s{S_T2}, {L_W + (hc % 2) * 65536}")
        for i in range(16):
            a(f"s_add_u32 m0, s{S_T3}, {i*1024}")
            a(f"s_mov_b32 s{S_T4}, {hc * 128 * 8192 + i * 4 * 8192:#x}")
            a(f"buffer_load_dwordx4 v{vD}, s[{S_W2}:{S_W2+3}], s{S_T4} offen lds")

    vWT = P + 28
    a(f"""v_bfe_u32 v{vT}, v{vLANE}, 4, 1
v_lshlrev_b32 v{vWT}, 13, v{vT}
v_bfe_u32 v{vT}, v{vLANE}, 5, 1
v_lshl_add_u32 v{vWT}, v{vT}, 11, v{vWT}
v_bfe_u32 v{vT}, v{vLANE}, 3, 1
v_lshl_add_u32 v{vWT}, v{vT}, 10, v{vWT}
v_bfe_u32 v{vT}, v{vLANE}, 2, 1
v_lshl_add_u32 v{vWT}, v{vT}, 8, v{vWT}
v_and_b32 v{vT}, 3, v{vLANE}
v_lshl_add_u32 v{vWT}, v{vT}, 3, v{vWT}
s_lshl_b32 s{S_T0}, s{S_WAVE}, 6
s_add_u32 s{S_T0}, s{S_T0}, {L_W:#x}
v_add_u32 v{vWT}, s{S_T0}, v{vWT}
v_add_u32 v{vWT+1}, 0x10000, v{vWT}""")

    def read_tiles(hc, dst_fn):
        for ksl in range(2):
            for tile in range(4):
                mat, u = tile // 2, tile % 2
                k, b = dst_fn(2 * hc + ksl, tile)
                for v in range(4):
                    off = ksl * 32768 + mat * 16384 + (16 * (v // 2) + 2 * (v % 2)) * 256 + u * 32
                    a(f"ds_read_b64_tr_b16 {vr(b+2*v,2,k)}, v{vWT + hc % 2} offset:{off}")
                a("s_waitcnt lgkmcnt(8)")

    issue_hc(0); issue_hc(1)
    for hc in range(6):
        a("s_waitcnt vmcnt(16)\ns_barrier")
        read_tiles(hc, wreg)
        a("s_waitcnt lgkmcnt(0)\ns_barrier")
        issue_hc(hc + 2)
    a(f"""s_lshl_b32 s{S_T0}, s{S_WAVE}, 13
s_add_u32 s{S_T0}, s{S_T0}, {L_W:#x}
v_add_u32 v{vBL0}, s{S_T0}, v{vL16}
v_add_u32 v{vBL1}, 0x10000, v{vBL0}""")
    tmpregs = list(range(12, 76, 8))
    for hc in (6, 7):
        a(f"s_waitcnt vmcnt({16 if hc == 6 else 0})\ns_barrier")
        read_tiles(hc, lambda ks, tile: ("v", tmpregs[(ks % 2) * 4 + tile]))
        a("s_waitcnt lgkmcnt(0)\ns_barrier")
        for ksl in range(2):
            for tile in range(4):
                b = tmpregs[ksl * 4 + tile]
                for hf in range(2):
                    a(f"ds_write_b128 v{vBL0 + hc % 2}, {vr(b+4*hf,4)} offset:{ksl*32768 + tile*2048 + hf*1024}")
        a("s_waitcnt lgkmcnt(0)")

    a(f"""s_lshl_b32 s{S_T0}, s{S_WAVE}, 12
v_add_u32 v{vGOFF}, s{S_T0}, v{vL16}""")
    atr_addr(a, vATR, vLANE, vT, vT2)
    idx_reg(a, vIDX, vLANE, vT)
    a(f"""v_lshrrev_b32 v{vT}, 5, v{vLANE}
v_lshlrev_b32 v{vQKW}, 8, v{vT}
v_and_b32 v{vT}, 15, v{vLANE}
v_lshl_add_u32 v{vQKW}, v{vT}, 4, v{vQKW}
v_bfe_u32 v{vT}, v{vLANE}, 4, 1
v_lshl_add_u32 v{vQKW}, v{vT}, 3, v{vQKW}
s_lshl_b32 s{S_T0}, s{S_WAVE}, 9
v_add_u32 v{vQKW}, s{S_T0}, v{vQKW}""")
    a(f"""v_lshrrev_b32 v{vT}, 2, v{vLANE}
v_lshlrev_b32 v{vQKR}, 4, v{vT}
v_and_b32 v{vT}, 1, v{vLANE}
v_lshl_add_u32 v{vQKR}, v{vT}, 3, v{vQKR}""")
    a(f"""s_lshr_b32 s{S_T0}, s{S_WAVE}, 1
s_lshl_b32 s{S_T0}, s{S_T0}, 10
s_and_b32 s{S_T1}, s{S_WAVE}, 1
s_lshl_b32 s{S_T1}, s{S_T1}, 7
s_add_u32 s{S_T0}, s{S_T0}, s{S_T1}
s_add_u32 s{S_WOFF}, s{S_T0}, {WS_OM:#x}""")
    a(f"""v_and_b32 v{vT}, 15, v{vLANE}
v_lshlrev_b32 v{vOXO}, 13, v{vT}
v_lshrrev_b32 v{vT}, 4, v{vLANE}
v_lshl_add_u32 v{vOXO}, v{vT}, 4, v{vOXO}
s_lshl_b32 s{S_T0}, s{S_HEAD}, 8
s_lshl_b32 s{S_T1}, s{S_WAVE}, 6
s_add_u32 s{S_T0}, s{S_T0}, s{S_T1}
v_add_u32 v{vOXO}, s{S_T0}, v{vOXO}""")
    a(f"""v_and_b32 v{vT}, 31, v{vLANE}
v_lshlrev_b32 v{vVMO}, 4, v{vT}
s_lshl_b32 s{S_T0}, s{S_WAVE}, 9
v_add_u32 v{vVMO}, s{S_T0}, v{vVMO}""")
    a(f"""v_mov_b32 v{vNEG}, 0xff800000
s_mov_b32 s{S_MK0}, -1
s_mov_b32 s{S_MK0+1}, 0""")
    for r in range(4):
        m = 0
        for l in range(64):
            if 4 * (l // 16) + r <= l % 16: m |= 1 << l
        a(f"s_mov_b32 s{S_MKC+2*r}, {m & 0xffffffff:#x}\ns_mov_b32 s{S_MKC+2*r+1}, {m >> 32:#x}")
    cbits = f32bits(128 ** -0.5 * LOG2E)
    a(f"s_mov_b32 s{S_C}, {cbits:#x}\ns_mov_b32 s{S_C+1}, {cbits:#x}")
    a(f"""s_mov_b32 s{S_STEP}, 0
s_lshl_b32 s{S_OFF_A}, s{S_TEAM}, 20
s_add_u32 s{S_OFF_A}, s{S_OFF_A}, {WS_MEMT:#x}
s_lshl_b32 s{S_OFF_B}, s{S_HEAD}, 13
s_lshl_b32 s{S_OFF_C}, s{S_HEAD}, 11
s_mov_b32 s{S_OFF_D}, {WS_OX:#x}""")

    def prefetch_x():
        a(f"s_add_u32 s{S_T0}, s{S_OFF_B}, {WS_KX:#x}")
        a(f"s_add_u32 s{S_T1}, s{S_T0}, 4096")
        for f in range(8):
            a(f"buffer_load_dwordx4 {vr(KX+4*f,4)}, v{vL16}, {WS}, s{S_T0 if f < 4 else S_T1} offen offset:{(f%4)*1024} sc1")
        a(f"""s_lshl_b32 s{S_T2}, s{S_WAVE}, 11
s_add_u32 s{S_T0}, s{S_OFF_B}, s{S_T2}
s_add_u32 s{S_T1}, s{S_T0}, {WS_VX:#x}""")
        for f in range(2):
            a(f"buffer_load_dwordx4 {vr(VX+4*f,4)}, v{vL16}, {WS}, s{S_T1} offen offset:{f*1024} sc1")
        a(f"""s_add_u32 s{S_T1}, s{S_T0}, {WS_QX:#x}
s_add_u32 m0, s{S_T2}, {L_QX:#x}""")
        for f in range(2):
            a(f"buffer_load_dwordx4 v{vL16}, {WS}, s{S_T1} offen offset:{f*1024} sc1 lds")

    seq = []
    for grp in range(4):
        for q in range(4):
            for x in range(3):
                i = q * 3 + x
                seq.append((3 * grp + i // 4, i % 4))
            seq.append((12 + grp, q))
    lds_tiles = [(ks, t) for ks, t in seq if ks >= 12]
    a_order = []
    for ks, t in seq:
        if ks not in a_order: a_order.append(ks)

    def bload_instrs(i):
        ks, t = lds_tiles[i]
        b = BR + 8 * (i % NB)
        base = vBL0 + (ks - 12) // 2
        off = ((ks - 12) % 2) * 32768 + t * 2048
        return [f"ds_read_b128 {vr(b,4)}, v{base} offset:{off}", f"ds_read_b128 {vr(b+4,4)}, v{base} offset:{off+1024}"]

    def tinit(t, kind):
        for r in range(4):
            m = S_MK0 if kind == "m0" else S_MKC + 2 * r
            a(f"v_cndmask_b32 v{T+4*t+r}, v{vNEG}, 0, s[{m}:{m+1}]")

    def softmax_pv(tiles, store_fn, pre_pv=None):
        m, m2, nm = MI, MI + 1, MI + 2
        regs = [T + 4 * t + r for t in tiles for r in range(4)]
        order = [T + 4 * t + r for t in tiles[1:] + tiles[:1] for r in range(4)]
        a(f"v_max3_f32 v{m}, v{order[0]}, v{order[1]}, v{order[2]}")
        rest = order[3:]
        while rest:
            if len(rest) >= 2:
                a(f"v_max3_f32 v{m}, v{m}, v{rest[0]}, v{rest[1]}"); rest = rest[2:]
            else:
                a(f"v_max_f32 v{m}, v{m}, v{rest[0]}"); rest = rest[1:]
        xlane_reduce(a, "v_max_f32", m, m2)
        a(f"v_mul_f32 v{nm}, s{S_C}, v{m}")
        for i in range(0, len(order), 2):
            a(f"v_pk_fma_f32 {vr(order[i],2)}, {vr(order[i],2)}, s[{S_C}:{S_C+1}], {vr(nm,2)} op_sel_hi:[1,1,0] neg_lo:[0,0,1] neg_hi:[0,0,1]")
        for r in order[:-4]:
            a(f"v_exp_f32 v{r}, v{r}")
        a(f"v_exp_f32 v{order[-4]}, v{order[-4]}")
        for t in (1, 2):
            for hf in range(2):
                d = PX + 2 * (t - 1) + hf
                if t in tiles:
                    a(f"v_cvt_pk_bf16_f32 v{d}, v{T+4*t+2*hf}, v{T+4*t+2*hf+1}")
                else:
                    a(f"v_mov_b32 v{d}, 0")
        O = QF
        a(f"v_exp_f32 v{order[-3]}, v{order[-3]}")
        a(f"v_exp_f32 v{order[-2]}, v{order[-2]}")
        a(f"v_mfma_f32_16x16x32_bf16 {vr(O,4)}, {vr(VX,4)}, {vr(PX,4)}, 0")
        a(f"v_exp_f32 v{order[-1]}, v{order[-1]}")
        a(f"v_mfma_f32_16x16x32_bf16 {vr(O+4,4)}, {vr(VX+4,4)}, {vr(PX,4)}, 0")
        for hf in range(2):
            a(f"v_cvt_pk_bf16_f32 v{PZ+2+hf}, v{T+2*hf}, v{T+2*hf+1}")
        if pre_pv: pre_pv()
        sums = [f"v_pk_add_f32 {vr(regs[0],2)}, {vr(regs[0],2)}, {vr(regs[i],2)}" for i in range(2, len(regs), 2)]
        a(sums[0]); a(sums[1])
        a(f"v_mfma_f32_16x16x32_bf16 {vr(O,4)}, {vr(VM,4)}, {vr(PZ+2,4)}, {vr(O,4)}")
        a(f"v_mfma_f32_16x16x32_bf16 {vr(O+4,4)}, {vr(VM,4)}, {vr(PZ,4)}, {vr(O+4,4)}")
        for x in sums[2:]: a(x)
        a(f"v_add_f32 v{m}, v{regs[0]}, v{regs[1]}")
        xlane_reduce(a, "v_add_f32", m, m2)
        a(f"v_rcp_f32 v{nm}, v{m}")
        for i in range(0, 8, 2):
            a(f"v_pk_mul_f32 {vr(O+i,2)}, {vr(O+i,2)}, {vr(nm,2)} op_sel_hi:[1,0]")
        for i in range(4):
            a(f"v_cvt_pk_bf16_f32 v{PX+i}, v{O+2*i}, v{O+2*i+1}")
        store_fn(PX)

    def scores(tiles, zero):
        for ks in range(4):
            for t in tiles:
                A = KMF + 4 * ks if t == 0 else KX + 16 * (t - 1) + 4 * ks
                C = "0" if (ks == 0 and t in zero) else vr(T + 4 * t, 4)
                a(f"v_mfma_f32_16x16x32_bf16 {vr(T+4*t,4)}, {vr(A,4)}, {vr(QF+4*ks,4)}, {C}")

    prefetch_x()
    startup_barrier(a, P, P + 1, P + 2)
    a.label("S_loop")
    stamp(a, 0, cfg)
    for i in range(NB):
        for x in bload_instrs(i): a(x)
    for i in range(16): a(f"v_mov_b32 v{ACC+i}, 0")
    a(f"s_add_u32 s{S_T5}, s{S_OFF_C}, {WS_VM:#x}")
    a("s_waitcnt vmcnt(0)")
    gather_mem(a, G, vGOFF, vGOFF, vT, cfg, "s")
    stamp(a, 1, cfg)
    aslot = {}
    issued = []
    pending = []
    free_slots = list(range(NA))
    def aload(n):
        ks = a_order[n]
        aslot[ks] = AR + 4 * free_slots.pop(0)
        for u in range(2):
            pending.append((("A", ks), f"ds_read_b64_tr_b16 {vr(aslot[ks]+2*u,2)}, v{vATR} offset:{L_MEM + ks*1024+u*512}"))
    def flush(n):
        for _ in range(min(n, len(pending))):
            tag, ins = pending.pop(0)
            a(ins); issued.append(tag)
    last_use = {}
    first_use = {}
    for i, (ks, t) in enumerate(seq):
        last_use[ks] = i; first_use.setdefault(ks, i)
    lds_pos = [i for i, (ks, t) in enumerate(seq) if ks >= 12]
    def deadline(tag):
        return first_use[tag[1]] if tag[0] == "A" else lds_pos[tag[1]]
    nexta = 0
    for n in range(NA): aload(n); nexta += 1
    flush(cfg.get("a_pre", 6))
    nextb = NB
    done_wait = -1
    li = 0
    for i, (ks, t) in enumerate(seq):
        needs = [("A", ks)]
        if ks >= 12 and li >= NB: needs.append(("B", li))
        while any(tg in needs for tg, _ in pending): flush(1)
        idx = max(max(k for k, tg in enumerate(issued) if tg == tag) for tag in needs)
        if idx > done_wait:
            a(f"s_waitcnt lgkmcnt({min(15, len(issued)-1-idx)})")
            done_wait = idx
        w = wreg(ks, t)
        B = vr(BR + 8 * (li % NB), 8) if w is None else vr(w[1], 8, w[0])
        a(f"v_smfmac_f32_16x16x64_bf16 {vr(ACC+4*t,4)}, {vr(aslot[ks],4)}, {B}, v{vIDX}")
        if w is None:
            li += 1
            if nextb < 16:
                for x in bload_instrs(nextb): pending.append((("B", nextb), x))
                nextb += 1
        if last_use[ks] == i:
            free_slots.append((aslot[ks] - AR) // 4)
            if nexta < 16:
                aload(nexta); nexta += 1
        pending.sort(key=lambda p: deadline(p[0]))
        flush(cfg.get("per_gap", 1))
        if i == cfg.get("vm_at", 48):
            a(f"buffer_load_dwordx4 {vr(VM,4)}, v{vVMO}, {WS}, s{S_T5} offen sc1")
    stamp(a, 2, cfg)
    for mat in range(2):
        A0, A1 = ACC + 8 * mat, ACC + 8 * mat + 4
        for r in range(4):
            a(f"v_permlane32_swap_b32 v{A0+r}, v{A1+r}")
        for r in range(0, 4, 2):
            a(f"v_pk_add_f32 {vr(A0+r,2)}, {vr(A0+r,2)}, {vr(A1+r,2)}")
        D = ACC + 12 + 2 * mat if mat == 1 else ACC + 4
        a(f"v_cvt_pk_bf16_f32 v{D}, v{A0}, v{A0+1}")
        a(f"v_cvt_pk_bf16_f32 v{D+1}, v{A0+2}, v{A0+3}")
        a(f"ds_write_b64 v{vQKW}, {vr(D,2)} offset:{L_QK + mat*2048}")
    tinit(0, "m0")
    a("s_waitcnt lgkmcnt(0)\ns_barrier")
    for ks in range(4):
        for u in range(2):
            a(f"ds_read_b64_tr_b16 {vr(QF+4*ks+2*u,2)}, v{vQKR} offset:{L_QK + (32*ks+16*u)*16}")
    for ks in range(3):
        for u in range(2):
            a(f"ds_read_b64_tr_b16 {vr(KMF+4*ks+2*u,2)}, v{vQKR} offset:{L_QK + 2048 + (32*ks+16*u)*16}")
    for z in (0, 1, 4, 5): a(f"v_mov_b32 v{PZ+z}, 0")
    for ks in range(4):
        a(f"s_waitcnt lgkmcnt({12 - 2*ks if ks == 0 else 14 - 2*ks})")
        for t in (1, 2):
            C = "0" if ks == 0 else vr(T + 4 * t, 4)
            a(f"v_mfma_f32_16x16x32_bf16 {vr(T+4*t,4)}, {vr(KX+16*(t-1)+4*ks,4)}, {vr(QF+4*ks,4)}, {C}")
        if ks == 0:
            for u in range(2):
                a(f"ds_read_b64_tr_b16 {vr(KMF+12+2*u,2)}, v{vQKR} offset:{L_QK + 2048 + (96+16*u)*16}")
    a("s_waitcnt lgkmcnt(0)")
    scores([0], [])
    stamp(a, 3, cfg)

    def vm_check():
        poll(a, [(f"buffer_load_dwordx4 {vr(VM,4)}, v{vVMO}, {WS}, s{S_T5} offen sc1", list(range(VM, VM + 4)))],
             vT, None, cap=0, first_issued=True)

    def om_store(R):
        a("s_mov_b32 exec_lo, 0x00ff00ff\ns_mov_b32 exec_hi, 0x00ff00ff")
        store_mode(a, f"buffer_store_dwordx4 {vr(R,4)}, v{vL16}, {WS}, s{S_T4} offen")
        a("s_mov_b64 exec, -1")
    a(f"s_add_u32 s{S_T4}, s{S_OFF_C}, s{S_WOFF}")
    a("s_waitcnt vmcnt(0)")
    softmax_pv([0, 1, 2], om_store, vm_check)
    stamp(a, 4, cfg)
    for tt in range(2):
        for ks in range(4):
            a(f"ds_read_b128 {vr(QF+4*ks,4)}, v{vL16} offset:{L_QX + tt*4096 + ks*1024}")
        tinit(0, "m0")
        tinit(1 + tt, "mc")
        a("s_waitcnt lgkmcnt(0)")
        if tt == 0:
            scores([1, 0], [])
        else:
            scores([1, 2, 0], [1])
        def ox_store(R, tt=tt):
            a(f"s_add_u32 s{S_T0}, s{S_OFF_D}, {tt*16*8192:#x}")
            a(f"buffer_store_dwordx4 {vr(R,4)}, v{vOXO}, {WS}, s{S_T0} offen sc1")
        softmax_pv([0, 1] if tt == 0 else [0, 1, 2], ox_store)
    stamp(a, 5, cfg)
    if cfg.get("stamps"):
        a(f"v_lshrrev_b32 v{MI+6}, 2, v{vL16}")
    stamp_flush(a, cfg)
    a(f"""s_add_u32 s{S_STEP}, s{S_STEP}, 1
s_cmp_eq_u32 s{S_STEP}, {NSEG}
s_cbranch_scc1 L_done
s_add_u32 s{S_OFF_A}, s{S_OFF_A}, 0x4000
s_add_u32 s{S_OFF_B}, s{S_OFF_B}, {32*8192:#x}
s_add_u32 s{S_OFF_C}, s{S_OFF_C}, {32*2048:#x}
s_add_u32 s{S_OFF_D}, s{S_OFF_D}, {32*8192:#x}
s_barrier""")
    prefetch_x()
    a("s_branch S_loop")
    a.flush_deferred()


def v_cu(a, cfg):
    vLANE, vGOFF, vLW, vATR, vIDX, vL16, vT, vT2, vVMO, vOMO, vRW, vRR, vPO, vMO, vL4, vD = range(0, 16)
    AR, NA = 16, 16
    G = 80
    ACC = 96
    OF = 112
    RD = 128
    vPO2 = 180
    RP = 160
    MI = 152
    cfg = dict(cfg); cfg["stamp_reg"] = MI + 5; cfg["lane4_reg"] = vL4
    WS = f"s[{S_WS}:{S_WS+3}]"
    a(f"""s_lshl_b32 s{S_HEAD}, s{S_TEAM}, 3
s_lshr_b32 s{S_T0}, s{S_J}, 1
s_add_u32 s{S_HEAD}, s{S_HEAD}, s{S_T0}""")
    srd(a, S_W0, 32, 1024 * 8192)
    srd(a, S_W1, 40, 4096 * 2048)
    srd(a, S_W2, 8, 8 * 2048)
    a(f"v_and_b32 v{vLANE}, 63, v0")
    a(f"v_lshlrev_b32 v{vL16}, 4, v{vLANE}")
    a(f"v_lshlrev_b32 v{vL4}, 2, v{vLANE}")

    def stage(srdreg, pitch_log2, sbase):
        a(f"""v_lshrrev_b32 v{vT}, 3, v{vLANE}
v_lshlrev_b32 v{vD}, {pitch_log2}, v{vT}
v_and_b32 v{vT}, 7, v{vLANE}
v_lshl_add_u32 v{vD}, v{vT}, 4, v{vD}
s_lshl_b32 s{S_T1}, s{S_WAVE}, {8 + pitch_log2}
s_add_u32 s{S_T1}, s{S_T1}, s{sbase}
s_lshl_b32 s{S_T2}, s{S_WAVE}, 15""")
        for i in range(32):
            a(f"s_add_u32 m0, s{S_T2}, {L_W + i*1024}")
            a(f"s_add_u32 s{S_T4}, s{S_T1}, {(i*8) << pitch_log2:#x}")
            a(f"buffer_load_dwordx4 v{vD}, s[{srdreg}:{srdreg+3}], s{S_T4} offen lds")

    a(f"""s_lshl_b32 s{S_T0}, s{S_HEAD}, 8
s_and_b32 s{S_T1}, s{S_J}, 1
s_lshl_b32 s{S_T1}, s{S_T1}, 7
s_add_u32 s{S_T0}, s{S_T0}, s{S_T1}""")
    stage(S_W0, 13, S_T0)

    SENT = G
    for i in range(4): a(f"v_mov_b32 v{SENT+i}, -1")
    a(f"""s_lshl_b32 s{S_OFF_A}, s{S_TEAM}, 20
s_add_u32 s{S_OFF_A}, s{S_OFF_A}, {WS_MEMT:#x}
s_lshl_b32 s{S_T0}, s{S_J}, 10
s_add_u32 s{S_OFF_E}, s{S_OFF_A}, s{S_T0}
s_lshl_b32 s{S_OFF_C}, s{S_HEAD}, 11
s_and_b32 s{S_T1}, s{S_J}, 1
s_lshl_b32 s{S_T1}, s{S_T1}, 10
s_add_u32 s{S_OFF_B}, s{S_OFF_C}, s{S_T1}
s_and_b32 s{S_T0}, s{S_J}, 3
s_lshl_b32 s{S_OFF_D}, s{S_T0}, 11
s_lshr_b32 s{S_T0}, s{S_J}, 2
s_lshl_b32 s{S_T0}, s{S_T0}, 14
s_add_u32 s{S_OFF_D}, s{S_OFF_D}, s{S_T0}
s_add_u32 s{S_OFF_D}, s{S_OFF_D}, {WS_PART:#x}
s_lshl_b32 s{S_T0}, s{S_TEAM}, 16
s_add_u32 s{S_OFF_F}, s{S_OFF_D}, s{S_T0}""")
    lp = a.uid("init")
    a(f"s_mov_b32 s{S_STEP}, s{S_WAVE}")
    a.label(lp)
    a(f"""s_lshl_b32 s{S_T0}, s{S_STEP}, 14
s_add_u32 s{S_T0}, s{S_T0}, s{S_OFF_E}
buffer_store_dwordx4 {vr(SENT,4)}, v{vL16}, {WS}, s{S_T0} offen sc1
s_lshl_b32 s{S_T0}, s{S_STEP}, 16
s_add_u32 s{S_T0}, s{S_T0}, s{S_OFF_B}
s_add_u32 s{S_T1}, s{S_T0}, {WS_VM:#x}
buffer_store_dwordx4 {vr(SENT,4)}, v{vL16}, {WS}, s{S_T1} offen sc1
s_add_u32 s{S_T1}, s{S_T0}, {WS_OM:#x}
buffer_store_dwordx4 {vr(SENT,4)}, v{vL16}, {WS}, s{S_T1} offen sc1
s_lshl_b32 s{S_T0}, s{S_STEP}, 18
s_add_u32 s{S_T0}, s{S_T0}, s{S_OFF_F}
buffer_store_dwordx4 {vr(SENT,4)}, v{vL16}, {WS}, s{S_T0} offen sc1
buffer_store_dwordx4 {vr(SENT,4)}, v{vL16}, {WS}, s{S_T0} offen offset:1024 sc1
s_add_u32 s{S_T0}, s{S_T0}, 0x2000
buffer_store_dwordx4 {vr(SENT,4)}, v{vL16}, {WS}, s{S_T0} offen sc1
buffer_store_dwordx4 {vr(SENT,4)}, v{vL16}, {WS}, s{S_T0} offen offset:1024 sc1
s_waitcnt vmcnt(40)
s_add_u32 s{S_STEP}, s{S_STEP}, 4
s_cmp_lt_u32 s{S_STEP}, {NSEG}
s_cbranch_scc1 {lp}""")

    vWT = MI
    a(f"""v_bfe_u32 v{vT}, v{vLANE}, 4, 1
v_lshlrev_b32 v{vWT}, 12, v{vT}
v_bfe_u32 v{vT}, v{vLANE}, 5, 1
v_lshl_add_u32 v{vWT}, v{vT}, 10, v{vWT}
v_bfe_u32 v{vT}, v{vLANE}, 3, 1
v_lshl_add_u32 v{vWT}, v{vT}, 9, v{vWT}
v_bfe_u32 v{vT}, v{vLANE}, 2, 1
v_lshl_add_u32 v{vWT}, v{vT}, 7, v{vWT}
v_and_b32 v{vT}, 3, v{vLANE}
v_lshl_add_u32 v{vWT}, v{vT}, 3, v{vWT}
s_lshl_b32 s{S_T0}, s{S_WAVE}, 5
s_add_u32 s{S_T0}, s{S_T0}, {L_W:#x}
v_add_u32 v{vWT}, s{S_T0}, v{vWT}
v_add_u32 v{vWT+1}, 0x10000, v{vWT}
s_waitcnt vmcnt(0)
s_barrier""")
    for ks in range(16):
        for v in range(4):
            off = (ks % 8) * 8192 + (16 * (v // 2) + 2 * (v % 2)) * 128
            a(f"ds_read_b64_tr_b16 {ar(ks*8+2*v,2)}, v{vWT + ks // 8} offset:{off}")
        a("s_waitcnt lgkmcnt(8)")
    a("s_waitcnt lgkmcnt(0)\ns_barrier")
    a(f"""s_lshl_b32 s{S_T0}, s{S_TEAM}, 21
s_lshl_b32 s{S_T1}, s{S_J}, 7
s_add_u32 s{S_T0}, s{S_T0}, s{S_T1}""")
    stage(S_W1, 11, S_T0)
    a(f"""v_bfe_u32 v{vT}, v{vLANE}, 3, 1
v_lshlrev_b32 v{vWT}, 12, v{vT}
v_bfe_u32 v{vT}, v{vLANE}, 4, 1
v_lshl_add_u32 v{vWT}, v{vT}, 11, v{vWT}
v_bfe_u32 v{vT}, v{vLANE}, 5, 1
v_lshl_add_u32 v{vWT}, v{vT}, 9, v{vWT}
v_bfe_u32 v{vT}, v{vLANE}, 2, 1
v_lshl_add_u32 v{vWT}, v{vT}, 7, v{vWT}
v_and_b32 v{vT}, 3, v{vLANE}
v_lshl_add_u32 v{vWT}, v{vT}, 3, v{vWT}
s_lshl_b32 s{S_T0}, s{S_WAVE}, 15
s_add_u32 s{S_T0}, s{S_T0}, {L_W:#x}
v_add_u32 v{vWT}, s{S_T0}, v{vWT}""")
    a(f"""s_lshl_b32 s{S_T0}, s{S_WAVE}, 12
v_add_u32 v{vGOFF}, s{S_T0}, v{vL16}
v_add_u32 v{vLW}, {L_MEM:#x}, v{vGOFF}""")
    atr_addr(a, vATR, vLANE, vT, vT2)
    idx_reg(a, vIDX, vLANE, vT)
    a(f"""v_and_b32 v{vT}, 31, v{vLANE}
v_lshlrev_b32 v{vVMO}, 4, v{vT}
v_lshrrev_b32 v{vT}, 5, v{vLANE}
v_lshl_add_u32 v{vVMO}, v{vT}, 2, v{vVMO}
s_lshr_b32 s{S_T0}, s{S_WAVE}, 1
s_lshl_b32 s{S_T0}, s{S_T0}, 9
s_and_b32 s{S_T1}, s{S_WAVE}, 1
s_lshl_b32 s{S_T1}, s{S_T1}, 3
s_add_u32 s{S_T0}, s{S_T0}, s{S_T1}
v_add_u32 v{vVMO}, s{S_T0}, v{vVMO}""")
    a(f"""s_lshl_b32 s{S_T0}, s{S_TEAM}, 14
s_lshl_b32 s{S_T1}, s{S_WAVE}, 12
s_add_u32 s{S_T0}, s{S_T0}, s{S_T1}
v_add_u32 v{vOMO}, s{S_T0}, v{vL16}""")
    a(f"""v_add_u32 v{vRW}, {L_RED:#x}, v{vGOFF}
s_lshl_b32 s{S_T0}, s{S_WAVE}, 10
s_add_u32 s{S_T0}, s{S_T0}, {L_RED:#x}
v_add_u32 v{vRR}, s{S_T0}, v{vL16}""")
    a(f"""v_lshlrev_b32 v{vPO}, 3, v{vLANE}
s_lshl_b32 s{S_T0}, s{S_WAVE}, 9
v_add_u32 v{vPO}, s{S_T0}, v{vPO}
v_add_u32 v{vPO2}, 0x2000, v{vPO}""")
    a(f"""v_and_b32 v{vT}, 15, v{vLANE}
v_lshlrev_b32 v{vMO}, 4, v{vT}
v_bfe_u32 v{vT}, v{vLANE}, 4, 1
v_lshl_add_u32 v{vMO}, v{vT}, 3, v{vMO}
v_lshrrev_b32 v{vT}, 5, v{vLANE}
v_lshl_add_u32 v{vMO}, v{vT}, 2, v{vMO}
s_lshl_b32 s{S_T0}, s{S_WAVE}, 8
v_add_u32 v{vMO}, s{S_T0}, v{vMO}""")
    M0R = RP
    a(f"""v_bfe_u32 v{vT}, v{vLANE}, 4, 1
v_lshlrev_b32 v{vT2}, 13, v{vT}
v_lshrrev_b32 v{vT}, 5, v{vLANE}
v_lshl_add_u32 v{vT2}, v{vT}, 12, v{vT2}
v_and_b32 v{vT}, 15, v{vLANE}
v_lshl_add_u32 v{vT2}, v{vT}, 1, v{vT2}
s_lshl_b32 s{S_T0}, s{S_J}, 7
s_lshl_b32 s{S_T1}, s{S_WAVE}, 5
s_add_u32 s{S_T0}, s{S_T0}, s{S_T1}
buffer_load_ushort v{M0R}, v{vT2}, s[{S_W2}:{S_W2+3}], s{S_T0} offen
buffer_load_ushort v{M0R+1}, v{vT2}, s[{S_W2}:{S_W2+3}], s{S_T0} offen offset:2048
s_waitcnt vmcnt(0)
v_lshl_or_b32 v{M0R}, v{M0R+1}, 16, v{M0R}
s_barrier""")
    for f in range(4):
        for ct in range(4):
            for v in range(4):
                off = f * 8192 + (8 * (v // 2) + 2 * (v % 2)) * 128 + ct * 32
                a(f"ds_read_b64_tr_b16 {ar(128+(f*4+ct)*8+2*v,2)}, v{vWT} offset:{off}")
            a("s_waitcnt lgkmcnt(8)")
    startup_barrier(a, MI + 2, MI + 3, MI + 4)
    store_mode(a, f"buffer_store_dword v{M0R}, v{vMO}, {WS}, s{S_OFF_E} offen")
    a(f"s_mov_b32 s{S_STEP}, 0")
    a.label("V_loop")
    stamp(a, 0, cfg)
    for i in range(4): a(f"v_mov_b32 v{ACC+i}, 0")
    gather_mem(a, G, vGOFF, vLW, vT, cfg, "v")
    stamp(a, 1, cfg)
    for ks in range(16):
        for u in range(2):
            a(f"ds_read_b64_tr_b16 {vr(AR+4*ks+2*u,2)}, v{vATR} offset:{ks*1024+u*512}")
        if ks >= 6:
            k2 = ks - 6
            a("s_waitcnt lgkmcnt(12)")
            a(f"v_smfmac_f32_16x16x64_bf16 {vr(ACC,4)}, {vr(AR+4*k2,4)}, {ar(k2*8,8)}, v{vIDX}")
    for k2 in range(10, 16):
        a(f"s_waitcnt lgkmcnt({2*(15-k2)})")
        a(f"v_smfmac_f32_16x16x64_bf16 {vr(ACC,4)}, {vr(AR+4*k2,4)}, {ar(k2*8,8)}, v{vIDX}")
    a(f"""v_permlane32_swap_b32 v{ACC}, v{ACC+2}
v_permlane32_swap_b32 v{ACC+1}, v{ACC+3}
v_pk_add_f32 {vr(ACC,2)}, {vr(ACC,2)}, {vr(ACC+2,2)}
v_cvt_pk_bf16_f32 v{MI}, v{ACC}, v{ACC+1}
s_add_u32 s{S_T0}, s{S_OFF_B}, {WS_VM:#x}""")
    store_mode(a, f"buffer_store_dword v{MI}, v{vVMO}, {WS}, s{S_T0} offen")
    stamp(a, 2, cfg)
    a(f"""s_cmp_eq_u32 s{S_STEP}, {NSEG-1}
s_cbranch_scc1 L_done
s_lshl_b32 s{S_T5}, s{S_STEP}, 16
s_add_u32 s{S_T5}, s{S_T5}, {WS_OM:#x}""")
    for i in range(16): a(f"v_mov_b32 v{ACC+i}, 0")
    loads = [(f"buffer_load_dwordx4 {vr(OF+4*f,4)}, v{vOMO}, {WS}, s{S_T5} offen offset:{1024*f} sc1",
              list(range(OF + 4 * f, OF + 4 * f + 4))) for f in range(4)]
    def om_ready(f):
        if f == 0: stamp(a, 3, cfg)
        for ct in range(4):
            a(f"v_smfmac_f32_16x16x64_bf16 {vr(ACC+4*ct,4)}, {vr(OF+4*f,4)}, {ar(128+(f*4+ct)*8,8)}, v{vIDX}")
    o = cfg.get("v_om", {})
    a("s_waitcnt vmcnt(0)")
    for i in range(12): a(f"v_mov_b32 v{RP+i}, -1")
    for x in range(1, 4):
        a(f"s_xor_b32 s{S_T0+x}, s{S_OFF_F}, {x << 16:#x}")
    poll(a, loads, vT, om_ready, staged=o.get("staged", True), cap=o.get("cap", 1), sleep=o.get("sleep", 0), pre_sleep=o.get("pre", 0))
    for ct in range(4):
        a(f"ds_write_b128 v{vRW}, {vr(ACC+4*ct,4)} offset:{ct*1024}")
    a("s_waitcnt lgkmcnt(0)\ns_barrier")
    for src in range(4):
        a(f"ds_read_b128 {vr(RD+4*src,4)}, v{vRR} offset:{src*4096}")
    a("s_waitcnt lgkmcnt(2)")
    a(f"v_pk_add_f32 {vr(RD,2)}, {vr(RD,2)}, {vr(RD+4,2)}")
    a(f"v_pk_add_f32 {vr(RD+2,2)}, {vr(RD+2,2)}, {vr(RD+6,2)}")
    a("s_waitcnt lgkmcnt(0)")
    a(f"v_pk_add_f32 {vr(RD+8,2)}, {vr(RD+8,2)}, {vr(RD+12,2)}")
    a(f"v_pk_add_f32 {vr(RD+10,2)}, {vr(RD+10,2)}, {vr(RD+14,2)}")
    a(f"v_pk_add_f32 {vr(RD,2)}, {vr(RD,2)}, {vr(RD+8,2)}")
    a(f"v_pk_add_f32 {vr(RD+2,2)}, {vr(RD+2,2)}, {vr(RD+10,2)}")
    a(f"""v_permlane32_swap_b32 v{RD}, v{RD+2}
v_permlane32_swap_b32 v{RD+1}, v{RD+3}
v_pk_add_f32 {vr(RD,2)}, {vr(RD,2)}, {vr(RD+2,2)}
buffer_store_dwordx2 {vr(RD,2)}, v{vPO}, {WS}, s{S_OFF_F} offen sc1
buffer_store_dwordx2 {vr(RD,2)}, v{vPO2}, {WS}, s{S_OFF_F} offen sc1""")
    stamp(a, 4, cfg)
    o = cfg.get("v_part", {})
    copies = o.get("copies", [0])
    lp = a.uid("pg")
    if o.get("pre", 5): a(f"s_sleep {o.get('pre', 5)}")
    a.label(lp)
    budget_head(a)
    for cp in copies:
        for x in range(1, 4):
            a(f"buffer_load_dwordx2 {vr(RP+6*cp+2*(x-1),2)}, v{(vPO2 if cp else vPO)}, {WS}, s{S_T0+x} offen sc1")
    if o.get("sleep", 1): a(f"s_sleep {o.get('sleep', 1)}")
    a(f"s_waitcnt vmcnt({min(63, o.get('cap', 4) * 3 * len(copies))})")
    MG = RP + 12
    for i in range(6):
        a(f"v_min_u32 v{MG+i}, v{RP+i}, v{RP+6+i}")
    check_regs(a, range(MG, MG + 6), vT, lp)
    a(f"""v_pk_add_f32 {vr(RD,2)}, {vr(RD,2)}, {vr(MG,2)}
v_pk_add_f32 {vr(RD+2,2)}, {vr(MG+2,2)}, {vr(MG+4,2)}
v_pk_add_f32 {vr(RD,2)}, {vr(RD,2)}, {vr(RD+2,2)}
v_cvt_pk_bf16_f32 v{MI}, v{RD}, v{RD+1}
s_add_u32 s{S_OFF_E}, s{S_OFF_E}, 0x4000""")
    store_mode(a, f"buffer_store_dword v{MI}, v{vMO}, {WS}, s{S_OFF_E} offen")
    stamp(a, 5, cfg)
    stamp_flush(a, cfg)
    a(f"""s_add_u32 s{S_STEP}, s{S_STEP}, 1
s_add_u32 s{S_OFF_A}, s{S_OFF_A}, 0x4000
s_add_u32 s{S_OFF_B}, s{S_OFF_B}, 0x10000
s_add_u32 s{S_OFF_F}, s{S_OFF_F}, 0x40000
s_branch V_loop""")
    a.flush_deferred()
```

```python
from asmgen import *

G_SX = 16
G_SW = 20
G_XOFF, G_WOFF, G_WSTEP, G_CNT = 52, 53, 54, 55
G_NXOFF, G_NWOFF = 56, 57
G_NW0, G_NW1 = 58, 59
G_M0 = 82
G_NST = 83
G_TX, G_TW = 94, 95
G_ST = 96
G_MX, G_MW = 100, 101
VL, VT1, VT2, VT3 = 0, 1, 2, 3
V_L16 = 4
XD, WD, XR, WR = 8, 16, 24, 26
XT, WT, TD = 34, 35, 36
V_ROW = 37
XF, WF = 64, 128
EP = 192
OOB = 0x7f000000


class Gemm:
    def __init__(self, MT, NT, NBUF, cfg=None):
        self.MT, self.NT, self.NBUF = MT, NT, NBUF
        self.cfg = cfg or {}
        self.XB = 32 * MT * 128
        self.WROW = 32 * NT * 2
        self.SB = self.XB + 64 * self.WROW
        assert self.SB * NBUF == 0x20000
        self.RPI = 1024 // self.WROW
        self.TLEAD = self.cfg.get("tlead", 2 if MT == 8 else 4)
        self.ND = MT + NT

    def acc(self, mt, nt):
        return (mt * self.NT + nt) * 4

    def setup(self, a, s_wave, px, pw, kperm, st0=36, st1=37):
        MT, NT, RPI, WROW = self.MT, self.NT, self.RPI, self.WROW
        lg = lambda x: x.bit_length() - 1
        a(f"""v_lshrrev_b32 v{VT1}, 3, v{VL}
v_and_b32 v{VT2}, 7, v{VL}
v_xor_b32 v{VT2}, v{VT2}, v{VT1}
v_lshlrev_b32 v{VT2}, 4, v{VT2}
s_lshl_b32 s{st0}, s{s_wave}, {lg(8*MT)}
v_add_u32 v{VT1}, s{st0}, v{VT1}
s_mov_b32 s{st1}, {px}
v_mul_lo_u32 v{VT1}, v{VT1}, s{st1}
v_add_u32 v{XD}, v{VT1}, v{VT2}""")
        for i in range(1, MT):
            a(f"v_add_u32 v{XD+i}, {8*i*px - (i%4)*1024:#x}, v{XD}")
        LPR = 64 // RPI
        a(f"""v_lshrrev_b32 v{VT1}, {lg(LPR)}, v{VL}
s_lshl_b32 s{st0}, s{s_wave}, 4
v_add_u32 v{VT2}, s{st0}, v{VT1}
s_mov_b32 s{st1}, {pw}
v_mul_lo_u32 v{VT2}, v{VT2}, s{st1}
v_and_b32 v{VT3}, {LPR-1}, v{VL}
v_lshlrev_b32 v{VT3}, 4, v{VT3}
v_lshlrev_b32 v{VT1}, 5, v{VT1}
v_xor_b32 v{VT3}, v{VT3}, v{VT1}""")
        for i in range(NT):
            k = RPI * i
            f = k % 8 if kperm else (k % 4 + 4 * ((k // 8) % 2))
            a(f"v_xor_b32 v{VT1}, {f*32}, v{VT3}")
            a(f"v_add_u32 v{VT1}, v{VT2}, v{VT1}")
            a(f"v_add_u32 v{WD+i}, {k*pw - (i%4)*1024:#x}, v{VT1}")
        a(f"""v_and_b32 v{VT1}, 15, v{VL}
v_lshlrev_b32 v{VT2}, 7, v{VT1}
v_and_b32 v{VT1}, 7, v{VL}
v_lshrrev_b32 v{VT3}, 4, v{VL}
v_xor_b32 v{VT1}, v{VT1}, v{VT3}
v_lshl_add_u32 v{VT2}, v{VT1}, 4, v{VT2}
s_lshr_b32 s{st0}, s{s_wave}, 1
s_lshl_b32 s{st0}, s{st0}, {lg(16*MT*128)}
v_add_u32 v{XR}, s{st0}, v{VT2}
v_xor_b32 v{XR+1}, 64, v{XR}""")
        a(f"""v_lshrrev_b32 v{VT1}, 4, v{VL}
v_lshlrev_b32 v{VT2}, {lg(WROW) + (2 if kperm else 3)}, v{VT1}
v_bfe_u32 v{VT3}, v{VL}, 2, 2
v_lshl_add_u32 v{VT2}, v{VT3}, {lg(WROW)}, v{VT2}
v_bfe_u32 v{VT3}, v{VL}, 2, 3
v_lshl_add_u32 v{VT2}, v{VT3}, 5, v{VT2}
v_and_b32 v{VT3}, 3, v{VL}
v_lshl_add_u32 v{VT2}, v{VT3}, 3, v{VT2}
s_and_b32 s{st0}, s{s_wave}, 1
s_lshl_b32 s{st0}, s{st0}, {lg(NT*32)}
v_xor_b32 v{VT2}, s{st0}, v{VT2}
v_add_u32 v{WR}, {self.XB:#x}, v{VT2}""")
        for nt in range(1, NT):
            a(f"v_xor_b32 v{WR+nt}, {nt*32}, v{WR}")
        LR = WROW // 128
        a(f"""s_lshl_b32 s{st0}, s{s_wave}, {lg(8*MT)}
v_and_b32 v{VT1}, {8*MT-1}, v{VL}
v_add_u32 v{VT1}, s{st0}, v{VT1}
s_mov_b32 s{st1}, {px}
v_mul_lo_u32 v{XT}, v{VT1}, s{st1}
v_bfe_u32 v{VT1}, v{VL}, {lg(LR)}, 4
s_lshl_b32 s{st0}, s{s_wave}, 4
v_add_u32 v{VT1}, s{st0}, v{VT1}
s_mov_b32 s{st1}, {pw}
v_mul_lo_u32 v{VT1}, v{VT1}, s{st1}
v_and_b32 v{VT2}, {LR-1}, v{VL}
v_lshl_add_u32 v{WT}, v{VT2}, 7, v{VT1}""")
        a(f"""s_mov_b32 s{G_WSTEP}, {64*pw}
s_mov_b32 s{G_M0}, 0
s_lshl_b32 s{G_MX}, s{s_wave}, {lg(MT*1024)}
s_lshl_b32 s{G_MW}, s{s_wave}, {lg(NT*1024)}
s_add_u32 s{G_MW}, s{G_MW}, {self.XB:#x}""")

    def dma_instrs(self, xflags, wflags):
        out = []
        for isx, n in ((True, self.MT), (False, self.NT)):
            for j in range(n):
                pre = ""
                if j == 0:
                    pre = f"s_add_u32 m0, s{G_M0}, s{G_MX if isx else G_MW}\n"
                elif j % 4 == 0:
                    pre = f"s_add_u32 m0, m0, 0x1000\n"
                srd, vo, so, fl = (G_SX, XD, G_XOFF, xflags) if isx else (G_SW, WD, G_WOFF, wflags)
                out.append(pre + f"buffer_load_dwordx4 v{vo+j}, s[{srd}:{srd+3}], s{so} offen offset:{(j%4)*1024} {fl} lds")
        return out

    def dma_advance(self):
        return f"""s_add_u32 s{G_XOFF}, s{G_XOFF}, 128
s_add_u32 s{G_WOFF}, s{G_WOFF}, s{G_WSTEP}
s_add_u32 s{G_M0}, s{G_M0}, {self.SB:#x}
s_and_b32 s{G_M0}, s{G_M0}, 0x1ffff"""

    def touch_instrs(self, xflags):
        return [f"buffer_load_dword v{TD}, v{XT}, s[{G_SX}:{G_SX+3}], s{G_TX} offen {xflags}",
                f"buffer_load_dword v{TD}, v{WT}, s[{G_ST}:{G_ST+3}], s{G_TW} offen",
                f"s_add_u32 s{G_TX}, s{G_TX}, 128\ns_add_u32 s{G_TW}, s{G_TW}, s{G_WSTEP}"]

    def read_instrs(self, setid, h, kperm):
        xs = [f"ds_read_b128 {vr(XF+32*setid+4*mt,4)}, v{XR+h} offset:{mt*2048}" for mt in range(self.MT)]
        ws = []
        for nt in range(self.NT):
            for u in range(2):
                ws.append(f"ds_read_b64_tr_b16 {vr(WF+32*setid+4*nt+2*u,2)}, v{WR+nt} offset:{(32*h + (16 if kperm else 4)*u)*self.WROW}")
        return [xs[0]] + ws + xs[1:]

    def toggles(self):
        regs = list(range(XR, XR + 2)) + list(range(WR, WR + self.NT))
        if self.NBUF == 2:
            return [f"v_xor_b32 v{r}, 0x10000, v{r}" for r in regs]
        return [f"v_add_u32 v{r}, {self.SB:#x}, v{r}\nv_and_b32 v{r}, 0x1ffff, v{r}" for r in regs]

    def prologue(self, a, kperm, xflags="", wflags=""):
        a(f"""s_add_u32 s{G_TX}, s{G_XOFF}, {128*self.NBUF}
s_mul_i32 s{G_TW}, s{G_WSTEP}, {self.NBUF}
s_add_u32 s{G_TW}, s{G_TW}, s{G_WOFF}
s_mov_b32 s{G_ST}, s{G_SW}
s_mov_b32 s{G_ST+1}, s{G_SW+1}
s_mov_b32 s{G_ST+2}, s{G_SW+2}
s_mov_b32 s{G_ST+3}, 0x20000""")
        extra = self.TLEAD - self.NBUF
        for b in range(self.NBUF):
            for g in self.dma_instrs(xflags, wflags): a(g)
            a(self.dma_advance())
            for t in self.touch_instrs(xflags): a(t)
        assert extra == 0
        a(f"s_waitcnt vmcnt({(self.NBUF-1)*(self.ND+2) + 2})\ns_barrier")
        for r in self.read_instrs(0, 0, kperm): a(r)

    def stage_body(self, a, orient, kperm, first, xflags, wflags, extra_vm=0):
        cfg, MT, NT = self.cfg, self.MT, self.NT
        H = MT * NT
        big = MT == 8
        bar = cfg.get("bar", 30 if big else 13)
        dgap = cfg.get("dgap", 4 if big else 2)
        vm_wait = min(63, (self.NBUF - 2) * (self.ND + 2) + 2 + extra_vm)
        dma = self.dma_instrs(xflags, wflags)
        nrd = MT + 2 * NT
        for h in range(2):
            fill = {}
            def add(g, t): fill.setdefault(min(g, H - 1), []).append(t)
            for i, r in enumerate(self.read_instrs(1 - h, 1 - h, kperm)): add(i, r)
            if h == 0:
                for i, t in enumerate(self.toggles()): add(nrd + (i if big else i // 2), t)
                add(bar, f"s_waitcnt vmcnt({vm_wait}) lgkmcnt(0)\ns_barrier")
                add(bar - 2, f"""s_cmp_eq_u32 s{G_CNT}, {self.NBUF}
s_cselect_b32 s{G_XOFF}, s{G_NXOFF}, s{G_XOFF}
s_cselect_b32 s{G_WOFF}, s{G_NWOFF}, s{G_WOFF}""")
                add(bar - 1, f"""s_cselect_b32 s{G_SW}, s{G_NW0}, s{G_SW}
s_cselect_b32 s{G_SW+1}, s{G_NW1}, s{G_SW+1}""")
            for i, d in enumerate(dma):
                g = bar + 1 + i * dgap - H * h
                if (0 <= g < H) or (h == 1 and g >= H): add(g, d)
            if h == 1:
                tg = max(0, bar + 1 + len(dma) * dgap - H)
                add(tg, f"""s_cmp_eq_u32 s{G_CNT}, {self.NBUF + self.TLEAD}
s_cselect_b32 s{G_TX}, s{G_NXOFF}, s{G_TX}
s_cselect_b32 s{G_TW}, s{G_NWOFF}, s{G_TW}
s_cselect_b32 s{G_ST}, s{G_NW0}, s{G_ST}
s_cselect_b32 s{G_ST+1}, s{G_NW1}, s{G_ST+1}""")
                for i, t in enumerate(self.touch_instrs(xflags)): add(tg + 1 + i * dgap, t)
                add(H - 1, self.dma_advance())
                add(H - 1, f"s_sub_u32 s{G_CNT}, s{G_CNT}, 1")
            a("s_waitcnt lgkmcnt(0)")
            for mt in range(MT):
                for nt in range(NT):
                    X = vr(XF + 32 * h + 4 * mt, 4); W = vr(WF + 32 * h + 4 * nt, 4)
                    A, B = (W, X) if orient == "W" else (X, W)
                    C = "0" if (first and h == 0) else ar(self.acc(mt, nt), 4)
                    a(f"v_mfma_f32_16x16x32_bf16 {ar(self.acc(mt,nt),4)}, {A}, {B}, {C}")
                    for t in fill.get(mt * NT + nt, []): a(t)

    def tile(self, a, orient, kperm, xflags="", wflags=""):
        lp = a.uid("gl")
        a(f"s_mov_b32 s{G_CNT}, s{G_NST}")
        self.stage_body(a, orient, kperm, True, xflags, wflags)
        a.label(lp)
        self.stage_body(a, orient, kperm, False, xflags, wflags)
        a(f"s_cmp_lg_u32 s{G_CNT}, 0\ns_cbranch_scc1 {lp}")

    def pack_pair(self, a, t0, t1, dst, tmp, scale=None):
        for r in range(4):
            a(f"v_accvgpr_read_b32 v{tmp+r}, a{t0+r}")
        for r in range(4):
            a(f"v_accvgpr_read_b32 v{tmp+4+r}, a{t1+r}")
        if scale is not None:
            for r in range(0, 8, 2):
                a(f"v_pk_mul_f32 {vr(tmp+r,2)}, {vr(tmp+r,2)}, s[{scale}:{scale+1}]")
        for r in range(4):
            a(f"v_cvt_pk_bf16_f32 v{dst+r}, v{tmp+2*r}, v{tmp+2*r+1}")

    def epilogue(self, a, entries, srd, sbase, voff, flags="", scale=None, swap=False):
        entries = sorted(entries, key=lambda e: e[2])
        cur = None
        for n, (p0, p1, off) in enumerate(entries):
            win = off & ~0xfff
            if win != cur:
                a(f"s_add_u32 s36, s{sbase}, {win:#x}"); cur = win
            d = EP + 16 + 4 * (n % 8)
            self.pack_pair(a, self.acc(*p0), self.acc(*p1), d, EP + 8 * (n % 2), scale)
            if swap:
                a(f"v_permlane16_swap_b32 v{d}, v{d+2}\nv_permlane16_swap_b32 v{d+1}, v{d+3}")
            a(f"buffer_store_dwordx4 {vr(d,4)}, v{voff}, s[{srd}:{srd+3}], s36 offen offset:{off - win} {flags}")

    def ent_a_qk(self):
        return [((mt, 2*i), (mt, 2*i+1), (mt // 2) * (1 << 18) + (mt % 2) * 4096 + i * 1024) for mt in range(self.MT) for i in range(self.NT // 2)]
    def ent_a_v(self):
        return [((2*mp, nt), (2*mp+1, nt), mp * (1 << 18) + nt * 1024) for mp in range(self.MT // 2) for nt in range(self.NT)]
    def ent_b_qk(self):
        return [((mt, 2*i), (mt, 2*i+1), i * (1 << 17) + mt * 1024) for mt in range(self.MT) for i in range(self.NT // 2)]
    def ent_b_v(self):
        return [((2*mp, nt), (2*mp+1, nt), (nt // 2) * (1 << 17) + mp * 2048 + (nt % 2) * 1024) for mp in range(self.MT // 2) for nt in range(self.NT)]
    def ent_row(self):
        return [((mt, 2*i), (mt, 2*i+1), mt * 16 * 4096 + i * 64) for mt in range(self.MT) for i in range(self.NT // 2)]


def row_voff(a):
    a(f"""v_and_b32 v{VT1}, 15, v{VL}
v_lshlrev_b32 v{V_ROW}, 12, v{VT1}
v_bfe_u32 v{VT1}, v{VL}, 4, 1
v_lshl_add_u32 v{V_ROW}, v{VT1}, 5, v{V_ROW}
v_lshrrev_b32 v{VT1}, 5, v{VL}
v_lshl_add_u32 v{V_ROW}, v{VT1}, 4, v{V_ROW}""")
```

```python
import sys
from asmgen import *
from chain import *
from gemm import *
import battn
from battn import WS_QB, WS_KB, WS_VB, WS_OB, battn_task

PFX = "concat_heads__memory_aug_recurrent_mem_tr__mha_block__prompt"
KD = """
.section .rodata,"a"
.p2align 6
.amdhsa_kernel {name}
  .amdhsa_next_free_vgpr 512
  .amdhsa_next_free_sgpr 102
  .amdhsa_accum_offset 256
  .amdhsa_group_segment_fixed_size 0
  .amdhsa_kernarg_size 104
  .amdhsa_user_sgpr_count 2
  .amdhsa_user_sgpr_kernarg_segment_ptr 1
  .amdhsa_system_sgpr_workgroup_id_x 1
.end_amdhsa_kernel
"""
def khead(name):
    return f""".text
.globl {name}
.p2align 8
.type {name},@function
{name}:
"""

def common(a, done):
    a(f"""s_cmp_ge_u32 s2, 256
s_cbranch_scc1 {done}
v_lshrrev_b32 v1, 6, v0
v_readfirstlane_b32 s{S_WAVE}, v1""")
    srd(a, S_WS, 96, WS_SIZE)

def lane_setup(a):
    a(f"v_and_b32 v0, 63, v0\nv_lshlrev_b32 v{V_L16}, 4, v0")

def k0(cfg):
    a = Asm(); a._uid = 1000
    g = Gemm(8, 8, 2, cfg)
    common(a, "K0_done"); lane_setup(a)
    srd(a, G_SX, 0, 2048 * 2048)
    a(f"""s_load_dwordx4 s[84:87], s[0:1], 16
s_load_dwordx2 s[88:89], s[0:1], 32
s_waitcnt lgkmcnt(0)
s_and_b32 s85, s85, 0xffff
s_and_b32 s87, s87, 0xffff
s_and_b32 s89, s89, 0xffff
s_mov_b32 s{G_SW+2}, {1024*8192:#x}
s_mov_b32 s{G_SW+3}, 0x20000
s_mov_b32 s{G_NST}, 16""")
    g.setup(a, S_WAVE, 2048, 8192, False)
    def decode(t, xo, wo, w0, w1):
        a(f"""s_lshr_b32 s36, s{t}, 3
s_and_b32 s36, s36, 7
s_lshl_b32 s{xo}, s36, 19
s_and_b32 s36, s{t}, 7
s_lshr_b32 s37, s{t}, 6
s_lshl_b32 s37, s37, 3
s_add_u32 s36, s36, s37
s_and_b32 s37, s36, 15
s_lshl_b32 s{wo}, s37, 9
s_lshr_b32 s37, s36, 4
s_cmp_eq_u32 s37, 1
s_cselect_b32 s{w0}, s86, s84
s_cselect_b32 s{w1}, s87, s85
s_cmp_eq_u32 s37, 2
s_cselect_b32 s{w0}, s88, s{w0}
s_cselect_b32 s{w1}, s89, s{w1}""")
    T, TN = 90, 91
    a(f"s_mov_b32 s{T}, s2")
    decode(T, G_XOFF, G_WOFF, G_SW, G_SW + 1)
    g.prologue(a, False)
    a.label("K0_tile")
    a(f"s_add_u32 s{TN}, s{T}, 256")
    decode(TN, G_NXOFF, G_NWOFF, G_NW0, G_NW1)
    a(f"""s_cmp_ge_u32 s{TN}, 384
s_cselect_b32 s{G_NXOFF}, {OOB:#x}, s{G_NXOFF}
s_cselect_b32 s{G_NWOFF}, {OOB:#x}, s{G_NWOFF}""")
    a(f"""s_lshr_b32 s36, s{T}, 3
s_and_b32 s36, s36, 7
s_lshl_b32 s36, s36, 3
s_lshr_b32 s37, s{S_WAVE}, 1
s_lshl_b32 s37, s37, 2
s_add_u32 s36, s36, s37
s_lshl_b32 s92, s36, 18
s_and_b32 s36, s{T}, 7
s_lshr_b32 s37, s{T}, 6
s_lshl_b32 s37, s37, 3
s_add_u32 s36, s36, s37
s_lshr_b32 s93, s36, 4
s_and_b32 s36, s36, 15
s_lshl_b32 s36, s36, 1
s_and_b32 s37, s{S_WAVE}, 1
s_add_u32 s36, s36, s37
s_lshl_b32 s36, s36, 13
s_add_u32 s92, s92, s36
s_cmp_eq_u32 s93, 0
s_cselect_b32 s36, {WS_QX:#x}, {WS_KX:#x}
s_cmp_eq_u32 s93, 2
s_cselect_b32 s36, {WS_VX:#x}, s36
s_add_u32 s92, s92, s36
s_mov_b32 s33, 0
s_cmp_eq_u32 s93, 2
s_cbranch_scc1 K0_vt""")
    a.label("K0_wt")
    g.tile(a, "W", False)
    a("s_cmp_eq_u32 s33, 1\ns_cbranch_scc1 K0_bqk")
    g.epilogue(a, g.ent_a_qk(), S_WS, 92, V_L16)
    a("s_branch K0_next")
    a.label("K0_bqk")
    g.epilogue(a, g.ent_b_qk(), S_WS, 92, V_L16, scale=S_C)
    a("s_branch K0_done")
    a.label("K0_vt")
    g.tile(a, "X", False)
    a("s_cmp_eq_u32 s33, 1\ns_cbranch_scc1 K0_bv")
    g.epilogue(a, g.ent_a_v(), S_WS, 92, V_L16)
    a.label("K0_next")
    a(f"""s_mov_b32 s{T}, s{TN}
s_cmp_lt_u32 s{T}, 384
s_cbranch_scc1 K0_tile
s_cmp_ge_u32 s{T}, 480
s_cbranch_scc1 K0_done
s_waitcnt vmcnt(0) lgkmcnt(0)
s_barrier""")
    srd(a, G_SX, 56, 2048 * 2048)
    srd(a, G_SW, 64, 1024 * 6144)
    g.setup(a, S_WAVE, 2048, 6144, False)
    cb = f32bits(32 ** -0.5 * LOG2E)
    a(f"""s_sub_u32 s{T}, s{T}, 384
s_and_b32 s38, s{T}, 7
s_lshr_b32 s39, s{T}, 3
s_lshl_b32 s{G_XOFF}, s38, 19
s_lshl_b32 s{G_WOFF}, s39, 9
s_mov_b32 s{G_NXOFF}, {OOB:#x}
s_mov_b32 s{G_NWOFF}, {OOB:#x}
s_mov_b32 s{G_NW0}, s{G_SW}
s_mov_b32 s{G_NW1}, s{G_SW+1}
s_lshr_b32 s93, s39, 2
s_and_b32 s36, s39, 3
s_lshl_b32 s36, s36, 1
s_and_b32 s37, s{S_WAVE}, 1
s_add_u32 s36, s36, s37
s_lshl_b32 s92, s36, 19
s_lshl_b32 s36, s38, 1
s_lshr_b32 s37, s{S_WAVE}, 1
s_add_u32 s36, s36, s37
s_lshl_b32 s36, s36, 13
s_add_u32 s92, s92, s36
s_lshl_b32 s36, s93, 22
s_add_u32 s92, s92, s36
s_add_u32 s92, s92, {WS_QB:#x}
s_cmp_eq_u32 s93, 0
s_cselect_b32 s{S_C}, {cb:#x}, 1.0
s_mov_b32 s{S_C+1}, s{S_C}
s_mov_b32 s33, 1""")
    g.prologue(a, False)
    a("s_cmp_eq_u32 s93, 2\ns_cbranch_scc0 K0_wt\ns_branch K0_vt")
    a.label("K0_bv")
    g.epilogue(a, g.ent_b_v(), S_WS, 92, V_L16)
    a.label("K0_done")
    a("s_endpgm")
    return a.finalize()

def k1(cfg):
    a = Asm(); a._uid = 2000
    common(a, "L_done")
    a(f"""s_and_b32 s{S_TEAM}, s2, 7
s_lshr_b32 s{S_J}, s2, 3
s_mov_b32 s{S_BUDGET}, {POLL_BUDGET}
s_mov_b32 s{S_MODE}, 0""")
    srd(a, S_DBG, 88, 256)
    a(f"""s_cmp_ge_u32 s{S_TEAM}, {NT}
s_cbranch_scc1 K1_w0
s_cmp_ge_u32 s{S_J}, 24
s_cbranch_scc1 K1_w1
s_cmp_lt_u32 s{S_J}, 8
s_cbranch_scc1 L_S
s_sub_u32 s{S_J}, s{S_J}, 8""")
    v_cu(a, cfg)
    a.label("L_S")
    s_cu(a, cfg)
    a.label("L_fail")
    a(f"""v_mov_b32 v1, 0xdead
v_mov_b32 v2, 0
s_mov_b64 exec, 1
buffer_store_dword v1, v2, s[{S_DBG}:{S_DBG+3}], 0 offen offset:8
s_endpgm""")
    a.label("K1_w0")
    a(f"""s_sub_u32 s90, s{S_TEAM}, 4
s_lshl_b32 s90, s90, 5
s_add_u32 s90, s90, s{S_J}
s_branch K1_w""")
    a.label("K1_w1")
    a(f"""s_lshl_b32 s90, s{S_TEAM}, 3
s_add_u32 s90, s90, s{S_J}
s_add_u32 s90, s90, {128-24}""")
    a.label("K1_w")
    lane_setup(a)
    a.label("K1_task")
    a("s_lshr_b32 s91, s90, 3\ns_and_b32 s92, s90, 7")
    battn_task(a, S_WS, S_WAVE, 91, 92, cfg)
    a("""s_waitcnt vmcnt(0)
s_barrier
s_add_u32 s90, s90, 160
s_cmp_lt_u32 s90, 256
s_cbranch_scc1 K1_task""")
    a.label("L_done")
    a("s_endpgm")
    return a.finalize()

def k2(cfg):
    a = Asm(); a._uid = 3000
    g = Gemm(4, 4, 4, cfg.get("med", {}))
    common(a, "K2_done"); lane_setup(a)
    srd(a, 24, 80, 2048 * 4096)
    row_voff(a)
    a(f"""s_and_b32 s38, s2, 7
s_bfe_u32 s39, s2, 0x40003
s_mov_b32 s{G_SX}, s{S_WS}
s_mov_b32 s{G_SX+1}, s{S_WS+1}
s_mov_b32 s{G_SX+2}, s{S_WS+2}
s_mov_b32 s{G_SX+3}, 0x20000
s_lshl_b32 s{G_WOFF}, s38, 8
s_mov_b32 s{G_NXOFF}, {OOB:#x}
s_mov_b32 s{G_NWOFF}, {OOB:#x}
s_lshl_b32 s36, s39, 1
s_lshr_b32 s37, s{S_WAVE}, 1
s_add_u32 s36, s36, s37
s_lshl_b32 s92, s36, 18
s_lshl_b32 s36, s38, 1
s_and_b32 s37, s{S_WAVE}, 1
s_add_u32 s36, s36, s37
s_lshl_b32 s36, s36, 7
s_add_u32 s92, s92, s36
s_cmp_ge_u32 s2, 128
s_cbranch_scc1 K2_b""")
    srd(a, G_SW, 40, 4096 * 2048)
    g.setup(a, S_WAVE, 8192, 2048, True)
    a(f"""s_lshl_b32 s{G_XOFF}, s39, 20
s_add_u32 s{G_XOFF}, s{G_XOFF}, {WS_OX:#x}
s_mov_b32 s{G_NST}, 64
s_branch K2_go""")
    a.label("K2_b")
    srd(a, G_SW, 72, 1024 * 2048)
    g.setup(a, S_WAVE, 2048, 2048, True)
    a(f"""s_lshl_b32 s{G_XOFF}, s39, 18
s_add_u32 s{G_XOFF}, s{G_XOFF}, {WS_OB:#x}
s_mov_b32 s{G_NST}, 16
s_add_u32 s92, s92, 2048""")
    a.label("K2_go")
    a(f"s_mov_b32 s{G_NW0}, s{G_SW}\ns_mov_b32 s{G_NW1}, s{G_SW+1}")
    g.prologue(a, True)
    g.tile(a, "W", True)
    g.epilogue(a, g.ent_row(), 24, 92, V_ROW, swap=True)
    a.label("K2_done")
    a("s_endpgm")
    return a.finalize()

def gen(cfg):
    ref = open("cdna_kernels/" + PFX + ".s.ref").read().split("\n")
    hdr = [l for l in ref if l.startswith(";") and "@launch" not in l and "Override" not in l and "grid=ceil" not in l]
    names = ["qkv_kernel", "chain_kernel", "oproj_kernel"]
    out = "\n".join(hdr) + "\n"
    for n in names:
        out += f"; @launch kernel={n} grid=(256,1,1) block=(256,1,1) lds={LDS_BYTES}\n"
    out += '.amdgcn_target "amdgcn-amd-amdhsa--gfx950"\n'
    for n, f in zip(names, (k0, k1, k2)):
        out += khead(n) + f(cfg)
    for n in names:
        out += KD.format(name=n)
    return out

if __name__ == "__main__":
    cfg = eval(sys.argv[2]) if len(sys.argv) > 2 else {}
    open(sys.argv[1] if len(sys.argv) > 1 else "cdna_kernels/" + PFX + ".s", "w").write(gen(cfg))
```

```python
import re

TRANS = ("v_exp_", "v_log_", "v_rcp_", "v_rsq_", "v_sqrt_", "v_sin_", "v_cos_")
_reg_re = re.compile(r"^(-|abs\()?\|?([vas])(\d+)\|?\)?$")
_rng_re = re.compile(r"^(-|abs\()?\|?([vas])\[(\d+):(\d+)\]\|?\)?$")
SPECIAL = {"vcc": [("s", 106), ("s", 107)], "vcc_lo": [("s", 106)], "vcc_hi": [("s", 107)],
           "exec": [("s", 126), ("s", 127)], "exec_lo": [("s", 126)], "exec_hi": [("s", 127)],
           "m0": [("s", 124)]}
EXEC = set(SPECIAL["exec"])
M0 = set(SPECIAL["m0"])


def regs_of(tok):
    tok = tok.strip()
    if tok in SPECIAL:
        return list(SPECIAL[tok])
    m = _reg_re.match(tok)
    if m:
        return [(m.group(2), int(m.group(3)))]
    m = _rng_re.match(tok)
    if m:
        return [(m.group(2), i) for i in range(int(m.group(3)), int(m.group(4)) + 1)]
    return []


class Inst:
    __slots__ = ("text", "mn", "ops", "mods", "cls", "w", "r", "passes", "srcC", "srcAB", "D", "ws",
                 "trans", "dpp", "perm", "rdlane", "wide_store_data", "ldsdma", "target", "sread_const", "isload")

    def __init__(self, text):
        self.text = text
        t = text.split(";")[0].strip()
        parts = t.split(None, 1)
        mn = parts[0]
        rest = parts[1] if len(parts) > 1 else ""
        rest = re.sub(r"(\w+):\[([^\]]*)\]", lambda m: m.group(1) + ":[" + m.group(2).replace(",", "|") + "]", rest)
        rest = re.sub(r"\(([^)]*)\)", lambda m: "(" + m.group(1).replace(",", "|") + ")", rest)
        ops = [o.strip() for o in rest.split(",")] if rest else []
        mods = []
        if ops:
            last = ops[-1].split()
            ops[-1] = last[0] if last else ""
            mods = last[1:]
        self.mn, self.ops, self.mods = mn, ops, mods
        self.w, self.r = set(), set()
        self.passes = 0
        self.srcC = self.srcAB = self.D = None
        self.ws = 1
        self.trans = self.dpp = self.perm = self.rdlane = self.ldsdma = self.isload = False
        self.wide_store_data = None
        self.target = None
        self.sread_const = set()
        R = [set(regs_of(o)) for o in ops]
        allr = lambda k: set().union(*R[k:]) if len(R) > k else set()
        if mn.startswith("v_mfma") or mn.startswith("v_smfmac"):
            self.cls = "xdl"
            self.passes = 8 if "32x32" in mn else 4
            self.D = R[0]
            self.w = set(R[0])
            if mn.startswith("v_mfma"):
                self.srcAB = R[1] | R[2]
                self.srcC = R[3]
            else:
                self.srcAB = R[1] | R[2] | R[3]
                self.srcC = R[0]
            self.r = self.srcAB | self.srcC
        elif mn.startswith("v_"):
            self.cls = "valu"
            if mn == "v_nop":
                pass
            elif mn.startswith("v_cmpx"):
                self.w = R[0] | EXEC
                self.r = allr(1)
            elif mn.startswith("v_permlane") and "swap" in mn:
                self.w = R[0] | R[1]
                self.r = R[0] | R[1]
                self.perm = True
            elif re.match(r"v_(add|sub|subrev|addc|subb|subbrev)_co_", mn) or mn.startswith("v_div_scale") or mn.startswith("v_mad_u64"):
                self.w = R[0] | R[1]
                self.r = allr(2)
            else:
                self.w = set(R[0])
                self.r = allr(1)
                if re.match(r"v_(fmac|mac|pk_fmac|dot\dc)", mn) or mn.startswith("v_writelane"):
                    self.r |= R[0]
            if mn.startswith("v_readlane") or mn.startswith("v_readfirstlane"):
                self.rdlane = True
            self.trans = mn.startswith(TRANS)
            self.dpp = mn.endswith("_dpp") or any(m.startswith(("row_", "quad_perm", "wave_")) for m in mods)
            if self.dpp:
                self.r |= R[0]
            self.sread_const = {x for x in self.r if x[0] == "s"}
        elif mn.startswith("ds_"):
            self.cls = "ds"
            if mn.startswith(("ds_read", "ds_bpermute", "ds_permute", "ds_swizzle")) or "_rtn" in mn:
                self.w = set(R[0]); self.r = allr(1); self.isload = True
                if "d16" in mn: self.r |= R[0]
            else:
                self.r = allr(0)
        elif mn.startswith(("global_", "buffer_", "flat_", "scratch_")):
            self.cls = "vmem"
            lds = ("lds" in mods) or ("_lds_" in mn)
            if mn.startswith(("buffer_inv", "buffer_wbl2")):
                pass
            elif "_load" in mn:
                if lds:
                    self.r = allr(0) | M0; self.ldsdma = True
                else:
                    self.w = set(R[0]); self.r = allr(1); self.isload = True
            elif "_store" in mn:
                self.r = allr(0)
                if "x3" in mn or "x4" in mn:
                    self.wide_store_data = R[1] if mn.startswith("global_") else R[0]
            elif "_atomic" in mn:
                self.r = allr(0)
                if "sc0" in mods:
                    self.w = set(R[0]); self.isload = True
        elif mn.startswith("s_"):
            self.cls = "salu"
            if mn == "s_nop":
                self.ws = int(ops[0], 0) + 1
            elif mn.startswith(("s_cbranch", "s_branch")):
                self.target = ops[0]
                if "vcc" in mn: self.r = set(SPECIAL["vcc"])
            elif mn.startswith(("s_cmp", "s_waitcnt", "s_barrier", "s_setprio", "s_sleep", "s_endpgm", "s_bitcmp", "s_setreg")):
                self.r = allr(0)
            else:
                self.w = set(R[0]) if R else set()
                self.r = allr(1)
                if "saveexec" in mn: self.w |= EXEC
        else:
            raise ValueError("unknown instruction: " + text)


def need(p, c):
    n = 0
    if p.cls == "valu":
        vw = {x for x in p.w if x[0] != "s"}
        sw = {x for x in p.w if x[0] == "s"}
        if c.cls == "xdl":
            if vw & c.r: n = max(n, 2)
            if sw & EXEC: n = max(n, 4)
        if c.cls == "valu":
            if (c.dpp or c.perm) and (vw & c.r): n = max(n, 2)
            if c.rdlane and (vw & c.r): n = max(n, 1)
            if p.trans and not c.trans and (vw & c.r): n = max(n, 1)
            if sw & c.sread_const: n = max(n, 4 if (c.rdlane or c.mn.startswith("v_writelane")) else 2)
            if (sw & EXEC) and c.dpp: n = max(n, 5)
            if (sw & EXEC) and (c.perm or c.rdlane): n = max(n, 4)
            if ("sdwa" in p.mn or any(m.startswith("op_sel") or m.startswith("dst_sel") for m in p.mods)) and not p.mn.startswith("v_pk") and (vw & (c.r | c.w)): n = max(n, 1)
            if p.mn.startswith("v_dot") and (vw & (c.r | c.w)): n = max(n, 3)
        if c.cls == "vmem" and (sw & c.r): n = max(n, 5)
        if p.trans and c.cls in ("vmem", "ds") and (vw & c.r): n = max(n, 1)
        if p.mn.startswith("v_dot") and c.cls in ("vmem", "ds", "xdl") and (vw & c.r): n = max(n, 3)
    if p.cls == "xdl":
        big = {4: 8, 8: 12}[p.passes]
        if c.cls == "xdl":
            if p.D & c.srcAB: n = max(n, big)
            if p.D & c.srcC:
                if not (p.D == c.srcC and p.passes == c.passes and ('x16_' in p.mn and '16x16x16' in p.mn) == ('16x16x16' in c.mn)): n = max(n, big - 2)
            elif p.D & c.D: n = max(n, big - 2)
        elif c.cls == "valu":
            if p.D & (c.r | c.w): n = max(n, big)
            if p.srcC & c.w: n = max(n, p.passes - 1)
        elif c.cls in ("vmem", "ds"):
            if p.D & (c.r | c.w): n = max(n, big)
    if p.wide_store_data:
        if p.wide_store_data & c.w and c.cls in ("valu", "xdl"): n = max(n, 2)
        elif p.wide_store_data & c.w: n = max(n, 1)
    if p.cls == "salu" and (p.w & M0) and c.ldsdma: n = max(n, 1)
    return n


WINDOW = 14


class Asm:
    def __init__(self):
        self.items = []
        self._uid = 0

    def I(self, text):
        for ln in text.strip().split("\n"):
            ln = ln.strip()
            if not ln or ln.startswith(";"):
                continue
            if ln.endswith(":"):
                self.items.append(("label", ln[:-1]))
            elif ln.startswith("."):
                self.items.append(("raw", ln))
            else:
                self.items.append(Inst(ln))

    __call__ = I

    def label(self, name):
        self.items.append(("label", name))

    def raw(self, text):
        self.items.append(("raw", text))

    def set_filler(self, reg):
        self.items.append(("filler", reg))
        self._filler = reg

    def fill(self, n):
        for _ in range(n):
            self.I(f"v_mov_b32 v{self._filler}, v{self._filler}")

    def defer(self, fn):
        self._deferred = getattr(self, "_deferred", []) + [fn]

    def flush_deferred(self):
        d = getattr(self, "_deferred", [])
        self._deferred = []
        for fn in d:
            fn()

    def uid(self, p="L"):
        self._uid += 1
        return f"{p}_{self._uid}"

    @staticmethod
    def _required(hist, c):
        dist = 0
        extra = 0
        for p in reversed(hist):
            if dist >= WINDOW:
                break
            n = need(p, c)
            if n > dist:
                extra = max(extra, n - dist)
            dist += p.ws
        return extra

    def finalize(self):
        out = []
        hist = []
        filler = None
        for it in self.items:
            if not isinstance(it, Inst) and it[0] == "filler":
                filler = it[1]
                continue
            if isinstance(it, Inst):
                e = self._required(hist, it)
                if e and filler is not None and e > 2:
                    for _ in range(e):
                        nop = Inst(f"v_mov_b32 v{filler}, v{filler}")
                        out.append(nop); hist.append(nop)
                elif e:
                    nop = Inst(f"s_nop {e - 1}")
                    out.append(nop); hist.append(nop)
                out.append(it); hist.append(it)
                if it.mn in ("s_branch", "s_endpgm"):
                    hist = []
                hist = hist[-WINDOW:]
            else:
                out.append(it)
        labels = {it[1]: i for i, it in enumerate(out) if not isinstance(it, Inst) and it[0] == "label"}
        inserts = {}
        for i, it in enumerate(out):
            if isinstance(it, Inst) and it.target is not None:
                if it.target not in labels:
                    raise ValueError("unknown label " + it.target)
                before = []
                j = i
                while j >= 0 and len(before) < WINDOW:
                    if isinstance(out[j], Inst):
                        if j != i and out[j].mn in ("s_branch", "s_endpgm"):
                            break
                        before.append(out[j])
                    j -= 1
                before.reverse()
                h = list(before)
                worst = 0
                j = labels[it.target]
                cnt = 0
                while j < len(out) and cnt < WINDOW:
                    c = out[j]
                    if isinstance(c, Inst):
                        worst = max(worst, self._required(h, c))
                        h.append(c); cnt += c.ws
                        if c.mn in ("s_branch", "s_endpgm"):
                            break
                    j += 1
                if worst:
                    inserts[i] = worst
        res = []
        for i, it in enumerate(out):
            if i in inserts:
                res.append(f"  s_nop {inserts[i] - 1}")
            if isinstance(it, Inst):
                res.append("  " + it.text)
            elif it[0] == "label":
                res.append(it[1] + ":")
            else:
                res.append(it[1])
        return "\n".join(res) + "\n"


def vr(b, n=1, k="v"):
    return f"{k}{b}" if n == 1 else f"{k}[{b}:{b + n - 1}]"


def ar(b, n=1):
    return vr(b, n, "a")


def sr(b, n=1):
    return vr(b, n, "s")
```

```python
from asmgen import *
from chain import xlane_reduce, f32bits

WS_QB = 0x7000000
WS_KB = 0x7400000
WS_VB = 0x7800000
WS_OB = 0x7C00000

B_KOFF, B_VOFF, B_CNT, B_M0, B_FLOOR, B_THR = 52, 53, 55, 82, 56, 57
VL, V_L16 = 0, 4
vKA, vVA, vMX, vT1, vT2, vOO = 8, 9, 10, 11, 12, 13
ONES = 16
Q, NEGM, O, L, S0, KF, VF, P = 20, 36, 52, 84, 100, 164, 180, 196
DL = 204


def battn_task(a, ws, s_wave, s_head, s_qb, cfg, ldflags="", stflags=""):
    WS = f"s[{ws}:{ws+3}]"
    T = cfg.get("thr", 16.0)
    a(f"""s_lshl_b32 s36, s{s_head}, 17
s_lshl_b32 s37, s{s_wave}, 12
s_add_u32 s36, s36, s37
s_add_u32 s{B_KOFF}, s36, {WS_KB:#x}
s_add_u32 s{B_VOFF}, s36, {WS_VB:#x}
s_mov_b32 s{B_M0}, s37""")

    def dma_chunk():
        out = []
        for isv in range(2):
            for i in range(4):
                pre = f"s_add_u32 m0, s{B_M0}, {0x10000 * isv:#x}\n" if i == 0 else ""
                out.append(pre + f"buffer_load_dwordx4 v{V_L16}, {WS}, s{B_VOFF if isv else B_KOFF} offen offset:{i*1024} {ldflags} lds")
        out.append(f"""s_add_u32 s{B_KOFF}, s{B_KOFF}, 0x4000
s_add_u32 s{B_VOFF}, s{B_VOFF}, 0x4000
s_add_u32 s{B_M0}, s{B_M0}, 0x4000
s_and_b32 s{B_M0}, s{B_M0}, 0xffff""")
        return out
    a(f"""s_lshl_b32 s36, s{s_head}, 17
s_lshl_b32 s38, s{s_qb}, 14
s_add_u32 s36, s36, s38
s_add_u32 s36, s36, s37
s_add_u32 s36, s36, {WS_QB:#x}""")
    for qt in range(4):
        a(f"buffer_load_dwordx4 {vr(Q+4*qt,4)}, v{V_L16}, {WS}, s36 offen offset:{qt*1024} {ldflags}")
    for c in range(3):
        for d in dma_chunk(): a(d)
    for i in range(4): a(f"v_mov_b32 v{ONES+i}, 0x3f803f80")
    for i in range(16): a(f"v_mov_b32 v{NEGM+i}, 0")
    for i in range(32): a(f"v_mov_b32 v{O+i}, 0")
    for i in range(16): a(f"v_mov_b32 v{L+i}, 0")
    a(f"""v_mov_b32 v{vKA}, v{V_L16}
v_add_u32 v{vVA}, 0x10000, v{V_L16}
s_mov_b32 s{B_FLOOR}, 0xff800000
s_mov_b32 s{B_THR}, {f32bits(T):#x}
s_mov_b32 s{B_CNT}, 0
s_waitcnt vmcnt(16)
s_barrier""")
    a(f"""v_and_b32 v{vT1}, 15, v{VL}
v_lshlrev_b32 v{vOO}, 7, v{vT1}
v_lshrrev_b32 v{vT1}, 4, v{VL}
v_lshl_add_u32 v{vOO}, v{vT1}, 4, v{vOO}""")

    def kread(par):
        return [f"ds_read_b128 {vr(KF+8*par+4*i,4)}, v{vKA} offset:{i*1024}" for i in range(2)] + \
               [f"v_add_u32 v{vKA}, 0x800, v{vKA}\nv_and_b32 v{vKA}, 0xffff, v{vKA}"]
    def vread(par):
        return [f"ds_read_b128 {vr(VF+8*par+4*i,4)}, v{vVA} offset:{i*1024}" for i in range(2)] + \
               [f"v_add_u32 v{vVA}, 0x800, v{vVA}\nv_and_b32 v{vVA}, 0xffff, v{vVA}\nv_or_b32 v{vVA}, 0x10000, v{vVA}"]
    def smf(par, qt, i):
        d = S0 + 32 * par + 8 * qt + 4 * i
        return f"v_mfma_f32_16x16x32_bf16 {vr(d,4)}, {vr(KF+8*par+4*i,4)}, {vr(Q+4*qt,4)}, {vr(NEGM+4*qt,4)}"
    def maxes(par, qt):
        b = S0 + 32 * par + 8 * qt
        out = []
        for i in range(4):
            if qt == 0 and i == 0:
                out.append(f"v_max_f32 v{vMX}, v{b}, v{b+1}")
            else:
                out.append(f"v_max3_f32 v{vMX}, v{vMX}, v{b+2*i}, v{b+2*i+1}")
        return out

    def rare(par, back):
        for qt in range(4):
            b = S0 + 32 * par + 8 * qt
            a(f"""v_max3_f32 v{vT1}, v{b}, v{b+1}, v{b+2}
v_max3_f32 v{vT1}, v{vT1}, v{b+3}, v{b+4}
v_max3_f32 v{vT1}, v{vT1}, v{b+5}, v{b+6}
v_max_f32 v{vT1}, v{vT1}, v{b+7}""")
            xlane_reduce(a, "v_max_f32", vT1, vT2)
            a(f"""v_max_f32 v{DL}, s{B_FLOOR}, v{vT1}
v_max_f32 v{vT1}, 0, v{vT1}
v_exp_f32 v{DL+2}, -v{vT1}""")
            for i in range(8): a(f"v_sub_f32 v{b+i}, v{b+i}, v{DL}")
            for i in range(4): a(f"v_sub_f32 v{NEGM+4*qt+i}, v{NEGM+4*qt+i}, v{DL}")
            for i in range(8): a(f"v_mul_f32 v{O+8*qt+i}, v{O+8*qt+i}, v{DL+2}")
            for i in range(4): a(f"v_mul_f32 v{L+4*qt+i}, v{L+4*qt+i}, v{DL+2}")
        a(f"s_mov_b32 s{B_FLOOR}, 0")
        a(f"s_branch {back}")

    for x in kread(0) + kread(1) + vread(0): a(x)
    a("s_waitcnt lgkmcnt(0)")
    for qt in range(4):
        for i in range(2): a(smf(0, qt, i))
    lp, r0, r1, b0, b1, fin = (a.uid("ba") for _ in range(6))
    a("s_nop 7")
    a(f"s_branch {r0}")
    a.label(lp)
    for par in range(2):
        a.label(b0 if par == 0 else b1)
        if par == 0:
            sk = a.uid("bs")
            a(f"""s_and_b32 s36, s{B_CNT}, 3
s_cmp_lg_u32 s36, 3
s_cbranch_scc1 {sk}
s_waitcnt vmcnt(8)
s_barrier
s_cmp_ge_u32 s{B_CNT}, 23
s_cselect_b32 s{B_KOFF}, 0x7f000000, s{B_KOFF}
s_cselect_b32 s{B_VOFF}, 0x7f000000, s{B_VOFF}""")
            for d in dma_chunk(): a(d)
            a.label(sk)
        a("s_waitcnt lgkmcnt(0)")
        extra = kread(par) + vread(1 - par)
        for qt in range(4):
            b = S0 + 32 * par + 8 * qt
            p = P + 4 * (qt % 2)
            mx = maxes(1 - par, qt - 1) if qt > 0 else []
            ex = [f"v_exp_f32 v{b+i}, v{b+i}" for i in range(8)]
            cv = [f"v_cvt_pk_bf16_f32 v{p+i}, v{b+2*i}, v{b+2*i+1}" for i in range(4)]
            a(smf(1 - par, qt, 0)); a(ex[0]); a(ex[1])
            if extra: a(extra.pop(0))
            a(smf(1 - par, qt, 1)); a(ex[2]); a(ex[3])
            if extra: a(extra.pop(0))
            if qt > 0:
                pp = P + 4 * ((qt - 1) % 2)
                pv = lambda i: f"v_mfma_f32_16x16x32_bf16 {vr(O+8*(qt-1)+4*i,4)}, {vr(VF+8*par+4*i,4)}, {vr(pp,4)}, {vr(O+8*(qt-1)+4*i,4)}"
                a(pv(0)); a(ex[4]); a(ex[5]); a(pv(1)); a(ex[6]); a(ex[7])
                a(f"v_mfma_f32_16x16x32_bf16 {vr(L+4*(qt-1),4)}, {vr(ONES,4)}, {vr(pp,4)}, {vr(L+4*(qt-1),4)}")
            else:
                for i in range(4, 8): a(ex[i])
            for x in mx: a(x)
            for x in cv: a(x)
        qt = 3; pp = P + 4
        mx = maxes(1 - par, 3)
        a(mx[0]); a(mx[1])
        a(f"v_mfma_f32_16x16x32_bf16 {vr(O+24,4)}, {vr(VF+8*par,4)}, {vr(pp,4)}, {vr(O+24,4)}")
        a(mx[2]); a(mx[3])
        a(f"v_mfma_f32_16x16x32_bf16 {vr(O+28,4)}, {vr(VF+8*par+4,4)}, {vr(pp,4)}, {vr(O+28,4)}")
        a(f"v_cmp_lt_f32 vcc, s{B_THR}, v{vMX}")
        a(f"v_mfma_f32_16x16x32_bf16 {vr(L+12,4)}, {vr(ONES,4)}, {vr(pp,4)}, {vr(L+12,4)}")
        if par == 0:
            a(f"s_cbranch_vccnz {r1}")
        else:
            a(f"""s_add_u32 s{B_CNT}, s{B_CNT}, 1
s_cmp_eq_u32 s{B_CNT}, 32
s_cbranch_scc1 {fin}
s_cbranch_vccz {lp}""")
    a.label(r0)
    rare(0, b0)
    a.label(r1)
    rare(1, b1)
    a.label(fin)
    a(f"""s_lshl_b32 s36, s{s_qb}, 19
s_lshr_b32 s37, s{s_wave}, 1
s_lshl_b32 s37, s37, 18
s_add_u32 s36, s36, s37
s_and_b32 s37, s{s_wave}, 1
s_lshl_b32 s37, s37, 13
s_add_u32 s36, s36, s37
s_lshr_b32 s37, s{s_head}, 1
s_lshl_b32 s37, s37, 14
s_add_u32 s36, s36, s37
s_and_b32 s37, s{s_head}, 1
s_lshl_b32 s37, s37, 6
s_add_u32 s36, s36, s37
s_add_u32 s36, s36, {WS_OB:#x}""")
    for qt in range(4):
        a(f"v_rcp_f32 v{DL}, v{L+4*qt}")
        for i in range(0, 8, 2):
            a(f"v_pk_mul_f32 {vr(O+8*qt+i,2)}, {vr(O+8*qt+i,2)}, {vr(DL,2)} op_sel_hi:[1,0]")
        d = S0 + 4 * qt
        for i in range(4):
            a(f"v_cvt_pk_bf16_f32 v{d+i}, v{O+8*qt+2*i}, v{O+8*qt+2*i+1}")
        a(f"buffer_store_dwordx4 {vr(d,4)}, v{vOO}, {WS}, s36 offen {stflags}")
        a("s_add_u32 s36, s36, 0x800")
    a("s_waitcnt lgkmcnt(0)")
```

```python
from asmgen import *

WS_KX = 0x0000000
WS_QX = 0x1000000
WS_VX = 0x2000000
WS_OX = 0x3000000
WS_MEMT = 0x4000000
WS_VM = 0x4400000
WS_OM = 0x4800000
WS_PART = 0x5000000
WS_STAMP = 0x6000000
WS_SIZE = 0x10000000
NSEG = 64
NT = 4
NCHAIN = NT * 24

S_WS = 8
S_DBG = 12
S_W0 = 16
S_W1 = 20
S_W2 = 24
S_WAVE, S_TEAM, S_J, S_MODE, S_STEP = 28, 29, 30, 31, 32
S_C = 34
S_T0, S_T1, S_T2, S_T3, S_T4, S_T5 = 36, 37, 38, 39, 40, 41
S_OFF_A, S_OFF_B, S_OFF_C, S_OFF_D, S_OFF_E, S_OFF_F = 42, 43, 44, 45, 46, 47
S_BUDGET = 48
S_HEAD = 49
S_TS = 50
POLL_BUDGET = 400000

LOG2E = 1.4426950408889634
import struct
def f32bits(x):
    return struct.unpack("<I", struct.pack("<f", x))[0]


def srd(a, dst, ptr_off, size, tmp=4):
    a(f"""s_load_dwordx2 s[{tmp}:{tmp+1}], s[0:1], {ptr_off}
s_waitcnt lgkmcnt(0)
s_mov_b32 s{dst}, s{tmp}
s_and_b32 s{dst+1}, s{tmp+1}, 0xffff
s_mov_b32 s{dst+2}, {size:#x}
s_mov_b32 s{dst+3}, 0x20000""")


def store_mode(a, instr):
    l1, l2 = a.uid("sm"), a.uid("sm")
    a(f"""s_cmp_eq_u32 s{S_MODE}, 1
s_cbranch_scc0 {l1}
{instr}
{l2}:""")
    a.defer(lambda: a(f"""{l1}:
{instr} sc1
s_branch {l2}"""))


SENTINEL = [-1]
def check_regs(a, regs, tmp, retry_label):
    regs = list(regs)
    if len(regs) == 1:
        cur = regs[0]
    else:
        if len(regs) == 2:
            a(f"v_max_u32 v{tmp}, v{regs[0]}, v{regs[1]}"); rest = []
        else:
            a(f"v_max3_u32 v{tmp}, v{regs[0]}, v{regs[1]}, v{regs[2]}"); rest = regs[3:]
        while rest:
            if len(rest) >= 2:
                a(f"v_max3_u32 v{tmp}, v{tmp}, v{rest[0]}, v{rest[1]}"); rest = rest[2:]
            else:
                a(f"v_max_u32 v{tmp}, v{tmp}, v{rest[0]}"); rest = rest[1:]
        cur = tmp
    a(f"v_cmp_eq_u32 vcc, {SENTINEL[0]}, v{cur}")
    a(f"s_cbranch_vccnz {retry_label}")


def poll(a, loads, vt, on_ready=None, staged=True, cap=12, sleep=0, pre_sleep=0, prefill=True, first_issued=False):
    n = len(loads)
    if not first_issued:
        if prefill:
            for _, regs in loads:
                for r in regs: a(f"v_mov_b32 v{r}, -1")
        if pre_sleep: a(f"s_sleep {pre_sleep}")
    groups = [[i] for i in range(n)] if staged else [list(range(n))]
    for gi, grp in enumerate(groups):
        lp, chk = a.uid("pl"), a.uid("pc")
        def body(grp=grp, lp=lp):
            a.label(lp)
            budget_head(a)
            for i in range(grp[0], n):
                a(loads[i][0])
            if sleep: a(f"s_sleep {sleep}")
            a(f"s_waitcnt vmcnt({min(63, cap * (n - grp[0]))})")
        if gi > 0 or first_issued:
            def ool(body=body, chk=chk):
                body(); a(f"s_branch {chk}")
            a.defer(ool)
        else:
            body()
        a.label(chk)
        check_regs(a, [r for i in grp for r in loads[i][1]], vt, lp)
        if on_ready:
            for i in grp: on_ready(i)


def budget_head(a, fail="L_fail"):
    a(f"""s_sub_u32 s{S_BUDGET}, s{S_BUDGET}, 1
s_cbranch_scc1 {fail}""")


def stamp(a, idx, cfg):
    if not cfg.get("stamps"):
        return
    if idx not in cfg.get("stamp_set", range(8)):
        return
    a(f"{'s_memrealtime' if cfg.get('rt') else 's_memtime'} s[{S_TS}:{S_TS+1}]")
    a("s_waitcnt lgkmcnt(0)")
    a(f"s_mov_b32 s{60+idx}, s{S_TS}")


def stamp_flush(a, cfg):
    if not cfg.get("stamps"):
        return
    r = cfg["stamp_reg"]
    for i in range(8):
        a(f"v_writelane_b32 v{r}, s{60+i}, {i}")
    a(f"""s_lshl_b32 s{S_T0}, s2, 2
s_add_u32 s{S_T0}, s{S_T0}, s{S_WAVE}
s_lshl_b32 s{S_T0}, s{S_T0}, 6
s_add_u32 s{S_T0}, s{S_T0}, s{S_STEP}
s_lshl_b32 s{S_T0}, s{S_T0}, 8
s_add_u32 s{S_T0}, s{S_T0}, {WS_STAMP:#x}
buffer_store_dword v{r}, v{cfg['lane4_reg']}, s[{S_WS}:{S_WS+3}], s{S_T0} offen""")


def startup_barrier(a, vt0, vt1, vt2):
    lp = a.uid("sb"); skip = a.uid("sb")
    a(f"""s_waitcnt vmcnt(0) lgkmcnt(0)
s_barrier
s_cmp_lg_u32 s{S_WAVE}, 0
s_cbranch_scc1 {skip}
s_getreg_b32 s{S_T0}, hwreg(HW_REG_XCC_ID)
s_and_b32 s{S_T0}, s{S_T0}, 7
s_lshl_b32 s{S_T1}, s{S_TEAM}, 3
s_add_u32 s{S_T0}, s{S_T0}, s{S_T1}
s_lshl_b32 s{S_T0}, 1, s{S_T0}
v_mov_b32 v{vt0}, s{S_T0}
v_mov_b32 v{vt1}, 1
v_mov_b32 v{vt2}, 0
s_mov_b64 exec, 1
buffer_atomic_or v{vt0}, v{vt2}, s[{S_DBG}:{S_DBG+3}], 0 offen offset:4 sc1
s_waitcnt vmcnt(0)
buffer_atomic_add v{vt1}, v{vt2}, s[{S_DBG}:{S_DBG+3}], 0 offen sc1
s_mov_b64 exec, -1
{skip}:
v_mov_b32 v{vt2}, 0
{lp}:""")
    budget_head(a)
    a(f"""s_sleep 2
buffer_load_dwordx2 v[{vt0}:{vt1}], v{vt2}, s[{S_DBG}:{S_DBG+3}], 0 offen sc1
s_waitcnt vmcnt(0)
v_readfirstlane_b32 s{S_T0}, v{vt0}
v_readfirstlane_b32 s{S_T1}, v{vt1}
s_nop 3
s_cmp_lt_u32 s{S_T0}, {NCHAIN}
s_cbranch_scc1 {lp}
s_lshl_b32 s{S_T2}, s{S_TEAM}, 3
s_lshr_b32 s{S_T1}, s{S_T1}, s{S_T2}
s_and_b32 s{S_T1}, s{S_T1}, 0xff
s_bcnt1_i32_b32 s{S_T1}, s{S_T1}
s_cmp_eq_u32 s{S_T1}, 1
s_cselect_b32 s{S_MODE}, 1, 0""")


def xlane_reduce(a, op, m, m2):
    a(f"""v_mov_b32 v{m2}, v{m}
v_permlane16_swap_b32 v{m}, v{m2}
{op} v{m}, v{m}, v{m2}
v_mov_b32 v{m2}, v{m}
v_permlane32_swap_b32 v{m}, v{m2}
{op} v{m}, v{m}, v{m2}""")


L_MEM = 0
L_QK = 0x4000
L_QX = 0x5000
L_RED = 0x4000
L_W = 0x8000
LDS_BYTES = 160 * 1024
S_MK0 = 70
S_MKC = 72
S_WOFF = 80


def gather_mem(a, G, vGOFF, vLW, vt, cfg, who):
    loads = [(f"buffer_load_dwordx4 {vr(G+4*i,4)}, v{vGOFF}, s[{S_WS}:{S_WS+3}], s{S_OFF_A} offen offset:{1024*i} sc1",
              list(range(G + 4 * i, G + 4 * i + 4))) for i in range(4)]
    o = cfg.get(who + "_mem", {})
    poll(a, loads, vt, lambda i: a(f"ds_write_b128 v{vLW}, {vr(G+4*i,4)} offset:{1024*i}"),
         staged=o.get("staged", True), cap=o.get("cap", 1), sleep=o.get("sleep", 0), pre_sleep=o.get("pre", 0))
    a("s_waitcnt lgkmcnt(0)")
    a("s_barrier")


def common_lane_consts(a, vLANE, vt):
    a(f"""v_and_b32 v{vLANE}, 63, v0""")


def atr_addr(a, dst, vLANE, t0, t1):
    a(f"""v_lshrrev_b32 v{t0}, 4, v{vLANE}
v_lshlrev_b32 v{dst}, 7, v{t0}
v_bfe_u32 v{t0}, v{vLANE}, 1, 1
v_lshl_add_u32 v{dst}, v{t0}, 6, v{dst}
v_bfe_u32 v{t0}, v{vLANE}, 2, 2
v_lshl_add_u32 v{dst}, v{t0}, 4, v{dst}
v_and_b32 v{t0}, 1, v{vLANE}
v_lshl_add_u32 v{dst}, v{t0}, 3, v{dst}
v_add_u32 v{dst}, {L_MEM:#x}, v{dst}""")


def idx_reg(a, dst, vLANE, t0):
    a(f"""v_and_b32 v{t0}, 8, v{vLANE}
v_cmp_eq_u32 vcc, 0, v{t0}
v_mov_b32 v{dst}, 0xeeeeeeee
v_mov_b32 v{t0}, 0x44444444
v_cndmask_b32 v{dst}, v{dst}, v{t0}, vcc""")


def brow_mem(gb, j):
    return 32 * (gb % 2) + 16 * (j // 8) + 8 * (gb // 2) + 4 * ((j % 4) // 2) + 2 * ((j % 8) // 4) + j % 2
def brow_om(gb, j):
    return 32 * ((j % 4) // 2) + 8 * (2 * (j // 8) + gb // 2) + 4 * (gb % 2) + 2 * ((j % 8) // 4) + j % 2


def s_cu(a, cfg):
    vT, vGOFF, vATR, vBL0, vBL1, vQKW, vQKR, vIDX, vL16, vOXO, vVMO, vNEG = range(0, 12)
    KX, VX = 12, 44
    P = 52
    ACC, G, BR, AR = P, P + 16, P + 32, P + 56
    NB, NA = 3, 5
    T, VM, QF, KMF, PX, PZ, MI = P, P + 16, P + 32, P + 48, P + 64, P + 68, P + 20
    vLANE, vT2 = P + 30, P + 31
    cfg = dict(cfg); cfg["stamp_reg"] = MI + 5; cfg["lane4_reg"] = MI + 6
    WS = f"s[{S_WS}:{S_WS+3}]"

    def wreg(ks, tile):
        if ks < 8: return ("a", (ks * 4 + tile) * 8)
        if ks < 12: return ("v", 128 + ((ks - 8) * 4 + tile) * 8)
        return None

    a(f"""s_lshl_b32 s{S_HEAD}, s{S_TEAM}, 3
s_add_u32 s{S_HEAD}, s{S_HEAD}, s{S_J}""")
    srd(a, S_W0, 16, 1024 * 8192)
    srd(a, S_W1, 24, 1024 * 8192)
    a(f"v_and_b32 v{vLANE}, 63, v0")
    a(f"v_lshlrev_b32 v{vL16}, 4, v{vLANE}")
    vD = P + 27
    a(f"""v_lshrrev_b32 v{vT}, 4, v{vLANE}
v_lshlrev_b32 v{vD}, 13, v{vT}
v_and_b32 v{vT}, 15, v{vLANE}
v_lshl_add_u32 v{vD}, v{vT}, 4, v{vD}
s_lshl_b32 s{S_T0}, s{S_HEAD}, 8
s_lshr_b32 s{S_T1}, s{S_WAVE}, 1
s_lshl_b32 s{S_T1}, s{S_T1}, 19
s_add_u32 s{S_T0}, s{S_T0}, s{S_T1}
v_add_u32 v{vD}, s{S_T0}, v{vD}
s_and_b32 s{S_T1}, s{S_WAVE}, 1
s_cmp_eq_u32 s{S_T1}, 1
s_cselect_b32 s{S_W2}, s{S_W1}, s{S_W0}
s_cselect_b32 s{S_W2+1}, s{S_W1+1}, s{S_W0+1}
s_mov_b32 s{S_W2+2}, {1024*8192:#x}
s_mov_b32 s{S_W2+3}, 0x20000
s_lshl_b32 s{S_T2}, s{S_WAVE}, 14""")

    def issue_hc(hc):
        a(f"s_add_u32 s{S_T3}, s{S_T2}, {L_W + (hc % 2) * 65536}")
        for i in range(16):
            a(f"s_add_u32 m0, s{S_T3}, {i*1024}")
            a(f"s_mov_b32 s{S_T4}, {hc * 128 * 8192 + i * 4 * 8192:#x}")
            a(f"buffer_load_dwordx4 v{vD}, s[{S_W2}:{S_W2+3}], s{S_T4} offen lds")

    vWT = P + 28
    a(f"""v_bfe_u32 v{vT}, v{vLANE}, 4, 1
v_lshlrev_b32 v{vWT}, 13, v{vT}
v_bfe_u32 v{vT}, v{vLANE}, 5, 1
v_lshl_add_u32 v{vWT}, v{vT}, 11, v{vWT}
v_bfe_u32 v{vT}, v{vLANE}, 3, 1
v_lshl_add_u32 v{vWT}, v{vT}, 10, v{vWT}
v_bfe_u32 v{vT}, v{vLANE}, 2, 1
v_lshl_add_u32 v{vWT}, v{vT}, 8, v{vWT}
v_and_b32 v{vT}, 3, v{vLANE}
v_lshl_add_u32 v{vWT}, v{vT}, 3, v{vWT}
s_lshl_b32 s{S_T0}, s{S_WAVE}, 6
s_add_u32 s{S_T0}, s{S_T0}, {L_W:#x}
v_add_u32 v{vWT}, s{S_T0}, v{vWT}
v_add_u32 v{vWT+1}, 0x10000, v{vWT}""")

    def read_tiles(hc, dst_fn):
        for ksl in range(2):
            for tile in range(4):
                mat, u = tile // 2, tile % 2
                k, b = dst_fn(2 * hc + ksl, tile)
                for v in range(4):
                    off = ksl * 32768 + mat * 16384 + (16 * (v // 2) + 2 * (v % 2)) * 256 + u * 32
                    a(f"ds_read_b64_tr_b16 {vr(b+2*v,2,k)}, v{vWT + hc % 2} offset:{off}")
                a("s_waitcnt lgkmcnt(8)")

    issue_hc(0); issue_hc(1)
    for hc in range(6):
        a("s_waitcnt vmcnt(16)\ns_barrier")
        read_tiles(hc, wreg)
        a("s_waitcnt lgkmcnt(0)\ns_barrier")
        issue_hc(hc + 2)
    a(f"""s_lshl_b32 s{S_T0}, s{S_WAVE}, 13
s_add_u32 s{S_T0}, s{S_T0}, {L_W:#x}
v_add_u32 v{vBL0}, s{S_T0}, v{vL16}
v_add_u32 v{vBL1}, 0x10000, v{vBL0}""")
    tmpregs = list(range(12, 76, 8))
    for hc in (6, 7):
        a(f"s_waitcnt vmcnt({16 if hc == 6 else 0})\ns_barrier")
        read_tiles(hc, lambda ks, tile: ("v", tmpregs[(ks % 2) * 4 + tile]))
        a("s_waitcnt lgkmcnt(0)\ns_barrier")
        for ksl in range(2):
            for tile in range(4):
                b = tmpregs[ksl * 4 + tile]
                for hf in range(2):
                    a(f"ds_write_b128 v{vBL0 + hc % 2}, {vr(b+4*hf,4)} offset:{ksl*32768 + tile*2048 + hf*1024}")
        a("s_waitcnt lgkmcnt(0)")

    a(f"""s_lshl_b32 s{S_T0}, s{S_WAVE}, 12
v_add_u32 v{vGOFF}, s{S_T0}, v{vL16}""")
    atr_addr(a, vATR, vLANE, vT, vT2)
    idx_reg(a, vIDX, vLANE, vT)
    a(f"""v_lshrrev_b32 v{vT}, 5, v{vLANE}
v_lshlrev_b32 v{vQKW}, 8, v{vT}
v_and_b32 v{vT}, 15, v{vLANE}
v_lshl_add_u32 v{vQKW}, v{vT}, 4, v{vQKW}
v_bfe_u32 v{vT}, v{vLANE}, 4, 1
v_lshl_add_u32 v{vQKW}, v{vT}, 3, v{vQKW}
s_lshl_b32 s{S_T0}, s{S_WAVE}, 9
v_add_u32 v{vQKW}, s{S_T0}, v{vQKW}""")
    a(f"""v_lshrrev_b32 v{vT}, 2, v{vLANE}
v_lshlrev_b32 v{vQKR}, 4, v{vT}
v_and_b32 v{vT}, 1, v{vLANE}
v_lshl_add_u32 v{vQKR}, v{vT}, 3, v{vQKR}""")
    a(f"""s_lshr_b32 s{S_T0}, s{S_WAVE}, 1
s_lshl_b32 s{S_T0}, s{S_T0}, 10
s_and_b32 s{S_T1}, s{S_WAVE}, 1
s_lshl_b32 s{S_T1}, s{S_T1}, 7
s_add_u32 s{S_T0}, s{S_T0}, s{S_T1}
s_add_u32 s{S_WOFF}, s{S_T0}, {WS_OM:#x}""")
    a(f"""v_and_b32 v{vT}, 15, v{vLANE}
v_lshlrev_b32 v{vOXO}, 13, v{vT}
v_lshrrev_b32 v{vT}, 4, v{vLANE}
v_lshl_add_u32 v{vOXO}, v{vT}, 4, v{vOXO}
s_lshl_b32 s{S_T0}, s{S_HEAD}, 8
s_lshl_b32 s{S_T1}, s{S_WAVE}, 6
s_add_u32 s{S_T0}, s{S_T0}, s{S_T1}
v_add_u32 v{vOXO}, s{S_T0}, v{vOXO}""")
    a(f"""v_and_b32 v{vT}, 31, v{vLANE}
v_lshlrev_b32 v{vVMO}, 4, v{vT}
s_lshl_b32 s{S_T0}, s{S_WAVE}, 9
v_add_u32 v{vVMO}, s{S_T0}, v{vVMO}""")
    a(f"""v_mov_b32 v{vNEG}, 0xff800000
s_mov_b32 s{S_MK0}, -1
s_mov_b32 s{S_MK0+1}, 0""")
    for r in range(4):
        m = 0
        for l in range(64):
            if 4 * (l // 16) + r <= l % 16: m |= 1 << l
        a(f"s_mov_b32 s{S_MKC+2*r}, {m & 0xffffffff:#x}\ns_mov_b32 s{S_MKC+2*r+1}, {m >> 32:#x}")
    cbits = f32bits(128 ** -0.5 * LOG2E)
    a(f"s_mov_b32 s{S_C}, {cbits:#x}\ns_mov_b32 s{S_C+1}, {cbits:#x}")
    a(f"""s_mov_b32 s{S_STEP}, 0
s_lshl_b32 s{S_OFF_A}, s{S_TEAM}, 20
s_add_u32 s{S_OFF_A}, s{S_OFF_A}, {WS_MEMT:#x}
s_lshl_b32 s{S_OFF_B}, s{S_HEAD}, 13
s_lshl_b32 s{S_OFF_C}, s{S_HEAD}, 11
s_mov_b32 s{S_OFF_D}, {WS_OX:#x}""")

    def prefetch_x():
        a(f"s_add_u32 s{S_T0}, s{S_OFF_B}, {WS_KX:#x}")
        a(f"s_add_u32 s{S_T1}, s{S_T0}, 4096")
        for f in range(8):
            a(f"buffer_load_dwordx4 {vr(KX+4*f,4)}, v{vL16}, {WS}, s{S_T0 if f < 4 else S_T1} offen offset:{(f%4)*1024} sc1")
        a(f"""s_lshl_b32 s{S_T2}, s{S_WAVE}, 11
s_add_u32 s{S_T0}, s{S_OFF_B}, s{S_T2}
s_add_u32 s{S_T1}, s{S_T0}, {WS_VX:#x}""")
        for f in range(2):
            a(f"buffer_load_dwordx4 {vr(VX+4*f,4)}, v{vL16}, {WS}, s{S_T1} offen offset:{f*1024} sc1")
        a(f"""s_add_u32 s{S_T1}, s{S_T0}, {WS_QX:#x}
s_add_u32 m0, s{S_T2}, {L_QX:#x}""")
        for f in range(2):
            a(f"buffer_load_dwordx4 v{vL16}, {WS}, s{S_T1} offen offset:{f*1024} sc1 lds")

    seq = []
    for grp in range(4):
        for q in range(4):
            for x in range(3):
                i = q * 3 + x
                seq.append((3 * grp + i // 4, i % 4))
            seq.append((12 + grp, q))
    lds_tiles = [(ks, t) for ks, t in seq if ks >= 12]
    a_order = []
    for ks, t in seq:
        if ks not in a_order: a_order.append(ks)

    def bload_instrs(i):
        ks, t = lds_tiles[i]
        b = BR + 8 * (i % NB)
        base = vBL0 + (ks - 12) // 2
        off = ((ks - 12) % 2) * 32768 + t * 2048
        return [f"ds_read_b128 {vr(b,4)}, v{base} offset:{off}", f"ds_read_b128 {vr(b+4,4)}, v{base} offset:{off+1024}"]

    def tinit(t, kind):
        for r in range(4):
            m = S_MK0 if kind == "m0" else S_MKC + 2 * r
            a(f"v_cndmask_b32 v{T+4*t+r}, v{vNEG}, 0, s[{m}:{m+1}]")

    def softmax_pv(tiles, store_fn, pre_pv=None):
        m, m2, nm = MI, MI + 1, MI + 2
        regs = [T + 4 * t + r for t in tiles for r in range(4)]
        order = [T + 4 * t + r for t in tiles[1:] + tiles[:1] for r in range(4)]
        a(f"v_max3_f32 v{m}, v{order[0]}, v{order[1]}, v{order[2]}")
        rest = order[3:]
        while rest:
            if len(rest) >= 2:
                a(f"v_max3_f32 v{m}, v{m}, v{rest[0]}, v{rest[1]}"); rest = rest[2:]
            else:
                a(f"v_max_f32 v{m}, v{m}, v{rest[0]}"); rest = rest[1:]
        xlane_reduce(a, "v_max_f32", m, m2)
        a(f"v_mul_f32 v{nm}, s{S_C}, v{m}")
        for i in range(0, len(order), 2):
            a(f"v_pk_fma_f32 {vr(order[i],2)}, {vr(order[i],2)}, s[{S_C}:{S_C+1}], {vr(nm,2)} op_sel_hi:[1,1,0] neg_lo:[0,0,1] neg_hi:[0,0,1]")
        for r in order[:-4]:
            a(f"v_exp_f32 v{r}, v{r}")
        a(f"v_exp_f32 v{order[-4]}, v{order[-4]}")
        for t in (1, 2):
            for hf in range(2):
                d = PX + 2 * (t - 1) + hf
                if t in tiles:
                    a(f"v_cvt_pk_bf16_f32 v{d}, v{T+4*t+2*hf}, v{T+4*t+2*hf+1}")
                else:
                    a(f"v_mov_b32 v{d}, 0")
        O = QF
        a(f"v_exp_f32 v{order[-3]}, v{order[-3]}")
        a(f"v_exp_f32 v{order[-2]}, v{order[-2]}")
        a(f"v_mfma_f32_16x16x32_bf16 {vr(O,4)}, {vr(VX,4)}, {vr(PX,4)}, 0")
        a(f"v_exp_f32 v{order[-1]}, v{order[-1]}")
        a(f"v_mfma_f32_16x16x32_bf16 {vr(O+4,4)}, {vr(VX+4,4)}, {vr(PX,4)}, 0")
        for hf in range(2):
            a(f"v_cvt_pk_bf16_f32 v{PZ+2+hf}, v{T+2*hf}, v{T+2*hf+1}")
        if pre_pv: pre_pv()
        sums = [f"v_pk_add_f32 {vr(regs[0],2)}, {vr(regs[0],2)}, {vr(regs[i],2)}" for i in range(2, len(regs), 2)]
        a(sums[0]); a(sums[1])
        a(f"v_mfma_f32_16x16x32_bf16 {vr(O,4)}, {vr(VM,4)}, {vr(PZ+2,4)}, {vr(O,4)}")
        a(f"v_mfma_f32_16x16x32_bf16 {vr(O+4,4)}, {vr(VM,4)}, {vr(PZ,4)}, {vr(O+4,4)}")
        for x in sums[2:]: a(x)
        a(f"v_add_f32 v{m}, v{regs[0]}, v{regs[1]}")
        xlane_reduce(a, "v_add_f32", m, m2)
        a(f"v_rcp_f32 v{nm}, v{m}")
        for i in range(0, 8, 2):
            a(f"v_pk_mul_f32 {vr(O+i,2)}, {vr(O+i,2)}, {vr(nm,2)} op_sel_hi:[1,0]")
        for i in range(4):
            a(f"v_cvt_pk_bf16_f32 v{PX+i}, v{O+2*i}, v{O+2*i+1}")
        store_fn(PX)

    def scores(tiles, zero):
        for ks in range(4):
            for t in tiles:
                A = KMF + 4 * ks if t == 0 else KX + 16 * (t - 1) + 4 * ks
                C = "0" if (ks == 0 and t in zero) else vr(T + 4 * t, 4)
                a(f"v_mfma_f32_16x16x32_bf16 {vr(T+4*t,4)}, {vr(A,4)}, {vr(QF+4*ks,4)}, {C}")

    prefetch_x()
    startup_barrier(a, P, P + 1, P + 2)
    a.label("S_loop")
    stamp(a, 0, cfg)
    for i in range(NB):
        for x in bload_instrs(i): a(x)
    for i in range(16): a(f"v_mov_b32 v{ACC+i}, 0")
    a(f"s_add_u32 s{S_T5}, s{S_OFF_C}, {WS_VM:#x}")
    a("s_waitcnt vmcnt(0)")
    gather_mem(a, G, vGOFF, vGOFF, vT, cfg, "s")
    stamp(a, 1, cfg)
    aslot = {}
    issued = []
    pending = []
    free_slots = list(range(NA))
    def aload(n):
        ks = a_order[n]
        aslot[ks] = AR + 4 * free_slots.pop(0)
        for u in range(2):
            pending.append((("A", ks), f"ds_read_b64_tr_b16 {vr(aslot[ks]+2*u,2)}, v{vATR} offset:{L_MEM + ks*1024+u*512}"))
    def flush(n):
        for _ in range(min(n, len(pending))):
            tag, ins = pending.pop(0)
            a(ins); issued.append(tag)
    last_use = {}
    first_use = {}
    for i, (ks, t) in enumerate(seq):
        last_use[ks] = i; first_use.setdefault(ks, i)
    lds_pos = [i for i, (ks, t) in enumerate(seq) if ks >= 12]
    def deadline(tag):
        return first_use[tag[1]] if tag[0] == "A" else lds_pos[tag[1]]
    nexta = 0
    for n in range(NA): aload(n); nexta += 1
    flush(cfg.get("a_pre", 6))
    nextb = NB
    done_wait = -1
    li = 0
    for i, (ks, t) in enumerate(seq):
        needs = [("A", ks)]
        if ks >= 12 and li >= NB: needs.append(("B", li))
        while any(tg in needs for tg, _ in pending): flush(1)
        idx = max(max(k for k, tg in enumerate(issued) if tg == tag) for tag in needs)
        if idx > done_wait:
            a(f"s_waitcnt lgkmcnt({min(15, len(issued)-1-idx)})")
            done_wait = idx
        w = wreg(ks, t)
        B = vr(BR + 8 * (li % NB), 8) if w is None else vr(w[1], 8, w[0])
        a(f"v_smfmac_f32_16x16x64_bf16 {vr(ACC+4*t,4)}, {vr(aslot[ks],4)}, {B}, v{vIDX}")
        if w is None:
            li += 1
            if nextb < 16:
                for x in bload_instrs(nextb): pending.append((("B", nextb), x))
                nextb += 1
        if last_use[ks] == i:
            free_slots.append((aslot[ks] - AR) // 4)
            if nexta < 16:
                aload(nexta); nexta += 1
        pending.sort(key=lambda p: deadline(p[0]))
        flush(cfg.get("per_gap", 1))
        if i == cfg.get("vm_at", 48):
            a(f"buffer_load_dwordx4 {vr(VM,4)}, v{vVMO}, {WS}, s{S_T5} offen sc1")
    stamp(a, 2, cfg)
    for mat in range(2):
        A0, A1 = ACC + 8 * mat, ACC + 8 * mat + 4
        for r in range(4):
            a(f"v_permlane32_swap_b32 v{A0+r}, v{A1+r}")
        for r in range(0, 4, 2):
            a(f"v_pk_add_f32 {vr(A0+r,2)}, {vr(A0+r,2)}, {vr(A1+r,2)}")
        D = ACC + 12 + 2 * mat if mat == 1 else ACC + 4
        a(f"v_cvt_pk_bf16_f32 v{D}, v{A0}, v{A0+1}")
        a(f"v_cvt_pk_bf16_f32 v{D+1}, v{A0+2}, v{A0+3}")
        a(f"ds_write_b64 v{vQKW}, {vr(D,2)} offset:{L_QK + mat*2048}")
    tinit(0, "m0")
    a("s_waitcnt lgkmcnt(0)\ns_barrier")
    for ks in range(4):
        for u in range(2):
            a(f"ds_read_b64_tr_b16 {vr(QF+4*ks+2*u,2)}, v{vQKR} offset:{L_QK + (32*ks+16*u)*16}")
    for ks in range(3):
        for u in range(2):
            a(f"ds_read_b64_tr_b16 {vr(KMF+4*ks+2*u,2)}, v{vQKR} offset:{L_QK + 2048 + (32*ks+16*u)*16}")
    for z in (0, 1, 4, 5): a(f"v_mov_b32 v{PZ+z}, 0")
    for ks in range(4):
        a(f"s_waitcnt lgkmcnt({12 - 2*ks if ks == 0 else 14 - 2*ks})")
        for t in (1, 2):
            C = "0" if ks == 0 else vr(T + 4 * t, 4)
            a(f"v_mfma_f32_16x16x32_bf16 {vr(T+4*t,4)}, {vr(KX+16*(t-1)+4*ks,4)}, {vr(QF+4*ks,4)}, {C}")
        if ks == 0:
            for u in range(2):
                a(f"ds_read_b64_tr_b16 {vr(KMF+12+2*u,2)}, v{vQKR} offset:{L_QK + 2048 + (96+16*u)*16}")
    a("s_waitcnt lgkmcnt(0)")
    scores([0], [])
    stamp(a, 3, cfg)

    def vm_check():
        poll(a, [(f"buffer_load_dwordx4 {vr(VM,4)}, v{vVMO}, {WS}, s{S_T5} offen sc1", list(range(VM, VM + 4)))],
             vT, None, cap=0, first_issued=True)

    def om_store(R):
        a("s_mov_b32 exec_lo, 0x00ff00ff\ns_mov_b32 exec_hi, 0x00ff00ff")
        store_mode(a, f"buffer_store_dwordx4 {vr(R,4)}, v{vL16}, {WS}, s{S_T4} offen")
        a("s_mov_b64 exec, -1")
    a(f"s_add_u32 s{S_T4}, s{S_OFF_C}, s{S_WOFF}")
    a("s_waitcnt vmcnt(0)")
    softmax_pv([0, 1, 2], om_store, vm_check)
    stamp(a, 4, cfg)
    for tt in range(2):
        for ks in range(4):
            a(f"ds_read_b128 {vr(QF+4*ks,4)}, v{vL16} offset:{L_QX + tt*4096 + ks*1024}")
        tinit(0, "m0")
        tinit(1 + tt, "mc")
        a("s_waitcnt lgkmcnt(0)")
        if tt == 0:
            scores([1, 0], [])
        else:
            scores([1, 2, 0], [1])
        def ox_store(R, tt=tt):
            a(f"s_add_u32 s{S_T0}, s{S_OFF_D}, {tt*16*8192:#x}")
            a(f"buffer_store_dwordx4 {vr(R,4)}, v{vOXO}, {WS}, s{S_T0} offen sc1")
        softmax_pv([0, 1] if tt == 0 else [0, 1, 2], ox_store)
    stamp(a, 5, cfg)
    if cfg.get("stamps"):
        a(f"v_lshrrev_b32 v{MI+6}, 2, v{vL16}")
    stamp_flush(a, cfg)
    a(f"""s_add_u32 s{S_STEP}, s{S_STEP}, 1
s_cmp_eq_u32 s{S_STEP}, {NSEG}
s_cbranch_scc1 L_done
s_add_u32 s{S_OFF_A}, s{S_OFF_A}, 0x4000
s_add_u32 s{S_OFF_B}, s{S_OFF_B}, {32*8192:#x}
s_add_u32 s{S_OFF_C}, s{S_OFF_C}, {32*2048:#x}
s_add_u32 s{S_OFF_D}, s{S_OFF_D}, {32*8192:#x}
s_barrier""")
    prefetch_x()
    a("s_branch S_loop")
    a.flush_deferred()


def v_cu(a, cfg):
    vLANE, vGOFF, vLW, vATR, vIDX, vL16, vT, vT2, vVMO, vOMO, vRW, vRR, vPO, vMO, vL4, vD = range(0, 16)
    AR, NA = 16, 16
    G = 80
    ACC = 96
    OF = 112
    RD = 128
    vPO2 = 180
    RP = 160
    MI = 152
    cfg = dict(cfg); cfg["stamp_reg"] = MI + 5; cfg["lane4_reg"] = vL4
    WS = f"s[{S_WS}:{S_WS+3}]"
    a(f"""s_lshl_b32 s{S_HEAD}, s{S_TEAM}, 3
s_lshr_b32 s{S_T0}, s{S_J}, 1
s_add_u32 s{S_HEAD}, s{S_HEAD}, s{S_T0}""")
    srd(a, S_W0, 32, 1024 * 8192)
    srd(a, S_W1, 40, 4096 * 2048)
    srd(a, S_W2, 8, 8 * 2048)
    a(f"v_and_b32 v{vLANE}, 63, v0")
    a(f"v_lshlrev_b32 v{vL16}, 4, v{vLANE}")
    a(f"v_lshlrev_b32 v{vL4}, 2, v{vLANE}")

    def stage(srdreg, pitch_log2, sbase):
        a(f"""v_lshrrev_b32 v{vT}, 3, v{vLANE}
v_lshlrev_b32 v{vD}, {pitch_log2}, v{vT}
v_and_b32 v{vT}, 7, v{vLANE}
v_lshl_add_u32 v{vD}, v{vT}, 4, v{vD}
s_lshl_b32 s{S_T1}, s{S_WAVE}, {8 + pitch_log2}
s_add_u32 s{S_T1}, s{S_T1}, s{sbase}
s_lshl_b32 s{S_T2}, s{S_WAVE}, 15""")
        for i in range(32):
            a(f"s_add_u32 m0, s{S_T2}, {L_W + i*1024}")
            a(f"s_add_u32 s{S_T4}, s{S_T1}, {(i*8) << pitch_log2:#x}")
            a(f"buffer_load_dwordx4 v{vD}, s[{srdreg}:{srdreg+3}], s{S_T4} offen lds")

    a(f"""s_lshl_b32 s{S_T0}, s{S_HEAD}, 8
s_and_b32 s{S_T1}, s{S_J}, 1
s_lshl_b32 s{S_T1}, s{S_T1}, 7
s_add_u32 s{S_T0}, s{S_T0}, s{S_T1}""")
    stage(S_W0, 13, S_T0)

    SENT = G
    for i in range(4): a(f"v_mov_b32 v{SENT+i}, -1")
    a(f"""s_lshl_b32 s{S_OFF_A}, s{S_TEAM}, 20
s_add_u32 s{S_OFF_A}, s{S_OFF_A}, {WS_MEMT:#x}
s_lshl_b32 s{S_T0}, s{S_J}, 10
s_add_u32 s{S_OFF_E}, s{S_OFF_A}, s{S_T0}
s_lshl_b32 s{S_OFF_C}, s{S_HEAD}, 11
s_and_b32 s{S_T1}, s{S_J}, 1
s_lshl_b32 s{S_T1}, s{S_T1}, 10
s_add_u32 s{S_OFF_B}, s{S_OFF_C}, s{S_T1}
s_and_b32 s{S_T0}, s{S_J}, 3
s_lshl_b32 s{S_OFF_D}, s{S_T0}, 11
s_lshr_b32 s{S_T0}, s{S_J}, 2
s_lshl_b32 s{S_T0}, s{S_T0}, 14
s_add_u32 s{S_OFF_D}, s{S_OFF_D}, s{S_T0}
s_add_u32 s{S_OFF_D}, s{S_OFF_D}, {WS_PART:#x}
s_lshl_b32 s{S_T0}, s{S_TEAM}, 16
s_add_u32 s{S_OFF_F}, s{S_OFF_D}, s{S_T0}""")
    lp = a.uid("init")
    a(f"s_mov_b32 s{S_STEP}, s{S_WAVE}")
    a.label(lp)
    a(f"""s_lshl_b32 s{S_T0}, s{S_STEP}, 14
s_add_u32 s{S_T0}, s{S_T0}, s{S_OFF_E}
buffer_store_dwordx4 {vr(SENT,4)}, v{vL16}, {WS}, s{S_T0} offen sc1
s_lshl_b32 s{S_T0}, s{S_STEP}, 16
s_add_u32 s{S_T0}, s{S_T0}, s{S_OFF_B}
s_add_u32 s{S_T1}, s{S_T0}, {WS_VM:#x}
buffer_store_dwordx4 {vr(SENT,4)}, v{vL16}, {WS}, s{S_T1} offen sc1
s_add_u32 s{S_T1}, s{S_T0}, {WS_OM:#x}
buffer_store_dwordx4 {vr(SENT,4)}, v{vL16}, {WS}, s{S_T1} offen sc1
s_lshl_b32 s{S_T0}, s{S_STEP}, 18
s_add_u32 s{S_T0}, s{S_T0}, s{S_OFF_F}
buffer_store_dwordx4 {vr(SENT,4)}, v{vL16}, {WS}, s{S_T0} offen sc1
buffer_store_dwordx4 {vr(SENT,4)}, v{vL16}, {WS}, s{S_T0} offen offset:1024 sc1
s_add_u32 s{S_T0}, s{S_T0}, 0x2000
buffer_store_dwordx4 {vr(SENT,4)}, v{vL16}, {WS}, s{S_T0} offen sc1
buffer_store_dwordx4 {vr(SENT,4)}, v{vL16}, {WS}, s{S_T0} offen offset:1024 sc1
s_waitcnt vmcnt(40)
s_add_u32 s{S_STEP}, s{S_STEP}, 4
s_cmp_lt_u32 s{S_STEP}, {NSEG}
s_cbranch_scc1 {lp}""")

    vWT = MI
    a(f"""v_bfe_u32 v{vT}, v{vLANE}, 4, 1
v_lshlrev_b32 v{vWT}, 12, v{vT}
v_bfe_u32 v{vT}, v{vLANE}, 5, 1
v_lshl_add_u32 v{vWT}, v{vT}, 10, v{vWT}
v_bfe_u32 v{vT}, v{vLANE}, 3, 1
v_lshl_add_u32 v{vWT}, v{vT}, 9, v{vWT}
v_bfe_u32 v{vT}, v{vLANE}, 2, 1
v_lshl_add_u32 v{vWT}, v{vT}, 7, v{vWT}
v_and_b32 v{vT}, 3, v{vLANE}
v_lshl_add_u32 v{vWT}, v{vT}, 3, v{vWT}
s_lshl_b32 s{S_T0}, s{S_WAVE}, 5
s_add_u32 s{S_T0}, s{S_T0}, {L_W:#x}
v_add_u32 v{vWT}, s{S_T0}, v{vWT}
v_add_u32 v{vWT+1}, 0x10000, v{vWT}
s_waitcnt vmcnt(0)
s_barrier""")
    for ks in range(16):
        for v in range(4):
            off = (ks % 8) * 8192 + (16 * (v // 2) + 2 * (v % 2)) * 128
            a(f"ds_read_b64_tr_b16 {ar(ks*8+2*v,2)}, v{vWT + ks // 8} offset:{off}")
        a("s_waitcnt lgkmcnt(8)")
    a("s_waitcnt lgkmcnt(0)\ns_barrier")
    a(f"""s_lshl_b32 s{S_T0}, s{S_TEAM}, 21
s_lshl_b32 s{S_T1}, s{S_J}, 7
s_add_u32 s{S_T0}, s{S_T0}, s{S_T1}""")
    stage(S_W1, 11, S_T0)
    a(f"""v_bfe_u32 v{vT}, v{vLANE}, 3, 1
v_lshlrev_b32 v{vWT}, 12, v{vT}
v_bfe_u32 v{vT}, v{vLANE}, 4, 1
v_lshl_add_u32 v{vWT}, v{vT}, 11, v{vWT}
v_bfe_u32 v{vT}, v{vLANE}, 5, 1
v_lshl_add_u32 v{vWT}, v{vT}, 9, v{vWT}
v_bfe_u32 v{vT}, v{vLANE}, 2, 1
v_lshl_add_u32 v{vWT}, v{vT}, 7, v{vWT}
v_and_b32 v{vT}, 3, v{vLANE}
v_lshl_add_u32 v{vWT}, v{vT}, 3, v{vWT}
s_lshl_b32 s{S_T0}, s{S_WAVE}, 15
s_add_u32 s{S_T0}, s{S_T0}, {L_W:#x}
v_add_u32 v{vWT}, s{S_T0}, v{vWT}""")
    a(f"""s_lshl_b32 s{S_T0}, s{S_WAVE}, 12
v_add_u32 v{vGOFF}, s{S_T0}, v{vL16}
v_add_u32 v{vLW}, {L_MEM:#x}, v{vGOFF}""")
    atr_addr(a, vATR, vLANE, vT, vT2)
    idx_reg(a, vIDX, vLANE, vT)
    a(f"""v_and_b32 v{vT}, 31, v{vLANE}
v_lshlrev_b32 v{vVMO}, 4, v{vT}
v_lshrrev_b32 v{vT}, 5, v{vLANE}
v_lshl_add_u32 v{vVMO}, v{vT}, 2, v{vVMO}
s_lshr_b32 s{S_T0}, s{S_WAVE}, 1
s_lshl_b32 s{S_T0}, s{S_T0}, 9
s_and_b32 s{S_T1}, s{S_WAVE}, 1
s_lshl_b32 s{S_T1}, s{S_T1}, 3
s_add_u32 s{S_T0}, s{S_T0}, s{S_T1}
v_add_u32 v{vVMO}, s{S_T0}, v{vVMO}""")
    a(f"""s_lshl_b32 s{S_T0}, s{S_TEAM}, 14
s_lshl_b32 s{S_T1}, s{S_WAVE}, 12
s_add_u32 s{S_T0}, s{S_T0}, s{S_T1}
v_add_u32 v{vOMO}, s{S_T0}, v{vL16}""")
    a(f"""v_add_u32 v{vRW}, {L_RED:#x}, v{vGOFF}
s_lshl_b32 s{S_T0}, s{S_WAVE}, 10
s_add_u32 s{S_T0}, s{S_T0}, {L_RED:#x}
v_add_u32 v{vRR}, s{S_T0}, v{vL16}""")
    a(f"""v_lshlrev_b32 v{vPO}, 3, v{vLANE}
s_lshl_b32 s{S_T0}, s{S_WAVE}, 9
v_add_u32 v{vPO}, s{S_T0}, v{vPO}
v_add_u32 v{vPO2}, 0x2000, v{vPO}""")
    a(f"""v_and_b32 v{vT}, 15, v{vLANE}
v_lshlrev_b32 v{vMO}, 4, v{vT}
v_bfe_u32 v{vT}, v{vLANE}, 4, 1
v_lshl_add_u32 v{vMO}, v{vT}, 3, v{vMO}
v_lshrrev_b32 v{vT}, 5, v{vLANE}
v_lshl_add_u32 v{vMO}, v{vT}, 2, v{vMO}
s_lshl_b32 s{S_T0}, s{S_WAVE}, 8
v_add_u32 v{vMO}, s{S_T0}, v{vMO}""")
    M0R = RP
    a(f"""v_bfe_u32 v{vT}, v{vLANE}, 4, 1
v_lshlrev_b32 v{vT2}, 13, v{vT}
v_lshrrev_b32 v{vT}, 5, v{vLANE}
v_lshl_add_u32 v{vT2}, v{vT}, 12, v{vT2}
v_and_b32 v{vT}, 15, v{vLANE}
v_lshl_add_u32 v{vT2}, v{vT}, 1, v{vT2}
s_lshl_b32 s{S_T0}, s{S_J}, 7
s_lshl_b32 s{S_T1}, s{S_WAVE}, 5
s_add_u32 s{S_T0}, s{S_T0}, s{S_T1}
buffer_load_ushort v{M0R}, v{vT2}, s[{S_W2}:{S_W2+3}], s{S_T0} offen
buffer_load_ushort v{M0R+1}, v{vT2}, s[{S_W2}:{S_W2+3}], s{S_T0} offen offset:2048
s_waitcnt vmcnt(0)
v_lshl_or_b32 v{M0R}, v{M0R+1}, 16, v{M0R}
s_barrier""")
    for f in range(4):
        for ct in range(4):
            for v in range(4):
                off = f * 8192 + (8 * (v // 2) + 2 * (v % 2)) * 128 + ct * 32
                a(f"ds_read_b64_tr_b16 {ar(128+(f*4+ct)*8+2*v,2)}, v{vWT} offset:{off}")
            a("s_waitcnt lgkmcnt(8)")
    startup_barrier(a, MI + 2, MI + 3, MI + 4)
    store_mode(a, f"buffer_store_dword v{M0R}, v{vMO}, {WS}, s{S_OFF_E} offen")
    a(f"s_mov_b32 s{S_STEP}, 0")
    a.label("V_loop")
    stamp(a, 0, cfg)
    for i in range(4): a(f"v_mov_b32 v{ACC+i}, 0")
    gather_mem(a, G, vGOFF, vLW, vT, cfg, "v")
    stamp(a, 1, cfg)
    for ks in range(16):
        for u in range(2):
            a(f"ds_read_b64_tr_b16 {vr(AR+4*ks+2*u,2)}, v{vATR} offset:{ks*1024+u*512}")
        if ks >= 6:
            k2 = ks - 6
            a("s_waitcnt lgkmcnt(12)")
            a(f"v_smfmac_f32_16x16x64_bf16 {vr(ACC,4)}, {vr(AR+4*k2,4)}, {ar(k2*8,8)}, v{vIDX}")
    for k2 in range(10, 16):
        a(f"s_waitcnt lgkmcnt({2*(15-k2)})")
        a(f"v_smfmac_f32_16x16x64_bf16 {vr(ACC,4)}, {vr(AR+4*k2,4)}, {ar(k2*8,8)}, v{vIDX}")
    a(f"""v_permlane32_swap_b32 v{ACC}, v{ACC+2}
v_permlane32_swap_b32 v{ACC+1}, v{ACC+3}
v_pk_add_f32 {vr(ACC,2)}, {vr(ACC,2)}, {vr(ACC+2,2)}
v_cvt_pk_bf16_f32 v{MI}, v{ACC}, v{ACC+1}
s_add_u32 s{S_T0}, s{S_OFF_B}, {WS_VM:#x}""")
    store_mode(a, f"buffer_store_dword v{MI}, v{vVMO}, {WS}, s{S_T0} offen")
    stamp(a, 2, cfg)
    a(f"""s_cmp_eq_u32 s{S_STEP}, {NSEG-1}
s_cbranch_scc1 L_done
s_lshl_b32 s{S_T5}, s{S_STEP}, 16
s_add_u32 s{S_T5}, s{S_T5}, {WS_OM:#x}""")
    for i in range(16): a(f"v_mov_b32 v{ACC+i}, 0")
    loads = [(f"buffer_load_dwordx4 {vr(OF+4*f,4)}, v{vOMO}, {WS}, s{S_T5} offen offset:{1024*f} sc1",
              list(range(OF + 4 * f, OF + 4 * f + 4))) for f in range(4)]
    def om_ready(f):
        if f == 0: stamp(a, 3, cfg)
        for ct in range(4):
            a(f"v_smfmac_f32_16x16x64_bf16 {vr(ACC+4*ct,4)}, {vr(OF+4*f,4)}, {ar(128+(f*4+ct)*8,8)}, v{vIDX}")
    o = cfg.get("v_om", {})
    a("s_waitcnt vmcnt(0)")
    for i in range(12): a(f"v_mov_b32 v{RP+i}, -1")
    for x in range(1, 4):
        a(f"s_xor_b32 s{S_T0+x}, s{S_OFF_F}, {x << 16:#x}")
    poll(a, loads, vT, om_ready, staged=o.get("staged", True), cap=o.get("cap", 1), sleep=o.get("sleep", 0), pre_sleep=o.get("pre", 0))
    for ct in range(4):
        a(f"ds_write_b128 v{vRW}, {vr(ACC+4*ct,4)} offset:{ct*1024}")
    a("s_waitcnt lgkmcnt(0)\ns_barrier")
    for src in range(4):
        a(f"ds_read_b128 {vr(RD+4*src,4)}, v{vRR} offset:{src*4096}")
    a("s_waitcnt lgkmcnt(2)")
    a(f"v_pk_add_f32 {vr(RD,2)}, {vr(RD,2)}, {vr(RD+4,2)}")
    a(f"v_pk_add_f32 {vr(RD+2,2)}, {vr(RD+2,2)}, {vr(RD+6,2)}")
    a("s_waitcnt lgkmcnt(0)")
    a(f"v_pk_add_f32 {vr(RD+8,2)}, {vr(RD+8,2)}, {vr(RD+12,2)}")
    a(f"v_pk_add_f32 {vr(RD+10,2)}, {vr(RD+10,2)}, {vr(RD+14,2)}")
    a(f"v_pk_add_f32 {vr(RD,2)}, {vr(RD,2)}, {vr(RD+8,2)}")
    a(f"v_pk_add_f32 {vr(RD+2,2)}, {vr(RD+2,2)}, {vr(RD+10,2)}")
    a(f"""v_permlane32_swap_b32 v{RD}, v{RD+2}
v_permlane32_swap_b32 v{RD+1}, v{RD+3}
v_pk_add_f32 {vr(RD,2)}, {vr(RD,2)}, {vr(RD+2,2)}
buffer_store_dwordx2 {vr(RD,2)}, v{vPO}, {WS}, s{S_OFF_F} offen sc1
buffer_store_dwordx2 {vr(RD,2)}, v{vPO2}, {WS}, s{S_OFF_F} offen sc1""")
    stamp(a, 4, cfg)
    o = cfg.get("v_part", {})
    copies = o.get("copies", [0])
    lp = a.uid("pg")
    if o.get("pre", 5): a(f"s_sleep {o.get('pre', 5)}")
    a.label(lp)
    budget_head(a)
    for cp in copies:
        for x in range(1, 4):
            a(f"buffer_load_dwordx2 {vr(RP+6*cp+2*(x-1),2)}, v{(vPO2 if cp else vPO)}, {WS}, s{S_T0+x} offen sc1")
    if o.get("sleep", 1): a(f"s_sleep {o.get('sleep', 1)}")
    a(f"s_waitcnt vmcnt({min(63, o.get('cap', 4) * 3 * len(copies))})")
    MG = RP + 12
    for i in range(6):
        a(f"v_min_u32 v{MG+i}, v{RP+i}, v{RP+6+i}")
    check_regs(a, range(MG, MG + 6), vT, lp)
    a(f"""v_pk_add_f32 {vr(RD,2)}, {vr(RD,2)}, {vr(MG,2)}
v_pk_add_f32 {vr(RD+2,2)}, {vr(MG+2,2)}, {vr(MG+4,2)}
v_pk_add_f32 {vr(RD,2)}, {vr(RD,2)}, {vr(RD+2,2)}
v_cvt_pk_bf16_f32 v{MI}, v{RD}, v{RD+1}
s_add_u32 s{S_OFF_E}, s{S_OFF_E}, 0x4000""")
    store_mode(a, f"buffer_store_dword v{MI}, v{vMO}, {WS}, s{S_OFF_E} offen")
    stamp(a, 5, cfg)
    stamp_flush(a, cfg)
    a(f"""s_add_u32 s{S_STEP}, s{S_STEP}, 1
s_add_u32 s{S_OFF_A}, s{S_OFF_A}, 0x4000
s_add_u32 s{S_OFF_B}, s{S_OFF_B}, 0x10000
s_add_u32 s{S_OFF_F}, s{S_OFF_F}, 0x40000
s_branch V_loop""")
    a.flush_deferred()
```

```python
from asmgen import *
import chain
from chain import (WS_KX, WS_QX, WS_VX, WS_OX, WS_MEMT, WS_VM, WS_OM, WS_PART, WS_STAMP, WS_SIZE, NSEG, NT, NCHAIN,
                   S_WS, S_DBG, S_W0, S_W1, S_W2, S_WAVE, S_TEAM, S_J, S_MODE, S_STEP, S_C,
                   S_T0, S_T1, S_T2, S_T3, S_T4, S_T5, S_OFF_A, S_OFF_B, S_OFF_C, S_OFF_D, S_OFF_E, S_OFF_F,
                   S_BUDGET, S_HEAD, S_TS, POLL_BUDGET, LOG2E, f32bits, srd, store_mode, check_regs, poll, budget_head,
                   stamp, stamp_flush, xlane_reduce, idx_reg, L_MEM, L_QK, L_QX, L_RED, L_W, LDS_BYTES, S_MK0, S_MKC, S_WOFF)

S_NEAR = 81
S_PCUR = 82
JIT = 4
WS = f"s[{S_WS}:{S_WS+3}]"
DBG = f"s[{S_DBG}:{S_DBG+3}]"
OOBV = 0x7f000000


def startup_barrier(a, vt):
    lp = a.uid("sb"); skip = a.uid("sb")
    a(f"""s_waitcnt vmcnt(0) lgkmcnt(0)
s_barrier
v_mov_b32 v{vt+4}, 0
s_cmp_lg_u32 s{S_WAVE}, 0
s_cbranch_scc1 {skip}
s_getreg_b32 s{S_T0}, hwreg(HW_REG_XCC_ID)
s_and_b32 s{S_T0}, s{S_T0}, 7
s_lshl_b32 s{S_T1}, s{S_TEAM}, 3
s_add_u32 s{S_T0}, s{S_T0}, s{S_T1}
s_lshl_b32 s{S_T0}, 1, s{S_T0}
v_mov_b32 v{vt}, s{S_T0}
v_mov_b32 v{vt+1}, 1
s_mov_b64 exec, 1
buffer_atomic_or v{vt}, v{vt+4}, {DBG}, 0 offen offset:4 sc1
s_waitcnt vmcnt(0)
buffer_atomic_add v{vt+1}, v{vt+4}, {DBG}, 0 offen sc1
s_mov_b64 exec, -1
{skip}:
{lp}:""")
    budget_head(a)
    a(f"""s_sleep 2
buffer_load_dwordx4 {vr(vt,4)}, v{vt+4}, {DBG}, 0 offen sc1
s_waitcnt vmcnt(0)
v_readfirstlane_b32 s{S_T0}, v{vt}
v_readfirstlane_b32 s{S_T1}, v{vt+1}
v_readfirstlane_b32 s{S_NEAR}, v{vt+3}
s_nop 3
s_cmp_lt_u32 s{S_T0}, {NCHAIN}
s_cbranch_scc1 {lp}
s_lshl_b32 s{S_T2}, s{S_TEAM}, 3
s_lshr_b32 s{S_T1}, s{S_T1}, s{S_T2}
s_and_b32 s{S_T1}, s{S_T1}, 0xff
s_bcnt1_i32_b32 s{S_T1}, s{S_T1}
s_cmp_eq_u32 s{S_T1}, 1
s_cselect_b32 s{S_MODE}, 1, 0""")


def store_mode2(a, instr):
    l1, l2 = a.uid("sm"), a.uid("sm")
    a(f"""s_cbranch_scc0 {l1}
{instr}
{l2}:""")
    a.defer(lambda: a(f"""{l1}:
{instr} sc1
s_branch {l2}"""))


class SPoll:
    def __init__(self, a, loads, regs, vt, cap=1, sleep=0, pre_sleep=0):
        self.a, self.loads, self.regs, self.vt, self.cap, self.sleep, self.pre_sleep = a, loads, regs, vt, cap, sleep, pre_sleep
    def prefill(self):
        for b in self.regs:
            for r in range(4): self.a(f"v_mov_b32 v{b+r}, -1")
    def _body(self, f, lp):
        a = self.a
        ok = a.uid("so")
        a.label(lp)
        a.fill(1)
        for x in self.loads[f:]:
            a(x); a.fill(1)
        budget_head(a)
        a(f"s_waitcnt vmcnt({min(63, self.cap * (len(self.loads) - f))})")
        for k in range(self.sleep):
            self.pre(f)
            a.fill(5)
            a(f"s_cbranch_vccz {ok}")
        self.pre(f)
        a.fill(5)
        a(f"s_cbranch_vccnz {lp}")
        a.label(ok)
    def first(self, prefill=True):
        if prefill: self.prefill()
        if self.pre_sleep: self.a.fill(self.pre_sleep)
        self._body(0, self.a.uid("sp"))
    def pre(self, f):
        b, t = self.regs[f], self.vt
        if isinstance(b, list):
            a = self.a
            a(f"v_max3_u32 v{t}, v{b[0]}, v{b[1]}, v{b[2]}")
            rest = b[3:]
            while rest:
                if len(rest) >= 2: a(f"v_max3_u32 v{t}, v{t}, v{rest[0]}, v{rest[1]}"); rest = rest[2:]
                else: a(f"v_max_u32 v{t}, v{t}, v{rest[0]}"); rest = rest[1:]
            a(f"v_cmp_eq_u32 vcc, {chain.SENTINEL[0]}, v{t}")
            return
        self.a(f"v_max3_u32 v{t}, v{b}, v{b+1}, v{b+2}\nv_max_u32 v{t}, v{t}, v{b+3}\nv_cmp_eq_u32 vcc, {chain.SENTINEL[0]}, v{t}")
    def br(self, f):
        a = self.a
        lp, back = a.uid("sp"), a.uid("sb")
        a(f"s_cbranch_vccnz {lp}")
        a.label(back)
        def ool():
            self._body(f, lp); a(f"s_branch {back}")
        a.defer(ool)


class Lds:
    def __init__(self, a):
        self.a = a; self.issued = []; self.done = -1
    def op(self, tag, ins):
        self.a(ins); self.issued.append(tag)
    def wait(self, *tags):
        idx = max((i for i, t in enumerate(self.issued) if t in tags), default=-1)
        if idx > self.done:
            self.a(f"s_waitcnt lgkmcnt({min(15, len(self.issued) - 1 - idx)})")
            self.done = idx
    def wait_all(self):
        self.a("s_waitcnt lgkmcnt(0)"); self.done = len(self.issued) - 1


def s_cu(a, cfg, hooks=None):
    hooks = hooks or {}
    vT, vL16, vGW, vA1, vA2, vA3, vBL, vQKW, vQKR, vIDX, vOXO, vVMO = range(12)
    KX, VX = 12, 44
    P = 52
    ACC, G, BR, AR = P, P + 16, P + 32, P + 56
    NB, NA = 3, 5
    QF, OXR, T12, OMR, KMF, T0 = BR, BR + 16, ACC, ACC + 8, AR, AR + 16
    VM, PX, PM, MI = G, G + 4, G + 8, G + 10
    vLANE, vD, vWT = 124, 125, 126
    cfg = dict(cfg); cfg["stamp_reg"] = MI + 4; cfg["lane4_reg"] = MI + 5

    stream = [4, 8, 12, 5, 9, 13, 6, 10, 14, 7, 11, 15]
    order = [(0, t) for t in range(4)] + [(1, t) for t in range(4)]
    order += [(s, t) for s in (2, 3) for t in (0, 1)]
    for s in stream[:8]: order += [(s, t) for t in range(4)]
    order += [(s, t) for s in stream[8:] for t in (0, 1)]
    q_end = len(order) - 1
    order += [(s, t) for s in (2, 3) for t in (2, 3)]
    order += [(s, t) for s in stream[8:] for t in (2, 3)]
    assert len(order) == 64 and len(set(order)) == 64
    lpos = [round(1 + i * 3.2) for i in range(16)]
    assert lpos[-1] <= q_end
    lds_tiles = [order[p] for p in lpos]
    regmap = {}
    n = 0
    for st in order:
        if st in lds_tiles: continue
        regmap[st] = ("a", n * 8) if n < 32 else ("v", 128 + (n - 32) * 8)
        n += 1

    a(f"""s_lshl_b32 s{S_HEAD}, s{S_TEAM}, 3
s_add_u32 s{S_HEAD}, s{S_HEAD}, s{S_J}""")
    srd(a, S_W0, 16, 1024 * 8192)
    srd(a, S_W1, 24, 1024 * 8192)
    a(f"v_and_b32 v{vLANE}, 63, v0")
    a(f"v_lshlrev_b32 v{vL16}, 4, v{vLANE}")
    a(f"""v_lshrrev_b32 v{vT}, 2, v{vLANE}
v_lshlrev_b32 v{vD}, 13, v{vT}
v_and_b32 v{vT}, 3, v{vLANE}
v_lshl_add_u32 v{vD}, v{vT}, 4, v{vD}
s_lshl_b32 s{S_T0}, s{S_HEAD}, 8
s_lshl_b32 s{S_T1}, s{S_WAVE}, 6
s_add_u32 s{S_T0}, s{S_T0}, s{S_T1}
v_add_u32 v{vD}, s{S_T0}, v{vD}
s_lshl_b32 s{S_T2}, s{S_WAVE}, 15
s_add_u32 s{S_T2}, s{S_T2}, {L_W:#x}
s_lshl_b32 s{S_T5}, s{S_WAVE}, 21
v_add_u32 v{vBL}, s{S_T2}, v{vL16}""")
    a(f"""v_bfe_u32 v{vT}, v{vLANE}, 5, 1
v_lshlrev_b32 v{vWT}, 10, v{vT}
v_bfe_u32 v{vT}, v{vLANE}, 3, 1
v_lshl_add_u32 v{vWT}, v{vT}, 9, v{vWT}
v_bfe_u32 v{vT}, v{vLANE}, 4, 1
v_lshl_add_u32 v{vWT}, v{vT}, 8, v{vWT}
v_bfe_u32 v{vT}, v{vLANE}, 2, 1
v_lshl_add_u32 v{vWT}, v{vT}, 6, v{vWT}
v_and_b32 v{vT}, 3, v{vLANE}
v_lshl_add_u32 v{vWT}, v{vT}, 3, v{vWT}
v_add_u32 v{vWT}, s{S_T2}, v{vWT}""")
    cnt = {s: sum(1 for x in lds_tiles if x[0] == s) for s in range(16)}
    pairs = sorted([(s, s ^ 4) for s in range(16) if not s & 4], key=lambda p: cnt[p[0]] + cnt[p[1]])
    sorder = [s for p in pairs for s in p]
    hold = list(range(12, 124 - 7, 8))
    held = []
    def issue_slot(n):
        s = sorder[n]
        a(f"s_xor_b32 s{S_T3}, s{S_T5}, {s << 19:#x}")
        for mat in range(2):
            for i in range(4):
                a(f"s_add_u32 m0, s{S_T2}, {(n % 4) * 8192 + mat * 4096 + i * 1024}")
                a(f"s_add_u32 s{S_T4}, s{S_T3}, {i * 16 * 8192:#x}")
                w = S_W1 if mat else S_W0
                a(f"buffer_load_dwordx4 v{vD}, s[{w}:{w+3}], s{S_T4} offen lds")
    for n in range(4): issue_slot(n)
    lds_addr = {}
    for n in range(16):
        s = sorder[n]
        a(f"s_waitcnt vmcnt({8 * min(3, 15 - n)})")
        for t in range(4):
            if (s, t) in regmap:
                k, b = regmap[(s, t)]
            else:
                k, b = "v", hold.pop(0); held.append(((s, t), b))
            for v in range(4):
                off = (n % 4) * 8192 + (t // 2) * 4096 + (32 * (v // 2) + 2 * (v % 2)) * 64 + (t % 2) * 32
                a(f"ds_read_b64_tr_b16 {vr(b+2*v,2,k)}, v{vWT} offset:{off}")
            if t == 2: a("s_waitcnt lgkmcnt(4)")
        a("s_waitcnt lgkmcnt(0)")
        if n + 4 < 16:
            issue_slot(n + 4)
        else:
            for i in range(4):
                st, b = held.pop(0)
                off = (n % 4) * 8192 + i * 2048
                lds_addr[st] = off
                a(f"ds_write_b128 v{vBL}, {vr(b,4)} offset:{off}")
                a(f"ds_write_b128 v{vBL}, {vr(b+4,4)} offset:{off+1024}")
                hold.append(b)
            a("s_waitcnt lgkmcnt(0)")
    assert not held

    a(f"""s_lshl_b32 s{S_T0}, s{S_WAVE}, 12
v_add_u32 v{vGW}, s{S_T0}, v{vL16}""")
    for q in range(1, 4):
        a(f"v_xor_b32 v{vA1+q-1}, {q*4096:#x}, v{vGW}")
    idx_reg(a, vIDX, vLANE, vT)
    a(f"""v_lshrrev_b32 v{vT}, 5, v{vLANE}
v_lshlrev_b32 v{vQKW}, 8, v{vT}
v_and_b32 v{vT}, 15, v{vLANE}
v_lshl_add_u32 v{vQKW}, v{vT}, 4, v{vQKW}
v_bfe_u32 v{vT}, v{vLANE}, 4, 1
v_lshl_add_u32 v{vQKW}, v{vT}, 3, v{vQKW}
s_lshl_b32 s{S_T0}, s{S_WAVE}, 9
v_add_u32 v{vQKW}, s{S_T0}, v{vQKW}
v_lshrrev_b32 v{vT}, 2, v{vLANE}
v_lshlrev_b32 v{vQKR}, 4, v{vT}
v_and_b32 v{vT}, 1, v{vLANE}
v_lshl_add_u32 v{vQKR}, v{vT}, 3, v{vQKR}
s_lshr_b32 s{S_T0}, s{S_WAVE}, 1
s_lshl_b32 s{S_T0}, s{S_T0}, 10
s_and_b32 s{S_T1}, s{S_WAVE}, 1
s_lshl_b32 s{S_T1}, s{S_T1}, 7
s_add_u32 s{S_T0}, s{S_T0}, s{S_T1}
s_add_u32 s{S_WOFF}, s{S_T0}, {WS_OM:#x}
v_and_b32 v{vT}, 15, v{vLANE}
v_lshlrev_b32 v{vOXO}, 7, v{vT}
v_lshrrev_b32 v{vT}, 4, v{vLANE}
v_lshl_add_u32 v{vOXO}, v{vT}, 4, v{vOXO}
s_lshl_b32 s{S_T0}, s{S_HEAD}, 15
s_lshr_b32 s{S_T1}, s{S_WAVE}, 1
s_lshl_b32 s{S_T1}, s{S_T1}, 14
s_add_u32 s{S_T0}, s{S_T0}, s{S_T1}
s_and_b32 s{S_T1}, s{S_WAVE}, 1
s_lshl_b32 s{S_T1}, s{S_T1}, 6
s_add_u32 s{S_T0}, s{S_T0}, s{S_T1}
v_add_u32 v{vOXO}, s{S_T0}, v{vOXO}
s_lshl_b32 s{S_T0}, s{S_WAVE}, 9
v_add_u32 v{vVMO}, s{S_T0}, v{vL16}
v_mov_b32 v{vT}, {OOBV:#x}
v_cmp_gt_u32 vcc, 32, v{vLANE}
v_cndmask_b32 v{vVMO}, v{vT}, v{vVMO}, vcc
s_mov_b32 s{S_MK0}, -1
s_mov_b32 s{S_MK0+1}, 0""")
    for r in range(4):
        m = 0
        for l in range(64):
            if 4 * (l // 16) + r <= l % 16: m |= 1 << l
        a(f"s_mov_b32 s{S_MKC+2*r}, {m & 0xffffffff:#x}\ns_mov_b32 s{S_MKC+2*r+1}, {m >> 32:#x}")
    cbits = f32bits(128 ** -0.5 * LOG2E)
    a(f"s_mov_b32 s{S_C}, {cbits:#x}\ns_mov_b32 s{S_C+1}, {cbits:#x}")
    a(f"""s_mov_b32 s{S_STEP}, 0
s_lshl_b32 s{S_OFF_A}, s{S_TEAM}, 20
s_add_u32 s{S_OFF_A}, s{S_OFF_A}, {WS_MEMT:#x}
s_lshl_b32 s{S_OFF_B}, s{S_HEAD}, 13
s_lshl_b32 s{S_OFF_C}, s{S_HEAD}, 11
s_mov_b32 s{S_OFF_D}, {WS_OX:#x}""")

    def prefetch_x(vdst):
        if "wait_x" in hooks: hooks["wait_x"](vT)
        a(f"s_add_u32 s{S_T0}, s{S_OFF_B}, {WS_KX:#x}")
        a(f"s_add_u32 s{S_T1}, s{S_T0}, 4096")
        out = []
        for f in range(8):
            out.append(f"buffer_load_dwordx4 {vr(KX+4*f,4)}, v{vL16}, {WS}, s{S_T0 if f < 4 else S_T1} offen offset:{(f%4)*1024} sc1")
        a(f"""s_lshl_b32 s{S_T2}, s{S_WAVE}, 11
s_add_u32 s{S_T3}, s{S_OFF_B}, s{S_T2}
s_add_u32 s{S_T5}, s{S_T3}, {WS_VX:#x}
s_add_u32 s{S_T3}, s{S_T3}, {WS_QX:#x}
s_add_u32 m0, s{S_T2}, {L_QX:#x}""")
        for f in range(2):
            out.append(f"buffer_load_dwordx4 {vr(vdst+4*f,4)}, v{vL16}, {WS}, s{S_T5} offen offset:{f*1024} sc1")
        for f in range(2):
            out.append(f"buffer_load_dwordx4 v{vL16}, {WS}, s{S_T3} offen offset:{f*1024} sc1 lds")
        return out

    def bload_instrs(i):
        b = BR + 8 * (i % NB)
        off = lds_addr[lds_tiles[i]]
        return [f"ds_read_b128 {vr(b,4)}, v{vBL} offset:{off}", f"ds_read_b128 {vr(b+4,4)}, v{vBL} offset:{off+1024}"]

    def pkfma(r, nm):
        return f"v_pk_fma_f32 {vr(r,2)}, {vr(r,2)}, s[{S_C}:{S_C+1}], {vr(nm,2)} op_sel_hi:[1,1,0] neg_lo:[0,0,1] neg_hi:[0,0,1]"

    def pack_instrs(mat):
        A0, A1 = ACC + 8 * mat, ACC + 8 * mat + 4
        o = [f"v_permlane32_swap_b32 v{A0+r}, v{A1+r}" for r in range(4)]
        o += [f"v_add_f32 v{A0+r}, v{A0+r}, v{A1+r}" for r in range(4)]
        o += [f"v_cvt_pk_bf16_f32 v{A1}, v{A0}, v{A0+1}", f"v_cvt_pk_bf16_f32 v{A1+1}, v{A0+2}, v{A0+3}"]
        return o, f"ds_write_b64 v{vQKW}, {vr(A1,2)} offset:{L_QK + mat*2048}"

    def tile_regs(t):
        return T0 if t == 0 else T12 + 4 * (t - 1)

    for x in prefetch_x(VX): a(x)
    startup_barrier(a, P)
    a.set_filler(vOXO)
    a.label("S_loop")
    stamp(a, 0, cfg)
    for i in range(NB):
        for x in bload_instrs(i): a(x)
    for i in range(16): a(f"v_mov_b32 v{ACC+i}, 0")
    a(f"s_add_u32 s{S_T5}, s{S_OFF_C}, {WS_VM:#x}")
    a(f"s_add_u32 s{S_T4}, s{S_OFF_C}, s{S_WOFF}")
    a("s_waitcnt lgkmcnt(0)")

    L = Lds(a)
    aslot = {s: G + 4 * s for s in range(4)}
    pending = []
    free_slots = list(range(NA))
    first_use, last_use = {}, {}
    for i, (s, t) in enumerate(order):
        last_use[s] = i; first_use.setdefault(s, i)
    st = {"nexta": 4, "nextb": NB, "li": 0, "a_ok": False}
    def aload():
        s = stream[st["nexta"] - 4]; st["nexta"] += 1
        aslot[s] = AR + 4 * free_slots.pop(0)
        pending.append((("A", s), f"ds_read_b128 {vr(aslot[s],4)}, v{vA1 + s // 4 - 1} offset:{L_MEM + (s % 4) * 1024}"))
    def deadline(tag):
        return first_use[tag[1]] if tag[0] == "A" else lpos[tag[1]]
    def flush(n):
        pending.sort(key=lambda p: deadline(p[0]))
        for _ in range(min(n, len(pending))):
            tag, ins = pending.pop(0)
            L.op(tag, ins)
    def mfma(i):
        s, t = order[i]
        needs = [("A", s)]
        isl = (s, t) in lds_addr
        if isl: needs.append(("B", st["li"]))
        while any(tg in needs for tg, _ in pending): flush(1)
        L.wait(*needs)
        B = vr(BR + 8 * (st["li"] % NB), 8) if isl else vr(regmap[(s, t)][1], 8, regmap[(s, t)][0])
        a(f"v_smfmac_f32_16x16x64_bf16 {vr(ACC+4*t,4)}, {vr(aslot[s],4)}, {B}, v{vIDX}")
        if isl:
            st["li"] += 1
            if st["nextb"] < 16:
                for x in bload_instrs(st["nextb"]): pending.append((("B", st["nextb"]), x))
                st["nextb"] += 1
        if last_use[s] == i and s >= 4:
            free_slots.append((aslot[s] - AR) // 4)
            if st["nexta"] < 16: aload()

    loads = [f"buffer_load_dwordx4 {vr(G+4*i,4)}, v{vGW}, {WS}, s{S_OFF_A} offen offset:{1024*i} sc1" for i in range(4)]
    o = cfg.get("s_mem", {})
    sp = SPoll(a, loads, [G + 4 * i for i in range(4)], vT, cap=o.get("cap", 3), sleep=o.get("sleep", 3))
    def gw(f):
        L.op(("GW", f), f"ds_write_b128 v{vGW}, {vr(G+4*f,4)} offset:{L_MEM + 1024*f}")
    sp.first()
    if cfg.get("presync"): a("s_waitcnt vmcnt(0)\ns_barrier")
    stamp(a, 1, cfg)
    mfma(0); gw(0); mfma(1); flush(1); mfma(2); sp.pre(1); mfma(3); sp.br(1)
    mfma(4); gw(1); mfma(5); flush(1); mfma(6); sp.pre(2); mfma(7); sp.br(2)
    mfma(8)
    L.wait(("GW", 1))
    a("s_barrier")
    stamp(a, 6, cfg)
    for _ in range(NA): aload()
    flush(2)
    sp.pre(3)
    mfma(9); flush(1); sp.br(3)
    FIRST = 10
    side = {}
    def at(i, fn): side.setdefault(i, []).append(fn)
    qv, qw = pack_instrs(0)
    p0 = q_end + 4
    for k, ins in enumerate(qv): at(p0 + (k // 2 if k < 4 else 2 + (k - 4) // 3), lambda ins=ins: a(ins))
    at(p0 + 4, lambda: L.op("QW", qw))
    qreads = [(("QF", ks), f"ds_read_b64_tr_b16 {vr(QF+4*ks+2*u,2)}, v{vQKR} offset:{L_QK + (32*ks+16*u)*16}") for ks in range(4) for u in range(2)]
    def q_barrier():
        L.wait("QW"); a("s_waitcnt vmcnt(1)\ns_barrier")
    post_om = hooks.get("post_om")
    at(63, q_barrier)
    at(cfg.get("vm_at", 44), lambda: a(f"buffer_load_dwordx4 {vr(VM,4)}, v{vVMO}, {WS}, s{S_T5} offen sc1"))
    at(12, lambda: gw(2))
    at(15, lambda: gw(3))
    def bar2():
        L.wait(("GW", 3)); a("s_barrier")
    bar2_at = 19
    for i in range(FIRST, 64):
        mfma(i)
        if i == bar2_at: bar2()
        flush(1)
        for fn in side.get(i, []): fn()
    stamp(a, 2, cfg)
    kv, kw = pack_instrs(1)
    xs = []
    for ks in range(4):
        for t in (1, 2):
            C = "0" if ks == 0 else vr(tile_regs(t), 4)
            xs.append((ks, f"v_mfma_f32_16x16x32_bf16 {vr(tile_regs(t),4)}, {vr(KX+16*(t-1)+4*ks,4)}, {vr(QF+4*ks,4)}, {C}"))
    def xsm():
        ks, ins = xs.pop(0); L.wait(("QF", ks)); a(ins)
    for k in range(4):
        L.op(*qreads[2*k]); L.op(*qreads[2*k+1])
        if k < 3: a.fill(1)
    for ins in kv: a(ins)
    L.op("KW", kw)
    for _ in range(4): xsm()
    L.wait("KW"); a("s_barrier")
    for ks in range(4):
        for u in range(2):
            L.op(("KM", ks), f"ds_read_b64_tr_b16 {vr(KMF+4*ks+2*u,2)}, v{vQKR} offset:{L_QK + 2048 + (32*ks+16*u)*16}")
        xsm()
    assert not xs
    stamp(a, 7, cfg)
    a("s_waitcnt vmcnt(0)")
    mx, m2, nm, lx, al = MI, MI + 1, MI + 2, MI + 4, MI + 5
    X = T12
    vp = SPoll(a, [f"buffer_load_dwordx4 {vr(VM,4)}, v{vVMO}, {WS}, s{S_T5} offen sc1"], [VM], vT, cap=0)
    def smm(ks):
        L.wait(("KM", ks))
        C = "0" if ks == 0 else vr(T0, 4)
        a(f"v_mfma_f32_16x16x32_bf16 {vr(T0,4)}, {vr(KMF+4*ks,4)}, {vr(QF+4*ks,4)}, {C}")
    smm(0)
    vp.pre(0)
    smm(1)
    smm(2)
    vp.br(0)
    a(f"s_cmp_eq_u32 s{S_MODE}, 1")
    a(f"v_max3_f32 v{mx}, v{X}, v{X+1}, v{X+2}")
    smm(3)
    a(f"""v_max3_f32 v{m2}, v{X+4}, v{X+5}, v{X+6}
v_max3_f32 v{mx}, v{mx}, v{X+3}, v{X+7}
v_max_f32 v{mx}, v{mx}, v{m2}
v_mov_b32 v{m2}, v{mx}
v_permlane32_swap_b32 v{mx}, v{m2}""")
    stamp(a, 3, cfg)
    a(f"v_max3_f32 v{al}, v{T0}, v{T0+1}, v{T0+2}")
    a(f"v_max3_f32 v{mx}, v{mx}, v{m2}, v{T0+3}")
    a(f"v_max_f32 v{m2}, v{mx}, v{al}")
    a(f"v_max_f32 v{al}, v{mx}, v{al}")
    a(f"v_permlane16_swap_b32 v{m2}, v{al}")
    a(f"v_max_f32 v{m2}, v{m2}, v{al}")
    a(f"v_mul_f32 v{nm}, s{S_C}, v{m2}")
    for i in range(0, 8, 2): a(pkfma(X + i, nm))
    a(pkfma(T0, nm)); a(pkfma(T0 + 2, nm))
    for i in range(8): a(f"v_exp_f32 v{X+i}, v{X+i}")
    a(f"v_exp_f32 v{T0}, v{T0}")
    for i in range(4):
        a(f"v_cvt_pk_bf16_f32 v{PX+i}, v{X+2*i}, v{X+2*i+1}")
    a(f"v_pk_add_f32 {vr(X,2)}, {vr(X,2)}, {vr(X+2,2)}")
    a(f"v_pk_add_f32 {vr(X+4,2)}, {vr(X+4,2)}, {vr(X+6,2)}")
    a(f"v_mfma_f32_16x16x32_bf16 {vr(OXR,4)}, {vr(VX,4)}, {vr(PX,4)}, 0")
    a(f"v_exp_f32 v{T0+1}, v{T0+1}")
    a(f"v_mfma_f32_16x16x32_bf16 {vr(OXR+4,4)}, {vr(VX+4,4)}, {vr(PX,4)}, 0")
    a(f"v_exp_f32 v{T0+2}, v{T0+2}\nv_exp_f32 v{T0+3}, v{T0+3}")
    a(f"v_cvt_pk_bf16_f32 v{PM}, v{T0}, v{T0+1}")
    a(f"v_cvt_pk_bf16_f32 v{PM+1}, v{T0+2}, v{T0+3}")
    a(f"v_add_f32 v{lx}, v{X}, v{X+1}")
    a(f"v_add_f32 v{X+4}, v{X+4}, v{X+5}")
    a(f"v_add_f32 v{lx}, v{lx}, v{X+4}")
    a(f"v_mfma_f32_16x16x16_bf16 {vr(OXR,4)}, {vr(VM,2)}, {vr(PM,2)}, {vr(OXR,4)}")
    a(f"v_add_f32 v{T0}, v{T0}, v{T0+1}")
    a(f"v_add_f32 v{T0+2}, v{T0+2}, v{T0+3}")
    a(f"v_mfma_f32_16x16x16_bf16 {vr(OXR+4,4)}, {vr(VM+2,2)}, {vr(PM,2)}, {vr(OXR+4,4)}")
    a(f"v_add_f32 v{T0}, v{T0}, v{T0+2}")
    a(f"v_fma_f32 v{mx}, v{T0}, 0.5, v{lx}")
    a(f"v_fma_f32 v{m2}, v{T0}, 0.5, v{lx}")
    a(f"""v_permlane16_swap_b32 v{mx}, v{m2}
v_add_f32 v{al}, v{mx}, v{m2}
v_add_f32 v{m2}, v{mx}, v{m2}
v_permlane32_swap_b32 v{al}, v{m2}
v_add_f32 v{mx}, v{al}, v{m2}""")
    a(f"v_rcp_f32 v{nm}, v{mx}")
    a("s_mov_b32 exec_lo, 0x00ff00ff\ns_mov_b32 exec_hi, 0x00ff00ff")
    for i in range(0, 8, 2):
        a(f"v_pk_mul_f32 {vr(OXR+i,2)}, {vr(OXR+i,2)}, {vr(nm,2)} op_sel_hi:[1,0]")
    for i in range(4):
        a(f"v_cvt_pk_bf16_f32 v{PX+i}, v{OXR+2*i}, v{OXR+2*i+1}")
    store_mode2(a, f"buffer_store_dwordx4 {vr(PX,4)}, v{vL16}, {WS}, s{S_T4} offen")
    a("s_mov_b64 exec, -1")
    stamp(a, 4, cfg)
    if post_om: post_om(MI)

    def treg(tt, t):
        if tt == 1: return tile_regs(t)
        return OXR + (4 if t == 0 else 0)
    for tt in range(2):
        tiles = [1, 0] if tt == 0 else [1, 2, 0]
        for ks in range(4):
            a(f"ds_read_b128 {vr(QF+4*ks,4)}, v{vL16} offset:{L_QX + tt*4096 + ks*1024}")
        a(f"v_mov_b32 v{vT}, 0xff800000")
        for r in range(4):
            a(f"v_cndmask_b32 v{treg(tt,0)+r}, v{vT}, 0, s[{S_MK0}:{S_MK0+1}]")
            a(f"v_cndmask_b32 v{treg(tt,1+tt)+r}, v{vT}, 0, s[{S_MKC+2*r}:{S_MKC+2*r+1}]")
        for ks in range(4):
            a(f"s_waitcnt lgkmcnt({3-ks})")
            for t in tiles:
                A = KMF + 4 * ks if t == 0 else KX + 16 * (t - 1) + 4 * ks
                C = "0" if (ks == 0 and tt == 1 and t == 1) else vr(treg(tt, t), 4)
                a(f"v_mfma_f32_16x16x32_bf16 {vr(treg(tt,t),4)}, {vr(A,4)}, {vr(QF+4*ks,4)}, {C}")
    VXN = KMF
    a(f"""s_add_u32 s{S_OFF_B}, s{S_OFF_B}, {32*8192:#x}
s_cmp_eq_u32 s{S_STEP}, {NSEG-1}
s_cselect_b32 s{S_OFF_B}, {OOBV:#x}, s{S_OFF_B}
s_barrier""")
    pf = prefetch_x(VX)
    vxl = pf[8:10]; pf = pf[:8] + pf[10:]
    O2 = QF
    for tt in range(2):
        tiles = [1, 0] if tt == 0 else [1, 2, 0]
        regs = [treg(tt, t) + r for t in tiles for r in range(4)]
        def pfi():
            if pf: a(pf.pop(0))
        a(f"v_max3_f32 v{mx}, v{regs[0]}, v{regs[1]}, v{regs[2]}")
        rest = regs[3:]
        while rest:
            if len(rest) >= 2:
                a(f"v_max3_f32 v{mx}, v{mx}, v{rest[0]}, v{rest[1]}"); rest = rest[2:]
            else:
                a(f"v_max_f32 v{mx}, v{mx}, v{rest[0]}"); rest = rest[1:]
        pfi()
        xlane_reduce(a, "v_max_f32", mx, m2)
        pfi()
        a(f"v_mul_f32 v{nm}, s{S_C}, v{mx}")
        for i in range(0, len(regs), 2): a(pkfma(regs[i], nm))
        for k, r in enumerate(regs):
            a(f"v_exp_f32 v{r}, v{r}")
            if k % 2 == 1: pfi()
        for i in range(4):
            if tt == 0 and i >= 2: a(f"v_mov_b32 v{PX+i}, 0")
            else: a(f"v_cvt_pk_bf16_f32 v{PX+i}, v{regs[2*i]}, v{regs[2*i+1]}")
        a(f"v_cvt_pk_bf16_f32 v{PM}, v{regs[-4]}, v{regs[-3]}")
        a(f"v_cvt_pk_bf16_f32 v{PM+1}, v{regs[-2]}, v{regs[-1]}")
        pfi()
        a(f"v_mfma_f32_16x16x32_bf16 {vr(O2,4)}, {vr(VX,4)}, {vr(PX,4)}, 0")
        a(f"v_mfma_f32_16x16x32_bf16 {vr(O2+4,4)}, {vr(VX+4,4)}, {vr(PX,4)}, 0")
        a(f"v_mfma_f32_16x16x16_bf16 {vr(O2+8,4)}, {vr(VM,2)}, {vr(PM,2)}, 0")
        a(f"v_mfma_f32_16x16x16_bf16 {vr(O2+12,4)}, {vr(VM+2,2)}, {vr(PM,2)}, 0")
        for i in range(2, len(regs), 2):
            a(f"v_pk_add_f32 {vr(regs[0],2)}, {vr(regs[0],2)}, {vr(regs[i],2)}")
        a(f"v_add_f32 v{mx}, v{regs[0]}, v{regs[1]}")
        pfi()
        if tt == 1:
            for x in vxl: a(x)
        xlane_reduce(a, "v_add_f32", mx, m2)
        a(f"v_rcp_f32 v{nm}, v{mx}")
        for i in range(0, 8, 2):
            a(f"v_pk_add_f32 {vr(O2+i,2)}, {vr(O2+i,2)}, {vr(O2+8+i,2)}")
        for i in range(0, 8, 2):
            a(f"v_pk_mul_f32 {vr(O2+i,2)}, {vr(O2+i,2)}, {vr(nm,2)} op_sel_hi:[1,0]")
        D = OMR + 4 * tt
        for i in range(4):
            a(f"v_cvt_pk_bf16_f32 v{D+i}, v{O2+2*i}, v{O2+2*i+1}")
        if tt == 0:
            a(f"""s_lshr_b32 s{S_T2}, s{S_STEP}, 2
s_lshl_b32 s{S_T2}, s{S_T2}, 20
s_and_b32 s{S_OFF_D}, s{S_STEP}, 3
s_lshl_b32 s{S_OFF_D}, s{S_OFF_D}, 12
s_add_u32 s{S_OFF_D}, s{S_OFF_D}, s{S_T2}
s_add_u32 s{S_OFF_D}, s{S_OFF_D}, {WS_OX:#x}""")
        a(f"buffer_store_dwordx4 {vr(D,4)}, v{vOXO}, {WS}, s{S_OFF_D} offen offset:{tt*2048} sc1")
    assert not pf
    stamp(a, 5, cfg)
    if cfg.get("stamps"):
        a(f"v_lshrrev_b32 v{MI+5}, 2, v{vL16}")
    stamp_flush(a, cfg)
    a(f"""s_add_u32 s{S_STEP}, s{S_STEP}, 1
s_cmp_eq_u32 s{S_STEP}, {NSEG}
s_cbranch_scc1 {hooks.get("exit", "L_done")}
s_add_u32 s{S_OFF_A}, s{S_OFF_A}, 0x4000
s_bitset0_b32 s{S_OFF_A}, 17
s_add_u32 s{S_OFF_C}, s{S_OFF_C}, {32*2048:#x}
s_bitset0_b32 s{S_OFF_C}, 19
s_branch S_loop""")
    a.flush_deferred()
    a.set_filler(None)


def v_cu(a, cfg, hooks=None):
    hooks = hooks or {}
    vLANE, vGOFF, vIDX, vL16, vT, vT2, vVMO, vOMO, vRW, vRR, vPO, vMO, vL4, vD, vI16 = range(0, 15)
    AR = 16
    G = 80
    ACC = 96
    OF = 112
    RD = 128
    RP = 144
    MI = 152
    SENT = 160
    RRS = 164
    vTCH = 168
    cfg = dict(cfg); cfg["stamp_reg"] = MI + 5; cfg["lane4_reg"] = vL4
    a(f"""s_lshl_b32 s{S_HEAD}, s{S_TEAM}, 3
s_lshr_b32 s{S_T0}, s{S_J}, 1
s_add_u32 s{S_HEAD}, s{S_HEAD}, s{S_T0}""")
    srd(a, S_W0, 32, 1024 * 8192)
    srd(a, S_W1, 40, 4096 * 2048)
    srd(a, S_W2, 8, 8 * 2048)
    a(f"v_and_b32 v{vLANE}, 63, v0")
    a(f"v_lshlrev_b32 v{vL16}, 4, v{vLANE}")
    a(f"v_lshlrev_b32 v{vL4}, 2, v{vLANE}")
    for i in range(4): a(f"v_mov_b32 v{SENT+i}, -1")
    a(f"""s_lshl_b32 s{S_OFF_A}, s{S_TEAM}, 20
s_add_u32 s{S_OFF_A}, s{S_OFF_A}, {WS_MEMT:#x}
s_lshl_b32 s{S_T0}, s{S_J}, 10
s_add_u32 s{S_OFF_E}, s{S_OFF_A}, s{S_T0}
s_lshl_b32 s{S_OFF_C}, s{S_HEAD}, 11
s_and_b32 s{S_T1}, s{S_J}, 1
s_lshl_b32 s{S_T1}, s{S_T1}, 10
s_add_u32 s{S_OFF_B}, s{S_OFF_C}, s{S_T1}
s_and_b32 s{S_T0}, s{S_J}, 3
s_lshl_b32 s{S_OFF_D}, s{S_T0}, 11
s_lshr_b32 s{S_T0}, s{S_J}, 2
s_lshl_b32 s{S_T0}, s{S_T0}, 14
s_add_u32 s{S_OFF_D}, s{S_OFF_D}, s{S_T0}
s_add_u32 s{S_OFF_D}, s{S_OFF_D}, {WS_PART:#x}
s_lshl_b32 s{S_T0}, s{S_TEAM}, 16
s_add_u32 s{S_OFF_F}, s{S_OFF_D}, s{S_T0}""")

    if not cfg.get("noprobe"):
        skip = a.uid("pr")
        a(f"""s_lshl_b32 s{S_T0}, s{S_TEAM}, 4
s_add_u32 s{S_T0}, s{S_T0}, s{S_J}
s_cmp_ge_u32 s{S_T0}, 8
s_cbranch_scc1 {skip}
s_cmp_lg_u32 s{S_WAVE}, 3
s_cbranch_scc1 {skip}
s_add_u32 s{S_T1}, s{S_OFF_F}, {7 << 18:#x}
s_add_u32 s{S_T2}, s{S_T1}, 0x2000
buffer_store_dwordx4 {vr(SENT,4)}, v{vL16}, {WS}, s{S_T1} offen sc1
buffer_store_dwordx4 {vr(SENT,4)}, v{vL16}, {WS}, s{S_T2} offen sc1
v_mov_b32 v{vT2}, 0
s_mov_b32 s60, -1
s_mov_b32 s61, -1
s_waitcnt vmcnt(0)""")
        for smp in range(4):
            for c in range(2):
                a(f"""s_memtime s[62:63]
s_waitcnt lgkmcnt(0)
buffer_load_dword v{vT}, v{vT2}, {WS}, s{S_T1+c} offen offset:{smp*256} sc1
s_waitcnt vmcnt(0)
s_memtime s[64:65]
s_waitcnt lgkmcnt(0)
s_sub_u32 s64, s64, s62
s_min_u32 s{60+c}, s{60+c}, s64""")
        a(f"""s_cmp_lt_u32 s61, s60
s_cselect_b32 s{S_T1}, 1, 0
s_lshl_b32 s{S_T1}, s{S_T1}, s{S_J}
v_mov_b32 v{vT}, s{S_T1}
s_mov_b64 exec, 1
buffer_atomic_or v{vT}, v{vT2}, {DBG}, 0 offen offset:12 sc1
s_mov_b64 exec, -1
{skip}:""")

    def stage(srdreg, pitch_log2, sbase):
        a(f"""v_lshrrev_b32 v{vT}, 3, v{vLANE}
v_lshlrev_b32 v{vD}, {pitch_log2}, v{vT}
v_and_b32 v{vT}, 7, v{vLANE}
v_lshl_add_u32 v{vD}, v{vT}, 4, v{vD}
s_lshl_b32 s{S_T1}, s{S_WAVE}, {8 + pitch_log2}
s_add_u32 s{S_T1}, s{S_T1}, s{sbase}
s_lshl_b32 s{S_T2}, s{S_WAVE}, 15""")
        for i in range(32):
            a(f"s_add_u32 m0, s{S_T2}, {L_W + i*1024}")
            a(f"s_add_u32 s{S_T4}, s{S_T1}, {(i*8) << pitch_log2:#x}")
            a(f"buffer_load_dwordx4 v{vD}, s[{srdreg}:{srdreg+3}], s{S_T4} offen lds")

    a(f"""s_lshl_b32 s{S_T0}, s{S_HEAD}, 8
s_and_b32 s{S_T1}, s{S_J}, 1
s_lshl_b32 s{S_T1}, s{S_T1}, 7
s_add_u32 s{S_T0}, s{S_T0}, s{S_T1}""")
    stage(S_W0, 13, S_T0)
    a(f"""s_lshl_b32 s{S_T0}, s{S_WAVE}, 14
s_add_u32 s{S_T0}, s{S_T0}, s{S_OFF_E}
buffer_store_dwordx4 {vr(SENT,4)}, v{vL16}, {WS}, s{S_T0} offen sc1
s_lshl_b32 s{S_T0}, s{S_WAVE}, 16
s_add_u32 s{S_T0}, s{S_T0}, s{S_OFF_B}
s_add_u32 s{S_T1}, s{S_T0}, {WS_VM:#x}
buffer_store_dwordx4 {vr(SENT,4)}, v{vL16}, {WS}, s{S_T1} offen sc1
s_add_u32 s{S_T1}, s{S_T0}, {WS_OM:#x}
buffer_store_dwordx4 {vr(SENT,4)}, v{vL16}, {WS}, s{S_T1} offen sc1
s_lshl_b32 s{S_T0}, s{S_WAVE}, 18
s_add_u32 s{S_T0}, s{S_T0}, s{S_OFF_F}
buffer_store_dwordx4 {vr(SENT,4)}, v{vL16}, {WS}, s{S_T0} offen sc1
buffer_store_dwordx4 {vr(SENT,4)}, v{vL16}, {WS}, s{S_T0} offen offset:1024 sc1
s_add_u32 s{S_T0}, s{S_T0}, 0x2000
buffer_store_dwordx4 {vr(SENT,4)}, v{vL16}, {WS}, s{S_T0} offen sc1
buffer_store_dwordx4 {vr(SENT,4)}, v{vL16}, {WS}, s{S_T0} offen offset:1024 sc1""")

    vWT = MI
    a(f"""v_bfe_u32 v{vT}, v{vLANE}, 5, 1
v_lshlrev_b32 v{vWT}, 11, v{vT}
v_bfe_u32 v{vT}, v{vLANE}, 3, 1
v_lshl_add_u32 v{vWT}, v{vT}, 10, v{vWT}
v_bfe_u32 v{vT}, v{vLANE}, 4, 1
v_lshl_add_u32 v{vWT}, v{vT}, 9, v{vWT}
v_bfe_u32 v{vT}, v{vLANE}, 2, 1
v_lshl_add_u32 v{vWT}, v{vT}, 7, v{vWT}
v_and_b32 v{vT}, 3, v{vLANE}
v_lshl_add_u32 v{vWT}, v{vT}, 3, v{vWT}
s_lshl_b32 s{S_T0}, s{S_WAVE}, 5
s_add_u32 s{S_T0}, s{S_T0}, {L_W:#x}
v_add_u32 v{vWT}, s{S_T0}, v{vWT}
v_add_u32 v{vWT+1}, 0x10000, v{vWT}
s_waitcnt vmcnt(7)
s_barrier""")
    for ks in range(16):
        for v in range(4):
            off = (ks % 8) * 8192 + (32 * (v // 2) + 2 * (v % 2)) * 128
            a(f"ds_read_b64_tr_b16 {ar(ks*8+2*v,2)}, v{vWT + ks // 8} offset:{off}")
        a("s_waitcnt lgkmcnt(8)")
    a("s_waitcnt lgkmcnt(0)\ns_barrier")
    a(f"""s_lshl_b32 s{S_T0}, s{S_TEAM}, 21
s_lshl_b32 s{S_T1}, s{S_J}, 7
s_add_u32 s{S_T0}, s{S_T0}, s{S_T1}""")
    stage(S_W1, 11, S_T0)
    a(f"""v_bfe_u32 v{vT}, v{vLANE}, 3, 1
v_lshlrev_b32 v{vWT}, 12, v{vT}
v_bfe_u32 v{vT}, v{vLANE}, 4, 1
v_lshl_add_u32 v{vWT}, v{vT}, 11, v{vWT}
v_bfe_u32 v{vT}, v{vLANE}, 5, 1
v_lshl_add_u32 v{vWT}, v{vT}, 9, v{vWT}
v_bfe_u32 v{vT}, v{vLANE}, 2, 1
v_lshl_add_u32 v{vWT}, v{vT}, 7, v{vWT}
v_and_b32 v{vT}, 3, v{vLANE}
v_lshl_add_u32 v{vWT}, v{vT}, 3, v{vWT}
s_lshl_b32 s{S_T0}, s{S_WAVE}, 15
s_add_u32 s{S_T0}, s{S_T0}, {L_W:#x}
v_add_u32 v{vWT}, s{S_T0}, v{vWT}""")
    a(f"""s_lshl_b32 s{S_T0}, s{S_WAVE}, 12
v_add_u32 v{vGOFF}, s{S_T0}, v{vL16}""")
    idx_reg(a, vIDX, vLANE, vT)
    a(f"""v_and_b32 v{vT}, 31, v{vLANE}
v_lshlrev_b32 v{vVMO}, 4, v{vT}
v_lshrrev_b32 v{vT}, 5, v{vLANE}
v_lshl_add_u32 v{vVMO}, v{vT}, 2, v{vVMO}
s_lshr_b32 s{S_T0}, s{S_WAVE}, 1
s_lshl_b32 s{S_T0}, s{S_T0}, 9
s_and_b32 s{S_T1}, s{S_WAVE}, 1
s_lshl_b32 s{S_T1}, s{S_T1}, 3
s_add_u32 s{S_T0}, s{S_T0}, s{S_T1}
v_add_u32 v{vVMO}, s{S_T0}, v{vVMO}
s_lshl_b32 s{S_T0}, s{S_TEAM}, 14
v_add_u32 v{vOMO}, s{S_T0}, v{vGOFF}""")
    a(f"""v_lshrrev_b32 v{vT}, 5, v{vLANE}
v_lshlrev_b32 v{vRW}, 9, v{vT}
v_and_b32 v{vT}, 15, v{vLANE}
v_lshl_add_u32 v{vRW}, v{vT}, 5, v{vRW}
v_bfe_u32 v{vT}, v{vLANE}, 4, 1
v_lshl_add_u32 v{vRW}, v{vT}, 4, v{vRW}
s_lshl_b32 s{S_T0}, s{S_WAVE}, 11
s_add_u32 s{S_T0}, s{S_T0}, {L_RED:#x}
v_add_u32 v{vRW}, s{S_T0}, v{vRW}""")
    a(f"""v_bfe_u32 v{vT}, v{vLANE}, 2, 3
v_lshlrev_b32 v{vRR}, 2, v{vT}
v_lshrrev_b32 v{vT}, 5, v{vLANE}
v_lshl_add_u32 v{vRR}, v{vT}, 8, v{vRR}
v_and_b32 v{vT}, 3, v{vLANE}
v_lshl_add_u32 v{vRR}, v{vT}, 6, v{vRR}
s_lshl_b32 s{S_T0}, s{S_WAVE}, 9
s_add_u32 s{S_T0}, s{S_T0}, {L_RED:#x}
v_add_u32 v{vRR}, s{S_T0}, v{vRR}""")
    for src in range(4):
        a(f"v_add_u32 v{RRS+src}, {src*2048}, v{vRR}")
    a(f"""v_and_b32 v{vT}, 31, v{vLANE}
v_lshlrev_b32 v{vTCH}, 7, v{vT}
s_and_b32 s{S_T0}, s{S_J}, 1
s_lshl_b32 s{S_T0}, s{S_T0}, 12
s_lshl_b32 s{S_T1}, s{S_HEAD}, 13
s_add_u32 s{S_T0}, s{S_T0}, s{S_T1}
s_min_u32 s{S_T1}, s{S_WAVE}, 2
s_lshl_b32 s{S_T1}, s{S_T1}, 24
s_add_u32 s{S_T0}, s{S_T0}, s{S_T1}
v_add_u32 v{vTCH}, s{S_T0}, v{vTCH}""")
    a(f"""v_lshlrev_b32 v{vPO}, 3, v{vLANE}
s_lshl_b32 s{S_T0}, s{S_WAVE}, 9
v_add_u32 v{vPO}, s{S_T0}, v{vPO}
s_lshl_b32 s{S_T0}, s{S_WAVE}, 8
v_add_u32 v{vMO}, s{S_T0}, v{vL4}
v_add_u32 v{vI16}, s{S_T0}, v{vL16}""")
    M0R = RP
    a(f"""v_bfe_u32 v{vT}, v{vLANE}, 2, 3
v_lshlrev_b32 v{vT2}, 11, v{vT}
v_lshrrev_b32 v{vT}, 5, v{vLANE}
v_lshl_add_u32 v{vT2}, v{vT}, 4, v{vT2}
v_and_b32 v{vT}, 3, v{vLANE}
v_lshl_add_u32 v{vT2}, v{vT}, 2, v{vT2}
s_lshl_b32 s{S_T0}, s{S_J}, 7
s_lshl_b32 s{S_T1}, s{S_WAVE}, 5
s_add_u32 s{S_T0}, s{S_T0}, s{S_T1}
buffer_load_dword v{M0R}, v{vT2}, s[{S_W2}:{S_W2+3}], s{S_T0} offen
s_waitcnt vmcnt(0)""")
    for f in range(4):
        for ct in range(4):
            for v in range(4):
                off = f * 8192 + (8 * (v // 2) + 2 * (v % 2)) * 128 + ct * 32
                a(f"ds_read_b64_tr_b16 {ar(128+(f*4+ct)*8+2*v,2)}, v{vWT} offset:{off}")
            a("s_waitcnt lgkmcnt(8)")
    if "v_pre" in hooks: hooks["v_pre"]()
    startup_barrier(a, MI + 2)
    store_mode(a, f"buffer_store_dword v{M0R}, v{vMO}, {WS}, s{S_OFF_E} offen")
    a(f"s_mov_b32 s{S_STEP}, 0")

    a(f"""s_bcnt1_i32_b32 s{S_T0}, s{S_NEAR}
s_cmp_ge_u32 s{S_T0}, 4
s_cselect_b32 s{S_T0}, 0x2000, 0
s_add_u32 s{S_OFF_F}, s{S_OFF_F}, s{S_T0}""")

    a.set_filler(vD)
    a.label("V_loop")
    stamp(a, 0, cfg)
    for i in range(4): a(f"v_mov_b32 v{ACC+i}, 0")
    loads = [(f"buffer_load_dwordx4 {vr(G+4*i,4)}, v{vGOFF}, {WS}, s{S_OFF_A} offen offset:{1024*i} sc1",
              list(range(G + 4 * i, G + 4 * i + 4))) for i in range(4)]
    o = cfg.get("v_mem", {})
    poll(a, loads, vT, lambda i: a(f"ds_write_b128 v{vGOFF}, {vr(G+4*i,4)} offset:{L_MEM + 1024*i}"),
         staged=True, cap=o.get("cap", 0), sleep=o.get("sleep", 0), pre_sleep=o.get("pre", 0))
    a("s_waitcnt lgkmcnt(0)\ns_barrier")
    stamp(a, 1, cfg)
    for ks in range(16):
        a(f"ds_read_b128 {vr(AR+4*ks,4)}, v{vL16} offset:{L_MEM + ks*1024}")
        if ks >= 8:
            a("s_waitcnt lgkmcnt(8)")
            a(f"v_smfmac_f32_16x16x64_bf16 {vr(ACC,4)}, {vr(AR+4*(ks-8),4)}, {ar((ks-8)*8,8)}, v{vIDX}")
    for k2 in range(8, 16):
        a(f"s_waitcnt lgkmcnt({15-k2})")
        a(f"v_smfmac_f32_16x16x64_bf16 {vr(ACC,4)}, {vr(AR+4*k2,4)}, {ar(k2*8,8)}, v{vIDX}")
    a(f"""v_permlane32_swap_b32 v{ACC}, v{ACC+2}
v_permlane32_swap_b32 v{ACC+1}, v{ACC+3}
v_pk_add_f32 {vr(ACC,2)}, {vr(ACC,2)}, {vr(ACC+2,2)}
v_cvt_pk_bf16_f32 v{MI}, v{ACC}, v{ACC+1}
s_add_u32 s{S_T0}, s{S_OFF_B}, {WS_VM:#x}""")
    store_mode(a, f"buffer_store_dword v{MI}, v{vVMO}, {WS}, s{S_T0} offen")
    stamp(a, 2, cfg)
    a(f"""s_cmp_eq_u32 s{S_STEP}, {NSEG-1}
s_cbranch_scc1 {hooks.get("exit", "L_done")}""")
    nj = a.uid("nj")
    a(f"""s_cmp_ge_u32 s{S_STEP}, {NSEG - JIT}
s_cbranch_scc1 {nj}""")
    a(f"""s_xor_b32 s{S_T3}, s{S_OFF_F}, {JIT << 18:#x}
s_lshl_b32 s{S_T0}, s{S_WAVE}, 8
s_add_u32 s{S_T3}, s{S_T3}, s{S_T0}
s_xor_b32 s{S_T0}, s{S_OFF_E}, {JIT << 14:#x}
s_xor_b32 s{S_T2}, s{S_OFF_B}, {JIT << 16:#x}
s_add_u32 s{S_T1}, s{S_T2}, {WS_VM:#x}
s_add_u32 s{S_T2}, s{S_T2}, {WS_OM:#x}
s_mov_b32 exec_hi, 0
buffer_store_dwordx4 {vr(SENT,4)}, v{vI16}, {WS}, s{S_T3} offen sc1
s_mov_b32 exec_lo, 0xffff""")
    for t in (S_T0, S_T1, S_T2):
        store_mode(a, f"buffer_store_dwordx4 {vr(SENT,4)}, v{vI16}, {WS}, s{t} offen")
    a("s_mov_b64 exec, -1")
    a.label(nj)
    if not cfg.get("notouch"):
        if "v_touch_ok" in hooks: hooks["v_touch_ok"]()
        a(f"""s_add_u32 s{S_T0}, s{S_STEP}, {cfg.get("touch_lead", 2)}
s_min_u32 s{S_T0}, s{S_T0}, {NSEG-1}
s_lshl_b32 s{S_T0}, s{S_T0}, 18
buffer_load_dword v{vTCH+1}, v{vTCH}, {WS}, s{S_T0} offen sc1""")
    a(f"""s_and_b32 s{S_T5}, s{S_STEP}, 7
s_lshl_b32 s{S_T5}, s{S_T5}, 16
s_add_u32 s{S_T5}, s{S_T5}, {WS_OM:#x}
s_mov_b32 s{S_PCUR}, s{S_OFF_F}""")
    for x in range(1, 4):
        a(f"s_xor_b32 s{S_T0+x}, s{S_PCUR}, {x << 16:#x}")
    for i in range(16): a(f"v_mov_b32 v{ACC+i}, 0")
    loads = [f"buffer_load_dwordx4 {vr(OF+4*f,4)}, v{vOMO}, {WS}, s{S_T5} offen offset:{1024*f} sc1" for f in range(4)]
    o = cfg.get("v_om", {})
    a("s_waitcnt vmcnt(0)")
    for i in range(6): a(f"v_mov_b32 v{RP+i}, -1")
    sp = SPoll(a, loads, [OF + 4 * f for f in range(4)], vT, cap=o.get("cap", 3), sleep=o.get("sleep", 3), pre_sleep=o.get("pre", 0))
    def om(f, ct):
        a(f"v_smfmac_f32_16x16x64_bf16 {vr(ACC+4*ct,4)}, {vr(OF+4*f,4)}, {ar(128+(f*4+ct)*8,8)}, v{vIDX}")
    def pair_epi(p):
        A0, A1 = ACC + 8 * p, ACC + 8 * p + 4
        o = [f"v_permlane32_swap_b32 v{A0+r}, v{A1+r}" for r in range(4)]
        o += [f"v_add_f32 v{A0+r}, v{A0+r}, v{A1+r}" for r in range(4)]
        return o, f"ds_write_b128 v{vRW}, {vr(A0,4)} offset:{p*1024}"
    sp.first()
    if cfg.get("presync"): a("s_waitcnt vmcnt(0)\ns_barrier")
    stamp(a, 3, cfg)
    for f in range(4):
        om(f, 0); om(f, 1)
        if f < 3: sp.pre(f + 1)
        om(f, 2); om(f, 3)
        if f < 3: sp.br(f + 1)
    e0, w0 = pair_epi(0)
    e1, w1 = pair_epi(1)
    for x in e0: a(x)
    for x in e1[:4]: a(x)
    a(w0)
    for x in e1[4:]: a(x)
    a(w1)
    stamp(a, 6, cfg)
    a.fill(cfg.get("f_vw", 12))
    a("s_waitcnt lgkmcnt(0)\ns_barrier")
    stamp(a, 7, cfg)
    for src in range(4):
        a(f"ds_read2_b32 {vr(RD+2*src,2)}, v{RRS+src} offset0:0 offset1:8")
        a.fill(1)
    a.fill(cfg.get("f_vr", 8))
    a("s_waitcnt lgkmcnt(2)")
    a(f"v_pk_add_f32 {vr(RD,2)}, {vr(RD,2)}, {vr(RD+2,2)}")
    a.fill(2)
    a("s_waitcnt lgkmcnt(0)")
    a(f"v_pk_add_f32 {vr(RD+4,2)}, {vr(RD+4,2)}, {vr(RD+6,2)}")
    a(f"v_pk_add_f32 {vr(RD,2)}, {vr(RD,2)}, {vr(RD+4,2)}")
    a(f"buffer_store_dwordx2 {vr(RD,2)}, v{vPO}, {WS}, s{S_PCUR} offen sc1")
    stamp(a, 4, cfg)
    o = cfg.get("v_part", {})
    l3 = "\n".join(f"buffer_load_dwordx2 {vr(RP+2*(x-1),2)}, v{vPO}, {WS}, s{S_T0+x} offen sc1" for x in range(1, 4))
    a(f"s_add_u32 s{S_OFF_E}, s{S_OFF_E}, 0x4000\ns_bitset0_b32 s{S_OFF_E}, 17")
    if o.get("presleep", 3): a(f"s_sleep {o.get('presleep', 3)}")
    pp = SPoll(a, [l3], [list(range(RP, RP + 6))], vT, cap=o.get("cap", 30), sleep=o.get("sleep", 1), pre_sleep=o.get("pre", 24))
    pp.first(prefill=False)
    a(f"s_cmp_eq_u32 s{S_MODE}, 1")
    a(f"""v_pk_add_f32 {vr(RD,2)}, {vr(RD,2)}, {vr(RP,2)}
v_pk_add_f32 {vr(RD+2,2)}, {vr(RP+2,2)}, {vr(RP+4,2)}
v_pk_add_f32 {vr(RD,2)}, {vr(RD,2)}, {vr(RD+2,2)}
v_cvt_pk_bf16_f32 v{MI}, v{RD}, v{RD+1}""")
    store_mode2(a, f"buffer_store_dword v{MI}, v{vMO}, {WS}, s{S_OFF_E} offen")
    stamp(a, 5, cfg)
    stamp_flush(a, cfg)
    a(f"""s_add_u32 s{S_STEP}, s{S_STEP}, 1
s_add_u32 s{S_OFF_A}, s{S_OFF_A}, 0x4000
s_bitset0_b32 s{S_OFF_A}, 17
s_add_u32 s{S_OFF_B}, s{S_OFF_B}, 0x10000
s_bitset0_b32 s{S_OFF_B}, 19
s_add_u32 s{S_OFF_F}, s{S_OFF_F}, 0x40000
s_bitset0_b32 s{S_OFF_F}, 21
s_branch V_loop""")
    a.flush_deferred()
    a.set_filler(None)
```

```python
from asmgen import *

G_SX = 16
G_SW = 20
G_XOFF, G_WOFF, G_WSTEP, G_CNT = 52, 53, 54, 55
G_NXOFF, G_NWOFF = 56, 57
G_NW0, G_NW1 = 58, 59
G_M0 = 82
G_NST = 83
G_TX, G_TW = 94, 95
G_ST = 96
G_MX, G_MW = 100, 101
G_PX, G_PW, G_XSTEP = 78, 79, 33
VL, VT1, VT2, VT3 = 0, 1, 2, 3
V_L16 = 4
XD, WD, XR, WR = 8, 16, 24, 26
XT, WT, TD = 34, 35, 36
V_ROW = 37
XF, WF = 64, 128
EP = 192
OOB = 0x7f000000


class Gemm:
    def __init__(self, MT, NT, NBUF, cfg=None):
        self.MT, self.NT, self.NBUF = MT, NT, NBUF
        self.cfg = cfg or {}
        self.XB = 32 * MT * 128
        self.WROW = 32 * NT * 2
        self.SB = self.XB + 64 * self.WROW
        assert self.SB * NBUF == 0x20000
        self.RPI = 1024 // self.WROW
        self.TLEAD = self.cfg.get("tlead", 2 if MT == 8 else 4)
        self.ND = MT + NT
        self.touch = self.cfg.get('touch', False)
        self.NTCH = 2 if self.touch else 0
        self.chain = self.cfg.get('chain', False)

    def acc(self, mt, nt):
        return (mt * self.NT + nt) * 4

    def setup(self, a, s_wave, kperm, st0=36, st1=37):
        MT, NT, RPI, WROW = self.MT, self.NT, self.RPI, self.WROW
        lg = lambda x: x.bit_length() - 1
        a(f"""v_lshrrev_b32 v{VT1}, 3, v{VL}
v_and_b32 v{VT2}, 7, v{VL}
v_xor_b32 v{VT2}, v{VT2}, v{VT1}
v_lshlrev_b32 v{VT2}, 4, v{VT2}
s_lshl_b32 s{st0}, s{s_wave}, {lg(8*MT)}
v_add_u32 v{VT1}, s{st0}, v{VT1}
v_mul_lo_u32 v{VT1}, v{VT1}, s{G_PX}
v_add_u32 v{XD}, v{VT1}, v{VT2}""")
        for i in range(1, MT):
            a(f"s_mul_i32 s{st0}, s{G_PX}, {8*i}\ns_sub_u32 s{st0}, s{st0}, {(i%4)*1024}\nv_add_u32 v{XD+i}, s{st0}, v{XD}")
        LPR = 64 // RPI
        a(f"""v_lshrrev_b32 v{VT1}, {lg(LPR)}, v{VL}
s_lshl_b32 s{st0}, s{s_wave}, 4
v_add_u32 v{VT2}, s{st0}, v{VT1}
v_mul_lo_u32 v{VT2}, v{VT2}, s{G_PW}
v_and_b32 v{VT3}, {LPR-1}, v{VL}
v_lshlrev_b32 v{VT3}, 4, v{VT3}
v_lshlrev_b32 v{VT1}, 5, v{VT1}
v_xor_b32 v{VT3}, v{VT3}, v{VT1}""")
        for i in range(NT):
            k = RPI * i
            f = k % 8 if kperm else (k % 4 + 4 * ((k // 8) % 2))
            a(f"v_xor_b32 v{VT1}, {f*32}, v{VT3}")
            a(f"s_mul_i32 s{st0}, s{G_PW}, {k}\ns_sub_u32 s{st0}, s{st0}, {(i%4)*1024}")
            a(f"v_add3_u32 v{WD+i}, v{VT2}, v{VT1}, s{st0}")
        a(f"""v_and_b32 v{VT1}, 15, v{VL}
v_lshlrev_b32 v{VT2}, 7, v{VT1}
v_and_b32 v{VT1}, 7, v{VL}
v_lshrrev_b32 v{VT3}, 4, v{VL}
v_xor_b32 v{VT1}, v{VT1}, v{VT3}
v_lshl_add_u32 v{VT2}, v{VT1}, 4, v{VT2}
s_lshr_b32 s{st0}, s{s_wave}, 1
s_lshl_b32 s{st0}, s{st0}, {lg(16*MT*128)}
v_add_u32 v{XR}, s{st0}, v{VT2}
v_xor_b32 v{XR+1}, 64, v{XR}""")
        a(f"""v_lshrrev_b32 v{VT1}, 4, v{VL}
v_lshlrev_b32 v{VT2}, {lg(WROW) + (2 if kperm else 3)}, v{VT1}
v_bfe_u32 v{VT3}, v{VL}, 2, 2
v_lshl_add_u32 v{VT2}, v{VT3}, {lg(WROW)}, v{VT2}
v_bfe_u32 v{VT3}, v{VL}, 2, 3
v_lshl_add_u32 v{VT2}, v{VT3}, 5, v{VT2}
v_and_b32 v{VT3}, 3, v{VL}
v_lshl_add_u32 v{VT2}, v{VT3}, 3, v{VT2}
s_and_b32 s{st0}, s{s_wave}, 1
s_lshl_b32 s{st0}, s{st0}, {lg(NT*32)}
v_xor_b32 v{VT2}, s{st0}, v{VT2}
v_add_u32 v{WR}, {self.XB:#x}, v{VT2}""")
        for nt in range(1, NT):
            a(f"v_xor_b32 v{WR+nt}, {nt*32}, v{WR}")
        if self.touch:
            LR = WROW // 128
            a(f"""s_lshl_b32 s{st0}, s{s_wave}, {lg(8*MT)}
v_and_b32 v{VT1}, {8*MT-1}, v{VL}
v_add_u32 v{VT1}, s{st0}, v{VT1}
v_mul_lo_u32 v{XT}, v{VT1}, s{G_PX}
v_bfe_u32 v{VT1}, v{VL}, {lg(LR)}, 4
s_lshl_b32 s{st0}, s{s_wave}, 4
v_add_u32 v{VT1}, s{st0}, v{VT1}
v_mul_lo_u32 v{VT1}, v{VT1}, s{G_PW}
v_and_b32 v{VT2}, {LR-1}, v{VL}
v_lshl_add_u32 v{WT}, v{VT2}, 7, v{VT1}""")
        a(f"""s_lshl_b32 s{G_WSTEP}, s{G_PW}, 6
s_mov_b32 s{G_M0}, 0
s_lshl_b32 s{G_MX}, s{s_wave}, {lg(MT*1024)}
s_lshl_b32 s{G_MW}, s{s_wave}, {lg(NT*1024)}
s_add_u32 s{G_MW}, s{G_MW}, {self.XB:#x}""")

    def dma_instrs(self, xflags, wflags):
        out = []
        for isx, n in ((True, self.MT), (False, self.NT)):
            for j in range(n):
                pre = ""
                if j == 0:
                    pre = f"s_add_u32 m0, s{G_M0}, s{G_MX if isx else G_MW}\n"
                elif j % 4 == 0:
                    pre = f"s_add_u32 m0, m0, 0x1000\n"
                srd, vo, so, fl = (G_SX, XD, G_XOFF, xflags) if isx else (G_SW, WD, G_WOFF, wflags)
                out.append(pre + f"buffer_load_dwordx4 v{vo+j}, s[{srd}:{srd+3}], s{so} offen offset:{(j%4)*1024} {fl} lds")
        return out

    def dma_advance(self):
        return f"""s_add_u32 s{G_XOFF}, s{G_XOFF}, s{G_XSTEP}
s_add_u32 s{G_WOFF}, s{G_WOFF}, s{G_WSTEP}
s_add_u32 s{G_M0}, s{G_M0}, {self.SB:#x}
s_and_b32 s{G_M0}, s{G_M0}, 0x1ffff"""

    def touch_instrs(self, xflags):
        if not self.touch: return []
        return [f"buffer_load_dword v{TD}, v{XT}, s[{G_SX}:{G_SX+3}], s{G_TX} offen {xflags}",
                f"buffer_load_dword v{TD}, v{WT}, s[{G_ST}:{G_ST+3}], s{G_TW} offen",
                f"s_add_u32 s{G_TX}, s{G_TX}, s{G_XSTEP}\ns_add_u32 s{G_TW}, s{G_TW}, s{G_WSTEP}"]

    def read_instrs(self, setid, h, kperm):
        xs = [f"ds_read_b128 {vr(XF+32*setid+4*mt,4)}, v{XR+h} offset:{mt*2048}" for mt in range(self.MT)]
        ws = []
        for nt in range(self.NT):
            for u in range(2):
                ws.append(f"ds_read_b64_tr_b16 {vr(WF+32*setid+4*nt+2*u,2)}, v{WR+nt} offset:{(32*h + (16 if kperm else 4)*u)*self.WROW}")
        return [xs[0]] + ws + xs[1:]

    def toggles(self):
        regs = list(range(XR, XR + 2)) + list(range(WR, WR + self.NT))
        if self.NBUF == 2:
            return [f"v_xor_b32 v{r}, 0x10000, v{r}" for r in regs]
        return [f"v_add_u32 v{r}, {self.SB:#x}, v{r}\nv_and_b32 v{r}, 0x1ffff, v{r}" for r in regs]

    def prologue(self, a, kperm, xflags="", wflags=""):
        if self.touch:
            a(f"""s_mul_i32 s{G_TX}, s{G_XSTEP}, {self.NBUF}
s_add_u32 s{G_TX}, s{G_TX}, s{G_XOFF}
s_mul_i32 s{G_TW}, s{G_WSTEP}, {self.NBUF}
s_add_u32 s{G_TW}, s{G_TW}, s{G_WOFF}
s_mov_b32 s{G_ST}, s{G_SW}
s_mov_b32 s{G_ST+1}, s{G_SW+1}
s_mov_b32 s{G_ST+2}, s{G_SW+2}
s_mov_b32 s{G_ST+3}, 0x20000""")
        for b in range(self.NBUF):
            for g in self.dma_instrs(xflags, wflags): a(g)
            a(self.dma_advance())
            for t in self.touch_instrs(xflags): a(t)
        a(f"s_waitcnt vmcnt({(self.NBUF-1)*(self.ND+self.NTCH) + self.NTCH})\ns_barrier")
        for r in self.read_instrs(0, 0, kperm): a(r)

    def stage_body(self, a, orient, kperm, first, xflags, wflags):
        cfg, MT, NT = self.cfg, self.MT, self.NT
        H = MT * NT
        big = MT == 8
        bar = cfg.get("bar", 30 if big else 13)
        dgap = cfg.get("dgap", 4 if big else 2)
        vm_wait = min(63, (self.NBUF - 2) * (self.ND + self.NTCH) + self.NTCH)
        dma = self.dma_instrs(xflags, wflags)
        nrd = MT + 2 * NT
        for h in range(2):
            fill = {}
            def add(g, t): fill.setdefault(min(g, H - 1), []).append(t)
            rd = self.read_instrs(1 - h, 1 - h, kperm)
            for i, r in enumerate(rd): add(i, r)
            if h == 0:
                tg = self.toggles()
                if big:
                    for i, t in enumerate(tg): add(nrd + i, t)
                else:
                    add(1, tg[0])
                    for nt in range(NT): add(2 * nt + 3, tg[2 + nt])
                    add(nrd, tg[1])
                add(bar, f"s_waitcnt vmcnt({vm_wait}) lgkmcnt(0)\ns_barrier")
                add(bar - 1, f"""s_cmp_eq_u32 s{G_CNT}, {self.NBUF}
s_cselect_b32 s{G_XOFF}, s{G_NXOFF}, s{G_XOFF}
s_cselect_b32 s{G_WOFF}, s{G_NWOFF}, s{G_WOFF}""")
                if self.chain:
                    add(bar - 1, f"""s_cselect_b32 s{G_SW}, s{G_NW0}, s{G_SW}
s_cselect_b32 s{G_SW+1}, s{G_NW1}, s{G_SW+1}""")
            for i, d in enumerate(dma):
                g = bar + 1 + i * dgap - H * h
                if (0 <= g < H) or (h == 1 and g >= H): add(g, d)
            if h == 1:
                tg = max(0, bar + 1 + len(dma) * dgap - H)
                if self.touch:
                    add(tg, f"""s_cmp_eq_u32 s{G_CNT}, {self.NBUF + self.TLEAD}
s_cselect_b32 s{G_TX}, s{G_NXOFF}, s{G_TX}
s_cselect_b32 s{G_TW}, s{G_NWOFF}, s{G_TW}""")
                    if self.chain:
                        add(tg, f"""s_cselect_b32 s{G_ST}, s{G_NW0}, s{G_ST}
s_cselect_b32 s{G_ST+1}, s{G_NW1}, s{G_ST+1}""")
                    for i, t in enumerate(self.touch_instrs(xflags)): add(tg + 1 + i * dgap, t)
                adv = self.dma_advance().split("\n")
                last = (bar + 1 + (len(dma) - 1) * dgap - H) if not self.touch else H - 3
                add(last + 1, "\n".join(adv[:2]))
                add(last + 2, "\n".join(adv[2:]))
                add(H - 1, f"s_sub_u32 s{G_CNT}, s{G_CNT}, 1")
            a("s_waitcnt lgkmcnt(0)")
            for mt in range(MT):
                for nt in range(NT):
                    X = vr(XF + 32 * h + 4 * mt, 4); W = vr(WF + 32 * h + 4 * nt, 4)
                    A, B = (W, X) if orient == "W" else (X, W)
                    C = "0" if (first and h == 0) else ar(self.acc(mt, nt), 4)
                    a(f"v_mfma_f32_16x16x32_bf16 {ar(self.acc(mt,nt),4)}, {A}, {B}, {C}")
                    for t in fill.get(mt * NT + nt, []): a(t)

    def tile(self, a, orient, kperm, xflags="", wflags=""):
        lp = a.uid("gl")
        a(f"s_mov_b32 s{G_CNT}, s{G_NST}")
        self.stage_body(a, orient, kperm, True, xflags, wflags)
        a.label(lp)
        self.stage_body(a, orient, kperm, False, xflags, wflags)
        a(f"s_cmp_lg_u32 s{G_CNT}, 0\ns_cbranch_scc1 {lp}")

    def pack_pair(self, a, t0, t1, dst, tmp, scale=None):
        for r in range(4):
            a(f"v_accvgpr_read_b32 v{tmp+r}, a{t0+r}")
        for r in range(4):
            a(f"v_accvgpr_read_b32 v{tmp+4+r}, a{t1+r}")
        if scale is not None:
            for r in range(0, 8, 2):
                a(f"v_pk_mul_f32 {vr(tmp+r,2)}, {vr(tmp+r,2)}, s[{scale}:{scale+1}]")
        for r in range(4):
            a(f"v_cvt_pk_bf16_f32 v{dst+r}, v{tmp+2*r}, v{tmp+2*r+1}")

    def epilogue(self, a, entries, srd, sbase, voff, flags="", scale=None, swap=False):
        entries = sorted(entries, key=lambda e: e[2])
        cur = None
        for n, (p0, p1, off) in enumerate(entries):
            win = off & ~0xfff
            if win != cur:
                a(f"s_add_u32 s36, s{sbase}, {win:#x}"); cur = win
            d = EP + 16 + 4 * (n % 8)
            self.pack_pair(a, self.acc(*p0), self.acc(*p1), d, EP + 8 * (n % 2), scale)
            if swap:
                a(f"v_permlane16_swap_b32 v{d}, v{d+2}\nv_permlane16_swap_b32 v{d+1}, v{d+3}")
            a(f"buffer_store_dwordx4 {vr(d,4)}, v{voff}, s[{srd}:{srd+3}], s36 offen offset:{off - win} {flags}")

    def ent_a_qk(self):
        return [((mt, 2*i), (mt, 2*i+1), (mt // 2) * (1 << 18) + (mt % 2) * 4096 + i * 1024) for mt in range(self.MT) for i in range(self.NT // 2)]
    def ent_a_v(self):
        return [((2*mp, nt), (2*mp+1, nt), mp * (1 << 18) + nt * 1024) for mp in range(self.MT // 2) for nt in range(self.NT)]
    def ent_b_qk(self):
        return [((mt, 2*i), (mt, 2*i+1), i * (1 << 17) + mt * 1024) for mt in range(self.MT) for i in range(self.NT // 2)]
    def ent_b_v(self):
        return [((2*mp, nt), (2*mp+1, nt), (nt // 2) * (1 << 17) + mp * 2048 + (nt % 2) * 1024) for mp in range(self.MT // 2) for nt in range(self.NT)]
    def ent_row(self):
        return [((mt, 2*i), (mt, 2*i+1), mt * 16 * 4096 + i * 64) for mt in range(self.MT) for i in range(self.NT // 2)]


def row_voff(a):
    a(f"""v_and_b32 v{VT1}, 15, v{VL}
v_lshlrev_b32 v{V_ROW}, 12, v{VT1}
v_bfe_u32 v{VT1}, v{VL}, 4, 1
v_lshl_add_u32 v{V_ROW}, v{VT1}, 5, v{V_ROW}
v_lshrrev_b32 v{VT1}, 5, v{VL}
v_lshl_add_u32 v{V_ROW}, v{VT1}, 4, v{V_ROW}""")
```

```python
import sys
from asmgen import *
from chain import *
import chain2
from chain2 import s_cu, v_cu, DBG, WS
from gemm import *
from battn import WS_QB, WS_KB, WS_VB, WS_OB, battn_task

PFX = "concat_heads__memory_aug_recurrent_mem_tr__mha_block__prompt"
NAME = PFX + "_kernel"
C_Q, C_QKV, C_BQKV, C_BAT, C_OXB, C_OXS = 4, 12, 21, 25, 33, 45
NOSIG = 63
T_MQKV, T_BQKV, T_BB, T_ATT, T_OB, T_OA = range(6)
L_TICKET = 0x20000
P_AX, P_WQ, P_WK, P_WV, P_WO, P_BX, P_BW, P_BO = 60, 62, 64, 66, 68, 70, 72, 74
S_D0, S_D1, S_GRP, S_P1, S_P2, S_TYP, S_MAT, S_EB = 84, 85, 86, 87, 88, 89, 93, 92
S_TAB = 90
S_OUT = 24


def desc(typ, p1, p2, wait=None, sig=NOSIG):
    wi, wt = wait if wait else (NOSIG, 0)
    return (typ | p1 << 4 | p2 << 12, wi | wt << 8 | sig << 20)


def ox_counter(blk):
    return (C_OXB + blk, 128) if blk < 12 else None


def schedule(cfg):
    L = [[] for _ in range(8)]
    def mq(rb, x):
        return [desc(T_MQKV, rb, mat * 32 + 8 * x + i, sig=C_QKV + rb) for i in range(8) for mat in (1, 2, 0)]
    def bq(mb, x):
        return [desc(T_BQKV, mb, mat * 16 + 4 * x + i, sig=C_QKV + 1 + mb) for i in range(4) for mat in (1, 2, 0)]
    def bb(hg):
        return [desc(T_BB, mb, mat * 4 + hg, sig=C_BQKV + hg) for mat in (1, 2, 0) for mb in range(8)]
    def att(h):
        return [desc(T_ATT, h, qb, wait=(C_BQKV + h // 8, 24), sig=C_BAT + qb) for qb in range(8)]
    def ob(blk):
        return [desc(T_OB, blk, nb, wait=(C_BAT + blk // 2, 32)) for nb in range(8)]
    def oa(blk):
        if blk < 12: w = (C_OXB + blk, 128)
        else: w = (C_OXS + (blk - 12) * 4 + 3, 32)
        return [desc(T_OA, blk, nb, wait=w) for nb in range(8)]
    allbb = bb(0) + bb(1) + bb(2) + bb(3)
    nsm = cfg.get("att_small", 5)
    for g in range(4):
        L[g] += allbb[8 * g: 8 * g + 8]
        for k in range(nsm): L[g] += att(4 * k + g)
    rest_heads = list(range(4 * nsm, 32))
    for x in range(4):
        l = L[4 + x]
        b1 = bq(1, x)
        l += mq(0, x) + b1[:8] + mq(1, x) + b1[8:]
        l += allbb[32 + 16 * x: 48 + 16 * x]
        l += bq(2, x) + bq(3, x)
        l += oa(x)
        l += bq(4, x) + bq(5, x)
        for h in rest_heads[x::4]: l += att(h)
        l += oa(4 + x)
        l += bq(6, x) + bq(7, x)
        l += oa(8 + x)
        for blk in range(x, 16, 4): l += ob(blk)
        l += oa(12 + x)
    return L


def worker(a, cfg):
    big = Gemm(8, 8, 2, cfg.get("big", {}))
    med = Gemm(4, 4, 4, cfg.get("med", {}))
    lists = schedule(cfg)
    MAXL = max(len(l) for l in lists)
    a(f"""v_and_b32 v0, 63, v0
v_lshlrev_b32 v{V_L16}, 4, v0
s_load_dwordx2 s[{P_AX}:{P_AX+1}], s[0:1], 0
s_load_dwordx2 s[{P_WQ}:{P_WQ+1}], s[0:1], 16
s_load_dwordx4 s[{P_WK}:{P_WK+3}], s[0:1], 24
s_load_dwordx2 s[{P_WO}:{P_WO+1}], s[0:1], 40
s_load_dwordx2 s[{P_BX}:{P_BX+1}], s[0:1], 56
s_load_dwordx4 s[{P_BW}:{P_BW+3}], s[0:1], 64
s_getpc_b64 s[{S_TAB}:{S_TAB+1}]
W_pc:
s_add_u32 s{S_TAB}, s{S_TAB}, W_table-W_pc
s_addc_u32 s{S_TAB+1}, s{S_TAB+1}, 0
s_waitcnt lgkmcnt(0)""")
    for p in range(P_AX, P_BO + 2, 2): a(f"s_and_b32 s{p+1}, s{p+1}, 0xffff")
    srd(a, S_OUT, 80, 2048 * 4096)
    row_voff(a)
    a(f"""s_mov_b32 s{G_SX+3}, 0x20000
s_mov_b32 s{G_SW+3}, 0x20000
s_mov_b32 s{G_NXOFF}, {OOB:#x}
s_mov_b32 s{G_NWOFF}, {OOB:#x}
v_mov_b32 v5, {L_TICKET:#x}
v_mov_b32 v6, 0""")
    a.label("W_next")
    a(f"""s_cmp_lg_u32 s{S_WAVE}, 0
s_cbranch_scc1 W_tk
v_mov_b32 v1, 1
s_lshl_b32 s36, s{S_GRP}, 2
s_mov_b64 exec, 1
buffer_atomic_add v1, v6, {DBG}, s36 offen offset:{C_Q*4} sc0 sc1
s_waitcnt vmcnt(0)
ds_write_b32 v5, v1
s_mov_b64 exec, -1
s_waitcnt lgkmcnt(0)
W_tk:
s_barrier
ds_read_b32 v1, v5
s_waitcnt lgkmcnt(0)
v_readfirstlane_b32 s36, v1
s_nop 3
s_min_u32 s36, s36, {MAXL}
s_mul_i32 s37, s{S_GRP}, {MAXL+1}
s_add_u32 s36, s36, s37
s_lshl_b32 s36, s36, 3
s_load_dwordx2 s[{S_D0}:{S_D1}], s[{S_TAB}:{S_TAB+1}], s36
s_waitcnt lgkmcnt(0)
s_and_b32 s{S_TYP}, s{S_D0}, 15
s_cmp_eq_u32 s{S_TYP}, 15
s_cbranch_scc1 L_done
s_bfe_u32 s{S_P1}, s{S_D0}, 0x80004
s_bfe_u32 s{S_P2}, s{S_D0}, 0x8000c""")
    if cfg.get("wstamps"):
        a(f"s_memrealtime s[40:41]\ns_lshr_b32 s46, s36, 3")
    a(f"""s_bfe_u32 s38, s{S_D1}, 0xc0008
s_cmp_eq_u32 s38, 0
s_cbranch_scc1 W_go
s_cmp_lg_u32 s{S_WAVE}, 0
s_cbranch_scc1 W_go2
s_and_b32 s39, s{S_D1}, 0xff
s_lshl_b32 s39, s39, 2
W_dep:""")
    budget_head(a)
    a(f"""buffer_load_dword v1, v6, {DBG}, s39 offen sc1
s_waitcnt vmcnt(0)
v_readfirstlane_b32 s36, v1
s_nop 3
s_cmp_ge_u32 s36, s38
s_cbranch_scc1 W_go2
s_sleep {cfg.get("dep_sleep", 16)}
s_branch W_dep
W_go2:
s_barrier
W_go:""")
    if cfg.get("wstamps"):
        a(f"s_memrealtime s[42:43]\ns_waitcnt lgkmcnt(0)")
    a(f"""s_cmp_eq_u32 s{S_TYP}, {T_ATT}
s_cbranch_scc1 W_att
s_cmp_ge_u32 s{S_TYP}, {T_OB}
s_cbranch_scc1 W_out
s_mov_b32 s{G_NST}, 16
s_mov_b32 s{G_PX}, 2048
s_mov_b32 s{G_XSTEP}, 128
s_mov_b32 s{G_SX+2}, {2048*2048:#x}
s_cmp_eq_u32 s{S_TYP}, {T_BB}
s_cbranch_scc1 W_bb""")
    def sel_w():
        a(f"""s_mov_b32 s{G_SX}, s{P_AX}
s_mov_b32 s{G_SX+1}, s{P_AX+1}
s_cmp_eq_u32 s{S_MAT}, 1
s_cselect_b32 s{G_SW}, s{P_WK}, s{P_WQ}
s_cselect_b32 s{G_SW+1}, s{P_WK+1}, s{P_WQ+1}
s_cselect_b32 s36, {WS_KX:#x}, {WS_QX:#x}
s_cmp_eq_u32 s{S_MAT}, 2
s_cselect_b32 s{G_SW}, s{P_WV}, s{G_SW}
s_cselect_b32 s{G_SW+1}, s{P_WV+1}, s{G_SW+1}
s_cselect_b32 s36, {WS_VX:#x}, s36
s_add_u32 s{S_EB}, s{S_EB}, s36
s_mov_b32 s{G_SW+2}, {1024*8192:#x}
s_mov_b32 s{G_PW}, 8192""")
    a(f"""s_cmp_eq_u32 s{S_TYP}, {T_BQKV}
s_cbranch_scc1 W_abig""")
    a(f"""s_lshr_b32 s{S_MAT}, s{S_P2}, 5
s_and_b32 s38, s{S_P2}, 31
s_lshl_b32 s{G_XOFF}, s{S_P1}, 18
s_lshl_b32 s{G_WOFF}, s38, 8
s_lshl_b32 s36, s{S_P1}, 1
s_lshr_b32 s37, s{S_WAVE}, 1
s_add_u32 s36, s36, s37
s_lshl_b32 s{S_EB}, s36, 19
s_lshl_b32 s36, s38, 13
s_add_u32 s{S_EB}, s{S_EB}, s36
s_and_b32 s37, s{S_WAVE}, 1
s_cmp_eq_u32 s{S_MAT}, 2
s_cselect_b32 s36, 12, 11
s_lshl_b32 s37, s37, s36
s_add_u32 s{S_EB}, s{S_EB}, s37""")
    sel_w()
    med.setup(a, S_WAVE, False)
    med.prologue(a, False)
    a(f"s_cmp_eq_u32 s{S_MAT}, 2\ns_cbranch_scc1 W_mv")
    med.tile(a, "W", False)
    med.epilogue(a, med.ent_a_qk(), S_WS, S_EB, V_L16, "sc1")
    a("s_branch W_fin")
    a.label("W_mv")
    med.tile(a, "X", False)
    med.epilogue(a, med.ent_a_v(), S_WS, S_EB, V_L16, "sc1")
    a("s_branch W_fin")
    a.label("W_abig")
    a(f"""s_lshr_b32 s{S_MAT}, s{S_P2}, 4
s_and_b32 s38, s{S_P2}, 15
s_lshl_b32 s{G_XOFF}, s{S_P1}, 19
s_lshl_b32 s{G_WOFF}, s38, 9
s_lshl_b32 s36, s{S_P1}, 1
s_lshr_b32 s37, s{S_WAVE}, 1
s_add_u32 s36, s36, s37
s_lshl_b32 s{S_EB}, s36, 20
s_lshl_b32 s36, s38, 1
s_and_b32 s37, s{S_WAVE}, 1
s_add_u32 s36, s36, s37
s_lshl_b32 s36, s36, 13
s_add_u32 s{S_EB}, s{S_EB}, s36""")
    sel_w()
    a("s_branch W_biggo")
    a.label("W_bb")
    cb = f32bits(32 ** -0.5 * LOG2E)
    a(f"""s_lshr_b32 s{S_MAT}, s{S_P2}, 2
s_lshl_b32 s{G_XOFF}, s{S_P1}, 19
s_lshl_b32 s{G_WOFF}, s{S_P2}, 9
s_and_b32 s36, s{S_P2}, 3
s_lshl_b32 s36, s36, 1
s_and_b32 s37, s{S_WAVE}, 1
s_add_u32 s36, s36, s37
s_lshl_b32 s{S_EB}, s36, 19
s_lshl_b32 s36, s{S_P1}, 1
s_lshr_b32 s37, s{S_WAVE}, 1
s_add_u32 s36, s36, s37
s_lshl_b32 s36, s36, 13
s_add_u32 s{S_EB}, s{S_EB}, s36
s_lshl_b32 s36, s{S_MAT}, 22
s_add_u32 s{S_EB}, s{S_EB}, s36
s_add_u32 s{S_EB}, s{S_EB}, {WS_QB:#x}
s_cmp_eq_u32 s{S_MAT}, 0
s_cselect_b32 s{S_C}, {cb:#x}, 1.0
s_mov_b32 s{S_C+1}, s{S_C}
s_mov_b32 s{G_SX}, s{P_BX}
s_mov_b32 s{G_SX+1}, s{P_BX+1}
s_mov_b32 s{G_SW}, s{P_BW}
s_mov_b32 s{G_SW+1}, s{P_BW+1}
s_mov_b32 s{G_SW+2}, {1024*6144:#x}
s_mov_b32 s{G_PW}, 6144""")
    a.label("W_biggo")
    big.setup(a, S_WAVE, False)
    big.prologue(a, False)
    a(f"s_cmp_eq_u32 s{S_MAT}, 2\ns_cbranch_scc1 W_bv")
    big.tile(a, "W", False)
    a(f"s_cmp_eq_u32 s{S_TYP}, {T_BB}\ns_cbranch_scc1 W_e1")
    big.epilogue(a, big.ent_a_qk(), S_WS, S_EB, V_L16, "sc1")
    a("s_branch W_fin")
    a.label("W_e1")
    big.epilogue(a, big.ent_b_qk(), S_WS, S_EB, V_L16, "sc1", scale=S_C)
    a("s_branch W_fin")
    a.label("W_bv")
    big.tile(a, "X", False)
    a(f"s_cmp_eq_u32 s{S_TYP}, {T_BB}\ns_cbranch_scc1 W_e2")
    big.epilogue(a, big.ent_a_v(), S_WS, S_EB, V_L16, "sc1")
    a("s_branch W_fin")
    a.label("W_e2")
    big.epilogue(a, big.ent_b_v(), S_WS, S_EB, V_L16, "sc1")
    a("s_branch W_fin")
    a.label("W_out")
    a(f"""s_mov_b32 s{G_SX}, s{S_WS}
s_mov_b32 s{G_SX+1}, s{S_WS+1}
s_mov_b32 s{G_SX+2}, s{S_WS+2}
s_mov_b32 s{G_PX}, 128
s_mov_b32 s{G_PW}, 2048
s_mov_b32 s{G_XSTEP}, 0x4000
s_lshl_b32 s{G_WOFF}, s{S_P2}, 8
s_lshl_b32 s36, s{S_P1}, 1
s_lshr_b32 s37, s{S_WAVE}, 1
s_add_u32 s36, s36, s37
s_lshl_b32 s{S_EB}, s36, 18
s_lshl_b32 s36, s{S_P2}, 1
s_and_b32 s37, s{S_WAVE}, 1
s_add_u32 s36, s36, s37
s_lshl_b32 s36, s36, 7
s_add_u32 s{S_EB}, s{S_EB}, s36
s_cmp_eq_u32 s{S_TYP}, {T_OA}
s_cselect_b32 s{G_SW}, s{P_WO}, s{P_BO}
s_cselect_b32 s{G_SW+1}, s{P_WO+1}, s{P_BO+1}
s_mov_b32 s36, {1024*2048:#x}
s_cselect_b32 s{G_SW+2}, {4096*2048:#x}, s36
s_cselect_b32 s{G_NST}, 64, 16
s_cselect_b32 s36, 20, 18
s_mov_b32 s37, {WS_OB:#x}
s_cselect_b32 s37, {WS_OX:#x}, s37
s_cselect_b32 s38, 0, 2048
s_lshl_b32 s{G_XOFF}, s{S_P1}, s36
s_add_u32 s{G_XOFF}, s{G_XOFF}, s37
s_add_u32 s{S_EB}, s{S_EB}, s38""")
    med.setup(a, S_WAVE, True)
    med.prologue(a, True, "sc1")
    med.tile(a, "W", True, "sc1")
    med.epilogue(a, med.ent_row(), S_OUT, S_EB, V_ROW, swap=True)
    a("s_branch W_fin")
    a.label("W_att")
    battn_task(a, S_WS, S_WAVE, S_P1, S_P2, cfg, "sc1", "sc1")
    row_voff(a)
    a(f"s_mov_b32 s{G_NXOFF}, {OOB:#x}\ns_mov_b32 s{G_NWOFF}, {OOB:#x}")
    a.label("W_fin")
    a(f"""s_waitcnt vmcnt(0) lgkmcnt(0)
s_barrier
s_cmp_lg_u32 s{S_WAVE}, 0
s_cbranch_scc1 W_next""")
    if cfg.get("wstamps"):
        a(f"""s_memrealtime s[44:45]
s_waitcnt lgkmcnt(0)
v_mov_b32 v200, s40
v_mov_b32 v201, s42
v_mov_b32 v202, s44
v_mov_b32 v203, s2
s_lshl_b32 s36, s46, 4
s_add_u32 s36, s36, {0x8000000:#x}
s_mov_b64 exec, 1
buffer_store_dwordx4 v[200:203], v6, {WS}, s36 offen
s_mov_b64 exec, -1""")
    a(f"""s_lshr_b32 s36, s{S_D1}, 20
s_lshl_b32 s36, s36, 2
v_mov_b32 v1, 1
s_mov_b64 exec, 1
buffer_atomic_add v1, v6, {DBG}, s36 offen sc1
s_mov_b64 exec, -1
s_branch W_next""")
    tab = []
    for l in lists:
        l = l + [(15, 0)] * (MAXL + 1 - len(l))
        tab += [f".long {d0:#x}, {d1:#x}" for d0, d1 in l]
    return tab


def chain_hooks(a):
    def wait_x(vt):
        sk, lp = a.uid("wx"), a.uid("wx")
        a(f"""s_lshr_b32 s{S_T0}, s{S_OFF_B}, 18
s_cmp_ge_u32 s{S_T0}, {NSEG}
s_cbranch_scc1 {sk}
s_cmp_lt_u32 s{S_T0}, 8
s_cselect_b32 s{S_T1}, 3, 7
s_and_b32 s{S_T1}, s{S_T0}, s{S_T1}
s_cmp_lg_u32 s{S_T1}, 0
s_cbranch_scc1 {sk}
s_lshr_b32 s{S_T1}, s{S_T0}, 3
s_add_u32 s{S_T1}, s{S_T1}, 1
s_lshr_b32 s{S_T2}, s{S_T0}, 2
s_cmp_lt_u32 s{S_T0}, 8
s_cselect_b32 s{S_T1}, s{S_T2}, s{S_T1}
s_cselect_b32 s{S_T2}, 96, 48
s_lshl_b32 s{S_T1}, s{S_T1}, 2
{lp}:""")
        budget_head(a)
        a(f"""v_mov_b32 v{vt}, 0
buffer_load_dword v{vt}, v{vt}, {DBG}, s{S_T1} offen offset:{C_QKV*4} sc1
s_waitcnt vmcnt(0)
v_readfirstlane_b32 s{S_T3}, v{vt}
s_nop 3
s_cmp_ge_u32 s{S_T3}, s{S_T2}
s_cbranch_scc1 {sk}
s_sleep 4
s_branch {lp}
{sk}:""")
    def signal(vt, seg_sgpr):
        a(f"""s_lshr_b32 s{S_T1}, s{seg_sgpr}, 2
s_add_u32 s{S_T1}, s{S_T1}, {C_OXB}
s_add_u32 s{S_T2}, s{seg_sgpr}, {C_OXS - 48}
s_cmp_lt_u32 s{seg_sgpr}, 48
s_cselect_b32 s{S_T1}, s{S_T1}, s{S_T2}
s_lshl_b32 s{S_T1}, s{S_T1}, 2
v_mov_b32 v{vt}, 1
v_mov_b32 v{vt+1}, 0
s_mov_b64 exec, 1
buffer_atomic_add v{vt}, v{vt+1}, {DBG}, s{S_T1} offen sc1
s_mov_b64 exec, -1""")
    def post_om(vt):
        sk = a.uid("po")
        a(f"""s_cmp_lg_u32 s{S_WAVE}, 0
s_cbranch_scc1 {sk}
s_cmp_eq_u32 s{S_STEP}, 0
s_cbranch_scc1 {sk}
s_sub_u32 s{S_T0}, s{S_STEP}, 1""")
        signal(vt, S_T0)
        a.label(sk)
    return {"wait_x": wait_x, "post_om": post_om, "exit": "S_exit"}, signal


def gen(cfg):
    a = Asm()
    a(f"""s_cmp_ge_u32 s2, 256
s_cbranch_scc1 L_done
v_lshrrev_b32 v1, 6, v0
v_readfirstlane_b32 s{S_WAVE}, v1""")
    srd(a, S_WS, 96, WS_SIZE)
    srd(a, S_DBG, 88, 256)
    a(f"""s_and_b32 s{S_TEAM}, s2, 7
s_mov_b32 s{S_GRP}, s{S_TEAM}
s_lshr_b32 s{S_J}, s2, 3
s_mov_b32 s{S_BUDGET}, {POLL_BUDGET}
s_mov_b32 s{S_MODE}, 0
s_cmp_ge_u32 s{S_TEAM}, {NT}
s_cbranch_scc1 L_W
s_cmp_ge_u32 s{S_J}, 24
s_cbranch_scc1 L_W
s_cmp_lt_u32 s{S_J}, 8
s_cbranch_scc1 L_S
s_sub_u32 s{S_J}, s{S_J}, 8""")
    v_cu(a, cfg)
    a.label("L_S")
    hooks, signal = chain_hooks(a)
    s_cu(a, cfg, hooks)
    a.label("S_exit")
    a(f"""s_waitcnt vmcnt(0)
s_barrier
s_cmp_lg_u32 s{S_WAVE}, 0
s_cbranch_scc1 L_done
s_mov_b32 s{S_T0}, {NSEG-1}""")
    signal(60, S_T0)
    a("s_endpgm")
    a.label("L_fail")
    a(f"""v_mov_b32 v1, 0xdead
v_mov_b32 v2, 0
s_mov_b64 exec, 1
buffer_store_dword v1, v2, {DBG}, 0 offen offset:8
s_endpgm""")
    a.label("L_W")
    tab = worker(a, cfg)
    a.label("L_done")
    a("s_endpgm")
    body = a.finalize()
    ref = open("cdna_kernels/" + PFX + ".s.ref").read().split("\n")
    hdr = [l for l in ref if l.startswith(";") and "@launch" not in l and "Override" not in l and "grid=ceil" not in l]
    out = "\n".join(hdr) + "\n"
    out += f"; @launch grid=(256,1,1) block=(256,1,1) lds={LDS_BYTES}\n"
    out += f""".amdgcn_target "amdgcn-amd-amdhsa--gfx950"
.text
.globl {NAME}
.p2align 8
.type {NAME},@function
{NAME}:
""" + body
    out += ".p2align 3\n.type W_table,@object\nW_table:\n" + "\n".join(tab) + f"\n.size W_table, {8*len(tab)}\n"
    out += f"""
.section .rodata,"a"
.p2align 6
.amdhsa_kernel {NAME}
  .amdhsa_next_free_vgpr 512
  .amdhsa_next_free_sgpr 102
  .amdhsa_accum_offset 256
  .amdhsa_group_segment_fixed_size 0
  .amdhsa_kernarg_size 104
  .amdhsa_user_sgpr_count 2
  .amdhsa_user_sgpr_kernarg_segment_ptr 1
  .amdhsa_system_sgpr_workgroup_id_x 1
.end_amdhsa_kernel
"""
    return out


def report(cfg, down):
    import numpy as np
    if cfg.get("wstamps"):
        lists = schedule(cfg); MAXL = max(len(l) for l in lists)
        st = down(0x8000000, np.uint32, (8, MAXL + 1, 4)).astype(np.int64)
        t0 = min(st[g, :len(lists[g]), 0].min() for g in range(8))
        names = ["mqkv", "bqkv", "bb", "att", "ob", "oa"]
        for g in cfg.get('show', (0, 4, 7)):
            l = lists[g]; i = 0
            while i < len(l):
                j = i
                key = lambda d: (d[0] & 15, (d[0] >> 4) & 255 if (d[0] & 15) != T_BB else 0)
                while j < len(l) and key(l[j]) == key(l[i]): j += 1
                x = (st[g, i:j, :3] - t0) / 100.0
                print(f"  g{g} {names[l[i][0]&15]:5s} p1={(l[i][0]>>4)&255:2d} n={j-i:2d} deq {x[:,0].min():6.1f}-{x[:,0].max():6.1f} start {x[:,1].min():6.1f}-{x[:,1].max():6.1f} end {x[:,2].min():6.1f}-{x[:,2].max():6.1f} dur {(x[:,2]-x[:,1]).mean():5.1f}")
                i = j
        if cfg.get("stamps"):
            T = down(WS_STAMP, np.uint32, (256, 4, 64, 64))[:, :, :, :8].astype(np.int64)
            s4 = (T[0, 0, :, 4] - t0) / 100.0
            print("  chain OM publish times:", [float(round(x, 1)) for x in s4[[0, 1, 2, 3, 4, 5, 8, 9, 16, 17, 24, 32, 40, 48, 56, 63]]])
            Sw = [g + 8*j for g in range(4) for j in range(8)]
            Vw = [g + 8*j for g in range(4) for j in range(8, 24)]
            print("  S loop first entry", (T[Sw][:, :, 0, 0].min() - t0) / 100.0, (T[Sw][:, :, 0, 0].max() - t0) / 100.0)
            if len(cfg.get("stamp_set", range(8))) > 3:
                for st_ in (21, 35, 58):
                    base = T[Vw][:, :, st_-1, 5].min()
                    tS = (T[Sw][:, :, st_, :6] - base) * 10; tV = (T[Vw][:, :, st_, :6] - base) * 10; tVp = (T[Vw][:, :, st_-1, 5] - base) * 10
                    print("  step", st_, "V pub(prev) min/med/max", tVp.min(), np.median(tVp), tVp.max())
                    for i in cfg["stamp_set"]: print("   S stamp", i, tS[:, :, i].min(), np.median(tS[:, :, i]), tS[:, :, i].max(), "   V stamp", i, tV[:, :, i].min(), np.median(tV[:, :, i]), tV[:, :, i].max())


if __name__ == "__main__":
    cfg = eval(sys.argv[2]) if len(sys.argv) > 2 else {}
    open(sys.argv[1] if len(sys.argv) > 1 else "cdna_kernels/" + PFX + ".s", "w").write(gen(cfg))
```

```python
import re

TRANS = ("v_exp_", "v_log_", "v_rcp_", "v_rsq_", "v_sqrt_", "v_sin_", "v_cos_")
_reg_re = re.compile(r"^(-|abs\()?\|?([vas])(\d+)\|?\)?$")
_rng_re = re.compile(r"^(-|abs\()?\|?([vas])\[(\d+):(\d+)\]\|?\)?$")
SPECIAL = {"vcc": [("s", 106), ("s", 107)], "vcc_lo": [("s", 106)], "vcc_hi": [("s", 107)],
           "exec": [("s", 126), ("s", 127)], "exec_lo": [("s", 126)], "exec_hi": [("s", 127)],
           "m0": [("s", 124)]}
EXEC = set(SPECIAL["exec"])
M0 = set(SPECIAL["m0"])


def regs_of(tok):
    tok = tok.strip()
    if tok in SPECIAL:
        return list(SPECIAL[tok])
    m = _reg_re.match(tok)
    if m:
        return [(m.group(2), int(m.group(3)))]
    m = _rng_re.match(tok)
    if m:
        return [(m.group(2), i) for i in range(int(m.group(3)), int(m.group(4)) + 1)]
    return []


class Inst:
    __slots__ = ("text", "mn", "ops", "mods", "cls", "w", "r", "passes", "srcC", "srcAB", "D", "ws",
                 "trans", "dpp", "perm", "rdlane", "wide_store_data", "ldsdma", "target", "sread_const", "isload")

    def __init__(self, text):
        self.text = text
        t = text.split(";")[0].strip()
        parts = t.split(None, 1)
        mn = parts[0]
        rest = parts[1] if len(parts) > 1 else ""
        rest = re.sub(r"(\w+):\[([^\]]*)\]", lambda m: m.group(1) + ":[" + m.group(2).replace(",", "|") + "]", rest)
        rest = re.sub(r"\(([^)]*)\)", lambda m: "(" + m.group(1).replace(",", "|") + ")", rest)
        ops = [o.strip() for o in rest.split(",")] if rest else []
        mods = []
        if ops:
            last = ops[-1].split()
            ops[-1] = last[0] if last else ""
            mods = last[1:]
        self.mn, self.ops, self.mods = mn, ops, mods
        self.w, self.r = set(), set()
        self.passes = 0
        self.srcC = self.srcAB = self.D = None
        self.ws = 1
        self.trans = self.dpp = self.perm = self.rdlane = self.ldsdma = self.isload = False
        self.wide_store_data = None
        self.target = None
        self.sread_const = set()
        R = [set(regs_of(o)) for o in ops]
        allr = lambda k: set().union(*R[k:]) if len(R) > k else set()
        if mn.startswith("v_mfma") or mn.startswith("v_smfmac"):
            self.cls = "xdl"
            self.passes = 8 if "32x32" in mn else 4
            self.D = R[0]
            self.w = set(R[0])
            if mn.startswith("v_mfma"):
                self.srcAB = R[1] | R[2]
                self.srcC = R[3]
            else:
                self.srcAB = R[1] | R[2] | R[3]
                self.srcC = R[0]
            self.r = self.srcAB | self.srcC
        elif mn.startswith("v_"):
            self.cls = "valu"
            if mn == "v_nop":
                pass
            elif mn.startswith("v_cmpx"):
                self.w = R[0] | EXEC
                self.r = allr(1)
            elif mn.startswith("v_permlane") and "swap" in mn:
                self.w = R[0] | R[1]
                self.r = R[0] | R[1]
                self.perm = True
            elif re.match(r"v_(add|sub|subrev|addc|subb|subbrev)_co_", mn) or mn.startswith("v_div_scale") or mn.startswith("v_mad_u64"):
                self.w = R[0] | R[1]
                self.r = allr(2)
            else:
                self.w = set(R[0])
                self.r = allr(1)
                if re.match(r"v_(fmac|mac|pk_fmac|dot\dc)", mn) or mn.startswith("v_writelane"):
                    self.r |= R[0]
            if mn.startswith("v_readlane") or mn.startswith("v_readfirstlane"):
                self.rdlane = True
            self.trans = mn.startswith(TRANS)
            self.dpp = mn.endswith("_dpp") or any(m.startswith(("row_", "quad_perm", "wave_")) for m in mods)
            if self.dpp:
                self.r |= R[0]
            self.sread_const = {x for x in self.r if x[0] == "s"}
        elif mn.startswith("ds_"):
            self.cls = "ds"
            if mn.startswith(("ds_read", "ds_bpermute", "ds_permute", "ds_swizzle")) or "_rtn" in mn:
                self.w = set(R[0]); self.r = allr(1); self.isload = True
                if "d16" in mn: self.r |= R[0]
            else:
                self.r = allr(0)
            if "addtid" in mn:
                self.r |= M0; self.ldsdma = True
        elif mn.startswith(("global_", "buffer_", "flat_", "scratch_")):
            self.cls = "vmem"
            lds = ("lds" in mods) or ("_lds_" in mn)
            if mn.startswith(("buffer_inv", "buffer_wbl2")):
                pass
            elif "_load" in mn:
                if lds:
                    self.r = allr(0) | M0; self.ldsdma = True
                else:
                    self.w = set(R[0]); self.r = allr(1); self.isload = True
            elif "_store" in mn:
                self.r = allr(0)
                if "x3" in mn or "x4" in mn:
                    self.wide_store_data = R[1] if mn.startswith("global_") else R[0]
            elif "_atomic" in mn:
                self.r = allr(0)
                if "sc0" in mods:
                    self.w = set(R[0]); self.isload = True
        elif mn.startswith("s_"):
            self.cls = "salu"
            if mn == "s_nop":
                self.ws = int(ops[0], 0) + 1
            elif mn.startswith(("s_cbranch", "s_branch")):
                self.target = ops[0]
                if "vcc" in mn: self.r = set(SPECIAL["vcc"])
            elif mn.startswith(("s_cmp", "s_waitcnt", "s_barrier", "s_setprio", "s_sleep", "s_endpgm", "s_bitcmp", "s_setreg")):
                self.r = allr(0)
            else:
                self.w = set(R[0]) if R else set()
                self.r = allr(1)
                if "saveexec" in mn: self.w |= EXEC
        else:
            raise ValueError("unknown instruction: " + text)


def need(p, c):
    n = 0
    if p.cls == "valu":
        vw = {x for x in p.w if x[0] != "s"}
        sw = {x for x in p.w if x[0] == "s"}
        if c.cls == "xdl":
            if vw & c.r: n = max(n, 2)
            if sw & EXEC: n = max(n, 4)
        if c.cls == "valu":
            if (c.dpp or c.perm) and (vw & c.r): n = max(n, 2)
            if c.rdlane and (vw & c.r): n = max(n, 1)
            if p.trans and not c.trans and (vw & c.r): n = max(n, 1)
            if sw & c.sread_const: n = max(n, 4 if (c.rdlane or c.mn.startswith("v_writelane")) else 2)
            if (sw & EXEC) and c.dpp: n = max(n, 5)
            if (sw & EXEC) and (c.perm or c.rdlane): n = max(n, 4)
            if ("sdwa" in p.mn or any(m.startswith("op_sel") or m.startswith("dst_sel") for m in p.mods)) and not p.mn.startswith("v_pk") and (vw & (c.r | c.w)): n = max(n, 1)
            if p.mn.startswith("v_dot") and (vw & (c.r | c.w)): n = max(n, 3)
        if c.cls == "vmem" and (sw & c.r): n = max(n, 5)
        if p.trans and c.cls in ("vmem", "ds") and (vw & c.r): n = max(n, 1)
        if p.mn.startswith("v_dot") and c.cls in ("vmem", "ds", "xdl") and (vw & c.r): n = max(n, 3)
    if p.cls == "xdl":
        big = {4: 8, 8: 12}[p.passes]
        if c.cls == "xdl":
            if p.D & c.srcAB: n = max(n, big)
            if p.D & c.srcC:
                if not (p.D == c.srcC and p.passes == c.passes and ('x16_' in p.mn and '16x16x16' in p.mn) == ('16x16x16' in c.mn)): n = max(n, big - 2)
            elif p.D & c.D: n = max(n, big - 2)
        elif c.cls == "valu":
            if p.D & (c.r | c.w): n = max(n, big)
            if p.srcC & c.w: n = max(n, p.passes - 1)
        elif c.cls in ("vmem", "ds"):
            if p.D & (c.r | c.w): n = max(n, big)
    if p.wide_store_data:
        if p.wide_store_data & c.w and c.cls in ("valu", "xdl"): n = max(n, 2)
        elif p.wide_store_data & c.w: n = max(n, 1)
    if p.cls == "salu" and (p.w & M0) and c.ldsdma: n = max(n, 1)
    return n


WINDOW = 14
TIME_MODEL = True


class Asm:
    def __init__(self):
        self.items = []
        self._uid = 0

    def I(self, text):
        for ln in text.strip().split("\n"):
            ln = ln.strip()
            if not ln or ln.startswith(";"):
                continue
            if ln.endswith(":"):
                self.items.append(("label", ln[:-1]))
            elif ln.startswith("."):
                self.items.append(("raw", ln))
            else:
                self.items.append(Inst(ln))

    __call__ = I

    def label(self, name):
        self.items.append(("label", name))

    def raw(self, text):
        self.items.append(("raw", text))

    def set_filler(self, reg):
        self.items.append(("filler", reg))
        self._filler = reg

    def fill(self, n):
        for _ in range(n):
            self.I(f"v_mov_b32 v{self._filler}, v{self._filler}")

    def defer(self, fn):
        self._deferred = getattr(self, "_deferred", []) + [fn]

    def flush_deferred(self):
        while getattr(self, "_deferred", []):
            d = self._deferred
            self._deferred = []
            for fn in d:
                fn()

    def uid(self, p="L"):
        self._uid += 1
        return f"{p}_{self._uid}"

    @staticmethod
    def _required(hist, c):
        extra = 0
        n = len(hist)
        for pi in range(n - 1, -1, -1):
            p = hist[pi]
            req = need(p, c)
            if not req:
                continue
            t = 0
            occ = lambda x: 2 if "16x16x16" in x.mn else x.passes
            lastx = (0, occ(p)) if p.cls == "xdl" else None
            prev = p
            for q in hist[pi + 1:]:
                t += prev.ws
                if q.cls == "xdl":
                    if lastx is not None and TIME_MODEL:
                        t = max(t, lastx[0] + lastx[1])
                    lastx = (t, occ(q))
                prev = q
            t += prev.ws
            dist = t - 1 if p.ws == 1 else t - p.ws
            if req > dist:
                extra = max(extra, req - dist)
        return extra

    def finalize(self):
        out = []
        hist = []
        filler = None
        for it in self.items:
            if not isinstance(it, Inst) and it[0] == "filler":
                filler = it[1]
                continue
            if isinstance(it, Inst):
                e = self._required(hist, it)
                if e and filler is not None and e > 2:
                    for _ in range(e):
                        nop = Inst(f"v_mov_b32 v{filler}, v{filler}")
                        out.append(nop); hist.append(nop)
                elif e:
                    nop = Inst(f"s_nop {e - 1}")
                    out.append(nop); hist.append(nop)
                out.append(it); hist.append(it)
                if it.mn in ("s_branch", "s_endpgm"):
                    hist = []
                hist = hist[-WINDOW:]
            else:
                out.append(it)
        labels = {it[1]: i for i, it in enumerate(out) if not isinstance(it, Inst) and it[0] == "label"}
        inserts = {}
        for i, it in enumerate(out):
            if isinstance(it, Inst) and it.target is not None:
                if it.target not in labels:
                    raise ValueError("unknown label " + it.target)
                before = []
                j = i
                while j >= 0 and len(before) < WINDOW:
                    if isinstance(out[j], Inst):
                        if j != i and out[j].mn in ("s_branch", "s_endpgm"):
                            break
                        before.append(out[j])
                    j -= 1
                before.reverse()
                h = list(before)
                worst = 0
                j = labels[it.target]
                cnt = 0
                while j < len(out) and cnt < WINDOW:
                    c = out[j]
                    if isinstance(c, Inst):
                        worst = max(worst, self._required(h, c))
                        h.append(c); cnt += c.ws
                        if c.mn in ("s_branch", "s_endpgm"):
                            break
                    j += 1
                if worst:
                    inserts[i] = worst
        res = []
        for i, it in enumerate(out):
            if i in inserts:
                res.append(f"  s_nop {inserts[i] - 1}")
            if isinstance(it, Inst):
                res.append("  " + it.text)
            elif it[0] == "label":
                res.append(it[1] + ":")
            else:
                res.append(it[1])
        return "\n".join(res) + "\n"


def vr(b, n=1, k="v"):
    return f"{k}{b}" if n == 1 else f"{k}[{b}:{b + n - 1}]"


def ar(b, n=1):
    return vr(b, n, "a")


def sr(b, n=1):
    return vr(b, n, "s")
```

```python
from asmgen import *
import chain
from tail import WS_OXF
from chain import (WS_KX, WS_QX, WS_VX, WS_OX, WS_MEMT, WS_VM, WS_OM, WS_PART, WS_STAMP, WS_SIZE, NSEG, NT, NCHAIN,
                   S_WS, S_DBG, S_W0, S_W1, S_W2, S_WAVE, S_TEAM, S_J, S_MODE, S_STEP, S_C,
                   S_T0, S_T1, S_T2, S_T3, S_T4, S_T5, S_OFF_A, S_OFF_B, S_OFF_C, S_OFF_D, S_OFF_E, S_OFF_F,
                   S_BUDGET, S_HEAD, S_TS, POLL_BUDGET, LOG2E, f32bits, srd, store_mode, check_regs, poll, budget_head,
                   stamp, stamp_flush, xlane_reduce, idx_reg, L_MEM, L_QK, L_QX, L_RED, L_W, LDS_BYTES, S_MK0, S_MKC, S_WOFF)

S_NEAR = 81
S_PCUR = 82
JIT = 4
WS = f"s[{S_WS}:{S_WS+3}]"
DBG = f"s[{S_DBG}:{S_DBG+3}]"
OOBV = 0x7f000000


WS_CNT = 0x4C00000
WS_KM = 0x4D00000


def arrive(a, vt):
    skip = a.uid("ar")
    a(f"""s_cmp_lg_u32 s{S_WAVE}, 0
s_cbranch_scc1 {skip}
v_mov_b32 v{vt+2}, 0
s_getreg_b32 s{S_T0}, hwreg(HW_REG_XCC_ID)
s_and_b32 s{S_T0}, s{S_T0}, 7
s_lshl_b32 s{S_T1}, s{S_TEAM}, 3
s_add_u32 s{S_T0}, s{S_T0}, s{S_T1}
s_lshl_b32 s{S_T0}, 1, s{S_T0}
v_mov_b32 v{vt}, s{S_T0}
v_mov_b32 v{vt+1}, 1
s_mov_b64 exec, 1
buffer_atomic_or v{vt}, v{vt+2}, {DBG}, 0 offen offset:4 sc1
s_waitcnt vmcnt(0)
buffer_atomic_add v{vt+1}, v{vt+2}, {DBG}, 0 offen sc1
s_mov_b64 exec, -1
{skip}:""")


def wait_all_arrived(a, vt, t0=S_T0):
    lp, ok = a.uid("sb"), a.uid("sb")
    a(f"v_mov_b32 v{vt+4}, 0")
    a.label(lp)
    budget_head(a)
    a(f"""buffer_load_dwordx4 {vr(vt,4)}, v{vt+4}, {DBG}, 0 offen sc1
s_waitcnt vmcnt(0)
v_readfirstlane_b32 s{t0}, v{vt}
s_nop 3
s_cmp_ge_u32 s{t0}, {NCHAIN}
s_cbranch_scc1 {ok}
s_sleep 8
s_branch {lp}
{ok}:""")


def startup_barrier(a, vt):
    wait_all_arrived(a, vt)
    a(f"""v_readfirstlane_b32 s{S_T1}, v{vt+1}
v_readfirstlane_b32 s{S_NEAR}, v{vt+3}
s_nop 3
s_lshl_b32 s{S_T2}, s{S_TEAM}, 3
s_lshr_b32 s{S_T1}, s{S_T1}, s{S_T2}
s_and_b32 s{S_T1}, s{S_T1}, 0xff
s_bcnt1_i32_b32 s{S_T1}, s{S_T1}
s_cmp_eq_u32 s{S_T1}, 1
s_cselect_b32 s{S_MODE}, 1, 0""")


def sstamp(a, idx, cfg):
    if cfg.get("sst"):
        a(f"s_memrealtime s[{S_TS}:{S_TS+1}]\ns_waitcnt lgkmcnt(0)\ns_mov_b32 s{60+idx}, s{S_TS}")


def probe(a, name, cfg):
    if cfg.get("at") == name: stamp(a, 7, cfg)


def store_mode2(a, instr):
    l1, l2 = a.uid("sm"), a.uid("sm")
    a(f"""s_cbranch_scc0 {l1}
{instr}
{l2}:""")
    a.defer(lambda: a(f"""{l1}:
{instr} sc1
s_branch {l2}"""))


class SPoll:
    def __init__(self, a, loads, regs, vt, cap=1, sleep=0, pre_sleep=0, respin=0):
        self.respin = respin
        self.a, self.loads, self.regs, self.vt, self.cap, self.sleep, self.pre_sleep = a, loads, regs, vt, cap, sleep, pre_sleep
    def prefill(self):
        for b in self.regs:
            for r in range(4): self.a(f"v_mov_b32 v{b+r}, -1")
    def _body(self, f, lp):
        a = self.a
        ok = a.uid("so")
        a.label(lp)
        a.fill(1)
        for x in self.loads[f:]:
            a(x); a.fill(1)
        budget_head(a)
        a(f"s_waitcnt vmcnt({min(63, self.cap * (len(self.loads) - f))})")
        for k in range(self.sleep):
            self.pre(f)
            a.fill(5)
            a(f"s_cbranch_vccz {ok}")
        self.pre(f)
        a.fill(5)
        a(f"s_cbranch_vccnz {lp}")
        a.label(ok)
    def first(self, prefill=True, arm=0, arm_fill=8, arm_cap=3):
        a = self.a
        if prefill: self.prefill()
        if self.pre_sleep: a.fill(self.pre_sleep)
        if arm:
            lp = a.uid("sa")
            if arm < 64: a(f"s_mov_b64 exec, {(1 << arm) - 1:#x}")
            a.label(lp)
            a.fill(1)
            a(self.loads[0])
            budget_head(a)
            a.fill(arm_fill)
            a(f"s_waitcnt vmcnt({arm_cap})")
            self.pre(0)
            a.fill(5)
            a(f"s_cbranch_vccnz {lp}")
            if arm < 64:
                a("s_mov_b64 exec, -1")
            else:
                for x in self.loads[1:]: a(x)
                self.fresh = True
                return
        self._body(0, a.uid("sp"))
    def pre(self, f):
        b, t = self.regs[f], self.vt
        if isinstance(b, list):
            a = self.a
            a(f"v_max3_u32 v{t}, v{b[0]}, v{b[1]}, v{b[2]}")
            rest = b[3:]
            while rest:
                if len(rest) >= 2: a(f"v_max3_u32 v{t}, v{t}, v{rest[0]}, v{rest[1]}"); rest = rest[2:]
                else: a(f"v_max_u32 v{t}, v{t}, v{rest[0]}"); rest = rest[1:]
            a(f"v_cmp_eq_u32 vcc, {chain.SENTINEL[0]}, v{t}")
            return
        self.a(f"v_max3_u32 v{t}, v{b}, v{b+1}, v{b+2}\nv_max_u32 v{t}, v{t}, v{b+3}\nv_cmp_eq_u32 vcc, {chain.SENTINEL[0]}, v{t}")
    def pre3(self, f):
        b, t = self.regs[f], self.vt
        return [f"v_max3_u32 v{t}, v{b}, v{b+1}, v{b+2}", f"v_max_u32 v{t}, v{t}, v{b+3}", f"v_cmp_eq_u32 vcc, {chain.SENTINEL[0]}, v{t}"]
    def br(self, f):
        a = self.a
        lp, back = a.uid("sp"), a.uid("sb")
        a(f"s_cbranch_vccnz {lp}")
        a.label(back)
        def ool():
            a.label(lp)
            for k in range(self.respin):
                self.pre(f); a.fill(5); a(f"s_cbranch_vccz {back}")
            self._body(f, a.uid("sp")); a(f"s_branch {back}")
        a.defer(ool)


def ring_poll(a, loads, regs, vt, consume, join, space=4, on_first=None):
    R = [a.uid("rp") for _ in range(4)]
    C = [a.uid("rc") for _ in range(4)]
    def pre3(g):
        b = regs[g]
        return [f"v_max3_u32 v{vt}, v{b}, v{b+1}, v{b+2}", f"v_max_u32 v{vt}, v{vt}, v{b+3}", f"v_cmp_eq_u32 vcc, {chain.SENTINEL[0]}, v{vt}"]
    for f in range(3):
        a(loads[f]); a.fill(space)
    for f in range(4):
        a.label(R[f])
        a(loads[(f + 3) % 4])
        if f == 0: budget_head(a)
        a("s_waitcnt vmcnt(3)")
        for x in pre3(f): a(x)
        a.fill(5)
        a(f"s_cbranch_vccz {C[f]}" if f < 3 else f"s_cbranch_vccnz {R[0]}")
    def body(f):
        a.label(C[f])
        if on_first: on_first()
        for k in range(4):
            g = (f + k) % 4
            chk = []
            if k < 3:
                n = (g + 1) % 4
                rt, back = a.uid("rr"), a.uid("rb")
                chk = [f"s_waitcnt vmcnt({2 - k})"] + pre3(n) + [f"s_cbranch_vccnz {rt}\n{back}:"]
                def retry(n=n, rt=rt, back=back):
                    a.label(rt)
                    a(loads[n])
                    budget_head(a)
                    a("s_waitcnt vmcnt(0)")
                    for x in pre3(n): a(x)
                    a(f"s_cbranch_vccnz {rt}\ns_branch {back}")
                a.defer(retry)
            consume(g, k, chk)
    body(3)
    for f in range(3):
        def ool(f=f):
            body(f); a(f"s_branch {join}")
        a.defer(ool)
    a.label(join)


class Lds:
    def __init__(self, a):
        self.a = a; self.issued = []; self.done = -1
    def op(self, tag, ins):
        self.a(ins); self.issued.append(tag)
    def wait(self, *tags):
        idx = max((i for i, t in enumerate(self.issued) if t in tags), default=-1)
        if idx > self.done:
            self.a(f"s_waitcnt lgkmcnt({min(15, len(self.issued) - 1 - idx)})")
            self.done = idx
    def wait_all(self):
        self.a("s_waitcnt lgkmcnt(0)"); self.done = len(self.issued) - 1


def s_cu(a, cfg, hooks=None):
    hooks = hooks or {}
    vT, vL16, vGW, vA1, vA2, vA3, vBL, vQKW, vQKR, vIDX, vOXO, vVMO = range(12)
    KX, VX = 12, 44
    P = 52
    ACC, G, BR, AR = P, P + 16, P + 32, P + 56
    NB, NA = 3, 5
    QF, OXR, T12, OMR, KMF, T0 = BR, BR + 16, ACC, ACC + 8, AR, AR + 16
    VM, PX, PM, MI = G, G + 4, G + 8, G + 10
    vLANE, vD, vWT = 124, 125, 126
    cfg = dict(cfg); cfg["stamp_reg"] = MI + 4; cfg["lane4_reg"] = MI + 5

    stream = [4, 8, 12, 5, 9, 13, 6, 10, 14, 7, 11, 15]
    order = [(0, t) for t in range(4)] + [(1, t) for t in range(4)]
    order += [(s, t) for s in (2, 3) for t in (0, 1)]
    for s in stream[:8]: order += [(s, t) for t in range(4)]
    order += [(s, t) for s in stream[8:] for t in (0, 1)]
    q_end = len(order) - 1
    order += [(s, t) for s in (2, 3) for t in (2, 3)]
    order += [(s, t) for s in stream[8:] for t in (2, 3)]
    assert len(order) == 64 and len(set(order)) == 64
    lpos = [round(1 + i * 3.2) for i in range(16)]
    assert lpos[-1] <= q_end
    lds_tiles = [order[p] for p in lpos]
    regmap = {}
    n = 0
    for st in order:
        if st in lds_tiles: continue
        regmap[st] = ("a", n * 8) if n < 32 else ("v", 128 + (n - 32) * 8)
        n += 1

    a(f"""s_lshl_b32 s{S_HEAD}, s{S_TEAM}, 3
s_add_u32 s{S_HEAD}, s{S_HEAD}, s{S_J}""")
    srd(a, S_W0, 16, 1024 * 8192)
    srd(a, S_W1, 24, 1024 * 8192)
    arrive(a, 20)
    a(f"v_and_b32 v{vLANE}, 63, v0")
    a(f"v_lshlrev_b32 v{vL16}, 4, v{vLANE}")
    a(f"""v_lshrrev_b32 v{vT}, 3, v{vLANE}
v_lshlrev_b32 v{vD}, 13, v{vT}
v_and_b32 v{vT}, 7, v{vLANE}
v_lshl_add_u32 v{vD}, v{vT}, 4, v{vD}
s_lshl_b32 s{S_T0}, s{S_HEAD}, 8
s_and_b32 s{S_T1}, s{S_WAVE}, 1
s_lshl_b32 s{S_T1}, s{S_T1}, 7
s_add_u32 s{S_T0}, s{S_T0}, s{S_T1}
v_add_u32 v{vD}, s{S_T0}, v{vD}
s_cmp_ge_u32 s{S_WAVE}, 2
s_cselect_b32 s{S_W2}, s{S_W1}, s{S_W0}
s_cselect_b32 s{S_W2+1}, s{S_W1+1}, s{S_W0+1}
s_mov_b32 s{S_W2+2}, {1024*8192:#x}
s_mov_b32 s{S_W2+3}, 0x20000
s_lshl_b32 s{S_T2}, s{S_WAVE}, 15
s_add_u32 s{S_T2}, s{S_T2}, {L_W:#x}
s_lshl_b32 s{S_T5}, s{S_WAVE}, 21
v_add_u32 v{vBL}, s{S_T2}, v{vL16}""")
    a(f"""v_bfe_u32 v{vT}, v{vLANE}, 5, 1
v_lshlrev_b32 v{vWT}, 11, v{vT}
v_bfe_u32 v{vT}, v{vLANE}, 3, 1
v_lshl_add_u32 v{vWT}, v{vT}, 10, v{vWT}
v_bfe_u32 v{vT}, v{vLANE}, 4, 1
v_lshl_add_u32 v{vWT}, v{vT}, 9, v{vWT}
v_bfe_u32 v{vT}, v{vLANE}, 2, 1
v_lshl_add_u32 v{vWT}, v{vT}, 7, v{vWT}
v_and_b32 v{vT}, 3, v{vLANE}
v_lshl_add_u32 v{vWT}, v{vT}, 3, v{vWT}
v_add_u32 v{vWT}, s{S_T2}, v{vWT}""")
    cnt = {s: sum(1 for x in lds_tiles if x[0] == s) for s in range(16)}
    sorder = sorted([s for s in range(16) if s % 4 < 2], key=lambda s: cnt[s]) + sorted([s for s in range(16) if s % 4 >= 2], key=lambda s: cnt[s])
    hold = list(range(12, 124 - 7, 8))
    held = []
    def issue_slot(n):
        s = sorder[n]
        a(f"s_xor_b32 s{S_T3}, s{S_T5}, {s << 19:#x}")
        for i in range(8):
            a(f"s_add_u32 m0, s{S_T2}, {(n % 4) * 8192 + i * 1024}")
            a(f"s_add_u32 s{S_T4}, s{S_T3}, {i * 8 * 8192:#x}")
            a(f"buffer_load_dwordx4 v{vD}, s[{S_W2}:{S_W2+3}], s{S_T4} offen lds")
    for n in range(4): issue_slot(n)
    lds_addr = {}
    for n in range(16):
        s = sorder[n]
        a(f"s_waitcnt vmcnt({8 * min(3, 15 - n)})")
        for t in range(4):
            if (s, t) in regmap:
                k, b = regmap[(s, t)]
            else:
                k, b = "v", hold.pop(0); held.append(((s, t), b))
            for v in range(4):
                off = (n % 4) * 8192 + (32 * (v // 2) + 2 * (v % 2)) * 128 + t * 32
                a(f"ds_read_b64_tr_b16 {vr(b+2*v,2,k)}, v{vWT} offset:{off}")
            if t == 2: a("s_waitcnt lgkmcnt(4)")
        a("s_waitcnt lgkmcnt(0)")
        if n + 4 < 16:
            issue_slot(n + 4)
        else:
            for i in range(4):
                st, b = held.pop(0)
                off = (n % 4) * 8192 + i * 2048
                lds_addr[st] = off
                a(f"ds_write_b128 v{vBL}, {vr(b,4)} offset:{off}")
                a(f"ds_write_b128 v{vBL}, {vr(b+4,4)} offset:{off+1024}")
                hold.append(b)
            a("s_waitcnt lgkmcnt(0)")
    assert not held
    sstamp(a, 6, cfg)

    a(f"""s_lshl_b32 s{S_T0}, s{S_WAVE}, 12
v_add_u32 v{vGW}, s{S_T0}, v{vL16}""")
    for q in range(1, 4):
        a(f"v_xor_b32 v{vA1+q-1}, {q*4096:#x}, v{vGW}")
    idx_reg(a, vIDX, vLANE, vT)
    a(f"""v_lshrrev_b32 v{vT}, 5, v{vLANE}
v_lshlrev_b32 v{vQKW}, 8, v{vT}
v_and_b32 v{vT}, 15, v{vLANE}
v_lshl_add_u32 v{vQKW}, v{vT}, 4, v{vQKW}
v_bfe_u32 v{vT}, v{vLANE}, 4, 1
v_lshl_add_u32 v{vQKW}, v{vT}, 3, v{vQKW}
s_lshl_b32 s{S_T0}, s{S_WAVE}, 10
v_add_u32 v{vQKW}, s{S_T0}, v{vQKW}
v_lshrrev_b32 v{vT}, 2, v{vLANE}
v_lshlrev_b32 v{vQKR}, 4, v{vT}
v_and_b32 v{vT}, 1, v{vLANE}
v_lshl_add_u32 v{vQKR}, v{vT}, 3, v{vQKR}
s_lshr_b32 s{S_T0}, s{S_WAVE}, 1
s_lshl_b32 s{S_T0}, s{S_T0}, 10
s_and_b32 s{S_T1}, s{S_WAVE}, 1
s_lshl_b32 s{S_T1}, s{S_T1}, 7
s_add_u32 s{S_T0}, s{S_T0}, s{S_T1}
s_add_u32 s{S_WOFF}, s{S_T0}, {WS_OM:#x}
s_lshl_b32 s{S_T0}, s{S_WAVE}, 9
v_add_u32 v{vOXO}, s{S_T0}, v{vQKR}
s_lshl_b32 s{S_T0}, s{S_WAVE}, 9
v_add_u32 v{vVMO}, s{S_T0}, v{vL16}
v_mov_b32 v{vT}, {OOBV:#x}
v_cmp_gt_u32 vcc, 32, v{vLANE}
v_cndmask_b32 v{vVMO}, v{vT}, v{vVMO}, vcc""")
    cbits = f32bits(128 ** -0.5 * LOG2E)
    a(f"s_mov_b32 s{S_C}, {cbits:#x}\ns_mov_b32 s{S_C+1}, {cbits:#x}")
    a(f"""s_mov_b32 s{S_STEP}, 0
s_lshl_b32 s{S_OFF_A}, s{S_TEAM}, 20
s_add_u32 s{S_OFF_A}, s{S_OFF_A}, {WS_MEMT:#x}
s_lshl_b32 s{S_OFF_B}, s{S_HEAD}, 13
s_lshl_b32 s{S_OFF_C}, s{S_HEAD}, 11
s_lshl_b32 s{S_OFF_D}, s{S_WAVE}, 10
s_add_u32 s{S_OFF_D}, s{S_OFF_D}, {WS_KM:#x}""")

    def prefetch_x():
        a(f"""s_lshl_b32 s{S_T2}, s{S_WAVE}, 11
s_add_u32 s{S_T3}, s{S_OFF_B}, s{S_T2}
s_add_u32 s{S_T5}, s{S_T3}, {WS_VX:#x}
s_add_u32 s{S_T3}, s{S_T3}, {WS_KX:#x}
s_add_u32 m0, s{S_T2}, {L_QX:#x}""")
        for f in range(2):
            a(f"buffer_load_dwordx4 v{vL16}, {WS}, s{S_T3} offen offset:{f*1024} sc1 lds")
        for f in range(2):
            a(f"buffer_load_dwordx4 {vr(VX+4*f,4)}, v{vL16}, {WS}, s{S_T5} offen offset:{f*1024} sc1")

    def chores():
        for i in range(16): a(f"v_mov_b32 v{G+i}, -1")
        a(f"""v_lshlrev_b32 v{vT}, 3, v{vL16}
s_min_u32 s{S_T1}, s{S_WAVE}, 2
s_lshl_b32 s{S_T1}, s{S_T1}, 24
s_add_u32 s{S_T1}, s{S_T1}, s{S_OFF_B}
s_add_u32 s{S_T1}, s{S_T1}, {3 << 18:#x}
s_cmp_ge_u32 s{S_STEP}, {NSEG - 3}
s_cselect_b32 s{S_T1}, {OOBV:#x}, s{S_T1}
buffer_load_dword v{AR}, v{vT}, {WS}, s{S_T1} offen sc1
s_xor_b32 s{S_T0}, s{S_OFF_F}, {JIT << 18:#x}
buffer_store_dwordx4 {vr(G,4)}, v{vL16}, {WS}, s{S_T0} offen sc1
s_xor_b32 s{S_T2}, s{S_OFF_C}, {JIT << 16:#x}
s_lshl_b32 s{S_T0}, s{S_T2}, 1
s_add_u32 s{S_T0}, s{S_T0}, s{S_OFF_D}
s_lshl_b32 s{S_T3}, s{S_WAVE}, 9
s_add_u32 s{S_T2}, s{S_T2}, s{S_T3}
s_add_u32 s{S_T1}, s{S_T2}, {WS_VM:#x}
s_add_u32 s{S_T2}, s{S_T2}, {WS_OM:#x}
s_xor_b32 s{S_T3}, s{S_OFF_A}, {JIT << 14:#x}
s_add_u32 s{S_T3}, s{S_T3}, s{S_OFF_E}
s_cmp_eq_u32 s{S_MODE}, 1""")
        l1, l2 = a.uid("ji"), a.uid("ji")
        def jit(fl):
            return f"""buffer_store_dwordx4 {vr(G,4)}, v{vL16}, {WS}, s{S_T0} offen {fl}
s_mov_b32 exec_hi, 0
buffer_store_dwordx4 {vr(G,4)}, v{vL16}, {WS}, s{S_T1} offen {fl}
buffer_store_dwordx4 {vr(G,4)}, v{vL16}, {WS}, s{S_T2} offen {fl}
buffer_store_dwordx4 {vr(G,4)}, v{vL16}, {WS}, s{S_T3} offen {fl}"""
        a(f"s_cbranch_scc0 {l1}\n{jit('')}\n{l2}:\ns_mov_b64 exec, -1")
        a.defer(lambda: a(f"{l1}:\n{jit('sc1')}\ns_branch {l2}"))

    def bload_instrs(i):
        b = BR + 8 * (i % NB)
        off = lds_addr[lds_tiles[i]]
        return [f"ds_read_b128 {vr(b,4)}, v{vBL} offset:{off}", f"ds_read_b128 {vr(b+4,4)}, v{vBL} offset:{off+1024}"]

    def pkfma(r, nm):
        return f"v_pk_fma_f32 {vr(r,2)}, {vr(r,2)}, s[{S_C}:{S_C+1}], {vr(nm,2)} op_sel_hi:[1,1,0] neg_lo:[0,0,1] neg_hi:[0,0,1]"

    def pack_instrs(mat):
        A0, A1 = ACC + 8 * mat, ACC + 8 * mat + 4
        o = [f"v_permlane32_swap_b32 v{A0+r}, v{A1+r}" for r in range(4)]
        o += [f"v_add_f32 v{A0+r}, v{A0+r}, v{A1+r}" for r in range(4)]
        o += [f"v_cvt_pk_bf16_f32 v{A1}, v{A0}, v{A0+1}", f"v_cvt_pk_bf16_f32 v{A1+1}, v{A0+2}, v{A0+3}"]
        return o, f"ds_write_b64 v{vQKW}, {vr(A1,2)} offset:{L_QK + mat*512}"

    def tile_regs(t):
        return T0 if t == 0 else T12 + 4 * (t - 1)

    startup_barrier(a, P)
    a(f"""s_bcnt1_i32_b32 s{S_T0}, s{S_NEAR}
s_cmp_ge_u32 s{S_T0}, 4
s_cselect_b32 s{S_OFF_F}, 0x2000, 0
s_and_b32 s{S_T0}, s{S_J}, 1
s_lshl_b32 s{S_T0}, s{S_T0}, 12
s_add_u32 s{S_OFF_F}, s{S_OFF_F}, s{S_T0}
s_lshr_b32 s{S_T0}, s{S_J}, 1
s_lshl_b32 s{S_T0}, s{S_T0}, 14
s_add_u32 s{S_OFF_F}, s{S_OFF_F}, s{S_T0}
s_lshl_b32 s{S_T0}, s{S_TEAM}, 16
s_add_u32 s{S_OFF_F}, s{S_OFF_F}, s{S_T0}
s_lshl_b32 s{S_T0}, s{S_WAVE}, 10
s_add_u32 s{S_OFF_F}, s{S_OFF_F}, s{S_T0}
s_add_u32 s{S_OFF_F}, s{S_OFF_F}, {WS_PART:#x}
s_lshl_b32 s{S_OFF_E}, s{S_J}, 11
s_lshl_b32 s{S_T0}, s{S_WAVE}, 9
s_add_u32 s{S_OFF_E}, s{S_OFF_E}, s{S_T0}""")
    if "wait_x" in hooks:
        a(f"s_mov_b32 s{S_T0}, 0")
        hooks["wait_x"](vT)
    prefetch_x()
    sstamp(a, 7, cfg)
    a.set_filler(vOXO)
    a.label("S_loop")
    stamp(a, 0, cfg)
    for i in range(NB):
        for x in bload_instrs(i): a(x)
    for i in range(16): a(f"v_mov_b32 v{ACC+i}, 0")
    a(f"s_add_u32 s{S_T5}, s{S_OFF_C}, {WS_VM:#x}")
    a(f"s_add_u32 s{S_T4}, s{S_OFF_C}, s{S_WOFF}")
    a("s_waitcnt vmcnt(2)\ns_barrier")
    chores()
    if cfg.get("s_delay"): a.fill(cfg["s_delay"])
    for f in range(8):
        a(f"ds_read_b128 {vr(KX+4*f,4)}, v{vL16} offset:{L_QX + f*1024}")
    a("s_waitcnt lgkmcnt(0)")

    L = Lds(a)
    aslot = {s: G + 4 * s for s in range(4)}
    pending = []
    free_slots = list(range(NA))
    first_use, last_use = {}, {}
    for i, (s, t) in enumerate(order):
        last_use[s] = i; first_use.setdefault(s, i)
    st = {"nexta": 4, "nextb": NB, "li": 0}
    def aload():
        s = stream[st["nexta"] - 4]; st["nexta"] += 1
        aslot[s] = AR + 4 * free_slots.pop(0)
        pending.append((("A", s), f"ds_read_b128 {vr(aslot[s],4)}, v{vA1 + s // 4 - 1} offset:{L_MEM + (s % 4) * 1024}"))
    def deadline(tag):
        return first_use[tag[1]] if tag[0] == "A" else lpos[tag[1]]
    def flush(n):
        pending.sort(key=lambda p: deadline(p[0]))
        for _ in range(min(n, len(pending))):
            tag, ins = pending.pop(0)
            L.op(tag, ins)
    def mfma(i):
        s, t = order[i]
        needs = [("A", s)]
        isl = (s, t) in lds_addr
        if isl: needs.append(("B", st["li"]))
        while any(tg in needs for tg, _ in pending): flush(1)
        L.wait(*needs)
        B = vr(BR + 8 * (st["li"] % NB), 8) if isl else vr(regmap[(s, t)][1], 8, regmap[(s, t)][0])
        if i >= cfg.get("skip_mfma", 99) and i < 44: pass
        else: a(f"v_smfmac_f32_16x16x64_bf16 {vr(ACC+4*t,4)}, {vr(aslot[s],4)}, {B}, v{vIDX}")
        if isl:
            st["li"] += 1
            if st["nextb"] < 16:
                for x in bload_instrs(st["nextb"]): pending.append((("B", st["nextb"]), x))
                st["nextb"] += 1
        if last_use[s] == i and s >= 4:
            free_slots.append((aslot[s] - AR) // 4)
            if st["nexta"] < 16: aload()

    loads = [f"buffer_load_dwordx4 {vr(G+4*i,4)}, v{vGW}, {WS}, s{S_OFF_A} offen offset:{1024*i} sc1" for i in range(4)]
    o = cfg.get("s_mem", {})
    sp = SPoll(a, loads, [G + 4 * i for i in range(4)], vT, cap=o.get("cap", 3), sleep=o.get("sleep", 3), respin=o.get("respin", 4))
    def gw(f):
        L.op(("GW", f), f"ds_write_b128 v{vGW}, {vr(G+4*f,4)} offset:{L_MEM + 1024*f}")
    if cfg.get("s_sleep"): a(f"s_sleep {cfg['s_sleep']}")
    sp.first(prefill=False, arm=o.get("arm", 64), arm_fill=o.get("afill", 6), arm_cap=o.get("acap", 4))
    if cfg.get("presync"): a("s_waitcnt vmcnt(0)\ns_barrier")
    stamp(a, 1, cfg)
    side = {}
    nflush = {}
    def at(i, fn): side.setdefault(i, []).append(fn)
    def ati(i, ins): at(i, lambda: a(ins))
    at(0, lambda: gw(0))
    for f, p in ((1, 0), (2, 4), (3, 7)):
        for k, ins in enumerate(sp.pre3(f)): ati(p + k if f < 3 else p + min(k, 1), ins)
    at(3, lambda: sp.br(1))
    side[4] = [lambda: gw(1)] + side[4]
    side[7] = [lambda: sp.br(2)] + side[7]
    at(9, lambda: sp.br(3))
    def bar1():
        L.wait(("GW", 1)); a("s_barrier")
        stamp(a, 6, cfg)
        for _ in range(NA): aload()
        flush(2)
    at(cfg.get("bar1", 8), bar1)
    for i in (0, 1, 4, 5, 12, 13, 15, 16): nflush[i] = 0
    at(12, lambda: gw(2))
    at(15, lambda: gw(3))
    def bar2():
        L.wait(("GW", 3)); a("s_barrier")
    bar2_at = 19
    qv, qw = pack_instrs(0)
    p0 = q_end + 2
    for k, ins in enumerate(qv): ati(p0 + (k if k < 4 else 4 + (k - 4) // 2), ins)
    at(p0 + 6, lambda: L.op("QW", qw))
    def q_barrier():
        L.wait("QW"); a("s_waitcnt vmcnt(1)\ns_barrier")
    at(63, q_barrier)
    ati(cfg.get("vm_at", 60), f"buffer_load_dwordx4 {vr(VM,4)}, v{vVMO}, {WS}, s{S_T5} offen sc1")
    for i in range(0, 64):
        mfma(i)
        if i == bar2_at: bar2()
        flush(nflush.get(i, 1))
        for fn in side.get(i, []): fn()
        probe(a, f"m{i}", cfg)
    stamp(a, 2, cfg)
    kv, kw = pack_instrs(1)
    def rd(ks):
        out = []
        for mat, base, tag in ((0, QF, "QF"), (1, KMF, "KM")):
            for u in range(2):
                out.append(((tag, ks), f"ds_read_b64_tr_b16 {vr(base+4*ks+2*u,2)}, v{vQKR} offset:{L_QK + mat*2048 + (32*ks+16*u)*16}"))
        return out
    def sc(ks, t):
        L.wait(("QF", ks), *([("KM", ks)] if t == 0 else []))
        C = "0" if ks == 0 else vr(tile_regs(t), 4)
        A = KMF + 4 * ks if t == 0 else KX + 16 * (t - 1) + 4 * ks
        a(f"v_mfma_f32_16x16x32_bf16 {vr(tile_regs(t),4)}, {vr(A,4)}, {vr(QF+4*ks,4)}, {C}")
    er = rd(0) + rd(2)
    for k in range(4): L.op(*er[k])
    for k, ins in enumerate(kv):
        a(ins)
        if k < 4: L.op(*er[4 + k])
    L.op("KW", kw)
    probe(a, "s_kw", cfg)
    sc(0, 1); sc(0, 2); sc(0, 0); sc(2, 1)
    L.wait("KW"); a("s_barrier")
    probe(a, "s_b", cfg)
    lr = rd(1) + rd(3)
    lr = lr[0:2] + lr[4:6] + lr[2:4] + lr[6:8]
    mx, m2, nm, al = MI, MI + 1, MI + 2, MI + 4
    X = T12
    ONE, LS = OMR, OMR + 4
    vp = SPoll(a, [f"buffer_load_dwordx4 {vr(VM,4)}, v{vVMO}, {WS}, s{S_T5} offen sc1"], [VM], vT, cap=0)
    L.op(*lr[0]); L.op(*lr[1]); L.op(*lr[2]); sc(2, 2)
    L.op(*lr[3]); L.op(*lr[4]); L.op(*lr[5]); sc(2, 0)
    L.op(*lr[6]); L.op(*lr[7])
    probe(a, "s_rd", cfg)
    a(f"buffer_load_dwordx4 {vr(VM,4)}, v{vVMO}, {WS}, s{S_T5} offen sc1")
    for i in range(4): a(f"v_mov_b32 v{ONE+i}, 0x3f803f80")
    a(f"v_mov_b32 v{MI+4}, 0x3f003f00\nv_mov_b32 v{MI+5}, 0x3f003f00")
    HALF = MI + 4
    al = vT
    sc(1, 1); sc(1, 2)
    sc(3, 1); sc(3, 2); sc(1, 0); sc(3, 0)
    a(f"""v_max3_f32 v{mx}, v{X}, v{X+1}, v{X+2}
v_max3_f32 v{m2}, v{X+4}, v{X+5}, v{X+6}
v_max3_f32 v{mx}, v{mx}, v{X+3}, v{X+7}
v_max_f32 v{al}, v{mx}, v{m2}
v_max_f32 v{m2}, v{mx}, v{m2}
v_permlane32_swap_b32 v{al}, v{m2}
v_max3_f32 v{mx}, v{T0}, v{T0+1}, v{T0+2}
v_max3_f32 v{m2}, v{al}, v{m2}, v{T0+3}
v_max_f32 v{al}, v{mx}, v{m2}
v_max_f32 v{mx}, v{mx}, v{m2}
v_permlane16_swap_b32 v{mx}, v{al}
v_max_f32 v{m2}, v{mx}, v{al}""")
    stamp(a, 3, cfg)
    if cfg.get("s_add"): a.fill(cfg["s_add"])
    a(f"v_mul_f32 v{nm}, s{S_C}, v{m2}")
    for i in range(0, 8, 2): a(pkfma(X + i, nm))
    a(pkfma(T0, nm)); a(pkfma(T0 + 2, nm))
    a("s_waitcnt vmcnt(1)")
    chk = vp.pre3(0)
    for i in range(8):
        a(f"v_exp_f32 v{X+i}, v{X+i}")
        if i >= 2 and i % 2 == 0: a(f"v_cvt_pk_bf16_f32 v{PX+i//2-1}, v{X+i-2}, v{X+i-1}")
    a(f"v_exp_f32 v{T0}, v{T0}")
    a(f"v_cvt_pk_bf16_f32 v{PX+3}, v{X+6}, v{X+7}")
    a(f"v_exp_f32 v{T0+1}, v{T0+1}")
    a(f"v_exp_f32 v{T0+2}, v{T0+2}")
    a(f"v_mfma_f32_16x16x32_bf16 {vr(LS,4)}, {vr(ONE,4)}, {vr(PX,4)}, 0")
    a(f"v_exp_f32 v{T0+3}, v{T0+3}")
    a(f"v_mfma_f32_16x16x32_bf16 {vr(OXR,4)}, {vr(VX,4)}, {vr(PX,4)}, 0")
    a(f"v_cvt_pk_bf16_f32 v{PM}, v{T0}, v{T0+1}")
    a(f"v_cvt_pk_bf16_f32 v{PM+1}, v{T0+2}, v{T0+3}")
    a(f"v_mfma_f32_16x16x32_bf16 {vr(OXR+4,4)}, {vr(VX+4,4)}, {vr(PX,4)}, 0")
    a(chk[0]); a(chk[1])
    a(f"v_mfma_f32_16x16x16_bf16 {vr(LS,4)}, {vr(HALF,2)}, {vr(PM,2)}, {vr(LS,4)}")
    a(chk[2])
    probe(a, "s_pv", cfg)
    pv = a.uid("pv")
    a.label(pv)
    a(f"v_mfma_f32_16x16x16_bf16 {vr(X,4)}, {vr(VM,2)}, {vr(PM,2)}, {vr(OXR,4)}")
    a(f"v_mfma_f32_16x16x16_bf16 {vr(X+4,4)}, {vr(VM+2,2)}, {vr(PM,2)}, {vr(OXR+4,4)}")
    rt = a.uid("vr")
    if not cfg.get("novm"): a(f"s_cbranch_vccnz {rt}")
    def vm_retry():
        vp._body(0, rt); a(f"s_branch {pv}")
    a.defer(vm_retry)
    a(f"s_cmp_eq_u32 s{S_MODE}, 1")
    a(f"v_rcp_f32 v{nm}, v{LS}")
    a("s_mov_b32 exec_lo, 0x00ff00ff\ns_mov_b32 exec_hi, 0x00ff00ff")
    for i in range(0, 8, 2):
        a(f"v_pk_mul_f32 {vr(X+i,2)}, {vr(X+i,2)}, {vr(nm,2)} op_sel_hi:[1,0]")
        if i >= 2: a(f"v_cvt_pk_bf16_f32 v{PX+i//2-1}, v{X+i-2}, v{X+i-1}")
    a(f"v_cvt_pk_bf16_f32 v{PX+3}, v{X+6}, v{X+7}")
    store_mode2(a, f"buffer_store_dwordx4 {vr(PX,4)}, v{vL16}, {WS}, s{S_T4} offen")
    a("s_mov_b64 exec, -1")
    stamp(a, 4, cfg)
    for u in range(2):
        a(f"ds_read_b64_tr_b16 {vr(QF+2*u,2)}, v{vOXO} offset:{L_QK + 2048 + 256*u}")
    a(f"""s_lshl_b32 s{S_T0}, s{S_OFF_C}, 1
s_add_u32 s{S_T0}, s{S_T0}, s{S_OFF_D}
s_waitcnt lgkmcnt(0)
s_mov_b32 exec_lo, 0x00ff00ff
s_mov_b32 exec_hi, 0x00ff00ff""")
    store_mode(a, f"buffer_store_dwordx4 {vr(QF,4)}, v{vL16}, {WS}, s{S_T0} offen")
    a("s_mov_b64 exec, -1")
    stamp(a, 5, cfg)
    if cfg.get("stamps"):
        a(f"v_lshrrev_b32 v{MI+5}, 2, v{vL16}")
    stamp_flush(a, cfg)
    a(f"""s_add_u32 s{S_STEP}, s{S_STEP}, 1
s_cmp_eq_u32 s{S_STEP}, {NSEG}
s_cbranch_scc1 L_done
s_add_u32 s{S_OFF_A}, s{S_OFF_A}, 0x4000
s_bitset0_b32 s{S_OFF_A}, 17
s_add_u32 s{S_OFF_C}, s{S_OFF_C}, {32*2048:#x}
s_bitset0_b32 s{S_OFF_C}, 19
s_add_u32 s{S_OFF_F}, s{S_OFF_F}, 0x40000
s_bitset0_b32 s{S_OFF_F}, 21
s_add_u32 s{S_OFF_B}, s{S_OFF_B}, {32*8192:#x}""")
    if "wait_x" in hooks:
        a(f"s_mov_b32 s{S_T0}, s{S_STEP}")
        hooks["wait_x"](vT)
    prefetch_x()
    a("s_branch S_loop")
    a.flush_deferred()
    a.set_filler(None)


def v_cu(a, cfg, hooks=None):
    hooks = hooks or {}
    vLANE, vGOFF, vIDX, vL16, vT, vT2, vVMO, vOMO, vRW, vRR, vPO, vMO, vL4, vD, vI16 = range(0, 15)
    QF, KMF, KXF = 16, 32, 48
    XV, XVM, XT, XP, XPM, XO, XM = 172, 180, 184, 196, 200, 204, 220
    MK = 224
    vKMO, vVMI, vOXO, vRV = 236, 237, 238, 239
    XR_ = 240
    S_XB, S_PREV = 83, 84
    G = 80
    ACC = 96
    OF = 112
    RD = 128
    RP = 144
    MI = 152
    SENT = 160
    RRS = 164
    vTCH = 168
    cfg = dict(cfg); cfg["stamp_reg"] = MI + 5; cfg["lane4_reg"] = vL4
    a(f"""s_lshl_b32 s{S_HEAD}, s{S_TEAM}, 3
s_lshr_b32 s{S_T0}, s{S_J}, 1
s_add_u32 s{S_HEAD}, s{S_HEAD}, s{S_T0}""")
    srd(a, S_W0, 32, 1024 * 8192)
    srd(a, S_W1, 40, 4096 * 2048)
    srd(a, S_W2, 8, 8 * 2048)
    a(f"v_and_b32 v{vLANE}, 63, v0")
    a(f"v_lshlrev_b32 v{vL16}, 4, v{vLANE}")
    a(f"v_lshlrev_b32 v{vL4}, 2, v{vLANE}")
    for i in range(4): a(f"v_mov_b32 v{SENT+i}, -1")
    a(f"""s_lshl_b32 s{S_OFF_A}, s{S_TEAM}, 20
s_add_u32 s{S_OFF_A}, s{S_OFF_A}, {WS_MEMT:#x}
s_lshl_b32 s{S_T0}, s{S_J}, 10
s_add_u32 s{S_OFF_E}, s{S_OFF_A}, s{S_T0}
s_lshl_b32 s{S_OFF_C}, s{S_HEAD}, 11
s_and_b32 s{S_T1}, s{S_J}, 1
s_lshl_b32 s{S_T1}, s{S_T1}, 10
s_add_u32 s{S_OFF_B}, s{S_OFF_C}, s{S_T1}
s_and_b32 s{S_T0}, s{S_J}, 3
s_lshl_b32 s{S_OFF_D}, s{S_T0}, 11
s_lshr_b32 s{S_T0}, s{S_J}, 2
s_lshl_b32 s{S_T0}, s{S_T0}, 14
s_add_u32 s{S_OFF_D}, s{S_OFF_D}, s{S_T0}
s_add_u32 s{S_OFF_D}, s{S_OFF_D}, {WS_PART:#x}
s_lshl_b32 s{S_T0}, s{S_TEAM}, 16
s_add_u32 s{S_OFF_F}, s{S_OFF_D}, s{S_T0}""")

    a(f"""s_lshl_b32 s{S_T0}, s{S_WAVE}, 14
s_add_u32 s{S_T0}, s{S_T0}, s{S_OFF_E}
buffer_store_dwordx4 {vr(SENT,4)}, v{vL16}, {WS}, s{S_T0} offen sc1
s_lshl_b32 s{S_T0}, s{S_WAVE}, 16
s_add_u32 s{S_T0}, s{S_T0}, s{S_OFF_B}
s_add_u32 s{S_T1}, s{S_T0}, {WS_VM:#x}
buffer_store_dwordx4 {vr(SENT,4)}, v{vL16}, {WS}, s{S_T1} offen sc1
s_add_u32 s{S_T1}, s{S_T0}, {WS_OM:#x}
buffer_store_dwordx4 {vr(SENT,4)}, v{vL16}, {WS}, s{S_T1} offen sc1
s_lshl_b32 s{S_T1}, s{S_T0}, 1
s_add_u32 s{S_T1}, s{S_T1}, {WS_KM:#x}
buffer_store_dwordx4 {vr(SENT,4)}, v{vL16}, {WS}, s{S_T1} offen sc1
buffer_store_dwordx4 {vr(SENT,4)}, v{vL16}, {WS}, s{S_T1} offen offset:1024 sc1
s_lshl_b32 s{S_T0}, s{S_WAVE}, 18
s_add_u32 s{S_T0}, s{S_T0}, s{S_OFF_F}
buffer_store_dwordx4 {vr(SENT,4)}, v{vL16}, {WS}, s{S_T0} offen sc1
buffer_store_dwordx4 {vr(SENT,4)}, v{vL16}, {WS}, s{S_T0} offen offset:1024 sc1
s_add_u32 s{S_T0}, s{S_T0}, 0x2000
buffer_store_dwordx4 {vr(SENT,4)}, v{vL16}, {WS}, s{S_T0} offen sc1
buffer_store_dwordx4 {vr(SENT,4)}, v{vL16}, {WS}, s{S_T0} offen offset:1024 sc1""")

    a(f"""v_mov_b32 v{G}, 0
v_mov_b32 v{G+1}, 0
v_mov_b32 v{G+2}, 0
v_mov_b32 v{G+3}, 0
s_lshl_b32 s{S_T0}, s{S_TEAM}, 4
s_add_u32 s{S_T0}, s{S_T0}, s{S_J}
s_lshl_b32 s{S_T0}, s{S_T0}, 9
s_lshl_b32 s{S_T1}, s{S_WAVE}, 7
s_add_u32 s{S_T0}, s{S_T0}, s{S_T1}
s_add_u32 s{S_T0}, s{S_T0}, {WS_CNT:#x}
s_mov_b64 exec, 0xff
buffer_store_dwordx4 {vr(G,4)}, v{vL16}, {WS}, s{S_T0} offen sc1
s_mov_b64 exec, -1""")
    if not cfg.get("noprobe"):
        skip = a.uid("pr")
        a(f"""s_lshl_b32 s{S_T0}, s{S_TEAM}, 4
s_add_u32 s{S_T0}, s{S_T0}, s{S_J}
s_cmp_ge_u32 s{S_T0}, 8
s_cbranch_scc1 {skip}
s_cmp_lg_u32 s{S_WAVE}, 3
s_cbranch_scc1 {skip}
s_add_u32 s{S_T1}, s{S_OFF_F}, {7 << 18:#x}
s_add_u32 s{S_T2}, s{S_T1}, 0x2000
buffer_store_dwordx4 {vr(SENT,4)}, v{vL16}, {WS}, s{S_T1} offen sc1
buffer_store_dwordx4 {vr(SENT,4)}, v{vL16}, {WS}, s{S_T2} offen sc1
v_mov_b32 v{vT2}, 0
s_mov_b32 s60, -1
s_mov_b32 s61, -1
s_waitcnt vmcnt(0)""")
        for smp in range(4):
            for c in range(2):
                a(f"""s_memtime s[62:63]
s_waitcnt lgkmcnt(0)
buffer_load_dword v{vT}, v{vT2}, {WS}, s{S_T1+c} offen offset:{smp*256} sc1
s_waitcnt vmcnt(0)
s_memtime s[64:65]
s_waitcnt lgkmcnt(0)
s_sub_u32 s64, s64, s62
s_min_u32 s{60+c}, s{60+c}, s64""")
        a(f"""s_cmp_lt_u32 s61, s60
s_cselect_b32 s{S_T1}, 1, 0
s_lshl_b32 s{S_T1}, s{S_T1}, s{S_J}
v_mov_b32 v{vT}, s{S_T1}
s_mov_b64 exec, 1
buffer_atomic_or v{vT}, v{vT2}, {DBG}, 0 offen offset:12 sc1
s_mov_b64 exec, -1
{skip}:""")

    a("s_waitcnt vmcnt(0)\ns_barrier")
    arrive(a, G + 4)

    def stage(srdreg, pitch_log2, sbase):
        a(f"""v_lshrrev_b32 v{vT}, 3, v{vLANE}
v_lshlrev_b32 v{vD}, {pitch_log2}, v{vT}
v_and_b32 v{vT}, 7, v{vLANE}
v_lshl_add_u32 v{vD}, v{vT}, 4, v{vD}
s_lshl_b32 s{S_T1}, s{S_WAVE}, {8 + pitch_log2}
s_add_u32 s{S_T1}, s{S_T1}, s{sbase}
s_lshl_b32 s{S_T2}, s{S_WAVE}, 15""")
        for i in range(32):
            a(f"s_add_u32 m0, s{S_T2}, {L_W + i*1024}")
            a(f"s_add_u32 s{S_T4}, s{S_T1}, {(i*8) << pitch_log2:#x}")
            a(f"buffer_load_dwordx4 v{vD}, s[{srdreg}:{srdreg+3}], s{S_T4} offen lds")

    a(f"""s_lshl_b32 s{S_T0}, s{S_HEAD}, 8
s_and_b32 s{S_T1}, s{S_J}, 1
s_lshl_b32 s{S_T1}, s{S_T1}, 7
s_add_u32 s{S_T0}, s{S_T0}, s{S_T1}""")
    stage(S_W0, 13, S_T0)
    if not cfg.get("nowo_pf"):
        a(f"""v_lshrrev_b32 v{vT}, 3, v{vLANE}
v_lshlrev_b32 v{vT2}, 11, v{vT}
v_and_b32 v{vT}, 7, v{vLANE}
v_lshl_add_u32 v{vT2}, v{vT}, 4, v{vT2}
s_lshl_b32 s{S_T0}, s{S_TEAM}, 21
s_lshl_b32 s{S_T1}, s{S_J}, 7
s_add_u32 s{S_T0}, s{S_T0}, s{S_T1}
s_lshl_b32 s{S_T1}, s{S_WAVE}, 19
s_add_u32 s{S_T0}, s{S_T0}, s{S_T1}""")
        for i in range(32):
            if i == 16: a("s_waitcnt vmcnt(40)")
            a(f"s_add_u32 s{S_T4}, s{S_T0}, {(i*8) << 11:#x}")
            a(f"buffer_load_dwordx4 {vr(G,4)}, v{vT2}, s[{S_W1}:{S_W1+3}], s{S_T4} offen")
    vWT = MI
    a(f"""v_bfe_u32 v{vT}, v{vLANE}, 5, 1
v_lshlrev_b32 v{vWT}, 11, v{vT}
v_bfe_u32 v{vT}, v{vLANE}, 3, 1
v_lshl_add_u32 v{vWT}, v{vT}, 10, v{vWT}
v_bfe_u32 v{vT}, v{vLANE}, 4, 1
v_lshl_add_u32 v{vWT}, v{vT}, 9, v{vWT}
v_bfe_u32 v{vT}, v{vLANE}, 2, 1
v_lshl_add_u32 v{vWT}, v{vT}, 7, v{vWT}
v_and_b32 v{vT}, 3, v{vLANE}
v_lshl_add_u32 v{vWT}, v{vT}, 3, v{vWT}
s_lshl_b32 s{S_T0}, s{S_WAVE}, 15
s_add_u32 s{S_T0}, s{S_T0}, {L_W:#x}
v_add_u32 v{vWT}, s{S_T0}, v{vWT}
s_waitcnt vmcnt({0 if cfg.get("nowo_pf") else 32})""")
    for f in range(4):
        for ct in range(4):
            for v in range(4):
                off = f * 8192 + (32 * (v // 2) + 2 * (v % 2)) * 128 + ct * 32
                a(f"ds_read_b64_tr_b16 {ar((f*4+ct)*8+2*v,2)}, v{vWT} offset:{off}")
            a("s_waitcnt lgkmcnt(8)")
    a("s_waitcnt lgkmcnt(0)")
    sstamp(a, 6, cfg)
    a(f"""s_lshl_b32 s{S_T0}, s{S_TEAM}, 21
s_lshl_b32 s{S_T1}, s{S_J}, 7
s_add_u32 s{S_T0}, s{S_T0}, s{S_T1}""")
    a("s_waitcnt vmcnt(24)")
    stage(S_W1, 11, S_T0)
    a(f"""v_bfe_u32 v{vT}, v{vLANE}, 3, 1
v_lshlrev_b32 v{vWT}, 12, v{vT}
v_bfe_u32 v{vT}, v{vLANE}, 4, 1
v_lshl_add_u32 v{vWT}, v{vT}, 11, v{vWT}
v_bfe_u32 v{vT}, v{vLANE}, 5, 1
v_lshl_add_u32 v{vWT}, v{vT}, 9, v{vWT}
v_bfe_u32 v{vT}, v{vLANE}, 2, 1
v_lshl_add_u32 v{vWT}, v{vT}, 7, v{vWT}
v_and_b32 v{vT}, 3, v{vLANE}
v_lshl_add_u32 v{vWT}, v{vT}, 3, v{vWT}
s_lshl_b32 s{S_T0}, s{S_WAVE}, 15
s_add_u32 s{S_T0}, s{S_T0}, {L_W:#x}
v_add_u32 v{vWT}, s{S_T0}, v{vWT}""")
    a(f"""s_lshl_b32 s{S_T0}, s{S_WAVE}, 12
v_add_u32 v{vGOFF}, s{S_T0}, v{vL16}""")
    idx_reg(a, vIDX, vLANE, vT)
    a(f"""v_and_b32 v{vT}, 31, v{vLANE}
v_lshlrev_b32 v{vVMO}, 4, v{vT}
v_lshrrev_b32 v{vT}, 5, v{vLANE}
v_lshl_add_u32 v{vVMO}, v{vT}, 2, v{vVMO}
s_lshr_b32 s{S_T0}, s{S_WAVE}, 1
s_lshl_b32 s{S_T0}, s{S_T0}, 9
s_and_b32 s{S_T1}, s{S_WAVE}, 1
s_lshl_b32 s{S_T1}, s{S_T1}, 3
s_add_u32 s{S_T0}, s{S_T0}, s{S_T1}
v_add_u32 v{vVMO}, s{S_T0}, v{vVMO}
s_lshl_b32 s{S_T0}, s{S_TEAM}, 14
v_add_u32 v{vOMO}, s{S_T0}, v{vGOFF}""")
    a(f"""s_lshl_b32 s{S_T0}, s{S_WAVE}, 11
v_add_u32 v{vRW}, s{S_T0}, v{vL4}""")
    a(f"""v_bfe_u32 v{vT}, v{vLANE}, 2, 2
v_lshlrev_b32 v{vRR}, 9, v{vT}
v_bfe_u32 v{vT}, v{vLANE}, 2, 1
v_lshl_add_u32 v{vRR}, v{vT}, 5, v{vRR}
v_bfe_u32 v{vT}, v{vLANE}, 3, 1
v_lshl_add_u32 v{vRR}, v{vT}, 7, v{vRR}
v_bfe_u32 v{vT}, v{vLANE}, 4, 1
v_lshl_add_u32 v{vRR}, v{vT}, 6, v{vRR}
v_lshrrev_b32 v{vT}, 5, v{vLANE}
v_lshl_add_u32 v{vRR}, v{vT}, 5, v{vRR}
v_and_b32 v{vT}, 3, v{vLANE}
v_lshl_add_u32 v{vRR}, v{vT}, 3, v{vRR}
s_lshr_b32 s{S_T0}, s{S_WAVE}, 1
s_lshl_b32 s{S_T0}, s{S_T0}, 11
s_and_b32 s{S_T1}, s{S_WAVE}, 1
s_lshl_b32 s{S_T1}, s{S_T1}, 7
s_add_u32 s{S_T0}, s{S_T0}, s{S_T1}
v_add_u32 v{vRR}, s{S_T0}, v{vRR}""")
    a(f"""v_and_b32 v{vT}, 31, v{vLANE}
v_lshlrev_b32 v{vRV}, 2, v{vT}
v_lshrrev_b32 v{vT}, 5, v{vLANE}
v_lshl_add_u32 v{vRV}, v{vT}, 10, v{vRV}
v_add_u32 v{vRV}, s{S_T0}, v{vRV}""")
    a(f"""v_and_b32 v{vKMO}, 0x370, v{vL16}
s_lshl_b32 s{S_T0}, s{S_WAVE}, 9
v_add_u32 v{vVMI}, s{S_T0}, v{vL16}
v_mov_b32 v{vT}, {OOBV:#x}
v_cmp_gt_u32 vcc, 32, v{vLANE}
v_cndmask_b32 v{vVMI}, v{vT}, v{vVMI}, vcc
v_mov_b32 v{vT2}, 0xff800000""")
    for r in range(4):
        a(f"v_cndmask_b32 v{MK+r}, v{vT2}, 0, vcc")
    a(f"""v_lshrrev_b32 v{vT}, 4, v{vLANE}
v_lshlrev_b32 v{vT}, 2, v{vT}
v_and_b32 v{vOXO}, 15, v{vLANE}
v_sub_u32 v{vT}, v{vOXO}, v{vT}
s_and_b32 s{S_T0}, s{S_J}, 1
s_lshl_b32 s{S_T0}, s{S_T0}, 4
v_add_u32 v{vT}, s{S_T0}, v{vT}""")
    for t in range(2):
        for r in range(4):
            a(f"v_cmp_le_i32 vcc, {16*t + r}, v{vT}")
            a(f"v_cndmask_b32 v{MK+4+4*t+r}, v{vT2}, 0, vcc")
    a(f"""v_lshlrev_b32 v{vOXO}, 7, v{vOXO}
v_lshrrev_b32 v{vT}, 4, v{vLANE}
v_lshl_add_u32 v{vOXO}, v{vT}, 4, v{vOXO}
s_lshl_b32 s{S_T0}, s{S_T0}, 7
s_lshl_b32 s{S_T1}, s{S_HEAD}, 15
s_add_u32 s{S_T0}, s{S_T0}, s{S_T1}
s_lshr_b32 s{S_T1}, s{S_WAVE}, 1
s_lshl_b32 s{S_T1}, s{S_T1}, 14
s_add_u32 s{S_T0}, s{S_T0}, s{S_T1}
s_and_b32 s{S_T1}, s{S_WAVE}, 1
s_lshl_b32 s{S_T1}, s{S_T1}, 6
s_add_u32 s{S_T0}, s{S_T0}, s{S_T1}
v_add_u32 v{vOXO}, s{S_T0}, v{vOXO}""")
    cbits = f32bits(128 ** -0.5 * LOG2E)
    a(f"s_mov_b32 s{S_C}, {cbits:#x}\ns_mov_b32 s{S_C+1}, {cbits:#x}")
    a(f"""v_lshlrev_b32 v{vPO}, 3, v{vLANE}
s_lshl_b32 s{S_T0}, s{S_WAVE}, 9
v_add_u32 v{vPO}, s{S_T0}, v{vPO}
s_lshl_b32 s{S_T0}, s{S_WAVE}, 8
v_add_u32 v{vMO}, s{S_T0}, v{vL4}
v_add_u32 v{vI16}, s{S_T0}, v{vL16}""")
    M0R = RP
    a(f"""v_bfe_u32 v{vT}, v{vLANE}, 2, 3
v_lshlrev_b32 v{vT2}, 11, v{vT}
v_lshrrev_b32 v{vT}, 5, v{vLANE}
v_lshl_add_u32 v{vT2}, v{vT}, 4, v{vT2}
v_and_b32 v{vT}, 3, v{vLANE}
v_lshl_add_u32 v{vT2}, v{vT}, 2, v{vT2}
s_lshl_b32 s{S_T0}, s{S_J}, 7
s_lshl_b32 s{S_T1}, s{S_WAVE}, 5
s_add_u32 s{S_T0}, s{S_T0}, s{S_T1}
buffer_load_dword v{M0R}, v{vT2}, s[{S_W2}:{S_W2+3}], s{S_T0} offen
s_waitcnt vmcnt(0)""")
    for f in range(4):
        for ct in range(4):
            for v in range(4):
                off = f * 8192 + (8 * (v // 2) + 2 * (v % 2)) * 128 + ct * 32
                a(f"ds_read_b64_tr_b16 {ar(128+(f*4+ct)*8+2*v,2)}, v{vWT} offset:{off}")
            a("s_waitcnt lgkmcnt(8)")
    sstamp(a, 7, cfg)
    a("s_waitcnt lgkmcnt(0)")
    startup_barrier(a, MI + 2)
    XRING = L_W
    KD = QF
    def keep():
        a(f"v_mfma_f32_32x32x16_bf16 {vr(KD,16)}, {vr(SENT,4)}, {vr(SENT,4)}, {vr(KD,16)}")

    def x_dma(seg):
        a(f"""s_lshl_b32 s{S_T0}, s{seg}, 18
s_lshl_b32 s{S_T1}, s{S_HEAD}, 13
s_add_u32 s{S_T0}, s{S_T0}, s{S_T1}
s_cmp_ge_u32 s{seg}, {NSEG}
s_cselect_b32 s{S_T0}, {OOBV:#x}, s{S_T0}
s_and_b32 s{S_T1}, s{seg}, 3
s_lshl_b32 s{S_T1}, s{S_T1}, 14
s_lshl_b32 s{S_T2}, s{S_WAVE}, 10
s_add_u32 s{S_T1}, s{S_T1}, s{S_T2}
s_and_b32 s{S_T3}, s{S_J}, 1
s_lshl_b32 s{S_T3}, s{S_T3}, 12
s_add_u32 s{S_T3}, s{S_T3}, s{S_T2}
s_add_u32 s{S_T3}, s{S_T3}, s{S_T0}
s_add_u32 s{S_T4}, s{S_T3}, {WS_QX:#x}
s_add_u32 m0, s{S_T1}, {XRING:#x}
s_add_u32 s{S_T1}, s{S_T1}, s{S_T2}
buffer_load_dwordx4 v{vL16}, {WS}, s{S_T4} offen sc1 lds
s_add_u32 m0, s{S_T1}, {XRING + 4096:#x}
s_lshl_b32 s{S_T2}, s{S_T2}, 1
s_add_u32 s{S_T4}, s{S_T0}, s{S_T2}
s_add_u32 s{S_T4}, s{S_T4}, {WS_KX:#x}
buffer_load_dwordx4 v{vL16}, {WS}, s{S_T4} offen sc1 lds
buffer_load_dwordx4 v{vL16}, {WS}, s{S_T4} offen offset:1024 sc1 lds""")

    def x_loads(seg_expr):
        a(f"""s_add_u32 s{S_T0}, s{S_STEP}, {seg_expr}
s_lshl_b32 s{S_T0}, s{S_T0}, 18
s_lshl_b32 s{S_T1}, s{S_HEAD}, 13
s_add_u32 s{S_T0}, s{S_T0}, s{S_T1}
s_lshl_b32 s{S_T1}, s{S_WAVE}, 11
s_add_u32 s{S_T0}, s{S_T0}, s{S_T1}
s_add_u32 s{S_T0}, s{S_T0}, {WS_VX:#x}
s_lshl_b32 s85, s{S_PREV}, 1
s_add_u32 s85, s85, {WS_KM:#x}
s_add_u32 s86, s{S_PREV}, {WS_VM:#x}""")
        o = [f"buffer_load_dwordx4 {vr(XV+4*f,4)}, v{vL16}, {WS}, s{S_T0} offen offset:{f*1024} sc1" for f in range(2)]
        return o + km_loads()
    def km_loads():
        return [f"buffer_load_dwordx4 {vr(XVM,4)}, v{vVMI}, {WS}, s86 offen sc1"] + \
               [f"buffer_load_dwordx4 {vr(KMF+4*f,4)}, v{vKMO}, {WS}, s85 offen offset:{f*1024} sc1" for f in range(4)]

    def x_work(seg_expr, mid=None):
        a(f"""s_add_u32 s87, s{S_STEP}, {seg_expr}
s_and_b32 s{S_T1}, s87, 3
s_lshl_b32 s{S_T1}, s{S_T1}, 14
s_add_u32 s{S_T1}, s{S_T1}, {XRING:#x}
v_add_u32 v{XM+3}, s{S_T1}, v{vL16}""")
        for f in range(12):
            d = QF + 4 * f if f < 4 else KXF + 4 * (f - 4)
            a(f"ds_read_b128 {vr(d,4)}, v{XM+3} offset:{f*1024}")
            if f % 2: a.fill(1)
        if mid: mid()
        kp = SPoll(a, ["\n".join(km_loads())], [list(range(KMF, KMF + 16)) + list(range(XVM, XVM + 4))], vT, cap=0)
        kp.pre(0); a.fill(4); kp.br(0)
        a("s_waitcnt lgkmcnt(0)")
        for ks in range(4):
            for t in (1, 2, 0):
                A = KMF + 4 * ks if t == 0 else KXF + 16 * (t - 1) + 4 * ks
                C = vr(MK + 4 * t, 4) if ks == 0 else vr(XT + 4 * t, 4)
                a(f"v_mfma_f32_16x16x32_bf16 {vr(XT+4*t,4)}, {vr(A,4)}, {vr(QF+4*ks,4)}, {C}")
        regs = [XT + 4 * t + r for t in (1, 2, 0) for r in range(4)]
        mx, m2, nm = XM, XM + 1, XM + 2
        a(f"v_max3_f32 v{mx}, v{regs[0]}, v{regs[1]}, v{regs[2]}")
        rest = regs[3:]
        while rest:
            if len(rest) >= 2:
                a(f"v_max3_f32 v{mx}, v{mx}, v{rest[0]}, v{rest[1]}"); rest = rest[2:]
            else:
                a(f"v_max_f32 v{mx}, v{mx}, v{rest[0]}"); rest = rest[1:]
        xlane_reduce(a, "v_max_f32", mx, m2)
        a(f"v_mul_f32 v{nm}, s{S_C}, v{mx}")
        for i in range(0, 12, 2):
            a(f"v_pk_fma_f32 {vr(XT+i,2)}, {vr(XT+i,2)}, s[{S_C}:{S_C+1}], {vr(nm,2)} op_sel_hi:[1,1,0] neg_lo:[0,0,1] neg_hi:[0,0,1]")
        for r in regs: a(f"v_exp_f32 v{r}, v{r}")
        for i in range(4): a(f"v_cvt_pk_bf16_f32 v{XP+i}, v{regs[2*i]}, v{regs[2*i+1]}")
        for i in range(2): a(f"v_cvt_pk_bf16_f32 v{XPM+i}, v{XT+2*i}, v{XT+2*i+1}")
        for i in range(2, 12, 2):
            a(f"v_pk_add_f32 {vr(XT,2)}, {vr(XT,2)}, {vr(XT+i,2)}")
        a(f"v_mfma_f32_16x16x32_bf16 {vr(XO,4)}, {vr(XV,4)}, {vr(XP,4)}, 0")
        a(f"v_add_f32 v{mx}, v{XT}, v{XT+1}")
        a(f"v_mfma_f32_16x16x32_bf16 {vr(XO+4,4)}, {vr(XV+4,4)}, {vr(XP,4)}, 0")
        a(f"v_mfma_f32_16x16x16_bf16 {vr(XO+8,4)}, {vr(XVM,2)}, {vr(XPM,2)}, 0")
        a(f"v_mfma_f32_16x16x16_bf16 {vr(XO+12,4)}, {vr(XVM+2,2)}, {vr(XPM,2)}, 0")
        xlane_reduce(a, "v_add_f32", mx, m2)
        a(f"v_rcp_f32 v{nm}, v{mx}")
        for i in range(0, 8, 2):
            a(f"v_pk_add_f32 {vr(XO+i,2)}, {vr(XO+i,2)}, {vr(XO+8+i,2)}")
        for i in range(0, 8, 2):
            a(f"v_pk_mul_f32 {vr(XO+i,2)}, {vr(XO+i,2)}, {vr(nm,2)} op_sel_hi:[1,0]")
        for i in range(4):
            a(f"v_cvt_pk_bf16_f32 v{XR_+i}, v{XO+2*i}, v{XO+2*i+1}")

    def x_store():
        t0 = cfg.get("tail_seg0", 64)
        l1, l2 = a.uid("ox"), a.uid("ox")
        a(f"""s_cmp_ge_u32 s87, {t0}
s_cbranch_scc1 {l1}
s_lshr_b32 s{S_T2}, s87, 2
s_lshl_b32 s{S_T2}, s{S_T2}, 20
s_and_b32 s{S_T1}, s87, 3
s_lshl_b32 s{S_T1}, s{S_T1}, 12
s_add_u32 s{S_T2}, s{S_T2}, s{S_T1}
s_add_u32 s{S_T2}, s{S_T2}, {WS_OX:#x}
buffer_store_dwordx4 {vr(XR_,4)}, v{vOXO}, {WS}, s{S_T2} offen sc1
{l2}:""")
        a.defer(lambda: a(f"""{l1}:
s_lshl_b32 s{S_T2}, s87, 7
s_lshl_b32 s{S_T1}, s{S_HEAD}, 2
s_add_u32 s{S_T2}, s{S_T2}, s{S_T1}
s_add_u32 s{S_T2}, s{S_T2}, s{S_WAVE}
s_lshl_b32 s{S_T2}, s{S_T2}, 1
s_and_b32 s{S_T1}, s{S_J}, 1
s_add_u32 s{S_T2}, s{S_T2}, s{S_T1}
s_lshl_b32 s{S_T2}, s{S_T2}, 10
s_add_u32 s{S_T2}, s{S_T2}, {WS_OXF:#x}
buffer_store_dwordx4 {vr(XR_,4)}, v{vL16}, {WS}, s{S_T2} offen sc1
s_branch {l2}"""))

    def ksplit(sp, F, wbase, lbase, stamp_idx, o, pad, extra=()):
        extra = list(extra)
        def mm(f, ct):
            a(f"v_smfmac_f32_16x16x64_bf16 {vr(ACC+4*ct,4)}, {vr(F+4*f,4)}, {ar(wbase+(f*4+ct)*8,8)}, v{vIDX}")
        a(f"s_lshl_b32 m0, s{S_WAVE}, 12")
        if o.get("pre", 0): a.fill(o["pre"])
        def consume(g, k, chk):
            mm(g, 0)
            if chk: a(chk[0]); a(chk[1])
            mm(g, 1)
            if chk: a(chk[2])
            mm(g, 2)
            if chk: a(chk[3])
            mm(g, 3)
            if chk: a(chk[4])
        ring_poll(a, sp.loads, sp.regs, vT, consume, a.uid("kj"), space=o.get("space", 4), on_first=lambda: stamp(a, stamp_idx, cfg))
        probe(a, f"k{stamp_idx}f3", cfg)
        sw = lambda p, r: f"v_permlane32_swap_b32 v{ACC+8*p+r}, v{ACC+8*p+4+r}"
        ad = lambda p, r: f"v_add_f32 v{ACC+8*p+r}, v{ACC+8*p+r}, v{ACC+8*p+4+r}"
        wr = lambda p, r: f"ds_write_addtid_b32 v{ACC+8*p+r} offset:{lbase + (p*4+r)*512 + (pad and (r % 2) * 32 + (r // 2) * 128)}"
        for r in range(4): a(sw(0, r))
        for r in range(4): a(ad(0, r))
        for r in range(4):
            a(sw(1, r)); a(wr(0, r))
        for r in range(4): a(ad(1, r))
        keep()
        for r in range(4): a(wr(1, r))
        probe(a, f"k{stamp_idx}w", cfg)
        keep()
        if cfg.get("k3", 0): keep()
        a("s_waitcnt lgkmcnt(0)")
        probe(a, f"k{stamp_idx}l", cfg)
        a("s_barrier")
        probe(a, f"k{stamp_idx}b", cfg)

    def sum4(reads):
        a(reads[0]); a(reads[1]); keep(); a(reads[2]); a(reads[3]); keep()
        a("s_waitcnt lgkmcnt(2)")
        a(f"v_add_f32 v{RD}, v{RD}, v{RD+2}\nv_add_f32 v{RD+1}, v{RD+1}, v{RD+3}")
        a("s_waitcnt lgkmcnt(0)")
        a(f"v_add_f32 v{RD+4}, v{RD+4}, v{RD+6}\nv_add_f32 v{RD+5}, v{RD+5}, v{RD+7}")
        a(f"v_add_f32 v{RD}, v{RD}, v{RD+4}\nv_add_f32 v{RD+1}, v{RD+1}, v{RD+5}")

    a(f"""s_bcnt1_i32_b32 s{S_T0}, s{S_NEAR}
s_cmp_ge_u32 s{S_T0}, 4
s_cselect_b32 s{S_T0}, 0x2000, 0
s_add_u32 s{S_OFF_F}, s{S_OFF_F}, s{S_T0}
s_barrier""")
    a.set_filler(vD)
    store_mode(a, f"buffer_store_dword v{M0R}, v{vMO}, {WS}, s{S_OFF_E} offen")
    a(f"s_mov_b32 s{S_STEP}, 0\ns_mov_b32 s{S_PREV}, s{S_OFF_C}")
    o = cfg.get("v_mem", {})
    gp = SPoll(a, [f"buffer_load_dwordx4 {vr(G+4*i,4)}, v{vGOFF}, {WS}, s{S_OFF_A} offen offset:{1024*i} sc1" for i in range(4)],
               [G + 4 * i for i in range(4)], vT, cap=o.get("cap", 3), sleep=o.get("sleep", 5), pre_sleep=o.get("pre", 0), respin=o.get("respin", 4))
    a("s_waitcnt vmcnt(0)")
    for i in range(16): a(f"v_mov_b32 v{ACC+i}, 0")

    a.label("V_loop")
    stamp(a, 0, cfg)
    ksplit(gp, G, 0, L_MEM, 1, cfg.get('v_mem', {}), 0)
    a(f"s_add_u32 s{S_T0}, s{S_OFF_B}, {WS_VM:#x}\ns_cmp_eq_u32 s{S_MODE}, 1")
    sum4([f"ds_read2st64_b32 {vr(RD+2*src,2)}, v{vRV} offset0:{(L_MEM + src*4096)//256} offset1:{(L_MEM + src*4096)//256 + 2}" for src in range(4)])
    if cfg.get("vm_add"): a.fill(cfg["vm_add"])
    a(f"v_cvt_pk_bf16_f32 v{MI}, v{RD}, v{RD+1}")
    store_mode2(a, f"buffer_store_dword v{MI}, v{vVMO}, {WS}, s{S_T0} offen")
    stamp(a, 2, cfg)
    if "wait_x" in hooks:
        a(f"s_mov_b32 s{S_T0}, s{S_STEP}")
        hooks["wait_x"](vT)
    for x in x_loads(-1 & 0xffffffff): a(x)
    ns = a.uid("ns")
    a(f"s_cmp_lt_u32 s{S_STEP}, 2\ns_cbranch_scc1 {ns}")
    x_store()
    a.label(ns)
    x_dma(S_STEP)
    a(f"""s_cmp_eq_u32 s{S_STEP}, {NSEG-1}
s_cbranch_scc1 V_exit""")
    o = cfg.get("v_om", {})
    op = SPoll(a, [f"buffer_load_dwordx4 {vr(OF+4*f,4)}, v{vOMO}, {WS}, s88 offen offset:{1024*f} sc1" for f in range(4)],
               [OF + 4 * f for f in range(4)], vT, cap=o.get("cap", 3), sleep=o.get("sleep", 5), pre_sleep=o.get("pre", 0), respin=o.get("respin", 4))
    def mid():
        for i in range(16): a(f"v_mov_b32 v{ACC+i}, 0")
        for i in range(6): a(f"v_mov_b32 v{RP+i}, -1")
        a("s_waitcnt vmcnt(4)")
        if "post_vm" in hooks: hooks["post_vm"](MI + 2)
    nx, nx2 = a.uid("nx"), a.uid("nx")
    a(f"s_cmp_lt_u32 s{S_STEP}, 2\ns_cbranch_scc1 {nx}")
    a.label(nx2)
    if cfg.get("nox"):
        a(f"s_sub_u32 s87, s{S_STEP}, 1"); mid()
    else: x_work(-1 & 0xffffffff, mid)
    nx3 = a.uid("nx")
    a.label(nx3)
    def early():
        a(f"""{nx}:
s_waitcnt vmcnt(0)
s_cmp_eq_u32 s{S_STEP}, 1
s_cbranch_scc1 {nx2}""")
        mid()
        a(f"s_branch {nx3}")
    a.defer(early)
    stamp(a, 6, cfg)
    a(f"""s_and_b32 s88, s{S_STEP}, 7
s_lshl_b32 s88, s88, 16
s_add_u32 s{S_PREV}, s88, s{S_OFF_C}
s_add_u32 s88, s88, {WS_OM:#x}
s_mov_b32 s{S_PCUR}, s{S_OFF_F}""")
    for x in range(1, 4):
        a(f"s_xor_b32 s{S_T0+x}, s{S_PCUR}, {x << 16:#x}")
    if cfg.get("v_part", {}).get("pretouch"):
        a("\n".join(f"buffer_load_dwordx2 {vr(RP+2*(x-1),2)}, v{vPO}, {WS}, s{S_T0+x} offen sc1" for x in range(1, 4)))
    ksplit(op, OF, 128, L_RED, 3, cfg.get('v_om', {}), 1)
    if cfg.get("v_part", {}).get("early"):
        a("\n".join(f"buffer_load_dwordx2 {vr(RP+2*(x-1),2)}, v{vPO}, {WS}, s{S_T0+x} offen sc1" for x in range(1, 4)))
    sum4([f"ds_read_b64 {vr(RD+2*src,2)}, v{vRR} offset:{L_RED + src*4096}" for src in range(4)])
    o = cfg.get("v_part", {})
    l3 = "\n".join(f"buffer_load_dwordx2 {vr(RP+2*(x-1),2)}, v{vPO}, {WS}, s{S_T0+x} offen sc1" for x in range(1, 4))
    a(f"buffer_store_dwordx2 {vr(RD,2)}, v{vPO}, {WS}, s{S_PCUR} offen sc1")
    stamp(a, 4, cfg)
    a(f"""s_add_u32 s{S_OFF_E}, s{S_OFF_E}, 0x4000
s_bitset0_b32 s{S_OFF_E}, 17
s_add_u32 s{S_OFF_A}, s{S_OFF_A}, 0x4000
s_bitset0_b32 s{S_OFF_A}, 17
s_add_u32 s{S_OFF_B}, s{S_OFF_B}, 0x10000
s_bitset0_b32 s{S_OFF_B}, 19
s_add_u32 s{S_OFF_F}, s{S_OFF_F}, 0x40000
s_bitset0_b32 s{S_OFF_F}, 21""")
    if o.get("presleep", 3): a(f"s_sleep {o.get('presleep', 3)}")
    for i in range(16): a(f"v_mov_b32 v{ACC+i}, 0")
    pp = SPoll(a, [l3], [list(range(RP, RP + 6))], vT, cap=o.get("cap", 30), sleep=o.get("sleep", 4), pre_sleep=o.get("pre", 12))
    pp.first(prefill=False)
    a(f"""s_cmp_eq_u32 s{S_MODE}, 1
v_pk_add_f32 {vr(RD,2)}, {vr(RD,2)}, {vr(RP,2)}
v_pk_add_f32 {vr(RD+2,2)}, {vr(RP+2,2)}, {vr(RP+4,2)}
v_pk_add_f32 {vr(RD,2)}, {vr(RD,2)}, {vr(RD+2,2)}
v_cvt_pk_bf16_f32 v{MI}, v{RD}, v{RD+1}""")
    store_mode2(a, f"buffer_store_dword v{MI}, v{vMO}, {WS}, s{S_OFF_E} offen")
    stamp(a, 5, cfg)
    stamp_flush(a, cfg)
    a(f"""s_add_u32 s{S_STEP}, s{S_STEP}, 1
s_branch V_loop""")
    a.label("V_exit")
    fin = hooks.get("v_signal", lambda seg: None)
    def mid2():
        a("s_waitcnt vmcnt(0)\ns_barrier")
        if "post_vm" in hooks: hooks["post_vm"](MI + 2)
        fin(NSEG - 3)
    x_work(-1 & 0xffffffff, mid2)
    x_store()
    a(f"""s_and_b32 s88, s{S_STEP}, 7
s_lshl_b32 s88, s88, 16
s_add_u32 s{S_PREV}, s88, s{S_OFF_C}""")
    for x in x_loads(0): a(x)
    def mid3():
        a("s_waitcnt vmcnt(0)\ns_barrier")
        fin(NSEG - 2)
    x_work(0, mid3)
    x_store()
    a("s_waitcnt vmcnt(0)\ns_barrier")
    fin(NSEG - 1)
    a("s_endpgm")
    a.flush_deferred()
    a.set_filler(None)
```

```python
from asmgen import *
from chain import budget_head
WS_OXF = 0x9000000


def tail_task(a, ws, sw, sout, s_wave, s_cs, s_seg0, cnt_base, stride, cfg):
    WS = f"s[{ws}:{ws+3}]"
    VL, L16, ZERO = 0, 4, 6
    vD, vT, vWT, vRW, vRR, vO = 8, 9, 10, 11, 12, 13
    ACC, RD, XR = 16, 32, 64
    NX = 48
    a(f"""v_lshrrev_b32 v{vT}, 2, v{VL}
v_lshlrev_b32 v{vD}, 11, v{vT}
v_and_b32 v{vT}, 3, v{VL}
v_lshl_add_u32 v{vD}, v{vT}, 4, v{vD}
s_lshl_b32 s36, s{s_wave}, 21
s_lshl_b32 s37, s{s_cs}, 6
s_add_u32 s36, s36, s37
s_lshl_b32 s38, s{s_wave}, 15
v_lshrrev_b32 v{vT}, 2, v{VL}
v_lshlrev_b32 v{vWT}, 6, v{vT}
v_and_b32 v{vT}, 3, v{VL}
v_lshl_add_u32 v{vWT}, v{vT}, 3, v{vWT}
v_add_u32 v{vWT}, s38, v{vWT}""")
    for rnd in range(2):
        for i in range(32):
            a(f"s_add_u32 m0, s38, {i*1024}")
            a(f"s_add_u32 s37, s36, {(rnd*512 + i*16) << 11:#x}")
            a(f"buffer_load_dwordx4 v{vD}, s[{sw}:{sw+3}], s37 offen lds")
        for k in range(16):
            a(f"s_waitcnt vmcnt({30 - 2*k})")
            for ct in range(2):
                for u in range(2):
                    a(f"ds_read_b64_tr_b16 {ar(((rnd*16+k)*2+ct)*4+2*u,2)}, v{vWT} offset:{(32*k+16*u)*64 + ct*32}")
            a("s_waitcnt lgkmcnt(8)")
        a("s_waitcnt lgkmcnt(0)")
    a(f"""s_lshl_b32 s36, s{s_wave}, 12
v_add_u32 v{vRW}, s36, v{L16}
s_lshl_b32 s36, s{s_wave}, 10
v_add_u32 v{vRR}, s36, v{L16}
v_and_b32 v{vT}, 15, v{VL}
v_lshlrev_b32 v{vO}, 12, v{vT}
v_lshrrev_b32 v{vT}, 4, v{VL}
v_lshl_add_u32 v{vO}, v{vT}, 3, v{vO}
s_and_b32 s36, s{s_wave}, 1
s_lshl_b32 s36, s36, 16
s_lshr_b32 s37, s{s_wave}, 1
s_lshl_b32 s37, s37, 5
s_add_u32 s36, s36, s37
s_lshl_b32 s37, s{s_cs}, 6
s_add_u32 s36, s36, s37
v_add_u32 v{vO}, s36, v{vO}
s_barrier""")
    lp, dep, go = a.uid("tl"), a.uid("tl"), a.uid("tl")
    a.label(lp)
    a(f"""s_cmp_lg_u32 s{s_wave}, 0
s_cbranch_scc1 {go}
s_lshl_b32 s39, s{s_seg0}, 7
s_add_u32 s39, s39, {cnt_base:#x}
{dep}:""")
    budget_head(a)
    a(f"""buffer_load_dword v{vT}, v{ZERO}, {WS}, s39 offen sc1
s_waitcnt vmcnt(0)
v_readfirstlane_b32 s36, v{vT}
s_nop 3
s_cmp_ge_u32 s36, 32
s_cbranch_scc1 {go}
s_sleep {cfg.get("tail_sleep", 4)}
s_branch {dep}
{go}:
s_barrier
s_lshl_b32 s38, s{s_seg0}, 18
s_lshl_b32 s36, s{s_wave}, 16
s_add_u32 s38, s38, s36
s_add_u32 s38, s38, {WS_OXF:#x}""")
    def ld(i):
        if i % 4 == 0: a(f"s_add_u32 s37, s38, {i*1024:#x}")
        a(f"buffer_load_dwordx4 {vr(XR+4*(i%NX),4)}, v{L16}, {WS}, s37 offen offset:{(i%4)*1024} sc1")
    for i in range(NX): ld(i)
    for i in range(64):
        ks, tt = i // 2, i % 2
        a(f"s_waitcnt vmcnt({min(NX - 1, 63 - i)})")
        for ct in range(2):
            d = ACC + 4 * (ct * 2 + tt)
            C = "0" if ks == 0 else vr(d, 4)
            a(f"v_mfma_f32_16x16x32_bf16 {vr(d,4)}, {ar((ks*2+ct)*4,4)}, {vr(XR+4*(i%NX),4)}, {C}")
        if i + NX < 64: ld(i + NX)
    for t in range(4):
        a(f"ds_write_b128 v{vRW}, {vr(ACC+4*t,4)} offset:{t*1024}")
    a("s_waitcnt lgkmcnt(0)\ns_barrier")
    for src in range(4):
        a(f"ds_read_b128 {vr(RD+4*src,4)}, v{vRR} offset:{src*4096}")
    a("s_waitcnt lgkmcnt(0)")
    for h in (0, 2):
        a(f"v_pk_add_f32 {vr(RD+h,2)}, {vr(RD+h,2)}, {vr(RD+4+h,2)}")
        a(f"v_pk_add_f32 {vr(RD+8+h,2)}, {vr(RD+8+h,2)}, {vr(RD+12+h,2)}")
        a(f"v_pk_add_f32 {vr(RD+h,2)}, {vr(RD+h,2)}, {vr(RD+8+h,2)}")
    a(f"""v_cvt_pk_bf16_f32 v{RD+4}, v{RD}, v{RD+1}
v_cvt_pk_bf16_f32 v{RD+5}, v{RD+2}, v{RD+3}
s_lshl_b32 s36, s{s_seg0}, 17
buffer_store_dwordx2 {vr(RD+4,2)}, v{vO}, s[{sout}:{sout+3}], s36 offen
s_add_u32 s{s_seg0}, s{s_seg0}, {stride}
s_cmp_lt_u32 s{s_seg0}, 64
s_cbranch_scc1 {lp}""")
```

```python
import sys
from asmgen import *
from chain import *
from chain3 import s_cu, v_cu, DBG, WS, WS_CNT, wait_all_arrived
from gemm import *
from tail import tail_task
from battn import WS_QB, WS_KB, WS_VB, WS_OB, battn_task

PFX = "concat_heads__memory_aug_recurrent_mem_tr__mha_block__prompt"
NAME = PFX + "_kernel"
C_Q, C_TK, C_OVF = 32, 40, 42
C_QKV, C_BQKV, C_BAT, C_OXB, C_OXS = 0, 144, 148, 156, 168
NOSIG = 255
S_INIT = 47
T_MQKV, T_BQKV, T_BB, T_ATT, T_OB, T_OA, T_PF, T_TAIL = range(8)
L_TICKET = 0x20000
P_AX, P_WQ, P_WK, P_WV, P_WO, P_BX, P_BW, P_BO = 60, 62, 64, 66, 68, 70, 72, 74
S_D0, S_D1, S_GRP, S_P1, S_P2, S_TYP, S_MAT, S_EB = 84, 85, 86, 87, 88, 89, 93, 92
S_TAB = 90
S_OUT = 24


def desc(typ, p1, p2, wait=None, sig=NOSIG):
    wi, wt = wait if wait else (NOSIG, 0)
    return (typ | p1 << 4 | p2 << 12, wi | wt << 8 | sig << 20)


def ox_counter(blk):
    return (C_OXB + blk, 128) if blk < 12 else None


def schedule(cfg):
    L = [[] for _ in range(8)]
    def mq(rb, x):
        return [desc(T_MQKV, rb, mat * 32 + 8 * x + i, sig=C_QKV + rb * 16 + (8 * x + i) // 2) for i in range(8) for mat in (1, 2, 0)]
    def bq(mb, x):
        return [desc(T_BQKV, mb, mat * 16 + 4 * x + i, sig=C_QKV + (1 + mb) * 16 + 4 * x + i) for i in range(4) for mat in (1, 2, 0)]
    def bb(hg):
        return [desc(T_BB, mb, mat * 4 + hg, sig=C_BQKV + hg) for mat in (1, 2, 0) for mb in range(8)]
    def att(h):
        return [desc(T_ATT, h, qb, wait=(C_BQKV + h // 8, 24), sig=C_BAT + qb) for qb in range(8)]
    def ob(blk):
        return [desc(T_OB, blk, nb, wait=(C_BAT + blk // 2, 32)) for nb in range(8)]
    def oa(blk):
        if blk < 12: w = (C_OXB + blk, 256)
        else: w = (C_OXS + (blk - 12) * 4 + 3, 64)
        return [desc(T_OA, blk, nb, wait=w) for nb in range(8)]
    def bqr(mbs, x):
        cols = list(zip(*[bq(mb, x) for mb in mbs]))
        return [t for c in cols for t in c]
    def pf(mat, pat, off):
        return (T_PF | mat << 4 | pat << 12, off)
    def slowcols(g, mats):
        return [pf(m, 0, (g * 1024 * 2048 + ln * 128) if m == 3 else (16 * g + ln) * 128) for m in mats for ln in (3, 11)]
    if not cfg.get("nopf"):
        for g in range(4):
            L[g] += slowcols(g, (0, 1, 2, 3))
            L[g] += [pf(m, 1, (4 * k + 2) * 64 * 8192 + g * 2048) for k in range(4) for m in (0, 1)]
    allbb = bb(0) + bb(1) + bb(2) + bb(3)
    t0 = cfg["tail_seg0"]
    nblk = t0 // 4
    def tail(cs, k): return desc(T_TAIL, cs, t0 + k)
    nsm = cfg.get("att_small", 4)
    for g in range(4):
        L[g] += bq(1, g)[8:] + allbb[4 * g: 4 * g + 4]
        for k in range(nsm): L[g] += att(4 * k + g)
        L[g] += [tail(8 * g + i, 0) for i in range(8)]
    rest_heads = list(range(4 * nsm, 32))
    restbb = allbb[16:]
    for x in range(4):
        l = L[4 + x]
        mybb = restbb[2 * x: 2 * x + 2] + restbb[8 + 18 * x: 8 + 18 * x + 18]
        l += ([] if cfg.get("nopf") else slowcols(x, (0, 1, 2))) + mq(0, x) + bq(1, x)[:8] + mq(1, x)
        l += mybb[:8] + bqr((2, 3), x)
        l += mybb[8:] + bq(4, x)
        l += oa(x)
        l += bqr((5, 6), x)
        hs = rest_heads[x::4]
        l += att(hs[0])
        l += oa(4 + x) + bq(7, x)
        for h in hs[1:]: l += att(h)
        l += oa(8 + x)
        l += [tail(8 * x + i, 1) for i in range(8)]
        for blk in range(x, 16, 4): l += ob(blk)
        if 12 + x < nblk: l += oa(12 + x)
    return L


def worker(a, cfg):
    big = Gemm(8, 8, 2, cfg.get("big", {}))
    med = Gemm(4, 4, 4, cfg.get("med", {}))
    lists = schedule(cfg)
    MAXL = max(len(l) for l in lists)
    a(f"""v_and_b32 v0, 63, v0
v_lshlrev_b32 v{V_L16}, 4, v0
s_load_dwordx2 s[{P_AX}:{P_AX+1}], s[0:1], 0
s_load_dwordx2 s[{P_WQ}:{P_WQ+1}], s[0:1], 16
s_load_dwordx4 s[{P_WK}:{P_WK+3}], s[0:1], 24
s_load_dwordx2 s[{P_WO}:{P_WO+1}], s[0:1], 40
s_load_dwordx2 s[{P_BX}:{P_BX+1}], s[0:1], 56
s_load_dwordx4 s[{P_BW}:{P_BW+3}], s[0:1], 64
s_getpc_b64 s[{S_TAB}:{S_TAB+1}]
W_pc:
s_add_u32 s{S_TAB}, s{S_TAB}, W_table-W_pc
s_addc_u32 s{S_TAB+1}, s{S_TAB+1}, 0
s_waitcnt lgkmcnt(0)""")
    for p in range(P_AX, P_BO + 2, 2): a(f"s_and_b32 s{p+1}, s{p+1}, 0xffff")
    srd(a, S_OUT, 80, 2048 * 4096)
    row_voff(a)
    a(f"""s_mov_b32 s{G_SX+3}, 0x20000
s_mov_b32 s{G_SW+3}, 0x20000
s_mov_b32 s{G_NXOFF}, {OOB:#x}
s_mov_b32 s{G_NWOFF}, {OOB:#x}
v_mov_b32 v5, {L_TICKET:#x}
v_mov_b32 v6, 0""")
    a(f"s_mov_b32 s{S_INIT}, 0")
    def init_check():
        sk = a.uid("ic")
        a(f"s_cmp_eq_u32 s{S_INIT}, 1\ns_cbranch_scc1 {sk}")
        wait_all_arrived(a, 200, 37)
        a(f"s_mov_b32 s{S_INIT}, 1")
        a.label(sk)
    a.label("W_next")
    a(f"""s_cmp_lg_u32 s{S_WAVE}, 0
s_cbranch_scc1 W_tk
v_mov_b32 v1, 1
s_lshl_b32 s36, s{S_GRP}, 2
s_mov_b64 exec, 1
buffer_atomic_add v1, v6, {DBG}, s36 offen offset:{C_Q*4} sc0 sc1
s_waitcnt vmcnt(0)
ds_write_b32 v5, v1
s_mov_b64 exec, -1
s_waitcnt lgkmcnt(0)
W_tk:
s_barrier
ds_read_b32 v1, v5
s_waitcnt lgkmcnt(0)
v_readfirstlane_b32 s36, v1
s_nop 3
s_min_u32 s36, s36, {MAXL}
s_mul_i32 s37, s{S_GRP}, {MAXL+1}
s_add_u32 s36, s36, s37
s_lshl_b32 s36, s36, 3
s_load_dwordx2 s[{S_D0}:{S_D1}], s[{S_TAB}:{S_TAB+1}], s36
s_waitcnt lgkmcnt(0)
s_and_b32 s{S_TYP}, s{S_D0}, 15
s_cmp_eq_u32 s{S_TYP}, 15
s_cbranch_scc1 L_done
s_bfe_u32 s{S_P1}, s{S_D0}, 0x80004
s_bfe_u32 s{S_P2}, s{S_D0}, 0x8000c""")
    if cfg.get("wstamps"):
        a(f"s_memrealtime s[40:41]\ns_lshr_b32 s46, s36, 3")
    a(f"s_cmp_eq_u32 s{S_TYP}, {T_PF}\ns_cbranch_scc1 W_pf")
    a(f"s_cmp_eq_u32 s{S_TYP}, {T_TAIL}\ns_cbranch_scc1 W_tail")
    a(f"""s_bfe_u32 s38, s{S_D1}, 0xc0008
s_cmp_eq_u32 s38, 0
s_cbranch_scc1 W_go
s_cmp_lg_u32 s{S_WAVE}, 0
s_cbranch_scc1 W_go2
""")
    init_check()
    a(f"""s_and_b32 s39, s{S_D1}, 0xff
s_lshl_b32 s39, s39, 7
s_add_u32 s39, s39, {WS_CNT:#x}
W_dep:""")
    budget_head(a)
    a(f"""buffer_load_dword v1, v6, {WS}, s39 offen sc1
s_waitcnt vmcnt(0)
v_readfirstlane_b32 s36, v1
s_nop 3
s_cmp_ge_u32 s36, s38
s_cbranch_scc1 W_go2
s_sleep {cfg.get("dep_sleep", 16)}
s_branch W_dep
W_go2:
s_barrier
W_go:""")
    if cfg.get("wstamps"):
        a(f"s_memrealtime s[42:43]\ns_waitcnt lgkmcnt(0)")
    a(f"""s_cmp_eq_u32 s{S_TYP}, {T_ATT}
s_cbranch_scc1 W_att
s_cmp_ge_u32 s{S_TYP}, {T_OB}
s_cbranch_scc1 W_out
s_mov_b32 s{G_NST}, 16
s_mov_b32 s{G_PX}, 2048
s_mov_b32 s{G_XSTEP}, 128
s_mov_b32 s{G_SX+2}, {2048*2048:#x}
s_cmp_eq_u32 s{S_TYP}, {T_BB}
s_cbranch_scc1 W_bb""")
    def sel_w():
        a(f"""s_mov_b32 s{G_SX}, s{P_AX}
s_mov_b32 s{G_SX+1}, s{P_AX+1}
s_cmp_eq_u32 s{S_MAT}, 1
s_cselect_b32 s{G_SW}, s{P_WK}, s{P_WQ}
s_cselect_b32 s{G_SW+1}, s{P_WK+1}, s{P_WQ+1}
s_cselect_b32 s36, {WS_KX:#x}, {WS_QX:#x}
s_cmp_eq_u32 s{S_MAT}, 2
s_cselect_b32 s{G_SW}, s{P_WV}, s{G_SW}
s_cselect_b32 s{G_SW+1}, s{P_WV+1}, s{G_SW+1}
s_cselect_b32 s36, {WS_VX:#x}, s36
s_add_u32 s{S_EB}, s{S_EB}, s36
s_mov_b32 s{G_SW+2}, {1024*8192:#x}
s_mov_b32 s{G_PW}, 8192""")
    a(f"""s_cmp_eq_u32 s{S_TYP}, {T_BQKV}
s_cbranch_scc1 W_abig""")
    a(f"""s_lshr_b32 s{S_MAT}, s{S_P2}, 5
s_and_b32 s38, s{S_P2}, 31
s_lshl_b32 s{G_XOFF}, s{S_P1}, 18
s_lshl_b32 s{G_WOFF}, s38, 8
s_lshl_b32 s36, s{S_P1}, 1
s_lshr_b32 s37, s{S_WAVE}, 1
s_add_u32 s36, s36, s37
s_lshl_b32 s{S_EB}, s36, 19
s_lshl_b32 s36, s38, 13
s_add_u32 s{S_EB}, s{S_EB}, s36
s_and_b32 s37, s{S_WAVE}, 1
s_cmp_eq_u32 s{S_MAT}, 2
s_cselect_b32 s36, 12, 11
s_lshl_b32 s37, s37, s36
s_add_u32 s{S_EB}, s{S_EB}, s37""")
    sel_w()
    med.setup(a, S_WAVE, False)
    med.prologue(a, False)
    a(f"s_cmp_eq_u32 s{S_MAT}, 2\ns_cbranch_scc1 W_mv")
    med.tile(a, "W", False)
    med.epilogue(a, med.ent_a_qk(), S_WS, S_EB, V_L16, "sc1")
    a("s_branch W_fin")
    a.label("W_mv")
    med.tile(a, "X", False)
    med.epilogue(a, med.ent_a_v(), S_WS, S_EB, V_L16, "sc1")
    a("s_branch W_fin")
    a.label("W_abig")
    a(f"""s_lshr_b32 s{S_MAT}, s{S_P2}, 4
s_and_b32 s38, s{S_P2}, 15
s_lshl_b32 s{G_XOFF}, s{S_P1}, 19
s_lshl_b32 s{G_WOFF}, s38, 9
s_lshl_b32 s36, s{S_P1}, 1
s_lshr_b32 s37, s{S_WAVE}, 1
s_add_u32 s36, s36, s37
s_lshl_b32 s{S_EB}, s36, 20
s_lshl_b32 s36, s38, 1
s_and_b32 s37, s{S_WAVE}, 1
s_add_u32 s36, s36, s37
s_lshl_b32 s36, s36, 13
s_add_u32 s{S_EB}, s{S_EB}, s36""")
    sel_w()
    a("s_branch W_biggo")
    a.label("W_bb")
    cb = f32bits(32 ** -0.5 * LOG2E)
    a(f"""s_lshr_b32 s{S_MAT}, s{S_P2}, 2
s_lshl_b32 s{G_XOFF}, s{S_P1}, 19
s_lshl_b32 s{G_WOFF}, s{S_P2}, 9
s_and_b32 s36, s{S_P2}, 3
s_lshl_b32 s36, s36, 1
s_and_b32 s37, s{S_WAVE}, 1
s_add_u32 s36, s36, s37
s_lshl_b32 s{S_EB}, s36, 19
s_lshl_b32 s36, s{S_P1}, 1
s_lshr_b32 s37, s{S_WAVE}, 1
s_add_u32 s36, s36, s37
s_lshl_b32 s36, s36, 13
s_add_u32 s{S_EB}, s{S_EB}, s36
s_lshl_b32 s36, s{S_MAT}, 22
s_add_u32 s{S_EB}, s{S_EB}, s36
s_add_u32 s{S_EB}, s{S_EB}, {WS_QB:#x}
s_cmp_eq_u32 s{S_MAT}, 0
s_cselect_b32 s{S_C}, {cb:#x}, 1.0
s_mov_b32 s{S_C+1}, s{S_C}
s_mov_b32 s{G_SX}, s{P_BX}
s_mov_b32 s{G_SX+1}, s{P_BX+1}
s_mov_b32 s{G_SW}, s{P_BW}
s_mov_b32 s{G_SW+1}, s{P_BW+1}
s_mov_b32 s{G_SW+2}, {1024*6144:#x}
s_mov_b32 s{G_PW}, 6144""")
    a.label("W_biggo")
    big.setup(a, S_WAVE, False)
    big.prologue(a, False)
    a(f"s_cmp_eq_u32 s{S_MAT}, 2\ns_cbranch_scc1 W_bv")
    big.tile(a, "W", False)
    a(f"s_cmp_eq_u32 s{S_TYP}, {T_BB}\ns_cbranch_scc1 W_e1")
    big.epilogue(a, big.ent_a_qk(), S_WS, S_EB, V_L16, "sc1")
    a("s_branch W_fin")
    a.label("W_e1")
    big.epilogue(a, big.ent_b_qk(), S_WS, S_EB, V_L16, "sc1", scale=S_C)
    a("s_branch W_fin")
    a.label("W_bv")
    big.tile(a, "X", False)
    a(f"s_cmp_eq_u32 s{S_TYP}, {T_BB}\ns_cbranch_scc1 W_e2")
    big.epilogue(a, big.ent_a_v(), S_WS, S_EB, V_L16, "sc1")
    a("s_branch W_fin")
    a.label("W_e2")
    big.epilogue(a, big.ent_b_v(), S_WS, S_EB, V_L16, "sc1")
    a("s_branch W_fin")
    a.label("W_out")
    a(f"""s_mov_b32 s{G_SX}, s{S_WS}
s_mov_b32 s{G_SX+1}, s{S_WS+1}
s_mov_b32 s{G_SX+2}, s{S_WS+2}
s_mov_b32 s{G_PX}, 128
s_mov_b32 s{G_PW}, 2048
s_mov_b32 s{G_XSTEP}, 0x4000
s_lshl_b32 s{G_WOFF}, s{S_P2}, 8
s_lshl_b32 s36, s{S_P1}, 1
s_lshr_b32 s37, s{S_WAVE}, 1
s_add_u32 s36, s36, s37
s_lshl_b32 s{S_EB}, s36, 18
s_lshl_b32 s36, s{S_P2}, 1
s_and_b32 s37, s{S_WAVE}, 1
s_add_u32 s36, s36, s37
s_lshl_b32 s36, s36, 7
s_add_u32 s{S_EB}, s{S_EB}, s36
s_cmp_eq_u32 s{S_TYP}, {T_OA}
s_cselect_b32 s{G_SW}, s{P_WO}, s{P_BO}
s_cselect_b32 s{G_SW+1}, s{P_WO+1}, s{P_BO+1}
s_mov_b32 s36, {1024*2048:#x}
s_cselect_b32 s{G_SW+2}, {4096*2048:#x}, s36
s_cselect_b32 s{G_NST}, 64, 16
s_cselect_b32 s36, 20, 18
s_mov_b32 s37, {WS_OB:#x}
s_cselect_b32 s37, {WS_OX:#x}, s37
s_cselect_b32 s38, 0, 2048
s_lshl_b32 s{G_XOFF}, s{S_P1}, s36
s_add_u32 s{G_XOFF}, s{G_XOFF}, s37
s_add_u32 s{S_EB}, s{S_EB}, s38""")
    med.setup(a, S_WAVE, True)
    med.prologue(a, True, "sc1")
    med.tile(a, "W", True, "sc1")
    med.epilogue(a, med.ent_row(), S_OUT, S_EB, V_ROW, swap=True)
    a("s_branch W_fin")
    a.label("W_pf")
    a(f"""s_cmp_eq_u32 s{S_P1}, 1
s_cselect_b32 s{G_SW}, s{P_WK}, s{P_WQ}
s_cselect_b32 s{G_SW+1}, s{P_WK+1}, s{P_WQ+1}
s_cmp_eq_u32 s{S_P1}, 2
s_cselect_b32 s{G_SW}, s{P_WV}, s{G_SW}
s_cselect_b32 s{G_SW+1}, s{P_WV+1}, s{G_SW+1}
s_cmp_eq_u32 s{S_P1}, 3
s_cselect_b32 s{G_SW}, s{P_WO}, s{G_SW}
s_cselect_b32 s{G_SW+1}, s{P_WO+1}, s{G_SW+1}
s_cselect_b32 s38, 11, 13
s_mov_b32 s{G_SW+2}, {1024*8192:#x}
s_cmp_eq_u32 s{S_P2}, 1
s_cbranch_scc1 W_pf1
v_lshrrev_b32 v1, 3, v0
s_lshl_b32 s36, s{S_WAVE}, 3
v_add_u32 v1, s36, v1
v_lshlrev_b32 v1, s38, v1
v_and_b32 v2, 7, v0
v_lshl_add_u32 v1, v2, 4, v1
s_lshl_b32 s37, 32, s38
s_mov_b32 s39, 32
s_branch W_pfgo
W_pf1:
s_lshr_b32 s36, s{S_WAVE}, 1
s_lshl_b32 s36, s36, 13
s_and_b32 s37, s{S_WAVE}, 1
s_lshl_b32 s37, s37, 10
s_add_u32 s36, s36, s37
v_add_u32 v1, s36, v{V_L16}
s_mov_b32 s37, 0x4000
s_mov_b32 s39, 64
W_pfgo:
s_mov_b32 s36, s{S_D1}
W_pfl:
buffer_load_dwordx4 v[64:67], v1, s[{G_SW}:{G_SW+3}], s36 offen
s_add_u32 s36, s36, s37
s_waitcnt vmcnt(48)
s_sub_u32 s39, s39, 1
s_cmp_lg_u32 s39, 0
s_cbranch_scc1 W_pfl
s_mov_b32 s{S_D1}, {NOSIG << 20:#x}""")
    if cfg.get("wstamps"):
        a("s_waitcnt lgkmcnt(0)\ns_mov_b32 s42, s40")
    a("s_branch W_fin")
    a.label("W_tail")
    if cfg.get("wstamps"):
        a("s_waitcnt lgkmcnt(0)\ns_mov_b32 s42, s40")
    init_check()
    a(f"""s_mov_b32 s{G_SW}, s{P_WO}
s_mov_b32 s{G_SW+1}, s{P_WO+1}
s_mov_b32 s{G_SW+2}, {4096*2048:#x}""")
    tail_task(a, S_WS, G_SW, S_OUT, S_WAVE, S_P1, S_P2, WS_CNT + (C_OXS - 48) * 128, cfg.get("tail_stride", 2), cfg)
    row_voff(a)
    a("s_branch W_fin")
    a.label("W_att")
    battn_task(a, S_WS, S_WAVE, S_P1, S_P2, cfg, "sc1", "sc1")
    row_voff(a)
    a(f"s_mov_b32 s{G_NXOFF}, {OOB:#x}\ns_mov_b32 s{G_NWOFF}, {OOB:#x}")
    a.label("W_fin")
    a(f"""s_waitcnt vmcnt(0) lgkmcnt(0)
s_barrier
s_cmp_lg_u32 s{S_WAVE}, 0
s_cbranch_scc1 W_next""")
    if cfg.get("wstamps"):
        a(f"""s_memrealtime s[44:45]
s_waitcnt lgkmcnt(0)
v_mov_b32 v200, s40
v_mov_b32 v201, s42
v_mov_b32 v202, s44
v_mov_b32 v203, s2
s_lshl_b32 s36, s46, 4
s_add_u32 s36, s36, {0x8000000:#x}
s_mov_b64 exec, 1
buffer_store_dwordx4 v[200:203], v6, {WS}, s36 offen
s_mov_b64 exec, -1""")
    a(f"""s_lshr_b32 s36, s{S_D1}, 20
s_cmp_eq_u32 s36, {NOSIG}
s_cbranch_scc1 W_next""")
    init_check()
    a(f"""s_lshl_b32 s36, s36, 7
s_add_u32 s36, s36, {WS_CNT:#x}
v_mov_b32 v1, 1
s_mov_b64 exec, 1
buffer_atomic_add v1, v6, {WS}, s36 offen sc1
s_mov_b64 exec, -1
s_branch W_next""")
    tab = []
    for l in lists:
        l = l + [(15, 0)] * (MAXL + 1 - len(l))
        tab += [f".long {d0:#x}, {d1:#x}" for d0, d1 in l]
    return tab


def chain_hooks(a):
    def wait_x(vt):
        sk, lp = a.uid("wx"), a.uid("wx")
        a(f"""s_cmp_ge_u32 s{S_T0}, {NSEG}
s_cbranch_scc1 {sk}
s_cmp_lt_u32 s{S_T0}, 8
s_cselect_b32 s{S_T1}, 3, 7
s_and_b32 s{S_T1}, s{S_T0}, s{S_T1}
s_cmp_lg_u32 s{S_T1}, 0
s_cbranch_scc1 {sk}
s_lshr_b32 s{S_T1}, s{S_T0}, 3
s_add_u32 s{S_T1}, s{S_T1}, 1
s_lshr_b32 s{S_T2}, s{S_T0}, 2
s_cmp_lt_u32 s{S_T0}, 8
s_cselect_b32 s{S_T1}, s{S_T2}, s{S_T1}
s_cselect_b32 s{S_T2}, 6, 3
s_lshl_b32 s{S_T1}, s{S_T1}, 4
s_lshr_b32 s{S_T3}, s{S_HEAD}, 1
s_add_u32 s{S_T1}, s{S_T1}, s{S_T3}
s_lshl_b32 s{S_T1}, s{S_T1}, 7
s_add_u32 s{S_T1}, s{S_T1}, {WS_CNT + C_QKV*128:#x}
{lp}:""")
        budget_head(a)
        a(f"""v_mov_b32 v{vt}, 0
buffer_load_dword v{vt}, v{vt}, {WS}, s{S_T1} offen sc1
s_waitcnt vmcnt(0)
v_readfirstlane_b32 s{S_T3}, v{vt}
s_nop 3
s_cmp_ge_u32 s{S_T3}, s{S_T2}
s_cbranch_scc1 {sk}
s_sleep 4
s_branch {lp}
{sk}:""")
    def signal(vt, seg_sgpr, n=1):
        a(f"""s_lshr_b32 s{S_T1}, s{seg_sgpr}, 2
s_add_u32 s{S_T1}, s{S_T1}, {C_OXB}
s_add_u32 s{S_T2}, s{seg_sgpr}, {C_OXS - 48}
s_cmp_lt_u32 s{seg_sgpr}, 48
s_cselect_b32 s{S_T1}, s{S_T1}, s{S_T2}
s_lshl_b32 s{S_T1}, s{S_T1}, 7
s_add_u32 s{S_T1}, s{S_T1}, {WS_CNT:#x}
v_mov_b32 v{vt}, {n}
v_mov_b32 v{vt+1}, 0
s_mov_b64 exec, 1
buffer_atomic_add v{vt}, v{vt+1}, {WS}, s{S_T1} offen sc1
s_mov_b64 exec, -1""")
    def post_vm(vt):
        sk = a.uid("pv")
        a(f"""s_lshl_b32 s{S_T0}, s{S_J}, 2
s_add_u32 s{S_T0}, s{S_T0}, s{S_WAVE}
s_cmp_lg_u32 s{S_T0}, 3
s_cbranch_scc1 {sk}
s_cmp_lt_u32 s{S_STEP}, 3
s_cbranch_scc1 {sk}
s_sub_u32 s{S_T0}, s{S_STEP}, 3""")
        signal(vt, S_T0, 16)
        a.label(sk)
    def v_signal(seg):
        sk = a.uid("vs")
        a(f"s_cmp_lg_u32 s{S_WAVE}, 0\ns_cbranch_scc1 {sk}\ns_mov_b32 s{S_T0}, {seg}")
        signal(154, S_T0, 1)
        a.label(sk)
    return {"wait_x": wait_x}, {"post_vm": post_vm, "wait_x": wait_x, "v_signal": v_signal}


def role_ticket(a, cfg):
    a(f"""v_mov_b32 v2, 0
s_cmp_lg_u32 s{S_WAVE}, 0
s_cbranch_scc1 R_join
s_getreg_b32 s36, hwreg(HW_REG_XCC_ID)
s_and_b32 s36, s36, {cfg.get("xcc_mask", 7)}
s_and_b32 s37, s36, 3
s_lshl_b32 s37, s37, 3
s_lshl_b32 s38, 1, s37
s_and_b32 s39, s36, 4
v_mov_b32 v3, s38
s_mov_b64 exec, 1
buffer_atomic_add v3, v2, {DBG}, s39 offen offset:{C_TK*4} sc0 sc1
s_waitcnt vmcnt(0)
v_readfirstlane_b32 s38, v3
s_nop 3
s_lshr_b32 s38, s38, s37
s_and_b32 s38, s38, 0xff
s_cmp_lt_u32 s38, 32
s_cbranch_scc1 R_have
v_mov_b32 v3, 1
buffer_atomic_add v3, v2, {DBG}, 0 offen offset:{C_OVF*4} sc0 sc1
s_waitcnt vmcnt(0)
v_readfirstlane_b32 s40, v3
R_wait:""")
    budget_head(a)
    a(f"""s_sleep 8
buffer_load_dword v4, v2, {DBG}, 0 offen offset:{C_TK*4} sc1
buffer_load_dword v5, v2, {DBG}, 0 offen offset:{C_TK*4+4} sc1
s_waitcnt vmcnt(0)
v_readfirstlane_b32 s42, v4
v_readfirstlane_b32 s43, v5
s_nop 3
s_mov_b32 s41, 0""")
    for x in range(8):
        a(f"s_bfe_u32 s37, s{42 + x // 4}, {(8 << 16) | (8 * (x % 4)):#x}\ns_add_u32 s41, s41, s37")
    a("""s_cmp_lt_u32 s41, 256
s_cbranch_scc1 R_wait""")
    for x in range(8):
        a(f"""s_bfe_u32 s37, s{42 + x // 4}, {(8 << 16) | (8 * (x % 4)):#x}
s_min_u32 s37, s37, 32
s_mov_b32 s36, {x}
s_add_u32 s38, s37, s40
s_cmp_lt_u32 s38, 32
s_cbranch_scc1 R_have
s_sub_u32 s40, s38, 32""")
    a(f"""s_branch L_fail
R_have:
s_lshl_b32 s38, s38, 3
s_add_u32 s38, s38, s36
v_mov_b32 v3, s38
ds_write_b32 v2, v3
s_mov_b64 exec, -1
s_waitcnt lgkmcnt(0)
R_join:
s_barrier
ds_read_b32 v3, v2
s_waitcnt lgkmcnt(0)
v_readfirstlane_b32 s2, v3
s_nop 3
s_and_b32 s2, s2, 0xff
s_barrier""")


def gen(cfg):
    cfg.setdefault("tail_seg0", 52)
    a = Asm()
    a(f"""s_cmp_ge_u32 s2, 256
s_cbranch_scc1 L_done
v_lshrrev_b32 v1, 6, v0
v_readfirstlane_b32 s{S_WAVE}, v1""")
    srd(a, S_WS, 96, WS_SIZE)
    srd(a, S_DBG, 88, 256)
    a(f"s_mov_b32 s{S_BUDGET}, {POLL_BUDGET}")
    if not cfg.get("static_roles"): role_ticket(a, cfg)
    a(f"""s_and_b32 s{S_TEAM}, s2, 7
s_mov_b32 s{S_GRP}, s{S_TEAM}
s_lshr_b32 s{S_J}, s2, 3
s_mov_b32 s{S_MODE}, 0
s_cmp_ge_u32 s{S_TEAM}, {NT}
s_cbranch_scc1 L_W
s_cmp_ge_u32 s{S_J}, 24
s_cbranch_scc1 L_W
s_cmp_lt_u32 s{S_J}, 8
s_cbranch_scc1 L_S
s_sub_u32 s{S_J}, s{S_J}, 8""")
    hooks, vhooks = chain_hooks(a)
    v_cu(a, cfg, vhooks)
    a.label("L_S")
    s_cu(a, cfg, hooks)
    a.label("L_fail")
    a(f"""v_mov_b32 v1, 0xdead
v_mov_b32 v2, 0
s_mov_b64 exec, 1
buffer_store_dword v1, v2, {DBG}, 0 offen offset:8
s_endpgm""")
    a.label("L_W")
    tab = worker(a, cfg)
    a.label("L_done")
    a("s_endpgm")
    body = a.finalize()
    ref = open("cdna_kernels/" + PFX + ".s.ref").read().split("\n")
    hdr = [l for l in ref if l.startswith(";") and "@launch" not in l and "Override" not in l and "grid=ceil" not in l]
    out = "\n".join(hdr) + "\n"
    out += f"; @launch grid=(256,1,1) block=(256,1,1) lds={LDS_BYTES}\n"
    out += f""".amdgcn_target "amdgcn-amd-amdhsa--gfx950"
.text
.globl {NAME}
.p2align 8
.type {NAME},@function
{NAME}:
""" + body
    out += ".p2align 3\n.type W_table,@object\nW_table:\n" + "\n".join(tab) + f"\n.size W_table, {8*len(tab)}\n"
    out += f"""
.section .rodata,"a"
.p2align 6
.amdhsa_kernel {NAME}
  .amdhsa_next_free_vgpr 512
  .amdhsa_next_free_sgpr 102
  .amdhsa_accum_offset 256
  .amdhsa_group_segment_fixed_size 0
  .amdhsa_kernarg_size 104
  .amdhsa_user_sgpr_count 2
  .amdhsa_user_sgpr_kernarg_segment_ptr 1
  .amdhsa_system_sgpr_workgroup_id_x 1
.end_amdhsa_kernel
"""
    return out


def report(cfg, down):
    import numpy as np
    if cfg.get("stamps") and not cfg.get("rt"):
        T = down(WS_STAMP, np.uint32, (256, 4, 64, 64))[:, :, :, :8].astype(np.int64)
        ss = list(cfg["stamp_set"])
        Sw = [g + 8*j for g in range(4) for j in range(8)]
        Vw = [g + 8*j for g in range(4) for j in range(8, 24)]
        for nm_, W_ in (("S", Sw), ("V", Vw)):
            t = T[W_][:, :, 12:60]
            d = (t[..., ss[1:]] - t[..., ss[:-1]]) & 0xffffffff
            per = (T[W_][:, :, 13:61, ss[0]] - t[..., ss[0]]) & 0xffffffff
            print("  ", nm_, cfg.get("at"), "deltas med", np.median(d.reshape(-1, d.shape[-1]), 0).tolist(), "min", d.reshape(-1, d.shape[-1]).min(0).tolist(), "period median", np.median(per))
        return
    if cfg.get("hops"):
        T = down(WS_STAMP, np.uint32, (32, 8, 4, 64, 64))[..., :8].astype(np.int64) * 10
        S = T[:8, :4]; V = T[8:24, :4]
        st = np.arange(12, 60)
        q = lambda x: "med %4d p90 %4d max-mean %4d" % (np.median(x), np.percentile(x, 90), x.reshape(-1, x.shape[-1]).max(0).mean())
        prod = V[0::4, :, :, :, 5].max(2)[:, :, st - 1]
        print("   MEMT hop (frag0)  ", q(S[:, :, :, :, 1][..., st] - prod.transpose(1, 0, 2)[None]))
        allp = V[..., 5].max(2).max(0)[:, st - 1]
        print("   last MEMT pub -> S OM pub", q(S[..., 4][..., st] - allp[None, :, None]))
        print("   last MEMT pub -> VM pub", q(V[..., 2][..., st] - allp[None, :, None]))
        prod = S[0::2, :, :2, :, 4].max(2)[:, :, st]
        print("   OM hop (frag0)    ", q(V[..., 3][..., st] - prod.transpose(1, 0, 2)[None]))
        allo = S[..., 4].max(2).max(0)[:, st]
        print("   last OM pub -> PART pub", q(V[..., 4][..., st] - allo[None, :, None]))
        lastp = V[..., 4].max(1)[..., st]
        print("   last PART pub -> MEMT pub", q(V[..., 5][..., st] - lastp[:, None]))
        print("   spread of PART pub across teams", q(V[..., 4].max(1)[..., st] - V[..., 4].min(1)[..., st]))
        print("   spread MEMT pub within team", q(V[..., 5].max(2).max(0)[:, st] - V[..., 5].min(2).min(0)[:, st]))
        print("   spread OM pub within team", q(allo - S[..., 4].min(2).min(0)[:, st]))
        print("   period", (S[0, 0, 0, 60, 4] - S[0, 0, 0, 12, 4]) / 48)
        return
    if cfg.get("wstamps"):
        lists = schedule(cfg); MAXL = max(len(l) for l in lists)
        st = down(0x8000000, np.uint32, (8, MAXL + 1, 4)).astype(np.int64)
        t0 = min(st[g, :len(lists[g]), 0].min() for g in range(8))
        names = ["mqkv", "bqkv", "bb", "att", "ob", "oa", "pf", "tail"]
        for g in cfg.get('show', (0, 4, 7)):
            l = lists[g]; i = 0
            while i < len(l):
                j = i
                key = lambda d: (d[0] & 15, (d[0] >> 4) & 255 if (d[0] & 15) not in (T_BB, T_BQKV, T_PF, T_TAIL) else 0)
                while j < len(l) and key(l[j]) == key(l[i]): j += 1
                x = (st[g, i:j, :3] - t0) / 100.0
                print(f"  g{g} {names[l[i][0]&15]:5s} p1={(l[i][0]>>4)&255:2d} n={j-i:2d} deq {x[:,0].min():6.1f}-{x[:,0].max():6.1f} start {x[:,1].min():6.1f}-{x[:,1].max():6.1f} end {x[:,2].min():6.1f}-{x[:,2].max():6.1f} dur {(x[:,2]-x[:,1]).mean():5.1f}")
                i = j
        if cfg.get("stamps"):
            T = down(WS_STAMP, np.uint32, (256, 4, 64, 64))[:, :, :, :8].astype(np.int64)
            s4 = (T[0, 0, :, 4] - t0) / 100.0
            print("  chain OM publish times:", [float(round(x, 1)) for x in s4[[0, 1, 2, 3, 4, 5, 8, 9, 16, 17, 24, 32, 40, 48, 56, 63]]])
            Sw = [g + 8*j for g in range(4) for j in range(8)]
            Vw = [g + 8*j for g in range(4) for j in range(8, 24)]
            if cfg.get("sst"):
                for nm_, W_ in (("S", Sw), ("V", Vw)):
                    for i in (6, 7):
                        x = (T[W_][:, :, 1, i] - t0) / 100.0
                        print("  startup", nm_, i, x.min(), np.median(x), x.max())
                        np.set_printoptions(linewidth=250, precision=0, suppress=True)
                        if cfg.get('sst') == 2: print(x[:, 0].reshape(4, -1))
            print("  S loop first entry", (T[Sw][:, :, 0, 0].min() - t0) / 100.0, (T[Sw][:, :, 0, 0].max() - t0) / 100.0)
            if len(cfg.get("stamp_set", range(8))) > 3:
                for st_ in (21, 35, 58):
                    base = T[Vw][:, :, st_-1, 5].min()
                    tS = (T[Sw][:, :, st_, :8] - base) * 10; tV = (T[Vw][:, :, st_, :8] - base) * 10; tVp = (T[Vw][:, :, st_-1, 5] - base) * 10
                    print("  step", st_, "V pub(prev) min/med/max", tVp.min(), np.median(tVp), tVp.max())
                    for i in cfg["stamp_set"]: print("   S stamp", i, tS[:, :, i].min(), np.median(tS[:, :, i]), tS[:, :, i].max(), "   V stamp", i, tV[:, :, i].min(), np.median(tV[:, :, i]), tV[:, :, i].max())


if __name__ == "__main__":
    cfg = eval(sys.argv[2]) if len(sys.argv) > 2 else {}
    open(sys.argv[1] if len(sys.argv) > 1 else "cdna_kernels/" + PFX + ".s", "w").write(gen(cfg))
```

```python
from asmgen import *
import chain
from tail import WS_OXF
from chain import (WS_KX, WS_QX, WS_VX, WS_OX, WS_MEMT, WS_VM, WS_OM, WS_PART, WS_STAMP, WS_SIZE, NSEG, NT, NCHAIN,
                   S_WS, S_DBG, S_W0, S_W1, S_W2, S_WAVE, S_TEAM, S_J, S_MODE, S_STEP, S_C,
                   S_T0, S_T1, S_T2, S_T3, S_T4, S_T5, S_OFF_A, S_OFF_B, S_OFF_C, S_OFF_D, S_OFF_E, S_OFF_F,
                   S_BUDGET, S_HEAD, S_TS, POLL_BUDGET, LOG2E, f32bits, srd, store_mode, check_regs, poll, budget_head,
                   stamp, stamp_flush, xlane_reduce, idx_reg, L_MEM, L_QK, L_QX, L_RED, L_W, LDS_BYTES, S_MK0, S_MKC, S_WOFF)

S_NEAR = 81
S_PCUR = 82
JIT = 4
WS = f"s[{S_WS}:{S_WS+3}]"
DBG = f"s[{S_DBG}:{S_DBG+3}]"
OOBV = 0x7f000000


WS_CNT = 0x4C00000


def arrive(a, vt):
    skip = a.uid("ar")
    a(f"""s_cmp_lg_u32 s{S_WAVE}, 0
s_cbranch_scc1 {skip}
v_mov_b32 v{vt+2}, 0
s_getreg_b32 s{S_T0}, hwreg(HW_REG_XCC_ID)
s_and_b32 s{S_T0}, s{S_T0}, 7
s_lshl_b32 s{S_T1}, s{S_TEAM}, 3
s_add_u32 s{S_T0}, s{S_T0}, s{S_T1}
s_lshl_b32 s{S_T0}, 1, s{S_T0}
v_mov_b32 v{vt}, s{S_T0}
v_mov_b32 v{vt+1}, 1
s_mov_b64 exec, 1
buffer_atomic_or v{vt}, v{vt+2}, {DBG}, 0 offen offset:4 sc1
s_waitcnt vmcnt(0)
buffer_atomic_add v{vt+1}, v{vt+2}, {DBG}, 0 offen sc1
s_mov_b64 exec, -1
{skip}:""")


def wait_all_arrived(a, vt, t0=S_T0):
    lp, ok = a.uid("sb"), a.uid("sb")
    a(f"v_mov_b32 v{vt+4}, 0")
    a.label(lp)
    budget_head(a)
    a(f"""buffer_load_dwordx4 {vr(vt,4)}, v{vt+4}, {DBG}, 0 offen sc1
s_waitcnt vmcnt(0)
v_readfirstlane_b32 s{t0}, v{vt}
s_nop 3
s_cmp_ge_u32 s{t0}, {NCHAIN}
s_cbranch_scc1 {ok}
s_sleep 8
s_branch {lp}
{ok}:""")


def startup_barrier(a, vt):
    wait_all_arrived(a, vt)
    a(f"""v_readfirstlane_b32 s{S_T1}, v{vt+1}
v_readfirstlane_b32 s{S_NEAR}, v{vt+3}
s_nop 3
s_lshl_b32 s{S_T2}, s{S_TEAM}, 3
s_lshr_b32 s{S_T1}, s{S_T1}, s{S_T2}
s_and_b32 s{S_T1}, s{S_T1}, 0xff
s_bcnt1_i32_b32 s{S_T1}, s{S_T1}
s_cmp_eq_u32 s{S_T1}, 1
s_cselect_b32 s{S_MODE}, 1, 0""")


def sstamp(a, idx, cfg):
    if cfg.get("sst"):
        a(f"s_memrealtime s[{S_TS}:{S_TS+1}]\ns_waitcnt lgkmcnt(0)\ns_mov_b32 s{60+idx}, s{S_TS}")


def store_mode2(a, instr):
    l1, l2 = a.uid("sm"), a.uid("sm")
    a(f"""s_cbranch_scc0 {l1}
{instr}
{l2}:""")
    a.defer(lambda: a(f"""{l1}:
{instr} sc1
s_branch {l2}"""))


class SPoll:
    def __init__(self, a, loads, regs, vt, cap=1, sleep=0, pre_sleep=0):
        self.a, self.loads, self.regs, self.vt, self.cap, self.sleep, self.pre_sleep = a, loads, regs, vt, cap, sleep, pre_sleep
    def prefill(self):
        for b in self.regs:
            for r in range(4): self.a(f"v_mov_b32 v{b+r}, -1")
    def _body(self, f, lp):
        a = self.a
        ok = a.uid("so")
        a.label(lp)
        a.fill(1)
        for x in self.loads[f:]:
            a(x); a.fill(1)
        budget_head(a)
        a(f"s_waitcnt vmcnt({min(63, self.cap * (len(self.loads) - f))})")
        for k in range(self.sleep):
            self.pre(f)
            a.fill(5)
            a(f"s_cbranch_vccz {ok}")
        self.pre(f)
        a.fill(5)
        a(f"s_cbranch_vccnz {lp}")
        a.label(ok)
    def first(self, prefill=True):
        if prefill: self.prefill()
        if self.pre_sleep: self.a.fill(self.pre_sleep)
        self._body(0, self.a.uid("sp"))
    def pre(self, f):
        b, t = self.regs[f], self.vt
        if isinstance(b, list):
            a = self.a
            a(f"v_max3_u32 v{t}, v{b[0]}, v{b[1]}, v{b[2]}")
            rest = b[3:]
            while rest:
                if len(rest) >= 2: a(f"v_max3_u32 v{t}, v{t}, v{rest[0]}, v{rest[1]}"); rest = rest[2:]
                else: a(f"v_max_u32 v{t}, v{t}, v{rest[0]}"); rest = rest[1:]
            a(f"v_cmp_eq_u32 vcc, {chain.SENTINEL[0]}, v{t}")
            return
        self.a(f"v_max3_u32 v{t}, v{b}, v{b+1}, v{b+2}\nv_max_u32 v{t}, v{t}, v{b+3}\nv_cmp_eq_u32 vcc, {chain.SENTINEL[0]}, v{t}")
    def br(self, f):
        a = self.a
        lp, back = a.uid("sp"), a.uid("sb")
        a(f"s_cbranch_vccnz {lp}")
        a.label(back)
        def ool():
            self._body(f, lp); a(f"s_branch {back}")
        a.defer(ool)


class Lds:
    def __init__(self, a):
        self.a = a; self.issued = []; self.done = -1
    def op(self, tag, ins):
        self.a(ins); self.issued.append(tag)
    def wait(self, *tags):
        idx = max((i for i, t in enumerate(self.issued) if t in tags), default=-1)
        if idx > self.done:
            self.a(f"s_waitcnt lgkmcnt({min(15, len(self.issued) - 1 - idx)})")
            self.done = idx
    def wait_all(self):
        self.a("s_waitcnt lgkmcnt(0)"); self.done = len(self.issued) - 1


def s_cu(a, cfg, hooks=None):
    hooks = hooks or {}
    vT, vL16, vGW, vA1, vA2, vA3, vBL, vQKW, vQKR, vIDX, vOXO, vVMO = range(12)
    KX, VX = 12, 44
    P = 52
    ACC, G, BR, AR = P, P + 16, P + 32, P + 56
    NB, NA = 3, 5
    QF, OXR, T12, OMR, KMF, T0 = BR, BR + 16, ACC, ACC + 8, AR, AR + 16
    VM, PX, PM, MI = G, G + 4, G + 8, G + 10
    vLANE, vD, vWT = 124, 125, 126
    cfg = dict(cfg); cfg["stamp_reg"] = MI + 4; cfg["lane4_reg"] = MI + 5

    stream = [4, 8, 12, 5, 9, 13, 6, 10, 14, 7, 11, 15]
    order = [(0, t) for t in range(4)] + [(1, t) for t in range(4)]
    order += [(s, t) for s in (2, 3) for t in (0, 1)]
    for s in stream[:8]: order += [(s, t) for t in range(4)]
    order += [(s, t) for s in stream[8:] for t in (0, 1)]
    q_end = len(order) - 1
    order += [(s, t) for s in (2, 3) for t in (2, 3)]
    order += [(s, t) for s in stream[8:] for t in (2, 3)]
    assert len(order) == 64 and len(set(order)) == 64
    lpos = [round(1 + i * 3.2) for i in range(16)]
    assert lpos[-1] <= q_end
    lds_tiles = [order[p] for p in lpos]
    regmap = {}
    n = 0
    for st in order:
        if st in lds_tiles: continue
        regmap[st] = ("a", n * 8) if n < 32 else ("v", 128 + (n - 32) * 8)
        n += 1

    a(f"""s_lshl_b32 s{S_HEAD}, s{S_TEAM}, 3
s_add_u32 s{S_HEAD}, s{S_HEAD}, s{S_J}""")
    srd(a, S_W0, 16, 1024 * 8192)
    srd(a, S_W1, 24, 1024 * 8192)
    arrive(a, 20)
    a(f"v_and_b32 v{vLANE}, 63, v0")
    a(f"v_lshlrev_b32 v{vL16}, 4, v{vLANE}")
    a(f"""v_lshrrev_b32 v{vT}, 3, v{vLANE}
v_lshlrev_b32 v{vD}, 13, v{vT}
v_and_b32 v{vT}, 7, v{vLANE}
v_lshl_add_u32 v{vD}, v{vT}, 4, v{vD}
s_lshl_b32 s{S_T0}, s{S_HEAD}, 8
s_and_b32 s{S_T1}, s{S_WAVE}, 1
s_lshl_b32 s{S_T1}, s{S_T1}, 7
s_add_u32 s{S_T0}, s{S_T0}, s{S_T1}
v_add_u32 v{vD}, s{S_T0}, v{vD}
s_cmp_ge_u32 s{S_WAVE}, 2
s_cselect_b32 s{S_W2}, s{S_W1}, s{S_W0}
s_cselect_b32 s{S_W2+1}, s{S_W1+1}, s{S_W0+1}
s_mov_b32 s{S_W2+2}, {1024*8192:#x}
s_mov_b32 s{S_W2+3}, 0x20000
s_lshl_b32 s{S_T2}, s{S_WAVE}, 15
s_add_u32 s{S_T2}, s{S_T2}, {L_W:#x}
s_lshl_b32 s{S_T5}, s{S_WAVE}, 21
v_add_u32 v{vBL}, s{S_T2}, v{vL16}""")
    a(f"""v_bfe_u32 v{vT}, v{vLANE}, 5, 1
v_lshlrev_b32 v{vWT}, 11, v{vT}
v_bfe_u32 v{vT}, v{vLANE}, 3, 1
v_lshl_add_u32 v{vWT}, v{vT}, 10, v{vWT}
v_bfe_u32 v{vT}, v{vLANE}, 4, 1
v_lshl_add_u32 v{vWT}, v{vT}, 9, v{vWT}
v_bfe_u32 v{vT}, v{vLANE}, 2, 1
v_lshl_add_u32 v{vWT}, v{vT}, 7, v{vWT}
v_and_b32 v{vT}, 3, v{vLANE}
v_lshl_add_u32 v{vWT}, v{vT}, 3, v{vWT}
v_add_u32 v{vWT}, s{S_T2}, v{vWT}""")
    cnt = {s: sum(1 for x in lds_tiles if x[0] == s) for s in range(16)}
    sorder = sorted([s for s in range(16) if s % 4 < 2], key=lambda s: cnt[s]) + sorted([s for s in range(16) if s % 4 >= 2], key=lambda s: cnt[s])
    hold = list(range(12, 124 - 7, 8))
    held = []
    def issue_slot(n):
        s = sorder[n]
        a(f"s_xor_b32 s{S_T3}, s{S_T5}, {s << 19:#x}")
        for i in range(8):
            a(f"s_add_u32 m0, s{S_T2}, {(n % 4) * 8192 + i * 1024}")
            a(f"s_add_u32 s{S_T4}, s{S_T3}, {i * 8 * 8192:#x}")
            a(f"buffer_load_dwordx4 v{vD}, s[{S_W2}:{S_W2+3}], s{S_T4} offen lds")
    for n in range(4): issue_slot(n)
    lds_addr = {}
    for n in range(16):
        s = sorder[n]
        a(f"s_waitcnt vmcnt({8 * min(3, 15 - n)})")
        for t in range(4):
            if (s, t) in regmap:
                k, b = regmap[(s, t)]
            else:
                k, b = "v", hold.pop(0); held.append(((s, t), b))
            for v in range(4):
                off = (n % 4) * 8192 + (32 * (v // 2) + 2 * (v % 2)) * 128 + t * 32
                a(f"ds_read_b64_tr_b16 {vr(b+2*v,2,k)}, v{vWT} offset:{off}")
            if t == 2: a("s_waitcnt lgkmcnt(4)")
        a("s_waitcnt lgkmcnt(0)")
        if n + 4 < 16:
            issue_slot(n + 4)
        else:
            for i in range(4):
                st, b = held.pop(0)
                off = (n % 4) * 8192 + i * 2048
                lds_addr[st] = off
                a(f"ds_write_b128 v{vBL}, {vr(b,4)} offset:{off}")
                a(f"ds_write_b128 v{vBL}, {vr(b+4,4)} offset:{off+1024}")
                hold.append(b)
            a("s_waitcnt lgkmcnt(0)")
    assert not held
    sstamp(a, 6, cfg)

    a(f"""s_lshl_b32 s{S_T0}, s{S_WAVE}, 12
v_add_u32 v{vGW}, s{S_T0}, v{vL16}""")
    for q in range(1, 4):
        a(f"v_xor_b32 v{vA1+q-1}, {q*4096:#x}, v{vGW}")
    idx_reg(a, vIDX, vLANE, vT)
    a(f"""v_lshrrev_b32 v{vT}, 5, v{vLANE}
v_lshlrev_b32 v{vQKW}, 8, v{vT}
v_and_b32 v{vT}, 15, v{vLANE}
v_lshl_add_u32 v{vQKW}, v{vT}, 4, v{vQKW}
v_bfe_u32 v{vT}, v{vLANE}, 4, 1
v_lshl_add_u32 v{vQKW}, v{vT}, 3, v{vQKW}
s_lshl_b32 s{S_T0}, s{S_WAVE}, 10
v_add_u32 v{vQKW}, s{S_T0}, v{vQKW}
v_lshrrev_b32 v{vT}, 2, v{vLANE}
v_lshlrev_b32 v{vQKR}, 4, v{vT}
v_and_b32 v{vT}, 1, v{vLANE}
v_lshl_add_u32 v{vQKR}, v{vT}, 3, v{vQKR}
s_lshr_b32 s{S_T0}, s{S_WAVE}, 1
s_lshl_b32 s{S_T0}, s{S_T0}, 10
s_and_b32 s{S_T1}, s{S_WAVE}, 1
s_lshl_b32 s{S_T1}, s{S_T1}, 7
s_add_u32 s{S_T0}, s{S_T0}, s{S_T1}
s_add_u32 s{S_WOFF}, s{S_T0}, {WS_OM:#x}
v_and_b32 v{vT}, 15, v{vLANE}
v_lshlrev_b32 v{vOXO}, 7, v{vT}
v_lshrrev_b32 v{vT}, 4, v{vLANE}
v_lshl_add_u32 v{vOXO}, v{vT}, 4, v{vOXO}
s_lshl_b32 s{S_T0}, s{S_HEAD}, 15
s_lshr_b32 s{S_T1}, s{S_WAVE}, 1
s_lshl_b32 s{S_T1}, s{S_T1}, 14
s_add_u32 s{S_T0}, s{S_T0}, s{S_T1}
s_and_b32 s{S_T1}, s{S_WAVE}, 1
s_lshl_b32 s{S_T1}, s{S_T1}, 6
s_add_u32 s{S_T0}, s{S_T0}, s{S_T1}
v_add_u32 v{vOXO}, s{S_T0}, v{vOXO}
s_lshl_b32 s{S_T0}, s{S_WAVE}, 9
v_add_u32 v{vVMO}, s{S_T0}, v{vL16}
v_mov_b32 v{vT}, {OOBV:#x}
v_cmp_gt_u32 vcc, 32, v{vLANE}
v_cndmask_b32 v{vVMO}, v{vT}, v{vVMO}, vcc
s_mov_b32 s{S_MK0}, -1
s_mov_b32 s{S_MK0+1}, 0""")
    for r in range(4):
        m = 0
        for l in range(64):
            if 4 * (l // 16) + r <= l % 16: m |= 1 << l
        a(f"s_mov_b32 s{S_MKC+2*r}, {m & 0xffffffff:#x}\ns_mov_b32 s{S_MKC+2*r+1}, {m >> 32:#x}")
    cbits = f32bits(128 ** -0.5 * LOG2E)
    a(f"s_mov_b32 s{S_C}, {cbits:#x}\ns_mov_b32 s{S_C+1}, {cbits:#x}")
    a(f"""s_mov_b32 s{S_STEP}, 0
s_lshl_b32 s{S_OFF_A}, s{S_TEAM}, 20
s_add_u32 s{S_OFF_A}, s{S_OFF_A}, {WS_MEMT:#x}
s_lshl_b32 s{S_OFF_B}, s{S_HEAD}, 13
s_lshl_b32 s{S_OFF_C}, s{S_HEAD}, 11
s_mov_b32 s{S_OFF_D}, {WS_OX:#x}""")

    def prefetch_x(vdst):
        if "wait_x" in hooks: hooks["wait_x"](vT)
        a(f"s_add_u32 s{S_T0}, s{S_OFF_B}, {WS_KX:#x}")
        a(f"s_add_u32 s{S_T1}, s{S_T0}, 4096")
        out = []
        for f in range(8):
            out.append(f"buffer_load_dwordx4 {vr(KX+4*f,4)}, v{vL16}, {WS}, s{S_T0 if f < 4 else S_T1} offen offset:{(f%4)*1024} sc1")
        a(f"""s_lshl_b32 s{S_T2}, s{S_WAVE}, 11
s_add_u32 s{S_T3}, s{S_OFF_B}, s{S_T2}
s_add_u32 s{S_T5}, s{S_T3}, {WS_VX:#x}
s_add_u32 s{S_T3}, s{S_T3}, {WS_QX:#x}
s_add_u32 m0, s{S_T2}, {L_QX:#x}""")
        for f in range(2):
            out.append(f"buffer_load_dwordx4 {vr(vdst+4*f,4)}, v{vL16}, {WS}, s{S_T5} offen offset:{f*1024} sc1")
        for f in range(2):
            out.append(f"buffer_load_dwordx4 v{vL16}, {WS}, s{S_T3} offen offset:{f*1024} sc1 lds")
        return out

    def bload_instrs(i):
        b = BR + 8 * (i % NB)
        off = lds_addr[lds_tiles[i]]
        return [f"ds_read_b128 {vr(b,4)}, v{vBL} offset:{off}", f"ds_read_b128 {vr(b+4,4)}, v{vBL} offset:{off+1024}"]

    def pkfma(r, nm):
        return f"v_pk_fma_f32 {vr(r,2)}, {vr(r,2)}, s[{S_C}:{S_C+1}], {vr(nm,2)} op_sel_hi:[1,1,0] neg_lo:[0,0,1] neg_hi:[0,0,1]"

    def pack_instrs(mat):
        A0, A1 = ACC + 8 * mat, ACC + 8 * mat + 4
        o = [f"v_permlane32_swap_b32 v{A0+r}, v{A1+r}" for r in range(4)]
        o += [f"v_add_f32 v{A0+r}, v{A0+r}, v{A1+r}" for r in range(4)]
        o += [f"v_cvt_pk_bf16_f32 v{A1}, v{A0}, v{A0+1}", f"v_cvt_pk_bf16_f32 v{A1+1}, v{A0+2}, v{A0+3}"]
        return o, f"ds_write_b64 v{vQKW}, {vr(A1,2)} offset:{L_QK + mat*512}"

    def tile_regs(t):
        return T0 if t == 0 else T12 + 4 * (t - 1)

    startup_barrier(a, P)
    for x in prefetch_x(VX): a(x)
    sstamp(a, 7, cfg)
    a.set_filler(vOXO)
    a.label("S_loop")
    stamp(a, 0, cfg)
    for i in range(NB):
        for x in bload_instrs(i): a(x)
    for i in range(16): a(f"v_mov_b32 v{ACC+i}, 0")
    a(f"s_add_u32 s{S_T5}, s{S_OFF_C}, {WS_VM:#x}")
    a(f"s_add_u32 s{S_T4}, s{S_OFF_C}, s{S_WOFF}")
    a("s_waitcnt lgkmcnt(0)")

    L = Lds(a)
    aslot = {s: G + 4 * s for s in range(4)}
    pending = []
    free_slots = list(range(NA))
    first_use, last_use = {}, {}
    for i, (s, t) in enumerate(order):
        last_use[s] = i; first_use.setdefault(s, i)
    st = {"nexta": 4, "nextb": NB, "li": 0, "a_ok": False}
    def aload():
        s = stream[st["nexta"] - 4]; st["nexta"] += 1
        aslot[s] = AR + 4 * free_slots.pop(0)
        pending.append((("A", s), f"ds_read_b128 {vr(aslot[s],4)}, v{vA1 + s // 4 - 1} offset:{L_MEM + (s % 4) * 1024}"))
    def deadline(tag):
        return first_use[tag[1]] if tag[0] == "A" else lpos[tag[1]]
    def flush(n):
        pending.sort(key=lambda p: deadline(p[0]))
        for _ in range(min(n, len(pending))):
            tag, ins = pending.pop(0)
            L.op(tag, ins)
    def mfma(i):
        s, t = order[i]
        needs = [("A", s)]
        isl = (s, t) in lds_addr
        if isl: needs.append(("B", st["li"]))
        while any(tg in needs for tg, _ in pending): flush(1)
        L.wait(*needs)
        B = vr(BR + 8 * (st["li"] % NB), 8) if isl else vr(regmap[(s, t)][1], 8, regmap[(s, t)][0])
        a(f"v_smfmac_f32_16x16x64_bf16 {vr(ACC+4*t,4)}, {vr(aslot[s],4)}, {B}, v{vIDX}")
        if isl:
            st["li"] += 1
            if st["nextb"] < 16:
                for x in bload_instrs(st["nextb"]): pending.append((("B", st["nextb"]), x))
                st["nextb"] += 1
        if last_use[s] == i and s >= 4:
            free_slots.append((aslot[s] - AR) // 4)
            if st["nexta"] < 16: aload()

    loads = [f"buffer_load_dwordx4 {vr(G+4*i,4)}, v{vGW}, {WS}, s{S_OFF_A} offen offset:{1024*i} sc1" for i in range(4)]
    o = cfg.get("s_mem", {})
    sp = SPoll(a, loads, [G + 4 * i for i in range(4)], vT, cap=o.get("cap", 3), sleep=o.get("sleep", 3))
    def gw(f):
        L.op(("GW", f), f"ds_write_b128 v{vGW}, {vr(G+4*f,4)} offset:{L_MEM + 1024*f}")
    sp.first()
    if cfg.get("presync"): a("s_waitcnt vmcnt(0)\ns_barrier")
    stamp(a, 1, cfg)
    mfma(0); gw(0); mfma(1); flush(1); mfma(2); sp.pre(1); mfma(3); sp.br(1)
    mfma(4); gw(1); mfma(5); flush(1); mfma(6); sp.pre(2); mfma(7); sp.br(2)
    mfma(8)
    L.wait(("GW", 1))
    a("s_barrier")
    stamp(a, 6, cfg)
    for _ in range(NA): aload()
    flush(2)
    sp.pre(3)
    mfma(9); flush(1); sp.br(3)
    FIRST = 10
    side = {}
    def at(i, fn): side.setdefault(i, []).append(fn)
    qv, qw = pack_instrs(0)
    p0 = q_end + 4
    for k, ins in enumerate(qv): at(p0 + (k // 2 if k < 4 else 2 + (k - 4) // 3), lambda ins=ins: a(ins))
    at(p0 + 4, lambda: L.op("QW", qw))
    def q_barrier():
        L.wait("QW"); a("s_waitcnt vmcnt(1)\ns_barrier")
    post_om = hooks.get("post_om")
    at(63, q_barrier)
    at(cfg.get("vm_at", 44), lambda: a(f"buffer_load_dwordx4 {vr(VM,4)}, v{vVMO}, {WS}, s{S_T5} offen sc1"))
    at(12, lambda: gw(2))
    at(15, lambda: gw(3))
    def bar2():
        L.wait(("GW", 3)); a("s_barrier")
    bar2_at = 19
    for i in range(FIRST, 64):
        mfma(i)
        if i == bar2_at: bar2()
        flush(1)
        for fn in side.get(i, []): fn()
    stamp(a, 2, cfg)
    kv, kw = pack_instrs(1)
    def rd(ks):
        out = []
        for mat, base, tag in ((0, QF, "QF"), (1, KMF, "KM")):
            for u in range(2):
                out.append(((tag, ks), f"ds_read_b64_tr_b16 {vr(base+4*ks+2*u,2)}, v{vQKR} offset:{L_QK + mat*2048 + (32*ks+16*u)*16}"))
        return out
    def sc(ks, t):
        L.wait(("QF", ks), *([("KM", ks)] if t == 0 else []))
        C = "0" if ks == 0 else vr(tile_regs(t), 4)
        A = KMF + 4 * ks if t == 0 else KX + 16 * (t - 1) + 4 * ks
        a(f"v_mfma_f32_16x16x32_bf16 {vr(tile_regs(t),4)}, {vr(A,4)}, {vr(QF+4*ks,4)}, {C}")
    er = rd(0) + rd(2)
    for k in range(4):
        L.op(*er[2*k]); L.op(*er[2*k+1])
        if k < 3: a.fill(1)
    for ins in kv: a(ins)
    L.op("KW", kw)
    sc(0, 1); sc(0, 2); sc(0, 0); sc(2, 1)
    L.wait("KW"); a("s_barrier")
    lr = rd(1) + rd(3)
    lr = lr[0:2] + lr[4:6] + lr[2:4] + lr[6:8]
    mx, m2, nm, lx, al = MI, MI + 1, MI + 2, MI + 4, MI + 5
    X = T12
    vp = SPoll(a, [f"buffer_load_dwordx4 {vr(VM,4)}, v{vVMO}, {WS}, s{S_T5} offen sc1"], [VM], vT, cap=0)
    L.op(*lr[0]); L.op(*lr[1]); L.op(*lr[2]); sc(2, 2)
    L.op(*lr[3]); L.op(*lr[4]); L.op(*lr[5]); sc(2, 0)
    L.op(*lr[6]); L.op(*lr[7])
    stamp(a, 7, cfg)
    a("s_waitcnt vmcnt(0)")
    vp.pre(0)
    a.fill(cfg.get("f_late", 2))
    sc(1, 1); sc(1, 2)
    vp.br(0)
    a(f"s_cmp_eq_u32 s{S_MODE}, 1")
    sc(3, 1); sc(3, 2); sc(1, 0); sc(3, 0)
    a(f"""v_max3_f32 v{mx}, v{X}, v{X+1}, v{X+2}
v_max3_f32 v{m2}, v{X+4}, v{X+5}, v{X+6}
v_max3_f32 v{mx}, v{mx}, v{X+3}, v{X+7}
v_max3_f32 v{al}, v{T0}, v{T0+1}, v{T0+2}
v_max3_f32 v{mx}, v{mx}, v{m2}, v{T0+3}
v_max_f32 v{m2}, v{mx}, v{al}
v_max_f32 v{al}, v{mx}, v{al}
v_permlane32_swap_b32 v{m2}, v{al}""")
    stamp(a, 3, cfg)
    a(f"""v_max_f32 v{mx}, v{m2}, v{al}
v_max_f32 v{al}, v{m2}, v{al}
v_permlane16_swap_b32 v{mx}, v{al}
v_max_f32 v{m2}, v{mx}, v{al}""")
    a(f"v_mul_f32 v{nm}, s{S_C}, v{m2}")
    for i in range(0, 8, 2): a(pkfma(X + i, nm))
    a(pkfma(T0, nm)); a(pkfma(T0 + 2, nm))
    for i in range(8): a(f"v_exp_f32 v{X+i}, v{X+i}")
    a(f"v_exp_f32 v{T0}, v{T0}")
    for i in range(4):
        a(f"v_cvt_pk_bf16_f32 v{PX+i}, v{X+2*i}, v{X+2*i+1}")
    a(f"v_pk_add_f32 {vr(X,2)}, {vr(X,2)}, {vr(X+2,2)}")
    a(f"v_pk_add_f32 {vr(X+4,2)}, {vr(X+4,2)}, {vr(X+6,2)}")
    a(f"v_mfma_f32_16x16x32_bf16 {vr(OXR,4)}, {vr(VX,4)}, {vr(PX,4)}, 0")
    a(f"v_exp_f32 v{T0+1}, v{T0+1}")
    a(f"v_mfma_f32_16x16x32_bf16 {vr(OXR+4,4)}, {vr(VX+4,4)}, {vr(PX,4)}, 0")
    a(f"v_exp_f32 v{T0+2}, v{T0+2}\nv_exp_f32 v{T0+3}, v{T0+3}")
    a(f"v_cvt_pk_bf16_f32 v{PM}, v{T0}, v{T0+1}")
    a(f"v_cvt_pk_bf16_f32 v{PM+1}, v{T0+2}, v{T0+3}")
    a(f"v_add_f32 v{lx}, v{X}, v{X+1}")
    a(f"v_add_f32 v{X+4}, v{X+4}, v{X+5}")
    a(f"v_add_f32 v{lx}, v{lx}, v{X+4}")
    a(f"v_mfma_f32_16x16x16_bf16 {vr(OXR,4)}, {vr(VM,2)}, {vr(PM,2)}, {vr(OXR,4)}")
    a(f"v_add_f32 v{T0}, v{T0}, v{T0+1}")
    a(f"v_add_f32 v{T0+2}, v{T0+2}, v{T0+3}")
    a(f"v_mfma_f32_16x16x16_bf16 {vr(OXR+4,4)}, {vr(VM+2,2)}, {vr(PM,2)}, {vr(OXR+4,4)}")
    a(f"v_add_f32 v{T0}, v{T0}, v{T0+2}")
    a(f"v_fma_f32 v{mx}, v{T0}, 0.5, v{lx}")
    a(f"v_fma_f32 v{m2}, v{T0}, 0.5, v{lx}")
    a(f"""v_permlane16_swap_b32 v{mx}, v{m2}
v_add_f32 v{al}, v{mx}, v{m2}
v_add_f32 v{m2}, v{mx}, v{m2}
v_permlane32_swap_b32 v{al}, v{m2}
v_add_f32 v{mx}, v{al}, v{m2}""")
    a(f"v_rcp_f32 v{nm}, v{mx}")
    a("s_mov_b32 exec_lo, 0x00ff00ff\ns_mov_b32 exec_hi, 0x00ff00ff")
    for i in range(0, 8, 2):
        a(f"v_pk_mul_f32 {vr(OXR+i,2)}, {vr(OXR+i,2)}, {vr(nm,2)} op_sel_hi:[1,0]")
    for i in range(4):
        a(f"v_cvt_pk_bf16_f32 v{PX+i}, v{OXR+2*i}, v{OXR+2*i+1}")
    store_mode2(a, f"buffer_store_dwordx4 {vr(PX,4)}, v{vL16}, {WS}, s{S_T4} offen")
    a("s_mov_b64 exec, -1")
    stamp(a, 4, cfg)
    if post_om: post_om(MI)

    def treg(tt, t):
        if tt == 1: return tile_regs(t)
        return OXR + (4 if t == 0 else 0)
    for tt in range(2):
        tiles = [1, 0] if tt == 0 else [1, 2, 0]
        for ks in range(4):
            a(f"ds_read_b128 {vr(QF+4*ks,4)}, v{vL16} offset:{L_QX + tt*4096 + ks*1024}")
        a(f"v_mov_b32 v{vT}, 0xff800000")
        for r in range(4):
            a(f"v_cndmask_b32 v{treg(tt,0)+r}, v{vT}, 0, s[{S_MK0}:{S_MK0+1}]")
            a(f"v_cndmask_b32 v{treg(tt,1+tt)+r}, v{vT}, 0, s[{S_MKC+2*r}:{S_MKC+2*r+1}]")
        for ks in range(4):
            a(f"s_waitcnt lgkmcnt({3-ks})")
            for t in tiles:
                A = KMF + 4 * ks if t == 0 else KX + 16 * (t - 1) + 4 * ks
                C = "0" if (ks == 0 and tt == 1 and t == 1) else vr(treg(tt, t), 4)
                a(f"v_mfma_f32_16x16x32_bf16 {vr(treg(tt,t),4)}, {vr(A,4)}, {vr(QF+4*ks,4)}, {C}")
    VXN = KMF
    a(f"""s_add_u32 s{S_OFF_B}, s{S_OFF_B}, {32*8192:#x}
s_cmp_eq_u32 s{S_STEP}, {NSEG-1}
s_cselect_b32 s{S_OFF_B}, {OOBV:#x}, s{S_OFF_B}
s_barrier""")
    pf = prefetch_x(VX)
    vxl = pf[8:10]; pf = pf[:8] + pf[10:]
    O2 = QF
    for tt in range(2):
        tiles = [1, 0] if tt == 0 else [1, 2, 0]
        regs = [treg(tt, t) + r for t in tiles for r in range(4)]
        def pfi():
            if pf: a(pf.pop(0))
        a(f"v_max3_f32 v{mx}, v{regs[0]}, v{regs[1]}, v{regs[2]}")
        rest = regs[3:]
        while rest:
            if len(rest) >= 2:
                a(f"v_max3_f32 v{mx}, v{mx}, v{rest[0]}, v{rest[1]}"); rest = rest[2:]
            else:
                a(f"v_max_f32 v{mx}, v{mx}, v{rest[0]}"); rest = rest[1:]
        pfi()
        xlane_reduce(a, "v_max_f32", mx, m2)
        pfi()
        a(f"v_mul_f32 v{nm}, s{S_C}, v{mx}")
        for i in range(0, len(regs), 2): a(pkfma(regs[i], nm))
        for k, r in enumerate(regs):
            a(f"v_exp_f32 v{r}, v{r}")
            if k % 2 == 1: pfi()
        for i in range(4):
            if tt == 0 and i >= 2: a(f"v_mov_b32 v{PX+i}, 0")
            else: a(f"v_cvt_pk_bf16_f32 v{PX+i}, v{regs[2*i]}, v{regs[2*i+1]}")
        a(f"v_cvt_pk_bf16_f32 v{PM}, v{regs[-4]}, v{regs[-3]}")
        a(f"v_cvt_pk_bf16_f32 v{PM+1}, v{regs[-2]}, v{regs[-1]}")
        pfi()
        a(f"v_mfma_f32_16x16x32_bf16 {vr(O2,4)}, {vr(VX,4)}, {vr(PX,4)}, 0")
        a(f"v_mfma_f32_16x16x32_bf16 {vr(O2+4,4)}, {vr(VX+4,4)}, {vr(PX,4)}, 0")
        a(f"v_mfma_f32_16x16x16_bf16 {vr(O2+8,4)}, {vr(VM,2)}, {vr(PM,2)}, 0")
        a(f"v_mfma_f32_16x16x16_bf16 {vr(O2+12,4)}, {vr(VM+2,2)}, {vr(PM,2)}, 0")
        for i in range(2, len(regs), 2):
            a(f"v_pk_add_f32 {vr(regs[0],2)}, {vr(regs[0],2)}, {vr(regs[i],2)}")
        a(f"v_add_f32 v{mx}, v{regs[0]}, v{regs[1]}")
        pfi()
        if tt == 1:
            for x in vxl: a(x)
        xlane_reduce(a, "v_add_f32", mx, m2)
        a(f"v_rcp_f32 v{nm}, v{mx}")
        for i in range(0, 8, 2):
            a(f"v_pk_add_f32 {vr(O2+i,2)}, {vr(O2+i,2)}, {vr(O2+8+i,2)}")
        for i in range(0, 8, 2):
            a(f"v_pk_mul_f32 {vr(O2+i,2)}, {vr(O2+i,2)}, {vr(nm,2)} op_sel_hi:[1,0]")
        D = OMR + 4 * tt
        for i in range(4):
            a(f"v_cvt_pk_bf16_f32 v{D+i}, v{O2+2*i}, v{O2+2*i+1}")
        if tt == 0:
            a(f"""s_lshr_b32 s{S_T2}, s{S_STEP}, 2
s_lshl_b32 s{S_T2}, s{S_T2}, 20
s_and_b32 s{S_OFF_D}, s{S_STEP}, 3
s_lshl_b32 s{S_OFF_D}, s{S_OFF_D}, 12
s_add_u32 s{S_OFF_D}, s{S_OFF_D}, s{S_T2}
s_add_u32 s{S_OFF_D}, s{S_OFF_D}, {WS_OX:#x}""")
        t0 = cfg.get("tail_seg0", 64)
        if t0 < 64:
            l1, l2 = a.uid("ox"), a.uid("ox")
            a(f"s_cmp_ge_u32 s{S_STEP}, {t0}\ns_cbranch_scc1 {l1}")
            def alt(l1=l1, l2=l2, D=D, tt=tt):
                a(f"""{l1}:
s_lshl_b32 s{S_T2}, s{S_STEP}, 7
s_lshl_b32 s{S_OFF_E}, s{S_HEAD}, 2
s_add_u32 s{S_T2}, s{S_T2}, s{S_OFF_E}
s_add_u32 s{S_T2}, s{S_T2}, s{S_WAVE}
s_lshl_b32 s{S_T2}, s{S_T2}, 11
s_add_u32 s{S_T2}, s{S_T2}, {WS_OXF:#x}
buffer_store_dwordx4 {vr(D,4)}, v{vL16}, {WS}, s{S_T2} offen offset:{tt*1024} sc1
s_branch {l2}""")
            a.defer(alt)
        a(f"buffer_store_dwordx4 {vr(D,4)}, v{vOXO}, {WS}, s{S_OFF_D} offen offset:{tt*2048} sc1")
        if t0 < 64: a.label(l2)
    assert not pf
    stamp(a, 5, cfg)
    if cfg.get("stamps"):
        a(f"v_lshrrev_b32 v{MI+5}, 2, v{vL16}")
    stamp_flush(a, cfg)
    a(f"""s_add_u32 s{S_STEP}, s{S_STEP}, 1
s_cmp_eq_u32 s{S_STEP}, {NSEG}
s_cbranch_scc1 {hooks.get("exit", "L_done")}
s_add_u32 s{S_OFF_A}, s{S_OFF_A}, 0x4000
s_bitset0_b32 s{S_OFF_A}, 17
s_add_u32 s{S_OFF_C}, s{S_OFF_C}, {32*2048:#x}
s_bitset0_b32 s{S_OFF_C}, 19
s_branch S_loop""")
    a.flush_deferred()
    a.set_filler(None)


def v_cu(a, cfg, hooks=None):
    hooks = hooks or {}
    vLANE, vGOFF, vIDX, vL16, vT, vT2, vVMO, vOMO, vRW, vRR, vPO, vMO, vL4, vD, vI16 = range(0, 15)
    AR = 16
    G = 80
    ACC = 96
    OF = 112
    RD = 128
    RP = 144
    MI = 152
    SENT = 160
    RRS = 164
    vTCH = 168
    cfg = dict(cfg); cfg["stamp_reg"] = MI + 5; cfg["lane4_reg"] = vL4
    a(f"""s_lshl_b32 s{S_HEAD}, s{S_TEAM}, 3
s_lshr_b32 s{S_T0}, s{S_J}, 1
s_add_u32 s{S_HEAD}, s{S_HEAD}, s{S_T0}""")
    srd(a, S_W0, 32, 1024 * 8192)
    srd(a, S_W1, 40, 4096 * 2048)
    srd(a, S_W2, 8, 8 * 2048)
    a(f"v_and_b32 v{vLANE}, 63, v0")
    a(f"v_lshlrev_b32 v{vL16}, 4, v{vLANE}")
    a(f"v_lshlrev_b32 v{vL4}, 2, v{vLANE}")
    for i in range(4): a(f"v_mov_b32 v{SENT+i}, -1")
    a(f"""s_lshl_b32 s{S_OFF_A}, s{S_TEAM}, 20
s_add_u32 s{S_OFF_A}, s{S_OFF_A}, {WS_MEMT:#x}
s_lshl_b32 s{S_T0}, s{S_J}, 10
s_add_u32 s{S_OFF_E}, s{S_OFF_A}, s{S_T0}
s_lshl_b32 s{S_OFF_C}, s{S_HEAD}, 11
s_and_b32 s{S_T1}, s{S_J}, 1
s_lshl_b32 s{S_T1}, s{S_T1}, 10
s_add_u32 s{S_OFF_B}, s{S_OFF_C}, s{S_T1}
s_and_b32 s{S_T0}, s{S_J}, 3
s_lshl_b32 s{S_OFF_D}, s{S_T0}, 11
s_lshr_b32 s{S_T0}, s{S_J}, 2
s_lshl_b32 s{S_T0}, s{S_T0}, 14
s_add_u32 s{S_OFF_D}, s{S_OFF_D}, s{S_T0}
s_add_u32 s{S_OFF_D}, s{S_OFF_D}, {WS_PART:#x}
s_lshl_b32 s{S_T0}, s{S_TEAM}, 16
s_add_u32 s{S_OFF_F}, s{S_OFF_D}, s{S_T0}""")

    a(f"""s_lshl_b32 s{S_T0}, s{S_WAVE}, 14
s_add_u32 s{S_T0}, s{S_T0}, s{S_OFF_E}
buffer_store_dwordx4 {vr(SENT,4)}, v{vL16}, {WS}, s{S_T0} offen sc1
s_lshl_b32 s{S_T0}, s{S_WAVE}, 16
s_add_u32 s{S_T0}, s{S_T0}, s{S_OFF_B}
s_add_u32 s{S_T1}, s{S_T0}, {WS_VM:#x}
buffer_store_dwordx4 {vr(SENT,4)}, v{vL16}, {WS}, s{S_T1} offen sc1
s_add_u32 s{S_T1}, s{S_T0}, {WS_OM:#x}
buffer_store_dwordx4 {vr(SENT,4)}, v{vL16}, {WS}, s{S_T1} offen sc1
s_lshl_b32 s{S_T0}, s{S_WAVE}, 18
s_add_u32 s{S_T0}, s{S_T0}, s{S_OFF_F}
buffer_store_dwordx4 {vr(SENT,4)}, v{vL16}, {WS}, s{S_T0} offen sc1
buffer_store_dwordx4 {vr(SENT,4)}, v{vL16}, {WS}, s{S_T0} offen offset:1024 sc1
s_add_u32 s{S_T0}, s{S_T0}, 0x2000
buffer_store_dwordx4 {vr(SENT,4)}, v{vL16}, {WS}, s{S_T0} offen sc1
buffer_store_dwordx4 {vr(SENT,4)}, v{vL16}, {WS}, s{S_T0} offen offset:1024 sc1""")

    a(f"""v_mov_b32 v{G}, 0
v_mov_b32 v{G+1}, 0
v_mov_b32 v{G+2}, 0
v_mov_b32 v{G+3}, 0
s_lshl_b32 s{S_T0}, s{S_TEAM}, 4
s_add_u32 s{S_T0}, s{S_T0}, s{S_J}
s_lshl_b32 s{S_T0}, s{S_T0}, 9
s_lshl_b32 s{S_T1}, s{S_WAVE}, 7
s_add_u32 s{S_T0}, s{S_T0}, s{S_T1}
s_add_u32 s{S_T0}, s{S_T0}, {WS_CNT:#x}
s_mov_b64 exec, 0xff
buffer_store_dwordx4 {vr(G,4)}, v{vL16}, {WS}, s{S_T0} offen sc1
s_mov_b64 exec, -1""")
    if not cfg.get("noprobe"):
        skip = a.uid("pr")
        a(f"""s_lshl_b32 s{S_T0}, s{S_TEAM}, 4
s_add_u32 s{S_T0}, s{S_T0}, s{S_J}
s_cmp_ge_u32 s{S_T0}, 8
s_cbranch_scc1 {skip}
s_cmp_lg_u32 s{S_WAVE}, 3
s_cbranch_scc1 {skip}
s_add_u32 s{S_T1}, s{S_OFF_F}, {7 << 18:#x}
s_add_u32 s{S_T2}, s{S_T1}, 0x2000
buffer_store_dwordx4 {vr(SENT,4)}, v{vL16}, {WS}, s{S_T1} offen sc1
buffer_store_dwordx4 {vr(SENT,4)}, v{vL16}, {WS}, s{S_T2} offen sc1
v_mov_b32 v{vT2}, 0
s_mov_b32 s60, -1
s_mov_b32 s61, -1
s_waitcnt vmcnt(0)""")
        for smp in range(4):
            for c in range(2):
                a(f"""s_memtime s[62:63]
s_waitcnt lgkmcnt(0)
buffer_load_dword v{vT}, v{vT2}, {WS}, s{S_T1+c} offen offset:{smp*256} sc1
s_waitcnt vmcnt(0)
s_memtime s[64:65]
s_waitcnt lgkmcnt(0)
s_sub_u32 s64, s64, s62
s_min_u32 s{60+c}, s{60+c}, s64""")
        a(f"""s_cmp_lt_u32 s61, s60
s_cselect_b32 s{S_T1}, 1, 0
s_lshl_b32 s{S_T1}, s{S_T1}, s{S_J}
v_mov_b32 v{vT}, s{S_T1}
s_mov_b64 exec, 1
buffer_atomic_or v{vT}, v{vT2}, {DBG}, 0 offen offset:12 sc1
s_mov_b64 exec, -1
{skip}:""")

    a("s_waitcnt vmcnt(0)\ns_barrier")
    arrive(a, G + 4)

    def stage(srdreg, pitch_log2, sbase):
        a(f"""v_lshrrev_b32 v{vT}, 3, v{vLANE}
v_lshlrev_b32 v{vD}, {pitch_log2}, v{vT}
v_and_b32 v{vT}, 7, v{vLANE}
v_lshl_add_u32 v{vD}, v{vT}, 4, v{vD}
s_lshl_b32 s{S_T1}, s{S_WAVE}, {8 + pitch_log2}
s_add_u32 s{S_T1}, s{S_T1}, s{sbase}
s_lshl_b32 s{S_T2}, s{S_WAVE}, 15""")
        for i in range(32):
            a(f"s_add_u32 m0, s{S_T2}, {L_W + i*1024}")
            a(f"s_add_u32 s{S_T4}, s{S_T1}, {(i*8) << pitch_log2:#x}")
            a(f"buffer_load_dwordx4 v{vD}, s[{srdreg}:{srdreg+3}], s{S_T4} offen lds")

    a(f"""s_lshl_b32 s{S_T0}, s{S_HEAD}, 8
s_and_b32 s{S_T1}, s{S_J}, 1
s_lshl_b32 s{S_T1}, s{S_T1}, 7
s_add_u32 s{S_T0}, s{S_T0}, s{S_T1}""")
    stage(S_W0, 13, S_T0)
    if not cfg.get("nowo_pf"):
        a(f"""v_lshrrev_b32 v{vT}, 3, v{vLANE}
v_lshlrev_b32 v{vT2}, 11, v{vT}
v_and_b32 v{vT}, 7, v{vLANE}
v_lshl_add_u32 v{vT2}, v{vT}, 4, v{vT2}
s_lshl_b32 s{S_T0}, s{S_TEAM}, 21
s_lshl_b32 s{S_T1}, s{S_J}, 7
s_add_u32 s{S_T0}, s{S_T0}, s{S_T1}
s_lshl_b32 s{S_T1}, s{S_WAVE}, 19
s_add_u32 s{S_T0}, s{S_T0}, s{S_T1}""")
        for i in range(32):
            if i == 16: a("s_waitcnt vmcnt(40)")
            a(f"s_add_u32 s{S_T4}, s{S_T0}, {(i*8) << 11:#x}")
            a(f"buffer_load_dwordx4 {vr(G,4)}, v{vT2}, s[{S_W1}:{S_W1+3}], s{S_T4} offen")
    vWT = MI
    a(f"""v_bfe_u32 v{vT}, v{vLANE}, 5, 1
v_lshlrev_b32 v{vWT}, 11, v{vT}
v_bfe_u32 v{vT}, v{vLANE}, 3, 1
v_lshl_add_u32 v{vWT}, v{vT}, 10, v{vWT}
v_bfe_u32 v{vT}, v{vLANE}, 4, 1
v_lshl_add_u32 v{vWT}, v{vT}, 9, v{vWT}
v_bfe_u32 v{vT}, v{vLANE}, 2, 1
v_lshl_add_u32 v{vWT}, v{vT}, 7, v{vWT}
v_and_b32 v{vT}, 3, v{vLANE}
v_lshl_add_u32 v{vWT}, v{vT}, 3, v{vWT}
s_lshl_b32 s{S_T0}, s{S_WAVE}, 5
s_add_u32 s{S_T0}, s{S_T0}, {L_W:#x}
v_add_u32 v{vWT}, s{S_T0}, v{vWT}
v_add_u32 v{vWT+1}, 0x10000, v{vWT}
s_waitcnt vmcnt({0 if cfg.get("nowo_pf") else 32})
s_barrier""")
    for ks in range(16):
        for v in range(4):
            off = (ks % 8) * 8192 + (32 * (v // 2) + 2 * (v % 2)) * 128
            a(f"ds_read_b64_tr_b16 {ar(ks*8+2*v,2)}, v{vWT + ks // 8} offset:{off}")
        a("s_waitcnt lgkmcnt(8)")
    a("s_waitcnt lgkmcnt(0)\ns_barrier")
    sstamp(a, 6, cfg)
    a(f"""s_lshl_b32 s{S_T0}, s{S_TEAM}, 21
s_lshl_b32 s{S_T1}, s{S_J}, 7
s_add_u32 s{S_T0}, s{S_T0}, s{S_T1}""")
    a("s_waitcnt vmcnt(24)")
    stage(S_W1, 11, S_T0)
    a(f"""v_bfe_u32 v{vT}, v{vLANE}, 3, 1
v_lshlrev_b32 v{vWT}, 12, v{vT}
v_bfe_u32 v{vT}, v{vLANE}, 4, 1
v_lshl_add_u32 v{vWT}, v{vT}, 11, v{vWT}
v_bfe_u32 v{vT}, v{vLANE}, 5, 1
v_lshl_add_u32 v{vWT}, v{vT}, 9, v{vWT}
v_bfe_u32 v{vT}, v{vLANE}, 2, 1
v_lshl_add_u32 v{vWT}, v{vT}, 7, v{vWT}
v_and_b32 v{vT}, 3, v{vLANE}
v_lshl_add_u32 v{vWT}, v{vT}, 3, v{vWT}
s_lshl_b32 s{S_T0}, s{S_WAVE}, 15
s_add_u32 s{S_T0}, s{S_T0}, {L_W:#x}
v_add_u32 v{vWT}, s{S_T0}, v{vWT}""")
    a(f"""s_lshl_b32 s{S_T0}, s{S_WAVE}, 12
v_add_u32 v{vGOFF}, s{S_T0}, v{vL16}""")
    idx_reg(a, vIDX, vLANE, vT)
    a(f"""v_and_b32 v{vT}, 31, v{vLANE}
v_lshlrev_b32 v{vVMO}, 4, v{vT}
v_lshrrev_b32 v{vT}, 5, v{vLANE}
v_lshl_add_u32 v{vVMO}, v{vT}, 2, v{vVMO}
s_lshr_b32 s{S_T0}, s{S_WAVE}, 1
s_lshl_b32 s{S_T0}, s{S_T0}, 9
s_and_b32 s{S_T1}, s{S_WAVE}, 1
s_lshl_b32 s{S_T1}, s{S_T1}, 3
s_add_u32 s{S_T0}, s{S_T0}, s{S_T1}
v_add_u32 v{vVMO}, s{S_T0}, v{vVMO}
s_lshl_b32 s{S_T0}, s{S_TEAM}, 14
v_add_u32 v{vOMO}, s{S_T0}, v{vGOFF}""")
    a(f"""v_lshrrev_b32 v{vT}, 5, v{vLANE}
v_lshlrev_b32 v{vRW}, 9, v{vT}
v_and_b32 v{vT}, 15, v{vLANE}
v_lshl_add_u32 v{vRW}, v{vT}, 5, v{vRW}
v_bfe_u32 v{vT}, v{vLANE}, 4, 1
v_lshl_add_u32 v{vRW}, v{vT}, 4, v{vRW}
s_lshl_b32 s{S_T0}, s{S_WAVE}, 11
s_add_u32 s{S_T0}, s{S_T0}, {L_RED:#x}
v_add_u32 v{vRW}, s{S_T0}, v{vRW}""")
    a(f"""v_bfe_u32 v{vT}, v{vLANE}, 2, 3
v_lshlrev_b32 v{vRR}, 2, v{vT}
v_lshrrev_b32 v{vT}, 5, v{vLANE}
v_lshl_add_u32 v{vRR}, v{vT}, 8, v{vRR}
v_and_b32 v{vT}, 3, v{vLANE}
v_lshl_add_u32 v{vRR}, v{vT}, 6, v{vRR}
s_lshl_b32 s{S_T0}, s{S_WAVE}, 9
s_add_u32 s{S_T0}, s{S_T0}, {L_RED:#x}
v_add_u32 v{vRR}, s{S_T0}, v{vRR}""")
    for src in range(4):
        a(f"v_add_u32 v{RRS+src}, {src*2048}, v{vRR}")
    a(f"""v_and_b32 v{vT}, 31, v{vLANE}
v_lshlrev_b32 v{vTCH}, 7, v{vT}
s_and_b32 s{S_T0}, s{S_J}, 1
s_lshl_b32 s{S_T0}, s{S_T0}, 12
s_lshl_b32 s{S_T1}, s{S_HEAD}, 13
s_add_u32 s{S_T0}, s{S_T0}, s{S_T1}
s_min_u32 s{S_T1}, s{S_WAVE}, 2
s_lshl_b32 s{S_T1}, s{S_T1}, 24
s_add_u32 s{S_T0}, s{S_T0}, s{S_T1}
v_add_u32 v{vTCH}, s{S_T0}, v{vTCH}""")
    a(f"""v_lshlrev_b32 v{vPO}, 3, v{vLANE}
s_lshl_b32 s{S_T0}, s{S_WAVE}, 9
v_add_u32 v{vPO}, s{S_T0}, v{vPO}
s_lshl_b32 s{S_T0}, s{S_WAVE}, 8
v_add_u32 v{vMO}, s{S_T0}, v{vL4}
v_add_u32 v{vI16}, s{S_T0}, v{vL16}""")
    M0R = RP
    a(f"""v_bfe_u32 v{vT}, v{vLANE}, 2, 3
v_lshlrev_b32 v{vT2}, 11, v{vT}
v_lshrrev_b32 v{vT}, 5, v{vLANE}
v_lshl_add_u32 v{vT2}, v{vT}, 4, v{vT2}
v_and_b32 v{vT}, 3, v{vLANE}
v_lshl_add_u32 v{vT2}, v{vT}, 2, v{vT2}
s_lshl_b32 s{S_T0}, s{S_J}, 7
s_lshl_b32 s{S_T1}, s{S_WAVE}, 5
s_add_u32 s{S_T0}, s{S_T0}, s{S_T1}
buffer_load_dword v{M0R}, v{vT2}, s[{S_W2}:{S_W2+3}], s{S_T0} offen
s_waitcnt vmcnt(0)""")
    for f in range(4):
        for ct in range(4):
            for v in range(4):
                off = f * 8192 + (8 * (v // 2) + 2 * (v % 2)) * 128 + ct * 32
                a(f"ds_read_b64_tr_b16 {ar(128+(f*4+ct)*8+2*v,2)}, v{vWT} offset:{off}")
            a("s_waitcnt lgkmcnt(8)")
    sstamp(a, 7, cfg)
    a("s_waitcnt lgkmcnt(0)")
    startup_barrier(a, MI + 2)
    store_mode(a, f"buffer_store_dword v{M0R}, v{vMO}, {WS}, s{S_OFF_E} offen")
    a(f"s_mov_b32 s{S_STEP}, 0")

    a(f"""s_bcnt1_i32_b32 s{S_T0}, s{S_NEAR}
s_cmp_ge_u32 s{S_T0}, 4
s_cselect_b32 s{S_T0}, 0x2000, 0
s_add_u32 s{S_OFF_F}, s{S_OFF_F}, s{S_T0}""")

    a.set_filler(vD)
    a.label("V_loop")
    stamp(a, 0, cfg)
    for i in range(4): a(f"v_mov_b32 v{ACC+i}, 0")
    loads = [(f"buffer_load_dwordx4 {vr(G+4*i,4)}, v{vGOFF}, {WS}, s{S_OFF_A} offen offset:{1024*i} sc1",
              list(range(G + 4 * i, G + 4 * i + 4))) for i in range(4)]
    o = cfg.get("v_mem", {})
    poll(a, loads, vT, lambda i: a(f"ds_write_b128 v{vGOFF}, {vr(G+4*i,4)} offset:{L_MEM + 1024*i}"),
         staged=True, cap=o.get("cap", 0), sleep=o.get("sleep", 0), pre_sleep=o.get("pre", 0))
    a("s_waitcnt lgkmcnt(0)\ns_barrier")
    stamp(a, 1, cfg)
    for ks in range(16):
        a(f"ds_read_b128 {vr(AR+4*ks,4)}, v{vL16} offset:{L_MEM + ks*1024}")
        if ks >= 8:
            a("s_waitcnt lgkmcnt(8)")
            a(f"v_smfmac_f32_16x16x64_bf16 {vr(ACC,4)}, {vr(AR+4*(ks-8),4)}, {ar((ks-8)*8,8)}, v{vIDX}")
    for k2 in range(8, 16):
        a(f"s_waitcnt lgkmcnt({15-k2})")
        a(f"v_smfmac_f32_16x16x64_bf16 {vr(ACC,4)}, {vr(AR+4*k2,4)}, {ar(k2*8,8)}, v{vIDX}")
    a(f"""v_permlane32_swap_b32 v{ACC}, v{ACC+2}
v_permlane32_swap_b32 v{ACC+1}, v{ACC+3}
v_pk_add_f32 {vr(ACC,2)}, {vr(ACC,2)}, {vr(ACC+2,2)}
v_cvt_pk_bf16_f32 v{MI}, v{ACC}, v{ACC+1}
s_add_u32 s{S_T0}, s{S_OFF_B}, {WS_VM:#x}""")
    store_mode(a, f"buffer_store_dword v{MI}, v{vVMO}, {WS}, s{S_T0} offen")
    stamp(a, 2, cfg)
    if "post_vm" in hooks: hooks["post_vm"](MI + 2)
    a(f"""s_cmp_eq_u32 s{S_STEP}, {NSEG-1}
s_cbranch_scc1 {hooks.get("exit", "L_done")}""")
    nj = a.uid("nj")
    a(f"""s_cmp_ge_u32 s{S_STEP}, {NSEG - JIT}
s_cbranch_scc1 {nj}""")
    a(f"""s_xor_b32 s{S_T3}, s{S_OFF_F}, {JIT << 18:#x}
s_lshl_b32 s{S_T0}, s{S_WAVE}, 8
s_add_u32 s{S_T3}, s{S_T3}, s{S_T0}
s_xor_b32 s{S_T0}, s{S_OFF_E}, {JIT << 14:#x}
s_xor_b32 s{S_T2}, s{S_OFF_B}, {JIT << 16:#x}
s_add_u32 s{S_T1}, s{S_T2}, {WS_VM:#x}
s_add_u32 s{S_T2}, s{S_T2}, {WS_OM:#x}
s_mov_b32 exec_hi, 0
buffer_store_dwordx4 {vr(SENT,4)}, v{vI16}, {WS}, s{S_T3} offen sc1
s_mov_b32 exec_lo, 0xffff""")
    for t in (S_T0, S_T1, S_T2):
        store_mode(a, f"buffer_store_dwordx4 {vr(SENT,4)}, v{vI16}, {WS}, s{t} offen")
    a("s_mov_b64 exec, -1")
    a.label(nj)
    if not cfg.get("notouch"):
        if "v_touch_ok" in hooks: hooks["v_touch_ok"]()
        a(f"""s_add_u32 s{S_T0}, s{S_STEP}, {cfg.get("touch_lead", 2)}
s_min_u32 s{S_T0}, s{S_T0}, {NSEG-1}
s_lshl_b32 s{S_T0}, s{S_T0}, 18
buffer_load_dword v{vTCH+1}, v{vTCH}, {WS}, s{S_T0} offen sc1""")
    a(f"""s_and_b32 s{S_T5}, s{S_STEP}, 7
s_lshl_b32 s{S_T5}, s{S_T5}, 16
s_add_u32 s{S_T5}, s{S_T5}, {WS_OM:#x}
s_mov_b32 s{S_PCUR}, s{S_OFF_F}""")
    for x in range(1, 4):
        a(f"s_xor_b32 s{S_T0+x}, s{S_PCUR}, {x << 16:#x}")
    for i in range(16): a(f"v_mov_b32 v{ACC+i}, 0")
    loads = [f"buffer_load_dwordx4 {vr(OF+4*f,4)}, v{vOMO}, {WS}, s{S_T5} offen offset:{1024*f} sc1" for f in range(4)]
    o = cfg.get("v_om", {})
    a("s_waitcnt vmcnt(0)")
    for i in range(6): a(f"v_mov_b32 v{RP+i}, -1")
    sp = SPoll(a, loads, [OF + 4 * f for f in range(4)], vT, cap=o.get("cap", 3), sleep=o.get("sleep", 3), pre_sleep=o.get("pre", 0))
    def om(f, ct):
        a(f"v_smfmac_f32_16x16x64_bf16 {vr(ACC+4*ct,4)}, {vr(OF+4*f,4)}, {ar(128+(f*4+ct)*8,8)}, v{vIDX}")
    def pair_epi(p):
        A0, A1 = ACC + 8 * p, ACC + 8 * p + 4
        o = [f"v_permlane32_swap_b32 v{A0+r}, v{A1+r}" for r in range(4)]
        o += [f"v_add_f32 v{A0+r}, v{A0+r}, v{A1+r}" for r in range(4)]
        return o, f"ds_write_b128 v{vRW}, {vr(A0,4)} offset:{p*1024}"
    sp.first()
    if cfg.get("presync"): a("s_waitcnt vmcnt(0)\ns_barrier")
    stamp(a, 3, cfg)
    for f in range(4):
        om(f, 0); om(f, 1)
        if f < 3: sp.pre(f + 1)
        om(f, 2); om(f, 3)
        if f < 3: sp.br(f + 1)
    e0, w0 = pair_epi(0)
    e1, w1 = pair_epi(1)
    for x in e0: a(x)
    for x in e1[:4]: a(x)
    a(w0)
    for x in e1[4:]: a(x)
    a(w1)
    stamp(a, 6, cfg)
    a.fill(cfg.get("f_vw", 12))
    a("s_waitcnt lgkmcnt(0)\ns_barrier")
    stamp(a, 7, cfg)
    for src in range(4):
        a(f"ds_read2_b32 {vr(RD+2*src,2)}, v{RRS+src} offset0:0 offset1:8")
        a.fill(1)
    a.fill(cfg.get("f_vr", 8))
    a("s_waitcnt lgkmcnt(2)")
    a(f"v_pk_add_f32 {vr(RD,2)}, {vr(RD,2)}, {vr(RD+2,2)}")
    a.fill(2)
    a("s_waitcnt lgkmcnt(0)")
    a(f"v_pk_add_f32 {vr(RD+4,2)}, {vr(RD+4,2)}, {vr(RD+6,2)}")
    a(f"v_pk_add_f32 {vr(RD,2)}, {vr(RD,2)}, {vr(RD+4,2)}")
    a(f"buffer_store_dwordx2 {vr(RD,2)}, v{vPO}, {WS}, s{S_PCUR} offen sc1")
    stamp(a, 4, cfg)
    o = cfg.get("v_part", {})
    l3 = "\n".join(f"buffer_load_dwordx2 {vr(RP+2*(x-1),2)}, v{vPO}, {WS}, s{S_T0+x} offen sc1" for x in range(1, 4))
    a(f"s_add_u32 s{S_OFF_E}, s{S_OFF_E}, 0x4000\ns_bitset0_b32 s{S_OFF_E}, 17")
    if o.get("presleep", 3): a(f"s_sleep {o.get('presleep', 3)}")
    pp = SPoll(a, [l3], [list(range(RP, RP + 6))], vT, cap=o.get("cap", 30), sleep=o.get("sleep", 1), pre_sleep=o.get("pre", 24))
    pp.first(prefill=False)
    a(f"s_cmp_eq_u32 s{S_MODE}, 1")
    a(f"""v_pk_add_f32 {vr(RD,2)}, {vr(RD,2)}, {vr(RP,2)}
v_pk_add_f32 {vr(RD+2,2)}, {vr(RP+2,2)}, {vr(RP+4,2)}
v_pk_add_f32 {vr(RD,2)}, {vr(RD,2)}, {vr(RD+2,2)}
v_cvt_pk_bf16_f32 v{MI}, v{RD}, v{RD+1}""")
    store_mode2(a, f"buffer_store_dword v{MI}, v{vMO}, {WS}, s{S_OFF_E} offen")
    stamp(a, 5, cfg)
    stamp_flush(a, cfg)
    a(f"""s_add_u32 s{S_STEP}, s{S_STEP}, 1
s_add_u32 s{S_OFF_A}, s{S_OFF_A}, 0x4000
s_bitset0_b32 s{S_OFF_A}, 17
s_add_u32 s{S_OFF_B}, s{S_OFF_B}, 0x10000
s_bitset0_b32 s{S_OFF_B}, 19
s_add_u32 s{S_OFF_F}, s{S_OFF_F}, 0x40000
s_bitset0_b32 s{S_OFF_F}, 21
s_branch V_loop""")
    a.flush_deferred()
    a.set_filler(None)
```

```python
import sys
from asmgen import *
from chain import *
import chain2
from chain2 import s_cu, v_cu, DBG, WS, WS_CNT, wait_all_arrived
from gemm import *
from tail import tail_task
from battn import WS_QB, WS_KB, WS_VB, WS_OB, battn_task

PFX = "concat_heads__memory_aug_recurrent_mem_tr__mha_block__prompt"
NAME = PFX + "_kernel"
C_Q, C_TK, C_OVF = 32, 40, 42
C_QKV, C_BQKV, C_BAT, C_OXB, C_OXS = 0, 144, 148, 156, 168
NOSIG = 255
S_INIT = 47
T_MQKV, T_BQKV, T_BB, T_ATT, T_OB, T_OA, T_PF, T_TAIL = range(8)
L_TICKET = 0x20000
P_AX, P_WQ, P_WK, P_WV, P_WO, P_BX, P_BW, P_BO = 60, 62, 64, 66, 68, 70, 72, 74
S_D0, S_D1, S_GRP, S_P1, S_P2, S_TYP, S_MAT, S_EB = 84, 85, 86, 87, 88, 89, 93, 92
S_TAB = 90
S_OUT = 24


def desc(typ, p1, p2, wait=None, sig=NOSIG):
    wi, wt = wait if wait else (NOSIG, 0)
    return (typ | p1 << 4 | p2 << 12, wi | wt << 8 | sig << 20)


def ox_counter(blk):
    return (C_OXB + blk, 128) if blk < 12 else None


def schedule(cfg):
    L = [[] for _ in range(8)]
    def mq(rb, x):
        return [desc(T_MQKV, rb, mat * 32 + 8 * x + i, sig=C_QKV + rb * 16 + (8 * x + i) // 2) for i in range(8) for mat in (1, 2, 0)]
    def bq(mb, x):
        return [desc(T_BQKV, mb, mat * 16 + 4 * x + i, sig=C_QKV + (1 + mb) * 16 + 4 * x + i) for i in range(4) for mat in (1, 2, 0)]
    def bb(hg):
        return [desc(T_BB, mb, mat * 4 + hg, sig=C_BQKV + hg) for mat in (1, 2, 0) for mb in range(8)]
    def att(h):
        return [desc(T_ATT, h, qb, wait=(C_BQKV + h // 8, 24), sig=C_BAT + qb) for qb in range(8)]
    def ob(blk):
        return [desc(T_OB, blk, nb, wait=(C_BAT + blk // 2, 32)) for nb in range(8)]
    def oa(blk):
        if blk < 12: w = (C_OXB + blk, 128)
        else: w = (C_OXS + (blk - 12) * 4 + 3, 32)
        return [desc(T_OA, blk, nb, wait=w) for nb in range(8)]
    def bqr(mbs, x):
        cols = list(zip(*[bq(mb, x) for mb in mbs]))
        return [t for c in cols for t in c]
    def pf(mat, pat, off):
        return (T_PF | mat << 4 | pat << 12, off)
    def slowcols(g, mats):
        return [pf(m, 0, (g * 1024 * 2048 + ln * 128) if m == 3 else (16 * g + ln) * 128) for m in mats for ln in (3, 11)]
    if not cfg.get("nopf"):
        for g in range(4):
            L[g] += slowcols(g, (0, 1, 2, 3))
            L[g] += [pf(m, 1, (4 * k + 2) * 64 * 8192 + g * 2048) for k in range(4) for m in (0, 1)]
    allbb = bb(0) + bb(1) + bb(2) + bb(3)
    t0 = cfg["tail_seg0"]
    nblk = t0 // 4
    def tail(cs, k): return desc(T_TAIL, cs, t0 + k)
    nsm = cfg.get("att_small", 4)
    for g in range(4):
        L[g] += bq(1, g)[8:] + allbb[4 * g: 4 * g + 4]
        for k in range(nsm): L[g] += att(4 * k + g)
        L[g] += [tail(8 * g + i, 0) for i in range(8)]
    rest_heads = list(range(4 * nsm, 32))
    restbb = allbb[16:]
    for x in range(4):
        l = L[4 + x]
        mybb = restbb[2 * x: 2 * x + 2] + restbb[8 + 18 * x: 8 + 18 * x + 18]
        l += ([] if cfg.get("nopf") else slowcols(x, (0, 1, 2))) + mq(0, x) + bq(1, x)[:8] + mq(1, x)
        l += mybb[:8] + bqr((2, 3), x)
        l += mybb[8:] + bq(4, x)
        l += oa(x)
        l += bqr((5, 6), x)
        hs = rest_heads[x::4]
        l += att(hs[0])
        l += oa(4 + x) + bq(7, x)
        for h in hs[1:]: l += att(h)
        l += oa(8 + x)
        l += [tail(8 * x + i, 1) for i in range(8)]
        for blk in range(x, 16, 4): l += ob(blk)
        if 12 + x < nblk: l += oa(12 + x)
    return L


def worker(a, cfg):
    big = Gemm(8, 8, 2, cfg.get("big", {}))
    med = Gemm(4, 4, 4, cfg.get("med", {}))
    lists = schedule(cfg)
    MAXL = max(len(l) for l in lists)
    a(f"""v_and_b32 v0, 63, v0
v_lshlrev_b32 v{V_L16}, 4, v0
s_load_dwordx2 s[{P_AX}:{P_AX+1}], s[0:1], 0
s_load_dwordx2 s[{P_WQ}:{P_WQ+1}], s[0:1], 16
s_load_dwordx4 s[{P_WK}:{P_WK+3}], s[0:1], 24
s_load_dwordx2 s[{P_WO}:{P_WO+1}], s[0:1], 40
s_load_dwordx2 s[{P_BX}:{P_BX+1}], s[0:1], 56
s_load_dwordx4 s[{P_BW}:{P_BW+3}], s[0:1], 64
s_getpc_b64 s[{S_TAB}:{S_TAB+1}]
W_pc:
s_add_u32 s{S_TAB}, s{S_TAB}, W_table-W_pc
s_addc_u32 s{S_TAB+1}, s{S_TAB+1}, 0
s_waitcnt lgkmcnt(0)""")
    for p in range(P_AX, P_BO + 2, 2): a(f"s_and_b32 s{p+1}, s{p+1}, 0xffff")
    srd(a, S_OUT, 80, 2048 * 4096)
    row_voff(a)
    a(f"""s_mov_b32 s{G_SX+3}, 0x20000
s_mov_b32 s{G_SW+3}, 0x20000
s_mov_b32 s{G_NXOFF}, {OOB:#x}
s_mov_b32 s{G_NWOFF}, {OOB:#x}
v_mov_b32 v5, {L_TICKET:#x}
v_mov_b32 v6, 0""")
    a(f"s_mov_b32 s{S_INIT}, 0")
    def init_check():
        sk = a.uid("ic")
        a(f"s_cmp_eq_u32 s{S_INIT}, 1\ns_cbranch_scc1 {sk}")
        wait_all_arrived(a, 200, 37)
        a(f"s_mov_b32 s{S_INIT}, 1")
        a.label(sk)
    a.label("W_next")
    a(f"""s_cmp_lg_u32 s{S_WAVE}, 0
s_cbranch_scc1 W_tk
v_mov_b32 v1, 1
s_lshl_b32 s36, s{S_GRP}, 2
s_mov_b64 exec, 1
buffer_atomic_add v1, v6, {DBG}, s36 offen offset:{C_Q*4} sc0 sc1
s_waitcnt vmcnt(0)
ds_write_b32 v5, v1
s_mov_b64 exec, -1
s_waitcnt lgkmcnt(0)
W_tk:
s_barrier
ds_read_b32 v1, v5
s_waitcnt lgkmcnt(0)
v_readfirstlane_b32 s36, v1
s_nop 3
s_min_u32 s36, s36, {MAXL}
s_mul_i32 s37, s{S_GRP}, {MAXL+1}
s_add_u32 s36, s36, s37
s_lshl_b32 s36, s36, 3
s_load_dwordx2 s[{S_D0}:{S_D1}], s[{S_TAB}:{S_TAB+1}], s36
s_waitcnt lgkmcnt(0)
s_and_b32 s{S_TYP}, s{S_D0}, 15
s_cmp_eq_u32 s{S_TYP}, 15
s_cbranch_scc1 L_done
s_bfe_u32 s{S_P1}, s{S_D0}, 0x80004
s_bfe_u32 s{S_P2}, s{S_D0}, 0x8000c""")
    if cfg.get("wstamps"):
        a(f"s_memrealtime s[40:41]\ns_lshr_b32 s46, s36, 3")
    a(f"s_cmp_eq_u32 s{S_TYP}, {T_PF}\ns_cbranch_scc1 W_pf")
    a(f"s_cmp_eq_u32 s{S_TYP}, {T_TAIL}\ns_cbranch_scc1 W_tail")
    a(f"""s_bfe_u32 s38, s{S_D1}, 0xc0008
s_cmp_eq_u32 s38, 0
s_cbranch_scc1 W_go
s_cmp_lg_u32 s{S_WAVE}, 0
s_cbranch_scc1 W_go2
""")
    init_check()
    a(f"""s_and_b32 s39, s{S_D1}, 0xff
s_lshl_b32 s39, s39, 7
s_add_u32 s39, s39, {WS_CNT:#x}
W_dep:""")
    budget_head(a)
    a(f"""buffer_load_dword v1, v6, {WS}, s39 offen sc1
s_waitcnt vmcnt(0)
v_readfirstlane_b32 s36, v1
s_nop 3
s_cmp_ge_u32 s36, s38
s_cbranch_scc1 W_go2
s_sleep {cfg.get("dep_sleep", 16)}
s_branch W_dep
W_go2:
s_barrier
W_go:""")
    if cfg.get("wstamps"):
        a(f"s_memrealtime s[42:43]\ns_waitcnt lgkmcnt(0)")
    a(f"""s_cmp_eq_u32 s{S_TYP}, {T_ATT}
s_cbranch_scc1 W_att
s_cmp_ge_u32 s{S_TYP}, {T_OB}
s_cbranch_scc1 W_out
s_mov_b32 s{G_NST}, 16
s_mov_b32 s{G_PX}, 2048
s_mov_b32 s{G_XSTEP}, 128
s_mov_b32 s{G_SX+2}, {2048*2048:#x}
s_cmp_eq_u32 s{S_TYP}, {T_BB}
s_cbranch_scc1 W_bb""")
    def sel_w():
        a(f"""s_mov_b32 s{G_SX}, s{P_AX}
s_mov_b32 s{G_SX+1}, s{P_AX+1}
s_cmp_eq_u32 s{S_MAT}, 1
s_cselect_b32 s{G_SW}, s{P_WK}, s{P_WQ}
s_cselect_b32 s{G_SW+1}, s{P_WK+1}, s{P_WQ+1}
s_cselect_b32 s36, {WS_KX:#x}, {WS_QX:#x}
s_cmp_eq_u32 s{S_MAT}, 2
s_cselect_b32 s{G_SW}, s{P_WV}, s{G_SW}
s_cselect_b32 s{G_SW+1}, s{P_WV+1}, s{G_SW+1}
s_cselect_b32 s36, {WS_VX:#x}, s36
s_add_u32 s{S_EB}, s{S_EB}, s36
s_mov_b32 s{G_SW+2}, {1024*8192:#x}
s_mov_b32 s{G_PW}, 8192""")
    a(f"""s_cmp_eq_u32 s{S_TYP}, {T_BQKV}
s_cbranch_scc1 W_abig""")
    a(f"""s_lshr_b32 s{S_MAT}, s{S_P2}, 5
s_and_b32 s38, s{S_P2}, 31
s_lshl_b32 s{G_XOFF}, s{S_P1}, 18
s_lshl_b32 s{G_WOFF}, s38, 8
s_lshl_b32 s36, s{S_P1}, 1
s_lshr_b32 s37, s{S_WAVE}, 1
s_add_u32 s36, s36, s37
s_lshl_b32 s{S_EB}, s36, 19
s_lshl_b32 s36, s38, 13
s_add_u32 s{S_EB}, s{S_EB}, s36
s_and_b32 s37, s{S_WAVE}, 1
s_cmp_eq_u32 s{S_MAT}, 2
s_cselect_b32 s36, 12, 11
s_lshl_b32 s37, s37, s36
s_add_u32 s{S_EB}, s{S_EB}, s37""")
    sel_w()
    med.setup(a, S_WAVE, False)
    med.prologue(a, False)
    a(f"s_cmp_eq_u32 s{S_MAT}, 2\ns_cbranch_scc1 W_mv")
    med.tile(a, "W", False)
    med.epilogue(a, med.ent_a_qk(), S_WS, S_EB, V_L16, "sc1")
    a("s_branch W_fin")
    a.label("W_mv")
    med.tile(a, "X", False)
    med.epilogue(a, med.ent_a_v(), S_WS, S_EB, V_L16, "sc1")
    a("s_branch W_fin")
    a.label("W_abig")
    a(f"""s_lshr_b32 s{S_MAT}, s{S_P2}, 4
s_and_b32 s38, s{S_P2}, 15
s_lshl_b32 s{G_XOFF}, s{S_P1}, 19
s_lshl_b32 s{G_WOFF}, s38, 9
s_lshl_b32 s36, s{S_P1}, 1
s_lshr_b32 s37, s{S_WAVE}, 1
s_add_u32 s36, s36, s37
s_lshl_b32 s{S_EB}, s36, 20
s_lshl_b32 s36, s38, 1
s_and_b32 s37, s{S_WAVE}, 1
s_add_u32 s36, s36, s37
s_lshl_b32 s36, s36, 13
s_add_u32 s{S_EB}, s{S_EB}, s36""")
    sel_w()
    a("s_branch W_biggo")
    a.label("W_bb")
    cb = f32bits(32 ** -0.5 * LOG2E)
    a(f"""s_lshr_b32 s{S_MAT}, s{S_P2}, 2
s_lshl_b32 s{G_XOFF}, s{S_P1}, 19
s_lshl_b32 s{G_WOFF}, s{S_P2}, 9
s_and_b32 s36, s{S_P2}, 3
s_lshl_b32 s36, s36, 1
s_and_b32 s37, s{S_WAVE}, 1
s_add_u32 s36, s36, s37
s_lshl_b32 s{S_EB}, s36, 19
s_lshl_b32 s36, s{S_P1}, 1
s_lshr_b32 s37, s{S_WAVE}, 1
s_add_u32 s36, s36, s37
s_lshl_b32 s36, s36, 13
s_add_u32 s{S_EB}, s{S_EB}, s36
s_lshl_b32 s36, s{S_MAT}, 22
s_add_u32 s{S_EB}, s{S_EB}, s36
s_add_u32 s{S_EB}, s{S_EB}, {WS_QB:#x}
s_cmp_eq_u32 s{S_MAT}, 0
s_cselect_b32 s{S_C}, {cb:#x}, 1.0
s_mov_b32 s{S_C+1}, s{S_C}
s_mov_b32 s{G_SX}, s{P_BX}
s_mov_b32 s{G_SX+1}, s{P_BX+1}
s_mov_b32 s{G_SW}, s{P_BW}
s_mov_b32 s{G_SW+1}, s{P_BW+1}
s_mov_b32 s{G_SW+2}, {1024*6144:#x}
s_mov_b32 s{G_PW}, 6144""")
    a.label("W_biggo")
    big.setup(a, S_WAVE, False)
    big.prologue(a, False)
    a(f"s_cmp_eq_u32 s{S_MAT}, 2\ns_cbranch_scc1 W_bv")
    big.tile(a, "W", False)
    a(f"s_cmp_eq_u32 s{S_TYP}, {T_BB}\ns_cbranch_scc1 W_e1")
    big.epilogue(a, big.ent_a_qk(), S_WS, S_EB, V_L16, "sc1")
    a("s_branch W_fin")
    a.label("W_e1")
    big.epilogue(a, big.ent_b_qk(), S_WS, S_EB, V_L16, "sc1", scale=S_C)
    a("s_branch W_fin")
    a.label("W_bv")
    big.tile(a, "X", False)
    a(f"s_cmp_eq_u32 s{S_TYP}, {T_BB}\ns_cbranch_scc1 W_e2")
    big.epilogue(a, big.ent_a_v(), S_WS, S_EB, V_L16, "sc1")
    a("s_branch W_fin")
    a.label("W_e2")
    big.epilogue(a, big.ent_b_v(), S_WS, S_EB, V_L16, "sc1")
    a("s_branch W_fin")
    a.label("W_out")
    a(f"""s_mov_b32 s{G_SX}, s{S_WS}
s_mov_b32 s{G_SX+1}, s{S_WS+1}
s_mov_b32 s{G_SX+2}, s{S_WS+2}
s_mov_b32 s{G_PX}, 128
s_mov_b32 s{G_PW}, 2048
s_mov_b32 s{G_XSTEP}, 0x4000
s_lshl_b32 s{G_WOFF}, s{S_P2}, 8
s_lshl_b32 s36, s{S_P1}, 1
s_lshr_b32 s37, s{S_WAVE}, 1
s_add_u32 s36, s36, s37
s_lshl_b32 s{S_EB}, s36, 18
s_lshl_b32 s36, s{S_P2}, 1
s_and_b32 s37, s{S_WAVE}, 1
s_add_u32 s36, s36, s37
s_lshl_b32 s36, s36, 7
s_add_u32 s{S_EB}, s{S_EB}, s36
s_cmp_eq_u32 s{S_TYP}, {T_OA}
s_cselect_b32 s{G_SW}, s{P_WO}, s{P_BO}
s_cselect_b32 s{G_SW+1}, s{P_WO+1}, s{P_BO+1}
s_mov_b32 s36, {1024*2048:#x}
s_cselect_b32 s{G_SW+2}, {4096*2048:#x}, s36
s_cselect_b32 s{G_NST}, 64, 16
s_cselect_b32 s36, 20, 18
s_mov_b32 s37, {WS_OB:#x}
s_cselect_b32 s37, {WS_OX:#x}, s37
s_cselect_b32 s38, 0, 2048
s_lshl_b32 s{G_XOFF}, s{S_P1}, s36
s_add_u32 s{G_XOFF}, s{G_XOFF}, s37
s_add_u32 s{S_EB}, s{S_EB}, s38""")
    med.setup(a, S_WAVE, True)
    med.prologue(a, True, "sc1")
    med.tile(a, "W", True, "sc1")
    med.epilogue(a, med.ent_row(), S_OUT, S_EB, V_ROW, swap=True)
    a("s_branch W_fin")
    a.label("W_pf")
    a(f"""s_cmp_eq_u32 s{S_P1}, 1
s_cselect_b32 s{G_SW}, s{P_WK}, s{P_WQ}
s_cselect_b32 s{G_SW+1}, s{P_WK+1}, s{P_WQ+1}
s_cmp_eq_u32 s{S_P1}, 2
s_cselect_b32 s{G_SW}, s{P_WV}, s{G_SW}
s_cselect_b32 s{G_SW+1}, s{P_WV+1}, s{G_SW+1}
s_cmp_eq_u32 s{S_P1}, 3
s_cselect_b32 s{G_SW}, s{P_WO}, s{G_SW}
s_cselect_b32 s{G_SW+1}, s{P_WO+1}, s{G_SW+1}
s_cselect_b32 s38, 11, 13
s_mov_b32 s{G_SW+2}, {1024*8192:#x}
s_cmp_eq_u32 s{S_P2}, 1
s_cbranch_scc1 W_pf1
v_lshrrev_b32 v1, 3, v0
s_lshl_b32 s36, s{S_WAVE}, 3
v_add_u32 v1, s36, v1
v_lshlrev_b32 v1, s38, v1
v_and_b32 v2, 7, v0
v_lshl_add_u32 v1, v2, 4, v1
s_lshl_b32 s37, 32, s38
s_mov_b32 s39, 32
s_branch W_pfgo
W_pf1:
s_lshr_b32 s36, s{S_WAVE}, 1
s_lshl_b32 s36, s36, 13
s_and_b32 s37, s{S_WAVE}, 1
s_lshl_b32 s37, s37, 10
s_add_u32 s36, s36, s37
v_add_u32 v1, s36, v{V_L16}
s_mov_b32 s37, 0x4000
s_mov_b32 s39, 64
W_pfgo:
s_mov_b32 s36, s{S_D1}
W_pfl:
buffer_load_dwordx4 v[64:67], v1, s[{G_SW}:{G_SW+3}], s36 offen
s_add_u32 s36, s36, s37
s_waitcnt vmcnt(48)
s_sub_u32 s39, s39, 1
s_cmp_lg_u32 s39, 0
s_cbranch_scc1 W_pfl
s_mov_b32 s{S_D1}, {NOSIG << 20:#x}""")
    if cfg.get("wstamps"):
        a("s_waitcnt lgkmcnt(0)\ns_mov_b32 s42, s40")
    a("s_branch W_fin")
    a.label("W_tail")
    if cfg.get("wstamps"):
        a("s_waitcnt lgkmcnt(0)\ns_mov_b32 s42, s40")
    init_check()
    a(f"""s_mov_b32 s{G_SW}, s{P_WO}
s_mov_b32 s{G_SW+1}, s{P_WO+1}
s_mov_b32 s{G_SW+2}, {4096*2048:#x}""")
    tail_task(a, S_WS, G_SW, S_OUT, S_WAVE, S_P1, S_P2, WS_CNT + (C_OXS - 48) * 128, cfg.get("tail_stride", 2), cfg)
    row_voff(a)
    a("s_branch W_fin")
    a.label("W_att")
    battn_task(a, S_WS, S_WAVE, S_P1, S_P2, cfg, "sc1", "sc1")
    row_voff(a)
    a(f"s_mov_b32 s{G_NXOFF}, {OOB:#x}\ns_mov_b32 s{G_NWOFF}, {OOB:#x}")
    a.label("W_fin")
    a(f"""s_waitcnt vmcnt(0) lgkmcnt(0)
s_barrier
s_cmp_lg_u32 s{S_WAVE}, 0
s_cbranch_scc1 W_next""")
    if cfg.get("wstamps"):
        a(f"""s_memrealtime s[44:45]
s_waitcnt lgkmcnt(0)
v_mov_b32 v200, s40
v_mov_b32 v201, s42
v_mov_b32 v202, s44
v_mov_b32 v203, s2
s_lshl_b32 s36, s46, 4
s_add_u32 s36, s36, {0x8000000:#x}
s_mov_b64 exec, 1
buffer_store_dwordx4 v[200:203], v6, {WS}, s36 offen
s_mov_b64 exec, -1""")
    a(f"""s_lshr_b32 s36, s{S_D1}, 20
s_cmp_eq_u32 s36, {NOSIG}
s_cbranch_scc1 W_next""")
    init_check()
    a(f"""s_lshl_b32 s36, s36, 7
s_add_u32 s36, s36, {WS_CNT:#x}
v_mov_b32 v1, 1
s_mov_b64 exec, 1
buffer_atomic_add v1, v6, {WS}, s36 offen sc1
s_mov_b64 exec, -1
s_branch W_next""")
    tab = []
    for l in lists:
        l = l + [(15, 0)] * (MAXL + 1 - len(l))
        tab += [f".long {d0:#x}, {d1:#x}" for d0, d1 in l]
    return tab


def chain_hooks(a):
    def wait_x(vt):
        sk, lp = a.uid("wx"), a.uid("wx")
        a(f"""s_lshr_b32 s{S_T0}, s{S_OFF_B}, 18
s_cmp_ge_u32 s{S_T0}, {NSEG}
s_cbranch_scc1 {sk}
s_cmp_lt_u32 s{S_T0}, 8
s_cselect_b32 s{S_T1}, 3, 7
s_and_b32 s{S_T1}, s{S_T0}, s{S_T1}
s_cmp_lg_u32 s{S_T1}, 0
s_cbranch_scc1 {sk}
s_lshr_b32 s{S_T1}, s{S_T0}, 3
s_add_u32 s{S_T1}, s{S_T1}, 1
s_lshr_b32 s{S_T2}, s{S_T0}, 2
s_cmp_lt_u32 s{S_T0}, 8
s_cselect_b32 s{S_T1}, s{S_T2}, s{S_T1}
s_cselect_b32 s{S_T2}, 6, 3
s_lshl_b32 s{S_T1}, s{S_T1}, 4
s_lshr_b32 s{S_T3}, s{S_HEAD}, 1
s_add_u32 s{S_T1}, s{S_T1}, s{S_T3}
s_lshl_b32 s{S_T1}, s{S_T1}, 7
s_add_u32 s{S_T1}, s{S_T1}, {WS_CNT + C_QKV*128:#x}
{lp}:""")
        budget_head(a)
        a(f"""v_mov_b32 v{vt}, 0
buffer_load_dword v{vt}, v{vt}, {WS}, s{S_T1} offen sc1
s_waitcnt vmcnt(0)
v_readfirstlane_b32 s{S_T3}, v{vt}
s_nop 3
s_cmp_ge_u32 s{S_T3}, s{S_T2}
s_cbranch_scc1 {sk}
s_sleep 4
s_branch {lp}
{sk}:""")
    def signal(vt, seg_sgpr, n=1):
        a(f"""s_lshr_b32 s{S_T1}, s{seg_sgpr}, 2
s_add_u32 s{S_T1}, s{S_T1}, {C_OXB}
s_add_u32 s{S_T2}, s{seg_sgpr}, {C_OXS - 48}
s_cmp_lt_u32 s{seg_sgpr}, 48
s_cselect_b32 s{S_T1}, s{S_T1}, s{S_T2}
s_lshl_b32 s{S_T1}, s{S_T1}, 7
s_add_u32 s{S_T1}, s{S_T1}, {WS_CNT:#x}
v_mov_b32 v{vt}, {n}
v_mov_b32 v{vt+1}, 0
s_mov_b64 exec, 1
buffer_atomic_add v{vt}, v{vt+1}, {WS}, s{S_T1} offen sc1
s_mov_b64 exec, -1""")
    def post_om(vt):
        sk = a.uid("po")
        a(f"""s_cmp_lg_u32 s{S_WAVE}, 0
s_cbranch_scc1 {sk}
s_cmp_lg_u32 s{S_STEP}, {NSEG-1}
s_cbranch_scc1 {sk}
s_sub_u32 s{S_T0}, s{S_STEP}, 1""")
        signal(vt, S_T0)
        a.label(sk)
    def post_vm(vt):
        sk = a.uid("pv")
        a(f"""s_lshl_b32 s{S_T0}, s{S_J}, 2
s_add_u32 s{S_T0}, s{S_T0}, s{S_WAVE}
s_cmp_lg_u32 s{S_T0}, 3
s_cbranch_scc1 {sk}
s_cmp_lt_u32 s{S_STEP}, 2
s_cbranch_scc1 {sk}
s_sub_u32 s{S_T0}, s{S_STEP}, 2""")
        signal(vt, S_T0, 8)
        a.label(sk)
    return {"wait_x": wait_x, "post_om": post_om, "exit": "S_exit"}, {"post_vm": post_vm}, signal


def role_ticket(a, cfg):
    a(f"""v_mov_b32 v2, 0
s_cmp_lg_u32 s{S_WAVE}, 0
s_cbranch_scc1 R_join
s_getreg_b32 s36, hwreg(HW_REG_XCC_ID)
s_and_b32 s36, s36, {cfg.get("xcc_mask", 7)}
s_and_b32 s37, s36, 3
s_lshl_b32 s37, s37, 3
s_lshl_b32 s38, 1, s37
s_and_b32 s39, s36, 4
v_mov_b32 v3, s38
s_mov_b64 exec, 1
buffer_atomic_add v3, v2, {DBG}, s39 offen offset:{C_TK*4} sc0 sc1
s_waitcnt vmcnt(0)
v_readfirstlane_b32 s38, v3
s_nop 3
s_lshr_b32 s38, s38, s37
s_and_b32 s38, s38, 0xff
s_cmp_lt_u32 s38, 32
s_cbranch_scc1 R_have
v_mov_b32 v3, 1
buffer_atomic_add v3, v2, {DBG}, 0 offen offset:{C_OVF*4} sc0 sc1
s_waitcnt vmcnt(0)
v_readfirstlane_b32 s40, v3
R_wait:""")
    budget_head(a)
    a(f"""s_sleep 8
buffer_load_dword v4, v2, {DBG}, 0 offen offset:{C_TK*4} sc1
buffer_load_dword v5, v2, {DBG}, 0 offen offset:{C_TK*4+4} sc1
s_waitcnt vmcnt(0)
v_readfirstlane_b32 s42, v4
v_readfirstlane_b32 s43, v5
s_nop 3
s_mov_b32 s41, 0""")
    for x in range(8):
        a(f"s_bfe_u32 s37, s{42 + x // 4}, {(8 << 16) | (8 * (x % 4)):#x}\ns_add_u32 s41, s41, s37")
    a("""s_cmp_lt_u32 s41, 256
s_cbranch_scc1 R_wait""")
    for x in range(8):
        a(f"""s_bfe_u32 s37, s{42 + x // 4}, {(8 << 16) | (8 * (x % 4)):#x}
s_min_u32 s37, s37, 32
s_mov_b32 s36, {x}
s_add_u32 s38, s37, s40
s_cmp_lt_u32 s38, 32
s_cbranch_scc1 R_have
s_sub_u32 s40, s38, 32""")
    a(f"""s_branch L_fail
R_have:
s_lshl_b32 s38, s38, 3
s_add_u32 s38, s38, s36
v_mov_b32 v3, s38
ds_write_b32 v2, v3
s_mov_b64 exec, -1
s_waitcnt lgkmcnt(0)
R_join:
s_barrier
ds_read_b32 v3, v2
s_waitcnt lgkmcnt(0)
v_readfirstlane_b32 s2, v3
s_nop 3
s_and_b32 s2, s2, 0xff
s_barrier""")


def gen(cfg):
    cfg.setdefault("tail_seg0", 52)
    a = Asm()
    a(f"""s_cmp_ge_u32 s2, 256
s_cbranch_scc1 L_done
v_lshrrev_b32 v1, 6, v0
v_readfirstlane_b32 s{S_WAVE}, v1""")
    srd(a, S_WS, 96, WS_SIZE)
    srd(a, S_DBG, 88, 256)
    a(f"s_mov_b32 s{S_BUDGET}, {POLL_BUDGET}")
    if not cfg.get("static_roles"): role_ticket(a, cfg)
    a(f"""s_and_b32 s{S_TEAM}, s2, 7
s_mov_b32 s{S_GRP}, s{S_TEAM}
s_lshr_b32 s{S_J}, s2, 3
s_mov_b32 s{S_MODE}, 0
s_cmp_ge_u32 s{S_TEAM}, {NT}
s_cbranch_scc1 L_W
s_cmp_ge_u32 s{S_J}, 24
s_cbranch_scc1 L_W
s_cmp_lt_u32 s{S_J}, 8
s_cbranch_scc1 L_S
s_sub_u32 s{S_J}, s{S_J}, 8""")
    hooks, vhooks, signal = chain_hooks(a)
    v_cu(a, cfg, vhooks)
    a.label("L_S")
    s_cu(a, cfg, hooks)
    a.label("S_exit")
    a(f"""s_waitcnt vmcnt(0)
s_barrier
s_cmp_lg_u32 s{S_WAVE}, 0
s_cbranch_scc1 L_done
s_mov_b32 s{S_T0}, {NSEG-1}""")
    signal(60, S_T0)
    a("s_endpgm")
    a.label("L_fail")
    a(f"""v_mov_b32 v1, 0xdead
v_mov_b32 v2, 0
s_mov_b64 exec, 1
buffer_store_dword v1, v2, {DBG}, 0 offen offset:8
s_endpgm""")
    a.label("L_W")
    tab = worker(a, cfg)
    a.label("L_done")
    a("s_endpgm")
    body = a.finalize()
    ref = open("cdna_kernels/" + PFX + ".s.ref").read().split("\n")
    hdr = [l for l in ref if l.startswith(";") and "@launch" not in l and "Override" not in l and "grid=ceil" not in l]
    out = "\n".join(hdr) + "\n"
    out += f"; @launch grid=(256,1,1) block=(256,1,1) lds={LDS_BYTES}\n"
    out += f""".amdgcn_target "amdgcn-amd-amdhsa--gfx950"
.text
.globl {NAME}
.p2align 8
.type {NAME},@function
{NAME}:
""" + body
    out += ".p2align 3\n.type W_table,@object\nW_table:\n" + "\n".join(tab) + f"\n.size W_table, {8*len(tab)}\n"
    out += f"""
.section .rodata,"a"
.p2align 6
.amdhsa_kernel {NAME}
  .amdhsa_next_free_vgpr 512
  .amdhsa_next_free_sgpr 102
  .amdhsa_accum_offset 256
  .amdhsa_group_segment_fixed_size 0
  .amdhsa_kernarg_size 104
  .amdhsa_user_sgpr_count 2
  .amdhsa_user_sgpr_kernarg_segment_ptr 1
  .amdhsa_system_sgpr_workgroup_id_x 1
.end_amdhsa_kernel
"""
    return out


def report(cfg, down):
    import numpy as np
    if cfg.get("wstamps"):
        lists = schedule(cfg); MAXL = max(len(l) for l in lists)
        st = down(0x8000000, np.uint32, (8, MAXL + 1, 4)).astype(np.int64)
        t0 = min(st[g, :len(lists[g]), 0].min() for g in range(8))
        names = ["mqkv", "bqkv", "bb", "att", "ob", "oa", "pf", "tail"]
        for g in cfg.get('show', (0, 4, 7)):
            l = lists[g]; i = 0
            while i < len(l):
                j = i
                key = lambda d: (d[0] & 15, (d[0] >> 4) & 255 if (d[0] & 15) not in (T_BB, T_BQKV, T_PF, T_TAIL) else 0)
                while j < len(l) and key(l[j]) == key(l[i]): j += 1
                x = (st[g, i:j, :3] - t0) / 100.0
                print(f"  g{g} {names[l[i][0]&15]:5s} p1={(l[i][0]>>4)&255:2d} n={j-i:2d} deq {x[:,0].min():6.1f}-{x[:,0].max():6.1f} start {x[:,1].min():6.1f}-{x[:,1].max():6.1f} end {x[:,2].min():6.1f}-{x[:,2].max():6.1f} dur {(x[:,2]-x[:,1]).mean():5.1f}")
                i = j
        if cfg.get("stamps"):
            T = down(WS_STAMP, np.uint32, (256, 4, 64, 64))[:, :, :, :8].astype(np.int64)
            s4 = (T[0, 0, :, 4] - t0) / 100.0
            print("  chain OM publish times:", [float(round(x, 1)) for x in s4[[0, 1, 2, 3, 4, 5, 8, 9, 16, 17, 24, 32, 40, 48, 56, 63]]])
            Sw = [g + 8*j for g in range(4) for j in range(8)]
            Vw = [g + 8*j for g in range(4) for j in range(8, 24)]
            if cfg.get("sst"):
                for nm_, W_ in (("S", Sw), ("V", Vw)):
                    for i in (6, 7):
                        x = (T[W_][:, :, 1, i] - t0) / 100.0
                        print("  startup", nm_, i, x.min(), np.median(x), x.max())
                        np.set_printoptions(linewidth=250, precision=0, suppress=True)
                        if cfg.get('sst') == 2: print(x[:, 0].reshape(4, -1))
            print("  S loop first entry", (T[Sw][:, :, 0, 0].min() - t0) / 100.0, (T[Sw][:, :, 0, 0].max() - t0) / 100.0)
            if len(cfg.get("stamp_set", range(8))) > 3:
                for st_ in (21, 35, 58):
                    base = T[Vw][:, :, st_-1, 5].min()
                    tS = (T[Sw][:, :, st_, :6] - base) * 10; tV = (T[Vw][:, :, st_, :6] - base) * 10; tVp = (T[Vw][:, :, st_-1, 5] - base) * 10
                    print("  step", st_, "V pub(prev) min/med/max", tVp.min(), np.median(tVp), tVp.max())
                    for i in cfg["stamp_set"]: print("   S stamp", i, tS[:, :, i].min(), np.median(tS[:, :, i]), tS[:, :, i].max(), "   V stamp", i, tV[:, :, i].min(), np.median(tV[:, :, i]), tV[:, :, i].max())


if __name__ == "__main__":
    cfg = eval(sys.argv[2]) if len(sys.argv) > 2 else {}
    open(sys.argv[1] if len(sys.argv) > 1 else "cdna_kernels/" + PFX + ".s", "w").write(gen(cfg))
```

```python
from asmgen import *
from chain import f32bits
from battn import WS_QB, WS_KB, WS_VB, WS_OB

B_KOFF, B_VOFF, B_CNT, B_M0, B_FLOOR, B_THR, B_SAFE = 52, 53, 55, 82, 56, 57, 54
VL, V_L16 = 0, 4
vKA, vVA, vMX, vT1, vT2, vOO = 8, 9, 10, 11, 12, 13
DL = 14
ONES = 16
Q, KF, VF, P = 20, 36, 52, 68
NEGM, S0 = 84, 116
O, L = 180, 212
L_VOTE = 0x27f10
M32 = "v_mfma_f32_32x32x16_bf16"


def battn_task(a, ws, s_wave, s_head, s_qb, cfg, ldflags="", stflags="", hooks=None):
    WS = f"s[{ws}:{ws+3}]"
    T = cfg.get("thr", 16.0)
    restart = a.uid("br")
    a(f"s_mov_b32 s{B_SAFE}, {1 if cfg.get('att_safe') else 0}")
    a.label(restart)
    a(f"""s_lshl_b32 s36, s{s_head}, 17
s_lshl_b32 s37, s{s_wave}, 10
s_add_u32 s36, s36, s37
s_add_u32 s{B_KOFF}, s36, {WS_KB:#x}
s_add_u32 s{B_VOFF}, s36, {WS_VB:#x}
s_mov_b32 s{B_M0}, s37
s_lshl_b32 s37, s{s_wave}, 12""")

    def dma(isv):
        o = B_VOFF if isv else B_KOFF
        t = [f"s_add_u32 m0, s{B_M0}, {0x10000 * isv:#x}",
             f"buffer_load_dwordx4 v{V_L16}, {WS}, s{o} offen {ldflags} lds\ns_add_u32 s{o}, s{o}, 0x1000"]
        if isv: t[1] += f"\ns_add_u32 s{B_M0}, s{B_M0}, 0x1000\ns_and_b32 s{B_M0}, s{B_M0}, 0xffff"
        return t
    a(f"""s_lshl_b32 s36, s{s_head}, 17
s_lshl_b32 s38, s{s_qb}, 14
s_add_u32 s36, s36, s38
s_add_u32 s36, s36, s37
s_add_u32 s36, s36, {WS_QB:#x}""")
    for i in range(4):
        a(f"buffer_load_dwordx4 {vr(Q+4*i,4)}, v{V_L16}, {WS}, s36 offen offset:{i*1024} {ldflags}")
    for c in range(9):
        for d in dma(0) + dma(1): a(d)
    for i in range(4): a(f"v_mov_b32 v{ONES+i}, 0x3f803f80")
    for i in range(4): a(f"v_mov_b32 v{P+12+i}, 0\nv_mov_b32 v{VF+12+i}, 0")
    for i in range(32): a(f"v_mov_b32 v{NEGM+i}, 0")
    for i in range(32): a(f"v_mov_b32 v{O+i}, 0")
    for i in range(32): a(f"v_mov_b32 v{L+i}, 0")
    a(f"""v_mov_b32 v{vKA}, v{V_L16}
v_add_u32 v{vVA}, 0x10000, v{V_L16}
s_mov_b32 s{B_FLOOR}, 0xff800000
s_mov_b32 s{B_THR}, {f32bits(T):#x}
s_mov_b32 s{B_CNT}, 0
s_waitcnt vmcnt(10)
s_barrier""")
    if hooks: a(hooks["post_bar"]())

    def kread(par):
        return [f"ds_read_b128 {vr(KF+8*par+4*i,4)}, v{vKA} offset:{i*1024}" for i in range(2)] + \
               [f"v_add_u32 v{vKA}, 0x800, v{vKA}", f"v_and_b32 v{vKA}, 0xffff, v{vKA}"]
    def vread(par):
        return [f"ds_read_b128 {vr(VF+8*par+4*i,4)}, v{vVA} offset:{i*1024}" for i in range(2)] + \
               [f"v_add_u32 v{vVA}, 0x800, v{vVA}", f"v_and_or_b32 v{vVA}, v{vVA}, s39, v{vT2}"]
    def smf(par, qh, ks):
        d = S0 + 32 * par + 16 * qh
        C = vr(NEGM + 16 * qh, 16) if ks == 0 else vr(d, 16)
        return f"{M32} {vr(d,16)}, {vr(KF+8*par+4*ks,4)}, {vr(Q+8*qh+4*ks,4)}, {C}"
    def pvm(par, qh, ks):
        return f"{M32} {vr(O+16*qh,16)}, {vr(VF+8*par+4*ks,4)}, {vr(P+8*qh+4*ks,4)}, {vr(O+16*qh,16)}"
    def lsm(qh, ks):
        return f"{M32} {vr(L+16*qh,16)}, {vr(ONES,4)}, {vr(P+8*qh+4*ks,4)}, {vr(L+16*qh,16)}"

    def rare(par, back_fast, back_safe):
        for qh in range(2):
            b = S0 + 32 * par + 16 * qh
            a(f"v_max3_f32 v{vT1}, v{b}, v{b+1}, v{b+2}")
            for i in range(3, 15, 2): a(f"v_max3_f32 v{vT1}, v{vT1}, v{b+i}, v{b+i+1}")
            a(f"""v_max_f32 v{vT1}, v{vT1}, v{b+15}
v_mov_b32 v{vMX}, v{vT1}
v_permlane32_swap_b32 v{vT1}, v{vMX}
v_max_f32 v{vT1}, v{vT1}, v{vMX}
v_max_f32 v{DL}, s{B_FLOOR}, v{vT1}
v_max_f32 v{vT1}, 0, v{vT1}
v_exp_f32 v{DL+1}, -v{vT1}""")
            for i in range(16): a(f"v_sub_f32 v{b+i}, v{b+i}, v{DL}")
            for i in range(16): a(f"v_sub_f32 v{NEGM+16*qh+i}, v{NEGM+16*qh+i}, v{DL}")
            for i in range(16): a(f"v_mul_f32 v{O+16*qh+i}, v{O+16*qh+i}, v{DL+1}")
            a(f"v_mul_f32 v{L+16*qh}, v{L+16*qh}, v{DL+1}")
        a(f"s_mov_b32 s{B_FLOOR}, 0")
        if back_fast:
            a(f"s_cmp_eq_u32 s{B_SAFE}, 0\ns_cbranch_scc1 {back_fast}")
        a(f"s_branch {back_safe}")

    a(f"s_mov_b32 s39, 0xffff\nv_mov_b32 v{vT2}, 0x10000")
    for x in kread(0) + kread(1) + vread(0): a(x)
    a("s_waitcnt lgkmcnt(0)")
    for qh in range(2):
        for ks in range(2): a(smf(0, qh, ks))
    r0, r1, fin = (a.uid("ba") for _ in range(3))
    if cfg.get("att_st") == 1: a("s_memtime s[76:77]\ns_waitcnt lgkmcnt(0)")
    a(f"s_branch {r0}")
    heads = {}
    for safe in (0, 1):
        lp, b1 = a.uid("bl"), a.uid("bl")
        heads[safe] = (lp, b1)
        for par in range(2):
            a.label(lp if par == 0 else b1)
            if par == 0:
                sk, ck = a.uid("bs"), a.uid("bs")
                a(f"""s_and_b32 s36, s{B_CNT}, 3
s_cmp_eq_u32 s36, 3
s_cbranch_scc1 {ck}
{sk}:""")
                def chunk(sk=sk, ck=ck):
                    a(f"""{ck}:
s_waitcnt vmcnt(8)
s_barrier
s_cmp_ge_u32 s{B_CNT}, 23
s_cselect_b32 s{B_KOFF}, 0x7f000000, s{B_KOFF}
s_cselect_b32 s{B_VOFF}, 0x7f000000, s{B_VOFF}""")
                    a(f"s_branch {sk}")
                a.defer(chunk)
            a("s_waitcnt lgkmcnt(0)")
            extra = kread(par) + vread(1 - par)
            mf = {0: [smf(1 - par, 0, 0), None], 1: [smf(1 - par, 0, 1), None],
                  2: [smf(1 - par, 1, 0), pvm(par, 0, 0)], 3: [smf(1 - par, 1, 1), lsm(0, 0)],
                  4: [None, pvm(par, 0, 1)], 5: [None, lsm(0, 1)], 6: [None, pvm(par, 1, 0)], 7: [None, lsm(1, 0)]}
            if not safe:
                mf[0][1] = pvm(1 - par, 1, 1); mf[1][1] = lsm(1, 1)
            nb = S0 + 32 * (1 - par)
            mxs = [f"v_max_f32 v{vMX}, v{nb}, v{nb+1}"] + [f"v_max3_f32 v{vMX}, v{vMX}, v{nb+2*i}, v{nb+2*i+1}" for i in range(1, 16)]
            if not safe:
                items = []
                for g in range(8):
                    b = S0 + 32 * par + 4 * g
                    items.append((f"v_exp_f32 v{b}, v{b}", 8))
                    if g > 0: items.append((f"v_cvt_pk_bf16_f32 v{P+2*g-1}, v{b-2}, v{b-1}", 4))
                    items.append((f"v_exp_f32 v{b+1}, v{b+1}", 8))
                    items.append((extra.pop(0), 4))
                    items.append((f"v_exp_f32 v{b+2}, v{b+2}", 8))
                    items.append((f"v_cvt_pk_bf16_f32 v{P+2*g}, v{b}, v{b+1}", 4))
                    items.append((f"v_exp_f32 v{b+3}, v{b+3}", 8))
                    if g in (2, 3): items.append((dma(par)[g - 2], 0))
                ms = [smf(1 - par, 0, 0), pvm(1 - par, 1, 1), smf(1 - par, 0, 1), lsm(1, 1), pvm(par, 0, 0), smf(1 - par, 1, 0),
                      lsm(0, 0), pvm(par, 0, 1), smf(1 - par, 1, 1), lsm(0, 1), pvm(par, 1, 0), lsm(1, 0)]
                cost = 0; k = 0
                for ins, c in items:
                    if k < 12 and cost >= k * 29.5:
                        a(ms[k]); k += 1
                    a(ins); cost += c
                assert k == 12
            for g in range(8 if safe else 0):
                b = S0 + 32 * par + 4 * g
                m = mf[g]
                if m[0]: a(m[0])
                a(f"v_exp_f32 v{b}, v{b}")
                if g > 0: a(f"v_cvt_pk_bf16_f32 v{P+2*g-1}, v{b-2}, v{b-1}")
                a(f"v_exp_f32 v{b+1}, v{b+1}")
                if extra: a(extra.pop(0))
                a(f"v_exp_f32 v{b+2}, v{b+2}")
                if m[1]: a(m[1])
                a(f"v_cvt_pk_bf16_f32 v{P+2*g}, v{b}, v{b+1}")
                a(f"v_exp_f32 v{b+3}, v{b+3}")
                if g in (2, 3): a(dma(par)[g - 2])
                if g >= 3:
                    for _ in range(3 if g != 4 else 2):
                        if mxs and not (g < 5 and len(mxs) <= 8): a(mxs.pop(0))
            b = S0 + 32 * par + 28
            if par == 1: a(f"s_add_u32 s{B_CNT}, s{B_CNT}, 1")
            a(f"v_cvt_pk_bf16_f32 v{P+15}, v{b+2}, v{b+3}")
            if safe:
                for x in mxs: a(x)
                a(f"v_cmp_lt_f32 vcc, s{B_THR}, v{vMX}")
            if par == 1: a(f"s_cmp_eq_u32 s{B_CNT}, 32")
            if safe:
                a(pvm(par, 1, 1))
                a(lsm(1, 1))
            if par == 0:
                if safe: a(f"s_cbranch_vccnz {r1}")
            elif safe:
                a(f"s_cbranch_scc1 {fin}\ns_cbranch_vccz {lp}\ns_branch {r0}")
            else:
                a(f"s_cbranch_scc0 {lp}")
                a(pvm(1, 1, 1)); a(lsm(1, 1))
                a(f"s_branch {fin}")
    a.label(r0)
    rare(0, heads[0][0], heads[1][0])
    a.label(r1)
    rare(1, None, heads[1][1])
    a.flush_deferred()
    a.label(fin)
    if hooks: a(hooks["ticket_now"]())
    if cfg.get("att_st") == 2: a("s_memtime s[76:77]\ns_waitcnt lgkmcnt(0)")
    ok = a.uid("bo")
    lim = f32bits(cfg.get("att_lim", 2.0 ** 40))
    a(f"""s_cmp_eq_u32 s{B_SAFE}, 1
s_cbranch_scc1 {ok}
s_mov_b32 s36, {lim:#x}
v_max_f32 v{vT1}, v{L}, v{L+16}
v_cmp_ngt_f32 vcc, s36, v{L}
v_cmp_ngt_f32 s[38:39], s36, v{L+16}
s_or_b64 vcc, vcc, s[38:39]
s_cmp_lg_u64 vcc, 0
s_cselect_b32 s36, 1, 0
v_mov_b32 v{vT1}, s36
s_lshl_b32 s37, s{s_wave}, 2
s_add_u32 s37, s37, {L_VOTE:#x}
v_mov_b32 v{vT2}, s37
ds_write_b32 v{vT2}, v{vT1}
v_mov_b32 v{vT2}, {L_VOTE:#x}
s_waitcnt vmcnt(0) lgkmcnt(0)
s_barrier
ds_read_b128 {vr(KF,4)}, v{vT2}
s_waitcnt lgkmcnt(0)
v_or3_b32 v{vT1}, v{KF}, v{KF+1}, v{KF+2}
v_or_b32 v{vT1}, v{vT1}, v{KF+3}
v_readfirstlane_b32 s36, v{vT1}
s_nop 3
s_cmp_eq_u32 s36, 0
s_cbranch_scc1 {ok}
s_mov_b32 s{B_SAFE}, 1
s_branch {restart}
{ok}:""")
    a(f"""v_and_b32 v{vT1}, 7, v{VL}
v_lshlrev_b32 v{vOO}, 6, v{vT1}
v_bfe_u32 v{vT1}, v{VL}, 3, 1
v_lshl_add_u32 v{vOO}, v{vT1}, 10, v{vOO}
v_bfe_u32 v{vT1}, v{VL}, 4, 1
v_lshl_add_u32 v{vOO}, v{vT1}, 5, v{vOO}
v_lshrrev_b32 v{vT1}, 5, v{VL}
v_lshl_add_u32 v{vOO}, v{vT1}, 4, v{vOO}
s_lshl_b32 s36, s{s_qb}, 19
s_lshr_b32 s37, s{s_wave}, 1
s_lshl_b32 s37, s37, 18
s_add_u32 s36, s36, s37
s_and_b32 s37, s{s_wave}, 1
s_lshl_b32 s37, s37, 12
s_add_u32 s36, s36, s37
s_lshl_b32 s37, s{s_head}, 13
s_add_u32 s36, s36, s37
s_add_u32 s36, s36, {WS_OB:#x}""")
    for qh in range(2):
        a(f"v_rcp_f32 v{DL}, v{L+16*qh}")
        for i in range(0, 16, 2):
            a(f"v_pk_mul_f32 {vr(O+16*qh+i,2)}, {vr(O+16*qh+i,2)}, {vr(DL,2)} op_sel_hi:[1,0]")
        d = S0 + 8 * qh
        for j in range(2):
            for k, i in enumerate((j, j + 2)):
                for h in range(2):
                    a(f"v_cvt_pk_bf16_f32 v{d+4*j+2*k+h}, v{O+16*qh+4*i+2*h}, v{O+16*qh+4*i+2*h+1}")
        for r in range(4): a(f"v_permlane16_swap_b32 v{d+r}, v{d+4+r}")
        for j in range(2):
            a(f"buffer_store_dwordx4 {vr(d+4*j,4)}, v{vOO}, {WS}, s36 offen offset:{qh*2048 + j*512} {stflags}")
    a("s_waitcnt lgkmcnt(0)")
```

```python
from asmgen import *
import chain
from tail import WS_OXF
from chain import (WS_KX, WS_QX, WS_VX, WS_OX, WS_MEMT, WS_VM, WS_OM, WS_PART, WS_STAMP, WS_SIZE, NSEG, NT, NCHAIN,
                   S_WS, S_DBG, S_W0, S_W1, S_W2, S_WAVE, S_TEAM, S_J, S_MODE, S_STEP, S_C,
                   S_T0, S_T1, S_T2, S_T3, S_T4, S_T5, S_OFF_A, S_OFF_B, S_OFF_C, S_OFF_D, S_OFF_E, S_OFF_F,
                   S_BUDGET, S_HEAD, S_TS, POLL_BUDGET, LOG2E, f32bits, srd, store_mode, check_regs, poll, budget_head,
                   stamp, stamp_flush, xlane_reduce, idx_reg, L_MEM, L_QK, L_QX, L_RED, L_W, LDS_BYTES, S_MK0, S_MKC, S_WOFF)

S_NEAR = 81
S_PCUR = 82
JIT = 4
WS = f"s[{S_WS}:{S_WS+3}]"
DBG = f"s[{S_DBG}:{S_DBG+3}]"
OOBV = 0x7f000000


WS_CNT = 0x4C00000
WS_KM = 0x4D00000


def arrive(a, vt):
    skip = a.uid("ar")
    a(f"""s_cmp_lg_u32 s{S_WAVE}, 0
s_cbranch_scc1 {skip}
v_mov_b32 v{vt+2}, 0
s_getreg_b32 s{S_T0}, hwreg(HW_REG_XCC_ID)
s_and_b32 s{S_T0}, s{S_T0}, 7
s_lshl_b32 s{S_T1}, s{S_TEAM}, 3
s_add_u32 s{S_T0}, s{S_T0}, s{S_T1}
s_lshl_b32 s{S_T0}, 1, s{S_T0}
v_mov_b32 v{vt}, s{S_T0}
v_mov_b32 v{vt+1}, 1
s_mov_b64 exec, 1
buffer_atomic_or v{vt}, v{vt+2}, {DBG}, 0 offen offset:4 sc1
s_waitcnt vmcnt(0)
buffer_atomic_add v{vt+1}, v{vt+2}, {DBG}, 0 offen sc1
s_mov_b64 exec, -1
{skip}:""")


def wait_all_arrived(a, vt, t0=S_T0):
    lp, ok = a.uid("sb"), a.uid("sb")
    a(f"v_mov_b32 v{vt+4}, 0")
    a.label(lp)
    budget_head(a)
    a(f"""buffer_load_dwordx4 {vr(vt,4)}, v{vt+4}, {DBG}, 0 offen sc1
s_waitcnt vmcnt(0)
v_readfirstlane_b32 s{t0}, v{vt}
s_nop 3
s_cmp_ge_u32 s{t0}, {NCHAIN}
s_cbranch_scc1 {ok}
s_sleep 8
s_branch {lp}
{ok}:""")


def startup_barrier(a, vt):
    wait_all_arrived(a, vt)
    a(f"""v_readfirstlane_b32 s{S_T1}, v{vt+1}
v_readfirstlane_b32 s{S_NEAR}, v{vt+3}
s_nop 3
s_lshl_b32 s{S_T2}, s{S_TEAM}, 3
s_lshr_b32 s{S_T1}, s{S_T1}, s{S_T2}
s_and_b32 s{S_T1}, s{S_T1}, 0xff
s_bcnt1_i32_b32 s{S_T1}, s{S_T1}
s_cmp_eq_u32 s{S_T1}, 1
s_cselect_b32 s{S_MODE}, 1, 0""")


def sstamp(a, idx, cfg):
    if cfg.get("sst"):
        a(f"s_memrealtime s[{S_TS}:{S_TS+1}]\ns_waitcnt lgkmcnt(0)\ns_mov_b32 s{60+idx}, s{S_TS}")


def probe(a, name, cfg):
    if cfg.get("at") == name: stamp(a, 7, cfg)


def store_mode2(a, instr):
    l1, l2 = a.uid("sm"), a.uid("sm")
    a(f"""s_cbranch_scc0 {l1}
{instr}
{l2}:""")
    a.defer(lambda: a(f"""{l1}:
{instr} sc1
s_branch {l2}"""))


class SPoll:
    def __init__(self, a, loads, regs, vt, cap=1, sleep=0, pre_sleep=0, respin=0):
        self.respin = respin
        self.a, self.loads, self.regs, self.vt, self.cap, self.sleep, self.pre_sleep = a, loads, regs, vt, cap, sleep, pre_sleep
    def prefill(self):
        for b in self.regs:
            for r in range(4): self.a(f"v_mov_b32 v{b+r}, -1")
    def _body(self, f, lp):
        a = self.a
        ok = a.uid("so")
        a.label(lp)
        a.fill(1)
        for x in self.loads[f:]:
            a(x); a.fill(1)
        budget_head(a)
        a(f"s_waitcnt vmcnt({min(63, self.cap * (len(self.loads) - f))})")
        for k in range(self.sleep):
            self.pre(f)
            a.fill(5)
            a(f"s_cbranch_vccz {ok}")
        self.pre(f)
        a.fill(5)
        a(f"s_cbranch_vccnz {lp}")
        a.label(ok)
    def first(self, prefill=True, arm=0, arm_fill=8, arm_cap=3):
        a = self.a
        if prefill: self.prefill()
        if self.pre_sleep: a.fill(self.pre_sleep)
        if arm:
            lp = a.uid("sa")
            if arm < 64: a(f"s_mov_b64 exec, {(1 << arm) - 1:#x}")
            a.label(lp)
            a.fill(1)
            a(self.loads[0])
            budget_head(a)
            a.fill(arm_fill)
            a(f"s_waitcnt vmcnt({arm_cap})")
            self.pre(0)
            a.fill(5)
            a(f"s_cbranch_vccnz {lp}")
            if arm < 64:
                a("s_mov_b64 exec, -1")
            else:
                for x in self.loads[1:]: a(x)
                self.fresh = True
                return
        self._body(0, a.uid("sp"))
    def pre(self, f):
        b, t = self.regs[f], self.vt
        if isinstance(b, list):
            a = self.a
            a(f"v_max3_u32 v{t}, v{b[0]}, v{b[1]}, v{b[2]}")
            rest = b[3:]
            while rest:
                if len(rest) >= 2: a(f"v_max3_u32 v{t}, v{t}, v{rest[0]}, v{rest[1]}"); rest = rest[2:]
                else: a(f"v_max_u32 v{t}, v{t}, v{rest[0]}"); rest = rest[1:]
            a(f"v_cmp_eq_u32 vcc, {chain.SENTINEL[0]}, v{t}")
            return
        self.a(f"v_max3_u32 v{t}, v{b}, v{b+1}, v{b+2}\nv_max_u32 v{t}, v{t}, v{b+3}\nv_cmp_eq_u32 vcc, {chain.SENTINEL[0]}, v{t}")
    def pre3(self, f):
        b, t = self.regs[f], self.vt
        return [f"v_max3_u32 v{t}, v{b}, v{b+1}, v{b+2}", f"v_max_u32 v{t}, v{t}, v{b+3}", f"v_cmp_eq_u32 vcc, {chain.SENTINEL[0]}, v{t}"]
    def br(self, f):
        a = self.a
        lp, back = a.uid("sp"), a.uid("sb")
        a(f"s_cbranch_vccnz {lp}")
        a.label(back)
        def ool():
            a.label(lp)
            for k in range(self.respin):
                self.pre(f); a.fill(5); a(f"s_cbranch_vccz {back}")
            self._body(f, a.uid("sp")); a(f"s_branch {back}")
        a.defer(ool)


def ring_poll(a, loads, regs, vt, consume, join, space=4, on_first=None):
    R = [a.uid("rp") for _ in range(4)]
    C = [a.uid("rc") for _ in range(4)]
    def pre3(g):
        b = regs[g]
        return [f"v_max3_u32 v{vt}, v{b}, v{b+1}, v{b+2}", f"v_max_u32 v{vt}, v{vt}, v{b+3}", f"v_cmp_eq_u32 vcc, {chain.SENTINEL[0]}, v{vt}"]
    for f in range(3):
        a(loads[f]); a.fill(space)
    for f in range(4):
        a.label(R[f])
        a(loads[(f + 3) % 4])
        if f == 0: budget_head(a)
        a("s_waitcnt vmcnt(3)")
        for x in pre3(f): a(x)
        a.fill(5)
        a(f"s_cbranch_vccz {C[f]}" if f < 3 else f"s_cbranch_vccnz {R[0]}")
    def body(f):
        a.label(C[f])
        if on_first: on_first()
        for k in range(4):
            g = (f + k) % 4
            chk = []
            if k < 3:
                n = (g + 1) % 4
                rt, back = a.uid("rr"), a.uid("rb")
                chk = [f"s_waitcnt vmcnt({2 - k})"] + pre3(n) + [f"s_cbranch_vccnz {rt}\n{back}:"]
                def retry(n=n, rt=rt, back=back):
                    a.label(rt)
                    a(loads[n])
                    budget_head(a)
                    a("s_waitcnt vmcnt(0)")
                    for x in pre3(n): a(x)
                    a(f"s_cbranch_vccnz {rt}\ns_branch {back}")
                a.defer(retry)
            consume(g, k, chk)
    body(3)
    for f in range(3):
        def ool(f=f):
            body(f); a(f"s_branch {join}")
        a.defer(ool)
    a.label(join)


class Lds:
    def __init__(self, a):
        self.a = a; self.issued = []; self.done = -1
    def op(self, tag, ins):
        self.a(ins); self.issued.append(tag)
    def wait(self, *tags):
        idx = max((i for i, t in enumerate(self.issued) if t in tags), default=-1)
        if idx > self.done:
            self.a(f"s_waitcnt lgkmcnt({min(15, len(self.issued) - 1 - idx)})")
            self.done = idx
    def wait_all(self):
        self.a("s_waitcnt lgkmcnt(0)"); self.done = len(self.issued) - 1


def s_cu(a, cfg, hooks=None):
    hooks = hooks or {}
    vT, vL16, vGW, vA1, vA2, vA3, vBL, vQKW, vQKR, vIDX, vOXO, vVMO = range(12)
    KX, VX = 12, 44
    P = 52
    ACC, G, BR, AR = P, P + 16, P + 32, P + 56
    NB, NA = 3, 5
    QF, OXR, T12, OMR, KMF, T0 = BR, BR + 16, ACC, ACC + 8, AR, AR + 16
    VM, PX, PM, MI = G, G + 4, G + 8, G + 10
    vLANE, vD, vWT = 124, 125, 126
    cfg = dict(cfg); cfg["stamp_reg"] = MI + 4; cfg["lane4_reg"] = MI + 5

    stream = [4, 8, 12, 5, 9, 13, 6, 10, 14, 7, 11, 15]
    order = [(0, t) for t in range(4)] + [(1, t) for t in range(4)]
    order += [(s, t) for s in (2, 3) for t in (0, 1)]
    for s in stream[:8]: order += [(s, t) for t in range(4)]
    order += [(s, t) for s in stream[8:] for t in (0, 1)]
    q_end = len(order) - 1
    order += [(s, t) for s in (2, 3) for t in (2, 3)]
    order += [(s, t) for s in stream[8:] for t in (2, 3)]
    assert len(order) == 64 and len(set(order)) == 64
    lpos = [round(1 + i * 3.2) for i in range(16)]
    assert lpos[-1] <= q_end
    lds_tiles = [order[p] for p in lpos]
    regmap = {}
    n = 0
    for st in order:
        if st in lds_tiles: continue
        regmap[st] = ("a", n * 8) if n < 32 else ("v", 128 + (n - 32) * 8)
        n += 1

    a(f"""s_lshl_b32 s{S_HEAD}, s{S_TEAM}, 3
s_add_u32 s{S_HEAD}, s{S_HEAD}, s{S_J}""")
    srd(a, S_W0, 16, 1024 * 8192)
    srd(a, S_W1, 24, 1024 * 8192)
    arrive(a, 20)
    a(f"v_and_b32 v{vLANE}, 63, v0")
    a(f"v_lshlrev_b32 v{vL16}, 4, v{vLANE}")
    a(f"""v_lshrrev_b32 v{vT}, 3, v{vLANE}
v_lshlrev_b32 v{vD}, 13, v{vT}
v_and_b32 v{vT}, 7, v{vLANE}
v_lshl_add_u32 v{vD}, v{vT}, 4, v{vD}
s_lshl_b32 s{S_T0}, s{S_HEAD}, 8
s_lshr_b32 s{S_T1}, s{S_WAVE}, 1
s_lshl_b32 s{S_T5}, s{S_T1}, 22
s_lshl_b32 s{S_T2}, s{S_T1}, 16
s_add_u32 s{S_T2}, s{S_T2}, {L_W:#x}
s_lshl_b32 s{S_T1}, s{S_T1}, 7
s_add_u32 s{S_T0}, s{S_T0}, s{S_T1}
v_add_u32 v{vD}, s{S_T0}, v{vD}
s_and_b32 s{S_T1}, s{S_WAVE}, 1
s_cmp_eq_u32 s{S_T1}, 1
s_cselect_b32 s{S_W2}, s{S_W1}, s{S_W0}
s_cselect_b32 s{S_W2+1}, s{S_W1+1}, s{S_W0+1}
s_mov_b32 s{S_W2+2}, {1024*8192:#x}
s_mov_b32 s{S_W2+3}, 0x20000
s_lshl_b32 s{S_T0}, s{S_T1}, 14
s_add_u32 s{S_OFF_E}, s{S_T2}, s{S_T0}
v_add_u32 v{vBL}, s{S_OFF_E}, v{vL16}""")
    a(f"""v_bfe_u32 v{vT}, v{vLANE}, 5, 1
v_lshlrev_b32 v{vWT}, 11, v{vT}
v_bfe_u32 v{vT}, v{vLANE}, 3, 1
v_lshl_add_u32 v{vWT}, v{vT}, 10, v{vWT}
v_bfe_u32 v{vT}, v{vLANE}, 4, 1
v_lshl_add_u32 v{vWT}, v{vT}, 9, v{vWT}
v_bfe_u32 v{vT}, v{vLANE}, 2, 1
v_lshl_add_u32 v{vWT}, v{vT}, 7, v{vWT}
v_and_b32 v{vT}, 3, v{vLANE}
v_lshl_add_u32 v{vWT}, v{vT}, 3, v{vWT}
s_mul_i32 s{S_T0}, s{S_T1}, {8192 + 64}
s_add_u32 s{S_T0}, s{S_T0}, s{S_T2}
v_add_u32 v{vWT}, s{S_T0}, v{vWT}
v_xor_b32 v{vWT+1}, 0x2000, v{vWT}""")
    cnt = {s: sum(1 for x in lds_tiles if x[0] == s) for s in range(16)}
    js = [j for j in range(16) if not j & 4]
    key = lambda j: cnt[j] + cnt[j ^ 4]
    jorder = sorted([j for j in js if j % 4 < 2], key=key) + sorted([j for j in js if j % 4 >= 2], key=key)
    hold = list(range(12, 124 - 7, 8))
    held = []
    def issue_stage(n):
        j = jorder[n]
        a(f"s_xor_b32 s{S_T3}, s{S_T5}, {j << 19:#x}")
        for b2 in range(2):
            for i in range(8):
                a(f"s_add_u32 m0, s{S_OFF_E}, {(n % 2) * 32768 + b2 * 8192 + i * 1024}")
                a(f"s_add_u32 s{S_T4}, s{S_T3}, {(b2 * 256 + i * 8) * 8192:#x}")
                a(f"buffer_load_dwordx4 v{vD}, s[{S_W2}:{S_W2+3}], s{S_T4} offen lds")
    issue_stage(0); issue_stage(1)
    lds_addr = {}
    for n in range(8):
        j = jorder[n]
        a(f"s_waitcnt vmcnt({16 if n < 7 else 0})\ns_barrier")
        for b2 in range(2):
            s = j ^ (4 * b2)
            for t in range(4):
                if (s, t) in regmap:
                    k, b = regmap[(s, t)]
                else:
                    k, b = "v", hold.pop(0); held.append(((s, t), b))
                for v in range(4):
                    off = (n % 2) * 32768 + (t // 2) * 16384 + (32 * (v // 2) + 2 * (v % 2)) * 128 + (t % 2) * 32
                    a(f"ds_read_b64_tr_b16 {vr(b+2*v,2,k)}, v{vWT + b2} offset:{off}")
                a("s_waitcnt lgkmcnt(8)")
        a("s_waitcnt lgkmcnt(0)\ns_barrier")
        if n + 2 < 8:
            issue_stage(n + 2)
        else:
            for i in range(8):
                st, b = held.pop(0)
                off = (n % 2) * 32768 + i * 2048
                lds_addr[st] = off
                a(f"ds_write_b128 v{vBL}, {vr(b,4)} offset:{off}")
                a(f"ds_write_b128 v{vBL}, {vr(b+4,4)} offset:{off+1024}")
                hold.append(b)
            a("s_waitcnt lgkmcnt(0)")
    assert not held
    sstamp(a, 6, cfg)

    a(f"""s_lshl_b32 s{S_T0}, s{S_WAVE}, 12
v_add_u32 v{vGW}, s{S_T0}, v{vL16}""")
    for q in range(1, 4):
        a(f"v_xor_b32 v{vA1+q-1}, {q*4096:#x}, v{vGW}")
    idx_reg(a, vIDX, vLANE, vT)
    a(f"""v_lshrrev_b32 v{vT}, 5, v{vLANE}
v_lshlrev_b32 v{vQKW}, 8, v{vT}
v_and_b32 v{vT}, 15, v{vLANE}
v_lshl_add_u32 v{vQKW}, v{vT}, 4, v{vQKW}
v_bfe_u32 v{vT}, v{vLANE}, 4, 1
v_lshl_add_u32 v{vQKW}, v{vT}, 3, v{vQKW}
s_lshl_b32 s{S_T0}, s{S_WAVE}, 9
v_add_u32 v{vQKW}, s{S_T0}, v{vQKW}
v_lshrrev_b32 v{vT}, 2, v{vLANE}
v_lshlrev_b32 v{vQKR}, 4, v{vT}
v_and_b32 v{vT}, 1, v{vLANE}
v_lshl_add_u32 v{vQKR}, v{vT}, 3, v{vQKR}
s_lshr_b32 s{S_T0}, s{S_WAVE}, 1
s_lshl_b32 s{S_T0}, s{S_T0}, 10
s_and_b32 s{S_T1}, s{S_WAVE}, 1
s_lshl_b32 s{S_T1}, s{S_T1}, 7
s_add_u32 s{S_T0}, s{S_T0}, s{S_T1}
s_add_u32 s{S_WOFF}, s{S_T0}, {WS_OM:#x}
s_lshl_b32 s{S_T0}, s{S_WAVE}, 9
v_add_u32 v{vOXO}, s{S_T0}, v{vQKR}
s_lshl_b32 s{S_T0}, s{S_WAVE}, 9
v_add_u32 v{vVMO}, s{S_T0}, v{vL16}
v_mov_b32 v{vT}, {OOBV:#x}
v_cmp_gt_u32 vcc, 32, v{vLANE}
v_cndmask_b32 v{vVMO}, v{vT}, v{vVMO}, vcc""")
    cbits = f32bits(128 ** -0.5 * LOG2E)
    a(f"s_mov_b32 s{S_C}, {cbits:#x}\ns_mov_b32 s{S_C+1}, {cbits:#x}")
    a(f"""s_mov_b32 s{S_STEP}, 0
s_lshl_b32 s{S_OFF_A}, s{S_TEAM}, 20
s_add_u32 s{S_OFF_A}, s{S_OFF_A}, {WS_MEMT:#x}
s_lshl_b32 s{S_OFF_B}, s{S_HEAD}, 13
s_lshl_b32 s{S_OFF_C}, s{S_HEAD}, 11
s_lshl_b32 s{S_OFF_D}, s{S_WAVE}, 10
s_add_u32 s{S_OFF_D}, s{S_OFF_D}, {WS_KM:#x}""")

    def prefetch_x():
        a(f"""s_lshl_b32 s{S_T2}, s{S_WAVE}, 11
s_add_u32 s{S_T3}, s{S_OFF_B}, s{S_T2}
s_add_u32 s{S_T5}, s{S_T3}, {WS_VX:#x}
s_add_u32 s{S_T3}, s{S_T3}, {WS_KX:#x}
s_add_u32 m0, s{S_T2}, {L_QX:#x}""")
        for f in range(2):
            a(f"buffer_load_dwordx4 v{vL16}, {WS}, s{S_T3} offen offset:{f*1024} sc1 lds")
        for f in range(2):
            a(f"buffer_load_dwordx4 {vr(VX+4*f,4)}, v{vL16}, {WS}, s{S_T5} offen offset:{f*1024} sc1")

    def chores():
        for i in range(16): a(f"v_mov_b32 v{G+i}, -1")
        a(f"""v_lshlrev_b32 v{vT}, 3, v{vL16}
s_min_u32 s{S_T1}, s{S_WAVE}, 2
s_lshl_b32 s{S_T1}, s{S_T1}, 24
s_add_u32 s{S_T1}, s{S_T1}, s{S_OFF_B}
s_add_u32 s{S_T1}, s{S_T1}, {3 << 18:#x}
s_cmp_ge_u32 s{S_STEP}, {NSEG - 3}
s_cselect_b32 s{S_T1}, {OOBV:#x}, s{S_T1}
buffer_load_dword v{AR}, v{vT}, {WS}, s{S_T1} offen sc1
s_xor_b32 s{S_T0}, s{S_OFF_F}, {JIT << 18:#x}
buffer_store_dwordx4 {vr(G,4)}, v{vL16}, {WS}, s{S_T0} offen sc1
s_xor_b32 s{S_T2}, s{S_OFF_C}, {JIT << 16:#x}
s_lshl_b32 s{S_T0}, s{S_T2}, 1
s_add_u32 s{S_T0}, s{S_T0}, s{S_OFF_D}
s_lshl_b32 s{S_T3}, s{S_WAVE}, 9
s_add_u32 s{S_T2}, s{S_T2}, s{S_T3}
s_add_u32 s{S_T1}, s{S_T2}, {WS_VM:#x}
s_add_u32 s{S_T2}, s{S_T2}, {WS_OM:#x}
s_xor_b32 s{S_T3}, s{S_OFF_A}, {JIT << 14:#x}
s_add_u32 s{S_T3}, s{S_T3}, s{S_OFF_E}
s_cmp_eq_u32 s{S_MODE}, 1""")
        l1, l2 = a.uid("ji"), a.uid("ji")
        def jit(fl):
            return f"""buffer_store_dwordx4 {vr(G,4)}, v{vL16}, {WS}, s{S_T0} offen {fl}
s_mov_b32 exec_hi, 0
buffer_store_dwordx4 {vr(G,4)}, v{vL16}, {WS}, s{S_T1} offen {fl}
buffer_store_dwordx4 {vr(G,4)}, v{vL16}, {WS}, s{S_T2} offen {fl}
buffer_store_dwordx4 {vr(G,4)}, v{vL16}, {WS}, s{S_T3} offen {fl}"""
        a(f"s_cbranch_scc0 {l1}\n{jit('')}\n{l2}:\ns_mov_b64 exec, -1")
        a.defer(lambda: a(f"{l1}:\n{jit('sc1')}\ns_branch {l2}"))

    def bload_instrs(i):
        b = BR + 8 * (i % NB)
        off = lds_addr[lds_tiles[i]]
        return [f"ds_read_b128 {vr(b,4)}, v{vBL} offset:{off}", f"ds_read_b128 {vr(b+4,4)}, v{vBL} offset:{off+1024}"]

    def pkfma(r, nm):
        return f"v_pk_fma_f32 {vr(r,2)}, {vr(r,2)}, s[{S_C}:{S_C+1}], {vr(nm,2)} op_sel_hi:[1,1,0] neg_lo:[0,0,1] neg_hi:[0,0,1]"

    def pack_instrs(mat):
        A0, A1 = ACC + 8 * mat, ACC + 8 * mat + 4
        o = [f"v_permlane32_swap_b32 v{A0+r}, v{A1+r}" for r in range(4)]
        o += [f"v_add_f32 v{A0+r}, v{A0+r}, v{A1+r}" for r in range(4)]
        o += [f"v_cvt_pk_bf16_f32 v{A1}, v{A0}, v{A0+1}", f"v_cvt_pk_bf16_f32 v{A1+1}, v{A0+2}, v{A0+3}"]
        return o, f"ds_write_b64 v{vQKW}, {vr(A1,2)} offset:{L_QK + mat*2048}"

    def tile_regs(t):
        return T0 if t == 0 else T12 + 4 * (t - 1)

    startup_barrier(a, P)
    a(f"""s_bcnt1_i32_b32 s{S_T0}, s{S_NEAR}
s_cmp_ge_u32 s{S_T0}, 4
s_cselect_b32 s{S_OFF_F}, 0x2000, 0
s_and_b32 s{S_T0}, s{S_J}, 1
s_lshl_b32 s{S_T0}, s{S_T0}, 12
s_add_u32 s{S_OFF_F}, s{S_OFF_F}, s{S_T0}
s_lshr_b32 s{S_T0}, s{S_J}, 1
s_lshl_b32 s{S_T0}, s{S_T0}, 14
s_add_u32 s{S_OFF_F}, s{S_OFF_F}, s{S_T0}
s_lshl_b32 s{S_T0}, s{S_TEAM}, 16
s_add_u32 s{S_OFF_F}, s{S_OFF_F}, s{S_T0}
s_lshl_b32 s{S_T0}, s{S_WAVE}, 10
s_add_u32 s{S_OFF_F}, s{S_OFF_F}, s{S_T0}
s_add_u32 s{S_OFF_F}, s{S_OFF_F}, {WS_PART:#x}
s_lshl_b32 s{S_OFF_E}, s{S_J}, 11
s_lshl_b32 s{S_T0}, s{S_WAVE}, 9
s_add_u32 s{S_OFF_E}, s{S_OFF_E}, s{S_T0}""")
    if "wait_x" in hooks:
        a(f"s_mov_b32 s{S_T0}, 0")
        hooks["wait_x"](vT)
    prefetch_x()
    sstamp(a, 7, cfg)
    a.set_filler(vOXO)
    a.label("S_loop")
    stamp(a, 0, cfg)
    for i in range(NB):
        for x in bload_instrs(i): a(x)
    for i in range(16): a(f"v_mov_b32 v{ACC+i}, 0")
    a(f"s_add_u32 s{S_T5}, s{S_OFF_C}, {WS_VM:#x}")
    a(f"s_add_u32 s{S_T4}, s{S_OFF_C}, s{S_WOFF}")
    a("s_waitcnt vmcnt(2)\ns_barrier")
    chores()
    if cfg.get("s_delay"): a.fill(cfg["s_delay"])
    for f in range(8):
        a(f"ds_read_b128 {vr(KX+4*f,4)}, v{vL16} offset:{L_QX + f*1024}")
    a("s_waitcnt lgkmcnt(0)")

    L = Lds(a)
    aslot = {s: G + 4 * s for s in range(4)}
    pending = []
    free_slots = list(range(NA))
    first_use, last_use = {}, {}
    for i, (s, t) in enumerate(order):
        last_use[s] = i; first_use.setdefault(s, i)
    st = {"nexta": 4, "nextb": NB, "li": 0}
    def aload():
        s = stream[st["nexta"] - 4]; st["nexta"] += 1
        aslot[s] = AR + 4 * free_slots.pop(0)
        pending.append((("A", s), f"ds_read_b128 {vr(aslot[s],4)}, v{vA1 + s // 4 - 1} offset:{L_MEM + (s % 4) * 1024}"))
    def deadline(tag):
        return first_use[tag[1]] if tag[0] == "A" else lpos[tag[1]]
    def flush(n):
        pending.sort(key=lambda p: deadline(p[0]))
        for _ in range(min(n, len(pending))):
            tag, ins = pending.pop(0)
            L.op(tag, ins)
    def mfma(i):
        s, t = order[i]
        needs = [("A", s)]
        isl = (s, t) in lds_addr
        if isl: needs.append(("B", st["li"]))
        while any(tg in needs for tg, _ in pending): flush(1)
        L.wait(*needs)
        B = vr(BR + 8 * (st["li"] % NB), 8) if isl else vr(regmap[(s, t)][1], 8, regmap[(s, t)][0])
        if i >= cfg.get("skip_mfma", 99) and i < 44: pass
        else: a(f"v_smfmac_f32_16x16x64_bf16 {vr(ACC+4*t,4)}, {vr(aslot[s],4)}, {B}, v{vIDX}")
        if isl:
            st["li"] += 1
            if st["nextb"] < 16:
                for x in bload_instrs(st["nextb"]): pending.append((("B", st["nextb"]), x))
                st["nextb"] += 1
        if last_use[s] == i and s >= 4:
            free_slots.append((aslot[s] - AR) // 4)
            if st["nexta"] < 16: aload()

    loads = [f"buffer_load_dwordx4 {vr(G+4*i,4)}, v{vGW}, {WS}, s{S_OFF_A} offen offset:{1024*i} sc1" for i in range(4)]
    o = cfg.get("s_mem", {})
    sp = SPoll(a, loads, [G + 4 * i for i in range(4)], vT, cap=o.get("cap", 3), sleep=o.get("sleep", 3), respin=o.get("respin", 4))
    def gw(f):
        L.op(("GW", f), f"ds_write_b128 v{vGW}, {vr(G+4*f,4)} offset:{L_MEM + 1024*f}")
    if cfg.get("s_sleep"): a(f"s_sleep {cfg['s_sleep']}")
    sp.first(prefill=False, arm=o.get("arm", 64), arm_fill=o.get("afill", 6), arm_cap=o.get("acap", 4))
    if cfg.get("presync"): a("s_waitcnt vmcnt(0)\ns_barrier")
    stamp(a, 1, cfg)
    side = {}
    nflush = {}
    def at(i, fn): side.setdefault(i, []).append(fn)
    def ati(i, ins): at(i, lambda: a(ins))
    at(0, lambda: gw(0))
    for f, p in ((1, 0), (2, 4), (3, 7)):
        for k, ins in enumerate(sp.pre3(f)): ati(p + k if f < 3 else p + min(k, 1), ins)
    at(3, lambda: sp.br(1))
    side[4] = [lambda: gw(1)] + side[4]
    side[7] = [lambda: sp.br(2)] + side[7]
    at(9, lambda: sp.br(3))
    def bar1():
        L.wait(("GW", 1)); a("s_barrier")
        stamp(a, 6, cfg)
        for _ in range(NA): aload()
        flush(2)
    at(cfg.get("bar1", 8), bar1)
    for i in (0, 1, 4, 5, 12, 13, 15, 16): nflush[i] = 0
    at(12, lambda: gw(2))
    at(15, lambda: gw(3))
    def bar2():
        L.wait(("GW", 3)); a("s_barrier")
    bar2_at = 19
    qv, qw = pack_instrs(0)
    p0 = q_end + 2
    for k, ins in enumerate(qv): ati(p0 + (k // 2 if k < 4 else 2 + (k - 4) // 2), ins)
    at(p0 + 4, lambda: L.op("QW", qw))
    qrd = [(("QF", ks), f"ds_read_b64_tr_b16 {vr(QF+4*ks+2*u,2)}, v{vQKR} offset:{L_QK + (32*ks+16*u)*16}") for ks in range(4) for u in range(2)]
    def q_barrier():
        L.wait("QW"); a("s_waitcnt vmcnt(0)\ns_barrier")
        for x in qrd[:3]: L.op(*x)
    at(61, q_barrier)
    at(62, lambda: [L.op(*x) for x in qrd[3:6]])
    at(63, lambda: [L.op(*x) for x in qrd[6:]])
    for i in range(0, 64):
        mfma(i)
        if i == bar2_at: bar2()
        flush(nflush.get(i, 1))
        for fn in side.get(i, []): fn()
        probe(a, f"m{i}", cfg)
    stamp(a, 2, cfg)
    kv, kw = pack_instrs(1)
    def sc(ks, t):
        L.wait(("KM", ks) if t == 0 else ("QF", ks))
        C = "0" if ks == 0 else vr(tile_regs(t), 4)
        A = KMF + 4 * ks if t == 0 else KX + 16 * (t - 1) + 4 * ks
        a(f"v_mfma_f32_16x16x32_bf16 {vr(tile_regs(t),4)}, {vr(A,4)}, {vr(QF+4*ks,4)}, {C}")
    vml = f"buffer_load_dwordx4 {vr(VM,4)}, v{vVMO}, {WS}, s{S_T5} offen sc1"
    mx, m2, nmx, nm, al, rr = MI, MI + 1, MI + 2, MI + 3, MI + 4, MI + 5
    X = T12
    fma = lambda r, n: f"v_fma_f32 v{r}, v{r}, s{S_C}, -v{n}"
    a(vml)
    sc(0, 1); sc(0, 2)
    a(kv[0]); sc(1, 1); a(kv[1]); a(kv[2]); sc(1, 2); a(kv[3])
    for ins in kv[4:]: a(ins)
    L.op("KW", kw)
    probe(a, "s_kw", cfg)
    sc(2, 1); sc(2, 2); sc(3, 1); sc(3, 2)
    L.wait("KW"); a("s_barrier")
    probe(a, "s_b", cfg)
    krd = [(("KM", ks), f"ds_read_b64_tr_b16 {vr(KMF+4*ks+2*u,2)}, v{vQKR} offset:{L_QK + 2048 + (32*ks+16*u)*16}") for ks in range(4) for u in range(2)]
    ONE, LS = OMR, OMR + 4
    for k in range(4):
        L.op(*krd[2*k]); L.op(*krd[2*k+1])
        a(f"v_mov_b32 v{ONE+k}, 0x3f803f80")
    probe(a, "s_rd", cfg)
    a(f"""v_max3_f32 v{mx}, v{X}, v{X+1}, v{X+2}
v_max3_f32 v{m2}, v{X+4}, v{X+5}, v{X+6}
v_max3_f32 v{mx}, v{mx}, v{X+3}, v{X+7}
v_max_f32 v{al}, v{mx}, v{m2}
v_max_f32 v{m2}, v{mx}, v{m2}""")
    sc(0, 0)
    a(f"v_permlane32_swap_b32 v{al}, v{m2}")
    sc(1, 0)
    a(f"v_max_f32 v{mx}, v{al}, v{m2}\nv_max_f32 v{al}, v{al}, v{m2}")
    sc(2, 0)
    a(vml)
    a(f"v_permlane16_swap_b32 v{mx}, v{al}")
    sc(3, 0)
    a(f"v_max_f32 v{mx}, v{mx}, v{al}")
    a(f"v_mul_f32 v{nmx}, s{S_C}, v{mx}")
    for i in range(6): a(fma(X + i, nmx))
    seqa = [f"v_max3_f32 v{m2}, v{T0}, v{T0+1}, v{T0+2}", f"v_max3_f32 v{al}, v{m2}, v{T0+3}, v{mx}", f"v_max3_f32 v{m2}, v{m2}, v{T0+3}, v{mx}"]
    a(seqa[0]); a(fma(X + 6, nmx)); a(seqa[1]); a(seqa[2]); a(fma(X + 7, nmx))
    a(f"v_exp_f32 v{X}, v{X}")
    a(f"v_permlane16_swap_b32 v{m2}, v{al}")
    a(f"v_max_f32 v{m2}, v{m2}, v{al}")
    stamp(a, 3, cfg)
    a(f"v_mul_f32 v{nm}, s{S_C}, v{m2}")
    for r in range(4): a(fma(T0 + r, nm))
    a(f"v_sub_f32 v{al}, v{nmx}, v{nm}")
    for i in range(1, 8):
        a(f"v_exp_f32 v{X+i}, v{X+i}")
        if i >= 2 and i % 2 == 0: a(f"v_cvt_pk_bf16_f32 v{PX+i//2-1}, v{X+i-2}, v{X+i-1}")
    a(f"v_exp_f32 v{T0}, v{T0}")
    a(f"v_cvt_pk_bf16_f32 v{PX+3}, v{X+6}, v{X+7}")
    a(f"v_exp_f32 v{T0+1}, v{T0+1}")
    a(f"v_exp_f32 v{T0+2}, v{T0+2}")
    a(f"v_mfma_f32_16x16x32_bf16 {vr(LS,4)}, {vr(ONE,4)}, {vr(PX,4)}, 0")
    a(f"v_exp_f32 v{T0+3}, v{T0+3}")
    a(f"v_mfma_f32_16x16x32_bf16 {vr(OXR,4)}, {vr(VX,4)}, {vr(PX,4)}, 0")
    a(f"v_cvt_pk_bf16_f32 v{PM}, v{T0}, v{T0+1}")
    a(f"v_cvt_pk_bf16_f32 v{PM+1}, v{T0+2}, v{T0+3}")
    a(f"v_mfma_f32_16x16x32_bf16 {vr(OXR+4,4)}, {vr(VX+4,4)}, {vr(PX,4)}, 0")
    a(f"v_exp_f32 v{al}, v{al}")
    vp = SPoll(a, [vml], [VM], vT, cap=0)
    chk = vp.pre3(0)
    a(f"v_mfma_f32_16x16x16_bf16 {vr(T0,4)}, {vr(ONE,2)}, {vr(PM,2)}, 0")
    a("s_waitcnt vmcnt(1)")
    a(chk[0]); a(chk[1])
    probe(a, "s_pv", cfg)
    pv = a.uid("pv")
    a(chk[2])
    a.label(pv)
    a(f"v_mfma_f32_16x16x16_bf16 {vr(X,4)}, {vr(VM,2)}, {vr(PM,2)}, 0")
    a(f"v_mul_f32 v{mx}, v{LS}, v{al}")
    a(f"v_mfma_f32_16x16x16_bf16 {vr(X+4,4)}, {vr(VM+2,2)}, {vr(PM,2)}, 0")
    rt = a.uid("vr")
    if not cfg.get("novm"): a(f"s_cbranch_vccnz {rt}")
    def vm_retry():
        vp._body(0, rt); a(f"s_branch {pv}")
    a.defer(vm_retry)
    a(f"s_cmp_eq_u32 s{S_MODE}, 1")
    a(f"v_fma_f32 v{mx}, v{T0}, 0.5, v{mx}")
    a(f"v_rcp_f32 v{nmx}, v{mx}")
    a("s_mov_b32 exec_lo, 0x00ff00ff\ns_mov_b32 exec_hi, 0x00ff00ff")
    for i in range(0, 8, 2):
        a(f"v_pk_fma_f32 {vr(X+i,2)}, {vr(OXR+i,2)}, {vr(al,2)}, {vr(X+i,2)} op_sel_hi:[1,0,1]")
    for i in range(0, 8, 2):
        a(f"v_pk_mul_f32 {vr(X+i,2)}, {vr(X+i,2)}, {vr(nmx,2)} op_sel_hi:[1,0]")
        if i >= 2: a(f"v_cvt_pk_bf16_f32 v{PX+i//2-1}, v{X+i-2}, v{X+i-1}")
    a(f"v_cvt_pk_bf16_f32 v{PX+3}, v{X+6}, v{X+7}")
    store_mode2(a, f"buffer_store_dwordx4 {vr(PX,4)}, v{vL16}, {WS}, s{S_T4} offen")
    a("s_mov_b64 exec, -1")
    stamp(a, 4, cfg)
    for u in range(2):
        a(f"ds_read_b64_tr_b16 {vr(QF+2*u,2)}, v{vOXO} offset:{L_QK + 2048 + 256*u}")
    a(f"""s_lshl_b32 s{S_T0}, s{S_OFF_C}, 1
s_add_u32 s{S_T0}, s{S_T0}, s{S_OFF_D}
s_waitcnt lgkmcnt(0)
s_mov_b32 exec_lo, 0x00ff00ff
s_mov_b32 exec_hi, 0x00ff00ff""")
    store_mode(a, f"buffer_store_dwordx4 {vr(QF,4)}, v{vL16}, {WS}, s{S_T0} offen")
    a("s_mov_b64 exec, -1")
    stamp(a, 5, cfg)
    if cfg.get("stamps"):
        a(f"v_lshrrev_b32 v{MI+5}, 2, v{vL16}")
    stamp_flush(a, cfg)
    a(f"""s_add_u32 s{S_STEP}, s{S_STEP}, 1
s_cmp_eq_u32 s{S_STEP}, {NSEG}
s_cbranch_scc1 L_done
s_add_u32 s{S_OFF_A}, s{S_OFF_A}, 0x4000
s_bitset0_b32 s{S_OFF_A}, 17
s_add_u32 s{S_OFF_C}, s{S_OFF_C}, {32*2048:#x}
s_bitset0_b32 s{S_OFF_C}, 19
s_add_u32 s{S_OFF_F}, s{S_OFF_F}, 0x40000
s_bitset0_b32 s{S_OFF_F}, 21
s_add_u32 s{S_OFF_B}, s{S_OFF_B}, {32*8192:#x}""")
    if "wait_x" in hooks:
        a(f"s_mov_b32 s{S_T0}, s{S_STEP}")
        hooks["wait_x"](vT)
    prefetch_x()
    a("s_branch S_loop")
    a.flush_deferred()
    a.set_filler(None)


def v_cu(a, cfg, hooks=None):
    hooks = hooks or {}
    vLANE, vGOFF, vIDX, vL16, vT, vT2, vVMO, vOMO, vRW, vRR, vPO, vMO, vL4, vD, vI16 = range(0, 15)
    QF, KMF, KXF = 16, 32, 48
    XV, XVM, XT, XP, XPM, XO, XM = 172, 180, 184, 196, 200, 204, 220
    MK = 224
    vKMO, vVMI, vOXO, vRV = 236, 237, 238, 239
    XR_ = 240
    S_XB, S_PREV = 83, 84
    G = 80
    ACC = 96
    OF = 112
    RD = 128
    RP = 144
    MI = 152
    SENT = 160
    RRS = 164
    vTCH = 168
    cfg = dict(cfg); cfg["stamp_reg"] = MI + 5; cfg["lane4_reg"] = vL4
    a(f"""s_lshl_b32 s{S_HEAD}, s{S_TEAM}, 3
s_lshr_b32 s{S_T0}, s{S_J}, 1
s_add_u32 s{S_HEAD}, s{S_HEAD}, s{S_T0}""")
    srd(a, S_W0, 32, 1024 * 8192)
    srd(a, S_W1, 40, 4096 * 2048)
    srd(a, S_W2, 8, 8 * 2048)
    a(f"v_and_b32 v{vLANE}, 63, v0")
    a(f"v_lshlrev_b32 v{vL16}, 4, v{vLANE}")
    a(f"v_lshlrev_b32 v{vL4}, 2, v{vLANE}")
    for i in range(4): a(f"v_mov_b32 v{SENT+i}, -1")
    a(f"""s_lshl_b32 s{S_OFF_A}, s{S_TEAM}, 20
s_add_u32 s{S_OFF_A}, s{S_OFF_A}, {WS_MEMT:#x}
s_lshl_b32 s{S_T0}, s{S_J}, 10
s_add_u32 s{S_OFF_E}, s{S_OFF_A}, s{S_T0}
s_lshl_b32 s{S_OFF_C}, s{S_HEAD}, 11
s_and_b32 s{S_T1}, s{S_J}, 1
s_lshl_b32 s{S_T1}, s{S_T1}, 10
s_add_u32 s{S_OFF_B}, s{S_OFF_C}, s{S_T1}
s_and_b32 s{S_T0}, s{S_J}, 3
s_lshl_b32 s{S_OFF_D}, s{S_T0}, 11
s_lshr_b32 s{S_T0}, s{S_J}, 2
s_lshl_b32 s{S_T0}, s{S_T0}, 14
s_add_u32 s{S_OFF_D}, s{S_OFF_D}, s{S_T0}
s_add_u32 s{S_OFF_D}, s{S_OFF_D}, {WS_PART:#x}
s_lshl_b32 s{S_T0}, s{S_TEAM}, 16
s_add_u32 s{S_OFF_F}, s{S_OFF_D}, s{S_T0}""")

    for rep in range(2 if cfg.get('init8', 1) else 1):
        a(f"s_add_u32 s{S_T5}, s{S_WAVE}, {4*rep}")
        a(f"""s_lshl_b32 s{S_T0}, s{S_T5}, 14
s_add_u32 s{S_T0}, s{S_T0}, s{S_OFF_E}
buffer_store_dwordx4 {vr(SENT,4)}, v{vL16}, {WS}, s{S_T0} offen sc1
s_lshl_b32 s{S_T0}, s{S_T5}, 16
s_add_u32 s{S_T0}, s{S_T0}, s{S_OFF_B}
s_add_u32 s{S_T1}, s{S_T0}, {WS_VM:#x}
buffer_store_dwordx4 {vr(SENT,4)}, v{vL16}, {WS}, s{S_T1} offen sc1
s_add_u32 s{S_T1}, s{S_T0}, {WS_OM:#x}
buffer_store_dwordx4 {vr(SENT,4)}, v{vL16}, {WS}, s{S_T1} offen sc1
s_lshl_b32 s{S_T1}, s{S_T0}, 1
s_add_u32 s{S_T1}, s{S_T1}, {WS_KM:#x}
buffer_store_dwordx4 {vr(SENT,4)}, v{vL16}, {WS}, s{S_T1} offen sc1
buffer_store_dwordx4 {vr(SENT,4)}, v{vL16}, {WS}, s{S_T1} offen offset:1024 sc1
s_lshl_b32 s{S_T0}, s{S_T5}, 18
s_add_u32 s{S_T0}, s{S_T0}, s{S_OFF_F}
buffer_store_dwordx4 {vr(SENT,4)}, v{vL16}, {WS}, s{S_T0} offen sc1
buffer_store_dwordx4 {vr(SENT,4)}, v{vL16}, {WS}, s{S_T0} offen offset:1024 sc1
s_add_u32 s{S_T0}, s{S_T0}, 0x2000
buffer_store_dwordx4 {vr(SENT,4)}, v{vL16}, {WS}, s{S_T0} offen sc1
buffer_store_dwordx4 {vr(SENT,4)}, v{vL16}, {WS}, s{S_T0} offen offset:1024 sc1""")

    a(f"""v_mov_b32 v{G}, 0
v_mov_b32 v{G+1}, 0
v_mov_b32 v{G+2}, 0
v_mov_b32 v{G+3}, 0
s_lshl_b32 s{S_T0}, s{S_TEAM}, 4
s_add_u32 s{S_T0}, s{S_T0}, s{S_J}
s_lshl_b32 s{S_T0}, s{S_T0}, 9
s_lshl_b32 s{S_T1}, s{S_WAVE}, 7
s_add_u32 s{S_T0}, s{S_T0}, s{S_T1}
s_add_u32 s{S_T0}, s{S_T0}, {WS_CNT:#x}
s_mov_b64 exec, 0xff
buffer_store_dwordx4 {vr(G,4)}, v{vL16}, {WS}, s{S_T0} offen sc1
s_mov_b64 exec, -1""")
    if not cfg.get("noprobe"):
        skip = a.uid("pr")
        a(f"""s_lshl_b32 s{S_T0}, s{S_TEAM}, 4
s_add_u32 s{S_T0}, s{S_T0}, s{S_J}
s_cmp_ge_u32 s{S_T0}, 8
s_cbranch_scc1 {skip}
s_cmp_lg_u32 s{S_WAVE}, 3
s_cbranch_scc1 {skip}
s_add_u32 s{S_T1}, s{S_OFF_F}, {7 << 18:#x}
s_add_u32 s{S_T2}, s{S_T1}, 0x2000
buffer_store_dwordx4 {vr(SENT,4)}, v{vL16}, {WS}, s{S_T1} offen sc1
buffer_store_dwordx4 {vr(SENT,4)}, v{vL16}, {WS}, s{S_T2} offen sc1
v_mov_b32 v{vT2}, 0
s_mov_b32 s60, -1
s_mov_b32 s61, -1
s_waitcnt vmcnt(0)""")
        for smp in range(4):
            for c in range(2):
                a(f"""s_memtime s[62:63]
s_waitcnt lgkmcnt(0)
buffer_load_dword v{vT}, v{vT2}, {WS}, s{S_T1+c} offen offset:{smp*256} sc1
s_waitcnt vmcnt(0)
s_memtime s[64:65]
s_waitcnt lgkmcnt(0)
s_sub_u32 s64, s64, s62
s_min_u32 s{60+c}, s{60+c}, s64""")
        a(f"""s_cmp_lt_u32 s61, s60
s_cselect_b32 s{S_T1}, 1, 0
s_lshl_b32 s{S_T1}, s{S_T1}, s{S_J}
v_mov_b32 v{vT}, s{S_T1}
s_mov_b64 exec, 1
buffer_atomic_or v{vT}, v{vT2}, {DBG}, 0 offen offset:12 sc1
s_mov_b64 exec, -1
{skip}:""")

    a("s_waitcnt vmcnt(0)\ns_barrier")
    arrive(a, G + 4)

    def stage(srdreg, pitch_log2, sbase):
        a(f"""v_lshrrev_b32 v{vT}, 3, v{vLANE}
v_lshlrev_b32 v{vD}, {pitch_log2}, v{vT}
v_and_b32 v{vT}, 7, v{vLANE}
v_lshl_add_u32 v{vD}, v{vT}, 4, v{vD}
s_lshl_b32 s{S_T1}, s{S_WAVE}, {8 + pitch_log2}
s_add_u32 s{S_T1}, s{S_T1}, s{sbase}
s_lshl_b32 s{S_T2}, s{S_WAVE}, 15""")
        for i in range(32):
            a(f"s_add_u32 m0, s{S_T2}, {L_W + i*1024}")
            a(f"s_add_u32 s{S_T4}, s{S_T1}, {(i*8) << pitch_log2:#x}")
            a(f"buffer_load_dwordx4 v{vD}, s[{srdreg}:{srdreg+3}], s{S_T4} offen lds")

    a(f"""s_lshl_b32 s{S_T0}, s{S_HEAD}, 8
s_and_b32 s{S_T1}, s{S_J}, 1
s_lshl_b32 s{S_T1}, s{S_T1}, 7
s_add_u32 s{S_T0}, s{S_T0}, s{S_T1}""")
    stage(S_W0, 13, S_T0)
    if not cfg.get("nowo_pf"):
        a(f"""v_lshrrev_b32 v{vT}, 3, v{vLANE}
v_lshlrev_b32 v{vT2}, 11, v{vT}
v_and_b32 v{vT}, 7, v{vLANE}
v_lshl_add_u32 v{vT2}, v{vT}, 4, v{vT2}
s_lshl_b32 s{S_T0}, s{S_TEAM}, 21
s_lshl_b32 s{S_T1}, s{S_J}, 7
s_add_u32 s{S_T0}, s{S_T0}, s{S_T1}
s_lshl_b32 s{S_T1}, s{S_WAVE}, 19
s_add_u32 s{S_T0}, s{S_T0}, s{S_T1}""")
        for i in range(32):
            if i == 16: a("s_waitcnt vmcnt(40)")
            a(f"s_add_u32 s{S_T4}, s{S_T0}, {(i*8) << 11:#x}")
            a(f"buffer_load_dwordx4 {vr(G,4)}, v{vT2}, s[{S_W1}:{S_W1+3}], s{S_T4} offen")
    vWT = MI
    a(f"""v_bfe_u32 v{vT}, v{vLANE}, 5, 1
v_lshlrev_b32 v{vWT}, 11, v{vT}
v_bfe_u32 v{vT}, v{vLANE}, 3, 1
v_lshl_add_u32 v{vWT}, v{vT}, 10, v{vWT}
v_bfe_u32 v{vT}, v{vLANE}, 4, 1
v_lshl_add_u32 v{vWT}, v{vT}, 9, v{vWT}
v_bfe_u32 v{vT}, v{vLANE}, 2, 1
v_lshl_add_u32 v{vWT}, v{vT}, 7, v{vWT}
v_and_b32 v{vT}, 3, v{vLANE}
v_lshl_add_u32 v{vWT}, v{vT}, 3, v{vWT}
s_lshl_b32 s{S_T0}, s{S_WAVE}, 15
s_add_u32 s{S_T0}, s{S_T0}, {L_W:#x}
v_add_u32 v{vWT}, s{S_T0}, v{vWT}
s_waitcnt vmcnt({0 if cfg.get("nowo_pf") else 32})""")
    for f in range(4):
        for ct in range(4):
            for v in range(4):
                off = f * 8192 + (32 * (v // 2) + 2 * (v % 2)) * 128 + ct * 32
                a(f"ds_read_b64_tr_b16 {ar((f*4+ct)*8+2*v,2)}, v{vWT} offset:{off}")
            a("s_waitcnt lgkmcnt(8)")
    a("s_waitcnt lgkmcnt(0)")
    sstamp(a, 6, cfg)
    a(f"""s_lshl_b32 s{S_T0}, s{S_TEAM}, 21
s_lshl_b32 s{S_T1}, s{S_J}, 7
s_add_u32 s{S_T0}, s{S_T0}, s{S_T1}""")
    a("s_waitcnt vmcnt(24)")
    stage(S_W1, 11, S_T0)
    a(f"""v_bfe_u32 v{vT}, v{vLANE}, 3, 1
v_lshlrev_b32 v{vWT}, 12, v{vT}
v_bfe_u32 v{vT}, v{vLANE}, 4, 1
v_lshl_add_u32 v{vWT}, v{vT}, 11, v{vWT}
v_bfe_u32 v{vT}, v{vLANE}, 5, 1
v_lshl_add_u32 v{vWT}, v{vT}, 9, v{vWT}
v_bfe_u32 v{vT}, v{vLANE}, 2, 1
v_lshl_add_u32 v{vWT}, v{vT}, 7, v{vWT}
v_and_b32 v{vT}, 3, v{vLANE}
v_lshl_add_u32 v{vWT}, v{vT}, 3, v{vWT}
s_lshl_b32 s{S_T0}, s{S_WAVE}, 15
s_add_u32 s{S_T0}, s{S_T0}, {L_W:#x}
v_add_u32 v{vWT}, s{S_T0}, v{vWT}""")
    a(f"""s_lshl_b32 s{S_T0}, s{S_WAVE}, 12
v_add_u32 v{vGOFF}, s{S_T0}, v{vL16}""")
    idx_reg(a, vIDX, vLANE, vT)
    a(f"""v_and_b32 v{vT}, 31, v{vLANE}
v_lshlrev_b32 v{vVMO}, 4, v{vT}
v_lshrrev_b32 v{vT}, 5, v{vLANE}
v_lshl_add_u32 v{vVMO}, v{vT}, 2, v{vVMO}
s_lshr_b32 s{S_T0}, s{S_WAVE}, 1
s_lshl_b32 s{S_T0}, s{S_T0}, 9
s_and_b32 s{S_T1}, s{S_WAVE}, 1
s_lshl_b32 s{S_T1}, s{S_T1}, 3
s_add_u32 s{S_T0}, s{S_T0}, s{S_T1}
v_add_u32 v{vVMO}, s{S_T0}, v{vVMO}
s_lshl_b32 s{S_T0}, s{S_TEAM}, 14
v_add_u32 v{vOMO}, s{S_T0}, v{vGOFF}""")
    a(f"""s_lshl_b32 s{S_T0}, s{S_WAVE}, 11
v_add_u32 v{vRW}, s{S_T0}, v{vL4}""")
    a(f"""v_bfe_u32 v{vT}, v{vLANE}, 2, 2
v_lshlrev_b32 v{vRR}, 9, v{vT}
v_bfe_u32 v{vT}, v{vLANE}, 2, 1
v_lshl_add_u32 v{vRR}, v{vT}, 5, v{vRR}
v_bfe_u32 v{vT}, v{vLANE}, 3, 1
v_lshl_add_u32 v{vRR}, v{vT}, 7, v{vRR}
v_bfe_u32 v{vT}, v{vLANE}, 4, 1
v_lshl_add_u32 v{vRR}, v{vT}, 6, v{vRR}
v_lshrrev_b32 v{vT}, 5, v{vLANE}
v_lshl_add_u32 v{vRR}, v{vT}, 5, v{vRR}
v_and_b32 v{vT}, 3, v{vLANE}
v_lshl_add_u32 v{vRR}, v{vT}, 3, v{vRR}
s_lshr_b32 s{S_T0}, s{S_WAVE}, 1
s_lshl_b32 s{S_T0}, s{S_T0}, 11
s_and_b32 s{S_T1}, s{S_WAVE}, 1
s_lshl_b32 s{S_T1}, s{S_T1}, 7
s_add_u32 s{S_T0}, s{S_T0}, s{S_T1}
v_add_u32 v{vRR}, s{S_T0}, v{vRR}""")
    a(f"""v_and_b32 v{vT}, 31, v{vLANE}
v_lshlrev_b32 v{vRV}, 2, v{vT}
v_lshrrev_b32 v{vT}, 5, v{vLANE}
v_lshl_add_u32 v{vRV}, v{vT}, 10, v{vRV}
v_add_u32 v{vRV}, s{S_T0}, v{vRV}""")
    a(f"""v_and_b32 v{vKMO}, 0x370, v{vL16}
s_lshl_b32 s{S_T0}, s{S_WAVE}, 9
v_add_u32 v{vVMI}, s{S_T0}, v{vL16}
v_mov_b32 v{vT}, {OOBV:#x}
v_cmp_gt_u32 vcc, 32, v{vLANE}
v_cndmask_b32 v{vVMI}, v{vT}, v{vVMI}, vcc
v_mov_b32 v{vT2}, 0xff800000""")
    for r in range(4):
        a(f"v_cndmask_b32 v{MK+r}, v{vT2}, 0, vcc")
    a(f"""v_lshrrev_b32 v{vT}, 4, v{vLANE}
v_lshlrev_b32 v{vT}, 2, v{vT}
v_and_b32 v{vOXO}, 15, v{vLANE}
v_sub_u32 v{vT}, v{vOXO}, v{vT}
s_and_b32 s{S_T0}, s{S_J}, 1
s_lshl_b32 s{S_T0}, s{S_T0}, 4
v_add_u32 v{vT}, s{S_T0}, v{vT}""")
    for t in range(2):
        for r in range(4):
            a(f"v_cmp_le_i32 vcc, {16*t + r}, v{vT}")
            a(f"v_cndmask_b32 v{MK+4+4*t+r}, v{vT2}, 0, vcc")
    a(f"""v_lshlrev_b32 v{vOXO}, 6, v{vOXO}
v_lshrrev_b32 v{vT}, 4, v{vLANE}
v_lshl_add_u32 v{vOXO}, v{vT}, 4, v{vOXO}
s_lshl_b32 s{S_T0}, s{S_T0}, 6
s_lshl_b32 s{S_T1}, s{S_HEAD}, 15
s_add_u32 s{S_T0}, s{S_T0}, s{S_T1}
s_lshl_b32 s{S_T1}, s{S_WAVE}, 13
s_add_u32 s{S_T0}, s{S_T0}, s{S_T1}
v_add_u32 v{vOXO}, s{S_T0}, v{vOXO}""")
    cbits = f32bits(128 ** -0.5 * LOG2E)
    a(f"s_mov_b32 s{S_C}, {cbits:#x}\ns_mov_b32 s{S_C+1}, {cbits:#x}")
    a(f"""v_lshlrev_b32 v{vPO}, 3, v{vLANE}
s_lshl_b32 s{S_T0}, s{S_WAVE}, 9
v_add_u32 v{vPO}, s{S_T0}, v{vPO}
s_lshl_b32 s{S_T0}, s{S_WAVE}, 8
v_add_u32 v{vMO}, s{S_T0}, v{vL4}
v_add_u32 v{vI16}, s{S_T0}, v{vL16}""")
    M0R = RP
    a(f"""v_bfe_u32 v{vT}, v{vLANE}, 2, 3
v_lshlrev_b32 v{vT2}, 11, v{vT}
v_lshrrev_b32 v{vT}, 5, v{vLANE}
v_lshl_add_u32 v{vT2}, v{vT}, 4, v{vT2}
v_and_b32 v{vT}, 3, v{vLANE}
v_lshl_add_u32 v{vT2}, v{vT}, 2, v{vT2}
s_lshl_b32 s{S_T0}, s{S_J}, 7
s_lshl_b32 s{S_T1}, s{S_WAVE}, 5
s_add_u32 s{S_T0}, s{S_T0}, s{S_T1}
buffer_load_dword v{M0R}, v{vT2}, s[{S_W2}:{S_W2+3}], s{S_T0} offen
s_waitcnt vmcnt(0)""")
    for f in range(4):
        for ct in range(4):
            for v in range(4):
                off = f * 8192 + (8 * (v // 2) + 2 * (v % 2)) * 128 + ct * 32
                a(f"ds_read_b64_tr_b16 {ar(128+(f*4+ct)*8+2*v,2)}, v{vWT} offset:{off}")
            a("s_waitcnt lgkmcnt(8)")
    sstamp(a, 7, cfg)
    a("s_waitcnt lgkmcnt(0)")
    startup_barrier(a, MI + 2)
    XRING = L_W
    KD = QF
    def keep():
        a(f"v_mfma_f32_32x32x16_bf16 {vr(KD,16)}, {vr(SENT,4)}, {vr(SENT,4)}, {vr(KD,16)}")

    def x_dma(seg):
        a(f"""s_lshl_b32 s{S_T0}, s{seg}, 18
s_lshl_b32 s{S_T1}, s{S_HEAD}, 13
s_add_u32 s{S_T0}, s{S_T0}, s{S_T1}
s_cmp_ge_u32 s{seg}, {NSEG}
s_cselect_b32 s{S_T0}, {OOBV:#x}, s{S_T0}
s_and_b32 s{S_T1}, s{seg}, 3
s_lshl_b32 s{S_T1}, s{S_T1}, 14
s_lshl_b32 s{S_T2}, s{S_WAVE}, 10
s_add_u32 s{S_T1}, s{S_T1}, s{S_T2}
s_and_b32 s{S_T3}, s{S_J}, 1
s_lshl_b32 s{S_T3}, s{S_T3}, 12
s_add_u32 s{S_T3}, s{S_T3}, s{S_T2}
s_add_u32 s{S_T3}, s{S_T3}, s{S_T0}
s_add_u32 s{S_T4}, s{S_T3}, {WS_QX:#x}
s_add_u32 m0, s{S_T1}, {XRING:#x}
s_add_u32 s{S_T1}, s{S_T1}, s{S_T2}
buffer_load_dwordx4 v{vL16}, {WS}, s{S_T4} offen sc1 lds
s_add_u32 m0, s{S_T1}, {XRING + 4096:#x}
s_lshl_b32 s{S_T2}, s{S_T2}, 1
s_add_u32 s{S_T4}, s{S_T0}, s{S_T2}
s_add_u32 s{S_T4}, s{S_T4}, {WS_KX:#x}
buffer_load_dwordx4 v{vL16}, {WS}, s{S_T4} offen sc1 lds
buffer_load_dwordx4 v{vL16}, {WS}, s{S_T4} offen offset:1024 sc1 lds""")

    def x_loads(seg_expr):
        a(f"""s_add_u32 s{S_T0}, s{S_STEP}, {seg_expr}
s_lshl_b32 s{S_T0}, s{S_T0}, 18
s_lshl_b32 s{S_T1}, s{S_HEAD}, 13
s_add_u32 s{S_T0}, s{S_T0}, s{S_T1}
s_lshl_b32 s{S_T1}, s{S_WAVE}, 11
s_add_u32 s{S_T0}, s{S_T0}, s{S_T1}
s_add_u32 s{S_T0}, s{S_T0}, {WS_VX:#x}
s_lshl_b32 s85, s{S_PREV}, 1
s_add_u32 s85, s85, {WS_KM:#x}
s_add_u32 s86, s{S_PREV}, {WS_VM:#x}""")
        o = [f"buffer_load_dwordx4 {vr(XV+4*f,4)}, v{vL16}, {WS}, s{S_T0} offen offset:{f*1024} sc1" for f in range(2)]
        return o + km_loads()
    def km_loads():
        return [f"buffer_load_dwordx4 {vr(XVM,4)}, v{vVMI}, {WS}, s86 offen sc1"] + \
               [f"buffer_load_dwordx4 {vr(KMF+4*f,4)}, v{vKMO}, {WS}, s85 offen offset:{f*1024} sc1" for f in range(4)]

    def x_work(seg_expr, mid=None):
        a(f"""s_add_u32 s87, s{S_STEP}, {seg_expr}
s_and_b32 s{S_T1}, s87, 3
s_lshl_b32 s{S_T1}, s{S_T1}, 14
s_add_u32 s{S_T1}, s{S_T1}, {XRING:#x}
v_add_u32 v{XM+3}, s{S_T1}, v{vL16}""")
        for f in range(12):
            d = QF + 4 * f if f < 4 else KXF + 4 * (f - 4)
            a(f"ds_read_b128 {vr(d,4)}, v{XM+3} offset:{f*1024}")
            if f % 2: a.fill(1)
        if mid: mid()
        kp = SPoll(a, ["\n".join(km_loads())], [list(range(KMF, KMF + 16)) + list(range(XVM, XVM + 4))], vT, cap=0)
        kp.pre(0); a.fill(4); kp.br(0)
        a("s_waitcnt lgkmcnt(0)")
        for ks in range(4):
            for t in (1, 2, 0):
                A = KMF + 4 * ks if t == 0 else KXF + 16 * (t - 1) + 4 * ks
                C = vr(MK + 4 * t, 4) if ks == 0 else vr(XT + 4 * t, 4)
                a(f"v_mfma_f32_16x16x32_bf16 {vr(XT+4*t,4)}, {vr(A,4)}, {vr(QF+4*ks,4)}, {C}")
        regs = [XT + 4 * t + r for t in (1, 2, 0) for r in range(4)]
        mx, m2, nm = XM, XM + 1, XM + 2
        a(f"v_max3_f32 v{mx}, v{regs[0]}, v{regs[1]}, v{regs[2]}")
        rest = regs[3:]
        while rest:
            if len(rest) >= 2:
                a(f"v_max3_f32 v{mx}, v{mx}, v{rest[0]}, v{rest[1]}"); rest = rest[2:]
            else:
                a(f"v_max_f32 v{mx}, v{mx}, v{rest[0]}"); rest = rest[1:]
        xlane_reduce(a, "v_max_f32", mx, m2)
        a(f"v_mul_f32 v{nm}, s{S_C}, v{mx}")
        for i in range(0, 12, 2):
            a(f"v_pk_fma_f32 {vr(XT+i,2)}, {vr(XT+i,2)}, s[{S_C}:{S_C+1}], {vr(nm,2)} op_sel_hi:[1,1,0] neg_lo:[0,0,1] neg_hi:[0,0,1]")
        for r in regs: a(f"v_exp_f32 v{r}, v{r}")
        for i in range(4): a(f"v_cvt_pk_bf16_f32 v{XP+i}, v{regs[2*i]}, v{regs[2*i+1]}")
        for i in range(2): a(f"v_cvt_pk_bf16_f32 v{XPM+i}, v{XT+2*i}, v{XT+2*i+1}")
        for i in range(2, 12, 2):
            a(f"v_pk_add_f32 {vr(XT,2)}, {vr(XT,2)}, {vr(XT+i,2)}")
        a(f"v_mfma_f32_16x16x32_bf16 {vr(XO,4)}, {vr(XV,4)}, {vr(XP,4)}, 0")
        a(f"v_add_f32 v{mx}, v{XT}, v{XT+1}")
        a(f"v_mfma_f32_16x16x32_bf16 {vr(XO+4,4)}, {vr(XV+4,4)}, {vr(XP,4)}, 0")
        a(f"v_mfma_f32_16x16x16_bf16 {vr(XO+8,4)}, {vr(XVM,2)}, {vr(XPM,2)}, 0")
        a(f"v_mfma_f32_16x16x16_bf16 {vr(XO+12,4)}, {vr(XVM+2,2)}, {vr(XPM,2)}, 0")
        xlane_reduce(a, "v_add_f32", mx, m2)
        a(f"v_rcp_f32 v{nm}, v{mx}")
        for i in range(0, 8, 2):
            a(f"v_pk_add_f32 {vr(XO+i,2)}, {vr(XO+i,2)}, {vr(XO+8+i,2)}")
        for i in range(0, 8, 2):
            a(f"v_pk_mul_f32 {vr(XO+i,2)}, {vr(XO+i,2)}, {vr(nm,2)} op_sel_hi:[1,0]")
        for i in range(4):
            a(f"v_cvt_pk_bf16_f32 v{XR_+i}, v{XO+2*i}, v{XO+2*i+1}")

    def x_store():
        t0 = cfg.get("tail_seg0", 64)
        l1, l2 = a.uid("ox"), a.uid("ox")
        a(f"""s_cmp_ge_u32 s87, {t0}
s_cbranch_scc1 {l1}
s_lshr_b32 s{S_T2}, s87, 2
s_lshl_b32 s{S_T2}, s{S_T2}, 20
s_and_b32 s{S_T1}, s87, 3
s_lshl_b32 s{S_T1}, s{S_T1}, 11
s_add_u32 s{S_T2}, s{S_T2}, s{S_T1}
s_add_u32 s{S_T2}, s{S_T2}, {WS_OX:#x}
buffer_store_dwordx4 {vr(XR_,4)}, v{vOXO}, {WS}, s{S_T2} offen sc1
{l2}:""")
        a.defer(lambda: a(f"""{l1}:
s_lshl_b32 s{S_T2}, s87, 7
s_lshl_b32 s{S_T1}, s{S_HEAD}, 2
s_add_u32 s{S_T2}, s{S_T2}, s{S_T1}
s_add_u32 s{S_T2}, s{S_T2}, s{S_WAVE}
s_lshl_b32 s{S_T2}, s{S_T2}, 1
s_and_b32 s{S_T1}, s{S_J}, 1
s_add_u32 s{S_T2}, s{S_T2}, s{S_T1}
s_lshl_b32 s{S_T2}, s{S_T2}, 10
s_add_u32 s{S_T2}, s{S_T2}, {WS_OXF:#x}
buffer_store_dwordx4 {vr(XR_,4)}, v{vL16}, {WS}, s{S_T2} offen sc1
s_branch {l2}"""))

    def ksplit(sp, F, wbase, lbase, stamp_idx, o, pad, extra=()):
        extra = list(extra)
        def mm(f, ct):
            a(f"v_smfmac_f32_16x16x64_bf16 {vr(ACC+4*ct,4)}, {vr(F+4*f,4)}, {ar(wbase+(f*4+ct)*8,8)}, v{vIDX}")
        a(f"s_lshl_b32 m0, s{S_WAVE}, 12")
        if o.get("pre", 0): a.fill(o["pre"])
        def consume(g, k, chk):
            mm(g, 0)
            if chk: a(chk[0]); a(chk[1])
            mm(g, 1)
            if chk: a(chk[2])
            mm(g, 2)
            if chk: a(chk[3])
            mm(g, 3)
            if chk: a(chk[4])
        ring_poll(a, sp.loads, sp.regs, vT, consume, a.uid("kj"), space=o.get("space", 4), on_first=lambda: stamp(a, stamp_idx, cfg))
        probe(a, f"k{stamp_idx}f3", cfg)
        sw = lambda p, r: f"v_permlane32_swap_b32 v{ACC+8*p+r}, v{ACC+8*p+4+r}"
        ad = lambda p, r: f"v_add_f32 v{ACC+8*p+r}, v{ACC+8*p+r}, v{ACC+8*p+4+r}"
        wr = lambda p, r: f"ds_write_addtid_b32 v{ACC+8*p+r} offset:{lbase + (p*4+r)*512 + (pad and (r % 2) * 32 + (r // 2) * 128)}"
        for r in range(4): a(sw(0, r))
        for r in range(4): a(ad(0, r))
        for r in range(4):
            a(sw(1, r)); a(wr(0, r))
        for r in range(4): a(ad(1, r))
        keep()
        for r in range(4): a(wr(1, r))
        probe(a, f"k{stamp_idx}w", cfg)
        keep()
        if cfg.get("k3", 0): keep()
        a("s_waitcnt lgkmcnt(0)")
        probe(a, f"k{stamp_idx}l", cfg)
        a("s_barrier")
        probe(a, f"k{stamp_idx}b", cfg)

    def sum4(reads):
        a(reads[0]); a(reads[1]); keep(); a(reads[2]); a(reads[3]); keep()
        a("s_waitcnt lgkmcnt(2)")
        a(f"v_add_f32 v{RD}, v{RD}, v{RD+2}\nv_add_f32 v{RD+1}, v{RD+1}, v{RD+3}")
        a("s_waitcnt lgkmcnt(0)")
        a(f"v_add_f32 v{RD+4}, v{RD+4}, v{RD+6}\nv_add_f32 v{RD+5}, v{RD+5}, v{RD+7}")
        a(f"v_add_f32 v{RD}, v{RD}, v{RD+4}\nv_add_f32 v{RD+1}, v{RD+1}, v{RD+5}")

    a(f"""s_bcnt1_i32_b32 s{S_T0}, s{S_NEAR}
s_cmp_ge_u32 s{S_T0}, 4
s_cselect_b32 s{S_T0}, 0x2000, 0
s_add_u32 s{S_OFF_F}, s{S_OFF_F}, s{S_T0}
s_barrier""")
    a.set_filler(vD)
    store_mode(a, f"buffer_store_dword v{M0R}, v{vMO}, {WS}, s{S_OFF_E} offen")
    a(f"s_mov_b32 s{S_STEP}, 0\ns_mov_b32 s{S_PREV}, s{S_OFF_C}")
    o = cfg.get("v_mem", {})
    gp = SPoll(a, [f"buffer_load_dwordx4 {vr(G+4*i,4)}, v{vGOFF}, {WS}, s{S_OFF_A} offen offset:{1024*i} sc1" for i in range(4)],
               [G + 4 * i for i in range(4)], vT, cap=o.get("cap", 3), sleep=o.get("sleep", 5), pre_sleep=o.get("pre", 0), respin=o.get("respin", 4))
    a("s_waitcnt vmcnt(0)")
    for i in range(16): a(f"v_mov_b32 v{ACC+i}, 0")

    a.label("V_loop")
    stamp(a, 0, cfg)
    ksplit(gp, G, 0, L_MEM, 1, cfg.get('v_mem', {}), 0)
    a(f"s_add_u32 s{S_T0}, s{S_OFF_B}, {WS_VM:#x}\ns_cmp_eq_u32 s{S_MODE}, 1")
    sum4([f"ds_read2st64_b32 {vr(RD+2*src,2)}, v{vRV} offset0:{(L_MEM + src*4096)//256} offset1:{(L_MEM + src*4096)//256 + 2}" for src in range(4)])
    if cfg.get("vm_add"): a.fill(cfg["vm_add"])
    a(f"v_cvt_pk_bf16_f32 v{MI}, v{RD}, v{RD+1}")
    store_mode2(a, f"buffer_store_dword v{MI}, v{vVMO}, {WS}, s{S_T0} offen")
    stamp(a, 2, cfg)
    if "wait_x" in hooks:
        a(f"s_mov_b32 s{S_T0}, s{S_STEP}")
        hooks["wait_x"](vT)
    for x in x_loads(-1 & 0xffffffff): a(x)
    ns = a.uid("ns")
    a(f"s_cmp_lt_u32 s{S_STEP}, 2\ns_cbranch_scc1 {ns}")
    x_store()
    a.label(ns)
    x_dma(S_STEP)
    a(f"""s_cmp_eq_u32 s{S_STEP}, {NSEG-1}
s_cbranch_scc1 V_exit""")
    o = cfg.get("v_om", {})
    op = SPoll(a, [f"buffer_load_dwordx4 {vr(OF+4*f,4)}, v{vOMO}, {WS}, s88 offen offset:{1024*f} sc1" for f in range(4)],
               [OF + 4 * f for f in range(4)], vT, cap=o.get("cap", 3), sleep=o.get("sleep", 5), pre_sleep=o.get("pre", 0), respin=o.get("respin", 4))
    def mid():
        for i in range(16): a(f"v_mov_b32 v{ACC+i}, 0")
        for i in range(6): a(f"v_mov_b32 v{RP+i}, -1")
        a("s_waitcnt vmcnt(4)")
        if "post_vm" in hooks: hooks["post_vm"](MI + 2)
    nx, nx2 = a.uid("nx"), a.uid("nx")
    a(f"s_cmp_lt_u32 s{S_STEP}, 2\ns_cbranch_scc1 {nx}")
    a.label(nx2)
    if cfg.get("nox"):
        a(f"s_sub_u32 s87, s{S_STEP}, 1"); mid()
    else: x_work(-1 & 0xffffffff, mid)
    nx3 = a.uid("nx")
    a.label(nx3)
    def early():
        a(f"""{nx}:
s_waitcnt vmcnt(0)
s_cmp_eq_u32 s{S_STEP}, 1
s_cbranch_scc1 {nx2}""")
        mid()
        a(f"s_branch {nx3}")
    a.defer(early)
    stamp(a, 6, cfg)
    a(f"""s_and_b32 s88, s{S_STEP}, 7
s_lshl_b32 s88, s88, 16
s_add_u32 s{S_PREV}, s88, s{S_OFF_C}
s_add_u32 s88, s88, {WS_OM:#x}
s_mov_b32 s{S_PCUR}, s{S_OFF_F}""")
    for x in range(1, 4):
        a(f"s_xor_b32 s{S_T0+x}, s{S_PCUR}, {x << 16:#x}")
    if cfg.get("v_part", {}).get("pretouch"):
        a("\n".join(f"buffer_load_dwordx2 {vr(RP+2*(x-1),2)}, v{vPO}, {WS}, s{S_T0+x} offen sc1" for x in range(1, 4)))
    ksplit(op, OF, 128, L_RED, 3, cfg.get('v_om', {}), 1)
    if cfg.get("v_part", {}).get("early"):
        a("\n".join(f"buffer_load_dwordx2 {vr(RP+2*(x-1),2)}, v{vPO}, {WS}, s{S_T0+x} offen sc1" for x in range(1, 4)))
    sum4([f"ds_read_b64 {vr(RD+2*src,2)}, v{vRR} offset:{L_RED + src*4096}" for src in range(4)])
    o = cfg.get("v_part", {})
    l3 = "\n".join(f"buffer_load_dwordx2 {vr(RP+2*(x-1),2)}, v{vPO}, {WS}, s{S_T0+x} offen sc1" for x in range(1, 4))
    a(f"buffer_store_dwordx2 {vr(RD,2)}, v{vPO}, {WS}, s{S_PCUR} offen sc1")
    stamp(a, 4, cfg)
    a(f"""s_add_u32 s{S_OFF_E}, s{S_OFF_E}, 0x4000
s_bitset0_b32 s{S_OFF_E}, 17
s_add_u32 s{S_OFF_A}, s{S_OFF_A}, 0x4000
s_bitset0_b32 s{S_OFF_A}, 17
s_add_u32 s{S_OFF_B}, s{S_OFF_B}, 0x10000
s_bitset0_b32 s{S_OFF_B}, 19
s_add_u32 s{S_OFF_F}, s{S_OFF_F}, 0x40000
s_bitset0_b32 s{S_OFF_F}, 21""")
    if o.get("presleep", 3): a(f"s_sleep {o.get('presleep', 3)}")
    for i in range(16): a(f"v_mov_b32 v{ACC+i}, 0")
    pp = SPoll(a, [l3], [list(range(RP, RP + 6))], vT, cap=o.get("cap", 30), sleep=o.get("sleep", 4), pre_sleep=o.get("pre", 12))
    pp.first(prefill=False)
    a(f"""s_cmp_eq_u32 s{S_MODE}, 1
v_pk_add_f32 {vr(RD,2)}, {vr(RD,2)}, {vr(RP,2)}
v_pk_add_f32 {vr(RD+2,2)}, {vr(RP+2,2)}, {vr(RP+4,2)}
v_pk_add_f32 {vr(RD,2)}, {vr(RD,2)}, {vr(RD+2,2)}
v_cvt_pk_bf16_f32 v{MI}, v{RD}, v{RD+1}""")
    store_mode2(a, f"buffer_store_dword v{MI}, v{vMO}, {WS}, s{S_OFF_E} offen")
    stamp(a, 5, cfg)
    stamp_flush(a, cfg)
    a(f"""s_add_u32 s{S_STEP}, s{S_STEP}, 1
s_branch V_loop""")
    a.label("V_exit")
    fin = hooks.get("v_signal", lambda seg: None)
    def mid2():
        a("s_waitcnt vmcnt(0)\ns_barrier")
        if "post_vm" in hooks: hooks["post_vm"](MI + 2)
        fin(NSEG - 3)
    x_work(-1 & 0xffffffff, mid2)
    x_store()
    a(f"""s_and_b32 s88, s{S_STEP}, 7
s_lshl_b32 s88, s88, 16
s_add_u32 s{S_PREV}, s88, s{S_OFF_C}""")
    for x in x_loads(0): a(x)
    def mid3():
        a("s_waitcnt vmcnt(0)\ns_barrier")
        fin(NSEG - 2)
    x_work(0, mid3)
    x_store()
    a("s_waitcnt vmcnt(0)\ns_barrier")
    fin(NSEG - 1)
    a("s_endpgm")
    a.flush_deferred()
    a.set_filler(None)
```

```python
from asmgen import *

G_SX = 16
G_SW = 20
G_XOFF, G_WOFF, G_WSTEP, G_CNT = 52, 53, 54, 55
G_NXOFF, G_NWOFF = 56, 57
G_NW0, G_NW1 = 58, 59
G_M0 = 82
G_NST = 83
G_TX, G_TW = 94, 95
G_ST = 96
G_MX, G_MW = 100, 101
G_PX, G_PW, G_XSTEP = 78, 79, 33
VL, VT1, VT2, VT3 = 0, 1, 2, 3
V_L16 = 4
XD, WD, XR, WR = 8, 16, 24, 26
XT, WT, TD = 34, 35, 36
V_ROW = 37
XF, WF = 64, 128
EP = 192
OOB = 0x7f000000


class Gemm:
    def __init__(self, MT, NT, NBUF, cfg=None):
        self.MT, self.NT, self.NBUF = MT, NT, NBUF
        self.cfg = cfg or {}
        self.XB = 32 * MT * 128
        self.WROW = 32 * NT * 2
        self.SB = self.XB + 64 * self.WROW
        assert self.SB * NBUF == 0x20000
        self.RPI = 1024 // self.WROW
        self.TLEAD = self.cfg.get("tlead", 3 if MT == 8 else 6)
        self.ND = MT + NT
        self.touch = self.cfg.get('touch', False)
        self.NTCH = 1 if self.touch else 0
        self.chain = self.cfg.get('chain', False)

    def acc(self, mt, nt):
        return (mt * self.NT + nt) * 4

    def setup(self, a, s_wave, kperm, st0=36, st1=37, half=False):
        MT, NT, RPI, WROW = self.MT, self.NT, self.RPI, self.WROW
        lg = lambda x: x.bit_length() - 1
        a(f"""v_lshrrev_b32 v{VT1}, 3, v{VL}
v_and_b32 v{VT2}, 7, v{VL}
v_xor_b32 v{VT2}, v{VT2}, v{VT1}""")
        if half:
            a(f"""v_lshrrev_b32 v{VT3}, 2, v{VT2}
v_and_b32 v{VT2}, 3, v{VT2}
v_lshlrev_b32 v{VT2}, 4, v{VT2}
v_lshl_add_u32 v{VT2}, v{VT3}, 13, v{VT2}
v_add_u32 v{VT2}, 0x1000, v{VT2}""")
        else:
            a(f"v_lshlrev_b32 v{VT2}, 4, v{VT2}")
        a(f"""s_lshl_b32 s{st0}, s{s_wave}, {lg(8*MT)}
v_add_u32 v{VT1}, s{st0}, v{VT1}
v_mul_lo_u32 v{VT1}, v{VT1}, s{G_PX}
v_add_u32 v{XD}, v{VT1}, v{VT2}""")
        for i in range(1, MT):
            a(f"s_mul_i32 s{st0}, s{G_PX}, {8*i}\ns_sub_u32 s{st0}, s{st0}, {(i%4)*1024}\nv_add_u32 v{XD+i}, s{st0}, v{XD}")
        LPR = 64 // RPI
        a(f"""v_lshrrev_b32 v{VT1}, {lg(LPR)}, v{VL}
s_lshl_b32 s{st0}, s{s_wave}, 4
v_add_u32 v{VT2}, s{st0}, v{VT1}
v_mul_lo_u32 v{VT2}, v{VT2}, s{G_PW}
v_and_b32 v{VT3}, {LPR-1}, v{VL}
v_lshlrev_b32 v{VT3}, 4, v{VT3}
v_lshlrev_b32 v{VT1}, 5, v{VT1}
v_xor_b32 v{VT3}, v{VT3}, v{VT1}""")
        for i in range(NT):
            k = RPI * i
            f = k % 8 if kperm else (k % 4 + 4 * ((k // 8) % 2))
            a(f"v_xor_b32 v{VT1}, {f*32}, v{VT3}")
            a(f"s_mul_i32 s{st0}, s{G_PW}, {k}\ns_sub_u32 s{st0}, s{st0}, {(i%4)*1024}")
            a(f"v_add3_u32 v{WD+i}, v{VT2}, v{VT1}, s{st0}")
        a(f"""v_and_b32 v{VT1}, 15, v{VL}
v_lshlrev_b32 v{VT2}, 7, v{VT1}
v_and_b32 v{VT1}, 7, v{VL}
v_lshrrev_b32 v{VT3}, 4, v{VL}
v_xor_b32 v{VT1}, v{VT1}, v{VT3}
v_lshl_add_u32 v{VT2}, v{VT1}, 4, v{VT2}
s_lshr_b32 s{st0}, s{s_wave}, 1
s_lshl_b32 s{st0}, s{st0}, {lg(16*MT*128)}
v_add_u32 v{XR}, s{st0}, v{VT2}
v_xor_b32 v{XR+1}, 64, v{XR}""")
        a(f"""v_lshrrev_b32 v{VT1}, 4, v{VL}
v_lshlrev_b32 v{VT2}, {lg(WROW) + (2 if kperm else 3)}, v{VT1}
v_bfe_u32 v{VT3}, v{VL}, 2, 2
v_lshl_add_u32 v{VT2}, v{VT3}, {lg(WROW)}, v{VT2}
v_bfe_u32 v{VT3}, v{VL}, 2, 3
v_lshl_add_u32 v{VT2}, v{VT3}, 5, v{VT2}
v_and_b32 v{VT3}, 3, v{VL}
v_lshl_add_u32 v{VT2}, v{VT3}, 3, v{VT2}
s_and_b32 s{st0}, s{s_wave}, 1
s_lshl_b32 s{st0}, s{st0}, {lg(NT*32)}
v_xor_b32 v{VT2}, s{st0}, v{VT2}
v_add_u32 v{WR}, {self.XB:#x}, v{VT2}""")
        for nt in range(1, NT):
            a(f"v_xor_b32 v{WR+nt}, {nt*32}, v{WR}")
        a(f"""s_lshl_b32 s{G_WSTEP}, s{G_PW}, 6
s_mov_b32 s{G_M0}, 0
s_lshl_b32 s{G_MX}, s{s_wave}, {lg(MT*1024)}
s_lshl_b32 s{G_MW}, s{s_wave}, {lg(NT*1024)}
s_add_u32 s{G_MW}, s{G_MW}, {self.XB:#x}""")

    def dma_instrs(self, xflags, wflags):
        out = []
        for isx, n in ((True, self.MT), (False, self.NT)):
            for j in range(n):
                pre = ""
                if j == 0:
                    pre = f"s_add_u32 m0, s{G_M0}, s{G_MX if isx else G_MW}\n"
                elif j % 4 == 0:
                    pre = f"s_add_u32 m0, m0, 0x1000\n"
                srd, vo, so, fl = (G_SX, XD, G_XOFF, xflags) if isx else (G_SW, WD, G_WOFF, wflags)
                out.append(pre + f"buffer_load_dwordx4 v{vo+j}, s[{srd}:{srd+3}], s{so} offen offset:{(j%4)*1024} {fl} lds")
        return out

    def dma_advance(self):
        return f"""s_add_u32 s{G_XOFF}, s{G_XOFF}, s{G_XSTEP}
s_add_u32 s{G_WOFF}, s{G_WOFF}, s{G_WSTEP}
s_add_u32 s{G_M0}, s{G_M0}, {self.SB:#x}
s_and_b32 s{G_M0}, s{G_M0}, 0x1ffff"""

    def touch_setup(self, a, s_wave, sd):
        LR = self.WROW // 128
        lg = lambda x: x.bit_length() - 1
        lw, go = a.uid("tw"), a.uid("tg")
        a(f"""s_bfe_u32 s36, s{sd}, 0x80008
s_add_u32 s37, s36, 63
s_lshr_b32 s37, s37, 6
s_mov_b32 s{G_ST+3}, 0x20000
s_cmp_ge_u32 s{s_wave}, s37
s_cbranch_scc1 {lw}
s_lshl_b32 s37, s{s_wave}, 6
v_add_u32 v{VT1}, s37, v{VL}
v_cmp_gt_u32 vcc, s36, v{VT1}
s_and_b32 s36, s{sd}, 0xff
v_add_u32 v{VT1}, s36, v{VT1}
v_mul_lo_u32 v{XT}, v{VT1}, s{G_PX}
s_mov_b32 s{G_ST}, s{G_SX}
s_mov_b32 s{G_ST+1}, s{G_SX+1}
s_mov_b32 s{G_ST+2}, s{G_SX+2}
s_mov_b32 s{G_TX}, s{G_XOFF}
s_mov_b32 s{G_TW}, s{G_XSTEP}
s_branch {go}
{lw}:
s_sub_u32 s37, s{s_wave}, s37
s_lshl_b32 s37, s37, 6
v_add_u32 v{VT1}, s37, v{VL}
s_lshr_b32 s36, s{sd}, 24
v_cmp_gt_u32 vcc, s36, v{VT1}
s_bfe_u32 s36, s{sd}, 0x80010
v_add_u32 v{VT1}, s36, v{VT1}
v_lshrrev_b32 v{VT2}, {lg(LR)}, v{VT1}
v_mul_lo_u32 v{XT}, v{VT2}, s{G_PW}
v_and_b32 v{VT2}, {LR-1}, v{VT1}
v_lshl_add_u32 v{XT}, v{VT2}, 7, v{XT}
s_mov_b32 s{G_ST}, s{G_SW}
s_mov_b32 s{G_ST+1}, s{G_SW+1}
s_mov_b32 s{G_ST+2}, s{G_SW+2}
s_mov_b32 s{G_TX}, s{G_WOFF}
s_mov_b32 s{G_TW}, s{G_WSTEP}
{go}:
v_mov_b32 v{VT2}, {OOB:#x}
v_cndmask_b32 v{XT}, v{VT2}, v{XT}, vcc""")

    def touch_instrs(self, xflags):
        if not self.touch: return []
        return [f"buffer_load_dword v{TD}, v{XT}, s[{G_ST}:{G_ST+3}], s{G_TX} offen {xflags}\ns_add_u32 s{G_TX}, s{G_TX}, s{G_TW}"]

    def read_instrs(self, setid, h, kperm):
        xs = [f"ds_read_b128 {vr(XF+32*setid+4*mt,4)}, v{XR+h} offset:{mt*2048}" for mt in range(self.MT)]
        ws = []
        for nt in range(self.NT):
            for u in range(2):
                ws.append(f"ds_read_b64_tr_b16 {vr(WF+32*setid+4*nt+2*u,2)}, v{WR+nt} offset:{(32*h + (16 if kperm else 4)*u)*self.WROW}")
        return [xs[0]] + ws + xs[1:]

    def toggles(self):
        regs = list(range(XR, XR + 2)) + list(range(WR, WR + self.NT))
        if self.NBUF == 2:
            return [f"v_xor_b32 v{r}, 0x10000, v{r}" for r in regs]
        return [f"v_add_u32 v{r}, {self.SB:#x}, v{r}\nv_and_b32 v{r}, 0x1ffff, v{r}" for r in regs]

    def prologue(self, a, kperm, xflags="", wflags=""):
        if self.touch:
            for b in range(self.TLEAD):
                for t in self.touch_instrs(xflags): a(t)
        for b in range(self.NBUF):
            for g in self.dma_instrs(xflags, wflags): a(g)
            a(self.dma_advance())
            for t in self.touch_instrs(xflags): a(t)
        a(f"s_waitcnt vmcnt({(self.NBUF-1)*(self.ND+self.NTCH) + self.NTCH})\ns_barrier")
        for r in self.read_instrs(0, 0, kperm): a(r)

    def stage_body(self, a, orient, kperm, first, xflags, wflags):
        cfg, MT, NT = self.cfg, self.MT, self.NT
        H = MT * NT
        big = MT == 8
        bar = cfg.get("bar", 30 if big else 13)
        dgap = cfg.get("dgap", 4 if big else 2)
        vm_wait = min(63, (self.NBUF - 2) * (self.ND + self.NTCH) + self.NTCH)
        dma = self.dma_instrs(xflags, wflags)
        nrd = MT + 2 * NT
        for h in range(2):
            fill = {}
            def add(g, t): fill.setdefault(min(g, H - 1), []).append(t)
            rd = self.read_instrs(1 - h, 1 - h, kperm)
            for i, r in enumerate(rd): add(i, r)
            if h == 0:
                tg = self.toggles()
                if big:
                    for i, t in enumerate(tg): add(nrd + i, t)
                else:
                    add(1, tg[0])
                    for nt in range(NT): add(2 * nt + 3, tg[2 + nt])
                    add(nrd, tg[1])
                add(bar, f"s_waitcnt vmcnt({vm_wait}) lgkmcnt(0)\ns_barrier")
                add(bar - 1, f"""s_cmp_eq_u32 s{G_CNT}, {self.NBUF}
s_cselect_b32 s{G_XOFF}, s{G_NXOFF}, s{G_XOFF}
s_cselect_b32 s{G_WOFF}, s{G_NWOFF}, s{G_WOFF}""")
                if self.chain:
                    add(bar - 1, f"""s_cselect_b32 s{G_SW}, s{G_NW0}, s{G_SW}
s_cselect_b32 s{G_SW+1}, s{G_NW1}, s{G_SW+1}""")
            for i, d in enumerate(dma):
                g = bar + 1 + i * dgap - H * h
                if (0 <= g < H) or (h == 1 and g >= H): add(g, d)
            if h == 1:
                tg = max(0, bar + 1 + len(dma) * dgap - H)
                if self.touch:
                    add(tg, f"""s_cmp_eq_u32 s{G_CNT}, {self.NBUF + self.TLEAD}
s_cselect_b32 s{G_TX}, s{G_NXOFF}, s{G_TX}""")
                    for i, t in enumerate(self.touch_instrs(xflags)): add(tg + 1, t)
                adv = self.dma_advance().split("\n")
                last = (bar + 1 + (len(dma) - 1) * dgap - H)
                add(last + 1, "\n".join(adv[:2]))
                add(last + 2, "\n".join(adv[2:]))
                add(H - 1, f"s_sub_u32 s{G_CNT}, s{G_CNT}, 1")
            a("s_waitcnt lgkmcnt(0)")
            for mt in range(MT):
                for nt in range(NT):
                    X = vr(XF + 32 * h + 4 * mt, 4); W = vr(WF + 32 * h + 4 * nt, 4)
                    A, B = (W, X) if orient == "W" else (X, W)
                    C = "0" if (first and h == 0) else ar(self.acc(mt, nt), 4)
                    a(f"v_mfma_f32_16x16x32_bf16 {ar(self.acc(mt,nt),4)}, {A}, {B}, {C}")
                    for t in fill.get(mt * NT + nt, []): a(t)

    def tile(self, a, orient, kperm, xflags="", wflags=""):
        lp = a.uid("gl")
        a(f"s_mov_b32 s{G_CNT}, s{G_NST}")
        self.stage_body(a, orient, kperm, True, xflags, wflags)
        a.label(lp)
        self.stage_body(a, orient, kperm, False, xflags, wflags)
        a(f"s_cmp_lg_u32 s{G_CNT}, 0\ns_cbranch_scc1 {lp}")

    def pack_pair(self, a, t0, t1, dst, tmp, scale=None):
        for r in range(4):
            a(f"v_accvgpr_read_b32 v{tmp+r}, a{t0+r}")
        for r in range(4):
            a(f"v_accvgpr_read_b32 v{tmp+4+r}, a{t1+r}")
        if scale is not None:
            for r in range(0, 8, 2):
                a(f"v_pk_mul_f32 {vr(tmp+r,2)}, {vr(tmp+r,2)}, s[{scale}:{scale+1}]")
        for r in range(4):
            a(f"v_cvt_pk_bf16_f32 v{dst+r}, v{tmp+2*r}, v{tmp+2*r+1}")

    def epilogue(self, a, entries, srd, sbase, voff, flags="", scale=None, swap=False):
        entries = sorted(entries, key=lambda e: e[2])
        cur = None
        for n, (p0, p1, off) in enumerate(entries):
            win = off & ~0xfff
            if win != cur:
                a(f"s_add_u32 s36, s{sbase}, {win:#x}"); cur = win
            d = EP + 16 + 4 * (n % 8)
            self.pack_pair(a, self.acc(*p0), self.acc(*p1), d, EP + 8 * (n % 2), scale)
            if swap:
                a(f"v_permlane16_swap_b32 v{d}, v{d+2}\nv_permlane16_swap_b32 v{d+1}, v{d+3}")
            a(f"buffer_store_dwordx4 {vr(d,4)}, v{voff}, s[{srd}:{srd+3}], s36 offen offset:{off - win} {flags}")

    def ent_a_qk(self):
        return [((mt, 2*i), (mt, 2*i+1), (mt // 2) * (1 << 18) + (mt % 2) * 4096 + i * 1024) for mt in range(self.MT) for i in range(self.NT // 2)]
    def ent_a_v(self):
        return [((2*mp, nt), (2*mp+1, nt), mp * (1 << 18) + nt * 1024) for mp in range(self.MT // 2) for nt in range(self.NT)]
    def ent_b_qk(self):
        return [((mt, 2*i), (mt, 2*i+1), i * (1 << 17) + mt * 1024) for mt in range(self.MT) for i in range(self.NT // 2)]
    def ent_b_v(self):
        return [((2*mp, nt), (2*mp+1, nt), (nt // 2) * (1 << 17) + mp * 2048 + (nt % 2) * 1024) for mp in range(self.MT // 2) for nt in range(self.NT)]
    def ent_b_qk32(self):
        return [((mt, 2*i), (mt, 2*i+1), i * (1 << 17) + (mt // 2) * 2048 + (mt % 2) * 128) for mt in range(self.MT) for i in range(self.NT // 2)]
    def ent_b_v32(self):
        return [((2*mp, nt), (2*mp+1, nt), (nt // 2) * (1 << 17) + mp * 2048 + (nt % 2) * 256) for mp in range(self.MT // 2) for nt in range(self.NT)]
    def ent_row(self):
        return [((mt, 2*i), (mt, 2*i+1), mt * 16 * 4096 + i * 64) for mt in range(self.MT) for i in range(self.NT // 2)]


def row_voff(a):
    a(f"""v_and_b32 v{VT1}, 15, v{VL}
v_lshlrev_b32 v{V_ROW}, 12, v{VT1}
v_bfe_u32 v{VT1}, v{VL}, 4, 1
v_lshl_add_u32 v{V_ROW}, v{VT1}, 5, v{V_ROW}
v_lshrrev_b32 v{VT1}, 5, v{VL}
v_lshl_add_u32 v{V_ROW}, v{VT1}, 4, v{V_ROW}""")


def b32_voff(a, dst, qk):
    a(f"v_lshrrev_b32 v{VT1}, 4, v{VL}\nv_lshlrev_b32 v{dst}, 9, v{VT1}")
    if qk:
        a(f"""v_bfe_u32 v{VT1}, v{VL}, 3, 1
v_lshl_add_u32 v{dst}, v{VT1}, 8, v{dst}
v_and_b32 v{VT1}, 7, v{VL}""")
    else:
        a(f"v_and_b32 v{VT1}, 15, v{VL}")
    a(f"v_lshl_add_u32 v{dst}, v{VT1}, 4, v{dst}")
```

```python
import sys
from asmgen import *
from chain import *
from chain4 import s_cu, v_cu, DBG, WS, WS_CNT, wait_all_arrived
from gemm import *
from tail import tail_task
from battn import WS_QB, WS_KB, WS_VB, WS_OB
from battn2 import battn_task

PFX = "concat_heads__memory_aug_recurrent_mem_tr__mha_block__prompt"
NAME = PFX + "_kernel"
C_Q, C_TK, C_OVF = 32, 40, 42
C_QKV, C_BQKV, C_BAT, C_OXB, C_OXS = 0, 144, 148, 156, 168
NOSIG = 255
S_INIT = 47
T_MQKV, T_BQKV, T_BB, T_ATT, T_OB, T_OA, T_PF, T_TAIL = range(8)
L_TICKET = 0x20000
P_AX, P_WQ, P_WK, P_WV, P_WO, P_BX, P_BW, P_BO = 60, 62, 64, 66, 68, 70, 72, 74
S_D0, S_D1, S_D2, S_GRP, S_P1, S_P2, S_TYP, S_MAT, S_EB = 84, 85, 86, 58, 59, 88, 89, 93, 92
S_TAB = 90
S_OUT = 24


def desc(typ, p1, p2, wait=None, sig=NOSIG):
    wi, wt = wait if wait else (NOSIG, 0)
    return (typ | p1 << 4 | p2 << 12, wi | wt << 8 | sig << 20)


def coop(tiles, n=256):
    out = []
    kx = lambda d: (d[0] & 15, (d[0] >> 4) & 255)
    kw = lambda d: (d[0] & 15, (d[0] >> 12) & 255)
    def share(d, key):
        grp = [t for t in tiles if key(t) == key(d)]
        if len(grp) == 1: return 0, 0
        i = grp.index(d)
        lo, hi = i * n // len(grp), (i + 1) * n // len(grp)
        return lo, hi - lo
    for d in tiles:
        xf, xc = share(d, kx); wf, wc = share(d, kw)
        assert (xc + 63) // 64 + (wc + 63) // 64 <= 4
        out.append(d + (xf | xc << 8 | wf << 16 | wc << 24,))
    return out


def ox_counter(blk):
    return (C_OXB + blk, 128) if blk < 12 else None


def schedule(cfg):
    L = [[] for _ in range(8)]
    def mq(rb, x):
        return [desc(T_MQKV, rb, mat * 32 + 8 * x + i, sig=C_QKV + rb * 16 + (8 * x + i) // 2) for i in range(8) for mat in (1, 2, 0)]
    def bq(mb, x):
        return [desc(T_BQKV, mb, mat * 16 + 4 * x + i, sig=C_QKV + (1 + mb) * 16 + 4 * x + i) for i in range(4) for mat in (1, 2, 0)]
    def bb(hg):
        return [desc(T_BB, mb, mat * 4 + hg, sig=C_BQKV + hg) for mat in (1, 2, 0) for mb in range(8)]
    def att(h):
        return [desc(T_ATT, h, qb, wait=(C_BQKV + h // 8, 24), sig=C_BAT + qb) for qb in range(8)]
    def ob(blk):
        return [desc(T_OB, blk, nb, wait=(C_BAT + blk // 2, 32)) for nb in range(8)]
    def oa(blk):
        if blk < 12: w = (C_OXB + blk, 256)
        else: w = (C_OXS + (blk - 12) * 4 + 3, 64)
        return [desc(T_OA, blk, nb, wait=w) for nb in range(8)]
    def bqr(mbs, x):
        cols = list(zip(*[bq(mb, x) for mb in mbs]))
        return [t for c in cols for t in c]
    def pf(mat, pat, off, rows=128):
        return (T_PF | mat << 4 | pat << 12, off, rows // 2)
    def slowcols(g, mats):
        return [pf(m, 0, (g * 1024 * 2048 + ln * 128) if m == 3 else (16 * g + ln) * 128) for m in mats for ln in (3, 11)]
    for g in range(4):
        rowpf = [pf(m, 1, (4 * k + 2) * 64 * 8192 + g * 2048) for k in range(4) for m in (0, 1)]
        if cfg.get("pf_order", 2) == 0: L[g] += slowcols(g, (0, 1, 2, 3)) + rowpf
        elif cfg.get("pf_order", 2) == 1: L[g] += rowpf + slowcols(g, (3,))
        else: L[g] += rowpf
    t0 = cfg["tail_seg0"]
    nblk = t0 // 4
    def tail(cs, k): return desc(T_TAIL, cs, t0 + k)
    nsm = cfg.get("att_small", 2)
    for g in range(4):
        L[g] += coop(bq(1, g)[8:] + bq(2, g)[8:])
        for k in range(nsm): L[g] += att(8 * g + k)
        L[g] += [tail(8 * g + i, 0) for i in range(8)]
    for x in range(4):
        l = L[4 + x]
        xpf = [pf(4, 1, k * 32 * 2048, 32) for k in range(8)]
        nq = cfg.get("wpf_rows", 256)
        wpf = [pf(m, 1, (1024 - nq + h * nq // 2) * 8192 + x * 2048, nq // 2) for m in range(3) for h in range(2)]
        l += xpf + mq(0, x) + (wpf if cfg.get("wpf", 0) else slowcols(x, (0, 1, 2))) + coop(bq(1, x)[:8]) + mq(1, x)
        l += coop(bb(x)) + coop(bq(2, x)[:8])
        l += coop(bqr((3, 4), x)) + oa(x)
        l += coop(bqr((5, 6), x)) + oa(4 + x)
        l += coop(bq(7, x))
        for h in range(8 * x + nsm, 8 * x + 8): l += att(h)
        l += oa(8 + x)
        for k in range(1, cfg["tail_stride"]): l += [tail(8 * x + i, k) for i in range(8)]
        if 12 + x < nblk: l += oa(12 + x)
        for blk in range(x, 16, 4): l += ob(blk)
    return L


def worker(a, cfg):
    big = Gemm(8, 8, 2, dict({"touch": True}, **cfg.get("big", {})))
    med = Gemm(4, 4, 4, cfg.get("med", {}))
    lists = schedule(cfg)
    MAXL = max(len(l) for l in lists)
    a(f"""v_and_b32 v0, 63, v0
v_lshlrev_b32 v{V_L16}, 4, v0
s_load_dwordx2 s[{P_AX}:{P_AX+1}], s[0:1], 0
s_load_dwordx2 s[{P_WQ}:{P_WQ+1}], s[0:1], 16
s_load_dwordx4 s[{P_WK}:{P_WK+3}], s[0:1], 24
s_load_dwordx2 s[{P_WO}:{P_WO+1}], s[0:1], 40
s_load_dwordx2 s[{P_BX}:{P_BX+1}], s[0:1], 56
s_load_dwordx4 s[{P_BW}:{P_BW+3}], s[0:1], 64
s_getpc_b64 s[{S_TAB}:{S_TAB+1}]
W_pc:
s_add_u32 s{S_TAB}, s{S_TAB}, W_table-W_pc
s_addc_u32 s{S_TAB+1}, s{S_TAB+1}, 0
s_waitcnt lgkmcnt(0)""")
    for p in range(P_AX, P_BO + 2, 2): a(f"s_and_b32 s{p+1}, s{p+1}, 0xffff")
    srd(a, S_OUT, 80, 2048 * 4096)
    row_voff(a)
    a(f"""s_mov_b32 s{G_SX+3}, 0x20000
s_mov_b32 s{G_SW+3}, 0x20000
s_mov_b32 s{G_NXOFF}, {OOB:#x}
s_mov_b32 s{G_NWOFF}, {OOB:#x}
v_mov_b32 v5, {L_TICKET:#x}
v_mov_b32 v6, 0""")
    a(f"s_mov_b32 s{S_INIT}, 0")
    def init_check():
        sk = a.uid("ic")
        a(f"s_cmp_eq_u32 s{S_INIT}, 1\ns_cbranch_scc1 {sk}")
        wait_all_arrived(a, 200, 37)
        a(f"s_mov_b32 s{S_INIT}, 1")
        a.label(sk)
    a(f"""s_sub_u32 s37, s{S_J}, 24
s_cmp_lt_u32 s{S_GRP}, 4
s_cselect_b32 s36, s37, s{S_J}
s_cselect_b32 s{S_J}, 8, 32
s_branch W_have""")
    a.label("W_next")
    a(f"""s_cmp_lg_u32 s{S_WAVE}, 0
s_cbranch_scc1 W_tk
v_mov_b32 v1, 1
s_lshl_b32 s36, s{S_GRP}, 2
s_mov_b64 exec, 1
buffer_atomic_add v1, v6, {DBG}, s36 offen offset:{C_Q*4} sc0 sc1
s_waitcnt vmcnt(0)
ds_write_b32 v5, v1
s_mov_b64 exec, -1
s_waitcnt lgkmcnt(0)
W_tk:
s_barrier
ds_read_b32 v1, v5
s_waitcnt lgkmcnt(0)
v_readfirstlane_b32 s36, v1
s_nop 3
s_add_u32 s36, s36, s{S_J}
W_have:
s_min_u32 s36, s36, {MAXL}
s_mul_i32 s37, s{S_GRP}, {MAXL+1}
s_add_u32 s36, s36, s37
s_lshl_b32 s36, s36, 4
s_load_dwordx4 s[{S_D0}:{S_D0+3}], s[{S_TAB}:{S_TAB+1}], s36
s_waitcnt lgkmcnt(0)
s_and_b32 s{S_TYP}, s{S_D0}, 15
s_cmp_eq_u32 s{S_TYP}, 15
s_cbranch_scc1 L_done
s_bfe_u32 s{S_P1}, s{S_D0}, 0x80004
s_bfe_u32 s{S_P2}, s{S_D0}, 0x8000c""")
    if cfg.get("wstamps"):
        a(f"s_memrealtime s[40:41]\ns_lshr_b32 s46, s36, 4")
    a(f"s_cmp_eq_u32 s{S_TYP}, {T_PF}\ns_cbranch_scc1 W_pf")
    a(f"s_cmp_eq_u32 s{S_TYP}, {T_TAIL}\ns_cbranch_scc1 W_tail")
    a(f"""s_bfe_u32 s38, s{S_D1}, 0xc0008
s_cmp_eq_u32 s38, 0
s_cbranch_scc1 W_go
s_cmp_lg_u32 s{S_WAVE}, 0
s_cbranch_scc1 W_go2
""")
    init_check()
    a(f"""s_and_b32 s39, s{S_D1}, 0xff
s_lshl_b32 s39, s39, 7
s_add_u32 s39, s39, {WS_CNT:#x}
W_dep:""")
    budget_head(a)
    a(f"""buffer_load_dword v1, v6, {WS}, s39 offen sc1
s_waitcnt vmcnt(0)
v_readfirstlane_b32 s36, v1
s_nop 3
s_cmp_ge_u32 s36, s38
s_cbranch_scc1 W_go2
s_sleep {cfg.get("dep_sleep", 16)}
s_branch W_dep
W_go2:
s_barrier
W_go:""")
    if cfg.get("wstamps"):
        a(f"s_memrealtime s[42:43]\ns_memtime s[76:77]\ns_waitcnt lgkmcnt(0)")
    a(f"""s_cmp_eq_u32 s{S_TYP}, {T_ATT}
s_cbranch_scc1 W_att
s_cmp_ge_u32 s{S_TYP}, {T_OB}
s_cbranch_scc1 W_out
s_mov_b32 s{G_NST}, 16
s_mov_b32 s{G_PX}, 2048
s_mov_b32 s{G_XSTEP}, 128
s_mov_b32 s{G_SX+2}, {2048*2048:#x}
s_cmp_eq_u32 s{S_TYP}, {T_BB}
s_cbranch_scc1 W_bb""")
    def sel_w():
        a(f"""s_mov_b32 s{G_SX}, s{P_AX}
s_mov_b32 s{G_SX+1}, s{P_AX+1}
s_cmp_eq_u32 s{S_MAT}, 1
s_cselect_b32 s{G_SW}, s{P_WK}, s{P_WQ}
s_cselect_b32 s{G_SW+1}, s{P_WK+1}, s{P_WQ+1}
s_cselect_b32 s36, {WS_KX:#x}, {WS_QX:#x}
s_cmp_eq_u32 s{S_MAT}, 2
s_cselect_b32 s{G_SW}, s{P_WV}, s{G_SW}
s_cselect_b32 s{G_SW+1}, s{P_WV+1}, s{G_SW+1}
s_cselect_b32 s36, {WS_VX:#x}, s36
s_add_u32 s{S_EB}, s{S_EB}, s36
s_mov_b32 s{G_SW+2}, {1024*8192:#x}
s_mov_b32 s{G_PW}, 8192""")
    a(f"""s_cmp_eq_u32 s{S_TYP}, {T_BQKV}
s_cbranch_scc1 W_abig""")
    a(f"""s_lshr_b32 s{S_MAT}, s{S_P2}, 5
s_and_b32 s38, s{S_P2}, 31
s_lshl_b32 s{G_XOFF}, s{S_P1}, 18
s_lshl_b32 s{G_WOFF}, s38, 8
s_lshl_b32 s36, s{S_P1}, 1
s_lshr_b32 s37, s{S_WAVE}, 1
s_add_u32 s36, s36, s37
s_lshl_b32 s{S_EB}, s36, 19
s_lshl_b32 s36, s38, 13
s_add_u32 s{S_EB}, s{S_EB}, s36
s_and_b32 s37, s{S_WAVE}, 1
s_cmp_eq_u32 s{S_MAT}, 2
s_cselect_b32 s36, 12, 11
s_lshl_b32 s37, s37, s36
s_add_u32 s{S_EB}, s{S_EB}, s37""")
    sel_w()
    med.setup(a, S_WAVE, False)
    med.prologue(a, False)
    a(f"s_cmp_eq_u32 s{S_MAT}, 2\ns_cbranch_scc1 W_mv")
    med.tile(a, "W", False)
    med.epilogue(a, med.ent_a_qk(), S_WS, S_EB, V_L16, "sc1")
    a("s_branch W_fin")
    a.label("W_mv")
    med.tile(a, "X", False)
    med.epilogue(a, med.ent_a_v(), S_WS, S_EB, V_L16, "sc1")
    a("s_branch W_fin")
    a.label("W_abig")
    a(f"""s_lshr_b32 s{S_MAT}, s{S_P2}, 4
s_and_b32 s38, s{S_P2}, 15
s_lshl_b32 s{G_XOFF}, s{S_P1}, 19
s_lshl_b32 s{G_WOFF}, s38, 9
s_lshl_b32 s36, s{S_P1}, 1
s_lshr_b32 s37, s{S_WAVE}, 1
s_add_u32 s36, s36, s37
s_lshl_b32 s{S_EB}, s36, 20
s_lshl_b32 s36, s38, 1
s_and_b32 s37, s{S_WAVE}, 1
s_add_u32 s36, s36, s37
s_lshl_b32 s36, s36, 13
s_add_u32 s{S_EB}, s{S_EB}, s36""")
    sel_w()
    a("s_branch W_biggo")
    a.label("W_bb")
    cb = f32bits(32 ** -0.5 * LOG2E)
    a(f"""s_lshr_b32 s{S_MAT}, s{S_P2}, 2
s_lshl_b32 s{G_XOFF}, s{S_P1}, 19
s_lshl_b32 s{G_WOFF}, s{S_P2}, 9
s_and_b32 s36, s{S_P2}, 3
s_lshl_b32 s36, s36, 1
s_and_b32 s37, s{S_WAVE}, 1
s_add_u32 s36, s36, s37
s_lshl_b32 s{S_EB}, s36, 19
s_lshl_b32 s36, s{S_P1}, 1
s_lshr_b32 s37, s{S_WAVE}, 1
s_add_u32 s36, s36, s37
s_lshl_b32 s36, s36, 13
s_add_u32 s{S_EB}, s{S_EB}, s36
s_lshl_b32 s36, s{S_MAT}, 22
s_add_u32 s{S_EB}, s{S_EB}, s36
s_add_u32 s{S_EB}, s{S_EB}, {WS_QB:#x}
s_cmp_eq_u32 s{S_MAT}, 0
s_cselect_b32 s{S_C}, {cb:#x}, 1.0
s_mov_b32 s{S_C+1}, s{S_C}
s_mov_b32 s{G_SX}, s{P_BX}
s_mov_b32 s{G_SX+1}, s{P_BX+1}
s_mov_b32 s{G_SW}, s{P_BW}
s_mov_b32 s{G_SW+1}, s{P_BW+1}
s_mov_b32 s{G_SW+2}, {1024*6144:#x}
s_mov_b32 s{G_PW}, 6144""")
    a.label("W_biggo")
    big.setup(a, S_WAVE, False)
    if big.touch: big.touch_setup(a, S_WAVE, S_D2)
    big.prologue(a, False)
    a(f"s_cmp_eq_u32 s{S_MAT}, 2\ns_cbranch_scc1 W_bv")
    big.tile(a, "W", False)
    a(f"s_cmp_eq_u32 s{S_TYP}, {T_BB}\ns_cbranch_scc1 W_e1")
    big.epilogue(a, big.ent_a_qk(), S_WS, S_EB, V_L16, "sc1")
    a("s_branch W_fin")
    a.label("W_e1")
    b32_voff(a, 38, True)
    big.epilogue(a, big.ent_b_qk32(), S_WS, S_EB, 38, "sc1", scale=S_C)
    a("s_branch W_fin")
    a.label("W_bv")
    big.tile(a, "X", False)
    a(f"s_cmp_eq_u32 s{S_TYP}, {T_BB}\ns_cbranch_scc1 W_e2")
    big.epilogue(a, big.ent_a_v(), S_WS, S_EB, V_L16, "sc1")
    a("s_branch W_fin")
    a.label("W_e2")
    b32_voff(a, 38, False)
    big.epilogue(a, big.ent_b_v32(), S_WS, S_EB, 38, "sc1")
    a("s_branch W_fin")
    a.label("W_out")
    a(f"""s_mov_b32 s{G_SX}, s{S_WS}
s_mov_b32 s{G_SX+1}, s{S_WS+1}
s_mov_b32 s{G_SX+2}, s{S_WS+2}
s_mov_b32 s{G_PX}, 64
s_mov_b32 s{G_PW}, 2048
s_mov_b32 s{G_XSTEP}, 0x4000
s_lshl_b32 s{G_WOFF}, s{S_P2}, 8
s_lshl_b32 s36, s{S_P1}, 1
s_lshr_b32 s37, s{S_WAVE}, 1
s_add_u32 s36, s36, s37
s_lshl_b32 s{S_EB}, s36, 18
s_lshl_b32 s36, s{S_P2}, 1
s_and_b32 s37, s{S_WAVE}, 1
s_add_u32 s36, s36, s37
s_lshl_b32 s36, s36, 7
s_add_u32 s{S_EB}, s{S_EB}, s36
s_cmp_eq_u32 s{S_TYP}, {T_OA}
s_cselect_b32 s{G_SW}, s{P_WO}, s{P_BO}
s_cselect_b32 s{G_SW+1}, s{P_WO+1}, s{P_BO+1}
s_mov_b32 s36, {1024*2048:#x}
s_cselect_b32 s{G_SW+2}, {4096*2048:#x}, s36
s_cselect_b32 s{G_NST}, 64, 16
s_cselect_b32 s36, 20, 18
s_mov_b32 s37, {WS_OB - 4096:#x}
s_cselect_b32 s37, {WS_OX - 4096:#x}, s37
s_cselect_b32 s38, 0, 2048
s_lshl_b32 s{G_XOFF}, s{S_P1}, s36
s_add_u32 s{G_XOFF}, s{G_XOFF}, s37
s_add_u32 s{S_EB}, s{S_EB}, s38""")
    med.setup(a, S_WAVE, True, half=True)
    med.prologue(a, True, "sc1")
    med.tile(a, "W", True, "sc1")
    med.epilogue(a, med.ent_row(), S_OUT, S_EB, V_ROW, swap=True)
    a("s_branch W_fin")
    a.label("W_pf")
    a(f"""s_cmp_eq_u32 s{S_P1}, 1
s_cselect_b32 s{G_SW}, s{P_WK}, s{P_WQ}
s_cselect_b32 s{G_SW+1}, s{P_WK+1}, s{P_WQ+1}
s_cmp_eq_u32 s{S_P1}, 2
s_cselect_b32 s{G_SW}, s{P_WV}, s{G_SW}
s_cselect_b32 s{G_SW+1}, s{P_WV+1}, s{G_SW+1}
s_cmp_eq_u32 s{S_P1}, 3
s_cselect_b32 s{G_SW}, s{P_WO}, s{G_SW}
s_cselect_b32 s{G_SW+1}, s{P_WO+1}, s{G_SW+1}
s_cselect_b32 s38, 11, 13
s_mov_b32 s{G_SW+2}, {1024*8192:#x}
s_cmp_eq_u32 s{S_P1}, 4
s_cselect_b32 s{G_SW}, s{P_AX}, s{G_SW}
s_cselect_b32 s{G_SW+1}, s{P_AX+1}, s{G_SW+1}
s_cselect_b32 s{G_SW+2}, {2048*2048:#x}, s{G_SW+2}
s_cselect_b32 s38, 11, s38
s_cmp_eq_u32 s{S_P2}, 1
s_cbranch_scc1 W_pf1
v_lshrrev_b32 v1, 3, v0
s_lshl_b32 s36, s{S_WAVE}, 3
v_add_u32 v1, s36, v1
v_lshlrev_b32 v1, s38, v1
v_and_b32 v2, 7, v0
v_lshl_add_u32 v1, v2, 4, v1
s_lshl_b32 s37, 32, s38
s_mov_b32 s39, 32
s_branch W_pfgo
W_pf1:
s_lshr_b32 s36, s{S_WAVE}, 1
s_lshl_b32 s36, s36, s38
s_and_b32 s37, s{S_WAVE}, 1
s_lshl_b32 s37, s37, 10
s_add_u32 s36, s36, s37
v_add_u32 v1, s36, v{V_L16}
s_lshl_b32 s37, 2, s38
s_mov_b32 s39, s{S_D2}
W_pfgo:
s_mov_b32 s36, s{S_D1}
W_pfl:
buffer_load_dwordx4 v[64:67], v1, s[{G_SW}:{G_SW+3}], s36 offen
s_add_u32 s36, s36, s37
s_waitcnt vmcnt(48)
s_sub_u32 s39, s39, 1
s_cmp_lg_u32 s39, 0
s_cbranch_scc1 W_pfl
s_mov_b32 s{S_D1}, {NOSIG << 20:#x}""")
    if cfg.get("wstamps"):
        a("s_waitcnt lgkmcnt(0)\ns_mov_b32 s42, s40")
    a("s_branch W_fin")
    a.label("W_tail")
    if cfg.get("wstamps"):
        a("s_waitcnt lgkmcnt(0)\ns_mov_b32 s42, s40")
    init_check()
    a(f"""s_mov_b32 s{G_SW}, s{P_WO}
s_mov_b32 s{G_SW+1}, s{P_WO+1}
s_mov_b32 s{G_SW+2}, {4096*2048:#x}""")
    tail_task(a, S_WS, G_SW, S_OUT, S_WAVE, S_P1, S_P2, WS_CNT + (C_OXS - 48) * 128, cfg["tail_stride"], cfg)
    row_voff(a)
    a("s_branch W_fin")
    a.label("W_att")
    battn_task(a, S_WS, S_WAVE, S_P1, S_P2, cfg, "sc1", "sc1")
    row_voff(a)
    a(f"s_mov_b32 s{G_NXOFF}, {OOB:#x}\ns_mov_b32 s{G_NWOFF}, {OOB:#x}")
    a.label("W_fin")
    a(f"""s_waitcnt vmcnt(0) lgkmcnt(0)
s_barrier
s_cmp_lg_u32 s{S_WAVE}, 0
s_cbranch_scc1 W_next""")
    if cfg.get("wstamps"):
        a(f"""s_memrealtime s[44:45]
s_memtime s[80:81]
s_waitcnt lgkmcnt(0)
s_sub_u32 s80, s80, s76
v_mov_b32 v200, s40
v_mov_b32 v201, s42
v_mov_b32 v202, s44
v_mov_b32 v203, s80
s_lshl_b32 s36, s46, 4
s_add_u32 s36, s36, {0x8000000:#x}
s_mov_b64 exec, 1
buffer_store_dwordx4 v[200:203], v6, {WS}, s36 offen
s_mov_b64 exec, -1""")
    a(f"""s_lshr_b32 s36, s{S_D1}, 20
s_cmp_eq_u32 s36, {NOSIG}
s_cbranch_scc1 W_next""")
    init_check()
    a(f"""s_lshl_b32 s36, s36, 7
s_add_u32 s36, s36, {WS_CNT:#x}
v_mov_b32 v1, 1
s_mov_b64 exec, 1
buffer_atomic_add v1, v6, {WS}, s36 offen sc1
s_mov_b64 exec, -1
s_branch W_next""")
    tab = []
    for l in lists:
        l = l + [(15, 0)] * (MAXL + 1 - len(l))
        tab += [f".long {d[0]:#x}, {d[1]:#x}, {d[2] if len(d) > 2 else 0:#x}, 0" for d in l]
    return tab


def chain_hooks(a):
    def wait_x(vt):
        sk, lp = a.uid("wx"), a.uid("wx")
        a(f"""s_cmp_ge_u32 s{S_T0}, {NSEG}
s_cbranch_scc1 {sk}
s_cmp_lt_u32 s{S_T0}, 8
s_cselect_b32 s{S_T1}, 3, 7
s_and_b32 s{S_T1}, s{S_T0}, s{S_T1}
s_cmp_lg_u32 s{S_T1}, 0
s_cbranch_scc1 {sk}
s_lshr_b32 s{S_T1}, s{S_T0}, 3
s_add_u32 s{S_T1}, s{S_T1}, 1
s_lshr_b32 s{S_T2}, s{S_T0}, 2
s_cmp_lt_u32 s{S_T0}, 8
s_cselect_b32 s{S_T1}, s{S_T2}, s{S_T1}
s_cselect_b32 s{S_T2}, 6, 3
s_lshl_b32 s{S_T1}, s{S_T1}, 4
s_lshr_b32 s{S_T3}, s{S_HEAD}, 1
s_add_u32 s{S_T1}, s{S_T1}, s{S_T3}
s_lshl_b32 s{S_T1}, s{S_T1}, 7
s_add_u32 s{S_T1}, s{S_T1}, {WS_CNT + C_QKV*128:#x}
{lp}:""")
        budget_head(a)
        a(f"""v_mov_b32 v{vt}, 0
buffer_load_dword v{vt}, v{vt}, {WS}, s{S_T1} offen sc1
s_waitcnt vmcnt(0)
v_readfirstlane_b32 s{S_T3}, v{vt}
s_nop 3
s_cmp_ge_u32 s{S_T3}, s{S_T2}
s_cbranch_scc1 {sk}
s_sleep 4
s_branch {lp}
{sk}:""")
    def signal(vt, seg_sgpr, n=1):
        a(f"""s_lshr_b32 s{S_T1}, s{seg_sgpr}, 2
s_add_u32 s{S_T1}, s{S_T1}, {C_OXB}
s_add_u32 s{S_T2}, s{seg_sgpr}, {C_OXS - 48}
s_cmp_lt_u32 s{seg_sgpr}, 48
s_cselect_b32 s{S_T1}, s{S_T1}, s{S_T2}
s_lshl_b32 s{S_T1}, s{S_T1}, 7
s_add_u32 s{S_T1}, s{S_T1}, {WS_CNT:#x}
v_mov_b32 v{vt}, {n}
v_mov_b32 v{vt+1}, 0
s_mov_b64 exec, 1
buffer_atomic_add v{vt}, v{vt+1}, {WS}, s{S_T1} offen sc1
s_mov_b64 exec, -1""")
    def post_vm(vt):
        sk = a.uid("pv")
        a(f"""s_lshl_b32 s{S_T0}, s{S_J}, 2
s_add_u32 s{S_T0}, s{S_T0}, s{S_WAVE}
s_cmp_lg_u32 s{S_T0}, 3
s_cbranch_scc1 {sk}
s_cmp_lt_u32 s{S_STEP}, 3
s_cbranch_scc1 {sk}
s_sub_u32 s{S_T0}, s{S_STEP}, 3""")
        signal(vt, S_T0, 16)
        a.label(sk)
    def v_signal(seg):
        sk = a.uid("vs")
        a(f"s_cmp_lg_u32 s{S_WAVE}, 0\ns_cbranch_scc1 {sk}\ns_mov_b32 s{S_T0}, {seg}")
        signal(154, S_T0, 1)
        a.label(sk)
    return {"wait_x": wait_x}, {"post_vm": post_vm, "wait_x": wait_x, "v_signal": v_signal}


def role_ticket(a, cfg):
    a(f"""v_mov_b32 v2, 0
s_cmp_lg_u32 s{S_WAVE}, 0
s_cbranch_scc1 R_join
s_getreg_b32 s36, hwreg(HW_REG_XCC_ID)
s_and_b32 s36, s36, {cfg.get("xcc_mask", 7)}
s_and_b32 s37, s36, 3
s_lshl_b32 s37, s37, 3
s_lshl_b32 s38, 1, s37
s_and_b32 s39, s36, 4
v_mov_b32 v3, s38
s_mov_b64 exec, 1
buffer_atomic_add v3, v2, {DBG}, s39 offen offset:{C_TK*4} sc0 sc1
s_waitcnt vmcnt(0)
v_readfirstlane_b32 s38, v3
s_nop 3
s_lshr_b32 s38, s38, s37
s_and_b32 s38, s38, 0xff
s_cmp_lt_u32 s38, 32
s_cbranch_scc1 R_have
v_mov_b32 v3, 1
buffer_atomic_add v3, v2, {DBG}, 0 offen offset:{C_OVF*4} sc0 sc1
s_waitcnt vmcnt(0)
v_readfirstlane_b32 s40, v3
R_wait:""")
    budget_head(a)
    a(f"""s_sleep 8
buffer_load_dword v4, v2, {DBG}, 0 offen offset:{C_TK*4} sc1
buffer_load_dword v5, v2, {DBG}, 0 offen offset:{C_TK*4+4} sc1
s_waitcnt vmcnt(0)
v_readfirstlane_b32 s42, v4
v_readfirstlane_b32 s43, v5
s_nop 3
s_mov_b32 s41, 0""")
    for x in range(8):
        a(f"s_bfe_u32 s37, s{42 + x // 4}, {(8 << 16) | (8 * (x % 4)):#x}\ns_add_u32 s41, s41, s37")
    a("""s_cmp_lt_u32 s41, 256
s_cbranch_scc1 R_wait""")
    for x in range(8):
        a(f"""s_bfe_u32 s37, s{42 + x // 4}, {(8 << 16) | (8 * (x % 4)):#x}
s_min_u32 s37, s37, 32
s_mov_b32 s36, {x}
s_add_u32 s38, s37, s40
s_cmp_lt_u32 s38, 32
s_cbranch_scc1 R_have
s_sub_u32 s40, s38, 32""")
    a(f"""s_branch L_fail
R_have:
s_lshl_b32 s38, s38, 3
s_add_u32 s38, s38, s36
v_mov_b32 v3, s38
ds_write_b32 v2, v3
s_mov_b64 exec, -1
s_waitcnt lgkmcnt(0)
R_join:
s_barrier
ds_read_b32 v3, v2
s_waitcnt lgkmcnt(0)
v_readfirstlane_b32 s2, v3
s_nop 3
s_and_b32 s2, s2, 0xff
s_barrier""")


def gen(cfg):
    cfg.setdefault("tail_seg0", 52)
    cfg.setdefault("tail_stride", 2)
    a = Asm()
    a(f"""s_cmp_ge_u32 s2, 256
s_cbranch_scc1 L_done
v_lshrrev_b32 v1, 6, v0
v_readfirstlane_b32 s{S_WAVE}, v1""")
    srd(a, S_WS, 96, WS_SIZE)
    srd(a, S_DBG, 88, 256)
    a(f"s_mov_b32 s{S_BUDGET}, {POLL_BUDGET}")
    if not cfg.get("static_roles"): role_ticket(a, cfg)
    a(f"""s_and_b32 s{S_TEAM}, s2, 7
s_mov_b32 s{S_GRP}, s{S_TEAM}
s_lshr_b32 s{S_J}, s2, 3
s_mov_b32 s{S_MODE}, 0
s_cmp_ge_u32 s{S_TEAM}, {NT}
s_cbranch_scc1 L_W
s_cmp_ge_u32 s{S_J}, 24
s_cbranch_scc1 L_W
s_cmp_lt_u32 s{S_J}, 8
s_cbranch_scc1 L_S
s_sub_u32 s{S_J}, s{S_J}, 8""")
    hooks, vhooks = chain_hooks(a)
    v_cu(a, cfg, vhooks)
    a.label("L_S")
    s_cu(a, cfg, hooks)
    a.label("L_fail")
    a(f"""v_mov_b32 v1, 0xdead
v_mov_b32 v2, 0
s_mov_b64 exec, 1
buffer_store_dword v1, v2, {DBG}, 0 offen offset:8
s_endpgm""")
    a.label("L_W")
    tab = worker(a, cfg)
    a.label("L_done")
    a("s_endpgm")
    body = a.finalize()
    ref = open("cdna_kernels/" + PFX + ".s.ref").read().split("\n")
    hdr = [l for l in ref if l.startswith(";") and "@launch" not in l and "Override" not in l and "grid=ceil" not in l]
    out = "\n".join(hdr) + "\n"
    out += f"; @launch grid=(256,1,1) block=(256,1,1) lds={LDS_BYTES}\n"
    out += f""".amdgcn_target "amdgcn-amd-amdhsa--gfx950"
.text
.globl {NAME}
.p2align 8
.type {NAME},@function
{NAME}:
""" + body
    out += ".p2align 4\n.type W_table,@object\nW_table:\n" + "\n".join(tab) + f"\n.size W_table, {16*len(tab)}\n"
    out += f"""
.section .rodata,"a"
.p2align 6
.amdhsa_kernel {NAME}
  .amdhsa_next_free_vgpr 512
  .amdhsa_next_free_sgpr 102
  .amdhsa_accum_offset 256
  .amdhsa_group_segment_fixed_size 0
  .amdhsa_kernarg_size 104
  .amdhsa_user_sgpr_count 2
  .amdhsa_user_sgpr_kernarg_segment_ptr 1
  .amdhsa_system_sgpr_workgroup_id_x 1
.end_amdhsa_kernel
"""
    return out


def report(cfg, down):
    import numpy as np
    if cfg.get("stamps") and not cfg.get("rt"):
        T = down(WS_STAMP, np.uint32, (256, 4, 64, 64))[:, :, :, :8].astype(np.int64)
        ss = list(cfg["stamp_set"])
        Sw = [g + 8*j for g in range(4) for j in range(8)]
        Vw = [g + 8*j for g in range(4) for j in range(8, 24)]
        for nm_, W_ in (("S", Sw), ("V", Vw)):
            t = T[W_][:, :, 12:60]
            d = (t[..., ss[1:]] - t[..., ss[:-1]]) & 0xffffffff
            per = (T[W_][:, :, 13:61, ss[0]] - t[..., ss[0]]) & 0xffffffff
            print("  ", nm_, cfg.get("at"), "deltas med", np.median(d.reshape(-1, d.shape[-1]), 0).tolist(), "min", d.reshape(-1, d.shape[-1]).min(0).tolist(), "period median", np.median(per))
        return
    if cfg.get("hops"):
        T = down(WS_STAMP, np.uint32, (32, 8, 4, 64, 64))[..., :8].astype(np.int64) * 10
        S = T[:8, :4]; V = T[8:24, :4]
        st = np.arange(12, 60)
        q = lambda x: "med %4d p90 %4d max-mean %4d" % (np.median(x), np.percentile(x, 90), x.reshape(-1, x.shape[-1]).max(0).mean())
        prod = V[0::4, :, :, :, 5].max(2)[:, :, st - 1]
        print("   MEMT hop (frag0)  ", q(S[:, :, :, :, 1][..., st] - prod.transpose(1, 0, 2)[None]))
        allp = V[..., 5].max(2).max(0)[:, st - 1]
        print("   last MEMT pub -> S OM pub", q(S[..., 4][..., st] - allp[None, :, None]))
        print("   last MEMT pub -> VM pub", q(V[..., 2][..., st] - allp[None, :, None]))
        prod = S[0::2, :, :2, :, 4].max(2)[:, :, st]
        print("   OM hop (frag0)    ", q(V[..., 3][..., st] - prod.transpose(1, 0, 2)[None]))
        allo = S[..., 4].max(2).max(0)[:, st]
        print("   last OM pub -> PART pub", q(V[..., 4][..., st] - allo[None, :, None]))
        lastp = V[..., 4].max(1)[..., st]
        print("   last PART pub -> MEMT pub", q(V[..., 5][..., st] - lastp[:, None]))
        print("   spread of PART pub across teams", q(V[..., 4].max(1)[..., st] - V[..., 4].min(1)[..., st]))
        print("   spread MEMT pub within team", q(V[..., 5].max(2).max(0)[:, st] - V[..., 5].min(2).min(0)[:, st]))
        print("   spread OM pub within team", q(allo - S[..., 4].min(2).min(0)[:, st]))
        print("   period", (S[0, 0, 0, 60, 4] - S[0, 0, 0, 12, 4]) / 48)
        return
    if cfg.get("wstamps"):
        lists = schedule(cfg); MAXL = max(len(l) for l in lists)
        st = down(0x8000000, np.uint32, (8, MAXL + 1, 4)).astype(np.int64)
        t0 = min(st[g, :len(lists[g]), 0].min() for g in range(8))
        names = ["mqkv", "bqkv", "bb", "att", "ob", "oa", "pf", "tail"]
        for g in cfg.get('show', (0, 4, 7)):
            l = lists[g]; i = 0
            while i < len(l):
                j = i
                key = lambda d: (d[0] & 15, (d[0] >> 4) & 255 if (d[0] & 15) not in (T_BB, T_BQKV, T_PF, T_TAIL) else 0)
                while j < len(l) and key(l[j]) == key(l[i]): j += 1
                x = (st[g, i:j, :3] - t0) / 100.0
                print(f"  g{g} {names[l[i][0]&15]:5s} p1={(l[i][0]>>4)&255:2d} n={j-i:2d} deq {x[:,0].min():6.1f}-{x[:,0].max():6.1f} start {x[:,1].min():6.1f}-{x[:,1].max():6.1f} end {x[:,2].min():6.1f}-{x[:,2].max():6.1f} dur {(x[:,2]-x[:,1]).mean():5.1f} kcyc {st[g, i:j, 3].mean()/1000:6.1f} GHz {st[g, i:j, 3].mean()/1000/(x[:,2]-x[:,1]).mean():4.2f}")
                i = j
        if cfg.get("stamps"):
            T = down(WS_STAMP, np.uint32, (256, 4, 64, 64))[:, :, :, :8].astype(np.int64)
            s4 = (T[0, 0, :, 4] - t0) / 100.0
            print("  chain OM publish times:", [float(round(x, 1)) for x in s4[[0, 1, 2, 3, 4, 5, 8, 9, 16, 17, 24, 32, 40, 48, 56, 63]]])
            Sw = [g + 8*j for g in range(4) for j in range(8)]
            Vw = [g + 8*j for g in range(4) for j in range(8, 24)]
            if cfg.get("sst"):
                for nm_, W_ in (("S", Sw), ("V", Vw)):
                    for i in (6, 7):
                        x = (T[W_][:, :, 1, i] - t0) / 100.0
                        print("  startup", nm_, i, x.min(), np.median(x), x.max())
                        np.set_printoptions(linewidth=250, precision=0, suppress=True)
                        if cfg.get('sst') == 2: print(x[:, 0].reshape(4, -1))
            print("  S loop first entry", (T[Sw][:, :, 0, 0].min() - t0) / 100.0, (T[Sw][:, :, 0, 0].max() - t0) / 100.0)
            if len(cfg.get("stamp_set", range(8))) > 3:
                for st_ in (21, 35, 58):
                    base = T[Vw][:, :, st_-1, 5].min()
                    tS = (T[Sw][:, :, st_, :8] - base) * 10; tV = (T[Vw][:, :, st_, :8] - base) * 10; tVp = (T[Vw][:, :, st_-1, 5] - base) * 10
                    print("  step", st_, "V pub(prev) min/med/max", tVp.min(), np.median(tVp), tVp.max())
                    for i in cfg["stamp_set"]: print("   S stamp", i, tS[:, :, i].min(), np.median(tS[:, :, i]), tS[:, :, i].max(), "   V stamp", i, tV[:, :, i].min(), np.median(tV[:, :, i]), tV[:, :, i].max())


if __name__ == "__main__":
    cfg = eval(sys.argv[2]) if len(sys.argv) > 2 else {}
    open(sys.argv[1] if len(sys.argv) > 1 else "cdna_kernels/" + PFX + ".s", "w").write(gen(cfg))
```

```python
from asmgen import *
import chain
from tail import WS_OXF
from chain import (WS_KX, WS_QX, WS_VX, WS_OX, WS_MEMT, WS_VM, WS_OM, WS_PART, WS_STAMP, WS_SIZE, NSEG, NT, NCHAIN,
                   S_WS, S_DBG, S_W0, S_W1, S_W2, S_WAVE, S_TEAM, S_J, S_MODE, S_STEP, S_C,
                   S_T0, S_T1, S_T2, S_T3, S_T4, S_T5, S_OFF_A, S_OFF_B, S_OFF_C, S_OFF_D, S_OFF_E, S_OFF_F,
                   S_BUDGET, S_HEAD, S_TS, POLL_BUDGET, LOG2E, f32bits, srd, store_mode, check_regs, poll, budget_head,
                   stamp, stamp_flush, xlane_reduce, idx_reg, L_MEM, L_QK, L_QX, L_RED, L_W, LDS_BYTES, S_MK0, S_MKC, S_WOFF)

S_NEAR = 81
S_PCUR = 82
JIT = 4
WS = f"s[{S_WS}:{S_WS+3}]"
DBG = f"s[{S_DBG}:{S_DBG+3}]"
OOBV = 0x7f000000


WS_CNT = 0x4C00000
WS_KM = 0x4D00000


def arrive(a, vt):
    skip = a.uid("ar")
    a(f"""s_cmp_lg_u32 s{S_WAVE}, 0
s_cbranch_scc1 {skip}
v_mov_b32 v{vt+2}, 0
s_getreg_b32 s{S_T0}, hwreg(HW_REG_XCC_ID)
s_and_b32 s{S_T0}, s{S_T0}, 7
s_lshl_b32 s{S_T1}, s{S_TEAM}, 3
s_add_u32 s{S_T0}, s{S_T0}, s{S_T1}
s_lshl_b32 s{S_T0}, 1, s{S_T0}
v_mov_b32 v{vt}, s{S_T0}
v_mov_b32 v{vt+1}, 1
s_mov_b64 exec, 1
buffer_atomic_or v{vt}, v{vt+2}, {DBG}, 0 offen offset:4 sc1
s_waitcnt vmcnt(0)
buffer_atomic_add v{vt+1}, v{vt+2}, {DBG}, 0 offen sc1
s_mov_b64 exec, -1
{skip}:""")


def wait_all_arrived(a, vt, t0=S_T0):
    lp, ok = a.uid("sb"), a.uid("sb")
    a(f"v_mov_b32 v{vt+4}, 0")
    a.label(lp)
    budget_head(a)
    a(f"""buffer_load_dwordx4 {vr(vt,4)}, v{vt+4}, {DBG}, 0 offen sc1
s_waitcnt vmcnt(0)
v_readfirstlane_b32 s{t0}, v{vt}
s_nop 3
s_cmp_ge_u32 s{t0}, {NCHAIN}
s_cbranch_scc1 {ok}
s_sleep 8
s_branch {lp}
{ok}:""")


def startup_barrier(a, vt):
    wait_all_arrived(a, vt)
    a(f"""v_readfirstlane_b32 s{S_T1}, v{vt+1}
v_readfirstlane_b32 s{S_NEAR}, v{vt+3}
s_nop 3
s_lshl_b32 s{S_T2}, s{S_TEAM}, 3
s_lshr_b32 s{S_T1}, s{S_T1}, s{S_T2}
s_and_b32 s{S_T1}, s{S_T1}, 0xff
s_bcnt1_i32_b32 s{S_T1}, s{S_T1}
s_cmp_eq_u32 s{S_T1}, 1
s_cselect_b32 s{S_MODE}, 1, 0""")


def sstamp(a, idx, cfg):
    if cfg.get("sst"):
        a(f"s_memrealtime s[{S_TS}:{S_TS+1}]\ns_waitcnt lgkmcnt(0)\ns_mov_b32 s{60+idx}, s{S_TS}")


def probe(a, name, cfg):
    if cfg.get("at") == name: stamp(a, 7, cfg)


def store_mode2(a, instr):
    l1, l2 = a.uid("sm"), a.uid("sm")
    a(f"""s_cbranch_scc0 {l1}
{instr}
{l2}:""")
    a.defer(lambda: a(f"""{l1}:
{instr} sc1
s_branch {l2}"""))


class SPoll:
    def __init__(self, a, loads, regs, vt, cap=1, sleep=0, pre_sleep=0, respin=0):
        self.respin = respin
        self.a, self.loads, self.regs, self.vt, self.cap, self.sleep, self.pre_sleep = a, loads, regs, vt, cap, sleep, pre_sleep
    def prefill(self):
        for b in self.regs:
            for r in range(4): self.a(f"v_mov_b32 v{b+r}, -1")
    def _body(self, f, lp):
        a = self.a
        ok = a.uid("so")
        a.label(lp)
        a.fill(1)
        for x in self.loads[f:]:
            a(x); a.fill(1)
        budget_head(a)
        a(f"s_waitcnt vmcnt({min(63, self.cap * (len(self.loads) - f))})")
        for k in range(self.sleep):
            self.pre(f)
            a.fill(5)
            a(f"s_cbranch_vccz {ok}")
        self.pre(f)
        a.fill(5)
        a(f"s_cbranch_vccnz {lp}")
        a.label(ok)
    def first(self, prefill=True, arm=0, arm_fill=8, arm_cap=3):
        a = self.a
        if prefill: self.prefill()
        if self.pre_sleep: a.fill(self.pre_sleep)
        if arm:
            lp = a.uid("sa")
            if arm < 64: a(f"s_mov_b64 exec, {(1 << arm) - 1:#x}")
            a.label(lp)
            a.fill(1)
            a(self.loads[0])
            budget_head(a)
            a.fill(arm_fill)
            a(f"s_waitcnt vmcnt({arm_cap})")
            self.pre(0)
            a.fill(5)
            a(f"s_cbranch_vccnz {lp}")
            if arm < 64:
                a("s_mov_b64 exec, -1")
            else:
                for x in self.loads[1:]: a(x)
                self.fresh = True
                return
        self._body(0, a.uid("sp"))
    def pre(self, f):
        b, t = self.regs[f], self.vt
        if isinstance(b, list):
            a = self.a
            a(f"v_max3_u32 v{t}, v{b[0]}, v{b[1]}, v{b[2]}")
            rest = b[3:]
            while rest:
                if len(rest) >= 2: a(f"v_max3_u32 v{t}, v{t}, v{rest[0]}, v{rest[1]}"); rest = rest[2:]
                else: a(f"v_max_u32 v{t}, v{t}, v{rest[0]}"); rest = rest[1:]
            a(f"v_cmp_eq_u32 vcc, {chain.SENTINEL[0]}, v{t}")
            return
        self.a(f"v_max3_u32 v{t}, v{b}, v{b+1}, v{b+2}\nv_max_u32 v{t}, v{t}, v{b+3}\nv_cmp_eq_u32 vcc, {chain.SENTINEL[0]}, v{t}")
    def pre3(self, f):
        b, t = self.regs[f], self.vt
        return [f"v_max3_u32 v{t}, v{b}, v{b+1}, v{b+2}", f"v_max_u32 v{t}, v{t}, v{b+3}", f"v_cmp_eq_u32 vcc, {chain.SENTINEL[0]}, v{t}"]
    def br(self, f):
        a = self.a
        lp, back = a.uid("sp"), a.uid("sb")
        a(f"s_cbranch_vccnz {lp}")
        a.label(back)
        def ool():
            a.label(lp)
            for k in range(self.respin):
                self.pre(f); a.fill(5); a(f"s_cbranch_vccz {back}")
            self._body(f, a.uid("sp")); a(f"s_branch {back}")
        a.defer(ool)


def ring_poll(a, loads, regs, vt, consume, join, space=4, on_first=None):
    R = [a.uid("rp") for _ in range(4)]
    C = [a.uid("rc") for _ in range(4)]
    def pre3(g):
        b = regs[g]
        return [f"v_max3_u32 v{vt}, v{b}, v{b+1}, v{b+2}", f"v_max_u32 v{vt}, v{vt}, v{b+3}", f"v_cmp_eq_u32 vcc, {chain.SENTINEL[0]}, v{vt}"]
    for f in range(3):
        a(loads[f]); a.fill(space)
    for f in range(4):
        a.label(R[f])
        a(loads[(f + 3) % 4])
        if f == 0: budget_head(a)
        a("s_waitcnt vmcnt(3)")
        for x in pre3(f): a(x)
        a.fill(5)
        a(f"s_cbranch_vccz {C[f]}" if f < 3 else f"s_cbranch_vccnz {R[0]}")
    def body(f):
        a.label(C[f])
        if on_first: on_first()
        for k in range(4):
            g = (f + k) % 4
            chk = []
            if k < 3:
                n = (g + 1) % 4
                rt, back = a.uid("rr"), a.uid("rb")
                chk = [f"s_waitcnt vmcnt({2 - k})"] + pre3(n) + [f"s_cbranch_vccnz {rt}\n{back}:"]
                def retry(n=n, rt=rt, back=back):
                    a.label(rt)
                    a(loads[n])
                    budget_head(a)
                    a("s_waitcnt vmcnt(0)")
                    for x in pre3(n): a(x)
                    a(f"s_cbranch_vccnz {rt}\ns_branch {back}")
                a.defer(retry)
            consume(g, k, chk)
    body(3)
    for f in range(3):
        def ool(f=f):
            body(f); a(f"s_branch {join}")
        a.defer(ool)
    a.label(join)


class Lds:
    def __init__(self, a):
        self.a = a; self.issued = []; self.done = -1
    def op(self, tag, ins):
        self.a(ins); self.issued.append(tag)
    def wait(self, *tags):
        idx = max((i for i, t in enumerate(self.issued) if t in tags), default=-1)
        if idx > self.done:
            self.a(f"s_waitcnt lgkmcnt({min(15, len(self.issued) - 1 - idx)})")
            self.done = idx
    def wait_all(self):
        self.a("s_waitcnt lgkmcnt(0)"); self.done = len(self.issued) - 1


def s_cu(a, cfg, hooks=None):
    hooks = hooks or {}
    vT, vL16, vGW, vA1, vA2, vA3, vBL, vQKW, vQKR, vIDX, vOXO, vVMO = range(12)
    KX, VX = 12, 44
    P = 52
    ACC, G, BR, AR = P, P + 16, P + 32, P + 56
    NB, NA = 3, 5
    QF, OXR, T12, OMR, KMF, T0 = BR, BR + 16, ACC, ACC + 8, AR, AR + 16
    VM, PX, PM, MI = G, G + 4, G + 8, G + 10
    vLANE, vD, vWT = 124, 125, 126
    cfg = dict(cfg); cfg["stamp_reg"] = MI + 4; cfg["lane4_reg"] = MI + 5

    stream = [4, 8, 12, 5, 9, 13, 6, 10, 14, 7, 11, 15]
    order = [(0, t) for t in range(4)] + [(1, t) for t in range(4)]
    order += [(s, t) for s in (2, 3) for t in (0, 1)]
    for s in stream[:8]: order += [(s, t) for t in range(4)]
    order += [(s, t) for s in stream[8:] for t in (0, 1)]
    q_end = len(order) - 1
    order += [(s, t) for s in (2, 3) for t in (2, 3)]
    order += [(s, t) for s in stream[8:] for t in (2, 3)]
    assert len(order) == 64 and len(set(order)) == 64
    lpos = [round(1 + i * 3.2) for i in range(16)]
    assert lpos[-1] <= q_end
    lds_tiles = [order[p] for p in lpos]
    regmap = {}
    n = 0
    for st in order:
        if st in lds_tiles: continue
        regmap[st] = ("a", n * 8) if n < 32 else ("v", 128 + (n - 32) * 8)
        n += 1

    a(f"""s_lshl_b32 s{S_HEAD}, s{S_TEAM}, 3
s_add_u32 s{S_HEAD}, s{S_HEAD}, s{S_J}""")
    srd(a, S_W0, 16, 1024 * 8192)
    srd(a, S_W1, 24, 1024 * 8192)
    arrive(a, 20)
    a(f"v_and_b32 v{vLANE}, 63, v0")
    a(f"v_lshlrev_b32 v{vL16}, 4, v{vLANE}")
    a(f"""v_lshrrev_b32 v{vT}, 3, v{vLANE}
v_lshlrev_b32 v{vD}, 13, v{vT}
v_and_b32 v{vT}, 7, v{vLANE}
v_lshl_add_u32 v{vD}, v{vT}, 4, v{vD}
s_lshl_b32 s{S_T0}, s{S_HEAD}, 8
s_lshr_b32 s{S_T1}, s{S_WAVE}, 1
s_lshl_b32 s{S_T5}, s{S_T1}, 22
s_lshl_b32 s{S_T2}, s{S_T1}, 16
s_add_u32 s{S_T2}, s{S_T2}, {L_W:#x}
s_lshl_b32 s{S_T1}, s{S_T1}, 7
s_add_u32 s{S_T0}, s{S_T0}, s{S_T1}
v_add_u32 v{vD}, s{S_T0}, v{vD}
s_and_b32 s{S_T1}, s{S_WAVE}, 1
s_cmp_eq_u32 s{S_T1}, 1
s_cselect_b32 s{S_W2}, s{S_W1}, s{S_W0}
s_cselect_b32 s{S_W2+1}, s{S_W1+1}, s{S_W0+1}
s_mov_b32 s{S_W2+2}, {1024*8192:#x}
s_mov_b32 s{S_W2+3}, 0x20000
s_lshl_b32 s{S_T0}, s{S_T1}, 14
s_add_u32 s{S_OFF_E}, s{S_T2}, s{S_T0}
v_add_u32 v{vBL}, s{S_OFF_E}, v{vL16}""")
    a(f"""v_bfe_u32 v{vT}, v{vLANE}, 5, 1
v_lshlrev_b32 v{vWT}, 11, v{vT}
v_bfe_u32 v{vT}, v{vLANE}, 3, 1
v_lshl_add_u32 v{vWT}, v{vT}, 10, v{vWT}
v_bfe_u32 v{vT}, v{vLANE}, 4, 1
v_lshl_add_u32 v{vWT}, v{vT}, 9, v{vWT}
v_bfe_u32 v{vT}, v{vLANE}, 2, 1
v_lshl_add_u32 v{vWT}, v{vT}, 7, v{vWT}
v_and_b32 v{vT}, 3, v{vLANE}
v_lshl_add_u32 v{vWT}, v{vT}, 3, v{vWT}
s_mul_i32 s{S_T0}, s{S_T1}, {8192 + 64}
s_add_u32 s{S_T0}, s{S_T0}, s{S_T2}
v_add_u32 v{vWT}, s{S_T0}, v{vWT}
v_xor_b32 v{vWT+1}, 0x2000, v{vWT}""")
    cnt = {s: sum(1 for x in lds_tiles if x[0] == s) for s in range(16)}
    js = [j for j in range(16) if not j & 4]
    key = lambda j: cnt[j] + cnt[j ^ 4]
    jorder = sorted([j for j in js if j % 4 < 2], key=key) + sorted([j for j in js if j % 4 >= 2], key=key)
    hold = list(range(12, 124 - 7, 8))
    held = []
    def issue_stage(n):
        j = jorder[n]
        a(f"s_xor_b32 s{S_T3}, s{S_T5}, {j << 19:#x}")
        for b2 in range(2):
            for i in range(8):
                a(f"s_add_u32 m0, s{S_OFF_E}, {(n % 2) * 32768 + b2 * 8192 + i * 1024}")
                a(f"s_add_u32 s{S_T4}, s{S_T3}, {(b2 * 256 + i * 8) * 8192:#x}")
                a(f"buffer_load_dwordx4 v{vD}, s[{S_W2}:{S_W2+3}], s{S_T4} offen lds")
    issue_stage(0); issue_stage(1)
    lds_addr = {}
    for n in range(8):
        j = jorder[n]
        a(f"s_waitcnt vmcnt({16 if n < 7 else 0})\ns_barrier")
        for b2 in range(2):
            s = j ^ (4 * b2)
            for t in range(4):
                if (s, t) in regmap:
                    k, b = regmap[(s, t)]
                else:
                    k, b = "v", hold.pop(0); held.append(((s, t), b))
                for v in range(4):
                    off = (n % 2) * 32768 + (t // 2) * 16384 + (32 * (v // 2) + 2 * (v % 2)) * 128 + (t % 2) * 32
                    a(f"ds_read_b64_tr_b16 {vr(b+2*v,2,k)}, v{vWT + b2} offset:{off}")
                a("s_waitcnt lgkmcnt(8)")
        a("s_waitcnt lgkmcnt(0)\ns_barrier")
        if n + 2 < 8:
            issue_stage(n + 2)
        else:
            for i in range(8):
                st, b = held.pop(0)
                off = (n % 2) * 32768 + i * 2048
                lds_addr[st] = off
                a(f"ds_write_b128 v{vBL}, {vr(b,4)} offset:{off}")
                a(f"ds_write_b128 v{vBL}, {vr(b+4,4)} offset:{off+1024}")
                hold.append(b)
            a("s_waitcnt lgkmcnt(0)")
    assert not held
    sstamp(a, 6, cfg)

    a(f"""s_lshl_b32 s{S_T0}, s{S_WAVE}, 12
v_add_u32 v{vGW}, s{S_T0}, v{vL16}""")
    for q in range(1, 4):
        a(f"v_xor_b32 v{vA1+q-1}, {q*4096:#x}, v{vGW}")
    idx_reg(a, vIDX, vLANE, vT)
    a(f"""v_lshrrev_b32 v{vT}, 5, v{vLANE}
v_lshlrev_b32 v{vQKW}, 8, v{vT}
v_and_b32 v{vT}, 15, v{vLANE}
v_lshl_add_u32 v{vQKW}, v{vT}, 4, v{vQKW}
v_bfe_u32 v{vT}, v{vLANE}, 4, 1
v_lshl_add_u32 v{vQKW}, v{vT}, 3, v{vQKW}
s_lshl_b32 s{S_T0}, s{S_WAVE}, 9
v_add_u32 v{vQKW}, s{S_T0}, v{vQKW}
v_lshrrev_b32 v{vT}, 2, v{vLANE}
v_lshlrev_b32 v{vQKR}, 4, v{vT}
v_and_b32 v{vT}, 1, v{vLANE}
v_lshl_add_u32 v{vQKR}, v{vT}, 3, v{vQKR}
s_lshr_b32 s{S_T0}, s{S_WAVE}, 1
s_lshl_b32 s{S_T0}, s{S_T0}, 10
s_and_b32 s{S_T1}, s{S_WAVE}, 1
s_lshl_b32 s{S_T1}, s{S_T1}, 7
s_add_u32 s{S_T0}, s{S_T0}, s{S_T1}
s_add_u32 s{S_WOFF}, s{S_T0}, {WS_OM:#x}
s_lshl_b32 s{S_T0}, s{S_WAVE}, 9
v_add_u32 v{vOXO}, s{S_T0}, v{vQKR}
s_lshl_b32 s{S_T0}, s{S_WAVE}, 9
v_add_u32 v{vVMO}, s{S_T0}, v{vL16}
v_mov_b32 v{vT}, {OOBV:#x}
v_cmp_gt_u32 vcc, 32, v{vLANE}
v_cndmask_b32 v{vVMO}, v{vT}, v{vVMO}, vcc""")
    cbits = f32bits(128 ** -0.5 * LOG2E)
    a(f"s_mov_b32 s{S_C}, {cbits:#x}\ns_mov_b32 s{S_C+1}, {cbits:#x}")
    a(f"""s_mov_b32 s{S_STEP}, 0
s_lshl_b32 s{S_OFF_A}, s{S_TEAM}, 20
s_add_u32 s{S_OFF_A}, s{S_OFF_A}, {WS_MEMT:#x}
s_lshl_b32 s{S_OFF_B}, s{S_HEAD}, 13
s_lshl_b32 s{S_OFF_C}, s{S_HEAD}, 11
s_lshl_b32 s{S_OFF_D}, s{S_WAVE}, 10
s_add_u32 s{S_OFF_D}, s{S_OFF_D}, {WS_KM:#x}""")

    def prefetch_x():
        a(f"""s_lshl_b32 s{S_T2}, s{S_WAVE}, 11
s_add_u32 s{S_T3}, s{S_OFF_B}, s{S_T2}
s_add_u32 s{S_T5}, s{S_T3}, {WS_VX:#x}
s_add_u32 s{S_T3}, s{S_T3}, {WS_KX:#x}
s_add_u32 m0, s{S_T2}, {L_QX:#x}""")
        for f in range(2):
            a(f"buffer_load_dwordx4 v{vL16}, {WS}, s{S_T3} offen offset:{f*1024} sc1 lds")
        for f in range(2):
            a(f"buffer_load_dwordx4 {vr(VX+4*f,4)}, v{vL16}, {WS}, s{S_T5} offen offset:{f*1024} sc1")

    def chores():
        for i in range(16): a(f"v_mov_b32 v{G+i}, -1")
        a(f"""v_lshlrev_b32 v{vT}, 3, v{vL16}
s_min_u32 s{S_T1}, s{S_WAVE}, 2
s_lshl_b32 s{S_T1}, s{S_T1}, 24
s_add_u32 s{S_T1}, s{S_T1}, s{S_OFF_B}
s_add_u32 s{S_T1}, s{S_T1}, {3 << 18:#x}
s_cmp_ge_u32 s{S_STEP}, {NSEG - 3}
s_cselect_b32 s{S_T1}, {OOBV:#x}, s{S_T1}
buffer_load_dword v{AR}, v{vT}, {WS}, s{S_T1} offen sc1
s_xor_b32 s{S_T0}, s{S_OFF_F}, {JIT << 18:#x}
buffer_store_dwordx4 {vr(G,4)}, v{vL16}, {WS}, s{S_T0} offen sc1
s_xor_b32 s{S_T2}, s{S_OFF_C}, {JIT << 16:#x}
s_lshl_b32 s{S_T0}, s{S_T2}, 1
s_add_u32 s{S_T0}, s{S_T0}, s{S_OFF_D}
s_lshl_b32 s{S_T3}, s{S_WAVE}, 9
s_add_u32 s{S_T2}, s{S_T2}, s{S_T3}
s_add_u32 s{S_T1}, s{S_T2}, {WS_VM:#x}
s_add_u32 s{S_T2}, s{S_T2}, {WS_OM:#x}
s_xor_b32 s{S_T3}, s{S_OFF_A}, {JIT << 14:#x}
s_add_u32 s{S_T3}, s{S_T3}, s{S_OFF_E}
s_cmp_eq_u32 s{S_MODE}, 1""")
        l1, l2 = a.uid("ji"), a.uid("ji")
        def jit(fl):
            return f"""buffer_store_dwordx4 {vr(G,4)}, v{vL16}, {WS}, s{S_T0} offen {fl}
s_mov_b32 exec_hi, 0
buffer_store_dwordx4 {vr(G,4)}, v{vL16}, {WS}, s{S_T1} offen {fl}
buffer_store_dwordx4 {vr(G,4)}, v{vL16}, {WS}, s{S_T2} offen {fl}
buffer_store_dwordx4 {vr(G,4)}, v{vL16}, {WS}, s{S_T3} offen {fl}"""
        a(f"s_cbranch_scc0 {l1}\n{jit('')}\n{l2}:\ns_mov_b64 exec, -1")
        a.defer(lambda: a(f"{l1}:\n{jit('sc1')}\ns_branch {l2}"))

    def bload_instrs(i):
        b = BR + 8 * (i % NB)
        off = lds_addr[lds_tiles[i]]
        return [f"ds_read_b128 {vr(b,4)}, v{vBL} offset:{off}", f"ds_read_b128 {vr(b+4,4)}, v{vBL} offset:{off+1024}"]

    def pkfma(r, nm):
        return f"v_pk_fma_f32 {vr(r,2)}, {vr(r,2)}, s[{S_C}:{S_C+1}], {vr(nm,2)} op_sel_hi:[1,1,0] neg_lo:[0,0,1] neg_hi:[0,0,1]"

    def pack_instrs(mat):
        A0, A1 = ACC + 8 * mat, ACC + 8 * mat + 4
        o = [f"v_permlane32_swap_b32 v{A0+r}, v{A1+r}" for r in range(4)]
        o += [f"v_add_f32 v{A0+r}, v{A0+r}, v{A1+r}" for r in range(4)]
        o += [f"v_cvt_pk_bf16_f32 v{A1}, v{A0}, v{A0+1}", f"v_cvt_pk_bf16_f32 v{A1+1}, v{A0+2}, v{A0+3}"]
        return o, f"ds_write_b64 v{vQKW}, {vr(A1,2)} offset:{L_QK + mat*2048}"

    def tile_regs(t):
        return T0 if t == 0 else T12 + 4 * (t - 1)

    startup_barrier(a, P)
    a(f"""s_bcnt1_i32_b32 s{S_T0}, s{S_NEAR}
s_cmp_ge_u32 s{S_T0}, 4
s_cselect_b32 s{S_OFF_F}, 0x2000, 0
s_and_b32 s{S_T0}, s{S_J}, 1
s_lshl_b32 s{S_T0}, s{S_T0}, 12
s_add_u32 s{S_OFF_F}, s{S_OFF_F}, s{S_T0}
s_lshr_b32 s{S_T0}, s{S_J}, 1
s_lshl_b32 s{S_T0}, s{S_T0}, 14
s_add_u32 s{S_OFF_F}, s{S_OFF_F}, s{S_T0}
s_lshl_b32 s{S_T0}, s{S_TEAM}, 16
s_add_u32 s{S_OFF_F}, s{S_OFF_F}, s{S_T0}
s_lshl_b32 s{S_T0}, s{S_WAVE}, 10
s_add_u32 s{S_OFF_F}, s{S_OFF_F}, s{S_T0}
s_add_u32 s{S_OFF_F}, s{S_OFF_F}, {WS_PART:#x}
s_lshl_b32 s{S_OFF_E}, s{S_J}, 11
s_lshl_b32 s{S_T0}, s{S_WAVE}, 9
s_add_u32 s{S_OFF_E}, s{S_OFF_E}, s{S_T0}""")
    if "wait_x" in hooks:
        a(f"s_mov_b32 s{S_T0}, 0")
        hooks["wait_x"](vT)
    prefetch_x()
    sstamp(a, 7, cfg)
    a.set_filler(vOXO)
    a.label("S_loop")
    stamp(a, 0, cfg)
    for i in range(NB):
        for x in bload_instrs(i): a(x)
    for i in range(16): a(f"v_mov_b32 v{ACC+i}, 0")
    a(f"s_add_u32 s{S_T5}, s{S_OFF_C}, {WS_VM:#x}")
    a(f"s_add_u32 s{S_T4}, s{S_OFF_C}, s{S_WOFF}")
    a("s_waitcnt vmcnt(2)\ns_barrier")
    chores()
    if cfg.get("s_delay"): a.fill(cfg["s_delay"])
    for f in range(8):
        a(f"ds_read_b128 {vr(KX+4*f,4)}, v{vL16} offset:{L_QX + f*1024}")
    a("s_waitcnt lgkmcnt(0)")

    L = Lds(a)
    aslot = {s: G + 4 * s for s in range(4)}
    pending = []
    free_slots = list(range(NA))
    first_use, last_use = {}, {}
    for i, (s, t) in enumerate(order):
        last_use[s] = i; first_use.setdefault(s, i)
    st = {"nexta": 4, "nextb": NB, "li": 0}
    def aload():
        s = stream[st["nexta"] - 4]; st["nexta"] += 1
        aslot[s] = AR + 4 * free_slots.pop(0)
        pending.append((("A", s), f"ds_read_b128 {vr(aslot[s],4)}, v{vA1 + s // 4 - 1} offset:{L_MEM + (s % 4) * 1024}"))
    def deadline(tag):
        return first_use[tag[1]] if tag[0] == "A" else lpos[tag[1]]
    def flush(n):
        pending.sort(key=lambda p: deadline(p[0]))
        for _ in range(min(n, len(pending))):
            tag, ins = pending.pop(0)
            L.op(tag, ins)
    def mfma(i):
        s, t = order[i]
        needs = [("A", s)]
        isl = (s, t) in lds_addr
        if isl: needs.append(("B", st["li"]))
        while any(tg in needs for tg, _ in pending): flush(1)
        L.wait(*needs)
        B = vr(BR + 8 * (st["li"] % NB), 8) if isl else vr(regmap[(s, t)][1], 8, regmap[(s, t)][0])
        if i >= cfg.get("skip_mfma", 99) and i < 44: pass
        else: a(f"v_smfmac_f32_16x16x64_bf16 {vr(ACC+4*t,4)}, {vr(aslot[s],4)}, {B}, v{vIDX}")
        if isl:
            st["li"] += 1
            if st["nextb"] < 16:
                for x in bload_instrs(st["nextb"]): pending.append((("B", st["nextb"]), x))
                st["nextb"] += 1
        if last_use[s] == i and s >= 4:
            free_slots.append((aslot[s] - AR) // 4)
            if st["nexta"] < 16: aload()

    loads = [f"buffer_load_dwordx4 {vr(G+4*i,4)}, v{vGW}, {WS}, s{S_OFF_A} offen offset:{1024*i} sc1" for i in range(4)]
    o = cfg.get("s_mem", {})
    sp = SPoll(a, loads, [G + 4 * i for i in range(4)], vT, cap=o.get("cap", 3), sleep=o.get("sleep", 3), respin=o.get("respin", 4))
    def gw(f):
        L.op(("GW", f), f"ds_write_b128 v{vGW}, {vr(G+4*f,4)} offset:{L_MEM + 1024*f}")
    if cfg.get("s_sleep"): a(f"s_sleep {cfg['s_sleep']}")
    sp.first(prefill=False, arm=o.get("arm", 64), arm_fill=o.get("afill", 6), arm_cap=o.get("acap", 4))
    if cfg.get("presync"): a("s_waitcnt vmcnt(0)\ns_barrier")
    stamp(a, 1, cfg)
    side = {}
    nflush = {}
    def at(i, fn): side.setdefault(i, []).append(fn)
    def ati(i, ins): at(i, lambda: a(ins))
    at(0, lambda: gw(0))
    for f, p in ((1, 0), (2, 4), (3, 7)):
        for k, ins in enumerate(sp.pre3(f)): ati(p + k if f < 3 else p + min(k, 1), ins)
    at(3, lambda: sp.br(1))
    side[4] = [lambda: gw(1)] + side[4]
    side[7] = [lambda: sp.br(2)] + side[7]
    at(9, lambda: sp.br(3))
    def bar1():
        L.wait(("GW", 1)); a("s_barrier")
        stamp(a, 6, cfg)
        for _ in range(NA): aload()
        flush(2)
    at(cfg.get("bar1", 8), bar1)
    for i in (0, 1, 4, 5, 12, 13, 15, 16): nflush[i] = 0
    at(12, lambda: gw(2))
    at(15, lambda: gw(3))
    def bar2():
        L.wait(("GW", 3)); a("s_barrier")
    bar2_at = 19
    qv, qw = pack_instrs(0)
    p0 = q_end + 2
    for k, ins in enumerate(qv): ati(p0 + (k // 2 if k < 4 else 2 + (k - 4) // 2), ins)
    at(p0 + 4, lambda: L.op("QW", qw))
    qrd = [(("QF", ks), f"ds_read_b64_tr_b16 {vr(QF+4*ks+2*u,2)}, v{vQKR} offset:{L_QK + (32*ks+16*u)*16}") for ks in range(4) for u in range(2)]
    def q_barrier():
        L.wait("QW"); a("s_waitcnt vmcnt(0)\ns_barrier")
        for x in qrd[:3]: L.op(*x)
    at(61, q_barrier)
    at(62, lambda: [L.op(*x) for x in qrd[3:6]])
    at(63, lambda: [L.op(*x) for x in qrd[6:]])
    for i in range(0, 64):
        mfma(i)
        if i == bar2_at: bar2()
        flush(nflush.get(i, 1))
        for fn in side.get(i, []): fn()
        probe(a, f"m{i}", cfg)
    stamp(a, 2, cfg)
    kv, kw = pack_instrs(1)
    def sc(ks, t):
        L.wait(("KM", ks) if t == 0 else ("QF", ks))
        C = "0" if ks == 0 else vr(tile_regs(t), 4)
        A = KMF + 4 * ks if t == 0 else KX + 16 * (t - 1) + 4 * ks
        a(f"v_mfma_f32_16x16x32_bf16 {vr(tile_regs(t),4)}, {vr(A,4)}, {vr(QF+4*ks,4)}, {C}")
    vml = f"buffer_load_dwordx4 {vr(VM,4)}, v{vVMO}, {WS}, s{S_T5} offen sc1"
    mx, m2, nmx, nm, al, rr = MI, MI + 1, MI + 2, MI + 3, MI + 4, MI + 5
    X = T12
    fma = lambda r, n: f"v_fma_f32 v{r}, v{r}, s{S_C}, -v{n}"
    a(vml)
    sc(0, 1); sc(0, 2)
    a(kv[0]); sc(1, 1); a(kv[1]); a(kv[2]); sc(1, 2); a(kv[3])
    for ins in kv[4:]: a(ins)
    L.op("KW", kw)
    probe(a, "s_kw", cfg)
    sc(2, 1); sc(2, 2); sc(3, 1); sc(3, 2)
    L.wait("KW"); a("s_barrier")
    probe(a, "s_b", cfg)
    krd = [(("KM", ks), f"ds_read_b64_tr_b16 {vr(KMF+4*ks+2*u,2)}, v{vQKR} offset:{L_QK + 2048 + (32*ks+16*u)*16}") for ks in range(4) for u in range(2)]
    ONE, LS = OMR, OMR + 4
    for k in range(4):
        L.op(*krd[2*k]); L.op(*krd[2*k+1])
        a(f"v_mov_b32 v{ONE+k}, 0x3f803f80")
    probe(a, "s_rd", cfg)
    a(f"""v_max3_f32 v{mx}, v{X}, v{X+1}, v{X+2}
v_max3_f32 v{m2}, v{X+4}, v{X+5}, v{X+6}
v_max3_f32 v{mx}, v{mx}, v{X+3}, v{X+7}
v_max_f32 v{al}, v{mx}, v{m2}
v_max_f32 v{m2}, v{mx}, v{m2}""")
    sc(0, 0)
    a(f"v_permlane32_swap_b32 v{al}, v{m2}")
    sc(1, 0)
    a(f"v_max_f32 v{mx}, v{al}, v{m2}\nv_max_f32 v{al}, v{al}, v{m2}")
    sc(2, 0)
    a(vml)
    a(f"v_permlane16_swap_b32 v{mx}, v{al}")
    sc(3, 0)
    a(f"v_max_f32 v{mx}, v{mx}, v{al}")
    a(f"v_mul_f32 v{nmx}, s{S_C}, v{mx}")
    for i in range(6): a(fma(X + i, nmx))
    seqa = [f"v_max3_f32 v{m2}, v{T0}, v{T0+1}, v{T0+2}", f"v_max3_f32 v{al}, v{m2}, v{T0+3}, v{mx}", f"v_max3_f32 v{m2}, v{m2}, v{T0+3}, v{mx}"]
    a(seqa[0]); a(fma(X + 6, nmx)); a(seqa[1]); a(seqa[2]); a(fma(X + 7, nmx))
    a(f"v_exp_f32 v{X}, v{X}")
    a(f"v_permlane16_swap_b32 v{m2}, v{al}")
    a(f"v_max_f32 v{m2}, v{m2}, v{al}")
    stamp(a, 3, cfg)
    a(f"v_mul_f32 v{nm}, s{S_C}, v{m2}")
    for r in range(4): a(fma(T0 + r, nm))
    a(f"v_sub_f32 v{al}, v{nmx}, v{nm}")
    for i in range(1, 8):
        a(f"v_exp_f32 v{X+i}, v{X+i}")
        if i >= 2 and i % 2 == 0: a(f"v_cvt_pk_bf16_f32 v{PX+i//2-1}, v{X+i-2}, v{X+i-1}")
    a(f"v_exp_f32 v{T0}, v{T0}")
    a(f"v_cvt_pk_bf16_f32 v{PX+3}, v{X+6}, v{X+7}")
    a(f"v_exp_f32 v{T0+1}, v{T0+1}")
    a(f"v_exp_f32 v{T0+2}, v{T0+2}")
    a(f"v_mfma_f32_16x16x32_bf16 {vr(LS,4)}, {vr(ONE,4)}, {vr(PX,4)}, 0")
    a(f"v_exp_f32 v{T0+3}, v{T0+3}")
    a(f"v_mfma_f32_16x16x32_bf16 {vr(OXR,4)}, {vr(VX,4)}, {vr(PX,4)}, 0")
    a(f"v_cvt_pk_bf16_f32 v{PM}, v{T0}, v{T0+1}")
    a(f"v_cvt_pk_bf16_f32 v{PM+1}, v{T0+2}, v{T0+3}")
    a(f"v_mfma_f32_16x16x32_bf16 {vr(OXR+4,4)}, {vr(VX+4,4)}, {vr(PX,4)}, 0")
    a(f"v_exp_f32 v{al}, v{al}")
    vp = SPoll(a, [vml], [VM], vT, cap=0)
    chk = vp.pre3(0)
    a(f"v_mfma_f32_16x16x16_bf16 {vr(T0,4)}, {vr(ONE,2)}, {vr(PM,2)}, 0")
    a("s_waitcnt vmcnt(1)")
    a(chk[0]); a(chk[1])
    probe(a, "s_pv", cfg)
    pv = a.uid("pv")
    a(chk[2])
    a.label(pv)
    a(f"v_mfma_f32_16x16x16_bf16 {vr(X,4)}, {vr(VM,2)}, {vr(PM,2)}, 0")
    a(f"v_mul_f32 v{mx}, v{LS}, v{al}")
    a(f"v_mfma_f32_16x16x16_bf16 {vr(X+4,4)}, {vr(VM+2,2)}, {vr(PM,2)}, 0")
    rt = a.uid("vr")
    if not cfg.get("novm"): a(f"s_cbranch_vccnz {rt}")
    def vm_retry():
        vp._body(0, rt); a(f"s_branch {pv}")
    a.defer(vm_retry)
    a(f"s_cmp_eq_u32 s{S_MODE}, 1")
    a(f"v_fma_f32 v{mx}, v{T0}, 0.5, v{mx}")
    a(f"v_rcp_f32 v{nmx}, v{mx}")
    a("s_mov_b32 exec_lo, 0x00ff00ff\ns_mov_b32 exec_hi, 0x00ff00ff")
    for i in range(0, 8, 2):
        a(f"v_pk_fma_f32 {vr(X+i,2)}, {vr(OXR+i,2)}, {vr(al,2)}, {vr(X+i,2)} op_sel_hi:[1,0,1]")
    for i in range(0, 8, 2):
        a(f"v_pk_mul_f32 {vr(X+i,2)}, {vr(X+i,2)}, {vr(nmx,2)} op_sel_hi:[1,0]")
        if i >= 2: a(f"v_cvt_pk_bf16_f32 v{PX+i//2-1}, v{X+i-2}, v{X+i-1}")
    a(f"v_cvt_pk_bf16_f32 v{PX+3}, v{X+6}, v{X+7}")
    store_mode2(a, f"buffer_store_dwordx4 {vr(PX,4)}, v{vL16}, {WS}, s{S_T4} offen")
    a("s_mov_b64 exec, -1")
    stamp(a, 4, cfg)
    for u in range(2):
        a(f"ds_read_b64_tr_b16 {vr(QF+2*u,2)}, v{vOXO} offset:{L_QK + 2048 + 256*u}")
    a(f"""s_lshl_b32 s{S_T0}, s{S_OFF_C}, 1
s_add_u32 s{S_T0}, s{S_T0}, s{S_OFF_D}
s_waitcnt lgkmcnt(0)
s_mov_b32 exec_lo, 0x00ff00ff
s_mov_b32 exec_hi, 0x00ff00ff""")
    store_mode(a, f"buffer_store_dwordx4 {vr(QF,4)}, v{vL16}, {WS}, s{S_T0} offen")
    a("s_mov_b64 exec, -1")
    stamp(a, 5, cfg)
    if cfg.get("stamps"):
        a(f"v_lshrrev_b32 v{MI+5}, 2, v{vL16}")
    stamp_flush(a, cfg)
    a(f"""s_add_u32 s{S_STEP}, s{S_STEP}, 1
s_cmp_eq_u32 s{S_STEP}, {NSEG}
s_cbranch_scc1 L_done
s_add_u32 s{S_OFF_A}, s{S_OFF_A}, 0x4000
s_bitset0_b32 s{S_OFF_A}, 17
s_add_u32 s{S_OFF_C}, s{S_OFF_C}, {32*2048:#x}
s_bitset0_b32 s{S_OFF_C}, 19
s_add_u32 s{S_OFF_F}, s{S_OFF_F}, 0x40000
s_bitset0_b32 s{S_OFF_F}, 21
s_add_u32 s{S_OFF_B}, s{S_OFF_B}, {32*8192:#x}""")
    if "wait_x" in hooks:
        a(f"s_mov_b32 s{S_T0}, s{S_STEP}")
        hooks["wait_x"](vT)
    prefetch_x()
    a("s_branch S_loop")
    a.flush_deferred()
    a.set_filler(None)


def v_cu(a, cfg, hooks=None):
    hooks = hooks or {}
    vLANE, vGOFF, vIDX, vL16, vT, vT2, vVMO, vOMO, vRW, vRR, vPO, vMO, vL4, vD, vI16 = range(0, 15)
    QF, KMF, KXF = 16, 32, 48
    XV, XVM, XT, XP, XPM, XO, XM = 172, 180, 184, 196, 200, 204, 220
    MK = 224
    vKMO, vVMI, vOXO, vRV = 236, 237, 238, 239
    XR_ = 240
    S_XB, S_PREV = 83, 84
    G = 80
    ACC = 96
    OF = 112
    RD = 128
    RP = 144
    MI = 152
    SENT = 160
    RRS = 164
    vTCH = 168
    cfg = dict(cfg); cfg["stamp_reg"] = MI + 5; cfg["lane4_reg"] = vL4
    a(f"""s_lshl_b32 s{S_HEAD}, s{S_TEAM}, 3
s_lshr_b32 s{S_T0}, s{S_J}, 1
s_add_u32 s{S_HEAD}, s{S_HEAD}, s{S_T0}""")
    srd(a, S_W0, 32, 1024 * 8192)
    srd(a, S_W1, 40, 4096 * 2048)
    srd(a, S_W2, 8, 8 * 2048)
    a(f"v_and_b32 v{vLANE}, 63, v0")
    a(f"v_lshlrev_b32 v{vL16}, 4, v{vLANE}")
    a(f"v_lshlrev_b32 v{vL4}, 2, v{vLANE}")
    for i in range(4): a(f"v_mov_b32 v{SENT+i}, -1")
    a(f"""s_lshl_b32 s{S_OFF_A}, s{S_TEAM}, 20
s_add_u32 s{S_OFF_A}, s{S_OFF_A}, {WS_MEMT:#x}
s_lshl_b32 s{S_T0}, s{S_J}, 10
s_add_u32 s{S_OFF_E}, s{S_OFF_A}, s{S_T0}
s_lshl_b32 s{S_OFF_C}, s{S_HEAD}, 11
s_and_b32 s{S_T1}, s{S_J}, 1
s_lshl_b32 s{S_T1}, s{S_T1}, 10
s_add_u32 s{S_OFF_B}, s{S_OFF_C}, s{S_T1}
s_and_b32 s{S_T0}, s{S_J}, 3
s_lshl_b32 s{S_OFF_D}, s{S_T0}, 11
s_lshr_b32 s{S_T0}, s{S_J}, 2
s_lshl_b32 s{S_T0}, s{S_T0}, 14
s_add_u32 s{S_OFF_D}, s{S_OFF_D}, s{S_T0}
s_add_u32 s{S_OFF_D}, s{S_OFF_D}, {WS_PART:#x}
s_lshl_b32 s{S_T0}, s{S_TEAM}, 16
s_add_u32 s{S_OFF_F}, s{S_OFF_D}, s{S_T0}""")

    for rep in range(2 if cfg.get('init8', 1) else 1):
        a(f"s_add_u32 s{S_T5}, s{S_WAVE}, {4*rep}")
        a(f"""s_lshl_b32 s{S_T0}, s{S_T5}, 14
s_add_u32 s{S_T0}, s{S_T0}, s{S_OFF_E}
buffer_store_dwordx4 {vr(SENT,4)}, v{vL16}, {WS}, s{S_T0} offen sc1
s_lshl_b32 s{S_T0}, s{S_T5}, 16
s_add_u32 s{S_T0}, s{S_T0}, s{S_OFF_B}
s_add_u32 s{S_T1}, s{S_T0}, {WS_VM:#x}
buffer_store_dwordx4 {vr(SENT,4)}, v{vL16}, {WS}, s{S_T1} offen sc1
s_add_u32 s{S_T1}, s{S_T0}, {WS_OM:#x}
buffer_store_dwordx4 {vr(SENT,4)}, v{vL16}, {WS}, s{S_T1} offen sc1
s_lshl_b32 s{S_T1}, s{S_T0}, 1
s_add_u32 s{S_T1}, s{S_T1}, {WS_KM:#x}
buffer_store_dwordx4 {vr(SENT,4)}, v{vL16}, {WS}, s{S_T1} offen sc1
buffer_store_dwordx4 {vr(SENT,4)}, v{vL16}, {WS}, s{S_T1} offen offset:1024 sc1
s_lshl_b32 s{S_T0}, s{S_T5}, 18
s_add_u32 s{S_T0}, s{S_T0}, s{S_OFF_F}
buffer_store_dwordx4 {vr(SENT,4)}, v{vL16}, {WS}, s{S_T0} offen sc1
buffer_store_dwordx4 {vr(SENT,4)}, v{vL16}, {WS}, s{S_T0} offen offset:1024 sc1
s_add_u32 s{S_T0}, s{S_T0}, 0x2000
buffer_store_dwordx4 {vr(SENT,4)}, v{vL16}, {WS}, s{S_T0} offen sc1
buffer_store_dwordx4 {vr(SENT,4)}, v{vL16}, {WS}, s{S_T0} offen offset:1024 sc1""")

    a(f"""v_mov_b32 v{G}, 0
v_mov_b32 v{G+1}, 0
v_mov_b32 v{G+2}, 0
v_mov_b32 v{G+3}, 0
s_lshl_b32 s{S_T0}, s{S_TEAM}, 4
s_add_u32 s{S_T0}, s{S_T0}, s{S_J}
s_lshl_b32 s{S_T0}, s{S_T0}, 9
s_lshl_b32 s{S_T1}, s{S_WAVE}, 7
s_add_u32 s{S_T0}, s{S_T0}, s{S_T1}
s_add_u32 s{S_T0}, s{S_T0}, {WS_CNT:#x}
s_mov_b64 exec, 0xff
buffer_store_dwordx4 {vr(G,4)}, v{vL16}, {WS}, s{S_T0} offen sc1
s_mov_b64 exec, -1""")
    if not cfg.get("noprobe"):
        skip = a.uid("pr")
        a(f"""s_lshl_b32 s{S_T0}, s{S_TEAM}, 4
s_add_u32 s{S_T0}, s{S_T0}, s{S_J}
s_cmp_ge_u32 s{S_T0}, 8
s_cbranch_scc1 {skip}
s_cmp_lg_u32 s{S_WAVE}, 3
s_cbranch_scc1 {skip}
s_add_u32 s{S_T1}, s{S_OFF_F}, {7 << 18:#x}
s_add_u32 s{S_T2}, s{S_T1}, 0x2000
buffer_store_dwordx4 {vr(SENT,4)}, v{vL16}, {WS}, s{S_T1} offen sc1
buffer_store_dwordx4 {vr(SENT,4)}, v{vL16}, {WS}, s{S_T2} offen sc1
v_mov_b32 v{vT2}, 0
s_mov_b32 s60, -1
s_mov_b32 s61, -1
s_waitcnt vmcnt(0)""")
        for smp in range(4):
            for c in range(2):
                a(f"""s_memtime s[62:63]
s_waitcnt lgkmcnt(0)
buffer_load_dword v{vT}, v{vT2}, {WS}, s{S_T1+c} offen offset:{smp*256} sc1
s_waitcnt vmcnt(0)
s_memtime s[64:65]
s_waitcnt lgkmcnt(0)
s_sub_u32 s64, s64, s62
s_min_u32 s{60+c}, s{60+c}, s64""")
        a(f"""s_cmp_lt_u32 s61, s60
s_cselect_b32 s{S_T1}, 1, 0
s_lshl_b32 s{S_T1}, s{S_T1}, s{S_J}
v_mov_b32 v{vT}, s{S_T1}
s_mov_b64 exec, 1
buffer_atomic_or v{vT}, v{vT2}, {DBG}, 0 offen offset:12 sc1
s_mov_b64 exec, -1
{skip}:""")

    a("s_waitcnt vmcnt(0)\ns_barrier")
    arrive(a, G + 4)

    def stage(srdreg, pitch_log2, sbase):
        a(f"""v_lshrrev_b32 v{vT}, 3, v{vLANE}
v_lshlrev_b32 v{vD}, {pitch_log2}, v{vT}
v_and_b32 v{vT}, 7, v{vLANE}
v_lshl_add_u32 v{vD}, v{vT}, 4, v{vD}
s_lshl_b32 s{S_T1}, s{S_WAVE}, {8 + pitch_log2}
s_add_u32 s{S_T1}, s{S_T1}, s{sbase}
s_lshl_b32 s{S_T2}, s{S_WAVE}, 15""")
        for i in range(32):
            a(f"s_add_u32 m0, s{S_T2}, {L_W + i*1024}")
            a(f"s_add_u32 s{S_T4}, s{S_T1}, {(i*8) << pitch_log2:#x}")
            a(f"buffer_load_dwordx4 v{vD}, s[{srdreg}:{srdreg+3}], s{S_T4} offen lds")

    a(f"""s_lshl_b32 s{S_T0}, s{S_HEAD}, 8
s_and_b32 s{S_T1}, s{S_J}, 1
s_lshl_b32 s{S_T1}, s{S_T1}, 7
s_add_u32 s{S_T0}, s{S_T0}, s{S_T1}""")
    stage(S_W0, 13, S_T0)
    if not cfg.get("nowo_pf"):
        a(f"""v_lshrrev_b32 v{vT}, 3, v{vLANE}
v_lshlrev_b32 v{vT2}, 11, v{vT}
v_and_b32 v{vT}, 7, v{vLANE}
v_lshl_add_u32 v{vT2}, v{vT}, 4, v{vT2}
s_lshl_b32 s{S_T0}, s{S_TEAM}, 21
s_lshl_b32 s{S_T1}, s{S_J}, 7
s_add_u32 s{S_T0}, s{S_T0}, s{S_T1}
s_lshl_b32 s{S_T1}, s{S_WAVE}, 19
s_add_u32 s{S_T0}, s{S_T0}, s{S_T1}""")
        for i in range(32):
            if i == 16: a("s_waitcnt vmcnt(40)")
            a(f"s_add_u32 s{S_T4}, s{S_T0}, {(i*8) << 11:#x}")
            a(f"buffer_load_dwordx4 {vr(G,4)}, v{vT2}, s[{S_W1}:{S_W1+3}], s{S_T4} offen")
    vWT = MI
    a(f"""v_bfe_u32 v{vT}, v{vLANE}, 5, 1
v_lshlrev_b32 v{vWT}, 11, v{vT}
v_bfe_u32 v{vT}, v{vLANE}, 3, 1
v_lshl_add_u32 v{vWT}, v{vT}, 10, v{vWT}
v_bfe_u32 v{vT}, v{vLANE}, 4, 1
v_lshl_add_u32 v{vWT}, v{vT}, 9, v{vWT}
v_bfe_u32 v{vT}, v{vLANE}, 2, 1
v_lshl_add_u32 v{vWT}, v{vT}, 7, v{vWT}
v_and_b32 v{vT}, 3, v{vLANE}
v_lshl_add_u32 v{vWT}, v{vT}, 3, v{vWT}
s_lshl_b32 s{S_T0}, s{S_WAVE}, 15
s_add_u32 s{S_T0}, s{S_T0}, {L_W:#x}
v_add_u32 v{vWT}, s{S_T0}, v{vWT}
s_waitcnt vmcnt({0 if cfg.get("nowo_pf") else 32})""")
    for f in range(4):
        for ct in range(4):
            for v in range(4):
                off = f * 8192 + (32 * (v // 2) + 2 * (v % 2)) * 128 + ct * 32
                a(f"ds_read_b64_tr_b16 {ar((f*4+ct)*8+2*v,2)}, v{vWT} offset:{off}")
            a("s_waitcnt lgkmcnt(8)")
    a("s_waitcnt lgkmcnt(0)")
    sstamp(a, 6, cfg)
    a(f"""s_lshl_b32 s{S_T0}, s{S_TEAM}, 21
s_lshl_b32 s{S_T1}, s{S_J}, 7
s_add_u32 s{S_T0}, s{S_T0}, s{S_T1}""")
    a("s_waitcnt vmcnt(24)")
    stage(S_W1, 11, S_T0)
    a(f"""v_bfe_u32 v{vT}, v{vLANE}, 3, 1
v_lshlrev_b32 v{vWT}, 12, v{vT}
v_bfe_u32 v{vT}, v{vLANE}, 4, 1
v_lshl_add_u32 v{vWT}, v{vT}, 11, v{vWT}
v_bfe_u32 v{vT}, v{vLANE}, 5, 1
v_lshl_add_u32 v{vWT}, v{vT}, 9, v{vWT}
v_bfe_u32 v{vT}, v{vLANE}, 2, 1
v_lshl_add_u32 v{vWT}, v{vT}, 7, v{vWT}
v_and_b32 v{vT}, 3, v{vLANE}
v_lshl_add_u32 v{vWT}, v{vT}, 3, v{vWT}
s_lshl_b32 s{S_T0}, s{S_WAVE}, 15
s_add_u32 s{S_T0}, s{S_T0}, {L_W:#x}
v_add_u32 v{vWT}, s{S_T0}, v{vWT}""")
    a(f"""s_lshl_b32 s{S_T0}, s{S_WAVE}, 12
v_add_u32 v{vGOFF}, s{S_T0}, v{vL16}""")
    idx_reg(a, vIDX, vLANE, vT)
    a(f"""v_and_b32 v{vT}, 31, v{vLANE}
v_lshlrev_b32 v{vVMO}, 4, v{vT}
v_lshrrev_b32 v{vT}, 5, v{vLANE}
v_lshl_add_u32 v{vVMO}, v{vT}, 2, v{vVMO}
s_lshr_b32 s{S_T0}, s{S_WAVE}, 1
s_lshl_b32 s{S_T0}, s{S_T0}, 9
s_and_b32 s{S_T1}, s{S_WAVE}, 1
s_lshl_b32 s{S_T1}, s{S_T1}, 3
s_add_u32 s{S_T0}, s{S_T0}, s{S_T1}
v_add_u32 v{vVMO}, s{S_T0}, v{vVMO}
s_lshl_b32 s{S_T0}, s{S_TEAM}, 14
v_add_u32 v{vOMO}, s{S_T0}, v{vGOFF}""")
    a(f"""s_lshl_b32 s{S_T0}, s{S_WAVE}, 11
v_add_u32 v{vRW}, s{S_T0}, v{vL4}""")
    a(f"""v_bfe_u32 v{vT}, v{vLANE}, 2, 2
v_lshlrev_b32 v{vRR}, 9, v{vT}
v_bfe_u32 v{vT}, v{vLANE}, 2, 1
v_lshl_add_u32 v{vRR}, v{vT}, 5, v{vRR}
v_bfe_u32 v{vT}, v{vLANE}, 3, 1
v_lshl_add_u32 v{vRR}, v{vT}, 7, v{vRR}
v_bfe_u32 v{vT}, v{vLANE}, 4, 1
v_lshl_add_u32 v{vRR}, v{vT}, 6, v{vRR}
v_lshrrev_b32 v{vT}, 5, v{vLANE}
v_lshl_add_u32 v{vRR}, v{vT}, 5, v{vRR}
v_and_b32 v{vT}, 3, v{vLANE}
v_lshl_add_u32 v{vRR}, v{vT}, 3, v{vRR}
s_lshr_b32 s{S_T0}, s{S_WAVE}, 1
s_lshl_b32 s{S_T0}, s{S_T0}, 11
s_and_b32 s{S_T1}, s{S_WAVE}, 1
s_lshl_b32 s{S_T1}, s{S_T1}, 7
s_add_u32 s{S_T0}, s{S_T0}, s{S_T1}
v_add_u32 v{vRR}, s{S_T0}, v{vRR}""")
    a(f"""v_and_b32 v{vT}, 31, v{vLANE}
v_lshlrev_b32 v{vRV}, 2, v{vT}
v_lshrrev_b32 v{vT}, 5, v{vLANE}
v_lshl_add_u32 v{vRV}, v{vT}, 10, v{vRV}
v_add_u32 v{vRV}, s{S_T0}, v{vRV}""")
    a(f"""v_and_b32 v{vKMO}, 0x370, v{vL16}
s_lshl_b32 s{S_T0}, s{S_WAVE}, 9
v_add_u32 v{vVMI}, s{S_T0}, v{vL16}
v_mov_b32 v{vT}, {OOBV:#x}
v_cmp_gt_u32 vcc, 32, v{vLANE}
v_cndmask_b32 v{vVMI}, v{vT}, v{vVMI}, vcc
v_mov_b32 v{vT2}, 0xff800000""")
    for r in range(4):
        a(f"v_cndmask_b32 v{MK+r}, v{vT2}, 0, vcc")
    a(f"""v_lshrrev_b32 v{vT}, 4, v{vLANE}
v_lshlrev_b32 v{vT}, 2, v{vT}
v_and_b32 v{vOXO}, 15, v{vLANE}
v_sub_u32 v{vT}, v{vOXO}, v{vT}
s_and_b32 s{S_T0}, s{S_J}, 1
s_lshl_b32 s{S_T0}, s{S_T0}, 4
v_add_u32 v{vT}, s{S_T0}, v{vT}""")
    for t in range(2):
        for r in range(4):
            a(f"v_cmp_le_i32 vcc, {16*t + r}, v{vT}")
            a(f"v_cndmask_b32 v{MK+4+4*t+r}, v{vT2}, 0, vcc")
    a(f"""v_lshlrev_b32 v{vOXO}, 6, v{vOXO}
v_lshrrev_b32 v{vT}, 4, v{vLANE}
v_lshl_add_u32 v{vOXO}, v{vT}, 4, v{vOXO}
s_lshl_b32 s{S_T0}, s{S_T0}, 6
s_lshl_b32 s{S_T1}, s{S_HEAD}, 15
s_add_u32 s{S_T0}, s{S_T0}, s{S_T1}
s_lshl_b32 s{S_T1}, s{S_WAVE}, 13
s_add_u32 s{S_T0}, s{S_T0}, s{S_T1}
v_add_u32 v{vOXO}, s{S_T0}, v{vOXO}""")
    cbits = f32bits(128 ** -0.5 * LOG2E)
    a(f"s_mov_b32 s{S_C}, {cbits:#x}\ns_mov_b32 s{S_C+1}, {cbits:#x}")
    a(f"""v_lshlrev_b32 v{vPO}, 3, v{vLANE}
s_lshl_b32 s{S_T0}, s{S_WAVE}, 9
v_add_u32 v{vPO}, s{S_T0}, v{vPO}
s_lshl_b32 s{S_T0}, s{S_WAVE}, 8
v_add_u32 v{vMO}, s{S_T0}, v{vL4}
v_add_u32 v{vI16}, s{S_T0}, v{vL16}""")
    M0R = RP
    a(f"""v_bfe_u32 v{vT}, v{vLANE}, 2, 3
v_lshlrev_b32 v{vT2}, 11, v{vT}
v_lshrrev_b32 v{vT}, 5, v{vLANE}
v_lshl_add_u32 v{vT2}, v{vT}, 4, v{vT2}
v_and_b32 v{vT}, 3, v{vLANE}
v_lshl_add_u32 v{vT2}, v{vT}, 2, v{vT2}
s_lshl_b32 s{S_T0}, s{S_J}, 7
s_lshl_b32 s{S_T1}, s{S_WAVE}, 5
s_add_u32 s{S_T0}, s{S_T0}, s{S_T1}
buffer_load_dword v{M0R}, v{vT2}, s[{S_W2}:{S_W2+3}], s{S_T0} offen
s_waitcnt vmcnt(0)""")
    for f in range(4):
        for ct in range(4):
            for v in range(4):
                off = f * 8192 + (8 * (v // 2) + 2 * (v % 2)) * 128 + ct * 32
                a(f"ds_read_b64_tr_b16 {ar(128+(f*4+ct)*8+2*v,2)}, v{vWT} offset:{off}")
            a("s_waitcnt lgkmcnt(8)")
    sstamp(a, 7, cfg)
    a("s_waitcnt lgkmcnt(0)")
    startup_barrier(a, MI + 2)
    XRING = L_W
    KD = QF
    def keep():
        a(f"v_mfma_f32_32x32x16_bf16 {vr(KD,16)}, {vr(SENT,4)}, {vr(SENT,4)}, {vr(KD,16)}")

    def x_dma(seg):
        a(f"""s_lshl_b32 s{S_T0}, s{seg}, 18
s_lshl_b32 s{S_T1}, s{S_HEAD}, 13
s_add_u32 s{S_T0}, s{S_T0}, s{S_T1}
s_cmp_ge_u32 s{seg}, {NSEG}
s_cselect_b32 s{S_T0}, {OOBV:#x}, s{S_T0}
s_and_b32 s{S_T1}, s{seg}, 3
s_lshl_b32 s{S_T1}, s{S_T1}, 14
s_lshl_b32 s{S_T2}, s{S_WAVE}, 10
s_add_u32 s{S_T1}, s{S_T1}, s{S_T2}
s_and_b32 s{S_T3}, s{S_J}, 1
s_lshl_b32 s{S_T3}, s{S_T3}, 12
s_add_u32 s{S_T3}, s{S_T3}, s{S_T2}
s_add_u32 s{S_T3}, s{S_T3}, s{S_T0}
s_add_u32 s{S_T4}, s{S_T3}, {WS_QX:#x}
s_add_u32 m0, s{S_T1}, {XRING:#x}
s_add_u32 s{S_T1}, s{S_T1}, s{S_T2}
buffer_load_dwordx4 v{vL16}, {WS}, s{S_T4} offen sc1 lds
s_add_u32 m0, s{S_T1}, {XRING + 4096:#x}
s_lshl_b32 s{S_T2}, s{S_T2}, 1
s_add_u32 s{S_T4}, s{S_T0}, s{S_T2}
s_add_u32 s{S_T4}, s{S_T4}, {WS_KX:#x}
buffer_load_dwordx4 v{vL16}, {WS}, s{S_T4} offen sc1 lds
buffer_load_dwordx4 v{vL16}, {WS}, s{S_T4} offen offset:1024 sc1 lds""")

    def x_loads(seg_expr):
        a(f"""s_add_u32 s{S_T0}, s{S_STEP}, {seg_expr}
s_lshl_b32 s{S_T0}, s{S_T0}, 18
s_lshl_b32 s{S_T1}, s{S_HEAD}, 13
s_add_u32 s{S_T0}, s{S_T0}, s{S_T1}
s_lshl_b32 s{S_T1}, s{S_WAVE}, 11
s_add_u32 s{S_T0}, s{S_T0}, s{S_T1}
s_add_u32 s{S_T0}, s{S_T0}, {WS_VX:#x}
s_lshl_b32 s85, s{S_PREV}, 1
s_add_u32 s85, s85, {WS_KM:#x}
s_add_u32 s86, s{S_PREV}, {WS_VM:#x}""")
        o = [f"buffer_load_dwordx4 {vr(XV+4*f,4)}, v{vL16}, {WS}, s{S_T0} offen offset:{f*1024} sc1" for f in range(2)]
        return o + km_loads()
    def km_loads():
        return [f"buffer_load_dwordx4 {vr(XVM,4)}, v{vVMI}, {WS}, s86 offen sc1"] + \
               [f"buffer_load_dwordx4 {vr(KMF+4*f,4)}, v{vKMO}, {WS}, s85 offen offset:{f*1024} sc1" for f in range(4)]

    def x_work(seg_expr, mid=None):
        a(f"""s_add_u32 s87, s{S_STEP}, {seg_expr}
s_and_b32 s{S_T1}, s87, 3
s_lshl_b32 s{S_T1}, s{S_T1}, 14
s_add_u32 s{S_T1}, s{S_T1}, {XRING:#x}
v_add_u32 v{XM+3}, s{S_T1}, v{vL16}""")
        for f in range(12):
            d = QF + 4 * f if f < 4 else KXF + 4 * (f - 4)
            a(f"ds_read_b128 {vr(d,4)}, v{XM+3} offset:{f*1024}")
            if f % 2: a.fill(1)
        if mid: mid()
        kp = SPoll(a, ["\n".join(km_loads())], [list(range(KMF, KMF + 16)) + list(range(XVM, XVM + 4))], vT, cap=0)
        kp.pre(0); a.fill(4); kp.br(0)
        a("s_waitcnt lgkmcnt(0)")
        for ks in range(4):
            for t in (1, 2, 0):
                A = KMF + 4 * ks if t == 0 else KXF + 16 * (t - 1) + 4 * ks
                C = vr(MK + 4 * t, 4) if ks == 0 else vr(XT + 4 * t, 4)
                a(f"v_mfma_f32_16x16x32_bf16 {vr(XT+4*t,4)}, {vr(A,4)}, {vr(QF+4*ks,4)}, {C}")
        regs = [XT + 4 * t + r for t in (1, 2, 0) for r in range(4)]
        mx, m2, nm = XM, XM + 1, XM + 2
        a(f"v_max3_f32 v{mx}, v{regs[0]}, v{regs[1]}, v{regs[2]}")
        rest = regs[3:]
        while rest:
            if len(rest) >= 2:
                a(f"v_max3_f32 v{mx}, v{mx}, v{rest[0]}, v{rest[1]}"); rest = rest[2:]
            else:
                a(f"v_max_f32 v{mx}, v{mx}, v{rest[0]}"); rest = rest[1:]
        xlane_reduce(a, "v_max_f32", mx, m2)
        a(f"v_mul_f32 v{nm}, s{S_C}, v{mx}")
        for i in range(0, 12, 2):
            a(f"v_pk_fma_f32 {vr(XT+i,2)}, {vr(XT+i,2)}, s[{S_C}:{S_C+1}], {vr(nm,2)} op_sel_hi:[1,1,0] neg_lo:[0,0,1] neg_hi:[0,0,1]")
        for r in regs: a(f"v_exp_f32 v{r}, v{r}")
        for i in range(4): a(f"v_cvt_pk_bf16_f32 v{XP+i}, v{regs[2*i]}, v{regs[2*i+1]}")
        for i in range(2): a(f"v_cvt_pk_bf16_f32 v{XPM+i}, v{XT+2*i}, v{XT+2*i+1}")
        for i in range(2, 12, 2):
            a(f"v_pk_add_f32 {vr(XT,2)}, {vr(XT,2)}, {vr(XT+i,2)}")
        a(f"v_mfma_f32_16x16x32_bf16 {vr(XO,4)}, {vr(XV,4)}, {vr(XP,4)}, 0")
        a(f"v_add_f32 v{mx}, v{XT}, v{XT+1}")
        a(f"v_mfma_f32_16x16x32_bf16 {vr(XO+4,4)}, {vr(XV+4,4)}, {vr(XP,4)}, 0")
        a(f"v_mfma_f32_16x16x16_bf16 {vr(XO+8,4)}, {vr(XVM,2)}, {vr(XPM,2)}, 0")
        a(f"v_mfma_f32_16x16x16_bf16 {vr(XO+12,4)}, {vr(XVM+2,2)}, {vr(XPM,2)}, 0")
        xlane_reduce(a, "v_add_f32", mx, m2)
        a(f"v_rcp_f32 v{nm}, v{mx}")
        for i in range(0, 8, 2):
            a(f"v_pk_add_f32 {vr(XO+i,2)}, {vr(XO+i,2)}, {vr(XO+8+i,2)}")
        for i in range(0, 8, 2):
            a(f"v_pk_mul_f32 {vr(XO+i,2)}, {vr(XO+i,2)}, {vr(nm,2)} op_sel_hi:[1,0]")
        for i in range(4):
            a(f"v_cvt_pk_bf16_f32 v{XR_+i}, v{XO+2*i}, v{XO+2*i+1}")

    def x_store():
        t0 = cfg.get("tail_seg0", 64)
        l1, l2 = a.uid("ox"), a.uid("ox")
        a(f"""s_cmp_ge_u32 s87, {t0}
s_cbranch_scc1 {l1}
s_lshr_b32 s{S_T2}, s87, 2
s_lshl_b32 s{S_T2}, s{S_T2}, 20
s_and_b32 s{S_T1}, s87, 3
s_lshl_b32 s{S_T1}, s{S_T1}, 11
s_add_u32 s{S_T2}, s{S_T2}, s{S_T1}
s_add_u32 s{S_T2}, s{S_T2}, {WS_OX:#x}
buffer_store_dwordx4 {vr(XR_,4)}, v{vOXO}, {WS}, s{S_T2} offen sc1
{l2}:""")
        a.defer(lambda: a(f"""{l1}:
s_lshl_b32 s{S_T2}, s87, 1
s_and_b32 s{S_T1}, s{S_J}, 1
s_add_u32 s{S_T2}, s{S_T2}, s{S_T1}
s_lshl_b32 s{S_T2}, s{S_T2}, 7
s_lshl_b32 s{S_T1}, s{S_HEAD}, 2
s_add_u32 s{S_T2}, s{S_T2}, s{S_T1}
s_add_u32 s{S_T2}, s{S_T2}, s{S_WAVE}
s_lshl_b32 s{S_T2}, s{S_T2}, 10
s_add_u32 s{S_T2}, s{S_T2}, {WS_OXF:#x}
buffer_store_dwordx4 {vr(XR_,4)}, v{vL16}, {WS}, s{S_T2} offen sc1
s_branch {l2}"""))

    def ksplit(sp, F, wbase, lbase, stamp_idx, o, pad, extra=()):
        extra = list(extra)
        def mm(f, ct):
            a(f"v_smfmac_f32_16x16x64_bf16 {vr(ACC+4*ct,4)}, {vr(F+4*f,4)}, {ar(wbase+(f*4+ct)*8,8)}, v{vIDX}")
        a(f"s_lshl_b32 m0, s{S_WAVE}, 12")
        if o.get("pre", 0): a.fill(o["pre"])
        def consume(g, k, chk):
            mm(g, 0)
            if chk: a(chk[0]); a(chk[1])
            mm(g, 1)
            if chk: a(chk[2])
            mm(g, 2)
            if chk: a(chk[3])
            mm(g, 3)
            if chk: a(chk[4])
        ring_poll(a, sp.loads, sp.regs, vT, consume, a.uid("kj"), space=o.get("space", 4), on_first=lambda: stamp(a, stamp_idx, cfg))
        probe(a, f"k{stamp_idx}f3", cfg)
        sw = lambda p, r: f"v_permlane32_swap_b32 v{ACC+8*p+r}, v{ACC+8*p+4+r}"
        ad = lambda p, r: f"v_add_f32 v{ACC+8*p+r}, v{ACC+8*p+r}, v{ACC+8*p+4+r}"
        wr = lambda p, r: f"ds_write_addtid_b32 v{ACC+8*p+r} offset:{lbase + (p*4+r)*512 + (pad and (r % 2) * 32 + (r // 2) * 128)}"
        for r in range(4): a(sw(0, r))
        for r in range(4): a(ad(0, r))
        for r in range(4):
            a(sw(1, r)); a(wr(0, r))
        for r in range(4): a(ad(1, r))
        keep()
        for r in range(4): a(wr(1, r))
        probe(a, f"k{stamp_idx}w", cfg)
        keep()
        if cfg.get("k3", 0): keep()
        a("s_waitcnt lgkmcnt(0)")
        probe(a, f"k{stamp_idx}l", cfg)
        a("s_barrier")
        probe(a, f"k{stamp_idx}b", cfg)

    def sum4(reads):
        a(reads[0]); a(reads[1]); keep(); a(reads[2]); a(reads[3]); keep()
        a("s_waitcnt lgkmcnt(2)")
        a(f"v_add_f32 v{RD}, v{RD}, v{RD+2}\nv_add_f32 v{RD+1}, v{RD+1}, v{RD+3}")
        a("s_waitcnt lgkmcnt(0)")
        a(f"v_add_f32 v{RD+4}, v{RD+4}, v{RD+6}\nv_add_f32 v{RD+5}, v{RD+5}, v{RD+7}")
        a(f"v_add_f32 v{RD}, v{RD}, v{RD+4}\nv_add_f32 v{RD+1}, v{RD+1}, v{RD+5}")

    a(f"""s_bcnt1_i32_b32 s{S_T0}, s{S_NEAR}
s_cmp_ge_u32 s{S_T0}, 4
s_cselect_b32 s{S_T0}, 0x2000, 0
s_add_u32 s{S_OFF_F}, s{S_OFF_F}, s{S_T0}
s_barrier""")
    a.set_filler(vD)
    store_mode(a, f"buffer_store_dword v{M0R}, v{vMO}, {WS}, s{S_OFF_E} offen")
    a(f"s_mov_b32 s{S_STEP}, 0\ns_mov_b32 s{S_PREV}, s{S_OFF_C}")
    o = cfg.get("v_mem", {})
    gp = SPoll(a, [f"buffer_load_dwordx4 {vr(G+4*i,4)}, v{vGOFF}, {WS}, s{S_OFF_A} offen offset:{1024*i} sc1" for i in range(4)],
               [G + 4 * i for i in range(4)], vT, cap=o.get("cap", 3), sleep=o.get("sleep", 5), pre_sleep=o.get("pre", 0), respin=o.get("respin", 4))
    a("s_waitcnt vmcnt(0)")
    for i in range(16): a(f"v_mov_b32 v{ACC+i}, 0")

    a.label("V_loop")
    stamp(a, 0, cfg)
    ksplit(gp, G, 0, L_MEM, 1, cfg.get('v_mem', {}), 0)
    a(f"s_add_u32 s{S_T0}, s{S_OFF_B}, {WS_VM:#x}\ns_cmp_eq_u32 s{S_MODE}, 1")
    sum4([f"ds_read2st64_b32 {vr(RD+2*src,2)}, v{vRV} offset0:{(L_MEM + src*4096)//256} offset1:{(L_MEM + src*4096)//256 + 2}" for src in range(4)])
    if cfg.get("vm_add"): a.fill(cfg["vm_add"])
    a(f"v_cvt_pk_bf16_f32 v{MI}, v{RD}, v{RD+1}")
    store_mode2(a, f"buffer_store_dword v{MI}, v{vVMO}, {WS}, s{S_T0} offen")
    stamp(a, 2, cfg)
    if "wait_x" in hooks:
        a(f"s_mov_b32 s{S_T0}, s{S_STEP}")
        hooks["wait_x"](vT)
    for x in x_loads(-1 & 0xffffffff): a(x)
    ns = a.uid("ns")
    a(f"s_cmp_lt_u32 s{S_STEP}, 2\ns_cbranch_scc1 {ns}")
    x_store()
    a.label(ns)
    x_dma(S_STEP)
    a(f"""s_cmp_eq_u32 s{S_STEP}, {NSEG-1}
s_cbranch_scc1 V_exit""")
    o = cfg.get("v_om", {})
    op = SPoll(a, [f"buffer_load_dwordx4 {vr(OF+4*f,4)}, v{vOMO}, {WS}, s88 offen offset:{1024*f} sc1" for f in range(4)],
               [OF + 4 * f for f in range(4)], vT, cap=o.get("cap", 3), sleep=o.get("sleep", 5), pre_sleep=o.get("pre", 0), respin=o.get("respin", 4))
    def mid():
        for i in range(16): a(f"v_mov_b32 v{ACC+i}, 0")
        for i in range(6): a(f"v_mov_b32 v{RP+i}, -1")
        a("s_waitcnt vmcnt(4)")
        if "post_vm" in hooks: hooks["post_vm"](MI + 2)
    nx, nx2 = a.uid("nx"), a.uid("nx")
    a(f"s_cmp_lt_u32 s{S_STEP}, 2\ns_cbranch_scc1 {nx}")
    a.label(nx2)
    if cfg.get("nox"):
        a(f"s_sub_u32 s87, s{S_STEP}, 1"); mid()
    else: x_work(-1 & 0xffffffff, mid)
    nx3 = a.uid("nx")
    a.label(nx3)
    def early():
        a(f"""{nx}:
s_waitcnt vmcnt(0)
s_cmp_eq_u32 s{S_STEP}, 1
s_cbranch_scc1 {nx2}""")
        mid()
        a(f"s_branch {nx3}")
    a.defer(early)
    stamp(a, 6, cfg)
    a(f"""s_and_b32 s88, s{S_STEP}, 7
s_lshl_b32 s88, s88, 16
s_add_u32 s{S_PREV}, s88, s{S_OFF_C}
s_add_u32 s88, s88, {WS_OM:#x}
s_mov_b32 s{S_PCUR}, s{S_OFF_F}""")
    for x in range(1, 4):
        a(f"s_xor_b32 s{S_T0+x}, s{S_PCUR}, {x << 16:#x}")
    if cfg.get("v_part", {}).get("pretouch"):
        a("\n".join(f"buffer_load_dwordx2 {vr(RP+2*(x-1),2)}, v{vPO}, {WS}, s{S_T0+x} offen sc1" for x in range(1, 4)))
    ksplit(op, OF, 128, L_RED, 3, cfg.get('v_om', {}), 1)
    if cfg.get("v_part", {}).get("early"):
        a("\n".join(f"buffer_load_dwordx2 {vr(RP+2*(x-1),2)}, v{vPO}, {WS}, s{S_T0+x} offen sc1" for x in range(1, 4)))
    sum4([f"ds_read_b64 {vr(RD+2*src,2)}, v{vRR} offset:{L_RED + src*4096}" for src in range(4)])
    o = cfg.get("v_part", {})
    l3 = "\n".join(f"buffer_load_dwordx2 {vr(RP+2*(x-1),2)}, v{vPO}, {WS}, s{S_T0+x} offen sc1" for x in range(1, 4))
    a(f"buffer_store_dwordx2 {vr(RD,2)}, v{vPO}, {WS}, s{S_PCUR} offen sc1")
    stamp(a, 4, cfg)
    a(f"""s_add_u32 s{S_OFF_E}, s{S_OFF_E}, 0x4000
s_bitset0_b32 s{S_OFF_E}, 17
s_add_u32 s{S_OFF_A}, s{S_OFF_A}, 0x4000
s_bitset0_b32 s{S_OFF_A}, 17
s_add_u32 s{S_OFF_B}, s{S_OFF_B}, 0x10000
s_bitset0_b32 s{S_OFF_B}, 19
s_add_u32 s{S_OFF_F}, s{S_OFF_F}, 0x40000
s_bitset0_b32 s{S_OFF_F}, 21""")
    if o.get("presleep", 3): a(f"s_sleep {o.get('presleep', 3)}")
    for i in range(16): a(f"v_mov_b32 v{ACC+i}, 0")
    pp = SPoll(a, [l3], [list(range(RP, RP + 6))], vT, cap=o.get("cap", 30), sleep=o.get("sleep", 4), pre_sleep=o.get("pre", 12))
    pp.first(prefill=False)
    a(f"""s_cmp_eq_u32 s{S_MODE}, 1
v_pk_add_f32 {vr(RD,2)}, {vr(RD,2)}, {vr(RP,2)}
v_pk_add_f32 {vr(RD+2,2)}, {vr(RP+2,2)}, {vr(RP+4,2)}
v_pk_add_f32 {vr(RD,2)}, {vr(RD,2)}, {vr(RD+2,2)}
v_cvt_pk_bf16_f32 v{MI}, v{RD}, v{RD+1}""")
    store_mode2(a, f"buffer_store_dword v{MI}, v{vMO}, {WS}, s{S_OFF_E} offen")
    stamp(a, 5, cfg)
    stamp_flush(a, cfg)
    a(f"""s_add_u32 s{S_STEP}, s{S_STEP}, 1
s_branch V_loop""")
    a.label("V_exit")
    fin = hooks.get("v_signal", lambda seg: None)
    def mid2():
        a("s_waitcnt vmcnt(0)\ns_barrier")
        if "post_vm" in hooks: hooks["post_vm"](MI + 2)
        fin(NSEG - 3)
    x_work(-1 & 0xffffffff, mid2)
    x_store()
    a(f"""s_and_b32 s88, s{S_STEP}, 7
s_lshl_b32 s88, s88, 16
s_add_u32 s{S_PREV}, s88, s{S_OFF_C}""")
    for x in x_loads(0): a(x)
    def mid3():
        a("s_waitcnt vmcnt(0)\ns_barrier")
        fin(NSEG - 2)
    x_work(0, mid3)
    x_store()
    a("s_waitcnt vmcnt(0)\ns_barrier")
    fin(NSEG - 1)
    a("s_endpgm")
    a.flush_deferred()
    a.set_filler(None)
```

```python
from asmgen import *
import chain
from chain import *
from tail import WS_OXF
from chain4 import (S_NEAR, S_PCUR, JIT, WS, DBG, OOBV, WS_CNT, WS_KM, arrive, wait_all_arrived, startup_barrier, sstamp, probe,
                    store_mode2, SPoll, ring_poll, Lds)

XRING = L_W


def ring_poll2(a, loads, regs, vt, consume, join, space=4, on_first=None, rfill=3):
    R = [a.uid("rp") for _ in range(4)]
    C = [a.uid("rc") for _ in range(4)]
    def pre3(g):
        b = regs[g]
        return [f"v_max3_u32 v{vt}, v{b}, v{b+1}, v{b+2}", f"v_max_u32 v{vt}, v{vt}, v{b+3}", f"v_cmp_eq_u32 vcc, {chain.SENTINEL[0]}, v{vt}"]
    for f in range(3):
        a(loads[f]); a.fill(space)
    for f in range(4):
        a.label(R[f])
        a(loads[(f + 3) % 4])
        if f == 0: budget_head(a)
        a("s_waitcnt vmcnt(3)")
        for x in pre3(f): a(x)
        a.fill(5)
        a(f"s_cbranch_vccz {C[f]}" if f < 3 else f"s_cbranch_vccnz {R[0]}")
    def body(f):
        a.label(C[f])
        if on_first: on_first()
        for k in range(4):
            g = (f + k) % 4
            chk = []
            if k < 3:
                n = (g + 1) % 4
                rt, back = a.uid("rr"), a.uid("rb")
                chk = pre3(n) + [f"s_cbranch_vccnz {rt}\n{back}:"]
                def retry(n=n, rt=rt, back=back, k=k):
                    a.label(rt)
                    for j in range(3 - k): a(loads[(n + j) % 4])
                    for rep in range(3 - k):
                        for x in pre3(n): a(x)
                        a.fill(rfill + 2)
                        a(f"s_cbranch_vccz {back}")
                    budget_head(a)
                    a(f"s_waitcnt vmcnt(8)\ns_branch {rt}")
                a.defer(retry)
            consume(g, k, chk)
    body(3)
    for f in range(3):
        def ool(f=f):
            body(f); a(f"s_branch {join}")
        a.defer(ool)
    a.label(join)


def s_cu(a, cfg, hooks=None):
    hooks = hooks or {}
    vT, vL16, vGW, vA1, vA2, vA3, vQKW, vQKR, vIDX, vOXO, vVMO, vKMO, vXR, vF, vLANE, vT2 = range(16)
    KX, VX, G, AF, ACC, QF, KMF = 16, 48, 56, 72, 120, 128, 144
    T, VM, PX, PM, O, LS, ONE, HALF, MI, MK, T2, SENT = 160, 172, 176, 180, 184, 200, 204, 208, 210, 216, 224, 232
    KD = 240
    vD, vWT = 236, 237
    cfg = dict(cfg); cfg["stamp_reg"] = 254; cfg["lane4_reg"] = 255
    keep = lambda: a(f"v_mfma_f32_16x16x32_bf16 {vr(KD+8,4)}, {vr(ONE,4)}, {vr(ONE,4)}, {vr(KD+8,4)}")
    wreg = lambda s, t: (s * 2 + t) * 8

    a(f"""s_lshl_b32 s{S_HEAD}, s{S_TEAM}, 3
s_add_u32 s{S_HEAD}, s{S_HEAD}, s{S_J}""")
    srd(a, S_W0, 16, 1024 * 8192)
    arrive(a, 20)
    a(f"v_and_b32 v{vLANE}, 63, v0")
    a(f"v_lshlrev_b32 v{vL16}, 4, v{vLANE}")
    a(f"""v_lshrrev_b32 v{vT}, 4, v{vLANE}
v_lshlrev_b32 v{vD}, 13, v{vT}
v_and_b32 v{vT}, 15, v{vLANE}
v_lshl_add_u32 v{vD}, v{vT}, 4, v{vD}
s_lshl_b32 s{S_T0}, s{S_HEAD}, 8
s_lshl_b32 s{S_T1}, s{S_WAVE}, 21
s_add_u32 s{S_T0}, s{S_T0}, s{S_T1}
v_add_u32 v{vD}, s{S_T0}, v{vD}
s_lshl_b32 s{S_T2}, s{S_WAVE}, 14
v_bfe_u32 v{vT}, v{vLANE}, 5, 1
v_lshlrev_b32 v{vWT}, 12, v{vT}
v_bfe_u32 v{vT}, v{vLANE}, 3, 1
v_lshl_add_u32 v{vWT}, v{vT}, 11, v{vWT}
v_bfe_u32 v{vT}, v{vLANE}, 4, 1
v_lshl_add_u32 v{vWT}, v{vT}, 10, v{vWT}
v_bfe_u32 v{vT}, v{vLANE}, 2, 1
v_lshl_add_u32 v{vWT}, v{vT}, 8, v{vWT}
v_and_b32 v{vT}, 3, v{vLANE}
v_lshl_add_u32 v{vWT}, v{vT}, 3, v{vWT}
s_lshl_b32 s{S_T0}, s{S_WAVE}, 6
s_add_u32 s{S_T0}, s{S_T0}, s{S_T2}
v_add_u32 v{vWT}, s{S_T0}, v{vWT}""")
    for q in range(3, -1, -1):
        a(f"v_xor_b32 v{vWT+q}, {q << 14:#x}, v{vWT}\nv_add_u32 v{vWT+q}, {L_W:#x}, v{vWT+q}")
    def issue(j):
        for i in range(16):
            a(f"s_add_u32 m0, s{S_T2}, {L_W + (j % 2) * 65536 + i * 1024}")
            a(f"s_mov_b32 s{S_T4}, {(j * 64 + i * 4) * 8192:#x}")
            a(f"buffer_load_dwordx4 v{vD}, s[{S_W0}:{S_W0+3}], s{S_T4} offen lds")
    issue(0); issue(1)
    for j in range(4):
        a(f"s_waitcnt vmcnt({16 if j < 3 else 0})\ns_barrier")
        for q in range(4):
            for t in range(2):
                for v in range(4):
                    a(f"ds_read_b64_tr_b16 {ar(wreg(j+4*q,t)+2*v,2)}, v{vWT+q} offset:{(32*(v//2) + 2*(v%2))*256 + t*32}")
                a("s_waitcnt lgkmcnt(8)")
        a("s_waitcnt lgkmcnt(0)\ns_barrier")
        for q in range(4):
            a(f"v_add_u32 v{vWT+q}, {0x10000 if j % 2 == 0 else 0xffff0000:#x}, v{vWT+q}")
        if j + 2 < 4: issue(j + 2)
    sstamp(a, 6, cfg)

    a(f"""s_lshl_b32 s{S_T0}, s{S_WAVE}, 12
v_add_u32 v{vGW}, s{S_T0}, v{vL16}""")
    for q in range(1, 4):
        a(f"v_xor_b32 v{vA1+q-1}, {q*4096:#x}, v{vGW}")
    idx_reg(a, vIDX, vLANE, vT)
    a(f"""v_lshrrev_b32 v{vT}, 5, v{vLANE}
v_lshlrev_b32 v{vQKW}, 8, v{vT}
v_and_b32 v{vT}, 15, v{vLANE}
v_lshl_add_u32 v{vQKW}, v{vT}, 4, v{vQKW}
v_bfe_u32 v{vT}, v{vLANE}, 4, 1
v_lshl_add_u32 v{vQKW}, v{vT}, 3, v{vQKW}
s_lshl_b32 s{S_T0}, s{S_WAVE}, 9
v_add_u32 v{vQKW}, s{S_T0}, v{vQKW}
v_lshrrev_b32 v{vT}, 2, v{vLANE}
v_lshlrev_b32 v{vQKR}, 4, v{vT}
v_and_b32 v{vT}, 1, v{vLANE}
v_lshl_add_u32 v{vQKR}, v{vT}, 3, v{vQKR}
s_lshr_b32 s{S_T0}, s{S_WAVE}, 1
s_lshl_b32 s{S_T0}, s{S_T0}, 10
s_and_b32 s{S_T1}, s{S_WAVE}, 1
s_lshl_b32 s{S_T1}, s{S_T1}, 7
s_add_u32 s{S_T0}, s{S_T0}, s{S_T1}
s_add_u32 s{S_WOFF}, s{S_T0}, {WS_OM:#x}
s_lshl_b32 s{S_T0}, s{S_WAVE}, 9
v_add_u32 v{vVMO}, s{S_T0}, v{vL16}
v_mov_b32 v{vT}, {OOBV:#x}
v_cmp_gt_u32 vcc, 32, v{vLANE}
v_cndmask_b32 v{vVMO}, v{vT}, v{vVMO}, vcc
v_mov_b32 v{vT2}, 0xff800000""")
    for r in range(4): a(f"v_cndmask_b32 v{MK+r}, v{vT2}, 0, vcc")
    a(f"""v_lshrrev_b32 v{vT}, 4, v{vLANE}
v_lshlrev_b32 v{vKMO}, 7, v{vT}
v_lshlrev_b32 v{vT}, 2, v{vT}
v_and_b32 v{vOXO}, 15, v{vLANE}
v_sub_u32 v{vT}, v{vOXO}, v{vT}""")
    for r in range(4):
        a(f"v_cmp_le_i32 vcc, {r}, v{vT}\nv_cndmask_b32 v{MK+4+r}, v{vT2}, 0, vcc")
    a(f"""v_and_b32 v{vT}, 7, v{vLANE}
v_lshl_add_u32 v{vKMO}, v{vT}, 4, v{vKMO}
v_lshlrev_b32 v{vOXO}, 6, v{vOXO}
v_lshrrev_b32 v{vT}, 4, v{vLANE}
v_lshl_add_u32 v{vOXO}, v{vT}, 4, v{vOXO}
s_lshl_b32 s{S_T0}, s{S_HEAD}, 15
s_lshl_b32 s{S_T1}, s{S_WAVE}, 13
s_add_u32 s{S_T0}, s{S_T0}, s{S_T1}
v_add_u32 v{vOXO}, s{S_T0}, v{vOXO}
v_mov_b32 v{vF}, 0""")
    for i in range(4): a(f"v_mov_b32 v{ONE+i}, 0x3f803f80\nv_mov_b32 v{SENT+i}, -1\nv_mov_b32 v{KD+8+i}, 0")
    a(f"v_mov_b32 v{HALF}, 0x3f003f00\nv_mov_b32 v{HALF+1}, 0x3f003f00")
    if cfg.get("stamps"): a(f"v_lshlrev_b32 v255, 2, v{vLANE}")
    cbits = f32bits(128 ** -0.5 * LOG2E)
    a(f"s_mov_b32 s{S_C}, {cbits:#x}\ns_mov_b32 s{S_C+1}, {cbits:#x}")
    a(f"""s_mov_b32 s{S_STEP}, 0
s_lshl_b32 s{S_OFF_A}, s{S_TEAM}, 20
s_add_u32 s{S_OFF_A}, s{S_OFF_A}, {WS_MEMT:#x}
s_lshl_b32 s{S_OFF_C}, s{S_HEAD}, 11""")
    startup_barrier(a, 244)
    a(f"""s_bcnt1_i32_b32 s{S_T0}, s{S_NEAR}
s_cmp_ge_u32 s{S_T0}, 4
s_cselect_b32 s{S_OFF_F}, 0x2000, 0
s_and_b32 s{S_T0}, s{S_J}, 1
s_lshl_b32 s{S_T0}, s{S_T0}, 12
s_add_u32 s{S_OFF_F}, s{S_OFF_F}, s{S_T0}
s_lshr_b32 s{S_T0}, s{S_J}, 1
s_lshl_b32 s{S_T0}, s{S_T0}, 14
s_add_u32 s{S_OFF_F}, s{S_OFF_F}, s{S_T0}
s_lshl_b32 s{S_T0}, s{S_TEAM}, 16
s_add_u32 s{S_OFF_F}, s{S_OFF_F}, s{S_T0}
s_lshl_b32 s{S_T0}, s{S_WAVE}, 10
s_add_u32 s{S_OFF_F}, s{S_OFF_F}, s{S_T0}
s_add_u32 s{S_OFF_F}, s{S_OFF_F}, {WS_PART:#x}
s_lshl_b32 s{S_OFF_E}, s{S_J}, 11
s_lshl_b32 s{S_T0}, s{S_WAVE}, 9
s_add_u32 s{S_OFF_E}, s{S_OFF_E}, s{S_T0}""")

    def x_dma(add):
        a(f"s_add_u32 s{S_OFF_B}, s{S_STEP}, {add}")
        if "wait_x" in hooks:
            a(f"s_mov_b32 s{S_T0}, s{S_OFF_B}")
            hooks["wait_x"](vT)
        a(f"""s_lshl_b32 s{S_T0}, s{S_OFF_B}, 18
s_lshl_b32 s{S_T1}, s{S_HEAD}, 13
s_add_u32 s{S_T0}, s{S_T0}, s{S_T1}
s_lshl_b32 s{S_T2}, s{S_WAVE}, 11
s_add_u32 s{S_T0}, s{S_T0}, s{S_T2}
s_cmp_ge_u32 s{S_OFF_B}, {NSEG}
s_cselect_b32 s{S_T0}, {OOBV:#x}, s{S_T0}
s_and_b32 s{S_T1}, s{S_OFF_B}, 3
s_lshl_b32 s{S_T1}, s{S_T1}, 15
s_add_u32 s{S_T1}, s{S_T1}, s{S_T2}""")
        for k, reg in enumerate((WS_QX, WS_KX, WS_VX)):
            a(f"s_add_u32 m0, s{S_T1}, {XRING + k * 8192:#x}\ns_add_u32 s{S_T3}, s{S_T0}, {reg:#x}")
            for f in range(2):
                a(f"buffer_load_dwordx4 v{vL16}, {WS}, s{S_T3} offen offset:{f*1024} sc1 lds")

    def chores():
        a(f"""s_xor_b32 s{S_T0}, s{S_OFF_F}, {JIT << 18:#x}
buffer_store_dwordx4 {vr(SENT,4)}, v{vL16}, {WS}, s{S_T0} offen sc1
s_xor_b32 s{S_T2}, s{S_OFF_C}, {JIT << 16:#x}
s_lshl_b32 s{S_T3}, s{S_WAVE}, 9
s_add_u32 s{S_T2}, s{S_T2}, s{S_T3}
s_add_u32 s{S_T0}, s{S_T2}, {WS_KM:#x}
s_add_u32 s{S_T1}, s{S_T2}, {WS_VM:#x}
s_add_u32 s{S_T2}, s{S_T2}, {WS_OM:#x}
s_xor_b32 s{S_T3}, s{S_OFF_A}, {JIT << 14:#x}
s_add_u32 s{S_T3}, s{S_T3}, s{S_OFF_E}
s_cmp_eq_u32 s{S_MODE}, 1
s_mov_b32 exec_hi, 0""")
        l1, l2 = a.uid("ji"), a.uid("ji")
        jit = lambda fl: "\n".join(f"buffer_store_dwordx4 {vr(SENT,4)}, v{vL16}, {WS}, s{t} offen {fl}" for t in (S_T0, S_T1, S_T2, S_T3))
        a(f"s_cbranch_scc0 {l1}\n{jit('')}\n{l2}:\ns_mov_b64 exec, -1")
        a.defer(lambda: a(f"{l1}:\n{jit('sc1')}\ns_branch {l2}"))

    pkfma = lambda r, nm: f"v_pk_fma_f32 {vr(r,2)}, {vr(r,2)}, s[{S_C}:{S_C+1}], {vr(nm,2)} op_sel_hi:[1,1,0] neg_lo:[0,0,1] neg_hi:[0,0,1]"
    x_dma(0); x_dma(1)
    a("s_waitcnt vmcnt(0)\ns_barrier")
    sstamp(a, 7, cfg)
    a.set_filler(vF)
    a.label("S_loop")
    stamp(a, 0, cfg)
    a(f"""s_and_b32 s{S_T0}, s{S_STEP}, 3
s_lshl_b32 s{S_T0}, s{S_T0}, 15
s_add_u32 s{S_T0}, s{S_T0}, {XRING:#x}
v_add_u32 v{vXR}, s{S_T0}, v{vL16}
s_lshl_b32 s{S_T1}, s{S_WAVE}, 11
v_add_u32 v{vT2}, s{S_T1}, v{vXR}""")
    for f in range(8): a(f"ds_read_b128 {vr(KX+4*f,4)}, v{vXR} offset:{8192 + f*1024}")
    for f in range(2): a(f"ds_read_b128 {vr(VX+4*f,4)}, v{vT2} offset:{16384 + f*1024}")
    for i in range(8): a(f"v_mov_b32 v{ACC+i}, 0")
    for i in range(16): a(f"v_mov_b32 v{G+i}, -1\nv_mov_b32 v{KMF+i}, -1")
    for i in range(4): a(f"v_mov_b32 v{VM+i}, -1")
    a(f"""s_add_u32 s{S_T5}, s{S_OFF_C}, {WS_VM:#x}
s_add_u32 s{S_T4}, s{S_OFF_C}, s{S_WOFF}
s_add_u32 s{S_OFF_D}, s{S_OFF_C}, {WS_KM:#x}
s_waitcnt lgkmcnt(0)""")
    L = Lds(a)
    loads = [f"buffer_load_dwordx4 {vr(G+4*i,4)}, v{vGW}, {WS}, s{S_OFF_A} offen offset:{1024*i} sc1" for i in range(4)]
    o = cfg.get("s_mem", {})
    sp = SPoll(a, loads, [G + 4 * i for i in range(4)], vT, cap=o.get("cap", 3), sleep=o.get("sleep", 3), respin=o.get("respin", 4))
    gw = lambda f: L.op(("GW", f), f"ds_write_b128 v{vGW}, {vr(G+4*f,4)} offset:{L_MEM + 1024*f}")
    areg = lambda s: G + 4 * s if s < 4 else AF + 4 * (s - 4)
    def mm(s, t):
        if s >= 4: L.wait(("A", s))
        a(f"v_smfmac_f32_16x16x64_bf16 {vr(ACC+4*t,4)}, {vr(areg(s),4)}, {ar(wreg(s,t),8)}, v{vIDX}")
    def ard(s): L.op(("A", s), f"ds_read_b128 {vr(areg(s),4)}, v{vA1 + s // 4 - 1} offset:{L_MEM + (s % 4) * 1024}")
    if cfg.get("s_sleep"): a(f"s_sleep {cfg['s_sleep']}")
    sp.first(prefill=False, arm=o.get("arm", 0), arm_fill=o.get("afill", 6), arm_cap=o.get("acap", 4))
    stamp(a, 1, cfg)
    gw(0); sp.pre(1); mm(0, 0); sp.br(1)
    gw(1); sp.pre(2); mm(0, 1); mm(1, 0); sp.br(2)
    sp.pre(3); mm(1, 1)
    L.wait(("GW", 1)); a("s_barrier")
    probe(a, "b1", cfg)
    e1 = [4, 8, 12, 5, 9, 13]; e2 = [6, 10, 14, 7, 11, 15]
    ard(4); ard(8); mm(2, 0); ard(12); ard(5); sp.br(3); mm(2, 1); ard(9); ard(13); mm(3, 0)
    gw(2); mm(3, 1); gw(3)
    kml = [f"buffer_load_dwordx4 {vr(KMF+4*f,4)}, v{vKMO}, {WS}, s{S_OFF_D} offen offset:{f*512} sc1" for f in range(4)]
    vml = f"buffer_load_dwordx4 {vr(VM,4)}, v{vVMO}, {WS}, s{S_T5} offen sc1"
    for k, s in enumerate(e1):
        mm(s, 0)
        if k >= 3: ard(e2[2*(k-3)])
        mm(s, 1)
        if k >= 3: ard(e2[2*(k-3)+1])
        if k == 2:
            L.wait(("GW", 3)); a("s_barrier")
    for s in e2:
        mm(s, 0); mm(s, 1)
    stamp(a, 2, cfg)
    for r in range(4): a(f"v_permlane32_swap_b32 v{ACC+r}, v{ACC+4+r}")
    for r in range(4): a(f"v_add_f32 v{ACC+r}, v{ACC+r}, v{ACC+4+r}")
    a(f"v_cvt_pk_bf16_f32 v{ACC+4}, v{ACC}, v{ACC+1}\nv_cvt_pk_bf16_f32 v{ACC+5}, v{ACC+2}, v{ACC+3}")
    L.op("QW", f"ds_write_b64 v{vQKW}, {vr(ACC+4,2)} offset:{L_QK}")
    keep(); keep(); keep()
    L.wait("QW"); a("s_waitcnt vmcnt(0)\ns_barrier")
    probe(a, "s_b", cfg)
    for ks in range(4):
        for u in range(2):
            L.op(("QF", ks), f"ds_read_b64_tr_b16 {vr(QF+4*ks+2*u,2)}, v{vQKR} offset:{L_QK + (32*ks+16*u)*16}")
        if ks % 2 == 0: keep()
    for x in kml: a(x)
    keep()
    X, T0 = T + 4, T
    def sc(ks, t, d, C0):
        A = KMF + 4 * ks if t == 0 else KX + 16 * (t - 1) + 4 * ks
        a(f"v_mfma_f32_16x16x32_bf16 {vr(d,4)}, {vr(A,4)}, {vr(QF+4*ks,4)}, {C0 if ks == 0 else vr(d,4)}")
    for ks in range(4):
        L.wait(("QF", ks))
        sc(ks, 1, X, "0"); sc(ks, 2, X + 4, "0")
        if ks == cfg.get("km2", 2):
            for x in kml: a(x)
    probe(a, "s_x", cfg)
    mx, m2, nm, al = MI, MI + 1, MI + 2, MI + 4
    a(f"""v_max3_f32 v{mx}, v{X}, v{X+1}, v{X+2}
v_max3_f32 v{m2}, v{X+4}, v{X+5}, v{X+6}
v_max3_f32 v{mx}, v{mx}, v{X+3}, v{X+7}
v_max_f32 v{al}, v{mx}, v{m2}
v_max_f32 v{m2}, v{mx}, v{m2}
v_permlane32_swap_b32 v{al}, v{m2}""")
    ok = cfg.get("s_km", {})
    kp = SPoll(a, ["\n".join(kml)], [list(range(KMF, KMF + 16))], vT, cap=ok.get("cap", 12), sleep=ok.get("sleep", 0), respin=ok.get("respin", 0))
    kp.pre(0); a(vml); a.fill(4); kp.br(0)
    probe(a, "s_km", cfg)
    for ks in range(4): sc(ks, 0, T0, "0")
    a(vml)
    a(f"""v_max3_f32 v{mx}, v{T0}, v{T0+1}, v{T0+2}
v_max3_f32 v{m2}, v{al}, v{m2}, v{T0+3}
v_max_f32 v{al}, v{mx}, v{m2}
v_max_f32 v{mx}, v{mx}, v{m2}
v_permlane16_swap_b32 v{mx}, v{al}
v_max_f32 v{m2}, v{mx}, v{al}""")
    stamp(a, 3, cfg)
    a(f"v_mul_f32 v{nm}, s{S_C}, v{m2}")
    for i in range(0, 8, 2): a(pkfma(X + i, nm))
    a(pkfma(T0, nm)); a(pkfma(T0 + 2, nm))
    a(vml)
    for i in range(8):
        a(f"v_exp_f32 v{X+i}, v{X+i}")
        if i >= 2 and i % 2 == 0: a(f"v_cvt_pk_bf16_f32 v{PX+i//2-1}, v{X+i-2}, v{X+i-1}")
    a(f"v_exp_f32 v{T0}, v{T0}")
    a(f"v_cvt_pk_bf16_f32 v{PX+3}, v{X+6}, v{X+7}")
    a(f"v_exp_f32 v{T0+1}, v{T0+1}\nv_exp_f32 v{T0+2}, v{T0+2}")
    a(f"v_mfma_f32_16x16x32_bf16 {vr(LS,4)}, {vr(ONE,4)}, {vr(PX,4)}, 0")
    a(f"v_exp_f32 v{T0+3}, v{T0+3}")
    a(f"v_mfma_f32_16x16x32_bf16 {vr(O,4)}, {vr(VX,4)}, {vr(PX,4)}, 0")
    a(f"v_cvt_pk_bf16_f32 v{PM}, v{T0}, v{T0+1}\nv_cvt_pk_bf16_f32 v{PM+1}, v{T0+2}, v{T0+3}")
    a(f"v_mfma_f32_16x16x32_bf16 {vr(O+4,4)}, {vr(VX+4,4)}, {vr(PX,4)}, 0")
    vp = SPoll(a, [vml], [VM], vT, cap=3, sleep=1)
    chk = vp.pre3(0)
    a(chk[0]); a(chk[1])
    a(f"v_mfma_f32_16x16x16_bf16 {vr(LS,4)}, {vr(HALF,2)}, {vr(PM,2)}, {vr(LS,4)}")
    a(chk[2])
    probe(a, "s_pv", cfg)
    pv, rt = a.uid("pv"), a.uid("vr")
    a.label(pv)
    a(f"v_mfma_f32_16x16x16_bf16 {vr(O+8,4)}, {vr(VM,2)}, {vr(PM,2)}, {vr(O,4)}")
    a(f"v_mfma_f32_16x16x16_bf16 {vr(O+12,4)}, {vr(VM+2,2)}, {vr(PM,2)}, {vr(O+4,4)}")
    a(f"s_cbranch_vccnz {rt}")
    a.defer(lambda: (vp._body(0, rt), a(f"s_branch {pv}")))
    a(f"s_cmp_eq_u32 s{S_MODE}, 1")
    a(f"v_rcp_f32 v{nm}, v{LS}")
    a("s_mov_b32 exec_lo, 0x00ff00ff\ns_mov_b32 exec_hi, 0x00ff00ff")
    for i in range(0, 8, 2):
        a(f"v_pk_mul_f32 {vr(O+8+i,2)}, {vr(O+8+i,2)}, {vr(nm,2)} op_sel_hi:[1,0]")
        if i >= 2: a(f"v_cvt_pk_bf16_f32 v{PX+i//2-1}, v{O+8+i-2}, v{O+8+i-1}")
    a(f"v_cvt_pk_bf16_f32 v{PX+3}, v{O+14}, v{O+15}")
    store_mode2(a, f"buffer_store_dwordx4 {vr(PX,4)}, v{vL16}, {WS}, s{S_T4} offen")
    a("s_mov_b64 exec, -1")
    stamp(a, 4, cfg)

    for ks in range(4): a(f"ds_read_b128 {vr(QF+4*ks,4)}, v{vXR} offset:{ks*1024}")
    for ks in range(4): a(f"ds_read_b128 {vr(AF+4*ks,4)}, v{vXR} offset:{4096 + ks*1024}")
    a("s_waitcnt vmcnt(1)")
    if "post_om" in hooks: hooks["post_om"](MI)
    x_dma(2)
    chores()
    a("s_waitcnt lgkmcnt(0)")
    for tt in range(2):
        Q = QF if tt == 0 else AF
        td = {0: T2, 1: T2 + 4} if tt == 0 else {0: T0, 1: X, 2: X + 4}
        for ks in range(4):
            for t in sorted(td, reverse=True):
                A = KMF + 4 * ks if t == 0 else KX + 16 * (t - 1) + 4 * ks
                C0 = vr(MK, 4) if t == 0 else (vr(MK + 4, 4) if t == 1 + tt else "0")
                a(f"v_mfma_f32_16x16x32_bf16 {vr(td[t],4)}, {vr(A,4)}, {vr(Q+4*ks,4)}, {C0 if ks == 0 else vr(td[t],4)}")
    for tt in range(2):
        b, n = (T2, 8) if tt == 0 else (T, 12)
        regs = list(range(b, b + n))
        a(f"v_max3_f32 v{mx}, v{regs[0]}, v{regs[1]}, v{regs[2]}")
        rest = regs[3:]
        while rest:
            if len(rest) >= 2: a(f"v_max3_f32 v{mx}, v{mx}, v{rest[0]}, v{rest[1]}"); rest = rest[2:]
            else: a(f"v_max_f32 v{mx}, v{mx}, v{rest[0]}"); rest = rest[1:]
        xlane_reduce(a, "v_max_f32", mx, m2)
        a(f"v_mul_f32 v{nm}, s{S_C}, v{mx}")
        for i in range(0, n, 2): a(pkfma(b + i, nm))
        for r in regs: a(f"v_exp_f32 v{r}, v{r}")
        P2 = AF + 16 + 8 * tt
        for i in range(4):
            if 4 + 2 * i < n: a(f"v_cvt_pk_bf16_f32 v{P2+i}, v{b+4+2*i}, v{b+5+2*i}")
            else: a(f"v_mov_b32 v{P2+i}, 0")
        for i in range(2): a(f"v_cvt_pk_bf16_f32 v{P2+4+i}, v{b+2*i}, v{b+2*i+1}")
        a(f"v_mfma_f32_16x16x32_bf16 {vr(LS,4)}, {vr(ONE,4)}, {vr(P2,4)}, 0")
        a(f"v_mfma_f32_16x16x32_bf16 {vr(O,4)}, {vr(VX,4)}, {vr(P2,4)}, 0")
        a(f"v_mfma_f32_16x16x32_bf16 {vr(O+4,4)}, {vr(VX+4,4)}, {vr(P2,4)}, 0")
        a(f"v_mfma_f32_16x16x16_bf16 {vr(LS,4)}, {vr(ONE,2)}, {vr(P2+4,2)}, {vr(LS,4)}")
        a(f"v_mfma_f32_16x16x16_bf16 {vr(O,4)}, {vr(VM,2)}, {vr(P2+4,2)}, {vr(O,4)}")
        a(f"v_mfma_f32_16x16x16_bf16 {vr(O+4,4)}, {vr(VM+2,2)}, {vr(P2+4,2)}, {vr(O+4,4)}")
        a(f"v_rcp_f32 v{nm}, v{LS}")
        for i in range(0, 8, 2): a(f"v_pk_mul_f32 {vr(O+i,2)}, {vr(O+i,2)}, {vr(nm,2)} op_sel_hi:[1,0]")
        D = AF + 32 + 4 * tt
        for i in range(4): a(f"v_cvt_pk_bf16_f32 v{D+i}, v{O+2*i}, v{O+2*i+1}")
        t0 = cfg.get("tail_seg0", 64)
        l1, l2 = a.uid("ox"), a.uid("ox")
        a(f"""s_cmp_ge_u32 s{S_STEP}, {t0}
s_cbranch_scc1 {l1}
s_lshr_b32 s{S_T2}, s{S_STEP}, 2
s_lshl_b32 s{S_T2}, s{S_T2}, 20
s_and_b32 s{S_T1}, s{S_STEP}, 3
s_lshl_b32 s{S_T1}, s{S_T1}, 11
s_add_u32 s{S_T2}, s{S_T2}, s{S_T1}
s_add_u32 s{S_T2}, s{S_T2}, {WS_OX:#x}
buffer_store_dwordx4 {vr(D,4)}, v{vOXO}, {WS}, s{S_T2} offen offset:{tt*1024} sc1
{l2}:""")
        a.defer(lambda l1=l1, l2=l2, D=D, tt=tt: a(f"""{l1}:
s_lshl_b32 s{S_T2}, s{S_STEP}, 8
s_lshl_b32 s{S_T1}, s{S_HEAD}, 2
s_add_u32 s{S_T2}, s{S_T2}, s{S_T1}
s_add_u32 s{S_T2}, s{S_T2}, s{S_WAVE}
s_lshl_b32 s{S_T2}, s{S_T2}, 10
s_add_u32 s{S_T2}, s{S_T2}, {WS_OXF + tt * 131072:#x}
buffer_store_dwordx4 {vr(D,4)}, v{vL16}, {WS}, s{S_T2} offen sc1
s_branch {l2}"""))
    stamp(a, 5, cfg)
    stamp_flush(a, cfg)
    a(f"""s_add_u32 s{S_STEP}, s{S_STEP}, 1
s_cmp_eq_u32 s{S_STEP}, {NSEG}
s_cbranch_scc1 {hooks.get("exit", "L_done")}
s_add_u32 s{S_OFF_A}, s{S_OFF_A}, 0x4000
s_bitset0_b32 s{S_OFF_A}, 17
s_add_u32 s{S_OFF_C}, s{S_OFF_C}, {32*2048:#x}
s_bitset0_b32 s{S_OFF_C}, 19
s_add_u32 s{S_OFF_F}, s{S_OFF_F}, 0x40000
s_bitset0_b32 s{S_OFF_F}, 21
s_branch S_loop""")
    a.flush_deferred()
    a.set_filler(None)


def v_cu(a, cfg, hooks=None):
    hooks = hooks or {}
    vLANE, vGOFF, vIDX, vL16, vT, vT2, vVMO, vOMO, vRW, vRR, vPO, vMO, vL4, vD, vI16 = range(0, 15)
    QF = 16
    G, ACC, ACC2, OF, RD, RP, MI, SENT = 32, 48, 64, 80, 96, 104, 112, 120
    vRV, vKO = 124, 125
    WV = 128
    cfg = dict(cfg); cfg["stamp_reg"] = MI + 5; cfg["lane4_reg"] = vL4
    a(f"""s_lshl_b32 s{S_HEAD}, s{S_TEAM}, 3
s_lshr_b32 s{S_T0}, s{S_J}, 1
s_add_u32 s{S_HEAD}, s{S_HEAD}, s{S_T0}""")
    srd(a, S_W0, 32, 1024 * 8192)
    srd(a, S_W1, 40, 4096 * 2048)
    srd(a, S_W2, 8, 8 * 2048)
    a(f"v_and_b32 v{vLANE}, 63, v0")
    a(f"v_lshlrev_b32 v{vL16}, 4, v{vLANE}")
    a(f"v_lshlrev_b32 v{vL4}, 2, v{vLANE}")
    for i in range(4): a(f"v_mov_b32 v{SENT+i}, -1")
    a(f"""s_lshl_b32 s{S_OFF_A}, s{S_TEAM}, 20
s_add_u32 s{S_OFF_A}, s{S_OFF_A}, {WS_MEMT:#x}
s_lshl_b32 s{S_T0}, s{S_J}, 10
s_add_u32 s{S_OFF_E}, s{S_OFF_A}, s{S_T0}
s_lshl_b32 s{S_OFF_C}, s{S_HEAD}, 11
s_and_b32 s{S_T1}, s{S_J}, 1
s_lshl_b32 s{S_T1}, s{S_T1}, 10
s_add_u32 s{S_OFF_B}, s{S_OFF_C}, s{S_T1}
s_and_b32 s{S_T0}, s{S_J}, 3
s_lshl_b32 s{S_OFF_D}, s{S_T0}, 11
s_lshr_b32 s{S_T0}, s{S_J}, 2
s_lshl_b32 s{S_T0}, s{S_T0}, 14
s_add_u32 s{S_OFF_D}, s{S_OFF_D}, s{S_T0}
s_add_u32 s{S_OFF_D}, s{S_OFF_D}, {WS_PART:#x}
s_lshl_b32 s{S_T0}, s{S_TEAM}, 16
s_add_u32 s{S_OFF_F}, s{S_OFF_D}, s{S_T0}""")

    for rep in range(2 if cfg.get('init8', 1) else 1):
        a(f"s_add_u32 s{S_T5}, s{S_WAVE}, {4*rep}")
        a(f"""s_lshl_b32 s{S_T0}, s{S_T5}, 14
s_add_u32 s{S_T0}, s{S_T0}, s{S_OFF_E}
buffer_store_dwordx4 {vr(SENT,4)}, v{vL16}, {WS}, s{S_T0} offen sc1
s_lshl_b32 s{S_T0}, s{S_T5}, 16
s_add_u32 s{S_T0}, s{S_T0}, s{S_OFF_B}
s_add_u32 s{S_T1}, s{S_T0}, {WS_VM:#x}
buffer_store_dwordx4 {vr(SENT,4)}, v{vL16}, {WS}, s{S_T1} offen sc1
s_add_u32 s{S_T1}, s{S_T0}, {WS_OM:#x}
buffer_store_dwordx4 {vr(SENT,4)}, v{vL16}, {WS}, s{S_T1} offen sc1
s_add_u32 s{S_T1}, s{S_T0}, {WS_KM:#x}
buffer_store_dwordx4 {vr(SENT,4)}, v{vL16}, {WS}, s{S_T1} offen sc1
s_lshl_b32 s{S_T0}, s{S_T5}, 18
s_add_u32 s{S_T0}, s{S_T0}, s{S_OFF_F}
buffer_store_dwordx4 {vr(SENT,4)}, v{vL16}, {WS}, s{S_T0} offen sc1
buffer_store_dwordx4 {vr(SENT,4)}, v{vL16}, {WS}, s{S_T0} offen offset:1024 sc1
s_add_u32 s{S_T0}, s{S_T0}, 0x2000
buffer_store_dwordx4 {vr(SENT,4)}, v{vL16}, {WS}, s{S_T0} offen sc1
buffer_store_dwordx4 {vr(SENT,4)}, v{vL16}, {WS}, s{S_T0} offen offset:1024 sc1""")

    a(f"""v_mov_b32 v{G}, 0
v_mov_b32 v{G+1}, 0
v_mov_b32 v{G+2}, 0
v_mov_b32 v{G+3}, 0
s_lshl_b32 s{S_T0}, s{S_TEAM}, 4
s_add_u32 s{S_T0}, s{S_T0}, s{S_J}
s_lshl_b32 s{S_T0}, s{S_T0}, 9
s_lshl_b32 s{S_T1}, s{S_WAVE}, 7
s_add_u32 s{S_T0}, s{S_T0}, s{S_T1}
s_add_u32 s{S_T0}, s{S_T0}, {WS_CNT:#x}
s_mov_b64 exec, 0xff
buffer_store_dwordx4 {vr(G,4)}, v{vL16}, {WS}, s{S_T0} offen sc1
s_mov_b64 exec, -1""")
    if not cfg.get("noprobe"):
        skip = a.uid("pr")
        a(f"""s_lshl_b32 s{S_T0}, s{S_TEAM}, 4
s_add_u32 s{S_T0}, s{S_T0}, s{S_J}
s_cmp_ge_u32 s{S_T0}, 8
s_cbranch_scc1 {skip}
s_cmp_lg_u32 s{S_WAVE}, 3
s_cbranch_scc1 {skip}
s_add_u32 s{S_T1}, s{S_OFF_F}, {7 << 18:#x}
s_add_u32 s{S_T2}, s{S_T1}, 0x2000
buffer_store_dwordx4 {vr(SENT,4)}, v{vL16}, {WS}, s{S_T1} offen sc1
buffer_store_dwordx4 {vr(SENT,4)}, v{vL16}, {WS}, s{S_T2} offen sc1
v_mov_b32 v{vT2}, 0
s_mov_b32 s60, -1
s_mov_b32 s61, -1
s_waitcnt vmcnt(0)""")
        for smp in range(4):
            for c in range(2):
                a(f"""s_memtime s[62:63]
s_waitcnt lgkmcnt(0)
buffer_load_dword v{vT}, v{vT2}, {WS}, s{S_T1+c} offen offset:{smp*256} sc1
s_waitcnt vmcnt(0)
s_memtime s[64:65]
s_waitcnt lgkmcnt(0)
s_sub_u32 s64, s64, s62
s_min_u32 s{60+c}, s{60+c}, s64""")
        a(f"""s_cmp_lt_u32 s61, s60
s_cselect_b32 s{S_T1}, 1, 0
s_lshl_b32 s{S_T1}, s{S_T1}, s{S_J}
v_mov_b32 v{vT}, s{S_T1}
s_mov_b64 exec, 1
buffer_atomic_or v{vT}, v{vT2}, {DBG}, 0 offen offset:12 sc1
s_mov_b64 exec, -1
{skip}:""")

    a("s_waitcnt vmcnt(0)\ns_barrier")
    arrive(a, G + 4)

    srd(a, 84, 24, 1024 * 8192)
    vD2, vWT = MI, MI + 1
    a(f"""v_lshrrev_b32 v{vT}, 3, v{vLANE}
v_lshlrev_b32 v{vD}, 13, v{vT}
v_lshlrev_b32 v{vD2}, 11, v{vT}
v_and_b32 v{vT}, 7, v{vLANE}
v_lshl_add_u32 v{vD}, v{vT}, 4, v{vD}
v_lshl_add_u32 v{vD2}, v{vT}, 4, v{vD2}
s_lshl_b32 s{S_T0}, s{S_HEAD}, 8
s_and_b32 s{S_T1}, s{S_J}, 1
s_lshl_b32 s{S_T1}, s{S_T1}, 7
s_add_u32 s{S_T0}, s{S_T0}, s{S_T1}
s_lshl_b32 s{S_T1}, s{S_WAVE}, 21
s_add_u32 s{S_T0}, s{S_T0}, s{S_T1}
v_add_u32 v{vD}, s{S_T0}, v{vD}
s_lshl_b32 s{S_T0}, s{S_TEAM}, 21
s_lshl_b32 s{S_T1}, s{S_J}, 7
s_add_u32 s{S_T0}, s{S_T0}, s{S_T1}
s_lshl_b32 s{S_T1}, s{S_WAVE}, 19
s_add_u32 s{S_T0}, s{S_T0}, s{S_T1}
v_add_u32 v{vD2}, s{S_T0}, v{vD2}
s_lshl_b32 s{S_T2}, s{S_WAVE}, 15
s_add_u32 s{S_T2}, s{S_T2}, {L_W:#x}""")
    for dst, bits in ((vWT, ((5, 11), (3, 10), (4, 9), (2, 7))), (vWT + 1, ((3, 12), (4, 11), (5, 9), (2, 7)))):
        a(f"v_and_b32 v{vT}, 3, v{vLANE}\nv_lshlrev_b32 v{dst}, 3, v{vT}")
        for b, sh in bits:
            a(f"v_bfe_u32 v{vT}, v{vLANE}, {b}, 1\nv_lshl_add_u32 v{dst}, v{vT}, {sh}, v{dst}")
        a(f"v_add_u32 v{dst}, s{S_T2}, v{dst}")
    units = [(m, f) for m in range(3) for f in range(4)]
    def issue(n):
        m, f = units[n]
        sr_, vo, pl = ((84, vD, 13), (S_W0, vD, 13), (S_W1, vD2, 11))[m]
        for i in range(8):
            a(f"s_add_u32 m0, s{S_T2}, {(n % 4) * 8192 + i * 1024}")
            a(f"s_mov_b32 s{S_T4}, {(f * 64 + i * 8) << pl:#x}")
            a(f"buffer_load_dwordx4 v{vo}, s[{sr_}:{sr_+3}], s{S_T4} offen lds")
    for n in range(4): issue(n)
    for n in range(12):
        m, f = units[n]
        a(f"s_waitcnt vmcnt({8 * min(3, 11 - n)})")
        for ct in range(4):
            k, b = (("a", 0), ("v", WV), ("a", 128))[m]
            for v in range(4):
                ro = (32 * (v // 2) + 2 * (v % 2)) if m < 2 else (8 * (v // 2) + 2 * (v % 2))
                a(f"ds_read_b64_tr_b16 {vr(b+(f*4+ct)*8+2*v,2,k)}, v{vWT + (m == 2)} offset:{(n % 4) * 8192 + ro * 128 + ct * 32}")
            if ct == 2: a("s_waitcnt lgkmcnt(4)")
        a("s_waitcnt lgkmcnt(0)")
        if n + 4 < 12: issue(n + 4)
        if n == 3: sstamp(a, 6, cfg)
    a(f"""s_lshl_b32 s{S_T0}, s{S_WAVE}, 12
v_add_u32 v{vGOFF}, s{S_T0}, v{vL16}""")
    idx_reg(a, vIDX, vLANE, vT)
    a(f"""v_and_b32 v{vT}, 31, v{vLANE}
v_lshlrev_b32 v{vVMO}, 4, v{vT}
v_lshrrev_b32 v{vT}, 5, v{vLANE}
v_lshl_add_u32 v{vVMO}, v{vT}, 2, v{vVMO}
s_lshr_b32 s{S_T0}, s{S_WAVE}, 1
s_lshl_b32 s{S_T0}, s{S_T0}, 9
s_and_b32 s{S_T1}, s{S_WAVE}, 1
s_lshl_b32 s{S_T1}, s{S_T1}, 3
s_add_u32 s{S_T0}, s{S_T0}, s{S_T1}
v_add_u32 v{vVMO}, s{S_T0}, v{vVMO}
s_lshl_b32 s{S_T0}, s{S_TEAM}, 14
v_add_u32 v{vOMO}, s{S_T0}, v{vGOFF}""")
    a(f"""s_lshl_b32 s{S_T0}, s{S_WAVE}, 11
v_add_u32 v{vRW}, s{S_T0}, v{vL4}""")
    a(f"""v_bfe_u32 v{vT}, v{vLANE}, 2, 2
v_lshlrev_b32 v{vRR}, 9, v{vT}
v_bfe_u32 v{vT}, v{vLANE}, 2, 1
v_lshl_add_u32 v{vRR}, v{vT}, 5, v{vRR}
v_bfe_u32 v{vT}, v{vLANE}, 3, 1
v_lshl_add_u32 v{vRR}, v{vT}, 7, v{vRR}
v_bfe_u32 v{vT}, v{vLANE}, 4, 1
v_lshl_add_u32 v{vRR}, v{vT}, 6, v{vRR}
v_lshrrev_b32 v{vT}, 5, v{vLANE}
v_lshl_add_u32 v{vRR}, v{vT}, 5, v{vRR}
v_and_b32 v{vT}, 3, v{vLANE}
v_lshl_add_u32 v{vRR}, v{vT}, 3, v{vRR}
s_lshr_b32 s{S_T0}, s{S_WAVE}, 1
s_lshl_b32 s{S_T0}, s{S_T0}, 11
s_and_b32 s{S_T1}, s{S_WAVE}, 1
s_lshl_b32 s{S_T1}, s{S_T1}, 7
s_add_u32 s{S_T0}, s{S_T0}, s{S_T1}
v_add_u32 v{vRR}, s{S_T0}, v{vRR}""")
    a(f"""v_and_b32 v{vT}, 31, v{vLANE}
v_lshlrev_b32 v{vRV}, 2, v{vT}
v_lshrrev_b32 v{vT}, 5, v{vLANE}
v_lshl_add_u32 v{vRV}, v{vT}, 10, v{vRV}
v_add_u32 v{vRV}, s{S_T0}, v{vRV}""")
    a(f"""v_bfe_u32 v{vT}, v{vLANE}, 2, 3
v_lshlrev_b32 v{vKO}, 4, v{vT}
v_lshrrev_b32 v{vT}, 5, v{vLANE}
v_lshl_add_u32 v{vKO}, v{vT}, 8, v{vKO}
v_bfe_u32 v{vT}, v{vLANE}, 1, 1
v_lshl_add_u32 v{vKO}, v{vT}, 7, v{vKO}
v_and_b32 v{vT}, 1, v{vLANE}
v_lshl_add_u32 v{vKO}, v{vT}, 2, v{vKO}
s_lshr_b32 s{S_T0}, s{S_WAVE}, 1
s_lshl_b32 s{S_T0}, s{S_T0}, 9
s_and_b32 s{S_T1}, s{S_WAVE}, 1
s_lshl_b32 s{S_T1}, s{S_T1}, 3
s_add_u32 s{S_T0}, s{S_T0}, s{S_T1}
v_add_u32 v{vKO}, s{S_T0}, v{vKO}""")
    a(f"""v_lshlrev_b32 v{vPO}, 3, v{vLANE}
s_lshl_b32 s{S_T0}, s{S_WAVE}, 9
v_add_u32 v{vPO}, s{S_T0}, v{vPO}
s_lshl_b32 s{S_T0}, s{S_WAVE}, 8
v_add_u32 v{vMO}, s{S_T0}, v{vL4}
v_add_u32 v{vI16}, s{S_T0}, v{vL16}""")
    M0R = RP
    a(f"""v_bfe_u32 v{vT}, v{vLANE}, 2, 3
v_lshlrev_b32 v{vT2}, 11, v{vT}
v_lshrrev_b32 v{vT}, 5, v{vLANE}
v_lshl_add_u32 v{vT2}, v{vT}, 4, v{vT2}
v_and_b32 v{vT}, 3, v{vLANE}
v_lshl_add_u32 v{vT2}, v{vT}, 2, v{vT2}
s_lshl_b32 s{S_T0}, s{S_J}, 7
s_lshl_b32 s{S_T1}, s{S_WAVE}, 5
s_add_u32 s{S_T0}, s{S_T0}, s{S_T1}
buffer_load_dword v{M0R}, v{vT2}, s[{S_W2}:{S_W2+3}], s{S_T0} offen
s_waitcnt vmcnt(0)""")
    sstamp(a, 7, cfg)
    a("s_waitcnt lgkmcnt(0)")
    startup_barrier(a, MI + 2)
    def keep32():
        a(f"v_mfma_f32_32x32x16_bf16 {vr(QF,16)}, {vr(SENT,4)}, {vr(SENT,4)}, {vr(QF,16)}")
    L_K = L_W

    def epi(AC, lbase, pad, keep, tag):
        sw = lambda p, r: f"v_permlane32_swap_b32 v{AC+8*p+r}, v{AC+8*p+4+r}"
        ad = lambda p, r: f"v_add_f32 v{AC+8*p+r}, v{AC+8*p+r}, v{AC+8*p+4+r}"
        wr = lambda p, r: f"ds_write_addtid_b32 v{AC+8*p+r} offset:{lbase + (p*4+r)*512 + (pad and (r % 2) * 32 + (r // 2) * 128)}"
        for r in range(4): a(sw(0, r))
        for r in range(4): a(ad(0, r))
        for r in range(4):
            a(sw(1, r)); a(wr(0, r))
        for r in range(4): a(ad(1, r))
        keep(0)
        for r in range(4): a(wr(1, r))
        probe(a, tag + "w", cfg)
        keep(1)
        a("s_waitcnt lgkmcnt(0)\ns_barrier")
        probe(a, tag + "b", cfg)

    def sum4(reads, keep):
        a(reads[0]); a(reads[1]); keep(2); a(reads[2]); a(reads[3]); keep(3)
        a("s_waitcnt lgkmcnt(2)")
        a(f"v_add_f32 v{RD}, v{RD}, v{RD+2}\nv_add_f32 v{RD+1}, v{RD+1}, v{RD+3}")
        a("s_waitcnt lgkmcnt(0)")
        a(f"v_add_f32 v{RD+4}, v{RD+4}, v{RD+6}\nv_add_f32 v{RD+5}, v{RD+5}, v{RD+7}")
        a(f"v_add_f32 v{RD}, v{RD}, v{RD+4}\nv_add_f32 v{RD+1}, v{RD+1}, v{RD+5}")

    def kpoll(loads, F, wbase, stamp_idx, o):
        def mm(f, ct):
            a(f"v_smfmac_f32_16x16x64_bf16 {vr(ACC+4*ct,4)}, {vr(F+4*f,4)}, {ar(wbase+(f*4+ct)*8,8)}, v{vIDX}")
        if o.get("pre", 0): a.fill(o["pre"])
        def consume(g, k, chk):
            for ct in range(4):
                mm(g, ct)
                if chk: a(chk[ct])
        ring_poll2(a, loads, [F + 4 * f for f in range(4)], vT, consume, a.uid("kj"), space=o.get("space", 4), on_first=lambda: stamp(a, stamp_idx, cfg), rfill=o.get("rfill", 3))

    a(f"""s_bcnt1_i32_b32 s{S_T0}, s{S_NEAR}
s_cmp_ge_u32 s{S_T0}, 4
s_cselect_b32 s{S_T0}, 0x2000, 0
s_add_u32 s{S_OFF_F}, s{S_OFF_F}, s{S_T0}
s_lshl_b32 m0, s{S_WAVE}, 12
s_barrier""")
    a.set_filler(vD)
    store_mode(a, f"buffer_store_dword v{M0R}, v{vMO}, {WS}, s{S_OFF_E} offen")
    a(f"s_mov_b32 s{S_STEP}, 0")
    for i in range(32): a(f"v_mov_b32 v{ACC+i}, 0")
    for i in range(16): a(f"v_mov_b32 v{G+i}, -1")

    a.label("V_loop")
    stamp(a, 0, cfg)
    a(f"s_add_u32 s85, s{S_OFF_B}, {WS_KM:#x}\ns_add_u32 s86, s{S_OFF_B}, {WS_VM:#x}")
    kpoll([f"buffer_load_dwordx4 {vr(G+4*i,4)}, v{vGOFF}, {WS}, s{S_OFF_A} offen offset:{1024*i} sc1" for i in range(4)], G, 0, 1, cfg.get("v_mem", {}))
    vq = [(f, ct) for f in range(4) for ct in range(4)]
    def vm_(n):
        for _ in range(min(n, len(vq))):
            f, ct = vq.pop(0)
            a(f"v_smfmac_f32_16x16x64_bf16 {vr(ACC2+4*ct,4)}, {vr(G+4*f,4)}, {vr(WV+(f*4+ct)*8,8)}, v{vIDX}")
    nk = cfg.get("vk", (1, 3, 1, 3))
    epi(ACC, L_K, 1, lambda k: vm_(nk[k]), "kk")
    a(f"s_cmp_eq_u32 s{S_MODE}, 1")
    sum4([f"ds_read_b64 {vr(RD+2*src,2)}, v{vRR} offset:{L_K + src*4096}" for src in range(4)], lambda k: vm_(nk[k]))
    a(f"v_cvt_pk_bf16_f32 v{MI}, v{RD}, v{RD+1}")
    store_mode2(a, f"buffer_store_dword v{MI}, v{vKO}, {WS}, s85 offen")
    stamp(a, 6, cfg)
    vm_(16)
    epi(ACC2, L_MEM, 0, lambda k: keep32(), "kv")
    sum4([f"ds_read2st64_b32 {vr(RD+2*src,2)}, v{vRV} offset0:{(L_MEM + src*4096)//256} offset1:{(L_MEM + src*4096)//256 + 2}" for src in range(4)], lambda k: keep32())
    a(f"v_cvt_pk_bf16_f32 v{MI+1}, v{RD}, v{RD+1}")
    store_mode2(a, f"buffer_store_dword v{MI+1}, v{vVMO}, {WS}, s86 offen")
    stamp(a, 2, cfg)
    if "post_vm" in hooks: hooks["post_vm"](MI + 2)
    a(f"""s_cmp_eq_u32 s{S_STEP}, {NSEG-1}
s_cbranch_scc1 L_done""")
    a("s_waitcnt vmcnt(2)")
    for i in range(32): a(f"v_mov_b32 v{ACC+i}, 0")
    for i in range(16): a(f"v_mov_b32 v{G+i}, -1\nv_mov_b32 v{OF+i}, -1")
    for i in range(6): a(f"v_mov_b32 v{RP+i}, -1")
    a(f"""s_and_b32 s88, s{S_STEP}, 7
s_lshl_b32 s88, s88, 16
s_add_u32 s88, s88, {WS_OM:#x}
s_mov_b32 s{S_PCUR}, s{S_OFF_F}""")
    for x in range(1, 4):
        a(f"s_xor_b32 s{S_T0+x}, s{S_PCUR}, {x << 16:#x}")
    if cfg.get("v_sleep"): a(f"s_sleep {cfg['v_sleep']}")
    kpoll([f"buffer_load_dwordx4 {vr(OF+4*f,4)}, v{vOMO}, {WS}, s88 offen offset:{1024*f} sc1" for f in range(4)], OF, 128, 3, cfg.get("v_om", {}))
    epi(ACC, L_RED, 1, lambda k: keep32(), "k3")
    sum4([f"ds_read_b64 {vr(RD+2*src,2)}, v{vRR} offset:{L_RED + src*4096}" for src in range(4)], lambda k: keep32())
    o = cfg.get("v_part", {})
    l3 = "\n".join(f"buffer_load_dwordx2 {vr(RP+2*(x-1),2)}, v{vPO}, {WS}, s{S_T0+x} offen sc1" for x in range(1, 4))
    a(f"buffer_store_dwordx2 {vr(RD,2)}, v{vPO}, {WS}, s{S_PCUR} offen sc1")
    stamp(a, 4, cfg)
    a(f"""s_add_u32 s{S_OFF_E}, s{S_OFF_E}, 0x4000
s_bitset0_b32 s{S_OFF_E}, 17
s_add_u32 s{S_OFF_A}, s{S_OFF_A}, 0x4000
s_bitset0_b32 s{S_OFF_A}, 17
s_add_u32 s{S_OFF_B}, s{S_OFF_B}, 0x10000
s_bitset0_b32 s{S_OFF_B}, 19
s_add_u32 s{S_OFF_F}, s{S_OFF_F}, 0x40000
s_bitset0_b32 s{S_OFF_F}, 21""")
    if o.get("presleep", 3): a(f"s_sleep {o.get('presleep', 3)}")
    for i in range(16): a(f"v_mov_b32 v{ACC+i}, 0")
    pp = SPoll(a, [l3], [list(range(RP, RP + 6))], vT, cap=o.get("cap", 30), sleep=o.get("sleep", 4), pre_sleep=o.get("pre", 12))
    pp.first(prefill=False)
    a(f"""s_cmp_eq_u32 s{S_MODE}, 1
v_pk_add_f32 {vr(RD,2)}, {vr(RD,2)}, {vr(RP,2)}
v_pk_add_f32 {vr(RD+2,2)}, {vr(RP+2,2)}, {vr(RP+4,2)}
v_pk_add_f32 {vr(RD,2)}, {vr(RD,2)}, {vr(RD+2,2)}
v_cvt_pk_bf16_f32 v{MI}, v{RD}, v{RD+1}""")
    store_mode2(a, f"buffer_store_dword v{MI}, v{vMO}, {WS}, s{S_OFF_E} offen")
    stamp(a, 5, cfg)
    stamp_flush(a, cfg)
    a(f"""s_add_u32 s{S_STEP}, s{S_STEP}, 1
s_branch V_loop""")
    a.flush_deferred()
    a.set_filler(None)
```

```python
from asmgen import *

G_SX = 16
G_SW = 20
G_XOFF, G_WOFF, G_WSTEP, G_CNT = 52, 53, 54, 55
G_NXOFF, G_NWOFF = 56, 57
G_NW0, G_NW1 = 58, 59
G_M0 = 82
G_NST = 83
G_TX, G_TW = 94, 95
G_ST = 96
G_MX, G_MW = 100, 101
G_PX, G_PW, G_XSTEP = 78, 79, 33
VL, VT1, VT2, VT3 = 0, 1, 2, 3
V_L16 = 4
XD, WD, XR, WR = 8, 16, 24, 26
XT, WT, TD = 34, 35, 36
V_ROW = 37
XF, WF = 64, 128
EP = 192
OOB = 0x7f000000


class Gemm:
    def __init__(self, MT, NT, NBUF, cfg=None):
        self.MT, self.NT, self.NBUF = MT, NT, NBUF
        self.cfg = cfg or {}
        self.XB = 32 * MT * 128
        self.WROW = 32 * NT * 2
        self.SB = self.XB + 64 * self.WROW
        assert self.SB * NBUF == 0x20000
        self.RPI = 1024 // self.WROW
        self.TLEAD = self.cfg.get("tlead", 3 if MT == 8 else 6)
        self.ND = MT + NT
        self.hooks = None
        self.touch = self.cfg.get('touch', False)
        self.NTCH = 1 if self.touch else 0
        self.chain = self.cfg.get('chain', False)

    def acc(self, mt, nt):
        return (mt * self.NT + nt) * 4

    def setup(self, a, s_wave, kperm, st0=36, st1=37, half=False):
        MT, NT, RPI, WROW = self.MT, self.NT, self.RPI, self.WROW
        lg = lambda x: x.bit_length() - 1
        a(f"""v_lshrrev_b32 v{VT1}, 3, v{VL}
v_and_b32 v{VT2}, 7, v{VL}
v_xor_b32 v{VT2}, v{VT2}, v{VT1}""")
        if half:
            a(f"""v_lshrrev_b32 v{VT3}, 2, v{VT2}
v_and_b32 v{VT2}, 3, v{VT2}
v_lshlrev_b32 v{VT2}, 4, v{VT2}
v_lshl_add_u32 v{VT2}, v{VT3}, 13, v{VT2}
v_add_u32 v{VT2}, 0x1000, v{VT2}""")
        else:
            a(f"v_lshlrev_b32 v{VT2}, 4, v{VT2}")
        a(f"""s_lshl_b32 s{st0}, s{s_wave}, {lg(8*MT)}
v_add_u32 v{VT1}, s{st0}, v{VT1}
v_mul_lo_u32 v{VT1}, v{VT1}, s{G_PX}
v_add_u32 v{XD}, v{VT1}, v{VT2}""")
        for i in range(1, MT):
            a(f"s_mul_i32 s{st0}, s{G_PX}, {8*i}\ns_sub_u32 s{st0}, s{st0}, {(i%4)*1024}\nv_add_u32 v{XD+i}, s{st0}, v{XD}")
        LPR = 64 // RPI
        a(f"""v_lshrrev_b32 v{VT1}, {lg(LPR)}, v{VL}
s_lshl_b32 s{st0}, s{s_wave}, 4
v_add_u32 v{VT2}, s{st0}, v{VT1}
v_mul_lo_u32 v{VT2}, v{VT2}, s{G_PW}
v_and_b32 v{VT3}, {LPR-1}, v{VL}
v_lshlrev_b32 v{VT3}, 4, v{VT3}
v_lshlrev_b32 v{VT1}, 5, v{VT1}
v_xor_b32 v{VT3}, v{VT3}, v{VT1}""")
        for i in range(NT):
            k = RPI * i
            f = k % 8 if kperm else (k % 4 + 4 * ((k // 8) % 2))
            a(f"v_xor_b32 v{VT1}, {f*32}, v{VT3}")
            a(f"s_mul_i32 s{st0}, s{G_PW}, {k}\ns_sub_u32 s{st0}, s{st0}, {(i%4)*1024}")
            a(f"v_add3_u32 v{WD+i}, v{VT2}, v{VT1}, s{st0}")
        a(f"""v_and_b32 v{VT1}, 15, v{VL}
v_lshlrev_b32 v{VT2}, 7, v{VT1}
v_and_b32 v{VT1}, 7, v{VL}
v_lshrrev_b32 v{VT3}, 4, v{VL}
v_xor_b32 v{VT1}, v{VT1}, v{VT3}
v_lshl_add_u32 v{VT2}, v{VT1}, 4, v{VT2}
s_lshr_b32 s{st0}, s{s_wave}, 1
s_lshl_b32 s{st0}, s{st0}, {lg(16*MT*128)}
v_add_u32 v{XR}, s{st0}, v{VT2}
v_xor_b32 v{XR+1}, 64, v{XR}""")
        a(f"""v_lshrrev_b32 v{VT1}, 4, v{VL}
v_lshlrev_b32 v{VT2}, {lg(WROW) + (2 if kperm else 3)}, v{VT1}
v_bfe_u32 v{VT3}, v{VL}, 2, 2
v_lshl_add_u32 v{VT2}, v{VT3}, {lg(WROW)}, v{VT2}
v_bfe_u32 v{VT3}, v{VL}, 2, 3
v_lshl_add_u32 v{VT2}, v{VT3}, 5, v{VT2}
v_and_b32 v{VT3}, 3, v{VL}
v_lshl_add_u32 v{VT2}, v{VT3}, 3, v{VT2}
s_and_b32 s{st0}, s{s_wave}, 1
s_lshl_b32 s{st0}, s{st0}, {lg(NT*32)}
v_xor_b32 v{VT2}, s{st0}, v{VT2}
v_add_u32 v{WR}, {self.XB:#x}, v{VT2}""")
        for nt in range(1, NT):
            a(f"v_xor_b32 v{WR+nt}, {nt*32}, v{WR}")
        a(f"""s_lshl_b32 s{G_WSTEP}, s{G_PW}, 6
s_mov_b32 s{G_M0}, 0
s_lshl_b32 s{G_MX}, s{s_wave}, {lg(MT*1024)}
s_lshl_b32 s{G_MW}, s{s_wave}, {lg(NT*1024)}
s_add_u32 s{G_MW}, s{G_MW}, {self.XB:#x}""")

    def dma_instrs(self, xflags, wflags):
        out = []
        for isx, n in ((True, self.MT), (False, self.NT)):
            for j in range(n):
                pre = ""
                if j == 0:
                    pre = f"s_add_u32 m0, s{G_M0}, s{G_MX if isx else G_MW}\n"
                elif j % 4 == 0:
                    pre = f"s_add_u32 m0, m0, 0x1000\n"
                srd, vo, so, fl = (G_SX, XD, G_XOFF, xflags) if isx else (G_SW, WD, G_WOFF, wflags)
                out.append(pre + f"buffer_load_dwordx4 v{vo+j}, s[{srd}:{srd+3}], s{so} offen offset:{(j%4)*1024} {fl} lds")
        return out

    def dma_advance(self):
        return f"""s_add_u32 s{G_XOFF}, s{G_XOFF}, s{G_XSTEP}
s_add_u32 s{G_WOFF}, s{G_WOFF}, s{G_WSTEP}
s_add_u32 s{G_M0}, s{G_M0}, {self.SB:#x}
s_and_b32 s{G_M0}, s{G_M0}, 0x1ffff"""

    def touch_setup(self, a, s_wave, sd):
        LR = self.WROW // 128
        lg = lambda x: x.bit_length() - 1
        lw, go = a.uid("tw"), a.uid("tg")
        a(f"""s_bfe_u32 s36, s{sd}, 0x80008
s_add_u32 s37, s36, 63
s_lshr_b32 s37, s37, 6
s_mov_b32 s{G_ST+3}, 0x20000
s_cmp_ge_u32 s{s_wave}, s37
s_cbranch_scc1 {lw}
s_lshl_b32 s37, s{s_wave}, 6
v_add_u32 v{VT1}, s37, v{VL}
v_cmp_gt_u32 vcc, s36, v{VT1}
s_and_b32 s36, s{sd}, 0xff
v_add_u32 v{VT1}, s36, v{VT1}
v_mul_lo_u32 v{XT}, v{VT1}, s{G_PX}
s_mov_b32 s{G_ST}, s{G_SX}
s_mov_b32 s{G_ST+1}, s{G_SX+1}
s_mov_b32 s{G_ST+2}, s{G_SX+2}
s_mov_b32 s{G_TX}, s{G_XOFF}
s_mov_b32 s{G_TW}, s{G_XSTEP}
s_branch {go}
{lw}:
s_sub_u32 s37, s{s_wave}, s37
s_lshl_b32 s37, s37, 6
v_add_u32 v{VT1}, s37, v{VL}
s_lshr_b32 s36, s{sd}, 24
v_cmp_gt_u32 vcc, s36, v{VT1}
s_bfe_u32 s36, s{sd}, 0x80010
v_add_u32 v{VT1}, s36, v{VT1}
v_lshrrev_b32 v{VT2}, {lg(LR)}, v{VT1}
v_mul_lo_u32 v{XT}, v{VT2}, s{G_PW}
v_and_b32 v{VT2}, {LR-1}, v{VT1}
v_lshl_add_u32 v{XT}, v{VT2}, 7, v{XT}
s_mov_b32 s{G_ST}, s{G_SW}
s_mov_b32 s{G_ST+1}, s{G_SW+1}
s_mov_b32 s{G_ST+2}, s{G_SW+2}
s_mov_b32 s{G_TX}, s{G_WOFF}
s_mov_b32 s{G_TW}, s{G_WSTEP}
{go}:
v_mov_b32 v{VT2}, {OOB:#x}
v_cndmask_b32 v{XT}, v{VT2}, v{XT}, vcc""")

    def touch_instrs(self, xflags):
        if not self.touch: return []
        return [f"buffer_load_dword v{TD}, v{XT}, s[{G_ST}:{G_ST+3}], s{G_TX} offen {xflags}\ns_add_u32 s{G_TX}, s{G_TX}, s{G_TW}"]

    def read_instrs(self, setid, h, kperm):
        xs = [f"ds_read_b128 {vr(XF+32*setid+4*mt,4)}, v{XR+h} offset:{mt*2048}" for mt in range(self.MT)]
        ws = []
        for nt in range(self.NT):
            for u in range(2):
                ws.append(f"ds_read_b64_tr_b16 {vr(WF+32*setid+4*nt+2*u,2)}, v{WR+nt} offset:{(32*h + (16 if kperm else 4)*u)*self.WROW}")
        return [xs[0]] + ws + xs[1:]

    def toggles(self):
        regs = list(range(XR, XR + 2)) + list(range(WR, WR + self.NT))
        if self.NBUF == 2:
            return [f"v_xor_b32 v{r}, 0x10000, v{r}" for r in regs]
        return [f"v_add_u32 v{r}, {self.SB:#x}, v{r}\nv_and_b32 v{r}, 0x1ffff, v{r}" for r in regs]

    def prologue(self, a, kperm, xflags="", wflags=""):
        if self.touch:
            for b in range(self.TLEAD):
                for t in self.touch_instrs(xflags): a(t)
        for b in range(self.NBUF):
            for g in self.dma_instrs(xflags, wflags): a(g)
            a(self.dma_advance())
            for t in self.touch_instrs(xflags): a(t)

    def prologue_wait(self, a, kperm):
        a(f"s_waitcnt vmcnt({(self.NBUF-1)*(self.ND+self.NTCH) + self.NTCH})\ns_barrier")
        if self.hooks and self.hooks.get("epi_first"): a(self.hooks["post_bar"]())
        for r in self.read_instrs(0, 0, kperm): a(r)

    def stage_body(self, a, orient, kperm, first, xflags, wflags):
        cfg, MT, NT = self.cfg, self.MT, self.NT
        H = MT * NT
        big = MT == 8
        bar = cfg.get("bar", 30 if big else 13)
        dgap = cfg.get("dgap", 4 if big else 2)
        vm_wait = min(63, (self.NBUF - 2) * (self.ND + self.NTCH) + self.NTCH)
        dma = self.dma_instrs(xflags, wflags)
        nrd = MT + 2 * NT
        for h in range(2):
            fill = {}
            def add(g, t): fill.setdefault(min(g, H - 1), []).append(t)
            rd = self.read_instrs(1 - h, 1 - h, kperm)
            for i, r in enumerate(rd): add(i, r)
            if h == 0:
                tg = self.toggles()
                if big:
                    for i, t in enumerate(tg): add(nrd + i, t)
                else:
                    add(1, tg[0])
                    for nt in range(NT): add(2 * nt + 3, tg[2 + nt])
                    add(nrd, tg[1])
                if first and self.hooks: add(bar, self.hooks["pre_bar"]())
                add(bar, f"s_waitcnt vmcnt({vm_wait}) lgkmcnt(0)\ns_barrier")
                if first and self.hooks: add(bar, self.hooks["post_bar"]())
                if not first and self.hooks: add(bar - 3, self.hooks["ticket"](2 if big else 5))
                add(bar - 1, f"""s_cmp_eq_u32 s{G_CNT}, {self.NBUF}
s_cselect_b32 s{G_XOFF}, s{G_NXOFF}, s{G_XOFF}
s_cselect_b32 s{G_WOFF}, s{G_NWOFF}, s{G_WOFF}""")
                if self.chain:
                    add(bar - 1, f"""s_cselect_b32 s{G_SW}, s{G_NW0}, s{G_SW}
s_cselect_b32 s{G_SW+1}, s{G_NW1}, s{G_SW+1}""")
            for i, d in enumerate(dma):
                g = bar + 1 + i * dgap - H * h
                if (0 <= g < H) or (h == 1 and g >= H): add(g, d)
            if h == 1:
                tg = max(0, bar + 1 + len(dma) * dgap - H)
                if self.touch:
                    add(tg, f"""s_cmp_eq_u32 s{G_CNT}, {self.NBUF + self.TLEAD}
s_cselect_b32 s{G_TX}, s{G_NXOFF}, s{G_TX}""")
                    for i, t in enumerate(self.touch_instrs(xflags)): add(tg + 1, t)
                adv = self.dma_advance().split("\n")
                last = (bar + 1 + (len(dma) - 1) * dgap - H)
                add(last + 1, "\n".join(adv[:2]))
                add(last + 2, "\n".join(adv[2:]))
                add(H - 1, f"s_sub_u32 s{G_CNT}, s{G_CNT}, 1")
            a("s_waitcnt lgkmcnt(0)")
            for mt in range(MT):
                for nt in range(NT):
                    X = vr(XF + 32 * h + 4 * mt, 4); W = vr(WF + 32 * h + 4 * nt, 4)
                    A, B = (W, X) if orient == "W" else (X, W)
                    C = "0" if (first and h == 0) else ar(self.acc(mt, nt), 4)
                    a(f"v_mfma_f32_16x16x32_bf16 {ar(self.acc(mt,nt),4)}, {A}, {B}, {C}")
                    for t in fill.get(mt * NT + nt, []): a(t)

    def tile(self, a, orient, kperm, xflags="", wflags=""):
        lp = a.uid("gl")
        a(f"s_mov_b32 s{G_CNT}, s{G_NST}")
        self.stage_body(a, orient, kperm, True, xflags, wflags)
        a.label(lp)
        self.stage_body(a, orient, kperm, False, xflags, wflags)
        a(f"s_cmp_lg_u32 s{G_CNT}, 0\ns_cbranch_scc1 {lp}")

    def pack_pair(self, a, t0, t1, dst, tmp, scale=None):
        for r in range(4):
            a(f"v_accvgpr_read_b32 v{tmp+r}, a{t0+r}")
        for r in range(4):
            a(f"v_accvgpr_read_b32 v{tmp+4+r}, a{t1+r}")
        if scale is not None:
            for r in range(0, 8, 2):
                a(f"v_pk_mul_f32 {vr(tmp+r,2)}, {vr(tmp+r,2)}, s[{scale}:{scale+1}]")
        for r in range(4):
            a(f"v_cvt_pk_bf16_f32 v{dst+r}, v{tmp+2*r}, v{tmp+2*r+1}")

    def epilogue(self, a, entries, srd, sbase, voff, flags="", scale=None, swap=False):
        entries = sorted(entries, key=lambda e: e[2])
        cur = None
        for n, (p0, p1, off) in enumerate(entries):
            win = off & ~0xfff
            if win != cur:
                a(f"s_add_u32 s36, s{sbase}, {win:#x}"); cur = win
            d = EP + 16 + 4 * (n % 8)
            self.pack_pair(a, self.acc(*p0), self.acc(*p1), d, EP + 8 * (n % 2), scale)
            if swap:
                a(f"v_permlane16_swap_b32 v{d}, v{d+2}\nv_permlane16_swap_b32 v{d+1}, v{d+3}")
            a(f"buffer_store_dwordx4 {vr(d,4)}, v{voff}, s[{srd}:{srd+3}], s36 offen offset:{off - win} {flags}")

    def ent_a_qk(self):
        return [((mt, 2*i), (mt, 2*i+1), (mt // 2) * (1 << 18) + (mt % 2) * 4096 + i * 1024) for mt in range(self.MT) for i in range(self.NT // 2)]
    def ent_a_v(self):
        return [((2*mp, nt), (2*mp+1, nt), mp * (1 << 18) + nt * 1024) for mp in range(self.MT // 2) for nt in range(self.NT)]
    def ent_b_qk(self):
        return [((mt, 2*i), (mt, 2*i+1), i * (1 << 17) + mt * 1024) for mt in range(self.MT) for i in range(self.NT // 2)]
    def ent_b_v(self):
        return [((2*mp, nt), (2*mp+1, nt), (nt // 2) * (1 << 17) + mp * 2048 + (nt % 2) * 1024) for mp in range(self.MT // 2) for nt in range(self.NT)]
    def ent_b_qk32(self):
        return [((mt, 2*i), (mt, 2*i+1), i * (1 << 17) + (mt // 2) * 2048 + (mt % 2) * 128) for mt in range(self.MT) for i in range(self.NT // 2)]
    def ent_b_v32(self):
        return [((2*mp, nt), (2*mp+1, nt), (nt // 2) * (1 << 17) + mp * 2048 + (nt % 2) * 256) for mp in range(self.MT // 2) for nt in range(self.NT)]
    def ent_row(self):
        return [((mt, 2*i), (mt, 2*i+1), mt * 16 * 4096 + i * 64) for mt in range(self.MT) for i in range(self.NT // 2)]


def row_voff(a):
    a(f"""v_and_b32 v{VT1}, 15, v{VL}
v_lshlrev_b32 v{V_ROW}, 12, v{VT1}
v_bfe_u32 v{VT1}, v{VL}, 4, 1
v_lshl_add_u32 v{V_ROW}, v{VT1}, 5, v{V_ROW}
v_lshrrev_b32 v{VT1}, 5, v{VL}
v_lshl_add_u32 v{V_ROW}, v{VT1}, 4, v{V_ROW}""")


def b32_voff(a, dst, qk):
    a(f"v_lshrrev_b32 v{VT1}, 4, v{VL}\nv_lshlrev_b32 v{dst}, 9, v{VT1}")
    if qk:
        a(f"""v_bfe_u32 v{VT1}, v{VL}, 3, 1
v_lshl_add_u32 v{dst}, v{VT1}, 8, v{dst}
v_and_b32 v{VT1}, 7, v{VL}""")
    else:
        a(f"v_and_b32 v{VT1}, 15, v{VL}")
    a(f"v_lshl_add_u32 v{dst}, v{VT1}, 4, v{dst}")
```

```python
from asmgen import *
from chain import budget_head
WS_OXF = 0x9000000


def tail_task(a, ws, sw, sout, s_wave, s_cs, s_unit, cnt_base, cfg):
    WS = f"s[{ws}:{ws+3}]"
    VL, L16, ZERO = 0, 4, 6
    vD, vT, vWT, vRW, vRR, vO = 8, 9, 10, 11, 12, 13
    ACC, RD, XR = 16, 32, 64
    NX = 48
    a(f"""v_lshrrev_b32 v{vT}, 2, v{VL}
v_lshlrev_b32 v{vD}, 11, v{vT}
v_and_b32 v{vT}, 3, v{VL}
v_lshl_add_u32 v{vD}, v{vT}, 4, v{vD}
s_lshl_b32 s36, s{s_wave}, 21
s_lshl_b32 s37, s{s_cs}, 6
s_add_u32 s36, s36, s37
s_lshl_b32 s38, s{s_wave}, 15
v_lshrrev_b32 v{vT}, 2, v{VL}
v_lshlrev_b32 v{vWT}, 6, v{vT}
v_and_b32 v{vT}, 3, v{VL}
v_lshl_add_u32 v{vWT}, v{vT}, 3, v{vWT}
v_add_u32 v{vWT}, s38, v{vWT}""")
    for rnd in range(2):
        for i in range(32):
            a(f"s_add_u32 m0, s38, {i*1024}")
            a(f"s_add_u32 s37, s36, {(rnd*512 + i*16) << 11:#x}")
            a(f"buffer_load_dwordx4 v{vD}, s[{sw}:{sw+3}], s37 offen lds")
        for k in range(16):
            a(f"s_waitcnt vmcnt({30 - 2*k})")
            for ct in range(2):
                for u in range(2):
                    a(f"ds_read_b64_tr_b16 {ar(((rnd*16+k)*2+ct)*4+2*u,2)}, v{vWT} offset:{(32*k+16*u)*64 + ct*32}")
            a("s_waitcnt lgkmcnt(8)")
        a("s_waitcnt lgkmcnt(0)")
    vTC = 14
    a(f"""s_lshl_b32 s36, s{s_wave}, 11
v_add_u32 v{vRW}, s36, v{L16}
s_and_b32 s37, s{s_wave}, 1
s_lshl_b32 s36, s37, 10
v_add_u32 v{vRR}, s36, v{L16}
v_and_b32 v{vT}, 15, v{VL}
v_lshlrev_b32 v{vO}, 12, v{vT}
v_lshrrev_b32 v{vT}, 4, v{VL}
v_lshl_add_u32 v{vO}, v{vT}, 3, v{vO}
s_lshl_b32 s36, s37, 5
s_lshl_b32 s37, s{s_cs}, 6
s_add_u32 s36, s36, s37
v_add_u32 v{vO}, s36, v{vO}
v_and_b32 v{vT}, {7 if cfg["tail_stride"] == 4 else 31}, v{VL}
v_lshlrev_b32 v{vTC}, {12 if cfg["tail_stride"] == 4 else 10}, v{vT}
s_and_b32 s36, s{s_cs}, {31 if cfg["tail_stride"] == 4 else 7}
s_lshl_b32 s36, s36, 7
v_add_u32 v{vTC}, s36, v{vTC}
s_barrier""")
    lp, dep, go, nf = a.uid("tl"), a.uid("tl"), a.uid("tl"), a.uid("tl")
    a.label(lp)
    a(f"""s_cmp_lg_u32 s{s_wave}, 0
s_cbranch_scc1 {go}
s_lshr_b32 s39, s{s_unit}, 1
s_lshl_b32 s39, s39, 7
s_add_u32 s39, s39, {cnt_base:#x}
{dep}:""")
    budget_head(a)
    a(f"""buffer_load_dword v{vT}, v{ZERO}, {WS}, s39 offen sc1
s_waitcnt vmcnt(0)
v_readfirstlane_b32 s36, v{vT}
s_nop 3
s_cmp_ge_u32 s36, 64
s_cbranch_scc1 {go}
s_sleep {cfg.get("tail_sleep", 4)}
s_branch {dep}
{go}:
s_barrier
s_lshl_b32 s38, s{s_unit}, 17
s_lshl_b32 s36, s{s_wave}, 15
s_add_u32 s38, s38, s36
s_add_u32 s38, s38, {WS_OXF:#x}""")
    if cfg.get("tail_touch", 1):
        a(f"buffer_load_dword v{vT}, v{vTC}, {WS}, s38 offen sc1")
        if cfg.get("tail_touch", 1) == 2: a("s_waitcnt vmcnt(0)")
    for i in range(32):
        if i % 4 == 0: a(f"s_add_u32 s37, s38, {i*1024:#x}")
        a(f"buffer_load_dwordx4 {vr(XR+4*i,4)}, v{L16}, {WS}, s37 offen offset:{(i%4)*1024} sc1")
    for ks in range(32):
        a(f"s_waitcnt vmcnt({31 - ks})")
        for ct in range(2):
            d = ACC + 4 * ct
            C = "0" if ks == 0 else vr(d, 4)
            a(f"v_mfma_f32_16x16x32_bf16 {vr(d,4)}, {ar((ks*2+ct)*4,4)}, {vr(XR+4*ks,4)}, {C}")
    for t in range(2):
        a(f"ds_write_b128 v{vRW}, {vr(ACC+4*t,4)} offset:{t*1024}")
    a(f"""s_waitcnt lgkmcnt(0)
s_barrier
s_cmp_ge_u32 s{s_wave}, 2
s_cbranch_scc1 {nf}""")
    for src in range(4):
        a(f"ds_read_b128 {vr(RD+4*src,4)}, v{vRR} offset:{src*2048}")
    a("s_waitcnt lgkmcnt(0)")
    for h in (0, 2):
        a(f"v_pk_add_f32 {vr(RD+h,2)}, {vr(RD+h,2)}, {vr(RD+4+h,2)}")
        a(f"v_pk_add_f32 {vr(RD+8+h,2)}, {vr(RD+8+h,2)}, {vr(RD+12+h,2)}")
        a(f"v_pk_add_f32 {vr(RD+h,2)}, {vr(RD+h,2)}, {vr(RD+8+h,2)}")
    a(f"""v_cvt_pk_bf16_f32 v{RD+4}, v{RD}, v{RD+1}
v_cvt_pk_bf16_f32 v{RD+5}, v{RD+2}, v{RD+3}
s_lshl_b32 s36, s{s_unit}, 16
buffer_store_dwordx2 {vr(RD+4,2)}, v{vO}, s[{sout}:{sout+3}], s36 offen
{nf}:
s_add_u32 s{s_unit}, s{s_unit}, {cfg["tail_stride"]}
s_cmp_lt_u32 s{s_unit}, 128
s_cbranch_scc1 {lp}""")
```

```python
import sys
from asmgen import *
from chain import *
from chain5 import s_cu, v_cu, DBG, WS, WS_CNT, wait_all_arrived
from gemm import *
from tail import tail_task
from battn import WS_QB, WS_KB, WS_VB, WS_OB
from battn2 import battn_task

PFX = "concat_heads__memory_aug_recurrent_mem_tr__mha_block__prompt"
NAME = PFX + "_kernel"
C_Q, C_TK, C_OVF = 32, 40, 42
C_QKV, C_BQKV, C_BAT, C_OXB, C_OXS = 0, 144, 148, 156, 168
NOSIG = 255
S_INIT = 47
T_MQKV, T_BQKV, T_BB, T_ATT, T_OB, T_OA, T_PF, T_TAIL = range(8)
L_TICKET = 0x20000
P_AX, P_WQ, P_WK, P_WV, P_WO, P_BX, P_BW, P_BO = 60, 62, 64, 66, 68, 70, 72, 74
S_D0, S_D1, S_D2, S_GRP, S_P1, S_P2, S_TYP, S_MAT, S_EB = 84, 85, 86, 58, 59, 88, 89, 93, 92
S_TAB = 90
S_OUT = 24


def desc(typ, p1, p2, wait=None, sig=NOSIG):
    wi, wt = wait if wait else (NOSIG, 0)
    return (typ | p1 << 4 | p2 << 12, wi | wt << 8 | sig << 20)


def coop(tiles, n=256):
    out = []
    kx = lambda d: (d[0] & 15, (d[0] >> 4) & 255)
    kw = lambda d: (d[0] & 15, (d[0] >> 12) & 255)
    def share(d, key):
        grp = [t for t in tiles if key(t) == key(d)]
        if len(grp) == 1: return 0, 0
        i = grp.index(d)
        lo, hi = i * n // len(grp), (i + 1) * n // len(grp)
        return lo, hi - lo
    for d in tiles:
        xf, xc = share(d, kx); wf, wc = share(d, kw)
        assert (xc + 63) // 64 + (wc + 63) // 64 <= 4
        out.append(d + (xf | xc << 8 | wf << 16 | wc << 24,))
    return out


def ox_counter(blk):
    return (C_OXB + blk, 128) if blk < 12 else None


def schedule(cfg):
    L = [[] for _ in range(8)]
    def mq(rb, x):
        return [desc(T_MQKV, rb, mat * 32 + 8 * x + i, sig=C_QKV + rb * 16 + (8 * x + i) // 2) for i in range(8) for mat in (1, 2, 0)]
    def bq(mb, x):
        return [desc(T_BQKV, mb, mat * 16 + 4 * x + i, sig=C_QKV + (1 + mb) * 16 + 4 * x + i) for i in range(4) for mat in (1, 2, 0)]
    def bb(hg):
        return [desc(T_BB, mb, mat * 4 + hg, sig=C_BQKV + hg) for mat in (1, 2, 0) for mb in range(8)]
    def att(h):
        return [desc(T_ATT, h, qb, wait=(C_BQKV + h // 8, 24), sig=C_BAT + qb) for qb in range(8)]
    def ob(blk):
        return [desc(T_OB, blk, nb, wait=(C_BAT + blk // 2, 32)) for nb in range(8)]
    def oa(blk):
        if blk < 10: w = (C_OXB + blk, 256)
        else: w = (C_OXS + (blk - 10) * 4 + 3, 64)
        return [desc(T_OA, blk, nb, wait=w) for nb in range(8)]
    def bqr(mbs, x):
        cols = list(zip(*[bq(mb, x) for mb in mbs]))
        return [t for c in cols for t in c]
    def pf(mat, pat, off, rows=128):
        return (T_PF | mat << 4 | pat << 12, off, rows // 2)
    def slowcols(g, mats):
        return [pf(m, 0, (g * 1024 * 2048 + ln * 128) if m == 3 else (16 * g + ln) * 128) for m in mats for ln in (3, 11)]
    for g in range(4):
        L[g] += [pf(3, 1, (g * 1024 + k * 128) * 2048) for k in range(8)]
    t0 = cfg["tail_seg0"]
    nblk = t0 // 4
    def tail(cs, k): return desc(T_TAIL, cs, 2 * t0 + k)
    def attq(hg, qb):
        return [desc(T_ATT, 8 * hg + i, qb, wait=(C_BQKV + hg, 24), sig=C_BAT + qb) for i in range(8)]
    nsm = cfg.get("att_small", 3)
    for g in range(4):
        L[g] += coop(bq(1, g)[8:] + bq(2, g)[8:])
        for q in range(nsm): L[g] += attq(g, q)
    for x in range(4):
        l = L[4 + x]
        xpf = [pf(4, 1, k * 32 * 2048, 32) for k in range(8)]
        l += xpf + mq(0, x) + slowcols(x, (0, 1, 2)) + coop(bq(1, x)[:8]) + mq(1, x) + coop(bb(x)) + coop(bq(2, x)[:8]) + coop(bqr((3, 4), x))
        pools = {"A": [attq(x, q) for q in range(nsm, 8)], "B": [coop(bqr((5, 6), x))], "C": [coop(bq(7, x))],
                 "O": [oa(b) for b in range(x, nblk, 4)], "o": [ob(b) for b in range(x, 16, 4)]}
        for ch in cfg.get("order", "ABOAAOAACOoooo"):
            if pools[ch]: l += pools[ch].pop(0)
        assert not any(pools.values())
        l += [tail(i, x) for i in range(32)]
    return L


def worker(a, cfg):
    big = Gemm(8, 8, 2, dict({"touch": True}, **cfg.get("big", {})))
    med = Gemm(4, 4, 4, cfg.get("med", {}))
    lists = schedule(cfg)
    MAXL = max(len(l) for l in lists)
    a(f"""v_and_b32 v0, 63, v0
v_lshlrev_b32 v{V_L16}, 4, v0
s_load_dwordx2 s[{P_AX}:{P_AX+1}], s[0:1], 0
s_load_dwordx2 s[{P_WQ}:{P_WQ+1}], s[0:1], 16
s_load_dwordx4 s[{P_WK}:{P_WK+3}], s[0:1], 24
s_load_dwordx2 s[{P_WO}:{P_WO+1}], s[0:1], 40
s_load_dwordx2 s[{P_BX}:{P_BX+1}], s[0:1], 56
s_load_dwordx4 s[{P_BW}:{P_BW+3}], s[0:1], 64
s_getpc_b64 s[{S_TAB}:{S_TAB+1}]
W_pc:
s_add_u32 s{S_TAB}, s{S_TAB}, W_table-W_pc
s_addc_u32 s{S_TAB+1}, s{S_TAB+1}, 0
s_waitcnt lgkmcnt(0)""")
    for p in range(P_AX, P_BO + 2, 2): a(f"s_and_b32 s{p+1}, s{p+1}, 0xffff")
    srd(a, S_OUT, 80, 2048 * 4096)
    row_voff(a)
    a(f"""s_mov_b32 s{G_SX+3}, 0x20000
s_mov_b32 s{G_SW+3}, 0x20000
s_mov_b32 s{G_NXOFF}, {OOB:#x}
s_mov_b32 s{G_NWOFF}, {OOB:#x}
v_mov_b32 v5, {L_TICKET:#x}
v_mov_b32 v6, 0""")
    a(f"s_mov_b32 s{S_INIT}, 0")
    def init_check(vt):
        sk = a.uid("ic")
        a(f"s_cmp_eq_u32 s{S_INIT}, 1\ns_cbranch_scc1 {sk}")
        wait_all_arrived(a, vt, 37)
        a(f"s_mov_b32 s{S_INIT}, 1")
        a.label(sk)
    S_PE, S_PEB, S_PSIG, S_PC, S_TKQ, S_RET = 32, 31, 49, 50, 29, 3
    a(f"""s_mov_b32 s{S_PE}, 0
s_mov_b32 s{S_PSIG}, {NOSIG}
s_mov_b32 s{S_TKQ}, 0""")
    def ticket_ool(back):
        lb = a.uid("tk")
        a.defer(lambda: a(f"""{lb}:
s_mov_b32 s{S_TKQ}, 1
s_cmp_lg_u32 s{S_WAVE}, 0
s_cbranch_scc1 {back}
v_mov_b32 v7, 1
s_lshl_b32 s38, s{S_GRP}, 2
s_mov_b64 exec, 1
buffer_atomic_add v7, v6, {DBG}, s38 offen offset:{C_Q*4} sc0 sc1
s_mov_b64 exec, -1
s_branch {back}"""))
        return lb
    def h_ticket(cnt):
        back = a.uid("tb")
        return f"s_cmp_eq_u32 s{G_CNT}, {cnt}\ns_cbranch_scc1 {ticket_ool(back)}\n{back}:"
    def h_ticket_now():
        back = a.uid("tb")
        return f"s_cmp_eq_u32 s{S_TKQ}, 0\ns_cbranch_scc1 {ticket_ool(back)}\n{back}:"
    def h_pre_bar():
        sk = a.uid("pb")
        return f"s_cmp_eq_u32 s{S_PSIG}, {NOSIG}\ns_cbranch_scc1 {sk}\ns_waitcnt vmcnt(0)\n{sk}:"
    def h_post_bar():
        lb, back = a.uid("sg"), a.uid("sb")
        def ool():
            a(f"""{lb}:
s_lshl_b32 s38, s{S_PSIG}, 7
s_mov_b32 s{S_PSIG}, {NOSIG}
s_cmp_lg_u32 s{S_WAVE}, 0
s_cbranch_scc1 {back}""")
            init_check(248)
            a(f"""s_add_u32 s38, s38, {WS_CNT:#x}
v_mov_b32 v3, 1
s_mov_b64 exec, 1
buffer_atomic_add v3, v6, {WS}, s38 offen sc1
s_mov_b64 exec, -1
s_branch {back}""")
        a.defer(ool)
        return f"s_cmp_lg_u32 s{S_PSIG}, {NOSIG}\ns_cbranch_scc1 {lb}\n{back}:"
    hooks = {"ticket": h_ticket, "ticket_now": h_ticket_now, "pre_bar": h_pre_bar, "post_bar": h_post_bar, "epi_first": cfg.get("epi_first", 1)}
    big.hooks = med.hooks = hooks
    def run_pending(ret):
        a(f"s_mov_b32 s{S_RET}, {ret}\ns_cmp_lg_u32 s{S_PE}, 0\ns_cbranch_scc1 W_epi\nW_ret{ret}:")
    def flush():
        a("s_waitcnt vmcnt(0)\ns_barrier"); a(h_post_bar())

    a(f"""s_sub_u32 s37, s{S_J}, 24
s_cmp_lt_u32 s{S_GRP}, 4
s_cselect_b32 s36, s37, s{S_J}
s_cselect_b32 s{S_J}, 8, 32
s_branch W_have""")
    a.label("W_next")
    if cfg.get("wstamps"):
        sk = a.uid("ws")
        a(f"""s_cmp_lg_u32 s{S_WAVE}, 1
s_cbranch_scc1 {sk}
s_memrealtime s[44:45]
s_memtime s[80:81]
s_waitcnt lgkmcnt(0)
s_sub_u32 s80, s80, s76
v_mov_b32 v60, s40
v_mov_b32 v61, s42
v_mov_b32 v62, s44
v_mov_b32 v63, s80
s_lshl_b32 s36, s46, 4
s_add_u32 s36, s36, {0x8000000:#x}
s_mov_b64 exec, 1
buffer_store_dwordx4 v[60:63], v6, {WS}, s36 offen
s_mov_b64 exec, -1
{sk}:""")
    a(f"""s_lshr_b32 s{S_PSIG}, s{S_D1}, 20
s_mov_b32 s{S_TKQ}, 0
s_cmp_eq_u32 s{S_D0+3}, 0
s_cbranch_scc1 W_nu
s_waitcnt vmcnt(0)
W_nu:
s_cmp_lg_u32 s{S_WAVE}, 0
s_cbranch_scc1 W_tk
s_mov_b64 exec, 1
ds_write_b32 v5, v7
s_mov_b64 exec, -1
W_tk:
s_waitcnt lgkmcnt(0)
s_barrier
s_cmp_eq_u32 s{S_D0+3}, 0
s_cbranch_scc1 W_nu2""")
    a(h_post_bar())
    a(f"""W_nu2:
ds_read_b32 v1, v5
s_waitcnt lgkmcnt(0)
v_readfirstlane_b32 s36, v1
s_nop 3
s_add_u32 s36, s36, s{S_J}
W_have:
s_min_u32 s36, s36, {MAXL}
s_mul_i32 s37, s{S_GRP}, {MAXL+1}
s_add_u32 s36, s36, s37
s_lshl_b32 s36, s36, 4
s_load_dwordx4 s[{S_D0}:{S_D0+3}], s[{S_TAB}:{S_TAB+1}], s36
s_waitcnt lgkmcnt(0)
s_and_b32 s{S_TYP}, s{S_D0}, 15
s_bfe_u32 s{S_P1}, s{S_D0}, 0x80004
s_bfe_u32 s{S_P2}, s{S_D0}, 0x8000c""")
    if cfg.get("wstamps"):
        a(f"s_memrealtime s[40:41]\ns_lshr_b32 s46, s36, 4")
    a(f"""s_cmp_lt_u32 s{S_TYP}, {T_ATT}
s_cbranch_scc1 W_go""")
    a(f"""s_cmp_ge_u32 s{S_TYP}, {T_PF}
s_cbranch_scc1 W_slow
s_cmp_lg_u32 s{S_WAVE}, 0
s_cbranch_scc1 W_q2""")
    init_check(40)
    a(f"""s_and_b32 s39, s{S_D1}, 0xff
s_lshl_b32 s39, s39, 7
s_add_u32 s39, s39, {WS_CNT:#x}
buffer_load_dword v1, v6, {WS}, s39 offen sc1
s_waitcnt vmcnt(0)
s_mov_b64 exec, 1
ds_write_b32 v5, v1 offset:4
s_mov_b64 exec, -1
s_waitcnt lgkmcnt(0)
W_q2:
s_barrier
ds_read_b32 v1, v5 offset:4
s_bfe_u32 s38, s{S_D1}, 0xc0008
s_waitcnt lgkmcnt(0)
v_readfirstlane_b32 s36, v1
s_nop 3
s_cmp_ge_u32 s36, s38
s_cbranch_scc1 W_go
W_slow:""")
    run_pending(1)
    flush()
    a(f"""s_cmp_eq_u32 s{S_TYP}, 15
s_cbranch_scc1 L_done
s_cmp_eq_u32 s{S_TYP}, {T_PF}
s_cbranch_scc1 W_pf
s_cmp_eq_u32 s{S_TYP}, {T_TAIL}
s_cbranch_scc1 W_tail
s_cmp_lg_u32 s{S_WAVE}, 0
s_cbranch_scc1 W_go2""")
    init_check(200)
    a(f"""s_bfe_u32 s38, s{S_D1}, 0xc0008
s_and_b32 s39, s{S_D1}, 0xff
s_lshl_b32 s39, s39, 7
s_add_u32 s39, s39, {WS_CNT:#x}
W_dep:""")
    budget_head(a)
    a(f"""buffer_load_dword v1, v6, {WS}, s39 offen sc1
s_waitcnt vmcnt(0)
v_readfirstlane_b32 s36, v1
s_nop 3
s_cmp_ge_u32 s36, s38
s_cbranch_scc1 W_go2
s_sleep {cfg.get("dep_sleep", 16)}
s_branch W_dep
W_go2:
s_barrier
W_go:""")
    if cfg.get("wstamps"):
        a(f"s_memrealtime s[42:43]\ns_memtime s[76:77]\ns_waitcnt lgkmcnt(0)")
    a(f"""s_cmp_eq_u32 s{S_TYP}, {T_ATT}
s_cbranch_scc1 W_att
s_cmp_ge_u32 s{S_TYP}, {T_OB}
s_cbranch_scc1 W_out
s_mov_b32 s{G_NST}, 16
s_mov_b32 s{G_PX}, 2048
s_mov_b32 s{G_XSTEP}, 128
s_mov_b32 s{G_SX+2}, {2048*2048:#x}
s_cmp_eq_u32 s{S_TYP}, {T_BB}
s_cbranch_scc1 W_bb""")
    def sel_w():
        a(f"""s_mov_b32 s{G_SX}, s{P_AX}
s_mov_b32 s{G_SX+1}, s{P_AX+1}
s_cmp_eq_u32 s{S_MAT}, 1
s_cselect_b32 s{G_SW}, s{P_WK}, s{P_WQ}
s_cselect_b32 s{G_SW+1}, s{P_WK+1}, s{P_WQ+1}
s_cselect_b32 s36, {WS_KX:#x}, {WS_QX:#x}
s_cmp_eq_u32 s{S_MAT}, 2
s_cselect_b32 s{G_SW}, s{P_WV}, s{G_SW}
s_cselect_b32 s{G_SW+1}, s{P_WV+1}, s{G_SW+1}
s_cselect_b32 s36, {WS_VX:#x}, s36
s_add_u32 s{S_EB}, s{S_EB}, s36
s_mov_b32 s{G_SW+2}, {1024*8192:#x}
s_mov_b32 s{G_PW}, 8192""")
    a(f"""s_cmp_eq_u32 s{S_TYP}, {T_BQKV}
s_cbranch_scc1 W_abig""")
    a(f"""s_lshr_b32 s{S_MAT}, s{S_P2}, 5
s_and_b32 s38, s{S_P2}, 31
s_lshl_b32 s{G_XOFF}, s{S_P1}, 18
s_lshl_b32 s{G_WOFF}, s38, 8
s_lshl_b32 s36, s{S_P1}, 1
s_lshr_b32 s37, s{S_WAVE}, 1
s_add_u32 s36, s36, s37
s_lshl_b32 s{S_EB}, s36, 19
s_lshl_b32 s36, s38, 13
s_add_u32 s{S_EB}, s{S_EB}, s36
s_and_b32 s37, s{S_WAVE}, 1
s_cmp_eq_u32 s{S_MAT}, 2
s_cselect_b32 s36, 12, 11
s_lshl_b32 s37, s37, s36
s_add_u32 s{S_EB}, s{S_EB}, s37""")
    sel_w()
    def done(pe):
        a(f"""s_mov_b32 s{S_PE}, {pe}
s_mov_b32 s{S_PEB}, s{S_EB}
s_mov_b32 s{S_PC}, s{S_C}
s_mov_b32 s{S_PC+1}, s{S_C}
s_waitcnt vmcnt(0)""")
        if cfg.get("epi_first", 1): a(f"s_mov_b32 s{S_RET}, 6\ns_branch W_epi")
        else: a("s_branch W_next")
    med.setup(a, S_WAVE, False)
    med.prologue(a, False)
    run_pending(2)
    med.prologue_wait(a, False)
    a(f"s_cmp_eq_u32 s{S_MAT}, 2\ns_cbranch_scc1 W_mv")
    med.tile(a, "W", False); done(1)
    a.label("W_mv")
    med.tile(a, "X", False); done(2)
    a.label("W_abig")
    a(f"""s_lshr_b32 s{S_MAT}, s{S_P2}, 4
s_and_b32 s38, s{S_P2}, 15
s_lshl_b32 s{G_XOFF}, s{S_P1}, 19
s_lshl_b32 s{G_WOFF}, s38, 9
s_lshl_b32 s36, s{S_P1}, 1
s_lshr_b32 s37, s{S_WAVE}, 1
s_add_u32 s36, s36, s37
s_lshl_b32 s{S_EB}, s36, 20
s_lshl_b32 s36, s38, 1
s_and_b32 s37, s{S_WAVE}, 1
s_add_u32 s36, s36, s37
s_lshl_b32 s36, s36, 13
s_add_u32 s{S_EB}, s{S_EB}, s36""")
    sel_w()
    a("s_branch W_biggo")
    a.label("W_bb")
    cb = f32bits(32 ** -0.5 * LOG2E)
    a(f"""s_lshr_b32 s{S_MAT}, s{S_P2}, 2
s_lshl_b32 s{G_XOFF}, s{S_P1}, 19
s_lshl_b32 s{G_WOFF}, s{S_P2}, 9
s_and_b32 s36, s{S_P2}, 3
s_lshl_b32 s36, s36, 1
s_and_b32 s37, s{S_WAVE}, 1
s_add_u32 s36, s36, s37
s_lshl_b32 s{S_EB}, s36, 19
s_lshl_b32 s36, s{S_P1}, 1
s_lshr_b32 s37, s{S_WAVE}, 1
s_add_u32 s36, s36, s37
s_lshl_b32 s36, s36, 13
s_add_u32 s{S_EB}, s{S_EB}, s36
s_lshl_b32 s36, s{S_MAT}, 22
s_add_u32 s{S_EB}, s{S_EB}, s36
s_add_u32 s{S_EB}, s{S_EB}, {WS_QB:#x}
s_cmp_eq_u32 s{S_MAT}, 0
s_cselect_b32 s{S_C}, {cb:#x}, 1.0
s_mov_b32 s{S_C+1}, s{S_C}
s_mov_b32 s{G_SX}, s{P_BX}
s_mov_b32 s{G_SX+1}, s{P_BX+1}
s_mov_b32 s{G_SW}, s{P_BW}
s_mov_b32 s{G_SW+1}, s{P_BW+1}
s_mov_b32 s{G_SW+2}, {1024*6144:#x}
s_mov_b32 s{G_PW}, 6144""")
    a.label("W_biggo")
    big.setup(a, S_WAVE, False)
    if big.touch: big.touch_setup(a, S_WAVE, S_D2)
    big.prologue(a, False)
    run_pending(3)
    big.prologue_wait(a, False)
    a(f"s_cmp_eq_u32 s{S_MAT}, 2\ns_cbranch_scc1 W_bv")
    big.tile(a, "W", False)
    a(f"s_add_u32 s36, s{S_TYP}, 2"); done("s36")
    a.label("W_bv")
    big.tile(a, "X", False)
    a(f"s_add_u32 s36, s{S_TYP}, 4"); done("s36")
    a.label("W_out")
    a(f"""s_mov_b32 s{G_SX}, s{S_WS}
s_mov_b32 s{G_SX+1}, s{S_WS+1}
s_mov_b32 s{G_SX+2}, s{S_WS+2}
s_mov_b32 s{G_PX}, 64
s_mov_b32 s{G_PW}, 2048
s_mov_b32 s{G_XSTEP}, 0x4000
s_lshl_b32 s{G_WOFF}, s{S_P2}, 8
s_lshl_b32 s36, s{S_P1}, 1
s_lshr_b32 s37, s{S_WAVE}, 1
s_add_u32 s36, s36, s37
s_lshl_b32 s{S_EB}, s36, 18
s_lshl_b32 s36, s{S_P2}, 1
s_and_b32 s37, s{S_WAVE}, 1
s_add_u32 s36, s36, s37
s_lshl_b32 s36, s36, 7
s_add_u32 s{S_EB}, s{S_EB}, s36
s_cmp_eq_u32 s{S_TYP}, {T_OA}
s_cselect_b32 s{G_SW}, s{P_WO}, s{P_BO}
s_cselect_b32 s{G_SW+1}, s{P_WO+1}, s{P_BO+1}
s_mov_b32 s36, {1024*2048:#x}
s_cselect_b32 s{G_SW+2}, {4096*2048:#x}, s36
s_cselect_b32 s{G_NST}, 64, 16
s_cselect_b32 s36, 20, 18
s_mov_b32 s37, {WS_OB - 4096:#x}
s_cselect_b32 s37, {WS_OX - 4096:#x}, s37
s_cselect_b32 s38, 0, 2048
s_lshl_b32 s{G_XOFF}, s{S_P1}, s36
s_add_u32 s{G_XOFF}, s{G_XOFF}, s37
s_add_u32 s{S_EB}, s{S_EB}, s38""")
    med.setup(a, S_WAVE, True, half=True)
    med.prologue(a, True, "sc1")
    run_pending(4)
    med.prologue_wait(a, True)
    med.tile(a, "W", True, "sc1"); done(7)
    a.label("W_epi")
    for pe in range(1, 7): a(f"s_cmp_eq_u32 s{S_PE}, {pe}\ns_cbranch_scc1 W_epi{pe}")
    row_voff(a)
    med.epilogue(a, med.ent_row(), S_OUT, S_PEB, V_ROW, swap=True)
    a.label("W_epiend")
    a(f"""s_mov_b32 s{S_PE}, 0
s_cmp_eq_u32 s{S_RET}, 6
s_cbranch_scc1 W_next
s_cmp_eq_u32 s{S_RET}, 1
s_cbranch_scc1 W_ret1
s_cmp_eq_u32 s{S_RET}, 2
s_cbranch_scc1 W_ret2
s_cmp_eq_u32 s{S_RET}, 4
s_cbranch_scc1 W_ret4
s_cmp_eq_u32 s{S_RET}, 5
s_cbranch_scc1 W_ret5
s_branch W_ret3""")
    for pe, g_, ent, vo, sc_ in ((1, med, med.ent_a_qk(), None, None), (2, med, med.ent_a_v(), None, None), (3, big, big.ent_a_qk(), None, None),
                                 (4, big, big.ent_b_qk32(), True, S_PC), (5, big, big.ent_a_v(), None, None), (6, big, big.ent_b_v32(), False, None)):
        a.label(f"W_epi{pe}")
        if vo is not None: b32_voff(a, 38, vo)
        g_.epilogue(a, ent, S_WS, S_PEB, V_L16 if vo is None else 38, "sc1", scale=sc_)
        a("s_branch W_epiend")
    a.label("W_pf")
    a(f"""s_cmp_eq_u32 s{S_P1}, 1
s_cselect_b32 s{G_SW}, s{P_WK}, s{P_WQ}
s_cselect_b32 s{G_SW+1}, s{P_WK+1}, s{P_WQ+1}
s_cmp_eq_u32 s{S_P1}, 2
s_cselect_b32 s{G_SW}, s{P_WV}, s{G_SW}
s_cselect_b32 s{G_SW+1}, s{P_WV+1}, s{G_SW+1}
s_cmp_eq_u32 s{S_P1}, 3
s_cselect_b32 s{G_SW}, s{P_WO}, s{G_SW}
s_cselect_b32 s{G_SW+1}, s{P_WO+1}, s{G_SW+1}
s_cselect_b32 s38, 11, 13
s_mov_b32 s{G_SW+2}, {1024*8192:#x}
s_cmp_eq_u32 s{S_P1}, 4
s_cselect_b32 s{G_SW}, s{P_AX}, s{G_SW}
s_cselect_b32 s{G_SW+1}, s{P_AX+1}, s{G_SW+1}
s_cselect_b32 s{G_SW+2}, {2048*2048:#x}, s{G_SW+2}
s_cselect_b32 s38, 11, s38
s_cmp_eq_u32 s{S_P2}, 1
s_cbranch_scc1 W_pf1
v_lshrrev_b32 v1, 3, v0
s_lshl_b32 s36, s{S_WAVE}, 3
v_add_u32 v1, s36, v1
v_lshlrev_b32 v1, s38, v1
v_and_b32 v2, 7, v0
v_lshl_add_u32 v1, v2, 4, v1
s_lshl_b32 s37, 32, s38
s_mov_b32 s39, 32
s_branch W_pfgo
W_pf1:
s_lshr_b32 s36, s{S_WAVE}, 1
s_lshl_b32 s36, s36, s38
s_and_b32 s37, s{S_WAVE}, 1
s_lshl_b32 s37, s37, 10
s_add_u32 s36, s36, s37
v_add_u32 v1, s36, v{V_L16}
s_lshl_b32 s37, 2, s38
s_mov_b32 s39, s{S_D2}
W_pfgo:
s_mov_b32 s36, s{S_D1}
W_pfl:
buffer_load_dwordx4 v[64:67], v1, s[{G_SW}:{G_SW+3}], s36 offen
s_add_u32 s36, s36, s37
s_waitcnt vmcnt(48)
s_sub_u32 s39, s39, 1
s_cmp_lg_u32 s39, 0
s_cbranch_scc1 W_pfl
s_mov_b32 s{S_D1}, {NOSIG << 20:#x}""")
    if cfg.get("wstamps"):
        a("s_waitcnt lgkmcnt(0)\ns_mov_b32 s42, s40")
    a(h_ticket_now())
    a("s_waitcnt vmcnt(0)\ns_branch W_next")
    a.label("W_tail")
    if cfg.get("wstamps"):
        a("s_waitcnt lgkmcnt(0)\ns_mov_b32 s42, s40")
    init_check(200)
    a(f"""s_mov_b32 s{G_SW}, s{P_WO}
s_mov_b32 s{G_SW+1}, s{P_WO+1}
s_mov_b32 s{G_SW+2}, {4096*2048:#x}""")
    tail_task(a, S_WS, G_SW, S_OUT, S_WAVE, S_P1, S_P2, WS_CNT + (C_OXS - 40) * 128, cfg)
    a(h_ticket_now())
    a("s_waitcnt vmcnt(0)\ns_branch W_next")
    a.label("W_att")
    run_pending(5)
    battn_task(a, S_WS, S_WAVE, S_P1, S_P2, cfg, "sc1", "sc1", hooks)
    a(f"s_mov_b32 s{G_NXOFF}, {OOB:#x}\ns_mov_b32 s{G_NWOFF}, {OOB:#x}")
    a("s_waitcnt vmcnt(4)\ns_branch W_next")
    a.flush_deferred()
    def urgent(d):
        t, p1 = d[0] & 15, (d[0] >> 4) & 255
        return t in (T_MQKV, T_BB) or (t == T_BQKV and p1 in cfg.get("urgent_blocks", (1, 2, 3)))
    tab = []
    for l in lists:
        l = l + [(15, 0)] * (MAXL + 1 - len(l))
        tab += [f".long {d[0]:#x}, {d[1]:#x}, {d[2] if len(d) > 2 else 0:#x}, {int(urgent(d))}" for d in l]
    return tab


def chain_hooks(a):
    def wait_x(vt):
        sk, lp = a.uid("wx"), a.uid("wx")
        a(f"""s_cmp_ge_u32 s{S_T0}, {NSEG}
s_cbranch_scc1 {sk}
s_cmp_lt_u32 s{S_T0}, 8
s_cselect_b32 s{S_T1}, 3, 7
s_and_b32 s{S_T1}, s{S_T0}, s{S_T1}
s_cmp_lg_u32 s{S_T1}, 0
s_cbranch_scc1 {sk}
s_lshr_b32 s{S_T1}, s{S_T0}, 3
s_add_u32 s{S_T1}, s{S_T1}, 1
s_lshr_b32 s{S_T2}, s{S_T0}, 2
s_cmp_lt_u32 s{S_T0}, 8
s_cselect_b32 s{S_T1}, s{S_T2}, s{S_T1}
s_cselect_b32 s{S_T2}, 6, 3
s_lshl_b32 s{S_T1}, s{S_T1}, 4
s_lshr_b32 s{S_T3}, s{S_HEAD}, 1
s_add_u32 s{S_T1}, s{S_T1}, s{S_T3}
s_lshl_b32 s{S_T1}, s{S_T1}, 7
s_add_u32 s{S_T1}, s{S_T1}, {WS_CNT + C_QKV*128:#x}
{lp}:""")
        budget_head(a)
        a(f"""v_mov_b32 v{vt}, 0
buffer_load_dword v{vt}, v{vt}, {WS}, s{S_T1} offen sc1
s_waitcnt vmcnt(0)
v_readfirstlane_b32 s{S_T3}, v{vt}
s_nop 3
s_cmp_ge_u32 s{S_T3}, s{S_T2}
s_cbranch_scc1 {sk}
s_sleep 4
s_branch {lp}
{sk}:""")
    def signal(vt, seg_sgpr, n=1):
        a(f"""s_lshr_b32 s{S_T1}, s{seg_sgpr}, 2
s_add_u32 s{S_T1}, s{S_T1}, {C_OXB}
s_add_u32 s{S_T2}, s{seg_sgpr}, {C_OXS - 40}
s_cmp_lt_u32 s{seg_sgpr}, 40
s_cselect_b32 s{S_T1}, s{S_T1}, s{S_T2}
s_lshl_b32 s{S_T1}, s{S_T1}, 7
s_add_u32 s{S_T1}, s{S_T1}, {WS_CNT:#x}
v_mov_b32 v{vt}, {n}
v_mov_b32 v{vt+1}, 0
s_mov_b64 exec, 1
buffer_atomic_add v{vt}, v{vt+1}, {WS}, s{S_T1} offen sc1
s_mov_b64 exec, -1""")
    def post_om(vt):
        sk = a.uid("po")
        a(f"""s_cmp_lg_u32 s{S_WAVE}, 0
s_cbranch_scc1 {sk}
s_cmp_lg_u32 s{S_STEP}, {NSEG-1}
s_cbranch_scc1 {sk}
s_mov_b32 s{S_T0}, {NSEG-2}""")
        signal(vt, S_T0, 2)
        a.label(sk)
        sk = a.uid("po")
        a(f"""s_lshl_b32 s{S_T0}, s{S_HEAD}, 2
s_add_u32 s{S_T0}, s{S_T0}, s{S_WAVE}
s_cmp_lg_u32 s{S_T0}, 3
s_cbranch_scc1 {sk}
s_cmp_lt_u32 s{S_STEP}, 2
s_cbranch_scc1 {sk}
s_sub_u32 s{S_T0}, s{S_STEP}, 2""")
        signal(vt, S_T0, 64)
        a.label(sk)
    return {"wait_x": wait_x, "post_om": post_om, "exit": "S_exit"}, {}, signal


def role_ticket(a, cfg):
    a(f"""v_mov_b32 v2, 0
s_cmp_lg_u32 s{S_WAVE}, 0
s_cbranch_scc1 R_join
s_getreg_b32 s36, hwreg(HW_REG_XCC_ID)
s_and_b32 s36, s36, {cfg.get("xcc_mask", 7)}
s_and_b32 s37, s36, 3
s_lshl_b32 s37, s37, 3
s_lshl_b32 s38, 1, s37
s_and_b32 s39, s36, 4
v_mov_b32 v3, s38
s_mov_b64 exec, 1
buffer_atomic_add v3, v2, {DBG}, s39 offen offset:{C_TK*4} sc0 sc1
s_waitcnt vmcnt(0)
v_readfirstlane_b32 s38, v3
s_nop 3
s_lshr_b32 s38, s38, s37
s_and_b32 s38, s38, 0xff
s_cmp_lt_u32 s38, 32
s_cbranch_scc1 R_have
v_mov_b32 v3, 1
buffer_atomic_add v3, v2, {DBG}, 0 offen offset:{C_OVF*4} sc0 sc1
s_waitcnt vmcnt(0)
v_readfirstlane_b32 s40, v3
R_wait:""")
    budget_head(a)
    a(f"""s_sleep 8
buffer_load_dword v4, v2, {DBG}, 0 offen offset:{C_TK*4} sc1
buffer_load_dword v5, v2, {DBG}, 0 offen offset:{C_TK*4+4} sc1
s_waitcnt vmcnt(0)
v_readfirstlane_b32 s42, v4
v_readfirstlane_b32 s43, v5
s_nop 3
s_mov_b32 s41, 0""")
    for x in range(8):
        a(f"s_bfe_u32 s37, s{42 + x // 4}, {(8 << 16) | (8 * (x % 4)):#x}\ns_add_u32 s41, s41, s37")
    a("""s_cmp_lt_u32 s41, 256
s_cbranch_scc1 R_wait""")
    for x in range(8):
        a(f"""s_bfe_u32 s37, s{42 + x // 4}, {(8 << 16) | (8 * (x % 4)):#x}
s_min_u32 s37, s37, 32
s_mov_b32 s36, {x}
s_add_u32 s38, s37, s40
s_cmp_lt_u32 s38, 32
s_cbranch_scc1 R_have
s_sub_u32 s40, s38, 32""")
    a(f"""s_mov_b32 s38, 0x1000
R_have:
s_lshl_b32 s38, s38, 3
s_add_u32 s38, s38, s36
v_mov_b32 v3, s38
ds_write_b32 v2, v3
s_mov_b64 exec, -1
s_waitcnt lgkmcnt(0)
R_join:
s_barrier
ds_read_b32 v3, v2
s_waitcnt lgkmcnt(0)
v_readfirstlane_b32 s2, v3
s_nop 3
s_cmp_ge_u32 s2, 256
s_cbranch_scc1 L_fail
s_barrier""")


def gen(cfg):
    cfg.setdefault("tail_seg0", 44)
    cfg.setdefault("tail_stride", 4)
    a = Asm()
    a(f"""s_cmp_ge_u32 s2, 256
s_cbranch_scc1 L_done
v_lshrrev_b32 v1, 6, v0
v_readfirstlane_b32 s{S_WAVE}, v1""")
    srd(a, S_WS, 96, WS_SIZE)
    srd(a, S_DBG, 88, 256)
    a(f"s_mov_b32 s{S_BUDGET}, {POLL_BUDGET}")
    if not cfg.get("static_roles"): role_ticket(a, cfg)
    a(f"""s_and_b32 s{S_TEAM}, s2, 7
s_mov_b32 s{S_GRP}, s{S_TEAM}
s_lshr_b32 s{S_J}, s2, 3
s_mov_b32 s{S_MODE}, 0
s_cmp_ge_u32 s{S_TEAM}, {NT}
s_cbranch_scc1 L_W
s_cmp_ge_u32 s{S_J}, 24
s_cbranch_scc1 L_W
s_cmp_lt_u32 s{S_J}, 8
s_cbranch_scc1 L_S
s_sub_u32 s{S_J}, s{S_J}, 8""")
    hooks, vhooks, signal = chain_hooks(a)
    v_cu(a, cfg, vhooks)
    a.label("L_S")
    s_cu(a, cfg, hooks)
    a.label("S_exit")
    a(f"""s_waitcnt vmcnt(0)
s_barrier
s_cmp_lg_u32 s{S_WAVE}, 0
s_cbranch_scc1 L_done
s_mov_b32 s{S_T0}, {NSEG-1}""")
    signal(60, S_T0, 2)
    a("s_endpgm")
    a.label("L_fail")
    a(f"""v_mov_b32 v1, 0xdead
v_mov_b32 v2, 0
s_mov_b64 exec, 1
buffer_store_dword v1, v2, {DBG}, 0 offen offset:8
s_endpgm""")
    a.label("L_W")
    tab = worker(a, cfg)
    a.label("L_done")
    a("s_endpgm")
    body = a.finalize()
    ref = open("cdna_kernels/" + PFX + ".s.ref").read().split("\n")
    hdr = [l for l in ref if l.startswith(";") and "@launch" not in l and "Override" not in l and "grid=ceil" not in l]
    out = "\n".join(hdr) + "\n"
    out += f"; @launch grid=(256,1,1) block=(256,1,1) lds={LDS_BYTES}\n"
    out += f""".amdgcn_target "amdgcn-amd-amdhsa--gfx950"
.text
.globl {NAME}
.p2align 8
.type {NAME},@function
{NAME}:
""" + body
    out += ".p2align 4\n.type W_table,@object\nW_table:\n" + "\n".join(tab) + f"\n.size W_table, {16*len(tab)}\n"
    out += f"""
.section .rodata,"a"
.p2align 6
.amdhsa_kernel {NAME}
  .amdhsa_next_free_vgpr 512
  .amdhsa_next_free_sgpr 102
  .amdhsa_accum_offset 256
  .amdhsa_group_segment_fixed_size 0
  .amdhsa_kernarg_size 104
  .amdhsa_user_sgpr_count 2
  .amdhsa_user_sgpr_kernarg_segment_ptr 1
  .amdhsa_system_sgpr_workgroup_id_x 1
.end_amdhsa_kernel
"""
    return out


def report(cfg, down):
    import numpy as np
    if cfg.get("stamps") and not cfg.get("rt"):
        T = down(WS_STAMP, np.uint32, (256, 4, 64, 64))[:, :, :, :8].astype(np.int64)
        ss = list(cfg["stamp_set"])
        Sw = [g + 8*j for g in range(4) for j in range(8)]
        Vw = [g + 8*j for g in range(4) for j in range(8, 24)]
        for nm_, W_ in (("S", Sw), ("V", Vw)):
            t = T[W_][:, :, 12:60]
            d = (t[..., ss[1:]] - t[..., ss[:-1]]) & 0xffffffff
            per = (T[W_][:, :, 13:61, ss[0]] - t[..., ss[0]]) & 0xffffffff
            print("  ", nm_, cfg.get("at"), "deltas med", np.median(d.reshape(-1, d.shape[-1]), 0).tolist(), "min", d.reshape(-1, d.shape[-1]).min(0).tolist(), "period median", np.median(per))
        return
    if cfg.get("hops"):
        T = down(WS_STAMP, np.uint32, (32, 8, 4, 64, 64))[..., :8].astype(np.int64) * 10
        S = T[:8, :4]; V = T[8:24, :4]
        st = np.arange(12, 60)
        q = lambda x: "med %4d p90 %4d max-mean %4d" % (np.median(x), np.percentile(x, 90), x.reshape(-1, x.shape[-1]).max(0).mean())
        prod = V[0::4, :, :, :, 5].max(2)[:, :, st - 1]
        print("   MEMT hop (frag0)  ", q(S[:, :, :, :, 1][..., st] - prod.transpose(1, 0, 2)[None]))
        allp = V[..., 5].max(2).max(0)[:, st - 1]
        print("   last MEMT pub -> S OM pub", q(S[..., 4][..., st] - allp[None, :, None]))
        print("   last MEMT pub -> VM pub", q(V[..., 2][..., st] - allp[None, :, None]))
        prod = S[0::2, :, :2, :, 4].max(2)[:, :, st]
        print("   OM hop (frag0)    ", q(V[..., 3][..., st] - prod.transpose(1, 0, 2)[None]))
        allo = S[..., 4].max(2).max(0)[:, st]
        print("   last OM pub -> PART pub", q(V[..., 4][..., st] - allo[None, :, None]))
        lastp = V[..., 4].max(1)[..., st]
        print("   last PART pub -> MEMT pub", q(V[..., 5][..., st] - lastp[:, None]))
        print("   spread of PART pub across teams", q(V[..., 4].max(1)[..., st] - V[..., 4].min(1)[..., st]))
        print("   spread MEMT pub within team", q(V[..., 5].max(2).max(0)[:, st] - V[..., 5].min(2).min(0)[:, st]))
        print("   spread OM pub within team", q(allo - S[..., 4].min(2).min(0)[:, st]))
        print("   period", (S[0, 0, 0, 60, 4] - S[0, 0, 0, 12, 4]) / 48)
        return
    if cfg.get("wstamps"):
        lists = schedule(cfg); MAXL = max(len(l) for l in lists)
        st = down(0x8000000, np.uint32, (8, MAXL + 1, 4)).astype(np.int64)
        t0 = min(st[g, :len(lists[g]), 0].min() for g in range(8))
        names = ["mqkv", "bqkv", "bb", "att", "ob", "oa", "pf", "tail"]
        for g in cfg.get('show', (0, 4, 7)):
            l = lists[g]; i = 0
            while i < len(l):
                j = i
                key = lambda d: (d[0] & 15, (d[0] >> 4) & 255 if (d[0] & 15) not in (T_BB, T_BQKV, T_PF, T_TAIL, T_ATT) else ((d[0] >> 12) & 255 if (d[0] & 15) == T_ATT else 0))
                while j < len(l) and key(l[j]) == key(l[i]): j += 1
                x = (st[g, i:j, :3] - t0) / 100.0
                print(f"  g{g} {names[l[i][0]&15]:5s} p1={(l[i][0]>>4)&255:2d} n={j-i:2d} deq {x[:,0].min():6.1f}-{x[:,0].max():6.1f} start {x[:,1].min():6.1f}-{x[:,1].max():6.1f} end {x[:,2].min():6.1f}-{x[:,2].max():6.1f} dur {(x[:,2]-x[:,1]).mean():5.1f} kcyc {st[g, i:j, 3].mean()/1000:6.1f} GHz {st[g, i:j, 3].mean()/1000/(x[:,2]-x[:,1]).mean():4.2f}")
                i = j
        if cfg.get("stamps"):
            T = down(WS_STAMP, np.uint32, (256, 4, 64, 64))[:, :, :, :8].astype(np.int64)
            s4 = (T[0, 0, :, 4] - t0) / 100.0
            print("  chain OM publish times:", [float(round(x, 1)) for x in s4[[0, 1, 2, 3, 4, 5, 8, 9, 16, 17, 24, 32, 40, 48, 56, 63]]])
            Sw = [g + 8*j for g in range(4) for j in range(8)]
            Vw = [g + 8*j for g in range(4) for j in range(8, 24)]
            if cfg.get("sst"):
                for nm_, W_ in (("S", Sw), ("V", Vw)):
                    for i in (6, 7):
                        x = (T[W_][:, :, 1, i] - t0) / 100.0
                        print("  startup", nm_, i, x.min(), np.median(x), x.max())
                        np.set_printoptions(linewidth=250, precision=0, suppress=True)
                        if cfg.get('sst') == 2: print(x[:, 0].reshape(4, -1))
            print("  S loop first entry", (T[Sw][:, :, 0, 0].min() - t0) / 100.0, (T[Sw][:, :, 0, 0].max() - t0) / 100.0)
            if len(cfg.get("stamp_set", range(8))) > 3:
                for st_ in (21, 35, 58):
                    base = T[Vw][:, :, st_-1, 5].min()
                    tS = (T[Sw][:, :, st_, :8] - base) * 10; tV = (T[Vw][:, :, st_, :8] - base) * 10; tVp = (T[Vw][:, :, st_-1, 5] - base) * 10
                    print("  step", st_, "V pub(prev) min/med/max", tVp.min(), np.median(tVp), tVp.max())
                    for i in cfg["stamp_set"]: print("   S stamp", i, tS[:, :, i].min(), np.median(tS[:, :, i]), tS[:, :, i].max(), "   V stamp", i, tV[:, :, i].min(), np.median(tV[:, :, i]), tV[:, :, i].max())


if __name__ == "__main__":
    cfg = eval(sys.argv[2]) if len(sys.argv) > 2 else {}
    open(sys.argv[1] if len(sys.argv) > 1 else "cdna_kernels/" + PFX + ".s", "w").write(gen(cfg))
```

```python
from asmgen import *
import chain
from chain import *
from tail import WS_OXF
from chain4 import (S_NEAR, S_PCUR, JIT, WS, DBG, OOBV, WS_CNT, WS_KM, arrive, wait_all_arrived, startup_barrier, sstamp, probe,
                    store_mode2, SPoll, ring_poll, Lds)

XRING = L_W


def ring_poll2(a, loads, regs, vt, consume, join, space=4, on_first=None, rfill=3):
    R = [a.uid("rp") for _ in range(4)]
    C = [a.uid("rc") for _ in range(4)]
    def pre3(g):
        b = regs[g]
        return [f"v_max3_u32 v{vt}, v{b}, v{b+1}, v{b+2}", f"v_max_u32 v{vt}, v{vt}, v{b+3}", f"v_cmp_eq_u32 vcc, {chain.SENTINEL[0]}, v{vt}"]
    for f in range(3):
        a(loads[f]); a.fill(space)
    for f in range(4):
        a.label(R[f])
        a(loads[(f + 3) % 4])
        if f == 0: budget_head(a)
        a("s_waitcnt vmcnt(3)")
        for x in pre3(f): a(x)
        a.fill(5)
        a(f"s_cbranch_vccz {C[f]}" if f < 3 else f"s_cbranch_vccnz {R[0]}")
    def body(f):
        a.label(C[f])
        if on_first: on_first()
        for k in range(4):
            g = (f + k) % 4
            chk = []
            if k < 3:
                n = (g + 1) % 4
                rt, back = a.uid("rr"), a.uid("rb")
                chk = pre3(n) + [f"s_cbranch_vccnz {rt}\n{back}:"]
                def retry(n=n, rt=rt, back=back, k=k):
                    a.label(rt)
                    for j in range(3 - k): a(loads[(n + j) % 4])
                    for rep in range(3 - k):
                        for x in pre3(n): a(x)
                        a.fill(rfill + 2)
                        a(f"s_cbranch_vccz {back}")
                    budget_head(a)
                    a(f"s_waitcnt vmcnt(8)\ns_branch {rt}")
                a.defer(retry)
            consume(g, k, chk)
    body(3)
    for f in range(3):
        def ool(f=f):
            body(f); a(f"s_branch {join}")
        a.defer(ool)
    a.label(join)


def s_cu(a, cfg, hooks=None):
    hooks = hooks or {}
    vT, vL16, vGW, vA1, vA2, vA3, vQKW, vQKR, vIDX, vOXO, vVMO, vKMO, vXR, vF, vLANE, vT2 = range(16)
    KX, VX, G, AF, ACC, QF, KMF = 16, 48, 56, 72, 120, 128, 144
    T, VM, PX, PM, O, LS, ONE, HALF, MI, MK, vVM2, SENT = 160, 172, 176, 180, 184, 200, 204, 208, 210, 216, 228, 232
    KD = 240
    vD, vWT = 236, 237
    cfg = dict(cfg); cfg["stamp_reg"] = 254; cfg["lane4_reg"] = 255
    keep = lambda: a(f"v_mfma_f32_16x16x32_bf16 {vr(KD+8,4)}, {vr(ONE,4)}, {vr(ONE,4)}, {vr(KD+8,4)}")
    wreg = lambda s, t: (s * 2 + t) * 8

    a(f"""s_lshl_b32 s{S_HEAD}, s{S_TEAM}, 3
s_add_u32 s{S_HEAD}, s{S_HEAD}, s{S_J}""")
    srd(a, S_W0, 16, 1024 * 8192)
    arrive(a, 20)
    a(f"v_and_b32 v{vLANE}, 63, v0")
    a(f"v_lshlrev_b32 v{vL16}, 4, v{vLANE}")
    a(f"""v_lshrrev_b32 v{vT}, 4, v{vLANE}
v_lshlrev_b32 v{vD}, 13, v{vT}
v_and_b32 v{vT}, 15, v{vLANE}
v_lshl_add_u32 v{vD}, v{vT}, 4, v{vD}
s_lshl_b32 s{S_T0}, s{S_HEAD}, 8
s_lshl_b32 s{S_T1}, s{S_WAVE}, 21
s_add_u32 s{S_T0}, s{S_T0}, s{S_T1}
v_add_u32 v{vD}, s{S_T0}, v{vD}
s_lshl_b32 s{S_T2}, s{S_WAVE}, 14
v_bfe_u32 v{vT}, v{vLANE}, 5, 1
v_lshlrev_b32 v{vWT}, 12, v{vT}
v_bfe_u32 v{vT}, v{vLANE}, 3, 1
v_lshl_add_u32 v{vWT}, v{vT}, 11, v{vWT}
v_bfe_u32 v{vT}, v{vLANE}, 4, 1
v_lshl_add_u32 v{vWT}, v{vT}, 10, v{vWT}
v_bfe_u32 v{vT}, v{vLANE}, 2, 1
v_lshl_add_u32 v{vWT}, v{vT}, 8, v{vWT}
v_and_b32 v{vT}, 3, v{vLANE}
v_lshl_add_u32 v{vWT}, v{vT}, 3, v{vWT}
s_lshl_b32 s{S_T0}, s{S_WAVE}, 6
s_add_u32 s{S_T0}, s{S_T0}, s{S_T2}
v_add_u32 v{vWT}, s{S_T0}, v{vWT}""")
    for q in range(3, -1, -1):
        a(f"v_xor_b32 v{vWT+q}, {q << 14:#x}, v{vWT}\nv_add_u32 v{vWT+q}, {L_W:#x}, v{vWT+q}")
    def issue(j):
        for i in range(16):
            a(f"s_add_u32 m0, s{S_T2}, {L_W + (j % 2) * 65536 + i * 1024}")
            a(f"s_mov_b32 s{S_T4}, {(j * 64 + i * 4) * 8192:#x}")
            a(f"buffer_load_dwordx4 v{vD}, s[{S_W0}:{S_W0+3}], s{S_T4} offen lds")
    issue(0); issue(1)
    for j in range(4):
        a(f"s_waitcnt vmcnt({16 if j < 3 else 0})\ns_barrier")
        for q in range(4):
            for t in range(2):
                for v in range(4):
                    a(f"ds_read_b64_tr_b16 {ar(wreg(j+4*q,t)+2*v,2)}, v{vWT+q} offset:{(32*(v//2) + 2*(v%2))*256 + t*32}")
                a("s_waitcnt lgkmcnt(8)")
        a("s_waitcnt lgkmcnt(0)\ns_barrier")
        for q in range(4):
            a(f"v_add_u32 v{vWT+q}, {0x10000 if j % 2 == 0 else 0xffff0000:#x}, v{vWT+q}")
        if j + 2 < 4: issue(j + 2)
    sstamp(a, 6, cfg)

    a(f"""s_lshl_b32 s{S_T0}, s{S_WAVE}, 12
v_add_u32 v{vGW}, s{S_T0}, v{vL16}""")
    for q in range(1, 4):
        a(f"v_xor_b32 v{vA1+q-1}, {q*4096:#x}, v{vGW}")
    idx_reg(a, vIDX, vLANE, vT)
    a(f"""v_lshrrev_b32 v{vT}, 5, v{vLANE}
v_lshlrev_b32 v{vQKW}, 8, v{vT}
v_and_b32 v{vT}, 15, v{vLANE}
v_lshl_add_u32 v{vQKW}, v{vT}, 4, v{vQKW}
v_bfe_u32 v{vT}, v{vLANE}, 4, 1
v_lshl_add_u32 v{vQKW}, v{vT}, 3, v{vQKW}
s_lshl_b32 s{S_T0}, s{S_WAVE}, 9
v_add_u32 v{vQKW}, s{S_T0}, v{vQKW}
v_lshrrev_b32 v{vT}, 2, v{vLANE}
v_lshlrev_b32 v{vQKR}, 4, v{vT}
v_and_b32 v{vT}, 1, v{vLANE}
v_lshl_add_u32 v{vQKR}, v{vT}, 3, v{vQKR}
s_lshr_b32 s{S_T0}, s{S_WAVE}, 1
s_lshl_b32 s{S_T0}, s{S_T0}, 10
s_and_b32 s{S_T1}, s{S_WAVE}, 1
s_lshl_b32 s{S_T1}, s{S_T1}, 7
s_add_u32 s{S_T0}, s{S_T0}, s{S_T1}
s_add_u32 s{S_WOFF}, s{S_T0}, {WS_OM:#x}
s_lshl_b32 s{S_T0}, s{S_WAVE}, 9
v_add_u32 v{vVMO}, s{S_T0}, v{vL16}
v_mov_b32 v{vT}, {OOBV:#x}
v_cmp_gt_u32 vcc, 32, v{vLANE}
v_cndmask_b32 v{vVMO}, v{vT}, v{vVMO}, vcc
v_and_b32 v{vVM2}, 0xfffffdff, v{vVMO}
v_mov_b32 v{vT2}, 0xff800000""")
    for r in range(4): a(f"v_cndmask_b32 v{MK+r}, v{vT2}, 0, vcc")
    a(f"""v_lshrrev_b32 v{vT}, 4, v{vLANE}
v_lshlrev_b32 v{vKMO}, 7, v{vT}
v_lshlrev_b32 v{vT}, 2, v{vT}
v_and_b32 v{vOXO}, 15, v{vLANE}
v_sub_u32 v{vT}, v{vOXO}, v{vT}
s_and_b32 s{S_T3}, s{S_WAVE}, 1
s_lshl_b32 s{S_T0}, s{S_T3}, 4
v_add_u32 v{vT}, s{S_T0}, v{vT}""")
    for t in range(2):
        for r in range(4):
            a(f"v_cmp_le_i32 vcc, {16*t + r}, v{vT}\nv_cndmask_b32 v{MK+4+4*t+r}, v{vT2}, 0, vcc")
    a(f"""v_and_b32 v{vT}, 7, v{vLANE}
v_lshl_add_u32 v{vKMO}, v{vT}, 4, v{vKMO}
v_lshlrev_b32 v{vOXO}, 6, v{vOXO}
v_lshrrev_b32 v{vT}, 4, v{vLANE}
v_lshl_add_u32 v{vOXO}, v{vT}, 4, v{vOXO}
s_lshl_b32 s{S_T0}, s{S_HEAD}, 15
s_lshr_b32 s{S_T2}, s{S_WAVE}, 1
s_lshl_b32 s{S_T1}, s{S_T2}, 14
s_add_u32 s{S_T0}, s{S_T0}, s{S_T1}
s_lshl_b32 s{S_T1}, s{S_T3}, 10
s_add_u32 s{S_T0}, s{S_T0}, s{S_T1}
v_add_u32 v{vOXO}, s{S_T0}, v{vOXO}
s_lshl_b32 s89, s{S_T3}, 12
s_lshl_b32 s90, s{S_T2}, 12
s_lshl_b32 s91, s{S_HEAD}, 12
s_lshl_b32 s{S_T1}, s{S_T2}, 11
s_add_u32 s91, s91, s{S_T1}
s_lshl_b32 s{S_T1}, s{S_T3}, 17
s_add_u32 s91, s91, s{S_T1}
s_add_u32 s91, s91, {WS_OXF:#x}
v_mov_b32 v{vF}, 0""")
    for i in range(4): a(f"v_mov_b32 v{ONE+i}, 0x3f803f80\nv_mov_b32 v{SENT+i}, -1\nv_mov_b32 v{KD+8+i}, 0")
    a(f"v_mov_b32 v{HALF}, 0x3f003f00\nv_mov_b32 v{HALF+1}, 0x3f003f00")
    if cfg.get("stamps"): a(f"v_lshlrev_b32 v255, 2, v{vLANE}")
    cbits = f32bits(128 ** -0.5 * LOG2E)
    a(f"s_mov_b32 s{S_C}, {cbits:#x}\ns_mov_b32 s{S_C+1}, {cbits:#x}")
    a(f"""s_mov_b32 s{S_STEP}, 0
s_lshl_b32 s{S_OFF_A}, s{S_TEAM}, 20
s_add_u32 s{S_OFF_A}, s{S_OFF_A}, {WS_MEMT:#x}
s_lshl_b32 s{S_OFF_C}, s{S_HEAD}, 11""")
    startup_barrier(a, 244)
    a(f"""s_bcnt1_i32_b32 s{S_T0}, s{S_NEAR}
s_cmp_ge_u32 s{S_T0}, 4
s_cselect_b32 s{S_OFF_F}, 0x2000, 0
s_and_b32 s{S_T0}, s{S_J}, 1
s_lshl_b32 s{S_T0}, s{S_T0}, 12
s_add_u32 s{S_OFF_F}, s{S_OFF_F}, s{S_T0}
s_lshr_b32 s{S_T0}, s{S_J}, 1
s_lshl_b32 s{S_T0}, s{S_T0}, 14
s_add_u32 s{S_OFF_F}, s{S_OFF_F}, s{S_T0}
s_lshl_b32 s{S_T0}, s{S_TEAM}, 16
s_add_u32 s{S_OFF_F}, s{S_OFF_F}, s{S_T0}
s_lshl_b32 s{S_T0}, s{S_WAVE}, 10
s_add_u32 s{S_OFF_F}, s{S_OFF_F}, s{S_T0}
s_add_u32 s{S_OFF_F}, s{S_OFF_F}, {WS_PART:#x}
s_lshl_b32 s{S_OFF_E}, s{S_J}, 11
s_lshl_b32 s{S_T0}, s{S_WAVE}, 9
s_add_u32 s{S_OFF_E}, s{S_OFF_E}, s{S_T0}""")

    def x_dma(add):
        a(f"s_add_u32 s{S_OFF_B}, s{S_STEP}, {add}")
        if "wait_x" in hooks:
            a(f"s_mov_b32 s{S_T0}, s{S_OFF_B}")
            hooks["wait_x"](vT)
        a(f"""s_lshl_b32 s{S_T0}, s{S_OFF_B}, 18
s_lshl_b32 s{S_T1}, s{S_HEAD}, 13
s_add_u32 s{S_T0}, s{S_T0}, s{S_T1}
s_lshl_b32 s{S_T2}, s{S_WAVE}, 11
s_add_u32 s{S_T0}, s{S_T0}, s{S_T2}
s_cmp_ge_u32 s{S_OFF_B}, {NSEG}
s_cselect_b32 s{S_T0}, {OOBV:#x}, s{S_T0}
s_and_b32 s{S_T1}, s{S_OFF_B}, 3
s_lshl_b32 s{S_T1}, s{S_T1}, 15
s_add_u32 s{S_T1}, s{S_T1}, s{S_T2}""")
        for k, reg in enumerate((WS_QX, WS_KX, WS_VX)):
            a(f"s_add_u32 m0, s{S_T1}, {XRING + k * 8192:#x}\ns_add_u32 s{S_T3}, s{S_T0}, {reg:#x}")
            for f in range(2):
                a(f"buffer_load_dwordx4 v{vL16}, {WS}, s{S_T3} offen offset:{f*1024} sc1 lds")

    def chores():
        a(f"""s_xor_b32 s{S_T0}, s{S_OFF_F}, {JIT << 18:#x}
buffer_store_dwordx4 {vr(SENT,4)}, v{vL16}, {WS}, s{S_T0} offen sc1
s_xor_b32 s{S_T2}, s{S_OFF_C}, {JIT << 16:#x}
s_lshl_b32 s{S_T3}, s{S_WAVE}, 9
s_add_u32 s{S_T2}, s{S_T2}, s{S_T3}
s_add_u32 s{S_T0}, s{S_T2}, {WS_KM:#x}
s_add_u32 s{S_T1}, s{S_T2}, {WS_VM:#x}
s_add_u32 s{S_T2}, s{S_T2}, {WS_OM:#x}
s_xor_b32 s{S_T3}, s{S_OFF_A}, {JIT << 14:#x}
s_add_u32 s{S_T3}, s{S_T3}, s{S_OFF_E}
s_cmp_eq_u32 s{S_MODE}, 1
s_mov_b32 exec_hi, 0""")
        l1, l2 = a.uid("ji"), a.uid("ji")
        jit = lambda fl: "\n".join(f"buffer_store_dwordx4 {vr(SENT,4)}, v{vL16}, {WS}, s{t} offen {fl}" for t in (S_T0, S_T1, S_T2, S_T3))
        a(f"s_cbranch_scc0 {l1}\n{jit('')}\n{l2}:\ns_mov_b64 exec, -1")
        a.defer(lambda: a(f"{l1}:\n{jit('sc1')}\ns_branch {l2}"))

    pkfma = lambda r, nm: f"v_pk_fma_f32 {vr(r,2)}, {vr(r,2)}, s[{S_C}:{S_C+1}], {vr(nm,2)} op_sel_hi:[1,1,0] neg_lo:[0,0,1] neg_hi:[0,0,1]"
    x_dma(0); x_dma(1)
    a("s_waitcnt vmcnt(0)\ns_barrier")
    sstamp(a, 7, cfg)
    a.set_filler(vF)
    a.label("S_loop")
    stamp(a, 0, cfg)
    a(f"""s_and_b32 s{S_T0}, s{S_STEP}, 3
s_lshl_b32 s{S_T0}, s{S_T0}, 15
s_add_u32 s{S_T0}, s{S_T0}, {XRING:#x}
v_add_u32 v{vXR}, s{S_T0}, v{vL16}
s_lshl_b32 s{S_T1}, s{S_WAVE}, 11
v_add_u32 v{vT2}, s{S_T1}, v{vXR}""")
    for f in range(8): a(f"ds_read_b128 {vr(KX+4*f,4)}, v{vXR} offset:{8192 + f*1024}")
    for f in range(2): a(f"ds_read_b128 {vr(VX+4*f,4)}, v{vT2} offset:{16384 + f*1024}")
    for i in range(8): a(f"v_mov_b32 v{ACC+i}, 0")
    for i in range(16): a(f"v_mov_b32 v{G+i}, -1\nv_mov_b32 v{KMF+i}, -1")
    for i in range(4): a(f"v_mov_b32 v{VM+i}, -1")
    a(f"""s_add_u32 s{S_T5}, s{S_OFF_C}, {WS_VM:#x}
s_add_u32 s{S_T4}, s{S_OFF_C}, s{S_WOFF}
s_add_u32 s{S_OFF_D}, s{S_OFF_C}, {WS_KM:#x}
s_waitcnt lgkmcnt(0)""")
    L = Lds(a)
    loads = [f"buffer_load_dwordx4 {vr(G+4*i,4)}, v{vGW}, {WS}, s{S_OFF_A} offen offset:{1024*i} sc1" for i in range(4)]
    o = cfg.get("s_mem", {})
    sp = SPoll(a, loads, [G + 4 * i for i in range(4)], vT, cap=o.get("cap", 3), sleep=o.get("sleep", 3), respin=o.get("respin", 4))
    gw = lambda f: L.op(("GW", f), f"ds_write_b128 v{vGW}, {vr(G+4*f,4)} offset:{L_MEM + 1024*f}")
    areg = lambda s: G + 4 * s if s < 4 else AF + 4 * (s - 4)
    def mm(s, t):
        if s >= 4: L.wait(("A", s))
        a(f"v_smfmac_f32_16x16x64_bf16 {vr(ACC+4*t,4)}, {vr(areg(s),4)}, {ar(wreg(s,t),8)}, v{vIDX}")
    def ard(s): L.op(("A", s), f"ds_read_b128 {vr(areg(s),4)}, v{vA1 + s // 4 - 1} offset:{L_MEM + (s % 4) * 1024}")
    if cfg.get("s_sleep"): a(f"s_sleep {cfg['s_sleep']}")
    kml = [f"buffer_load_dwordx4 {vr(KMF+4*f,4)}, v{vKMO}, {WS}, s{S_OFF_D} offen offset:{f*512} sc1" for f in range(4)]
    vml = f"buffer_load_dwordx4 {vr(VM,4)}, v{vVMO}, {WS}, s{S_T5} offen sc1"
    if cfg.get("s_ring", 1):
        def consume(g, k, chk):
            a(f"ds_write_b128 v{vGW}, {vr(G+4*g,4)} offset:{L_MEM + 1024*g}")
            for x in chk[:3]: a(x)
            mm(g, 0)
            if chk: a(chk[3])
        ring_poll2(a, loads, [G + 4 * i for i in range(4)], vT, consume, a.uid("sj"), space=o.get("space", 4), on_first=lambda: stamp(a, 1, cfg), rfill=o.get("rfill", 3))
        mm(0, 1); mm(1, 1)
        a("s_waitcnt lgkmcnt(0)\ns_barrier")
        probe(a, "b1", cfg)
        rest = list(range(4, 16))
        ard(4); ard(5); ard(6); mm(2, 1); ard(7); ard(8); ard(9); mm(3, 1)
        for k, s in enumerate(rest):
            mm(s, 0)
            if 10 + k < 16: ard(10 + k)
            mm(s, 1)
    else:
        sp.first(prefill=False, arm=o.get("arm", 0), arm_fill=o.get("afill", 6), arm_cap=o.get("acap", 4))
        stamp(a, 1, cfg)
        gw(0); sp.pre(1); mm(0, 0); sp.br(1)
        gw(1); sp.pre(2); mm(0, 1); mm(1, 0); sp.br(2)
        sp.pre(3); mm(1, 1)
        L.wait(("GW", 1)); a("s_barrier")
        probe(a, "b1", cfg)
        e1 = [4, 8, 12, 5, 9, 13]; e2 = [6, 10, 14, 7, 11, 15]
        ard(4); ard(8); mm(2, 0); ard(12); ard(5); sp.br(3); mm(2, 1); ard(9); ard(13); mm(3, 0)
        gw(2); mm(3, 1); gw(3)
        for k, s in enumerate(e1):
            mm(s, 0)
            if k >= 3: ard(e2[2*(k-3)])
            mm(s, 1)
            if k >= 3: ard(e2[2*(k-3)+1])
            if k == 2:
                L.wait(("GW", 3)); a("s_barrier")
        for s in e2:
            mm(s, 0); mm(s, 1)

    stamp(a, 2, cfg)
    for r in range(4): a(f"v_permlane32_swap_b32 v{ACC+r}, v{ACC+4+r}")
    for r in range(4): a(f"v_add_f32 v{ACC+r}, v{ACC+r}, v{ACC+4+r}")
    a(f"v_cvt_pk_bf16_f32 v{ACC+4}, v{ACC}, v{ACC+1}\nv_cvt_pk_bf16_f32 v{ACC+5}, v{ACC+2}, v{ACC+3}")
    L.op("QW", f"ds_write_b64 v{vQKW}, {vr(ACC+4,2)} offset:{L_QK}")
    keep(); keep(); keep()
    L.wait("QW"); a("s_waitcnt vmcnt(0)\ns_barrier")
    probe(a, "s_b", cfg)
    for ks in range(4):
        for u in range(2):
            L.op(("QF", ks), f"ds_read_b64_tr_b16 {vr(QF+4*ks+2*u,2)}, v{vQKR} offset:{L_QK + (32*ks+16*u)*16}")
        if ks % 2 == 0: keep()
    for x in kml: a(x)
    keep()
    X, T0 = T + 4, T
    def sc(ks, t, d, C0):
        A = KMF + 4 * ks if t == 0 else KX + 16 * (t - 1) + 4 * ks
        a(f"v_mfma_f32_16x16x32_bf16 {vr(d,4)}, {vr(A,4)}, {vr(QF+4*ks,4)}, {C0 if ks == 0 else vr(d,4)}")
    for ks in range(4):
        L.wait(("QF", ks))
        sc(ks, 1, X, "0"); sc(ks, 2, X + 4, "0")
        if ks == cfg.get("km2", 2):
            for x in kml: a(x)
    probe(a, "s_x", cfg)
    mx, m2, nm, al = MI, MI + 1, MI + 2, MI + 4
    a(f"""v_max3_f32 v{mx}, v{X}, v{X+1}, v{X+2}
v_max3_f32 v{m2}, v{X+4}, v{X+5}, v{X+6}
v_max3_f32 v{mx}, v{mx}, v{X+3}, v{X+7}
v_max_f32 v{al}, v{mx}, v{m2}
v_max_f32 v{m2}, v{mx}, v{m2}
v_permlane32_swap_b32 v{al}, v{m2}""")
    ok = cfg.get("s_km", {})
    kp = SPoll(a, ["\n".join(kml)], [list(range(KMF, KMF + 16))], vT, cap=ok.get("cap", 12), sleep=ok.get("sleep", 0), respin=ok.get("respin", 0))
    kp.pre(0); a(vml); a.fill(4); kp.br(0)
    probe(a, "s_km", cfg)
    for ks in range(4): sc(ks, 0, T0, "0")
    a(vml)
    a(f"""v_max3_f32 v{mx}, v{T0}, v{T0+1}, v{T0+2}
v_max3_f32 v{m2}, v{al}, v{m2}, v{T0+3}
v_max_f32 v{al}, v{mx}, v{m2}
v_max_f32 v{mx}, v{mx}, v{m2}
v_permlane16_swap_b32 v{mx}, v{al}
v_max_f32 v{m2}, v{mx}, v{al}""")
    stamp(a, 3, cfg)
    a(f"v_mul_f32 v{nm}, s{S_C}, v{m2}")
    for i in range(0, 8, 2): a(pkfma(X + i, nm))
    a(pkfma(T0, nm)); a(pkfma(T0 + 2, nm))
    a(vml)
    for i in range(8):
        a(f"v_exp_f32 v{X+i}, v{X+i}")
        if i >= 2 and i % 2 == 0: a(f"v_cvt_pk_bf16_f32 v{PX+i//2-1}, v{X+i-2}, v{X+i-1}")
    a(f"v_exp_f32 v{T0}, v{T0}")
    a(f"v_cvt_pk_bf16_f32 v{PX+3}, v{X+6}, v{X+7}")
    a(f"v_exp_f32 v{T0+1}, v{T0+1}\nv_exp_f32 v{T0+2}, v{T0+2}")
    a(f"v_mfma_f32_16x16x32_bf16 {vr(LS,4)}, {vr(ONE,4)}, {vr(PX,4)}, 0")
    a(f"v_exp_f32 v{T0+3}, v{T0+3}")
    a(f"v_mfma_f32_16x16x32_bf16 {vr(O,4)}, {vr(VX,4)}, {vr(PX,4)}, 0")
    a(f"v_cvt_pk_bf16_f32 v{PM}, v{T0}, v{T0+1}\nv_cvt_pk_bf16_f32 v{PM+1}, v{T0+2}, v{T0+3}")
    a(f"v_mfma_f32_16x16x32_bf16 {vr(O+4,4)}, {vr(VX+4,4)}, {vr(PX,4)}, 0")
    vp = SPoll(a, [vml], [VM], vT, cap=3, sleep=1)
    chk = vp.pre3(0)
    a(chk[0]); a(chk[1])
    a(f"v_mfma_f32_16x16x16_bf16 {vr(LS,4)}, {vr(HALF,2)}, {vr(PM,2)}, {vr(LS,4)}")
    a(chk[2])
    probe(a, "s_pv", cfg)
    pv, rt = a.uid("pv"), a.uid("vr")
    a.label(pv)
    a(f"v_mfma_f32_16x16x16_bf16 {vr(O+8,4)}, {vr(VM,2)}, {vr(PM,2)}, {vr(O,4)}")
    a(f"v_mfma_f32_16x16x16_bf16 {vr(O+12,4)}, {vr(VM+2,2)}, {vr(PM,2)}, {vr(O+4,4)}")
    a(f"s_cbranch_vccnz {rt}")
    a.defer(lambda: (vp._body(0, rt), a(f"s_branch {pv}")))
    a(f"s_cmp_eq_u32 s{S_MODE}, 1")
    a(f"v_rcp_f32 v{nm}, v{LS}")
    a("s_mov_b32 exec_lo, 0x00ff00ff\ns_mov_b32 exec_hi, 0x00ff00ff")
    for i in range(0, 8, 2):
        a(f"v_pk_mul_f32 {vr(O+8+i,2)}, {vr(O+8+i,2)}, {vr(nm,2)} op_sel_hi:[1,0]")
        if i >= 2: a(f"v_cvt_pk_bf16_f32 v{PX+i//2-1}, v{O+8+i-2}, v{O+8+i-1}")
    a(f"v_cvt_pk_bf16_f32 v{PX+3}, v{O+14}, v{O+15}")
    store_mode2(a, f"buffer_store_dwordx4 {vr(PX,4)}, v{vL16}, {WS}, s{S_T4} offen")
    a("s_mov_b64 exec, -1")
    stamp(a, 4, cfg)

    V4, VM2, P2, O2, D2 = AF, AF + 16, AF + 24, G, AF + 32
    a(f"s_waitcnt vmcnt(1)")
    vm2 = [f"buffer_load_dwordx4 {vr(VM2+4*i,4)}, v{vVM2}, {WS}, s{S_T5} offen offset:{512*i} sc1" for i in range(2)]
    for x in vm2: a(x)
    a(f"v_add_u32 v{vT2}, s89, v{vXR}\nv_add_u32 v{vT}, s90, v{vXR}")
    for ks in range(4): a(f"ds_read_b128 {vr(QF+4*ks,4)}, v{vT2} offset:{ks*1024}")
    for f in range(4): a(f"ds_read_b128 {vr(V4+4*f,4)}, v{vT} offset:{16384 + f*1024}")
    if "post_om" in hooks: hooks["post_om"](MI)
    for ks in range(4):
        a(f"s_waitcnt lgkmcnt({7 - ks})")
        for t in (1, 2, 0):
            A = KMF + 4 * ks if t == 0 else KX + 16 * (t - 1) + 4 * ks
            a(f"v_mfma_f32_16x16x32_bf16 {vr(T+4*t,4)}, {vr(A,4)}, {vr(QF+4*ks,4)}, {vr(MK+4*t,4) if ks == 0 else vr(T+4*t,4)}")
    a("s_waitcnt vmcnt(0) lgkmcnt(0)")
    v2p = SPoll(a, ["\n".join(vm2)], [list(range(VM2, VM2 + 8))], vT, cap=0)
    v2p.pre(0); a.fill(4); v2p.br(0)
    x_dma(2)
    chores()
    regs = [T + 4 * t + r for t in (1, 2, 0) for r in range(4)]
    a(f"v_max3_f32 v{mx}, v{regs[0]}, v{regs[1]}, v{regs[2]}")
    rest = regs[3:]
    while rest:
        if len(rest) >= 2: a(f"v_max3_f32 v{mx}, v{mx}, v{rest[0]}, v{rest[1]}"); rest = rest[2:]
        else: a(f"v_max_f32 v{mx}, v{mx}, v{rest[0]}"); rest = rest[1:]
    xlane_reduce(a, "v_max_f32", mx, m2)
    a(f"v_mul_f32 v{nm}, s{S_C}, v{mx}")
    for i in range(0, 12, 2): a(pkfma(T + i, nm))
    for r in regs: a(f"v_exp_f32 v{r}, v{r}")
    for i in range(6): a(f"v_cvt_pk_bf16_f32 v{P2+i}, v{regs[2*i]}, v{regs[2*i+1]}")
    a(f"v_mfma_f32_16x16x32_bf16 {vr(LS,4)}, {vr(ONE,4)}, {vr(P2,4)}, 0")
    for f in range(4): a(f"v_mfma_f32_16x16x32_bf16 {vr(O2+4*f,4)}, {vr(V4+4*f,4)}, {vr(P2,4)}, 0")
    a(f"v_mfma_f32_16x16x16_bf16 {vr(LS,4)}, {vr(ONE,2)}, {vr(P2+4,2)}, {vr(LS,4)}")
    for f in range(4): a(f"v_mfma_f32_16x16x16_bf16 {vr(O2+4*f,4)}, {vr(VM2+2*f,2)}, {vr(P2+4,2)}, {vr(O2+4*f,4)}")
    a(f"v_rcp_f32 v{nm}, v{LS}")
    for i in range(0, 16, 2): a(f"v_pk_mul_f32 {vr(O2+i,2)}, {vr(O2+i,2)}, {vr(nm,2)} op_sel_hi:[1,0]")
    for i in range(8): a(f"v_cvt_pk_bf16_f32 v{D2+i}, v{O2+2*i}, v{O2+2*i+1}")
    t0 = cfg.get("tail_seg0", 64)
    l1, l2 = a.uid("ox"), a.uid("ox")
    a(f"""s_cmp_ge_u32 s{S_STEP}, {t0}
s_cbranch_scc1 {l1}
s_lshr_b32 s{S_T2}, s{S_STEP}, 2
s_lshl_b32 s{S_T2}, s{S_T2}, 20
s_and_b32 s{S_T1}, s{S_STEP}, 3
s_lshl_b32 s{S_T1}, s{S_T1}, 11
s_add_u32 s{S_T2}, s{S_T2}, s{S_T1}
s_add_u32 s{S_T2}, s{S_T2}, {WS_OX:#x}
s_add_u32 s{S_T1}, s{S_T2}, 0x2000
buffer_store_dwordx4 {vr(D2,4)}, v{vOXO}, {WS}, s{S_T2} offen sc1
buffer_store_dwordx4 {vr(D2+4,4)}, v{vOXO}, {WS}, s{S_T1} offen sc1
{l2}:""")
    a.defer(lambda: a(f"""{l1}:
s_lshl_b32 s{S_T2}, s{S_STEP}, 18
s_add_u32 s{S_T2}, s{S_T2}, s91
buffer_store_dwordx4 {vr(D2,4)}, v{vL16}, {WS}, s{S_T2} offen sc1
buffer_store_dwordx4 {vr(D2+4,4)}, v{vL16}, {WS}, s{S_T2} offen offset:1024 sc1
s_branch {l2}"""))
    stamp(a, 5, cfg)
    stamp_flush(a, cfg)
    a(f"""s_add_u32 s{S_STEP}, s{S_STEP}, 1
s_cmp_eq_u32 s{S_STEP}, {NSEG}
s_cbranch_scc1 {hooks.get("exit", "L_done")}
s_add_u32 s{S_OFF_A}, s{S_OFF_A}, 0x4000
s_bitset0_b32 s{S_OFF_A}, 17
s_add_u32 s{S_OFF_C}, s{S_OFF_C}, {32*2048:#x}
s_bitset0_b32 s{S_OFF_C}, 19
s_add_u32 s{S_OFF_F}, s{S_OFF_F}, 0x40000
s_bitset0_b32 s{S_OFF_F}, 21
s_branch S_loop""")
    a.flush_deferred()
    a.set_filler(None)


def v_cu(a, cfg, hooks=None):
    hooks = hooks or {}
    vLANE, vGOFF, vIDX, vL16, vT, vT2, vVMO, vOMO, vRW, vRR, vPO, vMO, vL4, vD, vI16 = range(0, 15)
    QF = 16
    G, ACC, ACC2, OF, RD, RP, MI, SENT = 32, 48, 64, 80, 96, 104, 112, 120
    vRV, vKO = 124, 125
    WV = 128
    cfg = dict(cfg); cfg["stamp_reg"] = MI + 5; cfg["lane4_reg"] = vL4
    a(f"""s_lshl_b32 s{S_HEAD}, s{S_TEAM}, 3
s_lshr_b32 s{S_T0}, s{S_J}, 1
s_add_u32 s{S_HEAD}, s{S_HEAD}, s{S_T0}""")
    srd(a, S_W0, 32, 1024 * 8192)
    srd(a, S_W1, 40, 4096 * 2048)
    srd(a, S_W2, 8, 8 * 2048)
    a(f"v_and_b32 v{vLANE}, 63, v0")
    a(f"v_lshlrev_b32 v{vL16}, 4, v{vLANE}")
    a(f"v_lshlrev_b32 v{vL4}, 2, v{vLANE}")
    for i in range(4): a(f"v_mov_b32 v{SENT+i}, -1")
    a(f"""s_lshl_b32 s{S_OFF_A}, s{S_TEAM}, 20
s_add_u32 s{S_OFF_A}, s{S_OFF_A}, {WS_MEMT:#x}
s_lshl_b32 s{S_T0}, s{S_J}, 10
s_add_u32 s{S_OFF_E}, s{S_OFF_A}, s{S_T0}
s_lshl_b32 s{S_OFF_C}, s{S_HEAD}, 11
s_and_b32 s{S_T1}, s{S_J}, 1
s_lshl_b32 s{S_T1}, s{S_T1}, 10
s_add_u32 s{S_OFF_B}, s{S_OFF_C}, s{S_T1}
s_and_b32 s{S_T0}, s{S_J}, 3
s_lshl_b32 s{S_OFF_D}, s{S_T0}, 11
s_lshr_b32 s{S_T0}, s{S_J}, 2
s_lshl_b32 s{S_T0}, s{S_T0}, 14
s_add_u32 s{S_OFF_D}, s{S_OFF_D}, s{S_T0}
s_add_u32 s{S_OFF_D}, s{S_OFF_D}, {WS_PART:#x}
s_lshl_b32 s{S_T0}, s{S_TEAM}, 16
s_add_u32 s{S_OFF_F}, s{S_OFF_D}, s{S_T0}""")

    for rep in range(2 if cfg.get('init8', 1) else 1):
        a(f"s_add_u32 s{S_T5}, s{S_WAVE}, {4*rep}")
        a(f"""s_lshl_b32 s{S_T0}, s{S_T5}, 14
s_add_u32 s{S_T0}, s{S_T0}, s{S_OFF_E}
buffer_store_dwordx4 {vr(SENT,4)}, v{vL16}, {WS}, s{S_T0} offen sc1
s_lshl_b32 s{S_T0}, s{S_T5}, 16
s_add_u32 s{S_T0}, s{S_T0}, s{S_OFF_B}
s_add_u32 s{S_T1}, s{S_T0}, {WS_VM:#x}
buffer_store_dwordx4 {vr(SENT,4)}, v{vL16}, {WS}, s{S_T1} offen sc1
s_add_u32 s{S_T1}, s{S_T0}, {WS_OM:#x}
buffer_store_dwordx4 {vr(SENT,4)}, v{vL16}, {WS}, s{S_T1} offen sc1
s_add_u32 s{S_T1}, s{S_T0}, {WS_KM:#x}
buffer_store_dwordx4 {vr(SENT,4)}, v{vL16}, {WS}, s{S_T1} offen sc1
s_lshl_b32 s{S_T0}, s{S_T5}, 18
s_add_u32 s{S_T0}, s{S_T0}, s{S_OFF_F}
buffer_store_dwordx4 {vr(SENT,4)}, v{vL16}, {WS}, s{S_T0} offen sc1
buffer_store_dwordx4 {vr(SENT,4)}, v{vL16}, {WS}, s{S_T0} offen offset:1024 sc1
s_add_u32 s{S_T0}, s{S_T0}, 0x2000
buffer_store_dwordx4 {vr(SENT,4)}, v{vL16}, {WS}, s{S_T0} offen sc1
buffer_store_dwordx4 {vr(SENT,4)}, v{vL16}, {WS}, s{S_T0} offen offset:1024 sc1""")

    a(f"""v_mov_b32 v{G}, 0
v_mov_b32 v{G+1}, 0
v_mov_b32 v{G+2}, 0
v_mov_b32 v{G+3}, 0
s_lshl_b32 s{S_T0}, s{S_TEAM}, 4
s_add_u32 s{S_T0}, s{S_T0}, s{S_J}
s_lshl_b32 s{S_T0}, s{S_T0}, 9
s_lshl_b32 s{S_T1}, s{S_WAVE}, 7
s_add_u32 s{S_T0}, s{S_T0}, s{S_T1}
s_add_u32 s{S_T0}, s{S_T0}, {WS_CNT:#x}
s_mov_b64 exec, 0xff
buffer_store_dwordx4 {vr(G,4)}, v{vL16}, {WS}, s{S_T0} offen sc1
s_mov_b64 exec, -1""")
    if not cfg.get("noprobe"):
        skip = a.uid("pr")
        a(f"""s_lshl_b32 s{S_T0}, s{S_TEAM}, 4
s_add_u32 s{S_T0}, s{S_T0}, s{S_J}
s_cmp_ge_u32 s{S_T0}, 8
s_cbranch_scc1 {skip}
s_cmp_lg_u32 s{S_WAVE}, 3
s_cbranch_scc1 {skip}
s_add_u32 s{S_T1}, s{S_OFF_F}, {7 << 18:#x}
s_add_u32 s{S_T2}, s{S_T1}, 0x2000
buffer_store_dwordx4 {vr(SENT,4)}, v{vL16}, {WS}, s{S_T1} offen sc1
buffer_store_dwordx4 {vr(SENT,4)}, v{vL16}, {WS}, s{S_T2} offen sc1
v_mov_b32 v{vT2}, 0
s_mov_b32 s60, -1
s_mov_b32 s61, -1
s_waitcnt vmcnt(0)""")
        for smp in range(4):
            for c in range(2):
                a(f"""s_memtime s[62:63]
s_waitcnt lgkmcnt(0)
buffer_load_dword v{vT}, v{vT2}, {WS}, s{S_T1+c} offen offset:{smp*256} sc1
s_waitcnt vmcnt(0)
s_memtime s[64:65]
s_waitcnt lgkmcnt(0)
s_sub_u32 s64, s64, s62
s_min_u32 s{60+c}, s{60+c}, s64""")
        a(f"""s_cmp_lt_u32 s61, s60
s_cselect_b32 s{S_T1}, 1, 0
s_lshl_b32 s{S_T1}, s{S_T1}, s{S_J}
v_mov_b32 v{vT}, s{S_T1}
s_mov_b64 exec, 1
buffer_atomic_or v{vT}, v{vT2}, {DBG}, 0 offen offset:12 sc1
s_mov_b64 exec, -1
{skip}:""")

    a("s_waitcnt vmcnt(0)\ns_barrier")
    arrive(a, G + 4)

    srd(a, 84, 24, 1024 * 8192)
    vD2, vWT = MI, MI + 1
    a(f"""v_lshrrev_b32 v{vT}, 3, v{vLANE}
v_lshlrev_b32 v{vD}, 13, v{vT}
v_lshlrev_b32 v{vD2}, 11, v{vT}
v_and_b32 v{vT}, 7, v{vLANE}
v_lshl_add_u32 v{vD}, v{vT}, 4, v{vD}
v_lshl_add_u32 v{vD2}, v{vT}, 4, v{vD2}
s_lshl_b32 s{S_T0}, s{S_HEAD}, 8
s_and_b32 s{S_T1}, s{S_J}, 1
s_lshl_b32 s{S_T1}, s{S_T1}, 7
s_add_u32 s{S_T0}, s{S_T0}, s{S_T1}
s_lshl_b32 s{S_T1}, s{S_WAVE}, 21
s_add_u32 s{S_T0}, s{S_T0}, s{S_T1}
v_add_u32 v{vD}, s{S_T0}, v{vD}
s_lshl_b32 s{S_T0}, s{S_TEAM}, 21
s_lshl_b32 s{S_T1}, s{S_J}, 7
s_add_u32 s{S_T0}, s{S_T0}, s{S_T1}
s_lshl_b32 s{S_T1}, s{S_WAVE}, 19
s_add_u32 s{S_T0}, s{S_T0}, s{S_T1}
v_add_u32 v{vD2}, s{S_T0}, v{vD2}
s_lshl_b32 s{S_T2}, s{S_WAVE}, 15
s_add_u32 s{S_T2}, s{S_T2}, {L_W:#x}""")
    for dst, bits in ((vWT, ((5, 11), (3, 10), (4, 9), (2, 7))), (vWT + 1, ((3, 12), (4, 11), (5, 9), (2, 7)))):
        a(f"v_and_b32 v{vT}, 3, v{vLANE}\nv_lshlrev_b32 v{dst}, 3, v{vT}")
        for b, sh in bits:
            a(f"v_bfe_u32 v{vT}, v{vLANE}, {b}, 1\nv_lshl_add_u32 v{dst}, v{vT}, {sh}, v{dst}")
        a(f"v_add_u32 v{dst}, s{S_T2}, v{dst}")
    units = [(m, f) for m in range(3) for f in range(4)]
    def issue(n):
        m, f = units[n]
        sr_, vo, pl = ((84, vD, 13), (S_W0, vD, 13), (S_W1, vD2, 11))[m]
        for i in range(8):
            a(f"s_add_u32 m0, s{S_T2}, {(n % 4) * 8192 + i * 1024}")
            a(f"s_mov_b32 s{S_T4}, {(f * 64 + i * 8) << pl:#x}")
            a(f"buffer_load_dwordx4 v{vo}, s[{sr_}:{sr_+3}], s{S_T4} offen lds")
    for n in range(4): issue(n)
    for n in range(12):
        m, f = units[n]
        a(f"s_waitcnt vmcnt({8 * min(3, 11 - n)})")
        for ct in range(4):
            k, b = (("a", 0), ("v", WV), ("a", 128))[m]
            for v in range(4):
                ro = (32 * (v // 2) + 2 * (v % 2)) if m < 2 else (8 * (v // 2) + 2 * (v % 2))
                a(f"ds_read_b64_tr_b16 {vr(b+(f*4+ct)*8+2*v,2,k)}, v{vWT + (m == 2)} offset:{(n % 4) * 8192 + ro * 128 + ct * 32}")
            if ct == 2: a("s_waitcnt lgkmcnt(4)")
        a("s_waitcnt lgkmcnt(0)")
        if n + 4 < 12: issue(n + 4)
        if n == 3: sstamp(a, 6, cfg)
    a(f"""s_lshl_b32 s{S_T0}, s{S_WAVE}, 12
v_add_u32 v{vGOFF}, s{S_T0}, v{vL16}""")
    idx_reg(a, vIDX, vLANE, vT)
    a(f"""v_and_b32 v{vT}, 31, v{vLANE}
v_lshlrev_b32 v{vVMO}, 4, v{vT}
v_lshrrev_b32 v{vT}, 5, v{vLANE}
v_lshl_add_u32 v{vVMO}, v{vT}, 2, v{vVMO}
s_lshr_b32 s{S_T0}, s{S_WAVE}, 1
s_lshl_b32 s{S_T0}, s{S_T0}, 9
s_and_b32 s{S_T1}, s{S_WAVE}, 1
s_lshl_b32 s{S_T1}, s{S_T1}, 3
s_add_u32 s{S_T0}, s{S_T0}, s{S_T1}
v_add_u32 v{vVMO}, s{S_T0}, v{vVMO}
s_lshl_b32 s{S_T0}, s{S_TEAM}, 14
v_add_u32 v{vOMO}, s{S_T0}, v{vGOFF}""")
    a(f"""s_lshl_b32 s{S_T0}, s{S_WAVE}, 11
v_add_u32 v{vRW}, s{S_T0}, v{vL4}""")
    a(f"""v_bfe_u32 v{vT}, v{vLANE}, 2, 2
v_lshlrev_b32 v{vRR}, 9, v{vT}
v_bfe_u32 v{vT}, v{vLANE}, 2, 1
v_lshl_add_u32 v{vRR}, v{vT}, 5, v{vRR}
v_bfe_u32 v{vT}, v{vLANE}, 3, 1
v_lshl_add_u32 v{vRR}, v{vT}, 7, v{vRR}
v_bfe_u32 v{vT}, v{vLANE}, 4, 1
v_lshl_add_u32 v{vRR}, v{vT}, 6, v{vRR}
v_lshrrev_b32 v{vT}, 5, v{vLANE}
v_lshl_add_u32 v{vRR}, v{vT}, 5, v{vRR}
v_and_b32 v{vT}, 3, v{vLANE}
v_lshl_add_u32 v{vRR}, v{vT}, 3, v{vRR}
s_lshr_b32 s{S_T0}, s{S_WAVE}, 1
s_lshl_b32 s{S_T0}, s{S_T0}, 11
s_and_b32 s{S_T1}, s{S_WAVE}, 1
s_lshl_b32 s{S_T1}, s{S_T1}, 7
s_add_u32 s{S_T0}, s{S_T0}, s{S_T1}
v_add_u32 v{vRR}, s{S_T0}, v{vRR}""")
    a(f"""v_and_b32 v{vT}, 31, v{vLANE}
v_lshlrev_b32 v{vRV}, 2, v{vT}
v_lshrrev_b32 v{vT}, 5, v{vLANE}
v_lshl_add_u32 v{vRV}, v{vT}, 10, v{vRV}
v_add_u32 v{vRV}, s{S_T0}, v{vRV}""")
    a(f"""v_bfe_u32 v{vT}, v{vLANE}, 2, 3
v_lshlrev_b32 v{vKO}, 4, v{vT}
v_lshrrev_b32 v{vT}, 5, v{vLANE}
v_lshl_add_u32 v{vKO}, v{vT}, 8, v{vKO}
v_bfe_u32 v{vT}, v{vLANE}, 1, 1
v_lshl_add_u32 v{vKO}, v{vT}, 7, v{vKO}
v_and_b32 v{vT}, 1, v{vLANE}
v_lshl_add_u32 v{vKO}, v{vT}, 2, v{vKO}
s_lshr_b32 s{S_T0}, s{S_WAVE}, 1
s_lshl_b32 s{S_T0}, s{S_T0}, 9
s_and_b32 s{S_T1}, s{S_WAVE}, 1
s_lshl_b32 s{S_T1}, s{S_T1}, 3
s_add_u32 s{S_T0}, s{S_T0}, s{S_T1}
v_add_u32 v{vKO}, s{S_T0}, v{vKO}""")
    a(f"""v_lshlrev_b32 v{vPO}, 3, v{vLANE}
s_lshl_b32 s{S_T0}, s{S_WAVE}, 9
v_add_u32 v{vPO}, s{S_T0}, v{vPO}
s_lshl_b32 s{S_T0}, s{S_WAVE}, 8
v_add_u32 v{vMO}, s{S_T0}, v{vL4}
v_add_u32 v{vI16}, s{S_T0}, v{vL16}""")
    M0R = RP
    a(f"""v_bfe_u32 v{vT}, v{vLANE}, 2, 3
v_lshlrev_b32 v{vT2}, 11, v{vT}
v_lshrrev_b32 v{vT}, 5, v{vLANE}
v_lshl_add_u32 v{vT2}, v{vT}, 4, v{vT2}
v_and_b32 v{vT}, 3, v{vLANE}
v_lshl_add_u32 v{vT2}, v{vT}, 2, v{vT2}
s_lshl_b32 s{S_T0}, s{S_J}, 7
s_lshl_b32 s{S_T1}, s{S_WAVE}, 5
s_add_u32 s{S_T0}, s{S_T0}, s{S_T1}
buffer_load_dword v{M0R}, v{vT2}, s[{S_W2}:{S_W2+3}], s{S_T0} offen
s_waitcnt vmcnt(0)""")
    sstamp(a, 7, cfg)
    a("s_waitcnt lgkmcnt(0)")
    startup_barrier(a, MI + 2)
    def keep32():
        a(f"v_mfma_f32_32x32x16_bf16 {vr(QF,16)}, {vr(SENT,4)}, {vr(SENT,4)}, {vr(QF,16)}")
    L_K = L_W

    def epi(AC, lbase, pad, keep, tag, extra=None):
        sw = lambda p, r: f"v_permlane32_swap_b32 v{AC+8*p+r}, v{AC+8*p+4+r}"
        ad = lambda p, r: f"v_add_f32 v{AC+8*p+r}, v{AC+8*p+r}, v{AC+8*p+4+r}"
        wr = lambda p, r: f"ds_write_addtid_b32 v{AC+8*p+r} offset:{lbase + (p*4+r)*512 + (pad and (r % 2) * 32 + (r // 2) * 128)}"
        ex = extra or (lambda k: None)
        ex(0)
        for r in range(4):
            a(sw(0, r))
            if r % 2: ex(1 + r // 2)
        for r in range(4): a(ad(0, r))
        ex(3)
        for r in range(4):
            a(sw(1, r)); a(wr(0, r))
            if r % 2: ex(4 + r // 2)
        for r in range(4): a(ad(1, r))
        keep(0)
        for r in range(4): a(wr(1, r))
        probe(a, tag + "w", cfg)
        keep(1)
        a("s_waitcnt lgkmcnt(0)\ns_barrier")
        probe(a, tag + "b", cfg)

    def sum4(reads, keep):
        a(reads[0]); a(reads[1]); keep(2); a(reads[2]); a(reads[3]); keep(3)
        a("s_waitcnt lgkmcnt(2)")
        a(f"v_add_f32 v{RD}, v{RD}, v{RD+2}\nv_add_f32 v{RD+1}, v{RD+1}, v{RD+3}")
        a("s_waitcnt lgkmcnt(0)")
        a(f"v_add_f32 v{RD+4}, v{RD+4}, v{RD+6}\nv_add_f32 v{RD+5}, v{RD+5}, v{RD+7}")
        a(f"v_add_f32 v{RD}, v{RD}, v{RD+4}\nv_add_f32 v{RD+1}, v{RD+1}, v{RD+5}")

    def kpoll(loads, F, wbase, stamp_idx, o):
        def mm(f, ct):
            a(f"v_smfmac_f32_16x16x64_bf16 {vr(ACC+4*ct,4)}, {vr(F+4*f,4)}, {ar(wbase+(f*4+ct)*8,8)}, v{vIDX}")
        if o.get("pre", 0): a.fill(o["pre"])
        def consume(g, k, chk):
            for ct in range(4):
                mm(g, ct)
                if chk: a(chk[ct])
        ring_poll2(a, loads, [F + 4 * f for f in range(4)], vT, consume, a.uid("kj"), space=o.get("space", 4), on_first=lambda: stamp(a, stamp_idx, cfg), rfill=o.get("rfill", 3))

    a(f"""s_bcnt1_i32_b32 s{S_T0}, s{S_NEAR}
s_cmp_ge_u32 s{S_T0}, 4
s_cselect_b32 s{S_T0}, 0x2000, 0
s_add_u32 s{S_OFF_F}, s{S_OFF_F}, s{S_T0}
s_lshl_b32 m0, s{S_WAVE}, 12
s_barrier""")
    a.set_filler(vD)
    store_mode(a, f"buffer_store_dword v{M0R}, v{vMO}, {WS}, s{S_OFF_E} offen")
    a(f"s_mov_b32 s{S_STEP}, 0")
    for i in range(32): a(f"v_mov_b32 v{ACC+i}, 0")
    for i in range(16): a(f"v_mov_b32 v{G+i}, -1")

    a.label("V_loop")
    stamp(a, 0, cfg)
    a(f"s_add_u32 s85, s{S_OFF_B}, {WS_KM:#x}\ns_add_u32 s86, s{S_OFF_B}, {WS_VM:#x}")
    kpoll([f"buffer_load_dwordx4 {vr(G+4*i,4)}, v{vGOFF}, {WS}, s{S_OFF_A} offen offset:{1024*i} sc1" for i in range(4)], G, 0, 1, cfg.get("v_mem", {}))
    vq = [(f, ct) for p in range(2) for f in range(4) for ct in (2 * p, 2 * p + 1)]
    def vm_(n):
        for _ in range(min(n, len(vq))):
            f, ct = vq.pop(0)
            a(f"v_smfmac_f32_16x16x64_bf16 {vr(ACC2+4*ct,4)}, {vr(G+4*f,4)}, {vr(WV+(f*4+ct)*8,8)}, v{vIDX}")
    nk = cfg.get("vk", (1, 3, 1, 3))
    ne = cfg.get("ve", (0, 0, 0, 0, 0, 0))
    epi(ACC, L_K, 1, lambda k: vm_(nk[k]), "kk", lambda k: vm_(ne[k]))
    a(f"s_cmp_eq_u32 s{S_MODE}, 1")
    sum4([f"ds_read_b64 {vr(RD+2*src,2)}, v{vRR} offset:{L_K + src*4096}" for src in range(4)], lambda k: vm_(nk[k]))
    a(f"v_cvt_pk_bf16_f32 v{MI}, v{RD}, v{RD+1}")
    store_mode2(a, f"buffer_store_dword v{MI}, v{vKO}, {WS}, s85 offen")
    stamp(a, 6, cfg)
    vm_(16)
    epi(ACC2, L_MEM, 0, lambda k: keep32(), "kv")
    sum4([f"ds_read2st64_b32 {vr(RD+2*src,2)}, v{vRV} offset0:{(L_MEM + src*4096)//256} offset1:{(L_MEM + src*4096)//256 + 2}" for src in range(4)], lambda k: keep32())
    a(f"v_cvt_pk_bf16_f32 v{MI+1}, v{RD}, v{RD+1}")
    store_mode2(a, f"buffer_store_dword v{MI+1}, v{vVMO}, {WS}, s86 offen")
    stamp(a, 2, cfg)
    if "post_vm" in hooks: hooks["post_vm"](MI + 2)
    a(f"""s_cmp_eq_u32 s{S_STEP}, {NSEG-1}
s_cbranch_scc1 L_done""")
    a("s_waitcnt vmcnt(2)")
    for i in range(32): a(f"v_mov_b32 v{ACC+i}, 0")
    for i in range(16): a(f"v_mov_b32 v{G+i}, -1\nv_mov_b32 v{OF+i}, -1")
    for i in range(6): a(f"v_mov_b32 v{RP+i}, -1")
    a(f"""s_and_b32 s88, s{S_STEP}, 7
s_lshl_b32 s88, s88, 16
s_add_u32 s88, s88, {WS_OM:#x}
s_mov_b32 s{S_PCUR}, s{S_OFF_F}""")
    for x in range(1, 4):
        a(f"s_xor_b32 s{S_T0+x}, s{S_PCUR}, {x << 16:#x}")
    if cfg.get("v_sleep"): a(f"s_sleep {cfg['v_sleep']}")
    kpoll([f"buffer_load_dwordx4 {vr(OF+4*f,4)}, v{vOMO}, {WS}, s88 offen offset:{1024*f} sc1" for f in range(4)], OF, 128, 3, cfg.get("v_om", {}))
    epi(ACC, L_RED, 1, lambda k: keep32(), "k3")
    sum4([f"ds_read_b64 {vr(RD+2*src,2)}, v{vRR} offset:{L_RED + src*4096}" for src in range(4)], lambda k: keep32())
    o = cfg.get("v_part", {})
    l3 = "\n".join(f"buffer_load_dwordx2 {vr(RP+2*(x-1),2)}, v{vPO}, {WS}, s{S_T0+x} offen sc1" for x in range(1, 4))
    a(f"buffer_store_dwordx2 {vr(RD,2)}, v{vPO}, {WS}, s{S_PCUR} offen sc1")
    stamp(a, 4, cfg)
    a(f"""s_add_u32 s{S_OFF_E}, s{S_OFF_E}, 0x4000
s_bitset0_b32 s{S_OFF_E}, 17
s_add_u32 s{S_OFF_A}, s{S_OFF_A}, 0x4000
s_bitset0_b32 s{S_OFF_A}, 17
s_add_u32 s{S_OFF_B}, s{S_OFF_B}, 0x10000
s_bitset0_b32 s{S_OFF_B}, 19
s_add_u32 s{S_OFF_F}, s{S_OFF_F}, 0x40000
s_bitset0_b32 s{S_OFF_F}, 21""")
    if o.get("presleep", 3): a(f"s_sleep {o.get('presleep', 3)}")
    for i in range(16): a(f"v_mov_b32 v{ACC+i}, 0")
    pp = SPoll(a, [l3], [list(range(RP, RP + 6))], vT, cap=o.get("cap", 30), sleep=o.get("sleep", 4), pre_sleep=o.get("pre", 12))
    pp.first(prefill=False)
    a(f"""s_cmp_eq_u32 s{S_MODE}, 1
v_pk_add_f32 {vr(RD,2)}, {vr(RD,2)}, {vr(RP,2)}
v_pk_add_f32 {vr(RD+2,2)}, {vr(RP+2,2)}, {vr(RP+4,2)}
v_pk_add_f32 {vr(RD,2)}, {vr(RD,2)}, {vr(RD+2,2)}
v_cvt_pk_bf16_f32 v{MI}, v{RD}, v{RD+1}""")
    store_mode2(a, f"buffer_store_dword v{MI}, v{vMO}, {WS}, s{S_OFF_E} offen")
    stamp(a, 5, cfg)
    stamp_flush(a, cfg)
    a(f"""s_add_u32 s{S_STEP}, s{S_STEP}, 1
s_branch V_loop""")
    a.flush_deferred()
    a.set_filler(None)
```

```python
from asmgen import *
from chain import budget_head
WS_OXF = 0x9000000


def tail_task(a, ws, sw, sout, s_wave, s_cs, s_unit, cnt_base, cfg):
    WS = f"s[{ws}:{ws+3}]"
    VL, L16, ZERO = 0, 4, 6
    vD, vT, vWT, vRW, vRR, vO = 8, 9, 10, 11, 12, 13
    ACC, RD, XR = 16, 32, 64
    NX = 48
    a(f"""v_lshrrev_b32 v{vT}, 2, v{VL}
v_lshlrev_b32 v{vD}, 11, v{vT}
v_and_b32 v{vT}, 3, v{VL}
v_lshl_add_u32 v{vD}, v{vT}, 4, v{vD}
s_lshl_b32 s36, s{s_wave}, 21
s_lshl_b32 s37, s{s_cs}, 6
s_add_u32 s36, s36, s37
s_lshl_b32 s38, s{s_wave}, 15
v_lshrrev_b32 v{vT}, 2, v{VL}
v_lshlrev_b32 v{vWT}, 6, v{vT}
v_and_b32 v{vT}, 3, v{VL}
v_lshl_add_u32 v{vWT}, v{vT}, 3, v{vWT}
v_add_u32 v{vWT}, s38, v{vWT}""")
    for rnd in range(2):
        for i in range(32):
            a(f"s_add_u32 m0, s38, {i*1024}")
            a(f"s_add_u32 s37, s36, {(rnd*512 + i*16) << 11:#x}")
            a(f"buffer_load_dwordx4 v{vD}, s[{sw}:{sw+3}], s37 offen lds")
        for k in range(16):
            a(f"s_waitcnt vmcnt({30 - 2*k})")
            for ct in range(2):
                for u in range(2):
                    a(f"ds_read_b64_tr_b16 {ar(((rnd*16+k)*2+ct)*4+2*u,2)}, v{vWT} offset:{(32*k+16*u)*64 + ct*32}")
            a("s_waitcnt lgkmcnt(8)")
        a("s_waitcnt lgkmcnt(0)")
    vTC = 14
    a(f"""s_lshl_b32 s36, s{s_wave}, 11
v_add_u32 v{vRW}, s36, v{L16}
s_and_b32 s37, s{s_wave}, 1
s_lshl_b32 s36, s37, 10
v_add_u32 v{vRR}, s36, v{L16}
v_and_b32 v{vT}, 15, v{VL}
v_lshlrev_b32 v{vO}, 12, v{vT}
v_lshrrev_b32 v{vT}, 4, v{VL}
v_lshl_add_u32 v{vO}, v{vT}, 3, v{vO}
s_lshl_b32 s36, s37, 5
s_lshl_b32 s37, s{s_cs}, 6
s_add_u32 s36, s36, s37
v_add_u32 v{vO}, s36, v{vO}
v_and_b32 v{vT}, {7 if cfg["tail_stride"] == 4 else 15}, v{VL}
v_lshlrev_b32 v{vTC}, {12 if cfg["tail_stride"] == 4 else 11}, v{vT}
s_and_b32 s36, s{s_cs}, {31 if cfg["tail_stride"] == 4 else 15}
s_lshl_b32 s36, s36, 7
v_add_u32 v{vTC}, s36, v{vTC}
s_barrier""")
    lp, dep, go, nf, pre, nopre, ld_done = (a.uid("tl") for _ in range(7))
    st = cfg["tail_stride"]
    vC = 15
    def base(dst, add):
        a(f"""s_add_u32 s{dst}, s{s_unit}, {add}
s_lshl_b32 s{dst}, s{dst}, 17
s_lshl_b32 s36, s{s_wave}, 15
s_add_u32 s{dst}, s{dst}, s36
s_add_u32 s{dst}, s{dst}, {WS_OXF:#x}""")
    def cnt_addr(add):
        a(f"""s_add_u32 s39, s{s_unit}, {add}
s_lshr_b32 s39, s39, 1
s_lshl_b32 s39, s39, 7
s_add_u32 s39, s39, {cnt_base:#x}""")
    def ld(i, b):
        if i % 4 == 0: a(f"s_add_u32 s37, s{b}, {i*1024:#x}")
        a(f"buffer_load_dwordx4 {vr(XR+4*i,4)}, v{L16}, {WS}, s37 offen offset:{(i%4)*1024} sc1")
    a.label(lp)
    cnt_addr(0)
    a.label(dep)
    budget_head(a)
    a(f"""buffer_load_dword v{vT}, v{ZERO}, {WS}, s39 offen sc1
s_waitcnt vmcnt(0)
v_readfirstlane_b32 s36, v{vT}
s_nop 3
s_cmp_ge_u32 s36, 64
s_cbranch_scc1 {go}
s_sleep {cfg.get("tail_sleep", 6)}
s_branch {dep}
{go}:""")
    base(38, 0)
    cnt_addr(st)
    if cfg.get("tail_touch", 1):
        a(f"buffer_load_dword v{vT}, v{vTC}, {WS}, s38 offen sc1")
        if cfg.get("tail_touch", 1) == 2: a("s_waitcnt vmcnt(0)")
    a(f"buffer_load_dword v{vC}, v{ZERO}, {WS}, s39 offen sc1")
    for i in range(32): ld(i, 38)
    a.label(ld_done)
    base(38, st)
    cnt_addr(2 * st)
    a(f"""s_waitcnt vmcnt(32)
v_readfirstlane_b32 s52, v{vC}
s_add_u32 s36, s{s_unit}, {st}
s_cmp_ge_u32 s36, 128
s_cselect_b32 s52, 0, s52
s_cmp_ge_u32 s52, 64
s_cbranch_scc1 {pre}""")
    def mms(ks):
        for ct in range(2):
            d = ACC + 4 * ct
            C = "0" if ks == 0 else vr(d, 4)
            a(f"v_mfma_f32_16x16x32_bf16 {vr(d,4)}, {ar((ks*2+ct)*4,4)}, {vr(XR+4*ks,4)}, {C}")
    for ks in range(32):
        a(f"s_waitcnt vmcnt({31 - ks})")
        mms(ks)
    a(f"s_branch {nopre}")
    a.label(pre)
    a(f"buffer_load_dword v{vC}, v{ZERO}, {WS}, s39 offen sc1")
    for ks in range(32):
        a("s_waitcnt vmcnt(32)")
        mms(ks)
        ld(ks, 38)
    a.label(nopre)
    a("s_barrier")
    for t in range(2):
        a(f"ds_write_b128 v{vRW}, {vr(ACC+4*t,4)} offset:{t*1024}")
    a(f"""s_waitcnt lgkmcnt(0)
s_barrier
s_cmp_ge_u32 s{s_wave}, 2
s_cbranch_scc1 {nf}""")
    for src in range(4):
        a(f"ds_read_b128 {vr(RD+4*src,4)}, v{vRR} offset:{src*2048}")
    a("s_waitcnt lgkmcnt(0)")
    for h in (0, 2):
        a(f"v_pk_add_f32 {vr(RD+h,2)}, {vr(RD+h,2)}, {vr(RD+4+h,2)}")
        a(f"v_pk_add_f32 {vr(RD+8+h,2)}, {vr(RD+8+h,2)}, {vr(RD+12+h,2)}")
        a(f"v_pk_add_f32 {vr(RD+h,2)}, {vr(RD+h,2)}, {vr(RD+8+h,2)}")
    a(f"""v_cvt_pk_bf16_f32 v{RD+4}, v{RD}, v{RD+1}
v_cvt_pk_bf16_f32 v{RD+5}, v{RD+2}, v{RD+3}
s_lshl_b32 s36, s{s_unit}, 16
buffer_store_dwordx2 {vr(RD+4,2)}, v{vO}, s[{sout}:{sout+3}], s36 offen
{nf}:
s_add_u32 s{s_unit}, s{s_unit}, {st}
s_cmp_ge_u32 s52, 64
s_cbranch_scc1 {ld_done}
s_cmp_lt_u32 s{s_unit}, 128
s_cbranch_scc1 {lp}""")
```

```python
import sys
from asmgen import *
from chain import *
from chain5 import s_cu, v_cu, DBG, WS, WS_CNT, wait_all_arrived
from gemm import *
from tail import tail_task
from battn import WS_QB, WS_KB, WS_VB, WS_OB
from battn2 import battn_task

PFX = "concat_heads__memory_aug_recurrent_mem_tr__mha_block__prompt"
NAME = PFX + "_kernel"
C_Q, C_TK, C_OVF = 32, 40, 42
C_QKV, C_BQKV, C_BAT, C_OXB, C_OXS = 0, 144, 148, 156, 168
NOSIG = 255
S_INIT = 47
T_MQKV, T_BQKV, T_BB, T_ATT, T_OB, T_OA, T_PF, T_TAIL = range(8)
L_TICKET = 0x20000
P_AX, P_WQ, P_WK, P_WV, P_WO, P_BX, P_BW, P_BO = 60, 62, 64, 66, 68, 70, 72, 74
S_D0, S_D1, S_D2, S_GRP, S_P1, S_P2, S_TYP, S_MAT, S_EB = 84, 85, 86, 58, 59, 88, 89, 93, 92
S_TAB = 90
S_OUT = 24


def desc(typ, p1, p2, wait=None, sig=NOSIG):
    wi, wt = wait if wait else (NOSIG, 0)
    return (typ | p1 << 4 | p2 << 12, wi | wt << 8 | sig << 20)


def coop(tiles, n=256):
    out = []
    kx = lambda d: (d[0] & 15, (d[0] >> 4) & 255)
    kw = lambda d: (d[0] & 15, (d[0] >> 12) & 255)
    def share(d, key):
        grp = [t for t in tiles if key(t) == key(d)]
        if len(grp) == 1: return 0, 0
        i = grp.index(d)
        lo, hi = i * n // len(grp), (i + 1) * n // len(grp)
        return lo, hi - lo
    for d in tiles:
        xf, xc = share(d, kx); wf, wc = share(d, kw)
        assert (xc + 63) // 64 + (wc + 63) // 64 <= 4
        out.append(d + (xf | xc << 8 | wf << 16 | wc << 24,))
    return out


def ox_counter(blk):
    return (C_OXB + blk, 128) if blk < 12 else None


def schedule(cfg):
    L = [[] for _ in range(8)]
    def mq(rb, x):
        return [desc(T_MQKV, rb, mat * 32 + 8 * x + i, sig=C_QKV + rb * 16 + (8 * x + i) // 2) for i in range(8) for mat in (1, 2, 0)]
    def bq(mb, x):
        return [desc(T_BQKV, mb, mat * 16 + 4 * x + i, sig=C_QKV + (1 + mb) * 16 + 4 * x + i) for i in range(4) for mat in (1, 2, 0)]
    def bb(hg):
        return [desc(T_BB, mb, mat * 4 + hg, sig=C_BQKV + hg) for mat in (1, 2, 0) for mb in range(8)]
    def att(h):
        return [desc(T_ATT, h, qb, wait=(C_BQKV + h // 8, 24), sig=C_BAT + qb) for qb in range(8)]
    def ob(blk):
        return [desc(T_OB, blk, nb, wait=(C_BAT + blk // 2, 32)) for nb in range(8)]
    def oa(blk):
        if blk < 10: w = (C_OXB + blk, 256)
        else: w = (C_OXS + (blk - 10) * 4 + 3, 64)
        return [desc(T_OA, blk, nb, wait=w) for nb in range(8)]
    def bqr(mbs, x):
        cols = list(zip(*[bq(mb, x) for mb in mbs]))
        return [t for c in cols for t in c]
    def pf(mat, pat, off, rows=128):
        return (T_PF | mat << 4 | pat << 12, off, rows // 2)
    def slowcols(g, mats):
        return [pf(m, 0, (g * 1024 * 2048 + ln * 128) if m == 3 else (16 * g + ln) * 128) for m in mats for ln in (3, 11)]
    for g in range(4):
        L[g] += [pf(3, 1, (g * 1024 + k * 128) * 2048) for k in range(8)]
    t0 = cfg["tail_seg0"]
    nblk = t0 // 4
    def tail(cs, k): return desc(T_TAIL, cs, 2 * t0 + k)
    def attq(hg, qb):
        return [desc(T_ATT, 8 * hg + i, qb, wait=(C_BQKV + hg, 24), sig=C_BAT + qb) for i in range(8)]
    for x in range(4):
        pools = {"A": [attq(x, q) for q in range(8)], "B": [coop(bqr((5, 6), x))], "C": [coop(bq(7, x))],
                 "O": [oa(b) for b in range(x, nblk, 4)], "o": [ob(b) for b in range(x, 16, 4)]}
        if cfg["tail_stride"] == 4: pools["T"] = [[tail(i, x) for i in range(8 * k, 8 * k + 8)] for k in range(4)]
        else: pools["T"] = [[tail(16 * (x // 2) + i, x % 2) for i in range(8 * k, 8 * k + 8)] for k in range(2)]
        allpf = [(5, r) for r in range(0, 2048, 128)] + [(6, r) for r in range(0, 3072, 128)] + [(7, r) for r in range(0, 1024, 128)] + [(4, r) for r in range(1280, 2048, 128)]
        bpf = [pf(m, 1, r * 2048, 128) for m, r in allpf[x::4]]
        L[x] += coop(bq(1, x)[8:] + bq(4, x)[8:]) + bpf
        take = cfg.get("small", ["A0", "A1"])
        for it in take:
            if int(it[1:]) < len(pools[it[0]]): L[x] += pools[it[0]][int(it[1:])]
        for k in pools:
            pools[k] = [b for i, b in enumerate(pools[k]) if f"{k}{i}" not in take]
        l = L[4 + x]
        xpf = [pf(4, 1, k * 32 * 2048, 32) for k in range(8)]
        l += xpf + mq(0, x) + slowcols(x, (0, 1, 2)) + coop(bq(1, x)[:8]) + mq(1, x) + coop(bqr((2, 3), x)) + coop(bq(4, x)[:8]) + coop(bb(x))
        pools["c"] = []
        od = cfg.get("orders", {3: "CBOAAAAOAcAoOTTooo"}).get(x, cfg.get("order", "OBAAAOCAAAoOoTToo"))
        if "c" in od:
            pools["C"] = [coop(bq(7, x)[:8])]; pools["c"] = [coop(bq(7, x)[8:])]
        for ch in od:
            if pools[ch]: l += pools[ch].pop(0)
        assert not any(pools.values()), {k: len(v) for k, v in pools.items()}
    return L


def worker(a, cfg):
    big = Gemm(8, 8, 2, dict({"touch": True}, **cfg.get("big", {})))
    med = Gemm(4, 4, 4, cfg.get("med", {}))
    lists = schedule(cfg)
    MAXL = max(len(l) for l in lists)
    a(f"""v_and_b32 v0, 63, v0
v_lshlrev_b32 v{V_L16}, 4, v0
s_load_dwordx2 s[{P_AX}:{P_AX+1}], s[0:1], 0
s_load_dwordx2 s[{P_WQ}:{P_WQ+1}], s[0:1], 16
s_load_dwordx4 s[{P_WK}:{P_WK+3}], s[0:1], 24
s_load_dwordx2 s[{P_WO}:{P_WO+1}], s[0:1], 40
s_load_dwordx2 s[{P_BX}:{P_BX+1}], s[0:1], 56
s_load_dwordx4 s[{P_BW}:{P_BW+3}], s[0:1], 64
s_getpc_b64 s[{S_TAB}:{S_TAB+1}]
W_pc:
s_add_u32 s{S_TAB}, s{S_TAB}, W_table-W_pc
s_addc_u32 s{S_TAB+1}, s{S_TAB+1}, 0
s_waitcnt lgkmcnt(0)""")
    for p in range(P_AX, P_BO + 2, 2): a(f"s_and_b32 s{p+1}, s{p+1}, 0xffff")
    srd(a, S_OUT, 80, 2048 * 4096)
    row_voff(a)
    a(f"""s_mov_b32 s{G_SX+3}, 0x20000
s_mov_b32 s{G_SW+3}, 0x20000
s_mov_b32 s{G_NXOFF}, {OOB:#x}
s_mov_b32 s{G_NWOFF}, {OOB:#x}
v_mov_b32 v5, {L_TICKET:#x}
v_mov_b32 v6, 0""")
    a(f"s_mov_b32 s{S_INIT}, 0")
    def init_check(vt):
        sk = a.uid("ic")
        a(f"s_cmp_eq_u32 s{S_INIT}, 1\ns_cbranch_scc1 {sk}")
        wait_all_arrived(a, vt, 37)
        a(f"s_mov_b32 s{S_INIT}, 1")
        a.label(sk)
    S_PE, S_PEB, S_PSIG, S_PC, S_TKQ, S_RET = 32, 31, 49, 50, 29, 3
    a(f"""s_mov_b32 s{S_PE}, 0
s_mov_b32 s{S_PSIG}, {NOSIG}
s_mov_b32 s{S_TKQ}, 0""")
    def ticket_ool(back):
        lb = a.uid("tk")
        a.defer(lambda: a(f"""{lb}:
s_mov_b32 s{S_TKQ}, 1
s_cmp_lg_u32 s{S_WAVE}, 0
s_cbranch_scc1 {back}
v_mov_b32 v7, 1
s_lshl_b32 s38, s{S_GRP}, 2
s_mov_b64 exec, 1
buffer_atomic_add v7, v6, {DBG}, s38 offen offset:{C_Q*4} sc0 sc1
s_mov_b64 exec, -1
s_branch {back}"""))
        return lb
    def h_ticket(cnt):
        back = a.uid("tb")
        return f"s_cmp_eq_u32 s{G_CNT}, {cnt}\ns_cbranch_scc1 {ticket_ool(back)}\n{back}:"
    def h_ticket_now():
        back = a.uid("tb")
        return f"s_cmp_eq_u32 s{S_TKQ}, 0\ns_cbranch_scc1 {ticket_ool(back)}\n{back}:"
    def h_pre_bar():
        sk = a.uid("pb")
        return f"s_cmp_eq_u32 s{S_PSIG}, {NOSIG}\ns_cbranch_scc1 {sk}\ns_waitcnt vmcnt(0)\n{sk}:"
    def h_post_bar():
        lb, back = a.uid("sg"), a.uid("sb")
        def ool():
            a(f"""{lb}:
s_lshl_b32 s38, s{S_PSIG}, 7
s_mov_b32 s{S_PSIG}, {NOSIG}
s_cmp_lg_u32 s{S_WAVE}, 0
s_cbranch_scc1 {back}""")
            init_check(248)
            a(f"""s_add_u32 s38, s38, {WS_CNT:#x}
v_mov_b32 v3, 1
s_mov_b64 exec, 1
buffer_atomic_add v3, v6, {WS}, s38 offen sc1
s_mov_b64 exec, -1
s_branch {back}""")
        a.defer(ool)
        return f"s_cmp_lg_u32 s{S_PSIG}, {NOSIG}\ns_cbranch_scc1 {lb}\n{back}:"
    hooks = {"ticket": h_ticket, "ticket_now": h_ticket_now, "pre_bar": h_pre_bar, "post_bar": h_post_bar, "epi_first": cfg.get("epi_first", 1)}
    big.hooks = med.hooks = hooks
    def run_pending(ret):
        a(f"s_mov_b32 s{S_RET}, {ret}\ns_cmp_lg_u32 s{S_PE}, 0\ns_cbranch_scc1 W_epi\nW_ret{ret}:")
    def flush():
        a("s_waitcnt vmcnt(0)\ns_barrier"); a(h_post_bar())

    a(f"""s_sub_u32 s37, s{S_J}, 24
s_cmp_lt_u32 s{S_GRP}, 4
s_cselect_b32 s36, s37, s{S_J}
s_cselect_b32 s{S_J}, 8, 32
s_branch W_have""")
    a.label("W_next")
    if cfg.get("wstamps"):
        sk = a.uid("ws")
        a(f"""s_cmp_lg_u32 s{S_WAVE}, 1
s_cbranch_scc1 {sk}
s_memrealtime s[44:45]
s_memtime s[80:81]
s_waitcnt lgkmcnt(0)
s_sub_u32 s80, s80, s76
v_mov_b32 v60, s40
v_mov_b32 v61, s42
v_mov_b32 v62, s44
v_mov_b32 v63, s80
s_lshl_b32 s36, s46, 4
s_add_u32 s36, s36, {0x8000000:#x}
s_mov_b64 exec, 1
buffer_store_dwordx4 v[60:63], v6, {WS}, s36 offen
s_mov_b64 exec, -1
{sk}:""")
    a(f"""s_lshr_b32 s{S_PSIG}, s{S_D1}, 20
s_mov_b32 s{S_TKQ}, 0
s_cmp_eq_u32 s{S_D0+3}, 0
s_cbranch_scc1 W_nu
s_waitcnt vmcnt(0)
W_nu:
s_cmp_lg_u32 s{S_WAVE}, 0
s_cbranch_scc1 W_tk
s_mov_b64 exec, 1
ds_write_b32 v5, v7
s_mov_b64 exec, -1
W_tk:
s_waitcnt lgkmcnt(0)
s_barrier
s_cmp_eq_u32 s{S_D0+3}, 0
s_cbranch_scc1 W_nu2""")
    a(h_post_bar())
    a(f"""W_nu2:
ds_read_b32 v1, v5
s_waitcnt lgkmcnt(0)
v_readfirstlane_b32 s36, v1
s_nop 3
s_add_u32 s36, s36, s{S_J}
W_have:
s_min_u32 s36, s36, {MAXL}
s_mul_i32 s37, s{S_GRP}, {MAXL+1}
s_add_u32 s36, s36, s37
s_lshl_b32 s36, s36, 4
s_load_dwordx4 s[{S_D0}:{S_D0+3}], s[{S_TAB}:{S_TAB+1}], s36
s_waitcnt lgkmcnt(0)
s_and_b32 s{S_TYP}, s{S_D0}, 15
s_bfe_u32 s{S_P1}, s{S_D0}, 0x80004
s_bfe_u32 s{S_P2}, s{S_D0}, 0x8000c""")
    if cfg.get("wstamps"):
        a(f"s_memrealtime s[40:41]\ns_lshr_b32 s46, s36, 4")
    a(f"""s_cmp_lt_u32 s{S_TYP}, {T_ATT}
s_cbranch_scc1 W_go""")
    a(f"""s_cmp_ge_u32 s{S_TYP}, {T_PF}
s_cbranch_scc1 W_slow
s_cmp_lg_u32 s{S_WAVE}, 0
s_cbranch_scc1 W_q2""")
    init_check(40)
    a(f"""s_and_b32 s39, s{S_D1}, 0xff
s_lshl_b32 s39, s39, 7
s_add_u32 s39, s39, {WS_CNT:#x}
buffer_load_dword v1, v6, {WS}, s39 offen sc1
s_waitcnt vmcnt(0)
s_mov_b64 exec, 1
ds_write_b32 v5, v1 offset:4
s_mov_b64 exec, -1
s_waitcnt lgkmcnt(0)
W_q2:
s_barrier
ds_read_b32 v1, v5 offset:4
s_bfe_u32 s38, s{S_D1}, 0xc0008
s_waitcnt lgkmcnt(0)
v_readfirstlane_b32 s36, v1
s_nop 3
s_cmp_ge_u32 s36, s38
s_cbranch_scc1 W_go
W_slow:""")
    run_pending(1)
    flush()
    a(f"""s_cmp_eq_u32 s{S_TYP}, 15
s_cbranch_scc1 L_done
s_cmp_eq_u32 s{S_TYP}, {T_PF}
s_cbranch_scc1 W_pf
s_cmp_eq_u32 s{S_TYP}, {T_TAIL}
s_cbranch_scc1 W_tail
s_cmp_lg_u32 s{S_WAVE}, 0
s_cbranch_scc1 W_go2""")
    init_check(200)
    a(f"""s_bfe_u32 s38, s{S_D1}, 0xc0008
s_and_b32 s39, s{S_D1}, 0xff
s_lshl_b32 s39, s39, 7
s_add_u32 s39, s39, {WS_CNT:#x}
W_dep:""")
    budget_head(a)
    a(f"""buffer_load_dword v1, v6, {WS}, s39 offen sc1
s_waitcnt vmcnt(0)
v_readfirstlane_b32 s36, v1
s_nop 3
s_cmp_ge_u32 s36, s38
s_cbranch_scc1 W_go2
s_sleep {cfg.get("dep_sleep", 16)}
s_branch W_dep
W_go2:
s_barrier
W_go:""")
    if cfg.get("wstamps"):
        a(f"s_memrealtime s[42:43]\ns_memtime s[76:77]\ns_waitcnt lgkmcnt(0)")
    a(f"""s_cmp_eq_u32 s{S_TYP}, {T_ATT}
s_cbranch_scc1 W_att
s_cmp_ge_u32 s{S_TYP}, {T_OB}
s_cbranch_scc1 W_out
s_mov_b32 s{G_NST}, 16
s_mov_b32 s{G_PX}, 2048
s_mov_b32 s{G_XSTEP}, 128
s_mov_b32 s{G_SX+2}, {2048*2048:#x}
s_cmp_eq_u32 s{S_TYP}, {T_BB}
s_cbranch_scc1 W_bb""")
    def sel_w():
        a(f"""s_mov_b32 s{G_SX}, s{P_AX}
s_mov_b32 s{G_SX+1}, s{P_AX+1}
s_cmp_eq_u32 s{S_MAT}, 1
s_cselect_b32 s{G_SW}, s{P_WK}, s{P_WQ}
s_cselect_b32 s{G_SW+1}, s{P_WK+1}, s{P_WQ+1}
s_cselect_b32 s36, {WS_KX:#x}, {WS_QX:#x}
s_cmp_eq_u32 s{S_MAT}, 2
s_cselect_b32 s{G_SW}, s{P_WV}, s{G_SW}
s_cselect_b32 s{G_SW+1}, s{P_WV+1}, s{G_SW+1}
s_cselect_b32 s36, {WS_VX:#x}, s36
s_add_u32 s{S_EB}, s{S_EB}, s36
s_mov_b32 s{G_SW+2}, {1024*8192:#x}
s_mov_b32 s{G_PW}, 8192""")
    a(f"""s_cmp_eq_u32 s{S_TYP}, {T_BQKV}
s_cbranch_scc1 W_abig""")
    a(f"""s_lshr_b32 s{S_MAT}, s{S_P2}, 5
s_and_b32 s38, s{S_P2}, 31
s_lshl_b32 s{G_XOFF}, s{S_P1}, 18
s_lshl_b32 s{G_WOFF}, s38, 8
s_lshl_b32 s36, s{S_P1}, 1
s_lshr_b32 s37, s{S_WAVE}, 1
s_add_u32 s36, s36, s37
s_lshl_b32 s{S_EB}, s36, 19
s_lshl_b32 s36, s38, 13
s_add_u32 s{S_EB}, s{S_EB}, s36
s_and_b32 s37, s{S_WAVE}, 1
s_cmp_eq_u32 s{S_MAT}, 2
s_cselect_b32 s36, 12, 11
s_lshl_b32 s37, s37, s36
s_add_u32 s{S_EB}, s{S_EB}, s37""")
    sel_w()
    def done(pe):
        a(f"""s_mov_b32 s{S_PE}, {pe}
s_mov_b32 s{S_PEB}, s{S_EB}
s_mov_b32 s{S_PC}, s{S_C}
s_mov_b32 s{S_PC+1}, s{S_C}
s_waitcnt vmcnt(0)""")
        if cfg.get("epi_first", 1): a(f"s_mov_b32 s{S_RET}, 6\ns_branch W_epi")
        else: a("s_branch W_next")
    med.setup(a, S_WAVE, False)
    med.prologue(a, False)
    run_pending(2)
    med.prologue_wait(a, False)
    a(f"s_cmp_eq_u32 s{S_MAT}, 2\ns_cbranch_scc1 W_mv")
    med.tile(a, "W", False); done(1)
    a.label("W_mv")
    med.tile(a, "X", False); done(2)
    a.label("W_abig")
    a(f"""s_lshr_b32 s{S_MAT}, s{S_P2}, 4
s_and_b32 s38, s{S_P2}, 15
s_lshl_b32 s{G_XOFF}, s{S_P1}, 19
s_lshl_b32 s{G_WOFF}, s38, 9
s_lshl_b32 s36, s{S_P1}, 1
s_lshr_b32 s37, s{S_WAVE}, 1
s_add_u32 s36, s36, s37
s_lshl_b32 s{S_EB}, s36, 20
s_lshl_b32 s36, s38, 1
s_and_b32 s37, s{S_WAVE}, 1
s_add_u32 s36, s36, s37
s_lshl_b32 s36, s36, 13
s_add_u32 s{S_EB}, s{S_EB}, s36""")
    sel_w()
    a("s_branch W_biggo")
    a.label("W_bb")
    cb = f32bits(32 ** -0.5 * LOG2E)
    a(f"""s_lshr_b32 s{S_MAT}, s{S_P2}, 2
s_lshl_b32 s{G_XOFF}, s{S_P1}, 19
s_lshl_b32 s{G_WOFF}, s{S_P2}, 9
s_and_b32 s36, s{S_P2}, 3
s_lshl_b32 s36, s36, 1
s_and_b32 s37, s{S_WAVE}, 1
s_add_u32 s36, s36, s37
s_lshl_b32 s{S_EB}, s36, 19
s_lshl_b32 s36, s{S_P1}, 1
s_lshr_b32 s37, s{S_WAVE}, 1
s_add_u32 s36, s36, s37
s_lshl_b32 s36, s36, 13
s_add_u32 s{S_EB}, s{S_EB}, s36
s_lshl_b32 s36, s{S_MAT}, 22
s_add_u32 s{S_EB}, s{S_EB}, s36
s_add_u32 s{S_EB}, s{S_EB}, {WS_QB:#x}
s_cmp_eq_u32 s{S_MAT}, 0
s_cselect_b32 s{S_C}, {cb:#x}, 1.0
s_mov_b32 s{S_C+1}, s{S_C}
s_mov_b32 s{G_SX}, s{P_BX}
s_mov_b32 s{G_SX+1}, s{P_BX+1}
s_mov_b32 s{G_SW}, s{P_BW}
s_mov_b32 s{G_SW+1}, s{P_BW+1}
s_mov_b32 s{G_SW+2}, {1024*6144:#x}
s_mov_b32 s{G_PW}, 6144""")
    a.label("W_biggo")
    big.setup(a, S_WAVE, False)
    if big.touch: big.touch_setup(a, S_WAVE, S_D2)
    big.prologue(a, False)
    run_pending(3)
    big.prologue_wait(a, False)
    a(f"s_cmp_eq_u32 s{S_MAT}, 2\ns_cbranch_scc1 W_bv")
    big.tile(a, "W", False)
    a(f"s_add_u32 s36, s{S_TYP}, 2"); done("s36")
    a.label("W_bv")
    big.tile(a, "X", False)
    a(f"s_add_u32 s36, s{S_TYP}, 4"); done("s36")
    a.label("W_out")
    a(f"""s_mov_b32 s{G_SX}, s{S_WS}
s_mov_b32 s{G_SX+1}, s{S_WS+1}
s_mov_b32 s{G_SX+2}, s{S_WS+2}
s_mov_b32 s{G_PX}, 64
s_mov_b32 s{G_PW}, 2048
s_mov_b32 s{G_XSTEP}, 0x4000
s_lshl_b32 s{G_WOFF}, s{S_P2}, 8
s_lshl_b32 s36, s{S_P1}, 1
s_lshr_b32 s37, s{S_WAVE}, 1
s_add_u32 s36, s36, s37
s_lshl_b32 s{S_EB}, s36, 18
s_lshl_b32 s36, s{S_P2}, 1
s_and_b32 s37, s{S_WAVE}, 1
s_add_u32 s36, s36, s37
s_lshl_b32 s36, s36, 7
s_add_u32 s{S_EB}, s{S_EB}, s36
s_cmp_eq_u32 s{S_TYP}, {T_OA}
s_cselect_b32 s{G_SW}, s{P_WO}, s{P_BO}
s_cselect_b32 s{G_SW+1}, s{P_WO+1}, s{P_BO+1}
s_mov_b32 s36, {1024*2048:#x}
s_cselect_b32 s{G_SW+2}, {4096*2048:#x}, s36
s_cselect_b32 s{G_NST}, 64, 16
s_cselect_b32 s36, 20, 18
s_mov_b32 s37, {WS_OB - 4096:#x}
s_cselect_b32 s37, {WS_OX - 4096:#x}, s37
s_cselect_b32 s38, 0, 2048
s_lshl_b32 s{G_XOFF}, s{S_P1}, s36
s_add_u32 s{G_XOFF}, s{G_XOFF}, s37
s_add_u32 s{S_EB}, s{S_EB}, s38""")
    med.setup(a, S_WAVE, True, half=True)
    med.prologue(a, True, "sc1")
    run_pending(4)
    med.prologue_wait(a, True)
    med.tile(a, "W", True, "sc1"); done(7)
    a.label("W_epi")
    for pe in range(1, 7): a(f"s_cmp_eq_u32 s{S_PE}, {pe}\ns_cbranch_scc1 W_epi{pe}")
    row_voff(a)
    med.epilogue(a, med.ent_row(), S_OUT, S_PEB, V_ROW, swap=True)
    a.label("W_epiend")
    a(f"""s_mov_b32 s{S_PE}, 0
s_cmp_eq_u32 s{S_RET}, 6
s_cbranch_scc1 W_next
s_cmp_eq_u32 s{S_RET}, 1
s_cbranch_scc1 W_ret1
s_cmp_eq_u32 s{S_RET}, 2
s_cbranch_scc1 W_ret2
s_cmp_eq_u32 s{S_RET}, 4
s_cbranch_scc1 W_ret4
s_cmp_eq_u32 s{S_RET}, 5
s_cbranch_scc1 W_ret5
s_branch W_ret3""")
    for pe, g_, ent, vo, sc_ in ((1, med, med.ent_a_qk(), None, None), (2, med, med.ent_a_v(), None, None), (3, big, big.ent_a_qk(), None, None),
                                 (4, big, big.ent_b_qk32(), True, S_PC), (5, big, big.ent_a_v(), None, None), (6, big, big.ent_b_v32(), False, None)):
        a.label(f"W_epi{pe}")
        if vo is not None: b32_voff(a, 38, vo)
        g_.epilogue(a, ent, S_WS, S_PEB, V_L16 if vo is None else 38, "sc1", scale=sc_)
        a("s_branch W_epiend")
    a.label("W_pf")
    a(f"""s_cmp_eq_u32 s{S_P1}, 1
s_cselect_b32 s{G_SW}, s{P_WK}, s{P_WQ}
s_cselect_b32 s{G_SW+1}, s{P_WK+1}, s{P_WQ+1}
s_cmp_eq_u32 s{S_P1}, 2
s_cselect_b32 s{G_SW}, s{P_WV}, s{G_SW}
s_cselect_b32 s{G_SW+1}, s{P_WV+1}, s{G_SW+1}
s_cmp_eq_u32 s{S_P1}, 3
s_cselect_b32 s{G_SW}, s{P_WO}, s{G_SW}
s_cselect_b32 s{G_SW+1}, s{P_WO+1}, s{G_SW+1}
s_cselect_b32 s38, 11, 13
s_mov_b32 s{G_SW+2}, {1024*8192:#x}
s_cmp_eq_u32 s{S_P1}, 4
s_cselect_b32 s{G_SW}, s{P_AX}, s{G_SW}
s_cselect_b32 s{G_SW+1}, s{P_AX+1}, s{G_SW+1}
s_cselect_b32 s{G_SW+2}, {2048*2048:#x}, s{G_SW+2}
s_cmp_eq_u32 s{S_P1}, 5
s_cselect_b32 s{G_SW}, s{P_BX}, s{G_SW}
s_cselect_b32 s{G_SW+1}, s{P_BX+1}, s{G_SW+1}
s_cselect_b32 s{G_SW+2}, {2048*2048:#x}, s{G_SW+2}
s_cmp_eq_u32 s{S_P1}, 6
s_cselect_b32 s{G_SW}, s{P_BW}, s{G_SW}
s_cselect_b32 s{G_SW+1}, s{P_BW+1}, s{G_SW+1}
s_cselect_b32 s{G_SW+2}, {1024*6144:#x}, s{G_SW+2}
s_cmp_eq_u32 s{S_P1}, 7
s_cselect_b32 s{G_SW}, s{P_BO}, s{G_SW}
s_cselect_b32 s{G_SW+1}, s{P_BO+1}, s{G_SW+1}
s_cselect_b32 s{G_SW+2}, {1024*2048:#x}, s{G_SW+2}
s_cmp_ge_u32 s{S_P1}, 3
s_cselect_b32 s38, 11, s38
s_cmp_eq_u32 s{S_P2}, 1
s_cbranch_scc1 W_pf1
v_lshrrev_b32 v1, 3, v0
s_lshl_b32 s36, s{S_WAVE}, 3
v_add_u32 v1, s36, v1
v_lshlrev_b32 v1, s38, v1
v_and_b32 v2, 7, v0
v_lshl_add_u32 v1, v2, 4, v1
s_lshl_b32 s37, 32, s38
s_mov_b32 s39, 32
s_branch W_pfgo
W_pf1:
s_lshr_b32 s36, s{S_WAVE}, 1
s_lshl_b32 s36, s36, s38
s_and_b32 s37, s{S_WAVE}, 1
s_lshl_b32 s37, s37, 10
s_add_u32 s36, s36, s37
v_add_u32 v1, s36, v{V_L16}
s_lshl_b32 s37, 2, s38
s_mov_b32 s39, s{S_D2}
W_pfgo:
s_mov_b32 s36, s{S_D1}
W_pfl:
buffer_load_dwordx4 v[64:67], v1, s[{G_SW}:{G_SW+3}], s36 offen
s_add_u32 s36, s36, s37
s_waitcnt vmcnt(48)
s_sub_u32 s39, s39, 1
s_cmp_lg_u32 s39, 0
s_cbranch_scc1 W_pfl
s_mov_b32 s{S_D1}, {NOSIG << 20:#x}""")
    if cfg.get("wstamps"):
        a("s_waitcnt lgkmcnt(0)\ns_mov_b32 s42, s40")
    a(h_ticket_now())
    a("s_waitcnt vmcnt(0)\ns_branch W_next")
    a.label("W_tail")
    if cfg.get("wstamps"):
        a("s_waitcnt lgkmcnt(0)\ns_mov_b32 s42, s40")
    init_check(200)
    a(f"""s_mov_b32 s{G_SW}, s{P_WO}
s_mov_b32 s{G_SW+1}, s{P_WO+1}
s_mov_b32 s{G_SW+2}, {4096*2048:#x}""")
    tail_task(a, S_WS, G_SW, S_OUT, S_WAVE, S_P1, S_P2, WS_CNT + (C_OXS - 40) * 128, cfg)
    a(h_ticket_now())
    a("s_waitcnt vmcnt(0)\ns_branch W_next")
    a.label("W_att")
    run_pending(5)
    battn_task(a, S_WS, S_WAVE, S_P1, S_P2, cfg, "sc1", "sc1", hooks)
    a(f"s_mov_b32 s{G_NXOFF}, {OOB:#x}\ns_mov_b32 s{G_NWOFF}, {OOB:#x}")
    a("s_waitcnt vmcnt(4)\ns_branch W_next")
    a.flush_deferred()
    def urgent(d):
        t, p1 = d[0] & 15, (d[0] >> 4) & 255
        return t in (T_MQKV, T_BB) or (t == T_BQKV and p1 in cfg.get("urgent_blocks", (1, 2)))
    tab = []
    for l in lists:
        l = l + [(15, 0)] * (MAXL + 1 - len(l))
        tab += [f".long {d[0]:#x}, {d[1]:#x}, {d[2] if len(d) > 2 else 0:#x}, {int(urgent(d))}" for d in l]
    return tab


def chain_hooks(a):
    def wait_x(vt):
        sk, lp = a.uid("wx"), a.uid("wx")
        a(f"""s_cmp_ge_u32 s{S_T0}, {NSEG}
s_cbranch_scc1 {sk}
s_cmp_lt_u32 s{S_T0}, 8
s_cselect_b32 s{S_T1}, 3, 7
s_and_b32 s{S_T1}, s{S_T0}, s{S_T1}
s_cmp_lg_u32 s{S_T1}, 0
s_cbranch_scc1 {sk}
s_lshr_b32 s{S_T1}, s{S_T0}, 3
s_add_u32 s{S_T1}, s{S_T1}, 1
s_lshr_b32 s{S_T2}, s{S_T0}, 2
s_cmp_lt_u32 s{S_T0}, 8
s_cselect_b32 s{S_T1}, s{S_T2}, s{S_T1}
s_cselect_b32 s{S_T2}, 6, 3
s_lshl_b32 s{S_T1}, s{S_T1}, 4
s_lshr_b32 s{S_T3}, s{S_HEAD}, 1
s_add_u32 s{S_T1}, s{S_T1}, s{S_T3}
s_lshl_b32 s{S_T1}, s{S_T1}, 7
s_add_u32 s{S_T1}, s{S_T1}, {WS_CNT + C_QKV*128:#x}
{lp}:""")
        budget_head(a)
        a(f"""v_mov_b32 v{vt}, 0
buffer_load_dword v{vt}, v{vt}, {WS}, s{S_T1} offen sc1
s_waitcnt vmcnt(0)
v_readfirstlane_b32 s{S_T3}, v{vt}
s_nop 3
s_cmp_ge_u32 s{S_T3}, s{S_T2}
s_cbranch_scc1 {sk}
s_sleep 4
s_branch {lp}
{sk}:""")
    def signal(vt, seg_sgpr, n=1):
        a(f"""s_lshr_b32 s{S_T1}, s{seg_sgpr}, 2
s_add_u32 s{S_T1}, s{S_T1}, {C_OXB}
s_add_u32 s{S_T2}, s{seg_sgpr}, {C_OXS - 40}
s_cmp_lt_u32 s{seg_sgpr}, 40
s_cselect_b32 s{S_T1}, s{S_T1}, s{S_T2}
s_lshl_b32 s{S_T1}, s{S_T1}, 7
s_add_u32 s{S_T1}, s{S_T1}, {WS_CNT:#x}
v_mov_b32 v{vt}, {n}
v_mov_b32 v{vt+1}, 0
s_mov_b64 exec, 1
buffer_atomic_add v{vt}, v{vt+1}, {WS}, s{S_T1} offen sc1
s_mov_b64 exec, -1""")
    def post_om(vt):
        sk = a.uid("po")
        a(f"""s_cmp_lg_u32 s{S_WAVE}, 0
s_cbranch_scc1 {sk}
s_cmp_lg_u32 s{S_STEP}, {NSEG-1}
s_cbranch_scc1 {sk}
s_mov_b32 s{S_T0}, {NSEG-2}""")
        signal(vt, S_T0, 2)
        a.label(sk)
        sk = a.uid("po")
        a(f"""s_lshl_b32 s{S_T0}, s{S_HEAD}, 2
s_add_u32 s{S_T0}, s{S_T0}, s{S_WAVE}
s_cmp_lg_u32 s{S_T0}, 3
s_cbranch_scc1 {sk}
s_cmp_lt_u32 s{S_STEP}, 2
s_cbranch_scc1 {sk}
s_sub_u32 s{S_T0}, s{S_STEP}, 2""")
        signal(vt, S_T0, 64)
        a.label(sk)
    return {"wait_x": wait_x, "post_om": post_om, "exit": "S_exit"}, {}, signal


def role_ticket(a, cfg):
    a(f"""v_mov_b32 v2, 0
s_cmp_lg_u32 s{S_WAVE}, 0
s_cbranch_scc1 R_join
s_getreg_b32 s36, hwreg(HW_REG_XCC_ID)
s_and_b32 s36, s36, {cfg.get("xcc_mask", 7)}
s_and_b32 s37, s36, 3
s_lshl_b32 s37, s37, 3
s_lshl_b32 s38, 1, s37
s_and_b32 s39, s36, 4
v_mov_b32 v3, s38
s_mov_b64 exec, 1
buffer_atomic_add v3, v2, {DBG}, s39 offen offset:{C_TK*4} sc0 sc1
s_waitcnt vmcnt(0)
v_readfirstlane_b32 s38, v3
s_nop 3
s_lshr_b32 s38, s38, s37
s_and_b32 s38, s38, 0xff
s_cmp_lt_u32 s38, 32
s_cbranch_scc1 R_have
v_mov_b32 v3, 1
buffer_atomic_add v3, v2, {DBG}, 0 offen offset:{C_OVF*4} sc0 sc1
s_waitcnt vmcnt(0)
v_readfirstlane_b32 s40, v3
R_wait:""")
    budget_head(a)
    a(f"""s_sleep 8
buffer_load_dword v4, v2, {DBG}, 0 offen offset:{C_TK*4} sc1
buffer_load_dword v5, v2, {DBG}, 0 offen offset:{C_TK*4+4} sc1
s_waitcnt vmcnt(0)
v_readfirstlane_b32 s42, v4
v_readfirstlane_b32 s43, v5
s_nop 3
s_mov_b32 s41, 0""")
    for x in range(8):
        a(f"s_bfe_u32 s37, s{42 + x // 4}, {(8 << 16) | (8 * (x % 4)):#x}\ns_add_u32 s41, s41, s37")
    a("""s_cmp_lt_u32 s41, 256
s_cbranch_scc1 R_wait""")
    for x in range(8):
        a(f"""s_bfe_u32 s37, s{42 + x // 4}, {(8 << 16) | (8 * (x % 4)):#x}
s_min_u32 s37, s37, 32
s_mov_b32 s36, {x}
s_add_u32 s38, s37, s40
s_cmp_lt_u32 s38, 32
s_cbranch_scc1 R_have
s_sub_u32 s40, s38, 32""")
    a(f"""s_mov_b32 s38, 0x1000
R_have:
s_lshl_b32 s38, s38, 3
s_add_u32 s38, s38, s36
v_mov_b32 v3, s38
ds_write_b32 v2, v3
s_mov_b64 exec, -1
s_waitcnt lgkmcnt(0)
R_join:
s_barrier
ds_read_b32 v3, v2
s_waitcnt lgkmcnt(0)
v_readfirstlane_b32 s2, v3
s_nop 3
s_cmp_ge_u32 s2, 256
s_cbranch_scc1 L_fail
s_barrier""")


def gen(cfg):
    cfg.setdefault("tail_seg0", 48)
    cfg.setdefault("tail_stride", 2)
    a = Asm()
    a(f"""s_cmp_ge_u32 s2, 256
s_cbranch_scc1 L_done
v_lshrrev_b32 v1, 6, v0
v_readfirstlane_b32 s{S_WAVE}, v1""")
    srd(a, S_WS, 96, WS_SIZE)
    srd(a, S_DBG, 88, 256)
    a(f"s_mov_b32 s{S_BUDGET}, {POLL_BUDGET}")
    if not cfg.get("static_roles"): role_ticket(a, cfg)
    a(f"""s_and_b32 s{S_TEAM}, s2, 7
s_mov_b32 s{S_GRP}, s{S_TEAM}
s_lshr_b32 s{S_J}, s2, 3
s_mov_b32 s{S_MODE}, 0
s_cmp_ge_u32 s{S_TEAM}, {NT}
s_cbranch_scc1 L_W
s_cmp_ge_u32 s{S_J}, 24
s_cbranch_scc1 L_W
s_cmp_lt_u32 s{S_J}, 8
s_cbranch_scc1 L_S
s_sub_u32 s{S_J}, s{S_J}, 8""")
    hooks, vhooks, signal = chain_hooks(a)
    v_cu(a, cfg, vhooks)
    a.label("L_S")
    s_cu(a, cfg, hooks)
    a.label("S_exit")
    a(f"""s_waitcnt vmcnt(0)
s_barrier
s_cmp_lg_u32 s{S_WAVE}, 0
s_cbranch_scc1 L_done
s_mov_b32 s{S_T0}, {NSEG-1}""")
    signal(60, S_T0, 2)
    a("s_endpgm")
    a.label("L_fail")
    a(f"""v_mov_b32 v1, 0xdead
v_mov_b32 v2, 0
s_mov_b64 exec, 1
buffer_store_dword v1, v2, {DBG}, 0 offen offset:8
s_endpgm""")
    a.label("L_W")
    tab = worker(a, cfg)
    a.label("L_done")
    a("s_endpgm")
    body = a.finalize()
    ref = open("cdna_kernels/" + PFX + ".s.ref").read().split("\n")
    hdr = [l for l in ref if l.startswith(";") and "@launch" not in l and "Override" not in l and "grid=ceil" not in l]
    out = "\n".join(hdr) + "\n"
    out += f"; @launch grid=(256,1,1) block=(256,1,1) lds={LDS_BYTES}\n"
    out += f""".amdgcn_target "amdgcn-amd-amdhsa--gfx950"
.text
.globl {NAME}
.p2align 8
.type {NAME},@function
{NAME}:
""" + body
    out += ".p2align 4\n.type W_table,@object\nW_table:\n" + "\n".join(tab) + f"\n.size W_table, {16*len(tab)}\n"
    out += f"""
.section .rodata,"a"
.p2align 6
.amdhsa_kernel {NAME}
  .amdhsa_next_free_vgpr 512
  .amdhsa_next_free_sgpr 102
  .amdhsa_accum_offset 256
  .amdhsa_group_segment_fixed_size 0
  .amdhsa_kernarg_size 104
  .amdhsa_user_sgpr_count 2
  .amdhsa_user_sgpr_kernarg_segment_ptr 1
  .amdhsa_system_sgpr_workgroup_id_x 1
.end_amdhsa_kernel
"""
    return out


def report(cfg, down):
    import numpy as np
    if cfg.get("stamps") and not cfg.get("rt"):
        T = down(WS_STAMP, np.uint32, (256, 4, 64, 64))[:, :, :, :8].astype(np.int64)
        ss = list(cfg["stamp_set"])
        Sw = [g + 8*j for g in range(4) for j in range(8)]
        Vw = [g + 8*j for g in range(4) for j in range(8, 24)]
        for nm_, W_ in (("S", Sw), ("V", Vw)):
            t = T[W_][:, :, 12:60]
            d = (t[..., ss[1:]] - t[..., ss[:-1]]) & 0xffffffff
            per = (T[W_][:, :, 13:61, ss[0]] - t[..., ss[0]]) & 0xffffffff
            print("  ", nm_, cfg.get("at"), "deltas med", np.median(d.reshape(-1, d.shape[-1]), 0).tolist(), "min", d.reshape(-1, d.shape[-1]).min(0).tolist(), "period median", np.median(per))
        return
    if cfg.get("hops"):
        T = down(WS_STAMP, np.uint32, (32, 8, 4, 64, 64))[..., :8].astype(np.int64) * 10
        S = T[:8, :4]; V = T[8:24, :4]
        st = np.arange(12, 60)
        q = lambda x: "med %4d p90 %4d max-mean %4d" % (np.median(x), np.percentile(x, 90), x.reshape(-1, x.shape[-1]).max(0).mean())
        prod = V[0::4, :, :, :, 5].max(2)[:, :, st - 1]
        print("   MEMT hop (frag0)  ", q(S[:, :, :, :, 1][..., st] - prod.transpose(1, 0, 2)[None]))
        allp = V[..., 5].max(2).max(0)[:, st - 1]
        print("   last MEMT pub -> S OM pub", q(S[..., 4][..., st] - allp[None, :, None]))
        print("   last MEMT pub -> VM pub", q(V[..., 2][..., st] - allp[None, :, None]))
        prod = S[0::2, :, :2, :, 4].max(2)[:, :, st]
        print("   OM hop (frag0)    ", q(V[..., 3][..., st] - prod.transpose(1, 0, 2)[None]))
        allo = S[..., 4].max(2).max(0)[:, st]
        print("   last OM pub -> PART pub", q(V[..., 4][..., st] - allo[None, :, None]))
        lastp = V[..., 4].max(1)[..., st]
        print("   last PART pub -> MEMT pub", q(V[..., 5][..., st] - lastp[:, None]))
        print("   spread of PART pub across teams", q(V[..., 4].max(1)[..., st] - V[..., 4].min(1)[..., st]))
        print("   spread MEMT pub within team", q(V[..., 5].max(2).max(0)[:, st] - V[..., 5].min(2).min(0)[:, st]))
        print("   spread OM pub within team", q(allo - S[..., 4].min(2).min(0)[:, st]))
        print("   period", (S[0, 0, 0, 60, 4] - S[0, 0, 0, 12, 4]) / 48)
        return
    if cfg.get("wstamps"):
        lists = schedule(cfg); MAXL = max(len(l) for l in lists)
        st = down(0x8000000, np.uint32, (8, MAXL + 1, 4)).astype(np.int64)
        t0 = min(st[g, :len(lists[g]), 0].min() for g in range(8))
        names = ["mqkv", "bqkv", "bb", "att", "ob", "oa", "pf", "tail"]
        for g in cfg.get('show', (0, 4, 7)):
            l = lists[g]; i = 0
            while i < len(l):
                j = i
                key = lambda d: (d[0] & 15, (d[0] >> 4) & 255 if (d[0] & 15) not in (T_BB, T_BQKV, T_PF, T_TAIL, T_ATT) else ((d[0] >> 12) & 255 if (d[0] & 15) == T_ATT else 0))
                while j < len(l) and key(l[j]) == key(l[i]): j += 1
                x = (st[g, i:j, :3] - t0) / 100.0
                print(f"  g{g} {names[l[i][0]&15]:5s} p1={(l[i][0]>>4)&255:2d} n={j-i:2d} deq {x[:,0].min():6.1f}-{x[:,0].max():6.1f} start {x[:,1].min():6.1f}-{x[:,1].max():6.1f} end {x[:,2].min():6.1f}-{x[:,2].max():6.1f} dur {(x[:,2]-x[:,1]).mean():5.1f} kcyc {st[g, i:j, 3].mean()/1000:6.1f} GHz {st[g, i:j, 3].mean()/1000/(x[:,2]-x[:,1]).mean():4.2f}")
                i = j
        if cfg.get("stamps"):
            T = down(WS_STAMP, np.uint32, (256, 4, 64, 64))[:, :, :, :8].astype(np.int64)
            s4 = (T[0, 0, :, 4] - t0) / 100.0
            print("  chain OM publish times:", [float(round(x, 1)) for x in s4[[0, 1, 2, 3, 4, 5, 8, 9, 16, 17, 24, 32, 40, 48, 56, 63]]])
            Sw = [g + 8*j for g in range(4) for j in range(8)]
            Vw = [g + 8*j for g in range(4) for j in range(8, 24)]
            if cfg.get("sst"):
                for nm_, W_ in (("S", Sw), ("V", Vw)):
                    for i in (6, 7):
                        x = (T[W_][:, :, 1, i] - t0) / 100.0
                        print("  startup", nm_, i, x.min(), np.median(x), x.max())
                        np.set_printoptions(linewidth=250, precision=0, suppress=True)
                        if cfg.get('sst') == 2: print(x[:, 0].reshape(4, -1))
            print("  S loop first entry", (T[Sw][:, :, 0, 0].min() - t0) / 100.0, (T[Sw][:, :, 0, 0].max() - t0) / 100.0)
            if len(cfg.get("stamp_set", range(8))) > 3:
                for st_ in (21, 35, 58):
                    base = T[Vw][:, :, st_-1, 5].min()
                    tS = (T[Sw][:, :, st_, :8] - base) * 10; tV = (T[Vw][:, :, st_, :8] - base) * 10; tVp = (T[Vw][:, :, st_-1, 5] - base) * 10
                    print("  step", st_, "V pub(prev) min/med/max", tVp.min(), np.median(tVp), tVp.max())
                    for i in cfg["stamp_set"]: print("   S stamp", i, tS[:, :, i].min(), np.median(tS[:, :, i]), tS[:, :, i].max(), "   V stamp", i, tV[:, :, i].min(), np.median(tV[:, :, i]), tV[:, :, i].max())


if __name__ == "__main__":
    cfg = eval(sys.argv[2]) if len(sys.argv) > 2 else {}
    open(sys.argv[1] if len(sys.argv) > 1 else "cdna_kernels/" + PFX + ".s", "w").write(gen(cfg))
```

```python
from asmgen import *
import chain
from chain import *
from tail import WS_OXF
from chain4 import (S_NEAR, S_PCUR, JIT, WS, DBG, OOBV, WS_CNT, WS_KM, arrive, wait_all_arrived, startup_barrier, sstamp, probe,
                    store_mode2, SPoll, ring_poll, Lds)

XRING = L_W


def ring_poll2(a, loads, regs, vt, consume, join, space=4, on_first=None, rfill=3):
    R = [a.uid("rp") for _ in range(4)]
    C = [a.uid("rc") for _ in range(4)]
    def pre3(g):
        b = regs[g]
        return [f"v_max3_u32 v{vt}, v{b}, v{b+1}, v{b+2}", f"v_max_u32 v{vt}, v{vt}, v{b+3}", f"v_cmp_eq_u32 vcc, {chain.SENTINEL[0]}, v{vt}"]
    for f in range(3):
        a(loads[f]); a.fill(space)
    for f in range(4):
        a.label(R[f])
        a(loads[(f + 3) % 4])
        if f == 0: budget_head(a)
        a("s_waitcnt vmcnt(3)")
        for x in pre3(f): a(x)
        a.fill(5)
        a(f"s_cbranch_vccz {C[f]}" if f < 3 else f"s_cbranch_vccnz {R[0]}")
    def body(f):
        a.label(C[f])
        if on_first: on_first()
        for k in range(4):
            g = (f + k) % 4
            chk = []
            if k < 3:
                n = (g + 1) % 4
                rt, back = a.uid("rr"), a.uid("rb")
                chk = pre3(n) + [f"s_cbranch_vccnz {rt}\n{back}:"]
                def retry(n=n, rt=rt, back=back, k=k):
                    a.label(rt)
                    for j in range(3 - k): a(loads[(n + j) % 4])
                    for rep in range(3 - k):
                        for x in pre3(n): a(x)
                        a.fill(rfill + 2)
                        a(f"s_cbranch_vccz {back}")
                    budget_head(a)
                    a(f"s_waitcnt vmcnt(8)\ns_branch {rt}")
                a.defer(retry)
            consume(g, k, chk)
    body(3)
    for f in range(3):
        def ool(f=f):
            body(f); a(f"s_branch {join}")
        a.defer(ool)
    a.label(join)


def s_cu(a, cfg, hooks=None):
    hooks = hooks or {}
    vT, vL16, vGW, vA1, vA2, vA3, vQKW, vQKR, vIDX, vOXO, vVMO, vKMO, vXR, vF, vLANE, vT2 = range(16)
    KX, VX, G, AF, ACC, QF, KMF = 16, 48, 56, 72, 120, 128, 144
    T, VM, PX, PM, O, LS, ONE, HALF, MI, MK, vVM2, SENT = 160, 172, 176, 180, 184, 200, 204, 208, 210, 216, 228, 232
    KD = 240
    vD, vWT = 236, 237
    cfg = dict(cfg); cfg["stamp_reg"] = 254; cfg["lane4_reg"] = 255
    keep = lambda: a(f"v_mfma_f32_16x16x32_bf16 {vr(KD+8,4)}, {vr(ONE,4)}, {vr(ONE,4)}, {vr(KD+8,4)}")
    wreg = lambda s, t: (s * 2 + t) * 8

    a(f"""s_lshl_b32 s{S_HEAD}, s{S_TEAM}, 3
s_add_u32 s{S_HEAD}, s{S_HEAD}, s{S_J}""")
    srd(a, S_W0, 16, 1024 * 8192)
    arrive(a, 20)
    a(f"v_and_b32 v{vLANE}, 63, v0")
    a(f"v_lshlrev_b32 v{vL16}, 4, v{vLANE}")
    a(f"""v_lshrrev_b32 v{vT}, 4, v{vLANE}
v_lshlrev_b32 v{vD}, 13, v{vT}
v_and_b32 v{vT}, 15, v{vLANE}
v_lshl_add_u32 v{vD}, v{vT}, 4, v{vD}
s_lshl_b32 s{S_T0}, s{S_HEAD}, 8
s_lshl_b32 s{S_T1}, s{S_WAVE}, 21
s_add_u32 s{S_T0}, s{S_T0}, s{S_T1}
v_add_u32 v{vD}, s{S_T0}, v{vD}
s_lshl_b32 s{S_T2}, s{S_WAVE}, 14
v_bfe_u32 v{vT}, v{vLANE}, 5, 1
v_lshlrev_b32 v{vWT}, 12, v{vT}
v_bfe_u32 v{vT}, v{vLANE}, 3, 1
v_lshl_add_u32 v{vWT}, v{vT}, 11, v{vWT}
v_bfe_u32 v{vT}, v{vLANE}, 4, 1
v_lshl_add_u32 v{vWT}, v{vT}, 10, v{vWT}
v_bfe_u32 v{vT}, v{vLANE}, 2, 1
v_lshl_add_u32 v{vWT}, v{vT}, 8, v{vWT}
v_and_b32 v{vT}, 3, v{vLANE}
v_lshl_add_u32 v{vWT}, v{vT}, 3, v{vWT}
s_lshl_b32 s{S_T0}, s{S_WAVE}, 6
s_add_u32 s{S_T0}, s{S_T0}, s{S_T2}
v_add_u32 v{vWT}, s{S_T0}, v{vWT}""")
    for q in range(3, -1, -1):
        a(f"v_xor_b32 v{vWT+q}, {q << 14:#x}, v{vWT}\nv_add_u32 v{vWT+q}, {L_W:#x}, v{vWT+q}")
    def issue(j):
        for i in range(16):
            a(f"s_add_u32 m0, s{S_T2}, {L_W + (j % 2) * 65536 + i * 1024}")
            a(f"s_mov_b32 s{S_T4}, {(j * 64 + i * 4) * 8192:#x}")
            a(f"buffer_load_dwordx4 v{vD}, s[{S_W0}:{S_W0+3}], s{S_T4} offen lds")
    issue(0); issue(1)
    for j in range(4):
        a(f"s_waitcnt vmcnt({16 if j < 3 else 0})\ns_barrier")
        for q in range(4):
            for t in range(2):
                for v in range(4):
                    a(f"ds_read_b64_tr_b16 {ar(wreg(j+4*q,t)+2*v,2)}, v{vWT+q} offset:{(32*(v//2) + 2*(v%2))*256 + t*32}")
                a("s_waitcnt lgkmcnt(8)")
        a("s_waitcnt lgkmcnt(0)\ns_barrier")
        for q in range(4):
            a(f"v_add_u32 v{vWT+q}, {0x10000 if j % 2 == 0 else 0xffff0000:#x}, v{vWT+q}")
        if j + 2 < 4: issue(j + 2)
    sstamp(a, 6, cfg)

    a(f"""s_lshl_b32 s{S_T0}, s{S_WAVE}, 12
v_add_u32 v{vGW}, s{S_T0}, v{vL16}""")
    for q in range(1, 4):
        a(f"v_xor_b32 v{vA1+q-1}, {q*4096:#x}, v{vGW}")
    idx_reg(a, vIDX, vLANE, vT)
    a(f"""v_lshrrev_b32 v{vT}, 5, v{vLANE}
v_lshlrev_b32 v{vQKW}, 8, v{vT}
v_and_b32 v{vT}, 15, v{vLANE}
v_lshl_add_u32 v{vQKW}, v{vT}, 4, v{vQKW}
v_bfe_u32 v{vT}, v{vLANE}, 4, 1
v_lshl_add_u32 v{vQKW}, v{vT}, 3, v{vQKW}
s_lshl_b32 s{S_T0}, s{S_WAVE}, 9
v_add_u32 v{vQKW}, s{S_T0}, v{vQKW}
v_lshrrev_b32 v{vT}, 2, v{vLANE}
v_lshlrev_b32 v{vQKR}, 4, v{vT}
v_and_b32 v{vT}, 1, v{vLANE}
v_lshl_add_u32 v{vQKR}, v{vT}, 3, v{vQKR}
s_lshr_b32 s{S_T0}, s{S_WAVE}, 1
s_lshl_b32 s{S_T0}, s{S_T0}, 10
s_and_b32 s{S_T1}, s{S_WAVE}, 1
s_lshl_b32 s{S_T1}, s{S_T1}, 7
s_add_u32 s{S_T0}, s{S_T0}, s{S_T1}
s_add_u32 s{S_WOFF}, s{S_T0}, {WS_OM:#x}
s_lshl_b32 s{S_T0}, s{S_WAVE}, 9
v_add_u32 v{vVMO}, s{S_T0}, v{vL16}
v_mov_b32 v{vT}, {OOBV:#x}
v_cmp_gt_u32 vcc, 32, v{vLANE}
v_cndmask_b32 v{vVMO}, v{vT}, v{vVMO}, vcc
v_and_b32 v{vVM2}, 0xfffffdff, v{vVMO}
v_mov_b32 v{vT2}, 0xff800000""")
    for r in range(4): a(f"v_cndmask_b32 v{MK+r}, v{vT2}, 0, vcc")
    a(f"""v_lshrrev_b32 v{vT}, 4, v{vLANE}
v_lshlrev_b32 v{vKMO}, 7, v{vT}
v_lshlrev_b32 v{vT}, 2, v{vT}
v_and_b32 v{vOXO}, 15, v{vLANE}
v_sub_u32 v{vT}, v{vOXO}, v{vT}
s_and_b32 s{S_T3}, s{S_WAVE}, 1
s_lshl_b32 s{S_T0}, s{S_T3}, 4
v_add_u32 v{vT}, s{S_T0}, v{vT}""")
    for t in range(2):
        for r in range(4):
            a(f"v_cmp_le_i32 vcc, {16*t + r}, v{vT}\nv_cndmask_b32 v{MK+4+4*t+r}, v{vT2}, 0, vcc")
    a(f"""v_and_b32 v{vT}, 7, v{vLANE}
v_lshl_add_u32 v{vKMO}, v{vT}, 4, v{vKMO}
v_lshlrev_b32 v{vOXO}, 6, v{vOXO}
v_lshrrev_b32 v{vT}, 4, v{vLANE}
v_lshl_add_u32 v{vOXO}, v{vT}, 4, v{vOXO}
s_lshl_b32 s{S_T0}, s{S_HEAD}, 15
s_lshr_b32 s{S_T2}, s{S_WAVE}, 1
s_lshl_b32 s{S_T1}, s{S_T2}, 14
s_add_u32 s{S_T0}, s{S_T0}, s{S_T1}
s_lshl_b32 s{S_T1}, s{S_T3}, 10
s_add_u32 s{S_T0}, s{S_T0}, s{S_T1}
v_add_u32 v{vOXO}, s{S_T0}, v{vOXO}
s_lshl_b32 s89, s{S_T3}, 12
s_lshl_b32 s90, s{S_T2}, 12
s_lshl_b32 s91, s{S_HEAD}, 12
s_lshl_b32 s{S_T1}, s{S_T2}, 11
s_add_u32 s91, s91, s{S_T1}
s_lshl_b32 s{S_T1}, s{S_T3}, 17
s_add_u32 s91, s91, s{S_T1}
s_add_u32 s91, s91, {WS_OXF:#x}
v_mov_b32 v{vF}, 0""")
    for i in range(4): a(f"v_mov_b32 v{ONE+i}, 0x3f803f80\nv_mov_b32 v{SENT+i}, -1\nv_mov_b32 v{KD+8+i}, 0")
    a(f"v_mov_b32 v{HALF}, 0x3f003f00\nv_mov_b32 v{HALF+1}, 0x3f003f00")
    if cfg.get("stamps"): a(f"v_lshlrev_b32 v255, 2, v{vLANE}")
    cbits = f32bits(128 ** -0.5 * LOG2E)
    a(f"s_mov_b32 s{S_C}, {cbits:#x}\ns_mov_b32 s{S_C+1}, {cbits:#x}")
    a(f"""s_mov_b32 s{S_STEP}, 0
s_lshl_b32 s{S_OFF_A}, s{S_TEAM}, 20
s_add_u32 s{S_OFF_A}, s{S_OFF_A}, {WS_MEMT:#x}
s_lshl_b32 s{S_OFF_C}, s{S_HEAD}, 11""")
    startup_barrier(a, 244)
    a(f"""s_bcnt1_i32_b32 s{S_T0}, s{S_NEAR}
s_cmp_ge_u32 s{S_T0}, 4
s_cselect_b32 s{S_OFF_F}, 0x2000, 0
s_and_b32 s{S_T0}, s{S_J}, 1
s_lshl_b32 s{S_T0}, s{S_T0}, 12
s_add_u32 s{S_OFF_F}, s{S_OFF_F}, s{S_T0}
s_lshr_b32 s{S_T0}, s{S_J}, 1
s_lshl_b32 s{S_T0}, s{S_T0}, 14
s_add_u32 s{S_OFF_F}, s{S_OFF_F}, s{S_T0}
s_lshl_b32 s{S_T0}, s{S_TEAM}, 16
s_add_u32 s{S_OFF_F}, s{S_OFF_F}, s{S_T0}
s_lshl_b32 s{S_T0}, s{S_WAVE}, 10
s_add_u32 s{S_OFF_F}, s{S_OFF_F}, s{S_T0}
s_add_u32 s{S_OFF_F}, s{S_OFF_F}, {WS_PART:#x}
s_lshl_b32 s{S_OFF_E}, s{S_J}, 11
s_lshl_b32 s{S_T0}, s{S_WAVE}, 9
s_add_u32 s{S_OFF_E}, s{S_OFF_E}, s{S_T0}""")

    def x_dma(add):
        a(f"s_add_u32 s{S_OFF_B}, s{S_STEP}, {add}")
        if "wait_x" in hooks:
            a(f"s_mov_b32 s{S_T0}, s{S_OFF_B}")
            hooks["wait_x"](vT)
        a(f"""s_lshl_b32 s{S_T0}, s{S_OFF_B}, 18
s_lshl_b32 s{S_T1}, s{S_HEAD}, 13
s_add_u32 s{S_T0}, s{S_T0}, s{S_T1}
s_lshl_b32 s{S_T2}, s{S_WAVE}, 11
s_add_u32 s{S_T0}, s{S_T0}, s{S_T2}
s_cmp_ge_u32 s{S_OFF_B}, {NSEG}
s_cselect_b32 s{S_T0}, {OOBV:#x}, s{S_T0}
s_and_b32 s{S_T1}, s{S_OFF_B}, 3
s_lshl_b32 s{S_T1}, s{S_T1}, 15
s_add_u32 s{S_T1}, s{S_T1}, s{S_T2}""")
        for k, reg in enumerate((WS_QX, WS_KX, WS_VX)):
            a(f"s_add_u32 m0, s{S_T1}, {XRING + k * 8192:#x}\ns_add_u32 s{S_T3}, s{S_T0}, {reg:#x}")
            for f in range(2):
                a(f"buffer_load_dwordx4 v{vL16}, {WS}, s{S_T3} offen offset:{f*1024} sc1 lds")

    def chores():
        a(f"""s_xor_b32 s{S_T0}, s{S_OFF_F}, {JIT << 18:#x}
buffer_store_dwordx4 {vr(SENT,4)}, v{vL16}, {WS}, s{S_T0} offen sc1
s_xor_b32 s{S_T2}, s{S_OFF_C}, {JIT << 16:#x}
s_lshl_b32 s{S_T3}, s{S_WAVE}, 9
s_add_u32 s{S_T2}, s{S_T2}, s{S_T3}
s_add_u32 s{S_T0}, s{S_T2}, {WS_KM:#x}
s_add_u32 s{S_T1}, s{S_T2}, {WS_VM:#x}
s_add_u32 s{S_T2}, s{S_T2}, {WS_OM:#x}
s_xor_b32 s{S_T3}, s{S_OFF_A}, {JIT << 14:#x}
s_add_u32 s{S_T3}, s{S_T3}, s{S_OFF_E}
s_cmp_eq_u32 s{S_MODE}, 1
s_mov_b32 exec_hi, 0""")
        l1, l2 = a.uid("ji"), a.uid("ji")
        jit = lambda fl: "\n".join(f"buffer_store_dwordx4 {vr(SENT,4)}, v{vL16}, {WS}, s{t} offen {fl}" for t in (S_T0, S_T1, S_T2, S_T3))
        a(f"s_cbranch_scc0 {l1}\n{jit('')}\n{l2}:\ns_mov_b64 exec, -1")
        a.defer(lambda: a(f"{l1}:\n{jit('sc1')}\ns_branch {l2}"))

    pkfma = lambda r, nm: f"v_pk_fma_f32 {vr(r,2)}, {vr(r,2)}, s[{S_C}:{S_C+1}], {vr(nm,2)} op_sel_hi:[1,1,0] neg_lo:[0,0,1] neg_hi:[0,0,1]"
    x_dma(0); x_dma(1)
    a("s_waitcnt vmcnt(0)\ns_barrier")
    sstamp(a, 7, cfg)
    a.set_filler(vF)
    a.label("S_loop")
    stamp(a, 0, cfg)
    a(f"""s_and_b32 s{S_T0}, s{S_STEP}, 3
s_lshl_b32 s{S_T0}, s{S_T0}, 15
s_add_u32 s{S_T0}, s{S_T0}, {XRING:#x}
v_add_u32 v{vXR}, s{S_T0}, v{vL16}
s_lshl_b32 s{S_T1}, s{S_WAVE}, 11
v_add_u32 v{vT2}, s{S_T1}, v{vXR}""")
    for f in range(8): a(f"ds_read_b128 {vr(KX+4*f,4)}, v{vXR} offset:{8192 + f*1024}")
    for f in range(2): a(f"ds_read_b128 {vr(VX+4*f,4)}, v{vT2} offset:{16384 + f*1024}")
    for i in range(8): a(f"v_mov_b32 v{ACC+i}, 0")
    for i in range(16): a(f"v_mov_b32 v{G+i}, -1\nv_mov_b32 v{KMF+i}, -1")
    for i in range(4): a(f"v_mov_b32 v{VM+i}, -1")
    a(f"""s_add_u32 s{S_T5}, s{S_OFF_C}, {WS_VM:#x}
s_add_u32 s{S_T4}, s{S_OFF_C}, s{S_WOFF}
s_add_u32 s{S_OFF_D}, s{S_OFF_C}, {WS_KM:#x}
s_waitcnt lgkmcnt(0)""")
    L = Lds(a)
    loads = [f"buffer_load_dwordx4 {vr(G+4*i,4)}, v{vGW}, {WS}, s{S_OFF_A} offen offset:{1024*i} sc1" for i in range(4)]
    o = cfg.get("s_mem", {})
    sp = SPoll(a, loads, [G + 4 * i for i in range(4)], vT, cap=o.get("cap", 3), sleep=o.get("sleep", 3), respin=o.get("respin", 4))
    gw = lambda f: L.op(("GW", f), f"ds_write_b128 v{vGW}, {vr(G+4*f,4)} offset:{L_MEM + 1024*f}")
    areg = lambda s: G + 4 * s if s < 4 else AF + 4 * (s - 4)
    def mm(s, t):
        if s >= 4: L.wait(("A", s))
        a(f"v_smfmac_f32_16x16x64_bf16 {vr(ACC+4*t,4)}, {vr(areg(s),4)}, {ar(wreg(s,t),8)}, v{vIDX}")
    def ard(s): L.op(("A", s), f"ds_read_b128 {vr(areg(s),4)}, v{vA1 + s // 4 - 1} offset:{L_MEM + (s % 4) * 1024}")
    if cfg.get("s_sleep"): a(f"s_sleep {cfg['s_sleep']}")
    kml = [f"buffer_load_dwordx4 {vr(KMF+4*f,4)}, v{vKMO}, {WS}, s{S_OFF_D} offen offset:{f*512} sc1" for f in range(4)]
    vml = f"buffer_load_dwordx4 {vr(VM,4)}, v{vVMO}, {WS}, s{S_T5} offen sc1"
    if cfg.get("s_ring", 1):
        def consume(g, k, chk):
            a(f"ds_write_b128 v{vGW}, {vr(G+4*g,4)} offset:{L_MEM + 1024*g}")
            for x in chk[:3]: a(x)
            mm(g, 0)
            if chk: a(chk[3])
        ring_poll2(a, loads, [G + 4 * i for i in range(4)], vT, consume, a.uid("sj"), space=o.get("space", 4), on_first=lambda: stamp(a, 1, cfg), rfill=o.get("rfill", 3))
        mm(0, 1); mm(1, 1)
        a("s_waitcnt lgkmcnt(0)\ns_barrier")
        probe(a, "b1", cfg)
        rest = list(range(4, 16))
        ard(4); ard(5); ard(6); mm(2, 1); ard(7); ard(8); ard(9); mm(3, 1)
        for k, s in enumerate(rest):
            mm(s, 0)
            if 10 + k < 16: ard(10 + k)
            mm(s, 1)
    else:
        sp.first(prefill=False, arm=o.get("arm", 0), arm_fill=o.get("afill", 6), arm_cap=o.get("acap", 4))
        stamp(a, 1, cfg)
        gw(0); sp.pre(1); mm(0, 0); sp.br(1)
        gw(1); sp.pre(2); mm(0, 1); mm(1, 0); sp.br(2)
        sp.pre(3); mm(1, 1)
        L.wait(("GW", 1)); a("s_barrier")
        probe(a, "b1", cfg)
        e1 = [4, 8, 12, 5, 9, 13]; e2 = [6, 10, 14, 7, 11, 15]
        ard(4); ard(8); mm(2, 0); ard(12); ard(5); sp.br(3); mm(2, 1); ard(9); ard(13); mm(3, 0)
        gw(2); mm(3, 1); gw(3)
        for k, s in enumerate(e1):
            mm(s, 0)
            if k >= 3: ard(e2[2*(k-3)])
            mm(s, 1)
            if k >= 3: ard(e2[2*(k-3)+1])
            if k == 2:
                L.wait(("GW", 3)); a("s_barrier")
        for s in e2:
            mm(s, 0); mm(s, 1)

    stamp(a, 2, cfg)
    for r in range(4): a(f"v_permlane32_swap_b32 v{ACC+r}, v{ACC+4+r}")
    for r in range(4): a(f"v_add_f32 v{ACC+r}, v{ACC+r}, v{ACC+4+r}")
    a(f"v_cvt_pk_bf16_f32 v{ACC+4}, v{ACC}, v{ACC+1}\nv_cvt_pk_bf16_f32 v{ACC+5}, v{ACC+2}, v{ACC+3}")
    L.op("QW", f"ds_write_b64 v{vQKW}, {vr(ACC+4,2)} offset:{L_QK}")
    keep(); keep(); keep()
    L.wait("QW"); a("s_waitcnt vmcnt(0)\ns_barrier")
    probe(a, "s_b", cfg)
    for ks in range(4):
        for u in range(2):
            L.op(("QF", ks), f"ds_read_b64_tr_b16 {vr(QF+4*ks+2*u,2)}, v{vQKR} offset:{L_QK + (32*ks+16*u)*16}")
        if ks % 2 == 0: keep()
    if cfg.get("km1", 1):
        for x in kml: a(x)
    keep()
    X, T0 = T + 4, T
    def sc(ks, t, d, C0):
        A = KMF + 4 * ks if t == 0 else KX + 16 * (t - 1) + 4 * ks
        a(f"v_mfma_f32_16x16x32_bf16 {vr(d,4)}, {vr(A,4)}, {vr(QF+4*ks,4)}, {C0 if ks == 0 else vr(d,4)}")
    for ks in range(4):
        L.wait(("QF", ks))
        sc(ks, 1, X, "0"); sc(ks, 2, X + 4, "0")
        if ks == cfg.get("km2", 2):
            for x in kml: a(x)
        if cfg.get("kmsp"): a(kml[ks])
    probe(a, "s_x", cfg)
    mx, m2, nm, al = MI, MI + 1, MI + 2, MI + 4
    if cfg.get("online", 0):
        nmx, LM = ACC, ACC + 4
        a(f"""v_max3_f32 v{mx}, v{X}, v{X+1}, v{X+2}
v_max3_f32 v{m2}, v{X+4}, v{X+5}, v{X+6}
v_max3_f32 v{mx}, v{mx}, v{X+3}, v{X+7}
v_max_f32 v{al}, v{mx}, v{m2}
v_max_f32 v{m2}, v{mx}, v{m2}
v_permlane32_swap_b32 v{al}, v{m2}
v_max_f32 v{mx}, v{al}, v{m2}
v_max_f32 v{al}, v{al}, v{m2}
v_permlane16_swap_b32 v{mx}, v{al}
v_max_f32 v{mx}, v{mx}, v{al}
v_mul_f32 v{nmx}, s{S_C}, v{mx}""")
        if cfg.get("km3", 1):
            for x in kml: a(x)
        for i in range(0, 8, 2): a(pkfma(X + i, nmx))
        for i in range(8):
            a(f"v_exp_f32 v{X+i}, v{X+i}")
            if i >= 2 and i % 2 == 0: a(f"v_cvt_pk_bf16_f32 v{PX+i//2-1}, v{X+i-2}, v{X+i-1}")
        a(vml)
        a(f"v_cvt_pk_bf16_f32 v{PX+3}, v{X+6}, v{X+7}")
        kl, kr = a.uid("kl"), a.uid("kr")
        a.label(kl)
        for ks in range(4):
            b = KMF + 4 * ks
            a(f"v_max3_u32 v{vT}, v{b}, v{b+1}, v{b+2 if ks == 0 else vT}")
            a(f"v_max_u32 v{vT}, v{vT}, v{b+3}" if ks == 0 else f"v_max3_u32 v{vT}, v{b+2}, v{b+3}, v{vT}")
            if ks == 3: a(f"v_cmp_eq_u32 vcc, {chain.SENTINEL[0]}, v{vT}")
            sc(ks, 0, T0, "0")
        a(f"v_mfma_f32_16x16x32_bf16 {vr(LS,4)}, {vr(ONE,4)}, {vr(PX,4)}, 0")
        a(f"s_cbranch_vccnz {kr}")
        def kretry():
            a.label(kr)
            for x in kml: a(x)
            a(vml)
            budget_head(a)
            a(f"s_waitcnt vmcnt(15)\ns_branch {kl}")
        a.defer(kretry)
        probe(a, "s_km", cfg)
        a(vml)
        a(f"v_mfma_f32_16x16x32_bf16 {vr(O,4)}, {vr(VX,4)}, {vr(PX,4)}, 0")
        a(f"""v_max3_f32 v{m2}, v{T0}, v{T0+1}, v{T0+2}
v_max3_f32 v{al}, v{m2}, v{T0+3}, v{mx}
v_max3_f32 v{m2}, v{m2}, v{T0+3}, v{mx}""")
        a(f"v_mfma_f32_16x16x32_bf16 {vr(O+4,4)}, {vr(VX+4,4)}, {vr(PX,4)}, 0")
        a(f"""v_permlane16_swap_b32 v{m2}, v{al}
v_max_f32 v{m2}, v{m2}, v{al}""")
        stamp(a, 3, cfg)
        a(f"v_mul_f32 v{nm}, s{S_C}, v{m2}")
        for r in range(4): a(f"v_fma_f32 v{T0+r}, v{T0+r}, s{S_C}, -v{nm}")
        a(f"v_sub_f32 v{al}, v{nmx}, v{nm}")
        for r in range(4): a(f"v_exp_f32 v{T0+r}, v{T0+r}")
        a(f"v_cvt_pk_bf16_f32 v{PM}, v{T0}, v{T0+1}")
        a(f"v_exp_f32 v{al}, v{al}")
        a(f"v_cvt_pk_bf16_f32 v{PM+1}, v{T0+2}, v{T0+3}")
        vp = SPoll(a, [vml], [VM], vT, cap=3, sleep=1)
        chk = vp.pre3(0)
        a(chk[0]); a(chk[1])
        a(f"v_mfma_f32_16x16x16_bf16 {vr(LM,4)}, {vr(HALF,2)}, {vr(PM,2)}, 0")
        a(chk[2])
        probe(a, "s_pv", cfg)
        pv, rt = a.uid("pv"), a.uid("vr")
        a.label(pv)
        a(f"v_mfma_f32_16x16x16_bf16 {vr(O+8,4)}, {vr(VM,2)}, {vr(PM,2)}, 0")
        a(f"v_mfma_f32_16x16x16_bf16 {vr(O+12,4)}, {vr(VM+2,2)}, {vr(PM,2)}, 0")
        a(f"s_cbranch_vccnz {rt}")
        a.defer(lambda: (vp._body(0, rt), a(f"s_branch {pv}")))
        a(f"s_cmp_eq_u32 s{S_MODE}, 1")
        a(f"v_fma_f32 v{mx}, v{LS}, v{al}, v{LM}")
        a(f"v_rcp_f32 v{nm}, v{mx}")
        a("s_mov_b32 exec_lo, 0x00ff00ff\ns_mov_b32 exec_hi, 0x00ff00ff")
        for i in range(0, 8, 2):
            a(f"v_pk_fma_f32 {vr(O+8+i,2)}, {vr(O+i,2)}, {vr(al,2)}, {vr(O+8+i,2)} op_sel_hi:[1,0,1]")
        for i in range(0, 8, 2):
            a(f"v_pk_mul_f32 {vr(O+8+i,2)}, {vr(O+8+i,2)}, {vr(nm,2)} op_sel_hi:[1,0]")
            if i >= 2: a(f"v_cvt_pk_bf16_f32 v{PX+i//2-1}, v{O+8+i-2}, v{O+8+i-1}")
        a(f"v_cvt_pk_bf16_f32 v{PX+3}, v{O+14}, v{O+15}")
    else:
        a(f"""v_max3_f32 v{mx}, v{X}, v{X+1}, v{X+2}
v_max3_f32 v{m2}, v{X+4}, v{X+5}, v{X+6}
v_max3_f32 v{mx}, v{mx}, v{X+3}, v{X+7}
v_max_f32 v{al}, v{mx}, v{m2}
v_max_f32 v{m2}, v{mx}, v{m2}
v_permlane32_swap_b32 v{al}, v{m2}""")
        ok = cfg.get("s_km", {})
        kp = SPoll(a, ["\n".join(kml)], [list(range(KMF, KMF + 16))], vT, cap=ok.get("cap", 12), sleep=ok.get("sleep", 0), respin=ok.get("respin", 0))
        kp.pre(0); a(vml); a.fill(4); kp.br(0)
        probe(a, "s_km", cfg)
        for ks in range(4): sc(ks, 0, T0, "0")
        a(vml)
        a(f"""v_max3_f32 v{mx}, v{T0}, v{T0+1}, v{T0+2}
v_max3_f32 v{m2}, v{al}, v{m2}, v{T0+3}
v_max_f32 v{al}, v{mx}, v{m2}
v_max_f32 v{mx}, v{mx}, v{m2}
v_permlane16_swap_b32 v{mx}, v{al}
v_max_f32 v{m2}, v{mx}, v{al}""")
        stamp(a, 3, cfg)
        a(f"v_mul_f32 v{nm}, s{S_C}, v{m2}")
        for i in range(0, 8, 2): a(pkfma(X + i, nm))
        a(pkfma(T0, nm)); a(pkfma(T0 + 2, nm))
        a(vml)
        for i in range(8):
            a(f"v_exp_f32 v{X+i}, v{X+i}")
            if i >= 2 and i % 2 == 0: a(f"v_cvt_pk_bf16_f32 v{PX+i//2-1}, v{X+i-2}, v{X+i-1}")
        a(f"v_exp_f32 v{T0}, v{T0}")
        a(f"v_cvt_pk_bf16_f32 v{PX+3}, v{X+6}, v{X+7}")
        a(f"v_exp_f32 v{T0+1}, v{T0+1}\nv_exp_f32 v{T0+2}, v{T0+2}")
        a(f"v_mfma_f32_16x16x32_bf16 {vr(LS,4)}, {vr(ONE,4)}, {vr(PX,4)}, 0")
        a(f"v_exp_f32 v{T0+3}, v{T0+3}")
        a(f"v_mfma_f32_16x16x32_bf16 {vr(O,4)}, {vr(VX,4)}, {vr(PX,4)}, 0")
        a(f"v_cvt_pk_bf16_f32 v{PM}, v{T0}, v{T0+1}\nv_cvt_pk_bf16_f32 v{PM+1}, v{T0+2}, v{T0+3}")
        a(f"v_mfma_f32_16x16x32_bf16 {vr(O+4,4)}, {vr(VX+4,4)}, {vr(PX,4)}, 0")
        vp = SPoll(a, [vml], [VM], vT, cap=3, sleep=1)
        chk = vp.pre3(0)
        a(chk[0]); a(chk[1])
        a(f"v_mfma_f32_16x16x16_bf16 {vr(LS,4)}, {vr(HALF,2)}, {vr(PM,2)}, {vr(LS,4)}")
        a(chk[2])
        probe(a, "s_pv", cfg)
        pv, rt = a.uid("pv"), a.uid("vr")
        a.label(pv)
        a(f"v_mfma_f32_16x16x16_bf16 {vr(O+8,4)}, {vr(VM,2)}, {vr(PM,2)}, {vr(O,4)}")
        a(f"v_mfma_f32_16x16x16_bf16 {vr(O+12,4)}, {vr(VM+2,2)}, {vr(PM,2)}, {vr(O+4,4)}")
        a(f"s_cbranch_vccnz {rt}")
        a.defer(lambda: (vp._body(0, rt), a(f"s_branch {pv}")))
        a(f"s_cmp_eq_u32 s{S_MODE}, 1")
        a(f"v_rcp_f32 v{nm}, v{LS}")
        a("s_mov_b32 exec_lo, 0x00ff00ff\ns_mov_b32 exec_hi, 0x00ff00ff")
        for i in range(0, 8, 2):
            a(f"v_pk_mul_f32 {vr(O+8+i,2)}, {vr(O+8+i,2)}, {vr(nm,2)} op_sel_hi:[1,0]")
            if i >= 2: a(f"v_cvt_pk_bf16_f32 v{PX+i//2-1}, v{O+8+i-2}, v{O+8+i-1}")
        a(f"v_cvt_pk_bf16_f32 v{PX+3}, v{O+14}, v{O+15}")
    store_mode2(a, f"buffer_store_dwordx4 {vr(PX,4)}, v{vL16}, {WS}, s{S_T4} offen")
    a("s_mov_b64 exec, -1")
    stamp(a, 4, cfg)

    V4, VM2, P2, O2, D2 = AF, AF + 16, AF + 24, G, KD
    t0 = cfg.get("tail_seg0", 64)
    def ox_store(seg):
        l1, l2 = a.uid("ox"), a.uid("ox")
        a(f"""s_cmp_ge_u32 s{seg}, {t0}
s_cbranch_scc1 {l1}
s_lshr_b32 s{S_T2}, s{seg}, 2
s_lshl_b32 s{S_T2}, s{S_T2}, 20
s_and_b32 s{S_T1}, s{seg}, 3
s_lshl_b32 s{S_T1}, s{S_T1}, 11
s_add_u32 s{S_T2}, s{S_T2}, s{S_T1}
s_add_u32 s{S_T2}, s{S_T2}, {WS_OX:#x}
s_add_u32 s{S_T1}, s{S_T2}, 0x2000
buffer_store_dwordx4 {vr(D2,4)}, v{vOXO}, {WS}, s{S_T2} offen sc1
buffer_store_dwordx4 {vr(D2+4,4)}, v{vOXO}, {WS}, s{S_T1} offen sc1
{l2}:""")
        a.defer(lambda: a(f"""{l1}:
s_lshl_b32 s{S_T2}, s{seg}, 18
s_add_u32 s{S_T2}, s{S_T2}, s91
s_cmp_ge_u32 s{seg}, {NSEG}
s_cselect_b32 s{S_T2}, {OOBV:#x}, s{S_T2}
buffer_store_dwordx4 {vr(D2,4)}, v{vL16}, {WS}, s{S_T2} offen sc1
buffer_store_dwordx4 {vr(D2+4,4)}, v{vL16}, {WS}, s{S_T2} offen offset:1024 sc1
s_branch {l2}"""))
    vm2 = [f"buffer_load_dwordx4 {vr(VM2+4*i,4)}, v{vVM2}, {WS}, s{S_T5} offen offset:{512*i} sc1" for i in range(2)]
    for x in vm2: a(x)
    a(f"v_add_u32 v{vT2}, s89, v{vXR}\nv_add_u32 v{vT}, s90, v{vXR}")
    for ks in range(4): a(f"ds_read_b128 {vr(QF+4*ks,4)}, v{vT2} offset:{ks*1024}")
    for f in range(4): a(f"ds_read_b128 {vr(V4+4*f,4)}, v{vT} offset:{16384 + f*1024}")
    def burst():
        a(f"s_sub_u32 s92, s{S_STEP}, 1")
        ox_store(92)
        chores()
        x_dma(2)
    bp = cfg.get("burst", 2)
    if bp == 0: burst()
    for ks in range(4):
        a(f"s_waitcnt lgkmcnt({7 - ks})")
        for t in (1, 2, 0):
            A = KMF + 4 * ks if t == 0 else KX + 16 * (t - 1) + 4 * ks
            a(f"v_mfma_f32_16x16x32_bf16 {vr(T+4*t,4)}, {vr(A,4)}, {vr(QF+4*ks,4)}, {vr(MK+4*t,4) if ks == 0 else vr(T+4*t,4)}")
    if bp == 1: burst()
    a(f"s_waitcnt vmcnt({13 if bp < 2 else 0}) lgkmcnt(0)")
    if "post_om" in hooks: hooks["post_om"](MI)
    v2p = SPoll(a, ["\n".join(vm2)], [list(range(VM2, VM2 + 8))], vT, cap=0)
    v2p.pre(0); a.fill(4); v2p.br(0)
    regs = [T + 4 * t + r for t in (1, 2, 0) for r in range(4)]
    a(f"v_max3_f32 v{mx}, v{regs[0]}, v{regs[1]}, v{regs[2]}")
    rest = regs[3:]
    while rest:
        if len(rest) >= 2: a(f"v_max3_f32 v{mx}, v{mx}, v{rest[0]}, v{rest[1]}"); rest = rest[2:]
        else: a(f"v_max_f32 v{mx}, v{mx}, v{rest[0]}"); rest = rest[1:]
    xlane_reduce(a, "v_max_f32", mx, m2)
    a(f"v_mul_f32 v{nm}, s{S_C}, v{mx}")
    for i in range(0, 12, 2): a(pkfma(T + i, nm))
    if bp == 2: burst()
    for r in regs: a(f"v_exp_f32 v{r}, v{r}")
    for i in range(6): a(f"v_cvt_pk_bf16_f32 v{P2+i}, v{regs[2*i]}, v{regs[2*i+1]}")
    a(f"v_mfma_f32_16x16x32_bf16 {vr(LS,4)}, {vr(ONE,4)}, {vr(P2,4)}, 0")
    for f in range(4): a(f"v_mfma_f32_16x16x32_bf16 {vr(O2+4*f,4)}, {vr(V4+4*f,4)}, {vr(P2,4)}, 0")
    a(f"v_mfma_f32_16x16x16_bf16 {vr(LS,4)}, {vr(ONE,2)}, {vr(P2+4,2)}, {vr(LS,4)}")
    for f in range(4): a(f"v_mfma_f32_16x16x16_bf16 {vr(O2+4*f,4)}, {vr(VM2+2*f,2)}, {vr(P2+4,2)}, {vr(O2+4*f,4)}")
    a(f"v_rcp_f32 v{nm}, v{LS}")
    for i in range(0, 16, 2): a(f"v_pk_mul_f32 {vr(O2+i,2)}, {vr(O2+i,2)}, {vr(nm,2)} op_sel_hi:[1,0]")
    for i in range(8): a(f"v_cvt_pk_bf16_f32 v{D2+i}, v{O2+2*i}, v{O2+2*i+1}")
    stamp(a, 5, cfg)
    stamp_flush(a, cfg)
    a(f"""s_add_u32 s{S_STEP}, s{S_STEP}, 1
s_cmp_eq_u32 s{S_STEP}, {NSEG}
s_cbranch_scc1 S_last
s_add_u32 s{S_OFF_A}, s{S_OFF_A}, 0x4000
s_bitset0_b32 s{S_OFF_A}, 17
s_add_u32 s{S_OFF_C}, s{S_OFF_C}, {32*2048:#x}
s_bitset0_b32 s{S_OFF_C}, 19
s_add_u32 s{S_OFF_F}, s{S_OFF_F}, 0x40000
s_bitset0_b32 s{S_OFF_F}, 21
s_branch S_loop""")
    a.label("S_last")
    a(f"s_mov_b32 s92, {NSEG-1}")
    ox_store(92)
    a(f"s_branch {hooks.get('exit', 'L_done')}")
    a.flush_deferred()
    a.set_filler(None)


def v_cu(a, cfg, hooks=None):
    hooks = hooks or {}
    vLANE, vGOFF, vIDX, vL16, vT, vT2, vVMO, vOMO, vRW, vRR, vPO, vMO, vL4, vD, vI16 = range(0, 15)
    QF = 16
    G, ACC, ACC2, OF, RD, RP, MI, SENT = 32, 48, 64, 80, 96, 104, 112, 120
    vRV, vKO = 124, 125
    WV = 128
    cfg = dict(cfg); cfg["stamp_reg"] = MI + 5; cfg["lane4_reg"] = vL4
    a(f"""s_lshl_b32 s{S_HEAD}, s{S_TEAM}, 3
s_lshr_b32 s{S_T0}, s{S_J}, 1
s_add_u32 s{S_HEAD}, s{S_HEAD}, s{S_T0}""")
    srd(a, S_W0, 32, 1024 * 8192)
    srd(a, S_W1, 40, 4096 * 2048)
    srd(a, S_W2, 8, 8 * 2048)
    a(f"v_and_b32 v{vLANE}, 63, v0")
    a(f"v_lshlrev_b32 v{vL16}, 4, v{vLANE}")
    a(f"v_lshlrev_b32 v{vL4}, 2, v{vLANE}")
    for i in range(4): a(f"v_mov_b32 v{SENT+i}, -1")
    a(f"""s_lshl_b32 s{S_OFF_A}, s{S_TEAM}, 20
s_add_u32 s{S_OFF_A}, s{S_OFF_A}, {WS_MEMT:#x}
s_lshl_b32 s{S_T0}, s{S_J}, 10
s_add_u32 s{S_OFF_E}, s{S_OFF_A}, s{S_T0}
s_lshl_b32 s{S_OFF_C}, s{S_HEAD}, 11
s_and_b32 s{S_T1}, s{S_J}, 1
s_lshl_b32 s{S_T1}, s{S_T1}, 10
s_add_u32 s{S_OFF_B}, s{S_OFF_C}, s{S_T1}
s_and_b32 s{S_T0}, s{S_J}, 3
s_lshl_b32 s{S_OFF_D}, s{S_T0}, 11
s_lshr_b32 s{S_T0}, s{S_J}, 2
s_lshl_b32 s{S_T0}, s{S_T0}, 14
s_add_u32 s{S_OFF_D}, s{S_OFF_D}, s{S_T0}
s_add_u32 s{S_OFF_D}, s{S_OFF_D}, {WS_PART:#x}
s_lshl_b32 s{S_T0}, s{S_TEAM}, 16
s_add_u32 s{S_OFF_F}, s{S_OFF_D}, s{S_T0}""")

    for rep in range(2 if cfg.get('init8', 1) else 1):
        a(f"s_add_u32 s{S_T5}, s{S_WAVE}, {4*rep}")
        a(f"""s_lshl_b32 s{S_T0}, s{S_T5}, 14
s_add_u32 s{S_T0}, s{S_T0}, s{S_OFF_E}
buffer_store_dwordx4 {vr(SENT,4)}, v{vL16}, {WS}, s{S_T0} offen sc1
s_lshl_b32 s{S_T0}, s{S_T5}, 16
s_add_u32 s{S_T0}, s{S_T0}, s{S_OFF_B}
s_add_u32 s{S_T1}, s{S_T0}, {WS_VM:#x}
buffer_store_dwordx4 {vr(SENT,4)}, v{vL16}, {WS}, s{S_T1} offen sc1
s_add_u32 s{S_T1}, s{S_T0}, {WS_OM:#x}
buffer_store_dwordx4 {vr(SENT,4)}, v{vL16}, {WS}, s{S_T1} offen sc1
s_add_u32 s{S_T1}, s{S_T0}, {WS_KM:#x}
buffer_store_dwordx4 {vr(SENT,4)}, v{vL16}, {WS}, s{S_T1} offen sc1
s_lshl_b32 s{S_T0}, s{S_T5}, 18
s_add_u32 s{S_T0}, s{S_T0}, s{S_OFF_F}
buffer_store_dwordx4 {vr(SENT,4)}, v{vL16}, {WS}, s{S_T0} offen sc1
buffer_store_dwordx4 {vr(SENT,4)}, v{vL16}, {WS}, s{S_T0} offen offset:1024 sc1
s_add_u32 s{S_T0}, s{S_T0}, 0x2000
buffer_store_dwordx4 {vr(SENT,4)}, v{vL16}, {WS}, s{S_T0} offen sc1
buffer_store_dwordx4 {vr(SENT,4)}, v{vL16}, {WS}, s{S_T0} offen offset:1024 sc1""")

    a(f"""v_mov_b32 v{G}, 0
v_mov_b32 v{G+1}, 0
v_mov_b32 v{G+2}, 0
v_mov_b32 v{G+3}, 0
s_lshl_b32 s{S_T0}, s{S_TEAM}, 4
s_add_u32 s{S_T0}, s{S_T0}, s{S_J}
s_lshl_b32 s{S_T0}, s{S_T0}, 9
s_lshl_b32 s{S_T1}, s{S_WAVE}, 7
s_add_u32 s{S_T0}, s{S_T0}, s{S_T1}
s_add_u32 s{S_T0}, s{S_T0}, {WS_CNT:#x}
s_mov_b64 exec, 0xff
buffer_store_dwordx4 {vr(G,4)}, v{vL16}, {WS}, s{S_T0} offen sc1
s_mov_b64 exec, -1""")
    if not cfg.get("noprobe"):
        skip = a.uid("pr")
        a(f"""s_lshl_b32 s{S_T0}, s{S_TEAM}, 4
s_add_u32 s{S_T0}, s{S_T0}, s{S_J}
s_cmp_ge_u32 s{S_T0}, 8
s_cbranch_scc1 {skip}
s_cmp_lg_u32 s{S_WAVE}, 3
s_cbranch_scc1 {skip}
s_add_u32 s{S_T1}, s{S_OFF_F}, {7 << 18:#x}
s_add_u32 s{S_T2}, s{S_T1}, 0x2000
buffer_store_dwordx4 {vr(SENT,4)}, v{vL16}, {WS}, s{S_T1} offen sc1
buffer_store_dwordx4 {vr(SENT,4)}, v{vL16}, {WS}, s{S_T2} offen sc1
v_mov_b32 v{vT2}, 0
s_mov_b32 s60, -1
s_mov_b32 s61, -1
s_waitcnt vmcnt(0)""")
        for smp in range(8):
            for c in range(2):
                a(f"""s_memtime s[62:63]
s_waitcnt lgkmcnt(0)
buffer_load_dword v{vT}, v{vT2}, {WS}, s{S_T1+c} offen offset:{smp*128} sc1
s_waitcnt vmcnt(0)
s_memtime s[64:65]
s_waitcnt lgkmcnt(0)
s_sub_u32 s64, s64, s62
s_min_u32 s{60+c}, s{60+c}, s64""")
        a(f"""s_cmp_lt_u32 s61, s60
s_cselect_b32 s{S_T1}, 1, 0
s_lshl_b32 s{S_T1}, s{S_T1}, s{S_J}
v_mov_b32 v{vT}, s{S_T1}
s_mov_b64 exec, 1
buffer_atomic_or v{vT}, v{vT2}, {DBG}, 0 offen offset:12 sc1
s_mov_b64 exec, -1
{skip}:""")

    a("s_waitcnt vmcnt(0)\ns_barrier")
    arrive(a, G + 4)

    srd(a, 84, 24, 1024 * 8192)
    vD2, vWT = MI, MI + 1
    a(f"""v_lshrrev_b32 v{vT}, 3, v{vLANE}
v_lshlrev_b32 v{vD}, 13, v{vT}
v_lshlrev_b32 v{vD2}, 11, v{vT}
v_and_b32 v{vT}, 7, v{vLANE}
v_lshl_add_u32 v{vD}, v{vT}, 4, v{vD}
v_lshl_add_u32 v{vD2}, v{vT}, 4, v{vD2}
s_lshl_b32 s{S_T0}, s{S_HEAD}, 8
s_and_b32 s{S_T1}, s{S_J}, 1
s_lshl_b32 s{S_T1}, s{S_T1}, 7
s_add_u32 s{S_T0}, s{S_T0}, s{S_T1}
s_lshl_b32 s{S_T1}, s{S_WAVE}, 21
s_add_u32 s{S_T0}, s{S_T0}, s{S_T1}
v_add_u32 v{vD}, s{S_T0}, v{vD}
s_lshl_b32 s{S_T0}, s{S_TEAM}, 21
s_lshl_b32 s{S_T1}, s{S_J}, 7
s_add_u32 s{S_T0}, s{S_T0}, s{S_T1}
s_lshl_b32 s{S_T1}, s{S_WAVE}, 19
s_add_u32 s{S_T0}, s{S_T0}, s{S_T1}
v_add_u32 v{vD2}, s{S_T0}, v{vD2}
s_lshl_b32 s{S_T2}, s{S_WAVE}, 15
s_add_u32 s{S_T2}, s{S_T2}, {L_W:#x}""")
    for dst, bits in ((vWT, ((5, 11), (3, 10), (4, 9), (2, 7))), (vWT + 1, ((3, 12), (4, 11), (5, 9), (2, 7)))):
        a(f"v_and_b32 v{vT}, 3, v{vLANE}\nv_lshlrev_b32 v{dst}, 3, v{vT}")
        for b, sh in bits:
            a(f"v_bfe_u32 v{vT}, v{vLANE}, {b}, 1\nv_lshl_add_u32 v{dst}, v{vT}, {sh}, v{dst}")
        a(f"v_add_u32 v{dst}, s{S_T2}, v{dst}")
    units = [(m, f) for m in range(3) for f in range(4)]
    def issue(n):
        m, f = units[n]
        sr_, vo, pl = ((84, vD, 13), (S_W0, vD, 13), (S_W1, vD2, 11))[m]
        for i in range(8):
            a(f"s_add_u32 m0, s{S_T2}, {(n % 4) * 8192 + i * 1024}")
            a(f"s_mov_b32 s{S_T4}, {(f * 64 + i * 8) << pl:#x}")
            a(f"buffer_load_dwordx4 v{vo}, s[{sr_}:{sr_+3}], s{S_T4} offen lds")
    for n in range(4): issue(n)
    for n in range(12):
        m, f = units[n]
        a(f"s_waitcnt vmcnt({8 * min(3, 11 - n)})")
        for ct in range(4):
            k, b = (("a", 0), ("v", WV), ("a", 128))[m]
            for v in range(4):
                ro = (32 * (v // 2) + 2 * (v % 2)) if m < 2 else (8 * (v // 2) + 2 * (v % 2))
                a(f"ds_read_b64_tr_b16 {vr(b+(f*4+ct)*8+2*v,2,k)}, v{vWT + (m == 2)} offset:{(n % 4) * 8192 + ro * 128 + ct * 32}")
            if ct == 2: a("s_waitcnt lgkmcnt(4)")
        a("s_waitcnt lgkmcnt(0)")
        if n + 4 < 12: issue(n + 4)
        if n == 3: sstamp(a, 6, cfg)
    a(f"""s_lshl_b32 s{S_T0}, s{S_WAVE}, 12
v_add_u32 v{vGOFF}, s{S_T0}, v{vL16}""")
    idx_reg(a, vIDX, vLANE, vT)
    a(f"""v_and_b32 v{vT}, 31, v{vLANE}
v_lshlrev_b32 v{vVMO}, 4, v{vT}
v_lshrrev_b32 v{vT}, 5, v{vLANE}
v_lshl_add_u32 v{vVMO}, v{vT}, 2, v{vVMO}
s_lshr_b32 s{S_T0}, s{S_WAVE}, 1
s_lshl_b32 s{S_T0}, s{S_T0}, 9
s_and_b32 s{S_T1}, s{S_WAVE}, 1
s_lshl_b32 s{S_T1}, s{S_T1}, 3
s_add_u32 s{S_T0}, s{S_T0}, s{S_T1}
v_add_u32 v{vVMO}, s{S_T0}, v{vVMO}
s_lshl_b32 s{S_T0}, s{S_TEAM}, 14
v_add_u32 v{vOMO}, s{S_T0}, v{vGOFF}""")
    a(f"""s_lshl_b32 s{S_T0}, s{S_WAVE}, 11
v_add_u32 v{vRW}, s{S_T0}, v{vL4}""")
    a(f"""v_bfe_u32 v{vT}, v{vLANE}, 2, 2
v_lshlrev_b32 v{vRR}, 9, v{vT}
v_bfe_u32 v{vT}, v{vLANE}, 2, 1
v_lshl_add_u32 v{vRR}, v{vT}, 5, v{vRR}
v_bfe_u32 v{vT}, v{vLANE}, 3, 1
v_lshl_add_u32 v{vRR}, v{vT}, 7, v{vRR}
v_bfe_u32 v{vT}, v{vLANE}, 4, 1
v_lshl_add_u32 v{vRR}, v{vT}, 6, v{vRR}
v_lshrrev_b32 v{vT}, 5, v{vLANE}
v_lshl_add_u32 v{vRR}, v{vT}, 5, v{vRR}
v_and_b32 v{vT}, 3, v{vLANE}
v_lshl_add_u32 v{vRR}, v{vT}, 3, v{vRR}
s_lshr_b32 s{S_T0}, s{S_WAVE}, 1
s_lshl_b32 s{S_T0}, s{S_T0}, 11
s_and_b32 s{S_T1}, s{S_WAVE}, 1
s_lshl_b32 s{S_T1}, s{S_T1}, 7
s_add_u32 s{S_T0}, s{S_T0}, s{S_T1}
v_add_u32 v{vRR}, s{S_T0}, v{vRR}""")
    a(f"""v_and_b32 v{vT}, 31, v{vLANE}
v_lshlrev_b32 v{vRV}, 2, v{vT}
v_lshrrev_b32 v{vT}, 5, v{vLANE}
v_lshl_add_u32 v{vRV}, v{vT}, 10, v{vRV}
v_add_u32 v{vRV}, s{S_T0}, v{vRV}""")
    a(f"""v_bfe_u32 v{vT}, v{vLANE}, 2, 3
v_lshlrev_b32 v{vKO}, 4, v{vT}
v_lshrrev_b32 v{vT}, 5, v{vLANE}
v_lshl_add_u32 v{vKO}, v{vT}, 8, v{vKO}
v_bfe_u32 v{vT}, v{vLANE}, 1, 1
v_lshl_add_u32 v{vKO}, v{vT}, 7, v{vKO}
v_and_b32 v{vT}, 1, v{vLANE}
v_lshl_add_u32 v{vKO}, v{vT}, 2, v{vKO}
s_lshr_b32 s{S_T0}, s{S_WAVE}, 1
s_lshl_b32 s{S_T0}, s{S_T0}, 9
s_and_b32 s{S_T1}, s{S_WAVE}, 1
s_lshl_b32 s{S_T1}, s{S_T1}, 3
s_add_u32 s{S_T0}, s{S_T0}, s{S_T1}
v_add_u32 v{vKO}, s{S_T0}, v{vKO}""")
    a(f"""v_lshlrev_b32 v{vPO}, 3, v{vLANE}
s_lshl_b32 s{S_T0}, s{S_WAVE}, 9
v_add_u32 v{vPO}, s{S_T0}, v{vPO}
s_lshl_b32 s{S_T0}, s{S_WAVE}, 8
v_add_u32 v{vMO}, s{S_T0}, v{vL4}
v_add_u32 v{vI16}, s{S_T0}, v{vL16}""")
    M0R = RP
    a(f"""v_bfe_u32 v{vT}, v{vLANE}, 2, 3
v_lshlrev_b32 v{vT2}, 11, v{vT}
v_lshrrev_b32 v{vT}, 5, v{vLANE}
v_lshl_add_u32 v{vT2}, v{vT}, 4, v{vT2}
v_and_b32 v{vT}, 3, v{vLANE}
v_lshl_add_u32 v{vT2}, v{vT}, 2, v{vT2}
s_lshl_b32 s{S_T0}, s{S_J}, 7
s_lshl_b32 s{S_T1}, s{S_WAVE}, 5
s_add_u32 s{S_T0}, s{S_T0}, s{S_T1}
buffer_load_dword v{M0R}, v{vT2}, s[{S_W2}:{S_W2+3}], s{S_T0} offen
s_waitcnt vmcnt(0)""")
    sstamp(a, 7, cfg)
    a("s_waitcnt lgkmcnt(0)")
    startup_barrier(a, MI + 2)
    def keep32():
        a(f"v_mfma_f32_32x32x16_bf16 {vr(QF,16)}, {vr(SENT,4)}, {vr(SENT,4)}, {vr(QF,16)}")
    L_K = L_W

    def epi(AC, lbase, pad, keep, tag, extra=None):
        sw = lambda p, r: f"v_permlane32_swap_b32 v{AC+8*p+r}, v{AC+8*p+4+r}"
        ad = lambda p, r: f"v_add_f32 v{AC+8*p+r}, v{AC+8*p+r}, v{AC+8*p+4+r}"
        wr = lambda p, r: f"ds_write_addtid_b32 v{AC+8*p+r} offset:{lbase + (p*4+r)*512 + (pad and (r % 2) * 32 + (r // 2) * 128)}"
        ex = extra or (lambda k: None)
        ex(0)
        for r in range(4):
            a(sw(0, r))
            if r % 2: ex(1 + r // 2)
        for r in range(4): a(ad(0, r))
        ex(3)
        for r in range(4):
            a(sw(1, r)); a(wr(0, r))
            if r % 2: ex(4 + r // 2)
        for r in range(4): a(ad(1, r))
        keep(0)
        for r in range(4): a(wr(1, r))
        probe(a, tag + "w", cfg)
        keep(1)
        a("s_waitcnt lgkmcnt(0)\ns_barrier")
        probe(a, tag + "b", cfg)

    def sum4(reads, keep):
        a(reads[0]); a(reads[1]); keep(2); a(reads[2]); a(reads[3]); keep(3)
        a("s_waitcnt lgkmcnt(2)")
        a(f"v_add_f32 v{RD}, v{RD}, v{RD+2}\nv_add_f32 v{RD+1}, v{RD+1}, v{RD+3}")
        a("s_waitcnt lgkmcnt(0)")
        a(f"v_add_f32 v{RD+4}, v{RD+4}, v{RD+6}\nv_add_f32 v{RD+5}, v{RD+5}, v{RD+7}")
        a(f"v_add_f32 v{RD}, v{RD}, v{RD+4}\nv_add_f32 v{RD+1}, v{RD+1}, v{RD+5}")

    def kpoll(loads, F, wbase, stamp_idx, o):
        def mm(f, ct):
            a(f"v_smfmac_f32_16x16x64_bf16 {vr(ACC+4*ct,4)}, {vr(F+4*f,4)}, {ar(wbase+(f*4+ct)*8,8)}, v{vIDX}")
        if o.get("pre", 0): a.fill(o["pre"])
        def consume(g, k, chk):
            for ct in range(4):
                mm(g, ct)
                if chk: a(chk[ct])
        ring_poll2(a, loads, [F + 4 * f for f in range(4)], vT, consume, a.uid("kj"), space=o.get("space", 4), on_first=lambda: stamp(a, stamp_idx, cfg), rfill=o.get("rfill", 3))

    a(f"""s_bcnt1_i32_b32 s{S_T0}, s{S_NEAR}
s_cmp_ge_u32 s{S_T0}, 4
s_cselect_b32 s{S_T0}, 0x2000, 0
s_add_u32 s{S_OFF_F}, s{S_OFF_F}, s{S_T0}
s_lshl_b32 m0, s{S_WAVE}, 12
s_barrier""")
    a.set_filler(vD)
    store_mode(a, f"buffer_store_dword v{M0R}, v{vMO}, {WS}, s{S_OFF_E} offen")
    a(f"s_mov_b32 s{S_STEP}, 0")
    for i in range(32): a(f"v_mov_b32 v{ACC+i}, 0")
    for i in range(16): a(f"v_mov_b32 v{G+i}, -1")

    a.label("V_loop")
    stamp(a, 0, cfg)
    a(f"s_add_u32 s85, s{S_OFF_B}, {WS_KM:#x}\ns_add_u32 s86, s{S_OFF_B}, {WS_VM:#x}")
    kpoll([f"buffer_load_dwordx4 {vr(G+4*i,4)}, v{vGOFF}, {WS}, s{S_OFF_A} offen offset:{1024*i} sc1" for i in range(4)], G, 0, 1, cfg.get("v_mem", {}))
    vq = [(f, ct) for p in range(2) for f in range(4) for ct in (2 * p, 2 * p + 1)]
    def vm_(n):
        for _ in range(min(n, len(vq))):
            f, ct = vq.pop(0)
            a(f"v_smfmac_f32_16x16x64_bf16 {vr(ACC2+4*ct,4)}, {vr(G+4*f,4)}, {vr(WV+(f*4+ct)*8,8)}, v{vIDX}")
    if cfg.get("kvpipe", 0):
        def parts(AC, lbase, pad):
            sw = lambda p, r: f"v_permlane32_swap_b32 v{AC+8*p+r}, v{AC+8*p+4+r}"
            ad = lambda p, r: f"v_add_f32 v{AC+8*p+r}, v{AC+8*p+r}, v{AC+8*p+4+r}"
            wr = lambda p, r: f"ds_write_addtid_b32 v{AC+8*p+r} offset:{lbase + (p*4+r)*512 + (pad and (r % 2) * 32 + (r // 2) * 128)}"
            return sw, ad, wr
        sw, ad, wr = parts(ACC, L_K, 1)
        kseq = [sw(0, 0), sw(0, 1), sw(0, 2), sw(0, 3), ad(0, 0) + "\n" + ad(0, 1), ad(0, 2) + "\n" + ad(0, 3),
                sw(1, 0) + "\n" + wr(0, 0), sw(1, 1) + "\n" + wr(0, 1), sw(1, 2) + "\n" + wr(0, 2), sw(1, 3) + "\n" + wr(0, 3),
                ad(1, 0) + "\n" + ad(1, 1), ad(1, 2) + "\n" + ad(1, 3), "\n".join(wr(1, r) for r in range(4))]
        every = cfg.get("kvevery", 1)
        for k, x in enumerate(kseq):
            if k % every == 0: vm_(1)
            a(x)
        vm_(cfg.get("kvw", 3))
        a(f"s_waitcnt lgkmcnt(0)\ns_barrier\ns_cmp_eq_u32 s{S_MODE}, 1")
        for src in range(4): a(f"ds_read_b64 {vr(RD+2*src,2)}, v{vRR} offset:{L_K + src*4096}")
        vm_(16)
        sw, ad, wr = parts(ACC2, L_MEM, 0)
        for r in range(4): a(sw(0, r))
        a("s_waitcnt lgkmcnt(0)")
        a(f"""v_add_f32 v{RD}, v{RD}, v{RD+2}
v_add_f32 v{RD+1}, v{RD+1}, v{RD+3}
v_add_f32 v{RD+4}, v{RD+4}, v{RD+6}
v_add_f32 v{RD+5}, v{RD+5}, v{RD+7}
v_add_f32 v{RD}, v{RD}, v{RD+4}
v_add_f32 v{RD+1}, v{RD+1}, v{RD+5}
v_cvt_pk_bf16_f32 v{MI}, v{RD}, v{RD+1}""")
        store_mode2(a, f"buffer_store_dword v{MI}, v{vKO}, {WS}, s85 offen")
        stamp(a, 6, cfg)
        for r in range(4): a(ad(0, r))
        for r in range(4):
            a(sw(1, r)); a(wr(0, r))
        for r in range(4): a(ad(1, r))
        keep32()
        for r in range(4): a(wr(1, r))
        keep32()
        a("s_waitcnt lgkmcnt(0)\ns_barrier")
    else:
        nk = cfg.get("vk", (1, 3, 1, 3))
        ne = cfg.get("ve", (0, 0, 0, 0, 0, 0))
        epi(ACC, L_K, 1, lambda k: vm_(nk[k]), "kk", lambda k: vm_(ne[k]))
        a(f"s_cmp_eq_u32 s{S_MODE}, 1")
        sum4([f"ds_read_b64 {vr(RD+2*src,2)}, v{vRR} offset:{L_K + src*4096}" for src in range(4)], lambda k: vm_(nk[k]))
        a(f"v_cvt_pk_bf16_f32 v{MI}, v{RD}, v{RD+1}")
        store_mode2(a, f"buffer_store_dword v{MI}, v{vKO}, {WS}, s85 offen")
        stamp(a, 6, cfg)
        vm_(16)
        epi(ACC2, L_MEM, 0, lambda k: keep32(), "kv")
    sum4([f"ds_read2st64_b32 {vr(RD+2*src,2)}, v{vRV} offset0:{(L_MEM + src*4096)//256} offset1:{(L_MEM + src*4096)//256 + 2}" for src in range(4)], lambda k: keep32())
    a(f"v_cvt_pk_bf16_f32 v{MI+1}, v{RD}, v{RD+1}")
    store_mode2(a, f"buffer_store_dword v{MI+1}, v{vVMO}, {WS}, s86 offen")
    stamp(a, 2, cfg)
    if "post_vm" in hooks: hooks["post_vm"](MI + 2)
    a(f"""s_cmp_eq_u32 s{S_STEP}, {NSEG-1}
s_cbranch_scc1 L_done""")
    a("s_waitcnt vmcnt(2)")
    for i in range(32): a(f"v_mov_b32 v{ACC+i}, 0")
    for i in range(16): a(f"v_mov_b32 v{G+i}, -1\nv_mov_b32 v{OF+i}, -1")
    for i in range(6): a(f"v_mov_b32 v{RP+i}, -1")
    a(f"""s_and_b32 s88, s{S_STEP}, 7
s_lshl_b32 s88, s88, 16
s_add_u32 s88, s88, {WS_OM:#x}
s_mov_b32 s{S_PCUR}, s{S_OFF_F}""")
    for x in range(1, 4):
        a(f"s_xor_b32 s{S_T0+x}, s{S_PCUR}, {x << 16:#x}")
    if cfg.get("v_sleep"): a(f"s_sleep {cfg['v_sleep']}")
    kpoll([f"buffer_load_dwordx4 {vr(OF+4*f,4)}, v{vOMO}, {WS}, s88 offen offset:{1024*f} sc1" for f in range(4)], OF, 128, 3, cfg.get("v_om", {}))
    epi(ACC, L_RED, 1, lambda k: keep32(), "k3")
    sum4([f"ds_read_b64 {vr(RD+2*src,2)}, v{vRR} offset:{L_RED + src*4096}" for src in range(4)], lambda k: keep32())
    o = cfg.get("v_part", {})
    l3 = "\n".join(f"buffer_load_dwordx2 {vr(RP+2*(x-1),2)}, v{vPO}, {WS}, s{S_T0+x} offen sc1" for x in range(1, 4))
    a(f"buffer_store_dwordx2 {vr(RD,2)}, v{vPO}, {WS}, s{S_PCUR} offen sc1")
    stamp(a, 4, cfg)
    a(f"""s_add_u32 s{S_OFF_E}, s{S_OFF_E}, 0x4000
s_bitset0_b32 s{S_OFF_E}, 17
s_add_u32 s{S_OFF_A}, s{S_OFF_A}, 0x4000
s_bitset0_b32 s{S_OFF_A}, 17
s_add_u32 s{S_OFF_B}, s{S_OFF_B}, 0x10000
s_bitset0_b32 s{S_OFF_B}, 19
s_add_u32 s{S_OFF_F}, s{S_OFF_F}, 0x40000
s_bitset0_b32 s{S_OFF_F}, 21""")
    if o.get("presleep", 3): a(f"s_sleep {o.get('presleep', 3)}")
    for i in range(16): a(f"v_mov_b32 v{ACC+i}, 0")
    pp = SPoll(a, [l3], [list(range(RP, RP + 6))], vT, cap=o.get("cap", 30), sleep=o.get("sleep", 4), pre_sleep=o.get("pre", 12))
    pp.first(prefill=False)
    a(f"""s_cmp_eq_u32 s{S_MODE}, 1
v_pk_add_f32 {vr(RD,2)}, {vr(RD,2)}, {vr(RP,2)}
v_pk_add_f32 {vr(RD+2,2)}, {vr(RP+2,2)}, {vr(RP+4,2)}
v_pk_add_f32 {vr(RD,2)}, {vr(RD,2)}, {vr(RD+2,2)}
v_cvt_pk_bf16_f32 v{MI}, v{RD}, v{RD+1}""")
    store_mode2(a, f"buffer_store_dword v{MI}, v{vMO}, {WS}, s{S_OFF_E} offen")
    stamp(a, 5, cfg)
    stamp_flush(a, cfg)
    a(f"""s_add_u32 s{S_STEP}, s{S_STEP}, 1
s_branch V_loop""")
    a.flush_deferred()
    a.set_filler(None)
```

```python
import sys
from asmgen import *
from chain import *
from chain5 import s_cu, v_cu, DBG, WS, WS_CNT, wait_all_arrived
from gemm import *
from tail import tail_task
from battn import WS_QB, WS_KB, WS_VB, WS_OB
from battn2 import battn_task

PFX = "concat_heads__memory_aug_recurrent_mem_tr__mha_block__prompt"
NAME = PFX + "_kernel"
C_Q, C_TK, C_OVF = 32, 40, 42
C_QKV, C_BQKV, C_BAT, C_OXB, C_OXS = 0, 144, 148, 156, 168
NOSIG = 255
S_INIT = 47
T_MQKV, T_BQKV, T_BB, T_ATT, T_OB, T_OA, T_PF, T_TAIL = range(8)
L_TICKET = 0x20000
P_AX, P_WQ, P_WK, P_WV, P_WO, P_BX, P_BW, P_BO = 60, 62, 64, 66, 68, 70, 72, 74
S_D0, S_D1, S_D2, S_GRP, S_P1, S_P2, S_TYP, S_MAT, S_EB = 84, 85, 86, 58, 59, 88, 89, 93, 92
S_TAB = 90
S_OUT = 24


def desc(typ, p1, p2, wait=None, sig=NOSIG):
    wi, wt = wait if wait else (NOSIG, 0)
    return (typ | p1 << 4 | p2 << 12, wi | wt << 8 | sig << 20)


def coop(tiles, n=256):
    out = []
    kx = lambda d: (d[0] & 15, (d[0] >> 4) & 255)
    kw = lambda d: (d[0] & 15, (d[0] >> 12) & 255)
    def share(d, key):
        grp = [t for t in tiles if key(t) == key(d)]
        if len(grp) == 1: return 0, 0
        i = grp.index(d)
        lo, hi = i * n // len(grp), (i + 1) * n // len(grp)
        return lo, hi - lo
    for d in tiles:
        xf, xc = share(d, kx); wf, wc = share(d, kw)
        assert (xc + 63) // 64 + (wc + 63) // 64 <= 4
        out.append(d + (xf | xc << 8 | wf << 16 | wc << 24,))
    return out


def ox_counter(blk):
    return (C_OXB + blk, 128) if blk < 12 else None


def schedule(cfg):
    L = [[] for _ in range(8)]
    def mq(rb, x):
        return [desc(T_MQKV, rb, mat * 32 + 8 * x + i, sig=C_QKV + rb * 16 + (8 * x + i) // 2) for i in range(8) for mat in (1, 2, 0)]
    def bq(mb, x):
        return [desc(T_BQKV, mb, mat * 16 + 4 * x + i, sig=C_QKV + (1 + mb) * 16 + 4 * x + i) for i in range(4) for mat in (1, 2, 0)]
    def bb(hg):
        return [desc(T_BB, mb, mat * 4 + hg, sig=C_BQKV + hg) for mat in (1, 2, 0) for mb in range(8)]
    def att(h):
        return [desc(T_ATT, h, qb, wait=(C_BQKV + h // 8, 24), sig=C_BAT + qb) for qb in range(8)]
    def ob(blk):
        return [desc(T_OB, blk, nb, wait=(C_BAT + blk // 2, 32)) for nb in range(8)]
    def oa(blk):
        if blk < 10: w = (C_OXB + blk, 256)
        else: w = (C_OXS + (blk - 10) * 4 + 3, 64)
        return [desc(T_OA, blk, nb, wait=w) for nb in range(8)]
    def bqr(mbs, x):
        cols = list(zip(*[bq(mb, x) for mb in mbs]))
        return [t for c in cols for t in c]
    def pf(mat, pat, off, rows=128):
        return (T_PF | mat << 4 | pat << 12, off, rows // 2)
    def slowcols(g, mats):
        return [pf(m, 0, (g * 1024 * 2048 + ln * 128) if m == 3 else (16 * g + ln) * 128) for m in mats for ln in (3, 11)]
    for g in range(4):
        L[g] += [pf(3, 1, (g * 1024 + k * 128) * 2048) for k in range(8)]
    t0 = cfg["tail_seg0"]
    nblk = t0 // 4
    def tail(cs, k): return desc(T_TAIL, cs, 2 * t0 + k)
    def attq(hg, qb):
        return [desc(T_ATT, 8 * hg + i, qb, wait=(C_BQKV + hg, 24), sig=C_BAT + qb) for i in range(8)]
    for x in range(4):
        pools = {"A": [attq(x, q) for q in range(8)], "B": [coop(bqr((5, 6), x))], "C": [coop(bq(7, x))],
                 "O": [oa(b) for b in range(x, nblk, 4)], "o": [ob(b) for b in (4 + x, 8 + x, x, 12 + x)]}
        if cfg["tail_stride"] == 4: pools["T"] = [[tail(i, x) for i in range(8 * k, 8 * k + 8)] for k in range(4)]
        else: pools["T"] = [[tail(16 * (x // 2) + i, x % 2) for i in range(8 * k, 8 * k + 8)] for k in range(2)]
        allpf = [(5, r) for r in range(0, 2048, 128)] + [(6, r) for r in range(0, 3072, 128)] + [(7, r) for r in range(0, 1024, 128)] + [(4, r) for r in range(1280, 2048, 128)]
        bpf = [pf(m, 1, r * 2048, 128) for m, r in allpf[x::4]]
        if cfg.get("thin", 1):
            nq = cfg.get("small_quit", 4)
            L[x] += coop(bq(1, x)[8:]) + bpf[:cfg.get("nbpf", 12)] + [(15, 0)] * nq + coop(bq(4, x)[8:]) + coop(bq(7, x)[8:])
            pools["C"] = [coop(bq(7, x)[:8])]
        else:
            L[x] += coop(bq(1, x)[8:] + bq(4, x)[8:]) + bpf
            L[x] += [(15, 0)] * cfg.get("small_quit", 0)
        take = cfg.get("small", ["A0", "A1"])
        for it in take:
            if int(it[1:]) < len(pools[it[0]]): L[x] += pools[it[0]][int(it[1:])]
        for k in pools:
            pools[k] = [b for i, b in enumerate(pools[k]) if f"{k}{i}" not in take]
        l = L[4 + x]
        xpf = [pf(4, 1, k * 32 * 2048, 32) for k in range(8)]
        l += xpf + mq(0, x) + slowcols(x, (0, 1, 2)) + coop(bq(1, x)[:8]) + mq(1, x) + coop(bqr((2, 3), x)) + coop(bq(4, x)[:8]) + coop(bb(x))
        pools["c"] = []
        od = cfg.get("orders", {3: "CBOAAAAOAAoOTTooo"}).get(x, cfg.get("order", "OBAAAOCAAAoOoTToo"))
        if "c" in od:
            pools["C"] = [coop(bq(7, x)[:8])]; pools["c"] = [coop(bq(7, x)[8:])]
        for ch in od:
            if pools[ch]: l += pools[ch].pop(0)
        assert not any(pools.values()), {k: len(v) for k, v in pools.items()}
    return L


def worker(a, cfg):
    big = Gemm(8, 8, 2, dict({"touch": True}, **cfg.get("big", {})))
    med = Gemm(4, 4, 4, cfg.get("med", {}))
    lists = schedule(cfg)
    MAXL = max(len(l) for l in lists)
    a(f"""v_and_b32 v0, 63, v0
v_lshlrev_b32 v{V_L16}, 4, v0
s_load_dwordx2 s[{P_AX}:{P_AX+1}], s[0:1], 0
s_load_dwordx2 s[{P_WQ}:{P_WQ+1}], s[0:1], 16
s_load_dwordx4 s[{P_WK}:{P_WK+3}], s[0:1], 24
s_load_dwordx2 s[{P_WO}:{P_WO+1}], s[0:1], 40
s_load_dwordx2 s[{P_BX}:{P_BX+1}], s[0:1], 56
s_load_dwordx4 s[{P_BW}:{P_BW+3}], s[0:1], 64
s_getpc_b64 s[{S_TAB}:{S_TAB+1}]
W_pc:
s_add_u32 s{S_TAB}, s{S_TAB}, W_table-W_pc
s_addc_u32 s{S_TAB+1}, s{S_TAB+1}, 0
s_waitcnt lgkmcnt(0)""")
    for p in range(P_AX, P_BO + 2, 2): a(f"s_and_b32 s{p+1}, s{p+1}, 0xffff")
    srd(a, S_OUT, 80, 2048 * 4096)
    row_voff(a)
    a(f"""s_mov_b32 s{G_SX+3}, 0x20000
s_mov_b32 s{G_SW+3}, 0x20000
s_mov_b32 s{G_NXOFF}, {OOB:#x}
s_mov_b32 s{G_NWOFF}, {OOB:#x}
v_mov_b32 v5, {L_TICKET:#x}
v_mov_b32 v6, 0""")
    a(f"s_mov_b32 s{S_INIT}, 0")
    def init_check(vt):
        sk = a.uid("ic")
        a(f"s_cmp_eq_u32 s{S_INIT}, 1\ns_cbranch_scc1 {sk}")
        wait_all_arrived(a, vt, 37)
        a(f"s_mov_b32 s{S_INIT}, 1")
        a.label(sk)
    S_PE, S_PEB, S_PSIG, S_PC, S_TKQ, S_RET = 32, 31, 49, 50, 29, 3
    a(f"""s_mov_b32 s{S_PE}, 0
s_mov_b32 s{S_PSIG}, {NOSIG}
s_mov_b32 s{S_TKQ}, 0""")
    def ticket_ool(back):
        lb = a.uid("tk")
        a.defer(lambda: a(f"""{lb}:
s_mov_b32 s{S_TKQ}, 1
s_cmp_lg_u32 s{S_WAVE}, 0
s_cbranch_scc1 {back}
v_mov_b32 v7, 1
s_lshl_b32 s38, s{S_GRP}, 2
s_mov_b64 exec, 1
buffer_atomic_add v7, v6, {DBG}, s38 offen offset:{C_Q*4} sc0 sc1
s_mov_b64 exec, -1
s_branch {back}"""))
        return lb
    def h_ticket(cnt):
        back = a.uid("tb")
        return f"s_cmp_eq_u32 s{G_CNT}, {cnt}\ns_cbranch_scc1 {ticket_ool(back)}\n{back}:"
    def h_ticket_now():
        back = a.uid("tb")
        return f"s_cmp_eq_u32 s{S_TKQ}, 0\ns_cbranch_scc1 {ticket_ool(back)}\n{back}:"
    def h_pre_bar():
        sk = a.uid("pb")
        return f"s_cmp_eq_u32 s{S_PSIG}, {NOSIG}\ns_cbranch_scc1 {sk}\ns_waitcnt vmcnt(0)\n{sk}:"
    def h_post_bar():
        lb, back = a.uid("sg"), a.uid("sb")
        def ool():
            a(f"""{lb}:
s_lshl_b32 s38, s{S_PSIG}, 7
s_mov_b32 s{S_PSIG}, {NOSIG}
s_cmp_lg_u32 s{S_WAVE}, 0
s_cbranch_scc1 {back}""")
            init_check(248)
            a(f"""s_add_u32 s38, s38, {WS_CNT:#x}
v_mov_b32 v3, 1
s_mov_b64 exec, 1
buffer_atomic_add v3, v6, {WS}, s38 offen sc1
s_mov_b64 exec, -1
s_branch {back}""")
        a.defer(ool)
        return f"s_cmp_lg_u32 s{S_PSIG}, {NOSIG}\ns_cbranch_scc1 {lb}\n{back}:"
    hooks = {"ticket": h_ticket, "ticket_now": h_ticket_now, "pre_bar": h_pre_bar, "post_bar": h_post_bar, "epi_first": cfg.get("epi_first", 1)}
    big.hooks = med.hooks = hooks
    def run_pending(ret):
        a(f"s_mov_b32 s{S_RET}, {ret}\ns_cmp_lg_u32 s{S_PE}, 0\ns_cbranch_scc1 W_epi\nW_ret{ret}:")
    def flush():
        a("s_waitcnt vmcnt(0)\ns_barrier"); a(h_post_bar())

    a(f"""s_sub_u32 s37, s{S_J}, 24
s_cmp_lt_u32 s{S_GRP}, 4
s_cselect_b32 s36, s37, s{S_J}
s_cselect_b32 s{S_J}, 8, 32
s_branch W_have""")
    a.label("W_next")
    if cfg.get("wstamps"):
        sk = a.uid("ws")
        a(f"""s_cmp_lg_u32 s{S_WAVE}, 1
s_cbranch_scc1 {sk}
s_memrealtime s[44:45]
s_memtime s[80:81]
s_waitcnt lgkmcnt(0)
s_sub_u32 s80, s80, s76
v_mov_b32 v60, s40
v_mov_b32 v61, s42
v_mov_b32 v62, s44
v_mov_b32 v63, s80
s_lshl_b32 s36, s46, 4
s_add_u32 s36, s36, {0x8000000:#x}
s_mov_b64 exec, 1
buffer_store_dwordx4 v[60:63], v6, {WS}, s36 offen
s_mov_b64 exec, -1
{sk}:""")
    a(f"""s_lshr_b32 s{S_PSIG}, s{S_D1}, 20
s_mov_b32 s{S_TKQ}, 0
s_cmp_eq_u32 s{S_D0+3}, 0
s_cbranch_scc1 W_nu
s_waitcnt vmcnt(0)
W_nu:
s_cmp_lg_u32 s{S_WAVE}, 0
s_cbranch_scc1 W_tk
s_mov_b64 exec, 1
ds_write_b32 v5, v7
s_mov_b64 exec, -1
W_tk:
s_waitcnt lgkmcnt(0)
s_barrier
s_cmp_eq_u32 s{S_D0+3}, 0
s_cbranch_scc1 W_nu2""")
    a(h_post_bar())
    a(f"""W_nu2:
ds_read_b32 v1, v5
s_waitcnt lgkmcnt(0)
v_readfirstlane_b32 s36, v1
s_nop 3
s_add_u32 s36, s36, s{S_J}
W_have:
s_min_u32 s36, s36, {MAXL}
s_mul_i32 s37, s{S_GRP}, {MAXL+1}
s_add_u32 s36, s36, s37
s_lshl_b32 s36, s36, 4
s_load_dwordx4 s[{S_D0}:{S_D0+3}], s[{S_TAB}:{S_TAB+1}], s36
s_waitcnt lgkmcnt(0)
s_and_b32 s{S_TYP}, s{S_D0}, 15
s_bfe_u32 s{S_P1}, s{S_D0}, 0x80004
s_bfe_u32 s{S_P2}, s{S_D0}, 0x8000c""")
    if cfg.get("wstamps"):
        a(f"s_memrealtime s[40:41]\ns_lshr_b32 s46, s36, 4")
    a(f"""s_cmp_lt_u32 s{S_TYP}, {T_ATT}
s_cbranch_scc1 W_go""")
    a(f"""s_cmp_ge_u32 s{S_TYP}, {T_PF}
s_cbranch_scc1 W_slow
s_cmp_lg_u32 s{S_WAVE}, 0
s_cbranch_scc1 W_q2""")
    init_check(40)
    a(f"""s_and_b32 s39, s{S_D1}, 0xff
s_lshl_b32 s39, s39, 7
s_add_u32 s39, s39, {WS_CNT:#x}
buffer_load_dword v1, v6, {WS}, s39 offen sc1
s_waitcnt vmcnt(0)
s_mov_b64 exec, 1
ds_write_b32 v5, v1 offset:4
s_mov_b64 exec, -1
s_waitcnt lgkmcnt(0)
W_q2:
s_barrier
ds_read_b32 v1, v5 offset:4
s_bfe_u32 s38, s{S_D1}, 0xc0008
s_waitcnt lgkmcnt(0)
v_readfirstlane_b32 s36, v1
s_nop 3
s_cmp_ge_u32 s36, s38
s_cbranch_scc1 W_go
W_slow:""")
    run_pending(1)
    flush()
    a(f"""s_cmp_eq_u32 s{S_TYP}, 15
s_cbranch_scc1 L_done
s_cmp_eq_u32 s{S_TYP}, {T_PF}
s_cbranch_scc1 W_pf
s_cmp_eq_u32 s{S_TYP}, {T_TAIL}
s_cbranch_scc1 W_tail
s_cmp_lg_u32 s{S_WAVE}, 0
s_cbranch_scc1 W_go2""")
    init_check(200)
    a(f"""s_bfe_u32 s38, s{S_D1}, 0xc0008
s_and_b32 s39, s{S_D1}, 0xff
s_lshl_b32 s39, s39, 7
s_add_u32 s39, s39, {WS_CNT:#x}
W_dep:""")
    budget_head(a)
    a(f"""buffer_load_dword v1, v6, {WS}, s39 offen sc1
s_waitcnt vmcnt(0)
v_readfirstlane_b32 s36, v1
s_nop 3
s_cmp_ge_u32 s36, s38
s_cbranch_scc1 W_go2
s_sleep {cfg.get("dep_sleep", 16)}
s_branch W_dep
W_go2:
s_barrier
W_go:""")
    if cfg.get("wstamps"):
        a(f"s_memrealtime s[42:43]\ns_memtime s[76:77]\ns_waitcnt lgkmcnt(0)")
    a(f"""s_cmp_eq_u32 s{S_TYP}, {T_ATT}
s_cbranch_scc1 W_att
s_cmp_ge_u32 s{S_TYP}, {T_OB}
s_cbranch_scc1 W_out
s_mov_b32 s{G_NST}, 16
s_mov_b32 s{G_PX}, 2048
s_mov_b32 s{G_XSTEP}, 128
s_mov_b32 s{G_SX+2}, {2048*2048:#x}
s_cmp_eq_u32 s{S_TYP}, {T_BB}
s_cbranch_scc1 W_bb""")
    def sel_w():
        a(f"""s_mov_b32 s{G_SX}, s{P_AX}
s_mov_b32 s{G_SX+1}, s{P_AX+1}
s_cmp_eq_u32 s{S_MAT}, 1
s_cselect_b32 s{G_SW}, s{P_WK}, s{P_WQ}
s_cselect_b32 s{G_SW+1}, s{P_WK+1}, s{P_WQ+1}
s_cselect_b32 s36, {WS_KX:#x}, {WS_QX:#x}
s_cmp_eq_u32 s{S_MAT}, 2
s_cselect_b32 s{G_SW}, s{P_WV}, s{G_SW}
s_cselect_b32 s{G_SW+1}, s{P_WV+1}, s{G_SW+1}
s_cselect_b32 s36, {WS_VX:#x}, s36
s_add_u32 s{S_EB}, s{S_EB}, s36
s_mov_b32 s{G_SW+2}, {1024*8192:#x}
s_mov_b32 s{G_PW}, 8192""")
    a(f"""s_cmp_eq_u32 s{S_TYP}, {T_BQKV}
s_cbranch_scc1 W_abig""")
    a(f"""s_lshr_b32 s{S_MAT}, s{S_P2}, 5
s_and_b32 s38, s{S_P2}, 31
s_lshl_b32 s{G_XOFF}, s{S_P1}, 18
s_lshl_b32 s{G_WOFF}, s38, 8
s_lshl_b32 s36, s{S_P1}, 1
s_lshr_b32 s37, s{S_WAVE}, 1
s_add_u32 s36, s36, s37
s_lshl_b32 s{S_EB}, s36, 19
s_lshl_b32 s36, s38, 13
s_add_u32 s{S_EB}, s{S_EB}, s36
s_and_b32 s37, s{S_WAVE}, 1
s_cmp_eq_u32 s{S_MAT}, 2
s_cselect_b32 s36, 12, 11
s_lshl_b32 s37, s37, s36
s_add_u32 s{S_EB}, s{S_EB}, s37""")
    sel_w()
    def done(pe):
        a(f"""s_mov_b32 s{S_PE}, {pe}
s_mov_b32 s{S_PEB}, s{S_EB}
s_mov_b32 s{S_PC}, s{S_C}
s_mov_b32 s{S_PC+1}, s{S_C}
s_waitcnt vmcnt(0)""")
        if cfg.get("epi_first", 1): a(f"s_mov_b32 s{S_RET}, 6\ns_branch W_epi")
        else: a("s_branch W_next")
    med.setup(a, S_WAVE, False)
    med.prologue(a, False)
    run_pending(2)
    med.prologue_wait(a, False)
    a(f"s_cmp_eq_u32 s{S_MAT}, 2\ns_cbranch_scc1 W_mv")
    med.tile(a, "W", False); done(1)
    a.label("W_mv")
    med.tile(a, "X", False); done(2)
    a.label("W_abig")
    a(f"""s_lshr_b32 s{S_MAT}, s{S_P2}, 4
s_and_b32 s38, s{S_P2}, 15
s_lshl_b32 s{G_XOFF}, s{S_P1}, 19
s_lshl_b32 s{G_WOFF}, s38, 9
s_lshl_b32 s36, s{S_P1}, 1
s_lshr_b32 s37, s{S_WAVE}, 1
s_add_u32 s36, s36, s37
s_lshl_b32 s{S_EB}, s36, 20
s_lshl_b32 s36, s38, 1
s_and_b32 s37, s{S_WAVE}, 1
s_add_u32 s36, s36, s37
s_lshl_b32 s36, s36, 13
s_add_u32 s{S_EB}, s{S_EB}, s36""")
    sel_w()
    a("s_branch W_biggo")
    a.label("W_bb")
    cb = f32bits(32 ** -0.5 * LOG2E)
    a(f"""s_lshr_b32 s{S_MAT}, s{S_P2}, 2
s_lshl_b32 s{G_XOFF}, s{S_P1}, 19
s_lshl_b32 s{G_WOFF}, s{S_P2}, 9
s_and_b32 s36, s{S_P2}, 3
s_lshl_b32 s36, s36, 1
s_and_b32 s37, s{S_WAVE}, 1
s_add_u32 s36, s36, s37
s_lshl_b32 s{S_EB}, s36, 19
s_lshl_b32 s36, s{S_P1}, 1
s_lshr_b32 s37, s{S_WAVE}, 1
s_add_u32 s36, s36, s37
s_lshl_b32 s36, s36, 13
s_add_u32 s{S_EB}, s{S_EB}, s36
s_lshl_b32 s36, s{S_MAT}, 22
s_add_u32 s{S_EB}, s{S_EB}, s36
s_add_u32 s{S_EB}, s{S_EB}, {WS_QB:#x}
s_cmp_eq_u32 s{S_MAT}, 0
s_cselect_b32 s{S_C}, {cb:#x}, 1.0
s_mov_b32 s{S_C+1}, s{S_C}
s_mov_b32 s{G_SX}, s{P_BX}
s_mov_b32 s{G_SX+1}, s{P_BX+1}
s_mov_b32 s{G_SW}, s{P_BW}
s_mov_b32 s{G_SW+1}, s{P_BW+1}
s_mov_b32 s{G_SW+2}, {1024*6144:#x}
s_mov_b32 s{G_PW}, 6144""")
    a.label("W_biggo")
    big.setup(a, S_WAVE, False)
    if big.touch: big.touch_setup(a, S_WAVE, S_D2)
    big.prologue(a, False)
    run_pending(3)
    big.prologue_wait(a, False)
    a(f"s_cmp_eq_u32 s{S_MAT}, 2\ns_cbranch_scc1 W_bv")
    big.tile(a, "W", False)
    a(f"s_add_u32 s36, s{S_TYP}, 2"); done("s36")
    a.label("W_bv")
    big.tile(a, "X", False)
    a(f"s_add_u32 s36, s{S_TYP}, 4"); done("s36")
    a.label("W_out")
    a(f"""s_mov_b32 s{G_SX}, s{S_WS}
s_mov_b32 s{G_SX+1}, s{S_WS+1}
s_mov_b32 s{G_SX+2}, s{S_WS+2}
s_mov_b32 s{G_PX}, 64
s_mov_b32 s{G_PW}, 2048
s_mov_b32 s{G_XSTEP}, 0x4000
s_lshl_b32 s{G_WOFF}, s{S_P2}, 8
s_lshl_b32 s36, s{S_P1}, 1
s_lshr_b32 s37, s{S_WAVE}, 1
s_add_u32 s36, s36, s37
s_lshl_b32 s{S_EB}, s36, 18
s_lshl_b32 s36, s{S_P2}, 1
s_and_b32 s37, s{S_WAVE}, 1
s_add_u32 s36, s36, s37
s_lshl_b32 s36, s36, 7
s_add_u32 s{S_EB}, s{S_EB}, s36
s_cmp_eq_u32 s{S_TYP}, {T_OA}
s_cselect_b32 s{G_SW}, s{P_WO}, s{P_BO}
s_cselect_b32 s{G_SW+1}, s{P_WO+1}, s{P_BO+1}
s_mov_b32 s36, {1024*2048:#x}
s_cselect_b32 s{G_SW+2}, {4096*2048:#x}, s36
s_cselect_b32 s{G_NST}, 64, 16
s_cselect_b32 s36, 20, 18
s_mov_b32 s37, {WS_OB - 4096:#x}
s_cselect_b32 s37, {WS_OX - 4096:#x}, s37
s_cselect_b32 s38, 0, 2048
s_lshl_b32 s{G_XOFF}, s{S_P1}, s36
s_add_u32 s{G_XOFF}, s{G_XOFF}, s37
s_add_u32 s{S_EB}, s{S_EB}, s38""")
    med.setup(a, S_WAVE, True, half=True)
    med.prologue(a, True, "sc1")
    run_pending(4)
    med.prologue_wait(a, True)
    med.tile(a, "W", True, "sc1"); done(7)
    a.label("W_epi")
    for pe in range(1, 7): a(f"s_cmp_eq_u32 s{S_PE}, {pe}\ns_cbranch_scc1 W_epi{pe}")
    row_voff(a)
    med.epilogue(a, med.ent_row(), S_OUT, S_PEB, V_ROW, swap=True)
    a.label("W_epiend")
    a(f"""s_mov_b32 s{S_PE}, 0
s_cmp_eq_u32 s{S_RET}, 6
s_cbranch_scc1 W_next
s_cmp_eq_u32 s{S_RET}, 1
s_cbranch_scc1 W_ret1
s_cmp_eq_u32 s{S_RET}, 2
s_cbranch_scc1 W_ret2
s_cmp_eq_u32 s{S_RET}, 4
s_cbranch_scc1 W_ret4
s_cmp_eq_u32 s{S_RET}, 5
s_cbranch_scc1 W_ret5
s_branch W_ret3""")
    for pe, g_, ent, vo, sc_ in ((1, med, med.ent_a_qk(), None, None), (2, med, med.ent_a_v(), None, None), (3, big, big.ent_a_qk(), None, None),
                                 (4, big, big.ent_b_qk32(), True, S_PC), (5, big, big.ent_a_v(), None, None), (6, big, big.ent_b_v32(), False, None)):
        a.label(f"W_epi{pe}")
        if vo is not None: b32_voff(a, 38, vo)
        g_.epilogue(a, ent, S_WS, S_PEB, V_L16 if vo is None else 38, "sc1", scale=sc_)
        a("s_branch W_epiend")
    a.label("W_pf")
    a(f"""s_cmp_eq_u32 s{S_P1}, 1
s_cselect_b32 s{G_SW}, s{P_WK}, s{P_WQ}
s_cselect_b32 s{G_SW+1}, s{P_WK+1}, s{P_WQ+1}
s_cmp_eq_u32 s{S_P1}, 2
s_cselect_b32 s{G_SW}, s{P_WV}, s{G_SW}
s_cselect_b32 s{G_SW+1}, s{P_WV+1}, s{G_SW+1}
s_cmp_eq_u32 s{S_P1}, 3
s_cselect_b32 s{G_SW}, s{P_WO}, s{G_SW}
s_cselect_b32 s{G_SW+1}, s{P_WO+1}, s{G_SW+1}
s_cselect_b32 s38, 11, 13
s_mov_b32 s{G_SW+2}, {1024*8192:#x}
s_cmp_eq_u32 s{S_P1}, 4
s_cselect_b32 s{G_SW}, s{P_AX}, s{G_SW}
s_cselect_b32 s{G_SW+1}, s{P_AX+1}, s{G_SW+1}
s_cselect_b32 s{G_SW+2}, {2048*2048:#x}, s{G_SW+2}
s_cmp_eq_u32 s{S_P1}, 5
s_cselect_b32 s{G_SW}, s{P_BX}, s{G_SW}
s_cselect_b32 s{G_SW+1}, s{P_BX+1}, s{G_SW+1}
s_cselect_b32 s{G_SW+2}, {2048*2048:#x}, s{G_SW+2}
s_cmp_eq_u32 s{S_P1}, 6
s_cselect_b32 s{G_SW}, s{P_BW}, s{G_SW}
s_cselect_b32 s{G_SW+1}, s{P_BW+1}, s{G_SW+1}
s_cselect_b32 s{G_SW+2}, {1024*6144:#x}, s{G_SW+2}
s_cmp_eq_u32 s{S_P1}, 7
s_cselect_b32 s{G_SW}, s{P_BO}, s{G_SW}
s_cselect_b32 s{G_SW+1}, s{P_BO+1}, s{G_SW+1}
s_cselect_b32 s{G_SW+2}, {1024*2048:#x}, s{G_SW+2}
s_cmp_ge_u32 s{S_P1}, 3
s_cselect_b32 s38, 11, s38
s_cmp_eq_u32 s{S_P2}, 1
s_cbranch_scc1 W_pf1
v_lshrrev_b32 v1, 3, v0
s_lshl_b32 s36, s{S_WAVE}, 3
v_add_u32 v1, s36, v1
v_lshlrev_b32 v1, s38, v1
v_and_b32 v2, 7, v0
v_lshl_add_u32 v1, v2, 4, v1
s_lshl_b32 s37, 32, s38
s_mov_b32 s39, 32
s_branch W_pfgo
W_pf1:
s_lshr_b32 s36, s{S_WAVE}, 1
s_lshl_b32 s36, s36, s38
s_and_b32 s37, s{S_WAVE}, 1
s_lshl_b32 s37, s37, 10
s_add_u32 s36, s36, s37
v_add_u32 v1, s36, v{V_L16}
s_lshl_b32 s37, 2, s38
s_mov_b32 s39, s{S_D2}
W_pfgo:
s_mov_b32 s36, s{S_D1}
W_pfl:
buffer_load_dwordx4 v[64:67], v1, s[{G_SW}:{G_SW+3}], s36 offen
s_add_u32 s36, s36, s37
s_waitcnt vmcnt(48)
s_sub_u32 s39, s39, 1
s_cmp_lg_u32 s39, 0
s_cbranch_scc1 W_pfl
s_mov_b32 s{S_D1}, {NOSIG << 20:#x}""")
    if cfg.get("wstamps"):
        a("s_waitcnt lgkmcnt(0)\ns_mov_b32 s42, s40")
    a(h_ticket_now())
    a("s_waitcnt vmcnt(0)\ns_branch W_next")
    a.label("W_tail")
    if cfg.get("wstamps"):
        a("s_waitcnt lgkmcnt(0)\ns_mov_b32 s42, s40")
    init_check(200)
    a(f"""s_mov_b32 s{G_SW}, s{P_WO}
s_mov_b32 s{G_SW+1}, s{P_WO+1}
s_mov_b32 s{G_SW+2}, {4096*2048:#x}""")
    tail_task(a, S_WS, G_SW, S_OUT, S_WAVE, S_P1, S_P2, WS_CNT + (C_OXS - 40) * 128, cfg)
    a(h_ticket_now())
    a("s_waitcnt vmcnt(0)\ns_branch W_next")
    a.label("W_att")
    run_pending(5)
    battn_task(a, S_WS, S_WAVE, S_P1, S_P2, cfg, "sc1", "sc1", hooks)
    a(f"s_mov_b32 s{G_NXOFF}, {OOB:#x}\ns_mov_b32 s{G_NWOFF}, {OOB:#x}")
    a("s_waitcnt vmcnt(4)\ns_branch W_next")
    a.flush_deferred()
    def urgent(d):
        t, p1 = d[0] & 15, (d[0] >> 4) & 255
        return t in (T_MQKV, T_BB) or (t == T_BQKV and p1 in cfg.get("urgent_blocks", (1, 2)))
    tab = []
    for l in lists:
        l = l + [(15, 0)] * (MAXL + 1 - len(l))
        tab += [f".long {d[0]:#x}, {d[1]:#x}, {d[2] if len(d) > 2 else 0:#x}, {int(urgent(d))}" for d in l]
    return tab


def chain_hooks(a):
    def wait_x(vt):
        sk, lp = a.uid("wx"), a.uid("wx")
        a(f"""s_cmp_ge_u32 s{S_T0}, {NSEG}
s_cbranch_scc1 {sk}
s_cmp_lt_u32 s{S_T0}, 8
s_cselect_b32 s{S_T1}, 3, 7
s_and_b32 s{S_T1}, s{S_T0}, s{S_T1}
s_cmp_lg_u32 s{S_T1}, 0
s_cbranch_scc1 {sk}
s_lshr_b32 s{S_T1}, s{S_T0}, 3
s_add_u32 s{S_T1}, s{S_T1}, 1
s_lshr_b32 s{S_T2}, s{S_T0}, 2
s_cmp_lt_u32 s{S_T0}, 8
s_cselect_b32 s{S_T1}, s{S_T2}, s{S_T1}
s_cselect_b32 s{S_T2}, 6, 3
s_lshl_b32 s{S_T1}, s{S_T1}, 4
s_lshr_b32 s{S_T3}, s{S_HEAD}, 1
s_add_u32 s{S_T1}, s{S_T1}, s{S_T3}
s_lshl_b32 s{S_T1}, s{S_T1}, 7
s_add_u32 s{S_T1}, s{S_T1}, {WS_CNT + C_QKV*128:#x}
{lp}:""")
        budget_head(a)
        a(f"""v_mov_b32 v{vt}, 0
buffer_load_dword v{vt}, v{vt}, {WS}, s{S_T1} offen sc1
s_waitcnt vmcnt(0)
v_readfirstlane_b32 s{S_T3}, v{vt}
s_nop 3
s_cmp_ge_u32 s{S_T3}, s{S_T2}
s_cbranch_scc1 {sk}
s_sleep 4
s_branch {lp}
{sk}:""")
    def signal(vt, seg_sgpr, n=1):
        a(f"""s_lshr_b32 s{S_T1}, s{seg_sgpr}, 2
s_add_u32 s{S_T1}, s{S_T1}, {C_OXB}
s_add_u32 s{S_T2}, s{seg_sgpr}, {C_OXS - 40}
s_cmp_lt_u32 s{seg_sgpr}, 40
s_cselect_b32 s{S_T1}, s{S_T1}, s{S_T2}
s_lshl_b32 s{S_T1}, s{S_T1}, 7
s_add_u32 s{S_T1}, s{S_T1}, {WS_CNT:#x}
v_mov_b32 v{vt}, {n}
v_mov_b32 v{vt+1}, 0
s_mov_b64 exec, 1
buffer_atomic_add v{vt}, v{vt+1}, {WS}, s{S_T1} offen sc1
s_mov_b64 exec, -1""")
    def post_om(vt):
        sk = a.uid("po")
        a(f"""s_cmp_lg_u32 s{S_WAVE}, 0
s_cbranch_scc1 {sk}
s_cmp_lg_u32 s{S_STEP}, {NSEG-1}
s_cbranch_scc1 {sk}
s_mov_b32 s{S_T0}, {NSEG-3}""")
        signal(vt, S_T0, 2)
        a.label(sk)
        sk = a.uid("po")
        a(f"""s_lshl_b32 s{S_T0}, s{S_HEAD}, 2
s_add_u32 s{S_T0}, s{S_T0}, s{S_WAVE}
s_cmp_lg_u32 s{S_T0}, 3
s_cbranch_scc1 {sk}
s_cmp_lt_u32 s{S_STEP}, 3
s_cbranch_scc1 {sk}
s_sub_u32 s{S_T0}, s{S_STEP}, 3""")
        signal(vt, S_T0, 64)
        a.label(sk)
    return {"wait_x": wait_x, "post_om": post_om, "exit": "S_exit"}, {}, signal


def role_ticket(a, cfg):
    a(f"""v_mov_b32 v2, 0
s_cmp_lg_u32 s{S_WAVE}, 0
s_cbranch_scc1 R_join
s_getreg_b32 s36, hwreg(HW_REG_XCC_ID)
s_and_b32 s36, s36, {cfg.get("xcc_mask", 7)}
s_and_b32 s37, s36, 3
s_lshl_b32 s37, s37, 3
s_lshl_b32 s38, 1, s37
s_and_b32 s39, s36, 4
v_mov_b32 v3, s38
s_mov_b64 exec, 1
buffer_atomic_add v3, v2, {DBG}, s39 offen offset:{C_TK*4} sc0 sc1
s_waitcnt vmcnt(0)
v_readfirstlane_b32 s38, v3
s_nop 3
s_lshr_b32 s38, s38, s37
s_and_b32 s38, s38, 0xff
s_cmp_lt_u32 s38, 32
s_cbranch_scc1 R_have
v_mov_b32 v3, 1
buffer_atomic_add v3, v2, {DBG}, 0 offen offset:{C_OVF*4} sc0 sc1
s_waitcnt vmcnt(0)
v_readfirstlane_b32 s40, v3
R_wait:""")
    budget_head(a)
    a(f"""s_sleep 8
buffer_load_dword v4, v2, {DBG}, 0 offen offset:{C_TK*4} sc1
buffer_load_dword v5, v2, {DBG}, 0 offen offset:{C_TK*4+4} sc1
s_waitcnt vmcnt(0)
v_readfirstlane_b32 s42, v4
v_readfirstlane_b32 s43, v5
s_nop 3
s_mov_b32 s41, 0""")
    for x in range(8):
        a(f"s_bfe_u32 s37, s{42 + x // 4}, {(8 << 16) | (8 * (x % 4)):#x}\ns_add_u32 s41, s41, s37")
    a("""s_cmp_lt_u32 s41, 256
s_cbranch_scc1 R_wait""")
    for x in range(8):
        a(f"""s_bfe_u32 s37, s{42 + x // 4}, {(8 << 16) | (8 * (x % 4)):#x}
s_min_u32 s37, s37, 32
s_mov_b32 s36, {x}
s_add_u32 s38, s37, s40
s_cmp_lt_u32 s38, 32
s_cbranch_scc1 R_have
s_sub_u32 s40, s38, 32""")
    a(f"""s_mov_b32 s38, 0x1000
R_have:
s_lshl_b32 s38, s38, 3
s_add_u32 s38, s38, s36
v_mov_b32 v3, s38
ds_write_b32 v2, v3
s_mov_b64 exec, -1
s_waitcnt lgkmcnt(0)
R_join:
s_barrier
ds_read_b32 v3, v2
s_waitcnt lgkmcnt(0)
v_readfirstlane_b32 s2, v3
s_nop 3
s_cmp_ge_u32 s2, 256
s_cbranch_scc1 L_fail
s_barrier""")


def gen(cfg):
    cfg.setdefault("tail_seg0", 48)
    cfg.setdefault("tail_stride", 2)
    a = Asm()
    a(f"""s_cmp_ge_u32 s2, 256
s_cbranch_scc1 L_done
v_lshrrev_b32 v1, 6, v0
v_readfirstlane_b32 s{S_WAVE}, v1""")
    srd(a, S_WS, 96, WS_SIZE)
    srd(a, S_DBG, 88, 256)
    a(f"s_mov_b32 s{S_BUDGET}, {POLL_BUDGET}")
    if not cfg.get("static_roles"): role_ticket(a, cfg)
    a(f"""s_and_b32 s{S_TEAM}, s2, 7
s_mov_b32 s{S_GRP}, s{S_TEAM}
s_lshr_b32 s{S_J}, s2, 3
s_mov_b32 s{S_MODE}, 0
s_cmp_ge_u32 s{S_TEAM}, {NT}
s_cbranch_scc1 L_W
s_cmp_ge_u32 s{S_J}, 24
s_cbranch_scc1 L_W
s_cmp_lt_u32 s{S_J}, 8
s_cbranch_scc1 L_S
s_sub_u32 s{S_J}, s{S_J}, 8""")
    hooks, vhooks, signal = chain_hooks(a)
    v_cu(a, cfg, vhooks)
    a.label("L_S")
    s_cu(a, cfg, hooks)
    a.label("S_exit")
    a(f"""s_waitcnt vmcnt(2)
s_barrier
s_cmp_lg_u32 s{S_WAVE}, 1
s_cbranch_scc1 S_exit2
s_mov_b32 s{S_T0}, {NSEG-2}""")
    signal(60, S_T0, 2)
    a(f"""s_waitcnt vmcnt(1)
s_barrier
s_endpgm
S_exit2:
s_waitcnt vmcnt(0)
s_barrier
s_cmp_lg_u32 s{S_WAVE}, 0
s_cbranch_scc1 L_done
s_mov_b32 s{S_T0}, {NSEG-1}""")
    signal(60, S_T0, 2)
    a("s_endpgm")
    a.label("L_fail")
    a(f"""v_mov_b32 v1, 0xdead
v_mov_b32 v2, 0
s_mov_b64 exec, 1
buffer_store_dword v1, v2, {DBG}, 0 offen offset:8
s_endpgm""")
    a.label("L_W")
    tab = worker(a, cfg)
    a.label("L_done")
    a("s_endpgm")
    body = a.finalize()
    ref = open("cdna_kernels/" + PFX + ".s.ref").read().split("\n")
    hdr = [l for l in ref if l.startswith(";") and "@launch" not in l and "Override" not in l and "grid=ceil" not in l]
    out = "\n".join(hdr) + "\n"
    out += f"; @launch grid=(256,1,1) block=(256,1,1) lds={LDS_BYTES}\n"
    out += f""".amdgcn_target "amdgcn-amd-amdhsa--gfx950"
.text
.globl {NAME}
.p2align 8
.type {NAME},@function
{NAME}:
""" + body
    out += ".p2align 4\n.type W_table,@object\nW_table:\n" + "\n".join(tab) + f"\n.size W_table, {16*len(tab)}\n"
    out += f"""
.section .rodata,"a"
.p2align 6
.amdhsa_kernel {NAME}
  .amdhsa_next_free_vgpr 512
  .amdhsa_next_free_sgpr 102
  .amdhsa_accum_offset 256
  .amdhsa_group_segment_fixed_size 0
  .amdhsa_kernarg_size 104
  .amdhsa_user_sgpr_count 2
  .amdhsa_user_sgpr_kernarg_segment_ptr 1
  .amdhsa_system_sgpr_workgroup_id_x 1
.end_amdhsa_kernel
"""
    return out


def report(cfg, down):
    import numpy as np
    if cfg.get("stamps") and not cfg.get("rt"):
        T = down(WS_STAMP, np.uint32, (256, 4, 64, 64))[:, :, :, :8].astype(np.int64)
        ss = list(cfg["stamp_set"])
        Sw = [g + 8*j for g in range(4) for j in range(8)]
        Vw = [g + 8*j for g in range(4) for j in range(8, 24)]
        for nm_, W_ in (("S", Sw), ("V", Vw)):
            t = T[W_][:, :, 12:60]
            d = (t[..., ss[1:]] - t[..., ss[:-1]]) & 0xffffffff
            per = (T[W_][:, :, 13:61, ss[0]] - t[..., ss[0]]) & 0xffffffff
            print("  ", nm_, cfg.get("at"), "deltas med", np.median(d.reshape(-1, d.shape[-1]), 0).tolist(), "min", d.reshape(-1, d.shape[-1]).min(0).tolist(), "period median", np.median(per))
        return
    if cfg.get("hops"):
        T = down(WS_STAMP, np.uint32, (32, 8, 4, 64, 64))[..., :8].astype(np.int64) * 10
        S = T[:8, :4]; V = T[8:24, :4]
        st = np.arange(12, 60)
        q = lambda x: "med %4d p90 %4d max-mean %4d" % (np.median(x), np.percentile(x, 90), x.reshape(-1, x.shape[-1]).max(0).mean())
        prod = V[0::4, :, :, :, 5].max(2)[:, :, st - 1]
        print("   MEMT hop (frag0)  ", q(S[:, :, :, :, 1][..., st] - prod.transpose(1, 0, 2)[None]))
        allp = V[..., 5].max(2).max(0)[:, st - 1]
        print("   last MEMT pub -> S OM pub", q(S[..., 4][..., st] - allp[None, :, None]))
        print("   last MEMT pub -> VM pub", q(V[..., 2][..., st] - allp[None, :, None]))
        prod = S[0::2, :, :2, :, 4].max(2)[:, :, st]
        print("   OM hop (frag0)    ", q(V[..., 3][..., st] - prod.transpose(1, 0, 2)[None]))
        allo = S[..., 4].max(2).max(0)[:, st]
        print("   last OM pub -> PART pub", q(V[..., 4][..., st] - allo[None, :, None]))
        lastp = V[..., 4].max(1)[..., st]
        print("   last PART pub -> MEMT pub", q(V[..., 5][..., st] - lastp[:, None]))
        print("   spread of PART pub across teams", q(V[..., 4].max(1)[..., st] - V[..., 4].min(1)[..., st]))
        print("   spread MEMT pub within team", q(V[..., 5].max(2).max(0)[:, st] - V[..., 5].min(2).min(0)[:, st]))
        print("   spread OM pub within team", q(allo - S[..., 4].min(2).min(0)[:, st]))
        print("   period", (S[0, 0, 0, 60, 4] - S[0, 0, 0, 12, 4]) / 48)
        return
    if cfg.get("wstamps"):
        lists = schedule(cfg); MAXL = max(len(l) for l in lists)
        st = down(0x8000000, np.uint32, (8, MAXL + 1, 4)).astype(np.int64)
        t0 = min(st[g, :8, 0].min() for g in range(8))
        names = ["mqkv", "bqkv", "bb", "att", "ob", "oa", "pf", "tail"] + ["x"] * 8
        for g in cfg.get('show', (0, 4, 7)):
            l = lists[g]; i = 0
            while i < len(l):
                j = i
                key = lambda d: (d[0] & 15, (d[0] >> 4) & 255 if (d[0] & 15) not in (T_BB, T_BQKV, T_PF, T_TAIL, T_ATT) else ((d[0] >> 12) & 255 if (d[0] & 15) == T_ATT else 0))
                while j < len(l) and key(l[j]) == key(l[i]): j += 1
                x = (st[g, i:j, :3] - t0) / 100.0
                print(f"  g{g} {names[l[i][0]&15]:5s} p1={(l[i][0]>>4)&255:2d} n={j-i:2d} deq {x[:,0].min():6.1f}-{x[:,0].max():6.1f} start {x[:,1].min():6.1f}-{x[:,1].max():6.1f} end {x[:,2].min():6.1f}-{x[:,2].max():6.1f} dur {(x[:,2]-x[:,1]).mean():5.1f} kcyc {st[g, i:j, 3].mean()/1000:6.1f} GHz {st[g, i:j, 3].mean()/1000/(x[:,2]-x[:,1]).mean():4.2f}")
                i = j
        if cfg.get("stamps"):
            T = down(WS_STAMP, np.uint32, (256, 4, 64, 64))[:, :, :, :8].astype(np.int64)
            s4 = (T[0, 0, :, 4] - t0) / 100.0
            print("  chain OM publish times:", [float(round(x, 1)) for x in s4[[0, 1, 2, 3, 4, 5, 8, 9, 16, 17, 24, 32, 40, 48, 56, 63]]])
            Sw = [g + 8*j for g in range(4) for j in range(8)]
            Vw = [g + 8*j for g in range(4) for j in range(8, 24)]
            if cfg.get("sst"):
                for nm_, W_ in (("S", Sw), ("V", Vw)):
                    for i in (6, 7):
                        x = (T[W_][:, :, 1, i] - t0) / 100.0
                        print("  startup", nm_, i, x.min(), np.median(x), x.max())
                        np.set_printoptions(linewidth=250, precision=0, suppress=True)
                        if cfg.get('sst') == 2: print(x[:, 0].reshape(4, -1))
            print("  S loop first entry", (T[Sw][:, :, 0, 0].min() - t0) / 100.0, (T[Sw][:, :, 0, 0].max() - t0) / 100.0)
            if len(cfg.get("stamp_set", range(8))) > 3:
                for st_ in (21, 35, 58):
                    base = T[Vw][:, :, st_-1, 5].min()
                    tS = (T[Sw][:, :, st_, :8] - base) * 10; tV = (T[Vw][:, :, st_, :8] - base) * 10; tVp = (T[Vw][:, :, st_-1, 5] - base) * 10
                    print("  step", st_, "V pub(prev) min/med/max", tVp.min(), np.median(tVp), tVp.max())
                    for i in cfg["stamp_set"]: print("   S stamp", i, tS[:, :, i].min(), np.median(tS[:, :, i]), tS[:, :, i].max(), "   V stamp", i, tV[:, :, i].min(), np.median(tV[:, :, i]), tV[:, :, i].max())


if __name__ == "__main__":
    cfg = eval(sys.argv[2]) if len(sys.argv) > 2 else {}
    open(sys.argv[1] if len(sys.argv) > 1 else "cdna_kernels/" + PFX + ".s", "w").write(gen(cfg))
```

```python
from asmgen import *

G_SX = 16
G_SW = 20
G_XOFF, G_WOFF, G_WSTEP, G_CNT = 52, 53, 54, 55
G_NXOFF, G_NWOFF = 56, 57
G_NW0, G_NW1 = 58, 59
G_M0 = 82
G_NST = 83
G_TX, G_TW = 94, 95
G_ST = 96
G_MX, G_MW = 100, 101
G_PX, G_PW, G_XSTEP = 78, 79, 33
VL, VT1, VT2, VT3 = 0, 1, 2, 3
V_L16 = 4
XD, WD, XR, WR = 8, 16, 24, 26
XT, WT, TD = 34, 35, 36
V_ROW = 37
XF, WF = 64, 128
EP = 192
OOB = 0x7f000000
G_RB = 2
G_BLK = 81
RC = 40


class Gemm:
    def __init__(self, MT, NT, NBUF, cfg=None):
        self.MT, self.NT, self.NBUF = MT, NT, NBUF
        self.cfg = cfg or {}
        self.XB = 32 * MT * 128
        self.WROW = 32 * NT * 2
        self.SB = self.XB + 64 * self.WROW
        assert self.SB * NBUF == 0x20000 or NBUF == 3
        self.RPI = 1024 // self.WROW
        self.TLEAD = self.cfg.get("tlead", 3 if MT == 8 else 6)
        self.ND = MT + NT
        self.hooks = None
        self.touch = self.cfg.get('touch', False)
        self.NTCH = 1 if self.touch else 0
        self.chain = self.cfg.get('chain', False)

    def acc(self, mt, nt):
        return (mt * self.NT + nt) * 4

    def setup(self, a, s_wave, kperm, st0=36, st1=37, half=False):
        MT, NT, RPI, WROW = self.MT, self.NT, self.RPI, self.WROW
        lg = lambda x: x.bit_length() - 1
        a(f"""v_lshrrev_b32 v{VT1}, 3, v{VL}
v_and_b32 v{VT2}, 7, v{VL}
v_xor_b32 v{VT2}, v{VT2}, v{VT1}""")
        if half:
            a(f"""v_lshrrev_b32 v{VT3}, 2, v{VT2}
v_and_b32 v{VT2}, 3, v{VT2}
v_lshlrev_b32 v{VT2}, 4, v{VT2}
v_lshl_add_u32 v{VT2}, v{VT3}, 13, v{VT2}
v_add_u32 v{VT2}, 0x1000, v{VT2}""")
        else:
            a(f"v_lshlrev_b32 v{VT2}, 4, v{VT2}")
        if half and MT == 8:
            a(f"""s_lshr_b32 s{st0}, s{s_wave}, 1
s_mul_i32 s{st0}, s{st0}, s{G_BLK}
v_add_u32 v{VT2}, s{st0}, v{VT2}
s_and_b32 s{st0}, s{s_wave}, 1
s_lshl_b32 s{st0}, s{st0}, 6""")
        else:
            a(f"s_lshl_b32 s{st0}, s{s_wave}, {lg(8*MT)}")
        a(f"""v_add_u32 v{VT1}, s{st0}, v{VT1}
v_mul_lo_u32 v{VT1}, v{VT1}, s{G_PX}
v_add_u32 v{XD}, v{VT1}, v{VT2}""")
        for i in range(1, MT):
            a(f"s_mul_i32 s{st0}, s{G_PX}, {8*i}\ns_sub_u32 s{st0}, s{st0}, {(i%4)*1024}\nv_add_u32 v{XD+i}, s{st0}, v{XD}")
        LPR = 64 // RPI
        a(f"""v_lshrrev_b32 v{VT1}, {lg(LPR)}, v{VL}
s_lshl_b32 s{st0}, s{s_wave}, 4
v_add_u32 v{VT2}, s{st0}, v{VT1}
v_mul_lo_u32 v{VT2}, v{VT2}, s{G_PW}
v_and_b32 v{VT3}, {LPR-1}, v{VL}
v_lshlrev_b32 v{VT3}, 4, v{VT3}
v_lshlrev_b32 v{VT1}, 5, v{VT1}
v_xor_b32 v{VT3}, v{VT3}, v{VT1}""")
        for i in range(NT):
            k = RPI * i
            f = k % 8 if kperm else (k % 4 + 4 * ((k // 8) % 2))
            a(f"v_xor_b32 v{VT1}, {f*32}, v{VT3}")
            a(f"s_mul_i32 s{st0}, s{G_PW}, {k}\ns_sub_u32 s{st0}, s{st0}, {(i%4)*1024}")
            a(f"v_add3_u32 v{WD+i}, v{VT2}, v{VT1}, s{st0}")
        a(f"""v_and_b32 v{VT1}, 15, v{VL}
v_lshlrev_b32 v{VT2}, 7, v{VT1}
v_and_b32 v{VT1}, 7, v{VL}
v_lshrrev_b32 v{VT3}, 4, v{VL}
v_xor_b32 v{VT1}, v{VT1}, v{VT3}
v_lshl_add_u32 v{VT2}, v{VT1}, 4, v{VT2}
s_lshr_b32 s{st0}, s{s_wave}, 1
s_lshl_b32 s{st0}, s{st0}, {lg(16*MT*128)}
v_add_u32 v{XR}, s{st0}, v{VT2}
v_xor_b32 v{XR+1}, 64, v{XR}""")
        a(f"""v_lshrrev_b32 v{VT1}, 4, v{VL}
v_lshlrev_b32 v{VT2}, {lg(WROW) + (2 if kperm else 3)}, v{VT1}
v_bfe_u32 v{VT3}, v{VL}, 2, 2
v_lshl_add_u32 v{VT2}, v{VT3}, {lg(WROW)}, v{VT2}
v_bfe_u32 v{VT3}, v{VL}, 2, 3
v_lshl_add_u32 v{VT2}, v{VT3}, 5, v{VT2}
v_and_b32 v{VT3}, 3, v{VL}
v_lshl_add_u32 v{VT2}, v{VT3}, 3, v{VT2}
s_and_b32 s{st0}, s{s_wave}, 1
s_lshl_b32 s{st0}, s{st0}, {lg(NT*32)}
v_xor_b32 v{VT2}, s{st0}, v{VT2}
v_add_u32 v{WR}, {self.XB:#x}, v{VT2}""")
        for nt in range(1, NT):
            a(f"v_xor_b32 v{WR+nt}, {nt*32}, v{WR}")
        if self.NBUF == 3:
            for r in range(XR, WR + NT): a(f"v_mov_b32 v{RC + r - XR}, v{r}")
        a(f"""s_lshl_b32 s{G_WSTEP}, s{G_PW}, 6
s_mov_b32 s{G_M0}, 0
s_lshl_b32 s{G_MX}, s{s_wave}, {lg(MT*1024)}
s_lshl_b32 s{G_MW}, s{s_wave}, {lg(NT*1024)}
s_add_u32 s{G_MW}, s{G_MW}, {self.XB:#x}""")

    def dma_instrs(self, xflags, wflags):
        out = []
        for isx, n in ((True, self.MT), (False, self.NT)):
            for j in range(n):
                pre = ""
                if j == 0:
                    pre = f"s_add_u32 m0, s{G_M0}, s{G_MX if isx else G_MW}\n"
                elif j % 4 == 0:
                    pre = f"s_add_u32 m0, m0, 0x1000\n"
                srd, vo, so, fl = (G_SX, XD, G_XOFF, xflags) if isx else (G_SW, WD, G_WOFF, wflags)
                out.append(pre + f"buffer_load_dwordx4 v{vo+j}, s[{srd}:{srd+3}], s{so} offen offset:{(j%4)*1024} {fl} lds")
        return out

    def dma_advance(self):
        return f"""s_add_u32 s{G_XOFF}, s{G_XOFF}, s{G_XSTEP}
s_add_u32 s{G_WOFF}, s{G_WOFF}, s{G_WSTEP}
s_add_u32 s{G_M0}, s{G_M0}, {self.SB:#x}
""" + (f"s_cmp_eq_u32 s{G_M0}, {3*self.SB:#x}\ns_cselect_b32 s{G_M0}, 0, s{G_M0}" if self.NBUF == 3 else f"s_and_b32 s{G_M0}, s{G_M0}, 0x1ffff")

    def touch_setup(self, a, s_wave, sd, half=False):
        LR = self.WROW // 128
        lg = lambda x: x.bit_length() - 1
        lw, go = a.uid("tw"), a.uid("tg")
        a(f"""s_bfe_u32 s36, s{sd}, 0x80008
s_add_u32 s37, s36, 63
s_lshr_b32 s37, s37, 6
s_mov_b32 s{G_ST+3}, 0x20000
s_cmp_ge_u32 s{s_wave}, s37
s_cbranch_scc1 {lw}
s_lshl_b32 s37, s{s_wave}, 6
v_add_u32 v{VT1}, s37, v{VL}
v_cmp_gt_u32 vcc, s36, v{VT1}
s_and_b32 s36, s{sd}, 0xff
v_add_u32 v{VT1}, s36, v{VT1}
{f"v_lshlrev_b32 v{XT}, 7, v{VT1}" + chr(10) + f"v_add_u32 v{XT}, 0x1000, v{XT}" if half else f"v_mul_lo_u32 v{XT}, v{VT1}, s{G_PX}"}
s_mov_b32 s{G_ST}, s{G_SX}
s_mov_b32 s{G_ST+1}, s{G_SX+1}
s_mov_b32 s{G_ST+2}, s{G_SX+2}
s_mov_b32 s{G_TX}, s{G_XOFF}
s_mov_b32 s{G_TW}, s{G_XSTEP}
s_branch {go}
{lw}:
s_sub_u32 s37, s{s_wave}, s37
s_lshl_b32 s37, s37, 6
v_add_u32 v{VT1}, s37, v{VL}
s_lshr_b32 s36, s{sd}, 24
v_cmp_gt_u32 vcc, s36, v{VT1}
s_bfe_u32 s36, s{sd}, 0x80010
v_add_u32 v{VT1}, s36, v{VT1}
v_lshrrev_b32 v{VT2}, {lg(LR)}, v{VT1}
v_mul_lo_u32 v{XT}, v{VT2}, s{G_PW}
v_and_b32 v{VT2}, {LR-1}, v{VT1}
v_lshl_add_u32 v{XT}, v{VT2}, 7, v{XT}
s_mov_b32 s{G_ST}, s{G_SW}
s_mov_b32 s{G_ST+1}, s{G_SW+1}
s_mov_b32 s{G_ST+2}, s{G_SW+2}
s_mov_b32 s{G_TX}, s{G_WOFF}
s_mov_b32 s{G_TW}, s{G_WSTEP}
{go}:
v_mov_b32 v{VT2}, {OOB:#x}
v_cndmask_b32 v{XT}, v{VT2}, v{XT}, vcc""")

    def touch_instrs(self, xflags):
        if not self.touch: return []
        return [f"buffer_load_dword v{TD}, v{XT}, s[{G_ST}:{G_ST+3}], s{G_TX} offen {xflags}\ns_add_u32 s{G_TX}, s{G_TX}, s{G_TW}"]

    def read_instrs(self, setid, h, kperm):
        xs = [f"ds_read_b128 {vr(XF+32*setid+4*mt,4)}, v{XR+h} offset:{mt*2048}" for mt in range(self.MT)]
        ws = []
        for nt in range(self.NT):
            for u in range(2):
                ws.append(f"ds_read_b64_tr_b16 {vr(WF+32*setid+4*nt+2*u,2)}, v{WR+nt} offset:{(32*h + (16 if kperm else 4)*u)*self.WROW}")
        return [xs[0]] + ws + xs[1:]

    def toggles(self):
        regs = list(range(XR, XR + 2)) + list(range(WR, WR + self.NT))
        if self.NBUF == 3:
            t = [f"v_add_u32 v{r}, s{G_RB}, v{RC + r - XR}" for r in regs]
            t[0] = f"s_add_u32 s{G_RB}, s{G_M0}, {self.SB:#x}\ns_cmp_eq_u32 s{G_RB}, {3*self.SB:#x}\ns_cselect_b32 s{G_RB}, 0, s{G_RB}\n" + t[0]
            return t
        if self.NBUF == 2:
            return [f"v_xor_b32 v{r}, 0x10000, v{r}" for r in regs]
        return [f"v_add_u32 v{r}, {self.SB:#x}, v{r}\nv_and_b32 v{r}, 0x1ffff, v{r}" for r in regs]

    def prologue(self, a, kperm, xflags="", wflags=""):
        if self.touch:
            for b in range(self.TLEAD):
                for t in self.touch_instrs(xflags): a(t)
        for b in range(self.NBUF):
            for g in self.dma_instrs(xflags, wflags): a(g)
            a(self.dma_advance())
            for t in self.touch_instrs(xflags): a(t)

    def prologue_wait(self, a, kperm):
        a(f"s_waitcnt vmcnt({(self.NBUF-1)*(self.ND+self.NTCH) + self.NTCH})\ns_barrier")
        if self.hooks and self.hooks.get("epi_first"): a(self.hooks["post_bar"]())
        for r in self.read_instrs(0, 0, kperm): a(r)

    def stage_body(self, a, orient, kperm, first, xflags, wflags):
        cfg, MT, NT = self.cfg, self.MT, self.NT
        H = MT * NT
        big = MT == 8
        bar = cfg.get("bar", {64: 30, 32: 22, 16: 13}[H])
        dgap = cfg.get("dgap", {64: 4, 32: 3, 16: 2}[H])
        vm_wait = min(63, (self.NBUF - 2) * (self.ND + self.NTCH) + self.NTCH)
        dma = self.dma_instrs(xflags, wflags)
        nrd = MT + 2 * NT
        for h in range(2):
            fill = {}
            def add(g, t): fill.setdefault(min(g, H - 1), []).append(t)
            rd = self.read_instrs(1 - h, 1 - h, kperm)
            for i, r in enumerate(rd): add(i, r)
            if h == 0:
                tg = self.toggles()
                if big:
                    for i, t in enumerate(tg): add(nrd + i, t)
                else:
                    add(1, tg[0])
                    for nt in range(NT): add(2 * nt + 3, tg[2 + nt])
                    add(nrd, tg[1])
                if first and self.hooks: add(bar, self.hooks["pre_bar"]())
                add(bar, f"s_waitcnt vmcnt({vm_wait}) lgkmcnt(0)\ns_barrier")
                if first and self.hooks: add(bar, self.hooks["post_bar"]())
                if not first and self.hooks: add(bar - 3, self.hooks["ticket"]({64: 2, 32: 3, 16: 5}[H]))
                add(bar - 1, f"""s_cmp_eq_u32 s{G_CNT}, {self.NBUF}
s_cselect_b32 s{G_XOFF}, s{G_NXOFF}, s{G_XOFF}
s_cselect_b32 s{G_WOFF}, s{G_NWOFF}, s{G_WOFF}""")
                if self.chain:
                    add(bar - 1, f"""s_cselect_b32 s{G_SW}, s{G_NW0}, s{G_SW}
s_cselect_b32 s{G_SW+1}, s{G_NW1}, s{G_SW+1}""")
            for i, d in enumerate(dma):
                g = bar + 1 + i * dgap - H * h
                if (0 <= g < H) or (h == 1 and g >= H): add(g, d)
            if h == 1:
                tg = max(0, bar + 1 + len(dma) * dgap - H)
                if self.touch:
                    add(tg, f"""s_cmp_eq_u32 s{G_CNT}, {self.NBUF + self.TLEAD}
s_cselect_b32 s{G_TX}, s{G_NXOFF}, s{G_TX}""")
                    for i, t in enumerate(self.touch_instrs(xflags)): add(tg + 1, t)
                adv = self.dma_advance().split("\n")
                last = (bar + 1 + (len(dma) - 1) * dgap - H)
                add(last + 1, "\n".join(adv[:2]))
                add(last + 2, "\n".join(adv[2:]))
                add(H - 1, f"s_sub_u32 s{G_CNT}, s{G_CNT}, 1")
            a("s_waitcnt lgkmcnt(0)")
            for mt in range(MT):
                for nt in range(NT):
                    X = vr(XF + 32 * h + 4 * mt, 4); W = vr(WF + 32 * h + 4 * nt, 4)
                    A, B = (W, X) if orient == "W" else (X, W)
                    C = "0" if (first and h == 0) else ar(self.acc(mt, nt), 4)
                    a(f"v_mfma_f32_16x16x32_bf16 {ar(self.acc(mt,nt),4)}, {A}, {B}, {C}")
                    for t in fill.get(mt * NT + nt, []): a(t)

    def tile(self, a, orient, kperm, xflags="", wflags=""):
        lp = a.uid("gl")
        a(f"s_mov_b32 s{G_CNT}, s{G_NST}")
        self.stage_body(a, orient, kperm, True, xflags, wflags)
        a.label(lp)
        self.stage_body(a, orient, kperm, False, xflags, wflags)
        a(f"s_cmp_lg_u32 s{G_CNT}, 0\ns_cbranch_scc1 {lp}")

    def pack_pair(self, a, t0, t1, dst, tmp, scale=None):
        for r in range(4):
            a(f"v_accvgpr_read_b32 v{tmp+r}, a{t0+r}")
        for r in range(4):
            a(f"v_accvgpr_read_b32 v{tmp+4+r}, a{t1+r}")
        if scale is not None:
            for r in range(0, 8, 2):
                a(f"v_pk_mul_f32 {vr(tmp+r,2)}, {vr(tmp+r,2)}, s[{scale}:{scale+1}]")
        for r in range(4):
            a(f"v_cvt_pk_bf16_f32 v{dst+r}, v{tmp+2*r}, v{tmp+2*r+1}")

    def epilogue(self, a, entries, srd, sbase, voff, flags="", scale=None, swap=False):
        entries = sorted(entries, key=lambda e: e[2])
        cur = None
        for n, (p0, p1, off) in enumerate(entries):
            win = off & ~0xfff
            if win != cur:
                a(f"s_add_u32 s36, s{sbase}, {win:#x}"); cur = win
            d = EP + 16 + 4 * (n % 8)
            self.pack_pair(a, self.acc(*p0), self.acc(*p1), d, EP + 8 * (n % 2), scale)
            if swap:
                a(f"v_permlane16_swap_b32 v{d}, v{d+2}\nv_permlane16_swap_b32 v{d+1}, v{d+3}")
            a(f"buffer_store_dwordx4 {vr(d,4)}, v{voff}, s[{srd}:{srd+3}], s36 offen offset:{off - win} {flags}")

    def ent_a_qk(self):
        return [((mt, 2*i), (mt, 2*i+1), (mt // 2) * (1 << 18) + (mt % 2) * 4096 + i * 1024) for mt in range(self.MT) for i in range(self.NT // 2)]
    def ent_a_v(self):
        return [((2*mp, nt), (2*mp+1, nt), mp * (1 << 18) + nt * 1024) for mp in range(self.MT // 2) for nt in range(self.NT)]
    def ent_b_qk(self):
        return [((mt, 2*i), (mt, 2*i+1), i * (1 << 17) + mt * 1024) for mt in range(self.MT) for i in range(self.NT // 2)]
    def ent_b_v(self):
        return [((2*mp, nt), (2*mp+1, nt), (nt // 2) * (1 << 17) + mp * 2048 + (nt % 2) * 1024) for mp in range(self.MT // 2) for nt in range(self.NT)]
    def ent_b_qk32(self):
        return [((mt, 2*i), (mt, 2*i+1), i * (1 << 17) + (mt // 2) * 2048 + (mt % 2) * 128) for mt in range(self.MT) for i in range(self.NT // 2)]
    def ent_b_v32(self):
        return [((2*mp, nt), (2*mp+1, nt), (nt // 2) * (1 << 17) + mp * 2048 + (nt % 2) * 256) for mp in range(self.MT // 2) for nt in range(self.NT)]
    def ent_row(self):
        return [((mt, 2*i), (mt, 2*i+1), mt * 16 * 4096 + i * 64) for mt in range(self.MT) for i in range(self.NT // 2)]


def row_voff(a):
    a(f"""v_and_b32 v{VT1}, 15, v{VL}
v_lshlrev_b32 v{V_ROW}, 12, v{VT1}
v_bfe_u32 v{VT1}, v{VL}, 4, 1
v_lshl_add_u32 v{V_ROW}, v{VT1}, 5, v{V_ROW}
v_lshrrev_b32 v{VT1}, 5, v{VL}
v_lshl_add_u32 v{V_ROW}, v{VT1}, 4, v{V_ROW}""")


def b32_voff(a, dst, qk):
    a(f"v_lshrrev_b32 v{VT1}, 4, v{VL}\nv_lshlrev_b32 v{dst}, 9, v{VT1}")
    if qk:
        a(f"""v_bfe_u32 v{VT1}, v{VL}, 3, 1
v_lshl_add_u32 v{dst}, v{VT1}, 8, v{dst}
v_and_b32 v{VT1}, 7, v{VL}""")
    else:
        a(f"v_and_b32 v{VT1}, 15, v{VL}")
    a(f"v_lshl_add_u32 v{dst}, v{VT1}, 4, v{dst}")
```

```python
import sys
from asmgen import *
from chain import *
from chain5 import s_cu, v_cu, DBG, WS, WS_CNT, wait_all_arrived
from gemm import *
from tail import tail_task
from battn import WS_QB, WS_KB, WS_VB, WS_OB
from battn2 import battn_task

PFX = "concat_heads__memory_aug_recurrent_mem_tr__mha_block__prompt"
NAME = PFX + "_kernel"
C_Q, C_TK, C_OVF = 32, 40, 42
C_QKV, C_BQKV, C_BAT, C_OXB, C_OXS = 0, 144, 148, 156, 168
NOSIG = 255
S_INIT = 47
T_MQKV, T_BQKV, T_BB, T_ATT, T_OB, T_OA, T_OAM, T_PF, T_TAIL = range(9)
L_TICKET = 0x27f00
P_AX, P_WQ, P_WK, P_WV, P_WO, P_BX, P_BW, P_BO = 60, 62, 64, 66, 68, 70, 72, 74
S_D0, S_D1, S_D2, S_GRP, S_P1, S_P2, S_TYP, S_MAT, S_EB = 84, 85, 86, 58, 59, 88, 89, 93, 92
S_TAB = 90
S_OUT = 24


def desc(typ, p1, p2, wait=None, sig=NOSIG):
    wi, wt = wait if wait else (NOSIG, 0)
    return (typ | p1 << 4 | p2 << 12, wi | wt << 8 | sig << 20)


def coop(tiles, n=256):
    out = []
    kx = lambda d: (d[0] & 15, (d[0] >> 4) & 255)
    kw = lambda d: (d[0] & 15, (d[0] >> 12) & 255)
    def share(d, key):
        grp = [t for t in tiles if key(t) == key(d)]
        if len(grp) == 1: return 0, 0
        i = grp.index(d)
        lo, hi = i * n // len(grp), (i + 1) * n // len(grp)
        return lo, hi - lo
    for d in tiles:
        xf, xc = share(d, kx); wf, wc = share(d, kw)
        assert (xc + 63) // 64 + (wc + 63) // 64 <= 4
        out.append(d + (xf | xc << 8 | wf << 16 | wc << 24,))
    return out


def ox_counter(blk):
    return (C_OXB + blk, 128) if blk < 12 else None


def schedule(cfg):
    L = [[] for _ in range(8)]
    def mq(rb, x):
        return [desc(T_MQKV, rb, mat * 32 + 8 * x + i, sig=C_QKV + 16 + (8 * x + i) // 2) for i in range(8) for mat in (1, 2, 0)]
    def bq(mb, x):
        return [desc(T_BQKV, mb, mat * 16 + 4 * x + i, sig=C_QKV + (1 + mb) * 16 + 4 * x + i) for i in range(4) for mat in (1, 2, 0)]
    def bb(hg):
        return [desc(T_BB, mb, mat * 4 + hg, sig=C_BQKV + hg) for mat in (1, 2, 0) for mb in range(8)]
    def att(h):
        return [desc(T_ATT, h, qb, wait=(C_BQKV + h // 8, 24), sig=C_BAT + qb) for qb in range(8)]
    def ob(qb):
        return [desc(T_OB, 2 * qb, nb, wait=(C_BAT + qb, 32)) for nb in range(8)]
    def oxw(blk):
        return (C_OXB + blk, 256) if blk < 10 else (C_OXS + (blk - 10) * 4 + 3, 64)
    def oa(b2):
        return [desc(T_OA, 2 * b2, nb, wait=oxw(2 * b2 + 1)) for nb in range(8)]
    def oam(blk):
        return [desc(T_OAM, blk, nb, wait=oxw(blk)) for nb in range(8)]
    def bqr(mbs, x):
        cols = list(zip(*[bq(mb, x) for mb in mbs]))
        return [t for c in cols for t in c]
    def pf(mat, pat, off, rows=128):
        return (T_PF | mat << 4 | pat << 12, off, rows // 2)
    def slowcols(g, mats):
        return [pf(m, 0, (g * 1024 * 2048 + ln * 128) if m == 3 else (16 * g + ln) * 128) for m in mats for ln in (3, 11)]
    for g in range(4):
        L[g] += [pf(3, 1, (g * 1024 + k * 128) * 2048) for k in range(8)]
    t0 = cfg["tail_seg0"]
    nblk = t0 // 4
    def tail(cs, k): return desc(T_TAIL, cs, 2 * t0 + k)
    def attq(hg, qb):
        return [desc(T_ATT, 8 * hg + i, qb, wait=(C_BQKV + hg, 24), sig=C_BAT + qb) for i in range(8)]
    for x in range(4):
        pools = {"A": [attq(x, q) for q in range(8)], "B": [coop(bqr((5, 6), x))], "C": [coop(bq(7, x))],
                 "O": [oa(x)], "M": [oam(b) for b in range(8 + x, nblk, 4)], "o": [ob(b) for b in ((2, 6), (3, 7), (4, 0), (5, 1))[x]]}
        if cfg["tail_stride"] == 4: pools["T"] = [[tail(i, x) for i in range(8 * k, 8 * k + 8)] for k in range(4)]
        else: pools["T"] = [[tail(16 * (x // 2) + i, x % 2) for i in range(8 * k, 8 * k + 8)] for k in range(2)]
        allpf = [(5, r) for r in range(0, 2048, 128)] + [(6, r) for r in range(0, 3072, 128)] + [(7, r) for r in range(0, 1024, 128)] + [(4, r) for r in range(1280, 2048, 128)]
        bpf = [pf(m, 1, r * 2048, 128) for m, r in allpf[x::4]]
        L[x] += coop(bq(1, x)[8:]) + bpf[:cfg.get("nbpf", 12)] + [(15, 0)] * cfg.get("small_quit", 4)
        pools["C"] = [coop(bq(4, x)[8:] + bq(7, x)[8:]), coop(bq(7, x)[:8])]
        take = cfg.get("small", ["A0", "A1"])
        for it in take:
            if int(it[1:]) < len(pools[it[0]]): L[x] += pools[it[0]][int(it[1:])]
        for k in pools:
            pools[k] = [b for i, b in enumerate(pools[k]) if f"{k}{i}" not in take]
        l = L[4 + x]
        xpf = [pf(4, 1, k * 32 * 2048, 32) for k in range(8)]
        nq = cfg.get("wpf_rows", 256)
        wpf = [pf(m, 1, (1024 - nq + h * nq // 2) * 8192 + x * 2048, nq // 2) for m in range(3) for h in range(2)]
        l += xpf + mq(0, x) + (wpf if cfg.get("wpf") else slowcols(x, (0, 1, 2))) + coop(bq(1, x)[:8]) + coop(bqr((2, 3), x)) + coop(bq(4, x)[:8]) + coop(bb(x))
        pools["c"] = []
        od = cfg.get("orders", {0: "CBOAAAAACAMTToo", 1: "CBOAAAAACAMTToo", 2: "CBAOAAAACATMToo", 3: "CBAAAAOACATTMoo"})[x]
        if "c" in od:
            pools["C"] = [coop(bq(7, x)[:8])]; pools["c"] = [coop(bq(7, x)[8:])]
        for ch in od:
            if pools[ch]: l += pools[ch].pop(0)
        assert not any(pools.values()), {k: len(v) for k, v in pools.items()}
    return L


def worker(a, cfg):
    big = Gemm(8, 8, 2, dict({"touch": True}, **cfg.get("big", {})))
    med = Gemm(4, 4, 4, cfg.get("med", {}))
    wid = Gemm(8, 4, 3, cfg.get("wid", {}))
    lists = schedule(cfg)
    MAXL = max(len(l) for l in lists)
    a(f"""v_and_b32 v0, 63, v0
v_lshlrev_b32 v{V_L16}, 4, v0
s_load_dwordx2 s[{P_AX}:{P_AX+1}], s[0:1], 0
s_load_dwordx2 s[{P_WQ}:{P_WQ+1}], s[0:1], 16
s_load_dwordx4 s[{P_WK}:{P_WK+3}], s[0:1], 24
s_load_dwordx2 s[{P_WO}:{P_WO+1}], s[0:1], 40
s_load_dwordx2 s[{P_BX}:{P_BX+1}], s[0:1], 56
s_load_dwordx4 s[{P_BW}:{P_BW+3}], s[0:1], 64
s_getpc_b64 s[{S_TAB}:{S_TAB+1}]
W_pc:
s_add_u32 s{S_TAB}, s{S_TAB}, W_table-W_pc
s_addc_u32 s{S_TAB+1}, s{S_TAB+1}, 0
s_waitcnt lgkmcnt(0)""")
    for p in range(P_AX, P_BO + 2, 2): a(f"s_and_b32 s{p+1}, s{p+1}, 0xffff")
    srd(a, S_OUT, 80, 2048 * 4096)
    row_voff(a)
    a(f"""s_mov_b32 s{G_SX+3}, 0x20000
s_mov_b32 s{G_SW+3}, 0x20000
s_mov_b32 s{G_NXOFF}, {OOB:#x}
s_mov_b32 s{G_NWOFF}, {OOB:#x}
v_mov_b32 v5, {L_TICKET:#x}
v_mov_b32 v6, 0""")
    a(f"s_mov_b32 s{S_INIT}, 0")
    def init_check(vt):
        sk = a.uid("ic")
        a(f"s_cmp_eq_u32 s{S_INIT}, 1\ns_cbranch_scc1 {sk}")
        wait_all_arrived(a, vt, 37)
        a(f"s_mov_b32 s{S_INIT}, 1")
        a.label(sk)
    S_PE, S_PEB, S_PSIG, S_PC, S_TKQ, S_RET = 32, 31, 49, 50, 29, 3
    a(f"""s_mov_b32 s{S_PE}, 0
s_mov_b32 s{S_PSIG}, {NOSIG}
s_mov_b32 s{S_TKQ}, 0""")
    def ticket_ool(back):
        lb = a.uid("tk")
        a.defer(lambda: a(f"""{lb}:
s_mov_b32 s{S_TKQ}, 1
s_cmp_lg_u32 s{S_WAVE}, 0
s_cbranch_scc1 {back}
v_mov_b32 v7, 1
s_lshl_b32 s38, s{S_GRP}, 2
s_mov_b64 exec, 1
buffer_atomic_add v7, v6, {DBG}, s38 offen offset:{C_Q*4} sc0 sc1
s_mov_b64 exec, -1
s_branch {back}"""))
        return lb
    def h_ticket(cnt):
        back = a.uid("tb")
        return f"s_cmp_eq_u32 s{G_CNT}, {cnt}\ns_cbranch_scc1 {ticket_ool(back)}\n{back}:"
    def h_ticket_now():
        back = a.uid("tb")
        return f"s_cmp_eq_u32 s{S_TKQ}, 0\ns_cbranch_scc1 {ticket_ool(back)}\n{back}:"
    def h_pre_bar():
        sk = a.uid("pb")
        return f"s_cmp_eq_u32 s{S_PSIG}, {NOSIG}\ns_cbranch_scc1 {sk}\ns_waitcnt vmcnt(0)\n{sk}:"
    def h_post_bar():
        lb, back = a.uid("sg"), a.uid("sb")
        def ool():
            a(f"""{lb}:
s_lshl_b32 s38, s{S_PSIG}, 7
s_mov_b32 s{S_PSIG}, {NOSIG}
s_cmp_lg_u32 s{S_WAVE}, 0
s_cbranch_scc1 {back}""")
            init_check(248)
            a(f"""s_add_u32 s38, s38, {WS_CNT:#x}
v_mov_b32 v3, 1
s_mov_b64 exec, 1
buffer_atomic_add v3, v6, {WS}, s38 offen sc1
s_mov_b64 exec, -1
s_branch {back}""")
        a.defer(ool)
        return f"s_cmp_lg_u32 s{S_PSIG}, {NOSIG}\ns_cbranch_scc1 {lb}\n{back}:"
    hooks = {"ticket": h_ticket, "ticket_now": h_ticket_now, "pre_bar": h_pre_bar, "post_bar": h_post_bar, "epi_first": cfg.get("epi_first", 1)}
    big.hooks = med.hooks = wid.hooks = hooks
    def run_pending(ret):
        a(f"s_mov_b32 s{S_RET}, {ret}\ns_cmp_lg_u32 s{S_PE}, 0\ns_cbranch_scc1 W_epi\nW_ret{ret}:")
    def flush():
        a("s_waitcnt vmcnt(0)\ns_barrier"); a(h_post_bar())

    a(f"""s_sub_u32 s37, s{S_J}, 24
s_cmp_lt_u32 s{S_GRP}, 4
s_cselect_b32 s36, s37, s{S_J}
s_cselect_b32 s{S_J}, 8, 32
s_branch W_have""")
    a.label("W_next")
    if cfg.get("wstamps"):
        sk = a.uid("ws")
        a(f"""s_cmp_lg_u32 s{S_WAVE}, 1
s_cbranch_scc1 {sk}
s_memrealtime s[44:45]
s_memtime s[98:99]
s_waitcnt lgkmcnt(0)
s_sub_u32 s98, s98, s76
v_mov_b32 v60, s40
v_mov_b32 v61, s42
v_mov_b32 v62, s44
v_mov_b32 v63, s98
s_lshl_b32 s36, s46, 4
s_add_u32 s36, s36, {0x8000000:#x}
s_mov_b64 exec, 1
buffer_store_dwordx4 v[60:63], v6, {WS}, s36 offen
s_mov_b64 exec, -1
{sk}:""")
    a(f"""s_lshr_b32 s{S_PSIG}, s{S_D1}, 20
s_mov_b32 s{S_TKQ}, 0
s_cmp_eq_u32 s{S_D0+3}, 0
s_cbranch_scc1 W_nu
s_waitcnt vmcnt(0)
W_nu:
s_cmp_lg_u32 s{S_WAVE}, 0
s_cbranch_scc1 W_tk
s_mov_b64 exec, 1
ds_write_b32 v5, v7
s_mov_b64 exec, -1
W_tk:
s_waitcnt lgkmcnt(0)
s_barrier
s_cmp_eq_u32 s{S_D0+3}, 0
s_cbranch_scc1 W_nu2""")
    a(h_post_bar())
    a(f"""W_nu2:
ds_read_b32 v1, v5
s_waitcnt lgkmcnt(0)
v_readfirstlane_b32 s36, v1
s_nop 3
s_add_u32 s36, s36, s{S_J}
W_have:
s_min_u32 s36, s36, {MAXL}
s_mul_i32 s37, s{S_GRP}, {MAXL+1}
s_add_u32 s36, s36, s37
s_lshl_b32 s36, s36, 4
s_load_dwordx4 s[{S_D0}:{S_D0+3}], s[{S_TAB}:{S_TAB+1}], s36
s_waitcnt lgkmcnt(0)
s_and_b32 s{S_TYP}, s{S_D0}, 15
s_bfe_u32 s{S_P1}, s{S_D0}, 0x80004
s_bfe_u32 s{S_P2}, s{S_D0}, 0x8000c""")
    if cfg.get("wstamps"):
        a(f"s_memrealtime s[40:41]\ns_lshr_b32 s46, s36, 4")
    a(f"""s_cmp_lt_u32 s{S_TYP}, {T_ATT}
s_cbranch_scc1 W_go""")
    a(f"""s_cmp_ge_u32 s{S_TYP}, {T_PF}
s_cbranch_scc1 W_slow
s_cmp_lg_u32 s{S_WAVE}, 0
s_cbranch_scc1 W_q2""")
    init_check(40)
    a(f"""s_and_b32 s39, s{S_D1}, 0xff
s_lshl_b32 s39, s39, 7
s_add_u32 s39, s39, {WS_CNT:#x}
buffer_load_dword v1, v6, {WS}, s39 offen sc1
s_waitcnt vmcnt(0)
s_mov_b64 exec, 1
ds_write_b32 v5, v1 offset:4
s_mov_b64 exec, -1
s_waitcnt lgkmcnt(0)
W_q2:
s_barrier
ds_read_b32 v1, v5 offset:4
s_bfe_u32 s38, s{S_D1}, 0xc0008
s_waitcnt lgkmcnt(0)
v_readfirstlane_b32 s36, v1
s_nop 3
s_cmp_ge_u32 s36, s38
s_cbranch_scc1 W_go
W_slow:""")
    run_pending(1)
    flush()
    a(f"""s_cmp_eq_u32 s{S_TYP}, 15
s_cbranch_scc1 L_done
s_cmp_eq_u32 s{S_TYP}, {T_PF}
s_cbranch_scc1 W_pf
s_cmp_eq_u32 s{S_TYP}, {T_TAIL}
s_cbranch_scc1 W_tail
s_cmp_lg_u32 s{S_WAVE}, 0
s_cbranch_scc1 W_go2""")
    init_check(200)
    a(f"""s_bfe_u32 s38, s{S_D1}, 0xc0008
s_and_b32 s39, s{S_D1}, 0xff
s_lshl_b32 s39, s39, 7
s_add_u32 s39, s39, {WS_CNT:#x}
W_dep:""")
    budget_head(a)
    a(f"""buffer_load_dword v1, v6, {WS}, s39 offen sc1
s_waitcnt vmcnt(0)
v_readfirstlane_b32 s36, v1
s_nop 3
s_cmp_ge_u32 s36, s38
s_cbranch_scc1 W_go2
s_sleep {cfg.get("dep_sleep", 16)}
s_branch W_dep
W_go2:
s_barrier
W_go:""")
    if cfg.get("wstamps"):
        a(f"s_memrealtime s[42:43]\ns_memtime s[76:77]\ns_waitcnt lgkmcnt(0)")
    a(f"""s_cmp_eq_u32 s{S_TYP}, {T_ATT}
s_cbranch_scc1 W_att
s_cmp_ge_u32 s{S_TYP}, {T_OB}
s_cbranch_scc1 W_out
s_mov_b32 s{G_NST}, 16
s_mov_b32 s{G_PX}, 2048
s_mov_b32 s{G_XSTEP}, 128
s_mov_b32 s{G_SX+2}, {2048*2048:#x}
s_cmp_eq_u32 s{S_TYP}, {T_BB}
s_cbranch_scc1 W_bb""")
    def sel_w():
        a(f"""s_mov_b32 s{G_SX}, s{P_AX}
s_mov_b32 s{G_SX+1}, s{P_AX+1}
s_cmp_eq_u32 s{S_MAT}, 1
s_cselect_b32 s{G_SW}, s{P_WK}, s{P_WQ}
s_cselect_b32 s{G_SW+1}, s{P_WK+1}, s{P_WQ+1}
s_cselect_b32 s36, {WS_KX:#x}, {WS_QX:#x}
s_cmp_eq_u32 s{S_MAT}, 2
s_cselect_b32 s{G_SW}, s{P_WV}, s{G_SW}
s_cselect_b32 s{G_SW+1}, s{P_WV+1}, s{G_SW+1}
s_cselect_b32 s36, {WS_VX:#x}, s36
s_add_u32 s{S_EB}, s{S_EB}, s36
s_mov_b32 s{G_SW+2}, {1024*8192:#x}
s_mov_b32 s{G_PW}, 8192""")
    a(f"""s_cmp_eq_u32 s{S_TYP}, {T_BQKV}
s_cbranch_scc1 W_abig""")
    a(f"""s_lshr_b32 s{S_MAT}, s{S_P2}, 5
s_and_b32 s38, s{S_P2}, 31
s_lshl_b32 s{G_XOFF}, s{S_P1}, 19
s_lshl_b32 s{G_WOFF}, s38, 8
s_lshl_b32 s36, s{S_P1}, 1
s_lshr_b32 s37, s{S_WAVE}, 1
s_add_u32 s36, s36, s37
s_lshl_b32 s{S_EB}, s36, 20
s_lshl_b32 s36, s38, 13
s_add_u32 s{S_EB}, s{S_EB}, s36
s_and_b32 s37, s{S_WAVE}, 1
s_cmp_eq_u32 s{S_MAT}, 2
s_cselect_b32 s36, 12, 11
s_lshl_b32 s37, s37, s36
s_add_u32 s{S_EB}, s{S_EB}, s37""")
    sel_w()
    def done(pe):
        a(f"""s_mov_b32 s{S_PE}, {pe}
s_mov_b32 s{S_PEB}, s{S_EB}
s_mov_b32 s{S_PC}, s{S_C}
s_mov_b32 s{S_PC+1}, s{S_C}
s_waitcnt vmcnt(0)""")
        if cfg.get("epi_first", 1): a(f"s_mov_b32 s{S_RET}, 6\ns_branch W_epi")
        else: a("s_branch W_next")
    wid.setup(a, S_WAVE, False)
    if wid.touch: wid.touch_setup(a, S_WAVE, S_D2)
    wid.prologue(a, False)
    run_pending(2)
    wid.prologue_wait(a, False)
    a(f"s_cmp_eq_u32 s{S_MAT}, 2\ns_cbranch_scc1 W_mv")
    wid.tile(a, "W", False); done(1)
    a.label("W_mv")
    wid.tile(a, "X", False); done(2)
    a.label("W_abig")
    a(f"""s_lshr_b32 s{S_MAT}, s{S_P2}, 4
s_and_b32 s38, s{S_P2}, 15
s_lshl_b32 s{G_XOFF}, s{S_P1}, 19
s_lshl_b32 s{G_WOFF}, s38, 9
s_lshl_b32 s36, s{S_P1}, 1
s_lshr_b32 s37, s{S_WAVE}, 1
s_add_u32 s36, s36, s37
s_lshl_b32 s{S_EB}, s36, 20
s_lshl_b32 s36, s38, 1
s_and_b32 s37, s{S_WAVE}, 1
s_add_u32 s36, s36, s37
s_lshl_b32 s36, s36, 13
s_add_u32 s{S_EB}, s{S_EB}, s36""")
    sel_w()
    a("s_branch W_biggo")
    a.label("W_bb")
    cb = f32bits(32 ** -0.5 * LOG2E)
    a(f"""s_lshr_b32 s{S_MAT}, s{S_P2}, 2
s_lshl_b32 s{G_XOFF}, s{S_P1}, 19
s_lshl_b32 s{G_WOFF}, s{S_P2}, 9
s_and_b32 s36, s{S_P2}, 3
s_lshl_b32 s36, s36, 1
s_and_b32 s37, s{S_WAVE}, 1
s_add_u32 s36, s36, s37
s_lshl_b32 s{S_EB}, s36, 19
s_lshl_b32 s36, s{S_P1}, 1
s_lshr_b32 s37, s{S_WAVE}, 1
s_add_u32 s36, s36, s37
s_lshl_b32 s36, s36, 13
s_add_u32 s{S_EB}, s{S_EB}, s36
s_lshl_b32 s36, s{S_MAT}, 22
s_add_u32 s{S_EB}, s{S_EB}, s36
s_add_u32 s{S_EB}, s{S_EB}, {WS_QB:#x}
s_cmp_eq_u32 s{S_MAT}, 0
s_cselect_b32 s{S_C}, {cb:#x}, 1.0
s_mov_b32 s{S_C+1}, s{S_C}
s_mov_b32 s{G_SX}, s{P_BX}
s_mov_b32 s{G_SX+1}, s{P_BX+1}
s_mov_b32 s{G_SW}, s{P_BW}
s_mov_b32 s{G_SW+1}, s{P_BW+1}
s_mov_b32 s{G_SW+2}, {1024*6144:#x}
s_mov_b32 s{G_PW}, 6144""")
    a.label("W_biggo")
    big.setup(a, S_WAVE, False)
    if big.touch: big.touch_setup(a, S_WAVE, S_D2)
    big.prologue(a, False)
    run_pending(3)
    big.prologue_wait(a, False)
    a(f"s_cmp_eq_u32 s{S_MAT}, 2\ns_cbranch_scc1 W_bv")
    big.tile(a, "W", False)
    a(f"s_add_u32 s36, s{S_TYP}, 2"); done("s36")
    a.label("W_bv")
    big.tile(a, "X", False)
    a(f"s_add_u32 s36, s{S_TYP}, 4"); done("s36")
    a.label("W_out")
    a(f"""s_mov_b32 s{G_SX}, s{S_WS}
s_mov_b32 s{G_SX+1}, s{S_WS+1}
s_mov_b32 s{G_SX+2}, s{S_WS+2}
s_mov_b32 s{G_PX}, 64
s_mov_b32 s{G_PW}, 2048
s_mov_b32 s{G_XSTEP}, 0x4000
s_lshl_b32 s{G_WOFF}, s{S_P2}, 8
s_lshl_b32 s{S_EB}, s{S_P1}, 19
s_lshr_b32 s37, s{S_WAVE}, 1
s_cmp_eq_u32 s{S_TYP}, {T_OAM}
s_cselect_b32 s36, 18, 19
s_lshl_b32 s37, s37, s36
s_add_u32 s{S_EB}, s{S_EB}, s37
s_lshl_b32 s36, s{S_P2}, 1
s_and_b32 s37, s{S_WAVE}, 1
s_add_u32 s36, s36, s37
s_lshl_b32 s36, s36, 7
s_add_u32 s{S_EB}, s{S_EB}, s36
s_cmp_lg_u32 s{S_TYP}, {T_OB}
s_cselect_b32 s{G_SW}, s{P_WO}, s{P_BO}
s_cselect_b32 s{G_SW+1}, s{P_WO+1}, s{P_BO+1}
s_mov_b32 s36, {1024*2048:#x}
s_cselect_b32 s{G_SW+2}, {4096*2048:#x}, s36
s_cselect_b32 s{G_NST}, 64, 16
s_cselect_b32 s36, 20, 18
s_mov_b32 s37, {WS_OB - 4096:#x}
s_cselect_b32 s37, {WS_OX - 4096:#x}, s37
s_cselect_b32 s38, 0, 2048
s_lshl_b32 s{G_XOFF}, s{S_P1}, s36
s_lshl_b32 s{G_BLK}, 1, s36
s_add_u32 s{G_XOFF}, s{G_XOFF}, s37
s_add_u32 s{S_EB}, s{S_EB}, s38
s_cmp_eq_u32 s{S_TYP}, {T_OAM}
s_cbranch_scc1 W_oam""")
    wid.setup(a, S_WAVE, True, half=True)
    wid.prologue(a, True, "sc1")
    run_pending(4)
    wid.prologue_wait(a, True)
    wid.tile(a, "W", True, "sc1"); done(8)
    a.label("W_oam")
    med.setup(a, S_WAVE, True, half=True)
    med.prologue(a, True, "sc1")
    med.prologue_wait(a, True)
    med.tile(a, "W", True, "sc1"); done(7)
    a.label("W_epi")
    for pe in range(1, 7): a(f"s_cmp_eq_u32 s{S_PE}, {pe}\ns_cbranch_scc1 W_epi{pe}")
    row_voff(a)
    a(f"s_cmp_eq_u32 s{S_PE}, 8\ns_cbranch_scc1 W_epi8")
    med.epilogue(a, med.ent_row(), S_OUT, S_PEB, V_ROW, swap=True)
    a("s_branch W_epiend")
    a.label("W_epi8")
    wid.epilogue(a, wid.ent_row(), S_OUT, S_PEB, V_ROW, swap=True)
    a.label("W_epiend")
    a(f"""s_mov_b32 s{S_PE}, 0
s_cmp_eq_u32 s{S_RET}, 6
s_cbranch_scc1 W_next
s_cmp_eq_u32 s{S_RET}, 1
s_cbranch_scc1 W_ret1
s_cmp_eq_u32 s{S_RET}, 2
s_cbranch_scc1 W_ret2
s_cmp_eq_u32 s{S_RET}, 4
s_cbranch_scc1 W_ret4
s_cmp_eq_u32 s{S_RET}, 5
s_cbranch_scc1 W_ret5
s_branch W_ret3""")
    for pe, g_, ent, vo, sc_ in ((1, wid, wid.ent_a_qk(), None, None), (2, wid, wid.ent_a_v(), None, None), (3, big, big.ent_a_qk(), None, None),
                                 (4, big, big.ent_b_qk32(), True, S_PC), (5, big, big.ent_a_v(), None, None), (6, big, big.ent_b_v32(), False, None)):
        a.label(f"W_epi{pe}")
        if vo is not None: b32_voff(a, 38, vo)
        g_.epilogue(a, ent, S_WS, S_PEB, V_L16 if vo is None else 38, "sc1", scale=sc_)
        a("s_branch W_epiend")
    a.label("W_pf")
    a(f"""s_cmp_eq_u32 s{S_P1}, 1
s_cselect_b32 s{G_SW}, s{P_WK}, s{P_WQ}
s_cselect_b32 s{G_SW+1}, s{P_WK+1}, s{P_WQ+1}
s_cmp_eq_u32 s{S_P1}, 2
s_cselect_b32 s{G_SW}, s{P_WV}, s{G_SW}
s_cselect_b32 s{G_SW+1}, s{P_WV+1}, s{G_SW+1}
s_cmp_eq_u32 s{S_P1}, 3
s_cselect_b32 s{G_SW}, s{P_WO}, s{G_SW}
s_cselect_b32 s{G_SW+1}, s{P_WO+1}, s{G_SW+1}
s_cselect_b32 s38, 11, 13
s_mov_b32 s{G_SW+2}, {1024*8192:#x}
s_cmp_eq_u32 s{S_P1}, 4
s_cselect_b32 s{G_SW}, s{P_AX}, s{G_SW}
s_cselect_b32 s{G_SW+1}, s{P_AX+1}, s{G_SW+1}
s_cselect_b32 s{G_SW+2}, {2048*2048:#x}, s{G_SW+2}
s_cmp_eq_u32 s{S_P1}, 5
s_cselect_b32 s{G_SW}, s{P_BX}, s{G_SW}
s_cselect_b32 s{G_SW+1}, s{P_BX+1}, s{G_SW+1}
s_cselect_b32 s{G_SW+2}, {2048*2048:#x}, s{G_SW+2}
s_cmp_eq_u32 s{S_P1}, 6
s_cselect_b32 s{G_SW}, s{P_BW}, s{G_SW}
s_cselect_b32 s{G_SW+1}, s{P_BW+1}, s{G_SW+1}
s_cselect_b32 s{G_SW+2}, {1024*6144:#x}, s{G_SW+2}
s_cmp_eq_u32 s{S_P1}, 7
s_cselect_b32 s{G_SW}, s{P_BO}, s{G_SW}
s_cselect_b32 s{G_SW+1}, s{P_BO+1}, s{G_SW+1}
s_cselect_b32 s{G_SW+2}, {1024*2048:#x}, s{G_SW+2}
s_cmp_ge_u32 s{S_P1}, 3
s_cselect_b32 s38, 11, s38
s_cmp_eq_u32 s{S_P2}, 1
s_cbranch_scc1 W_pf1
v_lshrrev_b32 v1, 3, v0
s_lshl_b32 s36, s{S_WAVE}, 3
v_add_u32 v1, s36, v1
v_lshlrev_b32 v1, s38, v1
v_and_b32 v2, 7, v0
v_lshl_add_u32 v1, v2, 4, v1
s_lshl_b32 s37, 32, s38
s_mov_b32 s39, 32
s_branch W_pfgo
W_pf1:
s_lshr_b32 s36, s{S_WAVE}, 1
s_lshl_b32 s36, s36, s38
s_and_b32 s37, s{S_WAVE}, 1
s_lshl_b32 s37, s37, 10
s_add_u32 s36, s36, s37
v_add_u32 v1, s36, v{V_L16}
s_lshl_b32 s37, 2, s38
s_mov_b32 s39, s{S_D2}
W_pfgo:
s_mov_b32 s36, s{S_D1}
W_pfl:
buffer_load_dwordx4 v[64:67], v1, s[{G_SW}:{G_SW+3}], s36 offen
s_add_u32 s36, s36, s37
s_waitcnt vmcnt(48)
s_sub_u32 s39, s39, 1
s_cmp_lg_u32 s39, 0
s_cbranch_scc1 W_pfl
s_mov_b32 s{S_D1}, {NOSIG << 20:#x}""")
    if cfg.get("wstamps"):
        a("s_waitcnt lgkmcnt(0)\ns_mov_b32 s42, s40")
    a(h_ticket_now())
    a("s_waitcnt vmcnt(0)\ns_branch W_next")
    a.label("W_tail")
    if cfg.get("wstamps"):
        a("s_waitcnt lgkmcnt(0)\ns_mov_b32 s42, s40")
    init_check(200)
    a(f"""s_mov_b32 s{G_SW}, s{P_WO}
s_mov_b32 s{G_SW+1}, s{P_WO+1}
s_mov_b32 s{G_SW+2}, {4096*2048:#x}""")
    tail_task(a, S_WS, G_SW, S_OUT, S_WAVE, S_P1, S_P2, WS_CNT + (C_OXS - 40) * 128, cfg)
    a(h_ticket_now())
    a("s_waitcnt vmcnt(0)\ns_branch W_next")
    a.label("W_att")
    run_pending(5)
    battn_task(a, S_WS, S_WAVE, S_P1, S_P2, cfg, "sc1", "sc1", hooks)
    a(f"s_mov_b32 s{G_NXOFF}, {OOB:#x}\ns_mov_b32 s{G_NWOFF}, {OOB:#x}")
    a("s_waitcnt vmcnt(4)\ns_branch W_next")
    a.flush_deferred()
    def urgent(d):
        t, p1 = d[0] & 15, (d[0] >> 4) & 255
        return t in (T_MQKV, T_BB) or (t == T_BQKV and p1 in cfg.get("urgent_blocks", (1, 2)))
    tab = []
    for l in lists:
        l = l + [(15, 0)] * (MAXL + 1 - len(l))
        tab += [f".long {d[0]:#x}, {d[1]:#x}, {d[2] if len(d) > 2 else 0:#x}, {int(urgent(d))}" for d in l]
    return tab


def chain_hooks(a):
    def wait_x(vt):
        sk, lp = a.uid("wx"), a.uid("wx")
        a(f"""s_cmp_ge_u32 s{S_T0}, {NSEG}
s_cbranch_scc1 {sk}
s_and_b32 s{S_T1}, s{S_T0}, 7
s_cmp_lg_u32 s{S_T1}, 0
s_cbranch_scc1 {sk}
s_lshr_b32 s{S_T1}, s{S_T0}, 3
s_add_u32 s{S_T1}, s{S_T1}, 1
s_cmp_lt_u32 s{S_T0}, 8
s_cselect_b32 s{S_T2}, 6, 3
s_lshl_b32 s{S_T1}, s{S_T1}, 4
s_lshr_b32 s{S_T3}, s{S_HEAD}, 1
s_add_u32 s{S_T1}, s{S_T1}, s{S_T3}
s_lshl_b32 s{S_T1}, s{S_T1}, 7
s_add_u32 s{S_T1}, s{S_T1}, {WS_CNT + C_QKV*128:#x}
{lp}:""")
        budget_head(a)
        a(f"""v_mov_b32 v{vt}, 0
buffer_load_dword v{vt}, v{vt}, {WS}, s{S_T1} offen sc1
s_waitcnt vmcnt(0)
v_readfirstlane_b32 s{S_T3}, v{vt}
s_nop 3
s_cmp_ge_u32 s{S_T3}, s{S_T2}
s_cbranch_scc1 {sk}
s_sleep 4
s_branch {lp}
{sk}:""")
    def signal(vt, seg_sgpr, n=1):
        a(f"""s_lshr_b32 s{S_T1}, s{seg_sgpr}, 2
s_add_u32 s{S_T1}, s{S_T1}, {C_OXB}
s_add_u32 s{S_T2}, s{seg_sgpr}, {C_OXS - 40}
s_cmp_lt_u32 s{seg_sgpr}, 40
s_cselect_b32 s{S_T1}, s{S_T1}, s{S_T2}
s_lshl_b32 s{S_T1}, s{S_T1}, 7
s_add_u32 s{S_T1}, s{S_T1}, {WS_CNT:#x}
v_mov_b32 v{vt}, {n}
v_mov_b32 v{vt+1}, 0
s_mov_b64 exec, 1
buffer_atomic_add v{vt}, v{vt+1}, {WS}, s{S_T1} offen sc1
s_mov_b64 exec, -1""")
    def post_om(vt):
        sk = a.uid("po")
        a(f"""s_cmp_lg_u32 s{S_WAVE}, 0
s_cbranch_scc1 {sk}
s_cmp_lg_u32 s{S_STEP}, {NSEG-1}
s_cbranch_scc1 {sk}
s_mov_b32 s{S_T0}, {NSEG-3}""")
        signal(vt, S_T0, 2)
        a.label(sk)
        sk = a.uid("po")
        a(f"""s_lshl_b32 s{S_T0}, s{S_HEAD}, 2
s_add_u32 s{S_T0}, s{S_T0}, s{S_WAVE}
s_cmp_lg_u32 s{S_T0}, 3
s_cbranch_scc1 {sk}
s_cmp_lt_u32 s{S_STEP}, 3
s_cbranch_scc1 {sk}
s_sub_u32 s{S_T0}, s{S_STEP}, 3""")
        signal(vt, S_T0, 64)
        a.label(sk)
    return {"wait_x": wait_x, "post_om": post_om, "exit": "S_exit"}, {}, signal


def role_ticket(a, cfg):
    a(f"""v_mov_b32 v2, 0
s_cmp_lg_u32 s{S_WAVE}, 0
s_cbranch_scc1 R_join
s_getreg_b32 s36, hwreg(HW_REG_XCC_ID)
s_and_b32 s36, s36, {cfg.get("xcc_mask", 7)}
s_and_b32 s37, s36, 3
s_lshl_b32 s37, s37, 3
s_lshl_b32 s38, 1, s37
s_and_b32 s39, s36, 4
v_mov_b32 v3, s38
s_mov_b64 exec, 1
buffer_atomic_add v3, v2, {DBG}, s39 offen offset:{C_TK*4} sc0 sc1
s_waitcnt vmcnt(0)
v_readfirstlane_b32 s38, v3
s_nop 3
s_lshr_b32 s38, s38, s37
s_and_b32 s38, s38, 0xff
s_cmp_lt_u32 s38, 32
s_cbranch_scc1 R_have
v_mov_b32 v3, 1
buffer_atomic_add v3, v2, {DBG}, 0 offen offset:{C_OVF*4} sc0 sc1
s_waitcnt vmcnt(0)
v_readfirstlane_b32 s40, v3
R_wait:""")
    budget_head(a)
    a(f"""s_sleep 8
buffer_load_dword v4, v2, {DBG}, 0 offen offset:{C_TK*4} sc1
buffer_load_dword v5, v2, {DBG}, 0 offen offset:{C_TK*4+4} sc1
s_waitcnt vmcnt(0)
v_readfirstlane_b32 s42, v4
v_readfirstlane_b32 s43, v5
s_nop 3
s_mov_b32 s41, 0""")
    for x in range(8):
        a(f"s_bfe_u32 s37, s{42 + x // 4}, {(8 << 16) | (8 * (x % 4)):#x}\ns_add_u32 s41, s41, s37")
    a("""s_cmp_lt_u32 s41, 256
s_cbranch_scc1 R_wait""")
    for x in range(8):
        a(f"""s_bfe_u32 s37, s{42 + x // 4}, {(8 << 16) | (8 * (x % 4)):#x}
s_min_u32 s37, s37, 32
s_mov_b32 s36, {x}
s_add_u32 s38, s37, s40
s_cmp_lt_u32 s38, 32
s_cbranch_scc1 R_have
s_sub_u32 s40, s38, 32""")
    a(f"""s_mov_b32 s38, 0x1000
R_have:
s_lshl_b32 s38, s38, 3
s_add_u32 s38, s38, s36
v_mov_b32 v3, s38
ds_write_b32 v2, v3
s_mov_b64 exec, -1
s_waitcnt lgkmcnt(0)
R_join:
s_barrier
ds_read_b32 v3, v2
s_waitcnt lgkmcnt(0)
v_readfirstlane_b32 s2, v3
s_nop 3
s_cmp_ge_u32 s2, 256
s_cbranch_scc1 L_fail
s_barrier""")


def gen(cfg):
    cfg.setdefault("tail_seg0", 48)
    cfg.setdefault("tail_stride", 2)
    a = Asm()
    a(f"""s_cmp_ge_u32 s2, 256
s_cbranch_scc1 L_done
v_lshrrev_b32 v1, 6, v0
v_readfirstlane_b32 s{S_WAVE}, v1""")
    srd(a, S_WS, 96, WS_SIZE)
    srd(a, S_DBG, 88, 256)
    a(f"s_mov_b32 s{S_BUDGET}, {POLL_BUDGET}")
    if not cfg.get("static_roles"): role_ticket(a, cfg)
    a(f"""s_and_b32 s{S_TEAM}, s2, 7
s_mov_b32 s{S_GRP}, s{S_TEAM}
s_lshr_b32 s{S_J}, s2, 3
s_mov_b32 s{S_MODE}, 0
s_cmp_ge_u32 s{S_TEAM}, {NT}
s_cbranch_scc1 L_W
s_cmp_ge_u32 s{S_J}, 24
s_cbranch_scc1 L_W
s_cmp_lt_u32 s{S_J}, 8
s_cbranch_scc1 L_S
s_sub_u32 s{S_J}, s{S_J}, 8""")
    hooks, vhooks, signal = chain_hooks(a)
    v_cu(a, cfg, vhooks)
    a.label("L_S")
    s_cu(a, cfg, hooks)
    a.label("S_exit")
    a(f"""s_waitcnt vmcnt(2)
s_barrier
s_cmp_lg_u32 s{S_WAVE}, 1
s_cbranch_scc1 S_exit2
s_mov_b32 s{S_T0}, {NSEG-2}""")
    signal(60, S_T0, 2)
    a(f"""s_waitcnt vmcnt(1)
s_barrier
s_endpgm
S_exit2:
s_waitcnt vmcnt(0)
s_barrier
s_cmp_lg_u32 s{S_WAVE}, 0
s_cbranch_scc1 L_done
s_mov_b32 s{S_T0}, {NSEG-1}""")
    signal(60, S_T0, 2)
    a("s_endpgm")
    a.label("L_fail")
    a(f"""v_mov_b32 v1, 0xdead
v_mov_b32 v2, 0
s_mov_b64 exec, 1
buffer_store_dword v1, v2, {DBG}, 0 offen offset:8
s_endpgm""")
    a.label("L_W")
    tab = worker(a, cfg)
    a.label("L_done")
    a("s_endpgm")
    body = a.finalize()
    ref = open("cdna_kernels/" + PFX + ".s.ref").read().split("\n")
    hdr = [l for l in ref if l.startswith(";") and "@launch" not in l and "Override" not in l and "grid=ceil" not in l]
    out = "\n".join(hdr) + "\n"
    out += f"; @launch grid=(256,1,1) block=(256,1,1) lds={LDS_BYTES}\n"
    out += f""".amdgcn_target "amdgcn-amd-amdhsa--gfx950"
.text
.globl {NAME}
.p2align 8
.type {NAME},@function
{NAME}:
""" + body
    out += ".p2align 4\n.type W_table,@object\nW_table:\n" + "\n".join(tab) + f"\n.size W_table, {16*len(tab)}\n"
    out += f"""
.section .rodata,"a"
.p2align 6
.amdhsa_kernel {NAME}
  .amdhsa_next_free_vgpr 512
  .amdhsa_next_free_sgpr 102
  .amdhsa_accum_offset 256
  .amdhsa_group_segment_fixed_size 0
  .amdhsa_kernarg_size 104
  .amdhsa_user_sgpr_count 2
  .amdhsa_user_sgpr_kernarg_segment_ptr 1
  .amdhsa_system_sgpr_workgroup_id_x 1
.end_amdhsa_kernel
"""
    return out


def report(cfg, down):
    import numpy as np
    if cfg.get("stamps") and not cfg.get("rt"):
        T = down(WS_STAMP, np.uint32, (256, 4, 64, 64))[:, :, :, :8].astype(np.int64)
        ss = list(cfg["stamp_set"])
        Sw = [g + 8*j for g in range(4) for j in range(8)]
        Vw = [g + 8*j for g in range(4) for j in range(8, 24)]
        for nm_, W_ in (("S", Sw), ("V", Vw)):
            t = T[W_][:, :, 12:60]
            d = (t[..., ss[1:]] - t[..., ss[:-1]]) & 0xffffffff
            per = (T[W_][:, :, 13:61, ss[0]] - t[..., ss[0]]) & 0xffffffff
            print("  ", nm_, cfg.get("at"), "deltas med", np.median(d.reshape(-1, d.shape[-1]), 0).tolist(), "min", d.reshape(-1, d.shape[-1]).min(0).tolist(), "period median", np.median(per))
        return
    if cfg.get("hops"):
        T = down(WS_STAMP, np.uint32, (32, 8, 4, 64, 64))[..., :8].astype(np.int64) * 10
        S = T[:8, :4]; V = T[8:24, :4]
        st = np.arange(12, 60)
        q = lambda x: "med %4d p90 %4d max-mean %4d" % (np.median(x), np.percentile(x, 90), x.reshape(-1, x.shape[-1]).max(0).mean())
        prod = V[0::4, :, :, :, 5].max(2)[:, :, st - 1]
        print("   MEMT hop (frag0)  ", q(S[:, :, :, :, 1][..., st] - prod.transpose(1, 0, 2)[None]))
        allp = V[..., 5].max(2).max(0)[:, st - 1]
        print("   last MEMT pub -> S OM pub", q(S[..., 4][..., st] - allp[None, :, None]))
        print("   last MEMT pub -> VM pub", q(V[..., 2][..., st] - allp[None, :, None]))
        prod = S[0::2, :, :2, :, 4].max(2)[:, :, st]
        print("   OM hop (frag0)    ", q(V[..., 3][..., st] - prod.transpose(1, 0, 2)[None]))
        allo = S[..., 4].max(2).max(0)[:, st]
        print("   last OM pub -> PART pub", q(V[..., 4][..., st] - allo[None, :, None]))
        lastp = V[..., 4].max(1)[..., st]
        print("   last PART pub -> MEMT pub", q(V[..., 5][..., st] - lastp[:, None]))
        print("   spread of PART pub across teams", q(V[..., 4].max(1)[..., st] - V[..., 4].min(1)[..., st]))
        print("   spread MEMT pub within team", q(V[..., 5].max(2).max(0)[:, st] - V[..., 5].min(2).min(0)[:, st]))
        print("   spread OM pub within team", q(allo - S[..., 4].min(2).min(0)[:, st]))
        print("   period", (S[0, 0, 0, 60, 4] - S[0, 0, 0, 12, 4]) / 48)
        return
    if cfg.get("wstamps"):
        lists = schedule(cfg); MAXL = max(len(l) for l in lists)
        st = down(0x8000000, np.uint32, (8, MAXL + 1, 4)).astype(np.int64)
        t0 = min(st[g, :8, 0].min() for g in range(8))
        names = ["mqkv", "bqkv", "bb", "att", "ob", "oa", "oam", "pf", "tail"] + ["x"] * 8
        for g in cfg.get('show', (0, 4, 7)):
            l = lists[g]; i = 0
            while i < len(l):
                j = i
                key = lambda d: (d[0] & 15, (d[0] >> 4) & 255 if (d[0] & 15) not in (T_BB, T_BQKV, T_PF, T_TAIL, T_ATT) else ((d[0] >> 12) & 255 if (d[0] & 15) == T_ATT else 0))
                while j < len(l) and key(l[j]) == key(l[i]): j += 1
                x = (st[g, i:j, :3] - t0) / 100.0
                print(f"  g{g} {names[l[i][0]&15]:5s} p1={(l[i][0]>>4)&255:2d} n={j-i:2d} deq {x[:,0].min():6.1f}-{x[:,0].max():6.1f} start {x[:,1].min():6.1f}-{x[:,1].max():6.1f} end {x[:,2].min():6.1f}-{x[:,2].max():6.1f} dur {(x[:,2]-x[:,1]).mean():5.1f} kcyc {st[g, i:j, 3].mean()/1000:6.1f} GHz {st[g, i:j, 3].mean()/1000/(x[:,2]-x[:,1]).mean():4.2f}")
                i = j
        if cfg.get("stamps"):
            T = down(WS_STAMP, np.uint32, (256, 4, 64, 64))[:, :, :, :8].astype(np.int64)
            s4 = (T[0, 0, :, 4] - t0) / 100.0
            print("  chain OM publish times:", [float(round(x, 1)) for x in s4[[0, 1, 2, 3, 4, 5, 8, 9, 16, 17, 24, 32, 40, 48, 56, 63]]])
            Sw = [g + 8*j for g in range(4) for j in range(8)]
            Vw = [g + 8*j for g in range(4) for j in range(8, 24)]
            if cfg.get("sst"):
                for nm_, W_ in (("S", Sw), ("V", Vw)):
                    for i in (6, 7):
                        x = (T[W_][:, :, 1, i] - t0) / 100.0
                        print("  startup", nm_, i, x.min(), np.median(x), x.max())
                        np.set_printoptions(linewidth=250, precision=0, suppress=True)
                        if cfg.get('sst') == 2: print(x[:, 0].reshape(4, -1))
            print("  S loop first entry", (T[Sw][:, :, 0, 0].min() - t0) / 100.0, (T[Sw][:, :, 0, 0].max() - t0) / 100.0)
            if len(cfg.get("stamp_set", range(8))) > 3:
                for st_ in (21, 35, 58):
                    base = T[Vw][:, :, st_-1, 5].min()
                    tS = (T[Sw][:, :, st_, :8] - base) * 10; tV = (T[Vw][:, :, st_, :8] - base) * 10; tVp = (T[Vw][:, :, st_-1, 5] - base) * 10
                    print("  step", st_, "V pub(prev) min/med/max", tVp.min(), np.median(tVp), tVp.max())
                    for i in cfg["stamp_set"]: print("   S stamp", i, tS[:, :, i].min(), np.median(tS[:, :, i]), tS[:, :, i].max(), "   V stamp", i, tV[:, :, i].min(), np.median(tV[:, :, i]), tV[:, :, i].max())


if __name__ == "__main__":
    cfg = eval(sys.argv[2]) if len(sys.argv) > 2 else {}
    open(sys.argv[1] if len(sys.argv) > 1 else "cdna_kernels/" + PFX + ".s", "w").write(gen(cfg))
```

```python
from asmgen import *
import chain
from tail import WS_OXF
from chain import (WS_KX, WS_QX, WS_VX, WS_OX, WS_MEMT, WS_VM, WS_OM, WS_PART, WS_STAMP, WS_SIZE, NSEG, NT, NCHAIN,
                   S_WS, S_DBG, S_W0, S_W1, S_W2, S_WAVE, S_TEAM, S_J, S_MODE, S_STEP, S_C,
                   S_T0, S_T1, S_T2, S_T3, S_T4, S_T5, S_OFF_A, S_OFF_B, S_OFF_C, S_OFF_D, S_OFF_E, S_OFF_F,
                   S_BUDGET, S_HEAD, S_TS, POLL_BUDGET, LOG2E, f32bits, srd, store_mode, check_regs, poll, budget_head,
                   stamp, stamp_flush, xlane_reduce, idx_reg, L_MEM, L_QK, L_QX, L_RED, L_W, LDS_BYTES, S_MK0, S_MKC, S_WOFF)

S_NEAR = 81
S_PCUR = 82
JIT = 4
WS = f"s[{S_WS}:{S_WS+3}]"
DBG = f"s[{S_DBG}:{S_DBG+3}]"
OOBV = 0x7f000000


WS_CNT = 0x4C00000
WS_KM = 0x4D00000


def arrive(a, vt):
    skip = a.uid("ar")
    a(f"""s_cmp_lg_u32 s{S_WAVE}, 0
s_cbranch_scc1 {skip}
v_mov_b32 v{vt+2}, 0
s_getreg_b32 s{S_T0}, hwreg(HW_REG_XCC_ID)
s_and_b32 s{S_T0}, s{S_T0}, 7
s_lshl_b32 s{S_T1}, s{S_TEAM}, 3
s_lshl_b32 s{S_T1}, 1, s{S_T1}
s_cmp_eq_u32 s{S_T0}, s{S_TEAM}
s_cselect_b32 s{S_T1}, 0, s{S_T1}
v_mov_b32 v{vt}, 1
v_mov_b32 v{vt+1}, s{S_T1}
s_mov_b64 exec, 1
buffer_atomic_add_x2 {vr(vt,2)}, v{vt+2}, {DBG}, 0 offen sc1
s_mov_b64 exec, -1
{skip}:""")


def wait_all_arrived(a, vt, t0=S_T0):
    lp, ok = a.uid("sb"), a.uid("sb")
    a(f"v_mov_b32 v{vt+4}, 0")
    a.label(lp)
    budget_head(a)
    a(f"""buffer_load_dwordx4 {vr(vt,4)}, v{vt+4}, {DBG}, 0 offen sc1
s_waitcnt vmcnt(0)
v_readfirstlane_b32 s{t0}, v{vt}
s_nop 3
s_cmp_ge_u32 s{t0}, {NCHAIN}
s_cbranch_scc1 {ok}
s_sleep 8
s_branch {lp}
{ok}:""")


def startup_barrier(a, vt):
    wait_all_arrived(a, vt)
    a(f"""v_readfirstlane_b32 s{S_T1}, v{vt+1}
v_readfirstlane_b32 s{S_NEAR}, v{vt+3}
s_nop 3
s_lshl_b32 s{S_T2}, s{S_TEAM}, 3
s_lshr_b32 s{S_T1}, s{S_T1}, s{S_T2}
s_and_b32 s{S_T1}, s{S_T1}, 0xff
s_cmp_eq_u32 s{S_T1}, 0
s_cselect_b32 s{S_MODE}, 1, 0""")


def sstamp(a, idx, cfg):
    if cfg.get("sst"):
        a(f"s_memrealtime s[{S_TS}:{S_TS+1}]\ns_waitcnt lgkmcnt(0)\ns_mov_b32 s{60+idx}, s{S_TS}")


def probe(a, name, cfg):
    if cfg.get("at") == name: stamp(a, 7, cfg)


def store_mode2(a, instr):
    l1, l2 = a.uid("sm"), a.uid("sm")
    a(f"""s_cbranch_scc0 {l1}
{instr}
{l2}:""")
    a.defer(lambda: a(f"""{l1}:
{instr} sc1
s_branch {l2}"""))


class SPoll:
    def __init__(self, a, loads, regs, vt, cap=1, sleep=0, pre_sleep=0, respin=0):
        self.respin = respin
        self.a, self.loads, self.regs, self.vt, self.cap, self.sleep, self.pre_sleep = a, loads, regs, vt, cap, sleep, pre_sleep
    def prefill(self):
        for b in self.regs:
            for r in range(4): self.a(f"v_mov_b32 v{b+r}, -1")
    def _body(self, f, lp):
        a = self.a
        ok = a.uid("so")
        a.label(lp)
        a.fill(1)
        for x in self.loads[f:]:
            a(x); a.fill(1)
        budget_head(a)
        a(f"s_waitcnt vmcnt({min(63, self.cap * (len(self.loads) - f))})")
        for k in range(self.sleep):
            self.pre(f)
            a.fill(5)
            a(f"s_cbranch_vccz {ok}")
        self.pre(f)
        a.fill(5)
        a(f"s_cbranch_vccnz {lp}")
        a.label(ok)
    def first(self, prefill=True, arm=0, arm_fill=8, arm_cap=3):
        a = self.a
        if prefill: self.prefill()
        if self.pre_sleep: a.fill(self.pre_sleep)
        if arm:
            lp = a.uid("sa")
            if arm < 64: a(f"s_mov_b64 exec, {(1 << arm) - 1:#x}")
            a.label(lp)
            a.fill(1)
            a(self.loads[0])
            budget_head(a)
            a.fill(arm_fill)
            a(f"s_waitcnt vmcnt({arm_cap})")
            self.pre(0)
            a.fill(5)
            a(f"s_cbranch_vccnz {lp}")
            if arm < 64:
                a("s_mov_b64 exec, -1")
            else:
                for x in self.loads[1:]: a(x)
                self.fresh = True
                return
        self._body(0, a.uid("sp"))
    def pre(self, f):
        b, t = self.regs[f], self.vt
        if isinstance(b, list):
            a = self.a
            a(f"v_max3_u32 v{t}, v{b[0]}, v{b[1]}, v{b[2]}")
            rest = b[3:]
            while rest:
                if len(rest) >= 2: a(f"v_max3_u32 v{t}, v{t}, v{rest[0]}, v{rest[1]}"); rest = rest[2:]
                else: a(f"v_max_u32 v{t}, v{t}, v{rest[0]}"); rest = rest[1:]
            a(f"v_cmp_eq_u32 vcc, {chain.SENTINEL[0]}, v{t}")
            return
        self.a(f"v_max3_u32 v{t}, v{b}, v{b+1}, v{b+2}\nv_max_u32 v{t}, v{t}, v{b+3}\nv_cmp_eq_u32 vcc, {chain.SENTINEL[0]}, v{t}")
    def pre3(self, f):
        b, t = self.regs[f], self.vt
        return [f"v_max3_u32 v{t}, v{b}, v{b+1}, v{b+2}", f"v_max_u32 v{t}, v{t}, v{b+3}", f"v_cmp_eq_u32 vcc, {chain.SENTINEL[0]}, v{t}"]
    def br(self, f):
        a = self.a
        lp, back = a.uid("sp"), a.uid("sb")
        a(f"s_cbranch_vccnz {lp}")
        a.label(back)
        def ool():
            a.label(lp)
            for k in range(self.respin):
                self.pre(f); a.fill(5); a(f"s_cbranch_vccz {back}")
            self._body(f, a.uid("sp")); a(f"s_branch {back}")
        a.defer(ool)


def ring_poll(a, loads, regs, vt, consume, join, space=4, on_first=None):
    R = [a.uid("rp") for _ in range(4)]
    C = [a.uid("rc") for _ in range(4)]
    def pre3(g):
        b = regs[g]
        return [f"v_max3_u32 v{vt}, v{b}, v{b+1}, v{b+2}", f"v_max_u32 v{vt}, v{vt}, v{b+3}", f"v_cmp_eq_u32 vcc, {chain.SENTINEL[0]}, v{vt}"]
    for f in range(3):
        a(loads[f]); a.fill(space)
    for f in range(4):
        a.label(R[f])
        a(loads[(f + 3) % 4])
        if f == 0: budget_head(a)
        a("s_waitcnt vmcnt(3)")
        for x in pre3(f): a(x)
        a.fill(5)
        a(f"s_cbranch_vccz {C[f]}" if f < 3 else f"s_cbranch_vccnz {R[0]}")
    def body(f):
        a.label(C[f])
        if on_first: on_first()
        for k in range(4):
            g = (f + k) % 4
            chk = []
            if k < 3:
                n = (g + 1) % 4
                rt, back = a.uid("rr"), a.uid("rb")
                chk = [f"s_waitcnt vmcnt({2 - k})"] + pre3(n) + [f"s_cbranch_vccnz {rt}\n{back}:"]
                def retry(n=n, rt=rt, back=back):
                    a.label(rt)
                    a(loads[n])
                    budget_head(a)
                    a("s_waitcnt vmcnt(0)")
                    for x in pre3(n): a(x)
                    a(f"s_cbranch_vccnz {rt}\ns_branch {back}")
                a.defer(retry)
            consume(g, k, chk)
    body(3)
    for f in range(3):
        def ool(f=f):
            body(f); a(f"s_branch {join}")
        a.defer(ool)
    a.label(join)


class Lds:
    def __init__(self, a):
        self.a = a; self.issued = []; self.done = -1
    def op(self, tag, ins):
        self.a(ins); self.issued.append(tag)
    def wait(self, *tags):
        idx = max((i for i, t in enumerate(self.issued) if t in tags), default=-1)
        if idx > self.done:
            self.a(f"s_waitcnt lgkmcnt({min(15, len(self.issued) - 1 - idx)})")
            self.done = idx
    def wait_all(self):
        self.a("s_waitcnt lgkmcnt(0)"); self.done = len(self.issued) - 1


def s_cu(a, cfg, hooks=None):
    hooks = hooks or {}
    vT, vL16, vGW, vA1, vA2, vA3, vBL, vQKW, vQKR, vIDX, vOXO, vVMO = range(12)
    KX, VX = 12, 44
    P = 52
    ACC, G, BR, AR = P, P + 16, P + 32, P + 56
    NB, NA = 3, 5
    QF, OXR, T12, OMR, KMF, T0 = BR, BR + 16, ACC, ACC + 8, AR, AR + 16
    VM, PX, PM, MI = G, G + 4, G + 8, G + 10
    vLANE, vD, vWT = 124, 125, 126
    cfg = dict(cfg); cfg["stamp_reg"] = MI + 4; cfg["lane4_reg"] = MI + 5

    stream = [4, 8, 12, 5, 9, 13, 6, 10, 14, 7, 11, 15]
    order = [(0, t) for t in range(4)] + [(1, t) for t in range(4)]
    order += [(s, t) for s in (2, 3) for t in (0, 1)]
    for s in stream[:8]: order += [(s, t) for t in range(4)]
    order += [(s, t) for s in stream[8:] for t in (0, 1)]
    q_end = len(order) - 1
    order += [(s, t) for s in (2, 3) for t in (2, 3)]
    order += [(s, t) for s in stream[8:] for t in (2, 3)]
    assert len(order) == 64 and len(set(order)) == 64
    lpos = [round(1 + i * 3.2) for i in range(16)]
    assert lpos[-1] <= q_end
    lds_tiles = [order[p] for p in lpos]
    regmap = {}
    n = 0
    for st in order:
        if st in lds_tiles: continue
        regmap[st] = ("a", n * 8) if n < 32 else ("v", 128 + (n - 32) * 8)
        n += 1

    a(f"""s_lshl_b32 s{S_HEAD}, s{S_TEAM}, 3
s_add_u32 s{S_HEAD}, s{S_HEAD}, s{S_J}""")
    srd(a, S_W0, 16, 1024 * 8192)
    srd(a, S_W1, 24, 1024 * 8192)
    arrive(a, 20)
    a(f"v_and_b32 v{vLANE}, 63, v0")
    a(f"v_lshlrev_b32 v{vL16}, 4, v{vLANE}")
    a(f"""v_lshrrev_b32 v{vT}, 3, v{vLANE}
v_lshlrev_b32 v{vD}, 13, v{vT}
v_and_b32 v{vT}, 7, v{vLANE}
v_lshl_add_u32 v{vD}, v{vT}, 4, v{vD}
s_lshl_b32 s{S_T0}, s{S_HEAD}, 8
s_lshr_b32 s{S_T1}, s{S_WAVE}, 1
s_lshl_b32 s{S_T5}, s{S_T1}, 22
s_lshl_b32 s{S_T2}, s{S_T1}, 16
s_add_u32 s{S_T2}, s{S_T2}, {L_W:#x}
s_lshl_b32 s{S_T1}, s{S_T1}, 7
s_add_u32 s{S_T0}, s{S_T0}, s{S_T1}
v_add_u32 v{vD}, s{S_T0}, v{vD}
s_and_b32 s{S_T1}, s{S_WAVE}, 1
s_cmp_eq_u32 s{S_T1}, 1
s_cselect_b32 s{S_W2}, s{S_W1}, s{S_W0}
s_cselect_b32 s{S_W2+1}, s{S_W1+1}, s{S_W0+1}
s_mov_b32 s{S_W2+2}, {1024*8192:#x}
s_mov_b32 s{S_W2+3}, 0x20000
s_lshl_b32 s{S_T0}, s{S_T1}, 14
s_add_u32 s{S_OFF_E}, s{S_T2}, s{S_T0}
v_add_u32 v{vBL}, s{S_OFF_E}, v{vL16}""")
    a(f"""v_bfe_u32 v{vT}, v{vLANE}, 5, 1
v_lshlrev_b32 v{vWT}, 11, v{vT}
v_bfe_u32 v{vT}, v{vLANE}, 3, 1
v_lshl_add_u32 v{vWT}, v{vT}, 10, v{vWT}
v_bfe_u32 v{vT}, v{vLANE}, 4, 1
v_lshl_add_u32 v{vWT}, v{vT}, 9, v{vWT}
v_bfe_u32 v{vT}, v{vLANE}, 2, 1
v_lshl_add_u32 v{vWT}, v{vT}, 7, v{vWT}
v_and_b32 v{vT}, 3, v{vLANE}
v_lshl_add_u32 v{vWT}, v{vT}, 3, v{vWT}
s_mul_i32 s{S_T0}, s{S_T1}, {8192 + 64}
s_add_u32 s{S_T0}, s{S_T0}, s{S_T2}
v_add_u32 v{vWT}, s{S_T0}, v{vWT}
v_xor_b32 v{vWT+1}, 0x2000, v{vWT}""")
    cnt = {s: sum(1 for x in lds_tiles if x[0] == s) for s in range(16)}
    js = [j for j in range(16) if not j & 4]
    key = lambda j: cnt[j] + cnt[j ^ 4]
    jorder = sorted([j for j in js if j % 4 < 2], key=key) + sorted([j for j in js if j % 4 >= 2], key=key)
    hold = list(range(12, 124 - 7, 8))
    held = []
    def issue_stage(n):
        j = jorder[n]
        a(f"s_xor_b32 s{S_T3}, s{S_T5}, {j << 19:#x}")
        for b2 in range(2):
            for i in range(8):
                a(f"s_add_u32 m0, s{S_OFF_E}, {(n % 2) * 32768 + b2 * 8192 + i * 1024}")
                a(f"s_add_u32 s{S_T4}, s{S_T3}, {(b2 * 256 + i * 8) * 8192:#x}")
                a(f"buffer_load_dwordx4 v{vD}, s[{S_W2}:{S_W2+3}], s{S_T4} offen lds")
    issue_stage(0); issue_stage(1)
    lds_addr = {}
    for n in range(8):
        j = jorder[n]
        a(f"s_waitcnt vmcnt({16 if n < 7 else 0})\ns_barrier")
        for b2 in range(2):
            s = j ^ (4 * b2)
            for t in range(4):
                if (s, t) in regmap:
                    k, b = regmap[(s, t)]
                else:
                    k, b = "v", hold.pop(0); held.append(((s, t), b))
                for v in range(4):
                    off = (n % 2) * 32768 + (t // 2) * 16384 + (32 * (v // 2) + 2 * (v % 2)) * 128 + (t % 2) * 32
                    a(f"ds_read_b64_tr_b16 {vr(b+2*v,2,k)}, v{vWT + b2} offset:{off}")
                a("s_waitcnt lgkmcnt(8)")
        a("s_waitcnt lgkmcnt(0)\ns_barrier")
        if n + 2 < 8:
            issue_stage(n + 2)
        else:
            for i in range(8):
                st, b = held.pop(0)
                off = (n % 2) * 32768 + i * 2048
                lds_addr[st] = off
                a(f"ds_write_b128 v{vBL}, {vr(b,4)} offset:{off}")
                a(f"ds_write_b128 v{vBL}, {vr(b+4,4)} offset:{off+1024}")
                hold.append(b)
            a("s_waitcnt lgkmcnt(0)")
    assert not held
    sstamp(a, 6, cfg)

    a(f"""s_lshl_b32 s{S_T0}, s{S_WAVE}, 12
v_add_u32 v{vGW}, s{S_T0}, v{vL16}""")
    for q in range(1, 4):
        a(f"v_xor_b32 v{vA1+q-1}, {q*4096:#x}, v{vGW}")
    idx_reg(a, vIDX, vLANE, vT)
    a(f"""v_lshrrev_b32 v{vT}, 5, v{vLANE}
v_lshlrev_b32 v{vQKW}, 8, v{vT}
v_and_b32 v{vT}, 15, v{vLANE}
v_lshl_add_u32 v{vQKW}, v{vT}, 4, v{vQKW}
v_bfe_u32 v{vT}, v{vLANE}, 4, 1
v_lshl_add_u32 v{vQKW}, v{vT}, 3, v{vQKW}
s_lshl_b32 s{S_T0}, s{S_WAVE}, 9
v_add_u32 v{vQKW}, s{S_T0}, v{vQKW}
v_lshrrev_b32 v{vT}, 2, v{vLANE}
v_lshlrev_b32 v{vQKR}, 4, v{vT}
v_and_b32 v{vT}, 1, v{vLANE}
v_lshl_add_u32 v{vQKR}, v{vT}, 3, v{vQKR}
s_lshr_b32 s{S_T0}, s{S_WAVE}, 1
s_lshl_b32 s{S_T0}, s{S_T0}, 10
s_and_b32 s{S_T1}, s{S_WAVE}, 1
s_lshl_b32 s{S_T1}, s{S_T1}, 7
s_add_u32 s{S_T0}, s{S_T0}, s{S_T1}
s_add_u32 s{S_WOFF}, s{S_T0}, {WS_OM:#x}
s_lshl_b32 s{S_T0}, s{S_WAVE}, 9
v_add_u32 v{vOXO}, s{S_T0}, v{vQKR}
s_lshl_b32 s{S_T0}, s{S_WAVE}, 9
v_add_u32 v{vVMO}, s{S_T0}, v{vL16}
v_mov_b32 v{vT}, {OOBV:#x}
v_cmp_gt_u32 vcc, 32, v{vLANE}
v_cndmask_b32 v{vVMO}, v{vT}, v{vVMO}, vcc""")
    cbits = f32bits(128 ** -0.5 * LOG2E)
    a(f"s_mov_b32 s{S_C}, {cbits:#x}\ns_mov_b32 s{S_C+1}, {cbits:#x}")
    a(f"""s_mov_b32 s{S_STEP}, 0
s_lshl_b32 s{S_OFF_A}, s{S_TEAM}, 20
s_add_u32 s{S_OFF_A}, s{S_OFF_A}, {WS_MEMT:#x}
s_lshl_b32 s{S_OFF_B}, s{S_HEAD}, 13
s_lshl_b32 s{S_OFF_C}, s{S_HEAD}, 11
s_lshl_b32 s{S_OFF_D}, s{S_WAVE}, 10
s_add_u32 s{S_OFF_D}, s{S_OFF_D}, {WS_KM:#x}""")

    def prefetch_x():
        a(f"""s_lshl_b32 s{S_T2}, s{S_WAVE}, 11
s_add_u32 s{S_T3}, s{S_OFF_B}, s{S_T2}
s_add_u32 s{S_T5}, s{S_T3}, {WS_VX:#x}
s_add_u32 s{S_T3}, s{S_T3}, {WS_KX:#x}
s_add_u32 m0, s{S_T2}, {L_QX:#x}""")
        for f in range(2):
            a(f"buffer_load_dwordx4 v{vL16}, {WS}, s{S_T3} offen offset:{f*1024} sc1 lds")
        for f in range(2):
            a(f"buffer_load_dwordx4 {vr(VX+4*f,4)}, v{vL16}, {WS}, s{S_T5} offen offset:{f*1024} sc1")

    def chores():
        for i in range(16): a(f"v_mov_b32 v{G+i}, -1")
        a(f"""v_lshlrev_b32 v{vT}, 3, v{vL16}
s_min_u32 s{S_T1}, s{S_WAVE}, 2
s_lshl_b32 s{S_T1}, s{S_T1}, 24
s_add_u32 s{S_T1}, s{S_T1}, s{S_OFF_B}
s_add_u32 s{S_T1}, s{S_T1}, {3 << 18:#x}
s_cmp_ge_u32 s{S_STEP}, {NSEG - 3}
s_cselect_b32 s{S_T1}, {OOBV:#x}, s{S_T1}
buffer_load_dword v{AR}, v{vT}, {WS}, s{S_T1} offen sc1
s_xor_b32 s{S_T0}, s{S_OFF_F}, {JIT << 18:#x}
buffer_store_dwordx4 {vr(G,4)}, v{vL16}, {WS}, s{S_T0} offen sc1
s_xor_b32 s{S_T2}, s{S_OFF_C}, {JIT << 16:#x}
s_lshl_b32 s{S_T0}, s{S_T2}, 1
s_add_u32 s{S_T0}, s{S_T0}, s{S_OFF_D}
s_lshl_b32 s{S_T3}, s{S_WAVE}, 9
s_add_u32 s{S_T2}, s{S_T2}, s{S_T3}
s_add_u32 s{S_T1}, s{S_T2}, {WS_VM:#x}
s_add_u32 s{S_T2}, s{S_T2}, {WS_OM:#x}
s_xor_b32 s{S_T3}, s{S_OFF_A}, {JIT << 14:#x}
s_add_u32 s{S_T3}, s{S_T3}, s{S_OFF_E}
s_cmp_eq_u32 s{S_MODE}, 1""")
        l1, l2 = a.uid("ji"), a.uid("ji")
        def jit(fl):
            return f"""buffer_store_dwordx4 {vr(G,4)}, v{vL16}, {WS}, s{S_T0} offen {fl}
s_mov_b32 exec_hi, 0
buffer_store_dwordx4 {vr(G,4)}, v{vL16}, {WS}, s{S_T1} offen {fl}
buffer_store_dwordx4 {vr(G,4)}, v{vL16}, {WS}, s{S_T2} offen {fl}
buffer_store_dwordx4 {vr(G,4)}, v{vL16}, {WS}, s{S_T3} offen {fl}"""
        a(f"s_cbranch_scc0 {l1}\n{jit('')}\n{l2}:\ns_mov_b64 exec, -1")
        a.defer(lambda: a(f"{l1}:\n{jit('sc1')}\ns_branch {l2}"))

    def bload_instrs(i):
        b = BR + 8 * (i % NB)
        off = lds_addr[lds_tiles[i]]
        return [f"ds_read_b128 {vr(b,4)}, v{vBL} offset:{off}", f"ds_read_b128 {vr(b+4,4)}, v{vBL} offset:{off+1024}"]

    def pkfma(r, nm):
        return f"v_pk_fma_f32 {vr(r,2)}, {vr(r,2)}, s[{S_C}:{S_C+1}], {vr(nm,2)} op_sel_hi:[1,1,0] neg_lo:[0,0,1] neg_hi:[0,0,1]"

    def pack_instrs(mat):
        A0, A1 = ACC + 8 * mat, ACC + 8 * mat + 4
        o = [f"v_permlane32_swap_b32 v{A0+r}, v{A1+r}" for r in range(4)]
        o += [f"v_add_f32 v{A0+r}, v{A0+r}, v{A1+r}" for r in range(4)]
        o += [f"v_cvt_pk_bf16_f32 v{A1}, v{A0}, v{A0+1}", f"v_cvt_pk_bf16_f32 v{A1+1}, v{A0+2}, v{A0+3}"]
        return o, f"ds_write_b64 v{vQKW}, {vr(A1,2)} offset:{L_QK + mat*2048}"

    def tile_regs(t):
        return T0 if t == 0 else T12 + 4 * (t - 1)

    startup_barrier(a, P)
    a(f"""s_bcnt1_i32_b32 s{S_T0}, s{S_NEAR}
s_cmp_ge_u32 s{S_T0}, 4
s_cselect_b32 s{S_OFF_F}, 0x2000, 0
s_and_b32 s{S_T0}, s{S_J}, 1
s_lshl_b32 s{S_T0}, s{S_T0}, 12
s_add_u32 s{S_OFF_F}, s{S_OFF_F}, s{S_T0}
s_lshr_b32 s{S_T0}, s{S_J}, 1
s_lshl_b32 s{S_T0}, s{S_T0}, 14
s_add_u32 s{S_OFF_F}, s{S_OFF_F}, s{S_T0}
s_lshl_b32 s{S_T0}, s{S_TEAM}, 16
s_add_u32 s{S_OFF_F}, s{S_OFF_F}, s{S_T0}
s_lshl_b32 s{S_T0}, s{S_WAVE}, 10
s_add_u32 s{S_OFF_F}, s{S_OFF_F}, s{S_T0}
s_add_u32 s{S_OFF_F}, s{S_OFF_F}, {WS_PART:#x}
s_lshl_b32 s{S_OFF_E}, s{S_J}, 11
s_lshl_b32 s{S_T0}, s{S_WAVE}, 9
s_add_u32 s{S_OFF_E}, s{S_OFF_E}, s{S_T0}""")
    if "wait_x" in hooks:
        a(f"s_mov_b32 s{S_T0}, 0")
        hooks["wait_x"](vT)
    prefetch_x()
    sstamp(a, 7, cfg)
    a.set_filler(vOXO)
    a.label("S_loop")
    stamp(a, 0, cfg)
    for i in range(NB):
        for x in bload_instrs(i): a(x)
    for i in range(16): a(f"v_mov_b32 v{ACC+i}, 0")
    a(f"s_add_u32 s{S_T5}, s{S_OFF_C}, {WS_VM:#x}")
    a(f"s_add_u32 s{S_T4}, s{S_OFF_C}, s{S_WOFF}")
    a("s_waitcnt vmcnt(2)\ns_barrier")
    chores()
    if cfg.get("s_delay"): a.fill(cfg["s_delay"])
    for f in range(8):
        a(f"ds_read_b128 {vr(KX+4*f,4)}, v{vL16} offset:{L_QX + f*1024}")
    a("s_waitcnt lgkmcnt(0)")

    L = Lds(a)
    aslot = {s: G + 4 * s for s in range(4)}
    pending = []
    free_slots = list(range(NA))
    first_use, last_use = {}, {}
    for i, (s, t) in enumerate(order):
        last_use[s] = i; first_use.setdefault(s, i)
    st = {"nexta": 4, "nextb": NB, "li": 0}
    def aload():
        s = stream[st["nexta"] - 4]; st["nexta"] += 1
        aslot[s] = AR + 4 * free_slots.pop(0)
        pending.append((("A", s), f"ds_read_b128 {vr(aslot[s],4)}, v{vA1 + s // 4 - 1} offset:{L_MEM + (s % 4) * 1024}"))
    def deadline(tag):
        return first_use[tag[1]] if tag[0] == "A" else lpos[tag[1]]
    def flush(n):
        pending.sort(key=lambda p: deadline(p[0]))
        for _ in range(min(n, len(pending))):
            tag, ins = pending.pop(0)
            L.op(tag, ins)
    def mfma(i):
        s, t = order[i]
        needs = [("A", s)]
        isl = (s, t) in lds_addr
        if isl: needs.append(("B", st["li"]))
        while any(tg in needs for tg, _ in pending): flush(1)
        L.wait(*needs)
        B = vr(BR + 8 * (st["li"] % NB), 8) if isl else vr(regmap[(s, t)][1], 8, regmap[(s, t)][0])
        if i >= cfg.get("skip_mfma", 99) and i < 44: pass
        else: a(f"v_smfmac_f32_16x16x64_bf16 {vr(ACC+4*t,4)}, {vr(aslot[s],4)}, {B}, v{vIDX}")
        if isl:
            st["li"] += 1
            if st["nextb"] < 16:
                for x in bload_instrs(st["nextb"]): pending.append((("B", st["nextb"]), x))
                st["nextb"] += 1
        if last_use[s] == i and s >= 4:
            free_slots.append((aslot[s] - AR) // 4)
            if st["nexta"] < 16: aload()

    loads = [f"buffer_load_dwordx4 {vr(G+4*i,4)}, v{vGW}, {WS}, s{S_OFF_A} offen offset:{1024*i} sc1" for i in range(4)]
    o = cfg.get("s_mem", {})
    sp = SPoll(a, loads, [G + 4 * i for i in range(4)], vT, cap=o.get("cap", 3), sleep=o.get("sleep", 3), respin=o.get("respin", 4))
    def gw(f):
        L.op(("GW", f), f"ds_write_b128 v{vGW}, {vr(G+4*f,4)} offset:{L_MEM + 1024*f}")
    if cfg.get("s_sleep"): a(f"s_sleep {cfg['s_sleep']}")
    sp.first(prefill=False, arm=o.get("arm", 64), arm_fill=o.get("afill", 6), arm_cap=o.get("acap", 4))
    if cfg.get("presync"): a("s_waitcnt vmcnt(0)\ns_barrier")
    stamp(a, 1, cfg)
    side = {}
    nflush = {}
    def at(i, fn): side.setdefault(i, []).append(fn)
    def ati(i, ins): at(i, lambda: a(ins))
    at(0, lambda: gw(0))
    for f, p in ((1, 0), (2, 4), (3, 7)):
        for k, ins in enumerate(sp.pre3(f)): ati(p + k if f < 3 else p + min(k, 1), ins)
    at(3, lambda: sp.br(1))
    side[4] = [lambda: gw(1)] + side[4]
    side[7] = [lambda: sp.br(2)] + side[7]
    at(9, lambda: sp.br(3))
    def bar1():
        L.wait(("GW", 1)); a("s_barrier")
        stamp(a, 6, cfg)
        for _ in range(NA): aload()
        flush(2)
    at(cfg.get("bar1", 8), bar1)
    for i in (0, 1, 4, 5, 12, 13, 15, 16): nflush[i] = 0
    at(12, lambda: gw(2))
    at(15, lambda: gw(3))
    def bar2():
        L.wait(("GW", 3)); a("s_barrier")
    bar2_at = 19
    qv, qw = pack_instrs(0)
    p0 = q_end + 2
    for k, ins in enumerate(qv): ati(p0 + (k // 2 if k < 4 else 2 + (k - 4) // 2), ins)
    at(p0 + 4, lambda: L.op("QW", qw))
    qrd = [(("QF", ks), f"ds_read_b64_tr_b16 {vr(QF+4*ks+2*u,2)}, v{vQKR} offset:{L_QK + (32*ks+16*u)*16}") for ks in range(4) for u in range(2)]
    def q_barrier():
        L.wait("QW"); a("s_waitcnt vmcnt(0)\ns_barrier")
        for x in qrd[:3]: L.op(*x)
    at(61, q_barrier)
    at(62, lambda: [L.op(*x) for x in qrd[3:6]])
    at(63, lambda: [L.op(*x) for x in qrd[6:]])
    for i in range(0, 64):
        mfma(i)
        if i == bar2_at: bar2()
        flush(nflush.get(i, 1))
        for fn in side.get(i, []): fn()
        probe(a, f"m{i}", cfg)
    stamp(a, 2, cfg)
    kv, kw = pack_instrs(1)
    def sc(ks, t):
        L.wait(("KM", ks) if t == 0 else ("QF", ks))
        C = "0" if ks == 0 else vr(tile_regs(t), 4)
        A = KMF + 4 * ks if t == 0 else KX + 16 * (t - 1) + 4 * ks
        a(f"v_mfma_f32_16x16x32_bf16 {vr(tile_regs(t),4)}, {vr(A,4)}, {vr(QF+4*ks,4)}, {C}")
    vml = f"buffer_load_dwordx4 {vr(VM,4)}, v{vVMO}, {WS}, s{S_T5} offen sc1"
    mx, m2, nmx, nm, al, rr = MI, MI + 1, MI + 2, MI + 3, MI + 4, MI + 5
    X = T12
    fma = lambda r, n: f"v_fma_f32 v{r}, v{r}, s{S_C}, -v{n}"
    a(vml)
    sc(0, 1); sc(0, 2)
    a(kv[0]); sc(1, 1); a(kv[1]); a(kv[2]); sc(1, 2); a(kv[3])
    for ins in kv[4:]: a(ins)
    L.op("KW", kw)
    probe(a, "s_kw", cfg)
    sc(2, 1); sc(2, 2); sc(3, 1); sc(3, 2)
    L.wait("KW"); a("s_barrier")
    probe(a, "s_b", cfg)
    krd = [(("KM", ks), f"ds_read_b64_tr_b16 {vr(KMF+4*ks+2*u,2)}, v{vQKR} offset:{L_QK + 2048 + (32*ks+16*u)*16}") for ks in range(4) for u in range(2)]
    ONE, LS = OMR, OMR + 4
    for k in range(4):
        L.op(*krd[2*k]); L.op(*krd[2*k+1])
        a(f"v_mov_b32 v{ONE+k}, 0x3f803f80")
    probe(a, "s_rd", cfg)
    a(f"""v_max3_f32 v{mx}, v{X}, v{X+1}, v{X+2}
v_max3_f32 v{m2}, v{X+4}, v{X+5}, v{X+6}
v_max3_f32 v{mx}, v{mx}, v{X+3}, v{X+7}
v_max_f32 v{al}, v{mx}, v{m2}
v_max_f32 v{m2}, v{mx}, v{m2}""")
    sc(0, 0)
    a(f"v_permlane32_swap_b32 v{al}, v{m2}")
    sc(1, 0)
    a(f"v_max_f32 v{mx}, v{al}, v{m2}\nv_max_f32 v{al}, v{al}, v{m2}")
    sc(2, 0)
    a(vml)
    a(f"v_permlane16_swap_b32 v{mx}, v{al}")
    sc(3, 0)
    a(f"v_max_f32 v{mx}, v{mx}, v{al}")
    a(f"v_mul_f32 v{nmx}, s{S_C}, v{mx}")
    for i in range(6): a(fma(X + i, nmx))
    seqa = [f"v_max3_f32 v{m2}, v{T0}, v{T0+1}, v{T0+2}", f"v_max3_f32 v{al}, v{m2}, v{T0+3}, v{mx}", f"v_max3_f32 v{m2}, v{m2}, v{T0+3}, v{mx}"]
    a(seqa[0]); a(fma(X + 6, nmx)); a(seqa[1]); a(seqa[2]); a(fma(X + 7, nmx))
    a(f"v_exp_f32 v{X}, v{X}")
    a(f"v_permlane16_swap_b32 v{m2}, v{al}")
    a(f"v_max_f32 v{m2}, v{m2}, v{al}")
    stamp(a, 3, cfg)
    a(f"v_mul_f32 v{nm}, s{S_C}, v{m2}")
    for r in range(4): a(fma(T0 + r, nm))
    a(f"v_sub_f32 v{al}, v{nmx}, v{nm}")
    for i in range(1, 8):
        a(f"v_exp_f32 v{X+i}, v{X+i}")
        if i >= 2 and i % 2 == 0: a(f"v_cvt_pk_bf16_f32 v{PX+i//2-1}, v{X+i-2}, v{X+i-1}")
    a(f"v_exp_f32 v{T0}, v{T0}")
    a(f"v_cvt_pk_bf16_f32 v{PX+3}, v{X+6}, v{X+7}")
    a(f"v_exp_f32 v{T0+1}, v{T0+1}")
    a(f"v_exp_f32 v{T0+2}, v{T0+2}")
    a(f"v_mfma_f32_16x16x32_bf16 {vr(LS,4)}, {vr(ONE,4)}, {vr(PX,4)}, 0")
    a(f"v_exp_f32 v{T0+3}, v{T0+3}")
    a(f"v_mfma_f32_16x16x32_bf16 {vr(OXR,4)}, {vr(VX,4)}, {vr(PX,4)}, 0")
    a(f"v_cvt_pk_bf16_f32 v{PM}, v{T0}, v{T0+1}")
    a(f"v_cvt_pk_bf16_f32 v{PM+1}, v{T0+2}, v{T0+3}")
    a(f"v_mfma_f32_16x16x32_bf16 {vr(OXR+4,4)}, {vr(VX+4,4)}, {vr(PX,4)}, 0")
    a(f"v_exp_f32 v{al}, v{al}")
    vp = SPoll(a, [vml], [VM], vT, cap=0)
    chk = vp.pre3(0)
    a(f"v_mfma_f32_16x16x16_bf16 {vr(T0,4)}, {vr(ONE,2)}, {vr(PM,2)}, 0")
    a("s_waitcnt vmcnt(1)")
    a(chk[0]); a(chk[1])
    probe(a, "s_pv", cfg)
    pv = a.uid("pv")
    a(chk[2])
    a.label(pv)
    a(f"v_mfma_f32_16x16x16_bf16 {vr(X,4)}, {vr(VM,2)}, {vr(PM,2)}, 0")
    a(f"v_mul_f32 v{mx}, v{LS}, v{al}")
    a(f"v_mfma_f32_16x16x16_bf16 {vr(X+4,4)}, {vr(VM+2,2)}, {vr(PM,2)}, 0")
    rt = a.uid("vr")
    if not cfg.get("novm"): a(f"s_cbranch_vccnz {rt}")
    def vm_retry():
        vp._body(0, rt); a(f"s_branch {pv}")
    a.defer(vm_retry)
    a(f"s_cmp_eq_u32 s{S_MODE}, 1")
    a(f"v_fma_f32 v{mx}, v{T0}, 0.5, v{mx}")
    a(f"v_rcp_f32 v{nmx}, v{mx}")
    a("s_mov_b32 exec_lo, 0x00ff00ff\ns_mov_b32 exec_hi, 0x00ff00ff")
    for i in range(0, 8, 2):
        a(f"v_pk_fma_f32 {vr(X+i,2)}, {vr(OXR+i,2)}, {vr(al,2)}, {vr(X+i,2)} op_sel_hi:[1,0,1]")
    for i in range(0, 8, 2):
        a(f"v_pk_mul_f32 {vr(X+i,2)}, {vr(X+i,2)}, {vr(nmx,2)} op_sel_hi:[1,0]")
        if i >= 2: a(f"v_cvt_pk_bf16_f32 v{PX+i//2-1}, v{X+i-2}, v{X+i-1}")
    a(f"v_cvt_pk_bf16_f32 v{PX+3}, v{X+6}, v{X+7}")
    store_mode2(a, f"buffer_store_dwordx4 {vr(PX,4)}, v{vL16}, {WS}, s{S_T4} offen")
    a("s_mov_b64 exec, -1")
    stamp(a, 4, cfg)
    for u in range(2):
        a(f"ds_read_b64_tr_b16 {vr(QF+2*u,2)}, v{vOXO} offset:{L_QK + 2048 + 256*u}")
    a(f"""s_lshl_b32 s{S_T0}, s{S_OFF_C}, 1
s_add_u32 s{S_T0}, s{S_T0}, s{S_OFF_D}
s_waitcnt lgkmcnt(0)
s_mov_b32 exec_lo, 0x00ff00ff
s_mov_b32 exec_hi, 0x00ff00ff""")
    store_mode(a, f"buffer_store_dwordx4 {vr(QF,4)}, v{vL16}, {WS}, s{S_T0} offen")
    a("s_mov_b64 exec, -1")
    stamp(a, 5, cfg)
    if cfg.get("stamps"):
        a(f"v_lshrrev_b32 v{MI+5}, 2, v{vL16}")
    stamp_flush(a, cfg)
    a(f"""s_add_u32 s{S_STEP}, s{S_STEP}, 1
s_cmp_eq_u32 s{S_STEP}, {NSEG}
s_cbranch_scc1 L_done
s_add_u32 s{S_OFF_A}, s{S_OFF_A}, 0x4000
s_bitset0_b32 s{S_OFF_A}, 17
s_add_u32 s{S_OFF_C}, s{S_OFF_C}, {32*2048:#x}
s_bitset0_b32 s{S_OFF_C}, 19
s_add_u32 s{S_OFF_F}, s{S_OFF_F}, 0x40000
s_bitset0_b32 s{S_OFF_F}, 21
s_add_u32 s{S_OFF_B}, s{S_OFF_B}, {32*8192:#x}""")
    if "wait_x" in hooks:
        a(f"s_mov_b32 s{S_T0}, s{S_STEP}")
        hooks["wait_x"](vT)
    prefetch_x()
    a("s_branch S_loop")
    a.flush_deferred()
    a.set_filler(None)


def v_cu(a, cfg, hooks=None):
    hooks = hooks or {}
    vLANE, vGOFF, vIDX, vL16, vT, vT2, vVMO, vOMO, vRW, vRR, vPO, vMO, vL4, vD, vI16 = range(0, 15)
    QF, KMF, KXF = 16, 32, 48
    XV, XVM, XT, XP, XPM, XO, XM = 172, 180, 184, 196, 200, 204, 220
    MK = 224
    vKMO, vVMI, vOXO, vRV = 236, 237, 238, 239
    XR_ = 240
    S_XB, S_PREV = 83, 84
    G = 80
    ACC = 96
    OF = 112
    RD = 128
    RP = 144
    MI = 152
    SENT = 160
    RRS = 164
    vTCH = 168
    cfg = dict(cfg); cfg["stamp_reg"] = MI + 5; cfg["lane4_reg"] = vL4
    a(f"""s_lshl_b32 s{S_HEAD}, s{S_TEAM}, 3
s_lshr_b32 s{S_T0}, s{S_J}, 1
s_add_u32 s{S_HEAD}, s{S_HEAD}, s{S_T0}""")
    srd(a, S_W0, 32, 1024 * 8192)
    srd(a, S_W1, 40, 4096 * 2048)
    srd(a, S_W2, 8, 8 * 2048)
    a(f"v_and_b32 v{vLANE}, 63, v0")
    a(f"v_lshlrev_b32 v{vL16}, 4, v{vLANE}")
    a(f"v_lshlrev_b32 v{vL4}, 2, v{vLANE}")
    for i in range(4): a(f"v_mov_b32 v{SENT+i}, -1")
    a(f"""s_lshl_b32 s{S_OFF_A}, s{S_TEAM}, 20
s_add_u32 s{S_OFF_A}, s{S_OFF_A}, {WS_MEMT:#x}
s_lshl_b32 s{S_T0}, s{S_J}, 10
s_add_u32 s{S_OFF_E}, s{S_OFF_A}, s{S_T0}
s_lshl_b32 s{S_OFF_C}, s{S_HEAD}, 11
s_and_b32 s{S_T1}, s{S_J}, 1
s_lshl_b32 s{S_T1}, s{S_T1}, 10
s_add_u32 s{S_OFF_B}, s{S_OFF_C}, s{S_T1}
s_and_b32 s{S_T0}, s{S_J}, 3
s_lshl_b32 s{S_OFF_D}, s{S_T0}, 11
s_lshr_b32 s{S_T0}, s{S_J}, 2
s_lshl_b32 s{S_T0}, s{S_T0}, 14
s_add_u32 s{S_OFF_D}, s{S_OFF_D}, s{S_T0}
s_add_u32 s{S_OFF_D}, s{S_OFF_D}, {WS_PART:#x}
s_lshl_b32 s{S_T0}, s{S_TEAM}, 16
s_add_u32 s{S_OFF_F}, s{S_OFF_D}, s{S_T0}""")

    for rep in range(2 if cfg.get('init8', 1) else 1):
        a(f"s_add_u32 s{S_T5}, s{S_WAVE}, {4*rep}")
        a(f"""s_lshl_b32 s{S_T0}, s{S_T5}, 14
s_add_u32 s{S_T0}, s{S_T0}, s{S_OFF_E}
buffer_store_dwordx4 {vr(SENT,4)}, v{vL16}, {WS}, s{S_T0} offen sc1
s_lshl_b32 s{S_T0}, s{S_T5}, 16
s_add_u32 s{S_T0}, s{S_T0}, s{S_OFF_B}
s_add_u32 s{S_T1}, s{S_T0}, {WS_VM:#x}
buffer_store_dwordx4 {vr(SENT,4)}, v{vL16}, {WS}, s{S_T1} offen sc1
s_add_u32 s{S_T1}, s{S_T0}, {WS_OM:#x}
buffer_store_dwordx4 {vr(SENT,4)}, v{vL16}, {WS}, s{S_T1} offen sc1
s_lshl_b32 s{S_T1}, s{S_T0}, 1
s_add_u32 s{S_T1}, s{S_T1}, {WS_KM:#x}
buffer_store_dwordx4 {vr(SENT,4)}, v{vL16}, {WS}, s{S_T1} offen sc1
buffer_store_dwordx4 {vr(SENT,4)}, v{vL16}, {WS}, s{S_T1} offen offset:1024 sc1
s_lshl_b32 s{S_T0}, s{S_T5}, 18
s_add_u32 s{S_T0}, s{S_T0}, s{S_OFF_F}
buffer_store_dwordx4 {vr(SENT,4)}, v{vL16}, {WS}, s{S_T0} offen sc1
buffer_store_dwordx4 {vr(SENT,4)}, v{vL16}, {WS}, s{S_T0} offen offset:1024 sc1
s_add_u32 s{S_T0}, s{S_T0}, 0x2000
buffer_store_dwordx4 {vr(SENT,4)}, v{vL16}, {WS}, s{S_T0} offen sc1
buffer_store_dwordx4 {vr(SENT,4)}, v{vL16}, {WS}, s{S_T0} offen offset:1024 sc1""")

    a(f"""v_mov_b32 v{G}, 0
v_mov_b32 v{G+1}, 0
v_mov_b32 v{G+2}, 0
v_mov_b32 v{G+3}, 0
s_lshl_b32 s{S_T0}, s{S_TEAM}, 4
s_add_u32 s{S_T0}, s{S_T0}, s{S_J}
s_lshl_b32 s{S_T0}, s{S_T0}, 9
s_lshl_b32 s{S_T1}, s{S_WAVE}, 7
s_add_u32 s{S_T0}, s{S_T0}, s{S_T1}
s_add_u32 s{S_T0}, s{S_T0}, {WS_CNT:#x}
s_mov_b64 exec, 0xff
buffer_store_dwordx4 {vr(G,4)}, v{vL16}, {WS}, s{S_T0} offen sc1
s_mov_b64 exec, -1""")
    if not cfg.get("noprobe"):
        skip = a.uid("pr")
        a(f"""s_lshl_b32 s{S_T0}, s{S_TEAM}, 4
s_add_u32 s{S_T0}, s{S_T0}, s{S_J}
s_cmp_ge_u32 s{S_T0}, 8
s_cbranch_scc1 {skip}
s_cmp_lg_u32 s{S_WAVE}, 3
s_cbranch_scc1 {skip}
s_add_u32 s{S_T1}, s{S_OFF_F}, {7 << 18:#x}
s_add_u32 s{S_T2}, s{S_T1}, 0x2000
buffer_store_dwordx4 {vr(SENT,4)}, v{vL16}, {WS}, s{S_T1} offen sc1
buffer_store_dwordx4 {vr(SENT,4)}, v{vL16}, {WS}, s{S_T2} offen sc1
v_mov_b32 v{vT2}, 0
s_mov_b32 s60, -1
s_mov_b32 s61, -1
s_waitcnt vmcnt(0)""")
        for smp in range(4):
            for c in range(2):
                a(f"""s_memtime s[62:63]
s_waitcnt lgkmcnt(0)
buffer_load_dword v{vT}, v{vT2}, {WS}, s{S_T1+c} offen offset:{smp*256} sc1
s_waitcnt vmcnt(0)
s_memtime s[64:65]
s_waitcnt lgkmcnt(0)
s_sub_u32 s64, s64, s62
s_min_u32 s{60+c}, s{60+c}, s64""")
        a(f"""s_cmp_lt_u32 s61, s60
s_cselect_b32 s{S_T1}, 1, 0
s_lshl_b32 s{S_T1}, s{S_T1}, s{S_J}
v_mov_b32 v{vT}, s{S_T1}
s_mov_b64 exec, 1
buffer_atomic_or v{vT}, v{vT2}, {DBG}, 0 offen offset:12 sc1
s_mov_b64 exec, -1
{skip}:""")

    a("s_waitcnt vmcnt(0)\ns_barrier")
    arrive(a, G + 4)

    def stage(srdreg, pitch_log2, sbase):
        a(f"""v_lshrrev_b32 v{vT}, 3, v{vLANE}
v_lshlrev_b32 v{vD}, {pitch_log2}, v{vT}
v_and_b32 v{vT}, 7, v{vLANE}
v_lshl_add_u32 v{vD}, v{vT}, 4, v{vD}
s_lshl_b32 s{S_T1}, s{S_WAVE}, {8 + pitch_log2}
s_add_u32 s{S_T1}, s{S_T1}, s{sbase}
s_lshl_b32 s{S_T2}, s{S_WAVE}, 15""")
        for i in range(32):
            a(f"s_add_u32 m0, s{S_T2}, {L_W + i*1024}")
            a(f"s_add_u32 s{S_T4}, s{S_T1}, {(i*8) << pitch_log2:#x}")
            a(f"buffer_load_dwordx4 v{vD}, s[{srdreg}:{srdreg+3}], s{S_T4} offen lds")

    a(f"""s_lshl_b32 s{S_T0}, s{S_HEAD}, 8
s_and_b32 s{S_T1}, s{S_J}, 1
s_lshl_b32 s{S_T1}, s{S_T1}, 7
s_add_u32 s{S_T0}, s{S_T0}, s{S_T1}""")
    stage(S_W0, 13, S_T0)
    if not cfg.get("nowo_pf"):
        a(f"""v_lshrrev_b32 v{vT}, 3, v{vLANE}
v_lshlrev_b32 v{vT2}, 11, v{vT}
v_and_b32 v{vT}, 7, v{vLANE}
v_lshl_add_u32 v{vT2}, v{vT}, 4, v{vT2}
s_lshl_b32 s{S_T0}, s{S_TEAM}, 21
s_lshl_b32 s{S_T1}, s{S_J}, 7
s_add_u32 s{S_T0}, s{S_T0}, s{S_T1}
s_lshl_b32 s{S_T1}, s{S_WAVE}, 19
s_add_u32 s{S_T0}, s{S_T0}, s{S_T1}""")
        for i in range(32):
            if i == 16: a("s_waitcnt vmcnt(40)")
            a(f"s_add_u32 s{S_T4}, s{S_T0}, {(i*8) << 11:#x}")
            a(f"buffer_load_dwordx4 {vr(G,4)}, v{vT2}, s[{S_W1}:{S_W1+3}], s{S_T4} offen")
    vWT = MI
    a(f"""v_bfe_u32 v{vT}, v{vLANE}, 5, 1
v_lshlrev_b32 v{vWT}, 11, v{vT}
v_bfe_u32 v{vT}, v{vLANE}, 3, 1
v_lshl_add_u32 v{vWT}, v{vT}, 10, v{vWT}
v_bfe_u32 v{vT}, v{vLANE}, 4, 1
v_lshl_add_u32 v{vWT}, v{vT}, 9, v{vWT}
v_bfe_u32 v{vT}, v{vLANE}, 2, 1
v_lshl_add_u32 v{vWT}, v{vT}, 7, v{vWT}
v_and_b32 v{vT}, 3, v{vLANE}
v_lshl_add_u32 v{vWT}, v{vT}, 3, v{vWT}
s_lshl_b32 s{S_T0}, s{S_WAVE}, 15
s_add_u32 s{S_T0}, s{S_T0}, {L_W:#x}
v_add_u32 v{vWT}, s{S_T0}, v{vWT}
s_waitcnt vmcnt({0 if cfg.get("nowo_pf") else 32})""")
    for f in range(4):
        for ct in range(4):
            for v in range(4):
                off = f * 8192 + (32 * (v // 2) + 2 * (v % 2)) * 128 + ct * 32
                a(f"ds_read_b64_tr_b16 {ar((f*4+ct)*8+2*v,2)}, v{vWT} offset:{off}")
            a("s_waitcnt lgkmcnt(8)")
    a("s_waitcnt lgkmcnt(0)")
    sstamp(a, 6, cfg)
    a(f"""s_lshl_b32 s{S_T0}, s{S_TEAM}, 21
s_lshl_b32 s{S_T1}, s{S_J}, 7
s_add_u32 s{S_T0}, s{S_T0}, s{S_T1}""")
    a("s_waitcnt vmcnt(24)")
    stage(S_W1, 11, S_T0)
    a(f"""v_bfe_u32 v{vT}, v{vLANE}, 3, 1
v_lshlrev_b32 v{vWT}, 12, v{vT}
v_bfe_u32 v{vT}, v{vLANE}, 4, 1
v_lshl_add_u32 v{vWT}, v{vT}, 11, v{vWT}
v_bfe_u32 v{vT}, v{vLANE}, 5, 1
v_lshl_add_u32 v{vWT}, v{vT}, 9, v{vWT}
v_bfe_u32 v{vT}, v{vLANE}, 2, 1
v_lshl_add_u32 v{vWT}, v{vT}, 7, v{vWT}
v_and_b32 v{vT}, 3, v{vLANE}
v_lshl_add_u32 v{vWT}, v{vT}, 3, v{vWT}
s_lshl_b32 s{S_T0}, s{S_WAVE}, 15
s_add_u32 s{S_T0}, s{S_T0}, {L_W:#x}
v_add_u32 v{vWT}, s{S_T0}, v{vWT}""")
    a(f"""s_lshl_b32 s{S_T0}, s{S_WAVE}, 12
v_add_u32 v{vGOFF}, s{S_T0}, v{vL16}""")
    idx_reg(a, vIDX, vLANE, vT)
    a(f"""v_and_b32 v{vT}, 31, v{vLANE}
v_lshlrev_b32 v{vVMO}, 4, v{vT}
v_lshrrev_b32 v{vT}, 5, v{vLANE}
v_lshl_add_u32 v{vVMO}, v{vT}, 2, v{vVMO}
s_lshr_b32 s{S_T0}, s{S_WAVE}, 1
s_lshl_b32 s{S_T0}, s{S_T0}, 9
s_and_b32 s{S_T1}, s{S_WAVE}, 1
s_lshl_b32 s{S_T1}, s{S_T1}, 3
s_add_u32 s{S_T0}, s{S_T0}, s{S_T1}
v_add_u32 v{vVMO}, s{S_T0}, v{vVMO}
s_lshl_b32 s{S_T0}, s{S_TEAM}, 14
v_add_u32 v{vOMO}, s{S_T0}, v{vGOFF}""")
    a(f"""s_lshl_b32 s{S_T0}, s{S_WAVE}, 11
v_add_u32 v{vRW}, s{S_T0}, v{vL4}""")
    a(f"""v_bfe_u32 v{vT}, v{vLANE}, 2, 2
v_lshlrev_b32 v{vRR}, 9, v{vT}
v_bfe_u32 v{vT}, v{vLANE}, 2, 1
v_lshl_add_u32 v{vRR}, v{vT}, 5, v{vRR}
v_bfe_u32 v{vT}, v{vLANE}, 3, 1
v_lshl_add_u32 v{vRR}, v{vT}, 7, v{vRR}
v_bfe_u32 v{vT}, v{vLANE}, 4, 1
v_lshl_add_u32 v{vRR}, v{vT}, 6, v{vRR}
v_lshrrev_b32 v{vT}, 5, v{vLANE}
v_lshl_add_u32 v{vRR}, v{vT}, 5, v{vRR}
v_and_b32 v{vT}, 3, v{vLANE}
v_lshl_add_u32 v{vRR}, v{vT}, 3, v{vRR}
s_lshr_b32 s{S_T0}, s{S_WAVE}, 1
s_lshl_b32 s{S_T0}, s{S_T0}, 11
s_and_b32 s{S_T1}, s{S_WAVE}, 1
s_lshl_b32 s{S_T1}, s{S_T1}, 7
s_add_u32 s{S_T0}, s{S_T0}, s{S_T1}
v_add_u32 v{vRR}, s{S_T0}, v{vRR}""")
    a(f"""v_and_b32 v{vT}, 31, v{vLANE}
v_lshlrev_b32 v{vRV}, 2, v{vT}
v_lshrrev_b32 v{vT}, 5, v{vLANE}
v_lshl_add_u32 v{vRV}, v{vT}, 10, v{vRV}
v_add_u32 v{vRV}, s{S_T0}, v{vRV}""")
    a(f"""v_and_b32 v{vKMO}, 0x370, v{vL16}
s_lshl_b32 s{S_T0}, s{S_WAVE}, 9
v_add_u32 v{vVMI}, s{S_T0}, v{vL16}
v_mov_b32 v{vT}, {OOBV:#x}
v_cmp_gt_u32 vcc, 32, v{vLANE}
v_cndmask_b32 v{vVMI}, v{vT}, v{vVMI}, vcc
v_mov_b32 v{vT2}, 0xff800000""")
    for r in range(4):
        a(f"v_cndmask_b32 v{MK+r}, v{vT2}, 0, vcc")
    a(f"""v_lshrrev_b32 v{vT}, 4, v{vLANE}
v_lshlrev_b32 v{vT}, 2, v{vT}
v_and_b32 v{vOXO}, 15, v{vLANE}
v_sub_u32 v{vT}, v{vOXO}, v{vT}
s_and_b32 s{S_T0}, s{S_J}, 1
s_lshl_b32 s{S_T0}, s{S_T0}, 4
v_add_u32 v{vT}, s{S_T0}, v{vT}""")
    for t in range(2):
        for r in range(4):
            a(f"v_cmp_le_i32 vcc, {16*t + r}, v{vT}")
            a(f"v_cndmask_b32 v{MK+4+4*t+r}, v{vT2}, 0, vcc")
    a(f"""v_lshlrev_b32 v{vOXO}, 6, v{vOXO}
v_lshrrev_b32 v{vT}, 4, v{vLANE}
v_lshl_add_u32 v{vOXO}, v{vT}, 4, v{vOXO}
s_lshl_b32 s{S_T0}, s{S_T0}, 6
s_lshl_b32 s{S_T1}, s{S_HEAD}, 15
s_add_u32 s{S_T0}, s{S_T0}, s{S_T1}
s_lshl_b32 s{S_T1}, s{S_WAVE}, 13
s_add_u32 s{S_T0}, s{S_T0}, s{S_T1}
v_add_u32 v{vOXO}, s{S_T0}, v{vOXO}""")
    cbits = f32bits(128 ** -0.5 * LOG2E)
    a(f"s_mov_b32 s{S_C}, {cbits:#x}\ns_mov_b32 s{S_C+1}, {cbits:#x}")
    a(f"""v_lshlrev_b32 v{vPO}, 3, v{vLANE}
s_lshl_b32 s{S_T0}, s{S_WAVE}, 9
v_add_u32 v{vPO}, s{S_T0}, v{vPO}
s_lshl_b32 s{S_T0}, s{S_WAVE}, 8
v_add_u32 v{vMO}, s{S_T0}, v{vL4}
v_add_u32 v{vI16}, s{S_T0}, v{vL16}""")
    M0R = RP
    a(f"""v_bfe_u32 v{vT}, v{vLANE}, 2, 3
v_lshlrev_b32 v{vT2}, 11, v{vT}
v_lshrrev_b32 v{vT}, 5, v{vLANE}
v_lshl_add_u32 v{vT2}, v{vT}, 4, v{vT2}
v_and_b32 v{vT}, 3, v{vLANE}
v_lshl_add_u32 v{vT2}, v{vT}, 2, v{vT2}
s_lshl_b32 s{S_T0}, s{S_J}, 7
s_lshl_b32 s{S_T1}, s{S_WAVE}, 5
s_add_u32 s{S_T0}, s{S_T0}, s{S_T1}
buffer_load_dword v{M0R}, v{vT2}, s[{S_W2}:{S_W2+3}], s{S_T0} offen
s_waitcnt vmcnt(0)""")
    for f in range(4):
        for ct in range(4):
            for v in range(4):
                off = f * 8192 + (8 * (v // 2) + 2 * (v % 2)) * 128 + ct * 32
                a(f"ds_read_b64_tr_b16 {ar(128+(f*4+ct)*8+2*v,2)}, v{vWT} offset:{off}")
            a("s_waitcnt lgkmcnt(8)")
    sstamp(a, 7, cfg)
    a("s_waitcnt lgkmcnt(0)")
    startup_barrier(a, MI + 2)
    XRING = L_W
    KD = QF
    def keep():
        a(f"v_mfma_f32_32x32x16_bf16 {vr(KD,16)}, {vr(SENT,4)}, {vr(SENT,4)}, {vr(KD,16)}")

    def x_dma(seg):
        a(f"""s_lshl_b32 s{S_T0}, s{seg}, 18
s_lshl_b32 s{S_T1}, s{S_HEAD}, 13
s_add_u32 s{S_T0}, s{S_T0}, s{S_T1}
s_cmp_ge_u32 s{seg}, {NSEG}
s_cselect_b32 s{S_T0}, {OOBV:#x}, s{S_T0}
s_and_b32 s{S_T1}, s{seg}, 3
s_lshl_b32 s{S_T1}, s{S_T1}, 14
s_lshl_b32 s{S_T2}, s{S_WAVE}, 10
s_add_u32 s{S_T1}, s{S_T1}, s{S_T2}
s_and_b32 s{S_T3}, s{S_J}, 1
s_lshl_b32 s{S_T3}, s{S_T3}, 12
s_add_u32 s{S_T3}, s{S_T3}, s{S_T2}
s_add_u32 s{S_T3}, s{S_T3}, s{S_T0}
s_add_u32 s{S_T4}, s{S_T3}, {WS_QX:#x}
s_add_u32 m0, s{S_T1}, {XRING:#x}
s_add_u32 s{S_T1}, s{S_T1}, s{S_T2}
buffer_load_dwordx4 v{vL16}, {WS}, s{S_T4} offen sc1 lds
s_add_u32 m0, s{S_T1}, {XRING + 4096:#x}
s_lshl_b32 s{S_T2}, s{S_T2}, 1
s_add_u32 s{S_T4}, s{S_T0}, s{S_T2}
s_add_u32 s{S_T4}, s{S_T4}, {WS_KX:#x}
buffer_load_dwordx4 v{vL16}, {WS}, s{S_T4} offen sc1 lds
buffer_load_dwordx4 v{vL16}, {WS}, s{S_T4} offen offset:1024 sc1 lds""")

    def x_loads(seg_expr):
        a(f"""s_add_u32 s{S_T0}, s{S_STEP}, {seg_expr}
s_lshl_b32 s{S_T0}, s{S_T0}, 18
s_lshl_b32 s{S_T1}, s{S_HEAD}, 13
s_add_u32 s{S_T0}, s{S_T0}, s{S_T1}
s_lshl_b32 s{S_T1}, s{S_WAVE}, 11
s_add_u32 s{S_T0}, s{S_T0}, s{S_T1}
s_add_u32 s{S_T0}, s{S_T0}, {WS_VX:#x}
s_lshl_b32 s85, s{S_PREV}, 1
s_add_u32 s85, s85, {WS_KM:#x}
s_add_u32 s86, s{S_PREV}, {WS_VM:#x}""")
        o = [f"buffer_load_dwordx4 {vr(XV+4*f,4)}, v{vL16}, {WS}, s{S_T0} offen offset:{f*1024} sc1" for f in range(2)]
        return o + km_loads()
    def km_loads():
        return [f"buffer_load_dwordx4 {vr(XVM,4)}, v{vVMI}, {WS}, s86 offen sc1"] + \
               [f"buffer_load_dwordx4 {vr(KMF+4*f,4)}, v{vKMO}, {WS}, s85 offen offset:{f*1024} sc1" for f in range(4)]

    def x_work(seg_expr, mid=None):
        a(f"""s_add_u32 s87, s{S_STEP}, {seg_expr}
s_and_b32 s{S_T1}, s87, 3
s_lshl_b32 s{S_T1}, s{S_T1}, 14
s_add_u32 s{S_T1}, s{S_T1}, {XRING:#x}
v_add_u32 v{XM+3}, s{S_T1}, v{vL16}""")
        for f in range(12):
            d = QF + 4 * f if f < 4 else KXF + 4 * (f - 4)
            a(f"ds_read_b128 {vr(d,4)}, v{XM+3} offset:{f*1024}")
            if f % 2: a.fill(1)
        if mid: mid()
        kp = SPoll(a, ["\n".join(km_loads())], [list(range(KMF, KMF + 16)) + list(range(XVM, XVM + 4))], vT, cap=0)
        kp.pre(0); a.fill(4); kp.br(0)
        a("s_waitcnt lgkmcnt(0)")
        for ks in range(4):
            for t in (1, 2, 0):
                A = KMF + 4 * ks if t == 0 else KXF + 16 * (t - 1) + 4 * ks
                C = vr(MK + 4 * t, 4) if ks == 0 else vr(XT + 4 * t, 4)
                a(f"v_mfma_f32_16x16x32_bf16 {vr(XT+4*t,4)}, {vr(A,4)}, {vr(QF+4*ks,4)}, {C}")
        regs = [XT + 4 * t + r for t in (1, 2, 0) for r in range(4)]
        mx, m2, nm = XM, XM + 1, XM + 2
        a(f"v_max3_f32 v{mx}, v{regs[0]}, v{regs[1]}, v{regs[2]}")
        rest = regs[3:]
        while rest:
            if len(rest) >= 2:
                a(f"v_max3_f32 v{mx}, v{mx}, v{rest[0]}, v{rest[1]}"); rest = rest[2:]
            else:
                a(f"v_max_f32 v{mx}, v{mx}, v{rest[0]}"); rest = rest[1:]
        xlane_reduce(a, "v_max_f32", mx, m2)
        a(f"v_mul_f32 v{nm}, s{S_C}, v{mx}")
        for i in range(0, 12, 2):
            a(f"v_pk_fma_f32 {vr(XT+i,2)}, {vr(XT+i,2)}, s[{S_C}:{S_C+1}], {vr(nm,2)} op_sel_hi:[1,1,0] neg_lo:[0,0,1] neg_hi:[0,0,1]")
        for r in regs: a(f"v_exp_f32 v{r}, v{r}")
        for i in range(4): a(f"v_cvt_pk_bf16_f32 v{XP+i}, v{regs[2*i]}, v{regs[2*i+1]}")
        for i in range(2): a(f"v_cvt_pk_bf16_f32 v{XPM+i}, v{XT+2*i}, v{XT+2*i+1}")
        for i in range(2, 12, 2):
            a(f"v_pk_add_f32 {vr(XT,2)}, {vr(XT,2)}, {vr(XT+i,2)}")
        a(f"v_mfma_f32_16x16x32_bf16 {vr(XO,4)}, {vr(XV,4)}, {vr(XP,4)}, 0")
        a(f"v_add_f32 v{mx}, v{XT}, v{XT+1}")
        a(f"v_mfma_f32_16x16x32_bf16 {vr(XO+4,4)}, {vr(XV+4,4)}, {vr(XP,4)}, 0")
        a(f"v_mfma_f32_16x16x16_bf16 {vr(XO+8,4)}, {vr(XVM,2)}, {vr(XPM,2)}, 0")
        a(f"v_mfma_f32_16x16x16_bf16 {vr(XO+12,4)}, {vr(XVM+2,2)}, {vr(XPM,2)}, 0")
        xlane_reduce(a, "v_add_f32", mx, m2)
        a(f"v_rcp_f32 v{nm}, v{mx}")
        for i in range(0, 8, 2):
            a(f"v_pk_add_f32 {vr(XO+i,2)}, {vr(XO+i,2)}, {vr(XO+8+i,2)}")
        for i in range(0, 8, 2):
            a(f"v_pk_mul_f32 {vr(XO+i,2)}, {vr(XO+i,2)}, {vr(nm,2)} op_sel_hi:[1,0]")
        for i in range(4):
            a(f"v_cvt_pk_bf16_f32 v{XR_+i}, v{XO+2*i}, v{XO+2*i+1}")

    def x_store():
        t0 = cfg.get("tail_seg0", 64)
        l1, l2 = a.uid("ox"), a.uid("ox")
        a(f"""s_cmp_ge_u32 s87, {t0}
s_cbranch_scc1 {l1}
s_lshr_b32 s{S_T2}, s87, 2
s_lshl_b32 s{S_T2}, s{S_T2}, 20
s_and_b32 s{S_T1}, s87, 3
s_lshl_b32 s{S_T1}, s{S_T1}, 11
s_add_u32 s{S_T2}, s{S_T2}, s{S_T1}
s_add_u32 s{S_T2}, s{S_T2}, {WS_OX:#x}
buffer_store_dwordx4 {vr(XR_,4)}, v{vOXO}, {WS}, s{S_T2} offen sc1
{l2}:""")
        a.defer(lambda: a(f"""{l1}:
s_lshl_b32 s{S_T2}, s87, 1
s_and_b32 s{S_T1}, s{S_J}, 1
s_add_u32 s{S_T2}, s{S_T2}, s{S_T1}
s_lshl_b32 s{S_T2}, s{S_T2}, 7
s_lshl_b32 s{S_T1}, s{S_HEAD}, 2
s_add_u32 s{S_T2}, s{S_T2}, s{S_T1}
s_add_u32 s{S_T2}, s{S_T2}, s{S_WAVE}
s_lshl_b32 s{S_T2}, s{S_T2}, 10
s_add_u32 s{S_T2}, s{S_T2}, {WS_OXF:#x}
buffer_store_dwordx4 {vr(XR_,4)}, v{vL16}, {WS}, s{S_T2} offen sc1
s_branch {l2}"""))

    def ksplit(sp, F, wbase, lbase, stamp_idx, o, pad, extra=()):
        extra = list(extra)
        def mm(f, ct):
            a(f"v_smfmac_f32_16x16x64_bf16 {vr(ACC+4*ct,4)}, {vr(F+4*f,4)}, {ar(wbase+(f*4+ct)*8,8)}, v{vIDX}")
        a(f"s_lshl_b32 m0, s{S_WAVE}, 12")
        if o.get("pre", 0): a.fill(o["pre"])
        def consume(g, k, chk):
            mm(g, 0)
            if chk: a(chk[0]); a(chk[1])
            mm(g, 1)
            if chk: a(chk[2])
            mm(g, 2)
            if chk: a(chk[3])
            mm(g, 3)
            if chk: a(chk[4])
        ring_poll(a, sp.loads, sp.regs, vT, consume, a.uid("kj"), space=o.get("space", 4), on_first=lambda: stamp(a, stamp_idx, cfg))
        probe(a, f"k{stamp_idx}f3", cfg)
        sw = lambda p, r: f"v_permlane32_swap_b32 v{ACC+8*p+r}, v{ACC+8*p+4+r}"
        ad = lambda p, r: f"v_add_f32 v{ACC+8*p+r}, v{ACC+8*p+r}, v{ACC+8*p+4+r}"
        wr = lambda p, r: f"ds_write_addtid_b32 v{ACC+8*p+r} offset:{lbase + (p*4+r)*512 + (pad and (r % 2) * 32 + (r // 2) * 128)}"
        for r in range(4): a(sw(0, r))
        for r in range(4): a(ad(0, r))
        for r in range(4):
            a(sw(1, r)); a(wr(0, r))
        for r in range(4): a(ad(1, r))
        keep()
        for r in range(4): a(wr(1, r))
        probe(a, f"k{stamp_idx}w", cfg)
        keep()
        if cfg.get("k3", 0): keep()
        a("s_waitcnt lgkmcnt(0)")
        probe(a, f"k{stamp_idx}l", cfg)
        a("s_barrier")
        probe(a, f"k{stamp_idx}b", cfg)

    def sum4(reads):
        a(reads[0]); a(reads[1]); keep(); a(reads[2]); a(reads[3]); keep()
        a("s_waitcnt lgkmcnt(2)")
        a(f"v_add_f32 v{RD}, v{RD}, v{RD+2}\nv_add_f32 v{RD+1}, v{RD+1}, v{RD+3}")
        a("s_waitcnt lgkmcnt(0)")
        a(f"v_add_f32 v{RD+4}, v{RD+4}, v{RD+6}\nv_add_f32 v{RD+5}, v{RD+5}, v{RD+7}")
        a(f"v_add_f32 v{RD}, v{RD}, v{RD+4}\nv_add_f32 v{RD+1}, v{RD+1}, v{RD+5}")

    a(f"""s_bcnt1_i32_b32 s{S_T0}, s{S_NEAR}
s_cmp_ge_u32 s{S_T0}, 4
s_cselect_b32 s{S_T0}, 0x2000, 0
s_add_u32 s{S_OFF_F}, s{S_OFF_F}, s{S_T0}
s_barrier""")
    a.set_filler(vD)
    store_mode(a, f"buffer_store_dword v{M0R}, v{vMO}, {WS}, s{S_OFF_E} offen")
    a(f"s_mov_b32 s{S_STEP}, 0\ns_mov_b32 s{S_PREV}, s{S_OFF_C}")
    o = cfg.get("v_mem", {})
    gp = SPoll(a, [f"buffer_load_dwordx4 {vr(G+4*i,4)}, v{vGOFF}, {WS}, s{S_OFF_A} offen offset:{1024*i} sc1" for i in range(4)],
               [G + 4 * i for i in range(4)], vT, cap=o.get("cap", 3), sleep=o.get("sleep", 5), pre_sleep=o.get("pre", 0), respin=o.get("respin", 4))
    a("s_waitcnt vmcnt(0)")
    for i in range(16): a(f"v_mov_b32 v{ACC+i}, 0")

    a.label("V_loop")
    stamp(a, 0, cfg)
    ksplit(gp, G, 0, L_MEM, 1, cfg.get('v_mem', {}), 0)
    a(f"s_add_u32 s{S_T0}, s{S_OFF_B}, {WS_VM:#x}\ns_cmp_eq_u32 s{S_MODE}, 1")
    sum4([f"ds_read2st64_b32 {vr(RD+2*src,2)}, v{vRV} offset0:{(L_MEM + src*4096)//256} offset1:{(L_MEM + src*4096)//256 + 2}" for src in range(4)])
    if cfg.get("vm_add"): a.fill(cfg["vm_add"])
    a(f"v_cvt_pk_bf16_f32 v{MI}, v{RD}, v{RD+1}")
    store_mode2(a, f"buffer_store_dword v{MI}, v{vVMO}, {WS}, s{S_T0} offen")
    stamp(a, 2, cfg)
    if "wait_x" in hooks:
        a(f"s_mov_b32 s{S_T0}, s{S_STEP}")
        hooks["wait_x"](vT)
    for x in x_loads(-1 & 0xffffffff): a(x)
    ns = a.uid("ns")
    a(f"s_cmp_lt_u32 s{S_STEP}, 2\ns_cbranch_scc1 {ns}")
    x_store()
    a.label(ns)
    x_dma(S_STEP)
    a(f"""s_cmp_eq_u32 s{S_STEP}, {NSEG-1}
s_cbranch_scc1 V_exit""")
    o = cfg.get("v_om", {})
    op = SPoll(a, [f"buffer_load_dwordx4 {vr(OF+4*f,4)}, v{vOMO}, {WS}, s88 offen offset:{1024*f} sc1" for f in range(4)],
               [OF + 4 * f for f in range(4)], vT, cap=o.get("cap", 3), sleep=o.get("sleep", 5), pre_sleep=o.get("pre", 0), respin=o.get("respin", 4))
    def mid():
        for i in range(16): a(f"v_mov_b32 v{ACC+i}, 0")
        for i in range(6): a(f"v_mov_b32 v{RP+i}, -1")
        a("s_waitcnt vmcnt(4)")
        if "post_vm" in hooks: hooks["post_vm"](MI + 2)
    nx, nx2 = a.uid("nx"), a.uid("nx")
    a(f"s_cmp_lt_u32 s{S_STEP}, 2\ns_cbranch_scc1 {nx}")
    a.label(nx2)
    if cfg.get("nox"):
        a(f"s_sub_u32 s87, s{S_STEP}, 1"); mid()
    else: x_work(-1 & 0xffffffff, mid)
    nx3 = a.uid("nx")
    a.label(nx3)
    def early():
        a(f"""{nx}:
s_waitcnt vmcnt(0)
s_cmp_eq_u32 s{S_STEP}, 1
s_cbranch_scc1 {nx2}""")
        mid()
        a(f"s_branch {nx3}")
    a.defer(early)
    stamp(a, 6, cfg)
    a(f"""s_and_b32 s88, s{S_STEP}, 7
s_lshl_b32 s88, s88, 16
s_add_u32 s{S_PREV}, s88, s{S_OFF_C}
s_add_u32 s88, s88, {WS_OM:#x}
s_mov_b32 s{S_PCUR}, s{S_OFF_F}""")
    for x in range(1, 4):
        a(f"s_xor_b32 s{S_T0+x}, s{S_PCUR}, {x << 16:#x}")
    if cfg.get("v_part", {}).get("pretouch"):
        a("\n".join(f"buffer_load_dwordx2 {vr(RP+2*(x-1),2)}, v{vPO}, {WS}, s{S_T0+x} offen sc1" for x in range(1, 4)))
    ksplit(op, OF, 128, L_RED, 3, cfg.get('v_om', {}), 1)
    if cfg.get("v_part", {}).get("early"):
        a("\n".join(f"buffer_load_dwordx2 {vr(RP+2*(x-1),2)}, v{vPO}, {WS}, s{S_T0+x} offen sc1" for x in range(1, 4)))
    sum4([f"ds_read_b64 {vr(RD+2*src,2)}, v{vRR} offset:{L_RED + src*4096}" for src in range(4)])
    o = cfg.get("v_part", {})
    l3 = "\n".join(f"buffer_load_dwordx2 {vr(RP+2*(x-1),2)}, v{vPO}, {WS}, s{S_T0+x} offen sc1" for x in range(1, 4))
    a(f"buffer_store_dwordx2 {vr(RD,2)}, v{vPO}, {WS}, s{S_PCUR} offen sc1")
    stamp(a, 4, cfg)
    a(f"""s_add_u32 s{S_OFF_E}, s{S_OFF_E}, 0x4000
s_bitset0_b32 s{S_OFF_E}, 17
s_add_u32 s{S_OFF_A}, s{S_OFF_A}, 0x4000
s_bitset0_b32 s{S_OFF_A}, 17
s_add_u32 s{S_OFF_B}, s{S_OFF_B}, 0x10000
s_bitset0_b32 s{S_OFF_B}, 19
s_add_u32 s{S_OFF_F}, s{S_OFF_F}, 0x40000
s_bitset0_b32 s{S_OFF_F}, 21""")
    if o.get("presleep", 3): a(f"s_sleep {o.get('presleep', 3)}")
    for i in range(16): a(f"v_mov_b32 v{ACC+i}, 0")
    pp = SPoll(a, [l3], [list(range(RP, RP + 6))], vT, cap=o.get("cap", 30), sleep=o.get("sleep", 4), pre_sleep=o.get("pre", 12))
    pp.first(prefill=False)
    a(f"""s_cmp_eq_u32 s{S_MODE}, 1
v_pk_add_f32 {vr(RD,2)}, {vr(RD,2)}, {vr(RP,2)}
v_pk_add_f32 {vr(RD+2,2)}, {vr(RP+2,2)}, {vr(RP+4,2)}
v_pk_add_f32 {vr(RD,2)}, {vr(RD,2)}, {vr(RD+2,2)}
v_cvt_pk_bf16_f32 v{MI}, v{RD}, v{RD+1}""")
    store_mode2(a, f"buffer_store_dword v{MI}, v{vMO}, {WS}, s{S_OFF_E} offen")
    stamp(a, 5, cfg)
    stamp_flush(a, cfg)
    a(f"""s_add_u32 s{S_STEP}, s{S_STEP}, 1
s_branch V_loop""")
    a.label("V_exit")
    fin = hooks.get("v_signal", lambda seg: None)
    def mid2():
        a("s_waitcnt vmcnt(0)\ns_barrier")
        if "post_vm" in hooks: hooks["post_vm"](MI + 2)
        fin(NSEG - 3)
    x_work(-1 & 0xffffffff, mid2)
    x_store()
    a(f"""s_and_b32 s88, s{S_STEP}, 7
s_lshl_b32 s88, s88, 16
s_add_u32 s{S_PREV}, s88, s{S_OFF_C}""")
    for x in x_loads(0): a(x)
    def mid3():
        a("s_waitcnt vmcnt(0)\ns_barrier")
        fin(NSEG - 2)
    x_work(0, mid3)
    x_store()
    a("s_waitcnt vmcnt(0)\ns_barrier")
    fin(NSEG - 1)
    a("s_endpgm")
    a.flush_deferred()
    a.set_filler(None)
```

```python
from asmgen import *
import chain
from chain import *
from tail import WS_OXF
from chain4 import (S_NEAR, S_PCUR, JIT, WS, DBG, OOBV, WS_CNT, WS_KM, arrive, wait_all_arrived, startup_barrier, sstamp, probe,
                    store_mode2, SPoll, ring_poll, Lds)

XRING = L_W


def ring_poll2(a, loads, regs, vt, consume, join, space=4, on_first=None, rfill=3):
    R = [a.uid("rp") for _ in range(4)]
    C = [a.uid("rc") for _ in range(4)]
    def pre3(g):
        b = regs[g]
        return [f"v_max3_u32 v{vt}, v{b}, v{b+1}, v{b+2}", f"v_max_u32 v{vt}, v{vt}, v{b+3}", f"v_cmp_eq_u32 vcc, {chain.SENTINEL[0]}, v{vt}"]
    for f in range(3):
        a(loads[f]); a.fill(space)
    for f in range(4):
        a.label(R[f])
        a(loads[(f + 3) % 4])
        if f == 0: budget_head(a)
        a("s_waitcnt vmcnt(3)")
        for x in pre3(f): a(x)
        a.fill(5)
        a(f"s_cbranch_vccz {C[f]}" if f < 3 else f"s_cbranch_vccnz {R[0]}")
    def body(f):
        a.label(C[f])
        if on_first: on_first()
        for k in range(4):
            g = (f + k) % 4
            chk = []
            if k < 3:
                n = (g + 1) % 4
                rt, back = a.uid("rr"), a.uid("rb")
                chk = pre3(n) + [f"s_cbranch_vccnz {rt}\n{back}:"]
                def retry(n=n, rt=rt, back=back, k=k):
                    a.label(rt)
                    for j in range(3 - k): a(loads[(n + j) % 4])
                    for rep in range(3 - k):
                        for x in pre3(n): a(x)
                        a.fill(rfill + 2)
                        a(f"s_cbranch_vccz {back}")
                    budget_head(a)
                    a(f"s_waitcnt vmcnt(8)\ns_branch {rt}")
                a.defer(retry)
            consume(g, k, chk)
    body(3)
    for f in range(3):
        def ool(f=f):
            body(f); a(f"s_branch {join}")
        a.defer(ool)
    a.label(join)


def s_cu(a, cfg, hooks=None):
    hooks = hooks or {}
    vT, vL16, vGW, vA1, vA2, vA3, vQKW, vQKR, vIDX, vOXO, vVMO, vKMO, vXR, vF, vLANE, vT2 = range(16)
    KX, VX, G, AF, ACC, QF, KMF = 16, 48, 56, 72, 120, 128, 144
    T, VM, PX, PM, O, LS, ONE, HALF, MI, MK, vVM2, SENT = 160, 172, 176, 180, 184, 200, 204, 208, 210, 216, 228, 232
    KD = 240
    vD, vWT = 236, 237
    cfg = dict(cfg); cfg["stamp_reg"] = 254; cfg["lane4_reg"] = 255
    keep = lambda: a(f"v_mfma_f32_16x16x32_bf16 {vr(KD+8,4)}, {vr(ONE,4)}, {vr(ONE,4)}, {vr(KD+8,4)}")
    wreg = lambda s, t: (s * 2 + t) * 8

    a(f"""s_lshl_b32 s{S_HEAD}, s{S_TEAM}, 3
s_add_u32 s{S_HEAD}, s{S_HEAD}, s{S_J}""")
    srd(a, S_W0, 16, 1024 * 8192)
    arrive(a, 20)
    a(f"v_and_b32 v{vLANE}, 63, v0")
    a(f"v_lshlrev_b32 v{vL16}, 4, v{vLANE}")
    a(f"""v_lshrrev_b32 v{vT}, 4, v{vLANE}
v_lshlrev_b32 v{vD}, 13, v{vT}
v_and_b32 v{vT}, 15, v{vLANE}
v_lshl_add_u32 v{vD}, v{vT}, 4, v{vD}
s_lshl_b32 s{S_T0}, s{S_HEAD}, 8
s_lshl_b32 s{S_T1}, s{S_WAVE}, 21
s_add_u32 s{S_T0}, s{S_T0}, s{S_T1}
v_add_u32 v{vD}, s{S_T0}, v{vD}
s_lshl_b32 s{S_T2}, s{S_WAVE}, 14
v_bfe_u32 v{vT}, v{vLANE}, 5, 1
v_lshlrev_b32 v{vWT}, 12, v{vT}
v_bfe_u32 v{vT}, v{vLANE}, 3, 1
v_lshl_add_u32 v{vWT}, v{vT}, 11, v{vWT}
v_bfe_u32 v{vT}, v{vLANE}, 4, 1
v_lshl_add_u32 v{vWT}, v{vT}, 10, v{vWT}
v_bfe_u32 v{vT}, v{vLANE}, 2, 1
v_lshl_add_u32 v{vWT}, v{vT}, 8, v{vWT}
v_and_b32 v{vT}, 3, v{vLANE}
v_lshl_add_u32 v{vWT}, v{vT}, 3, v{vWT}
s_lshl_b32 s{S_T0}, s{S_WAVE}, 6
s_add_u32 s{S_T0}, s{S_T0}, s{S_T2}
v_add_u32 v{vWT}, s{S_T0}, v{vWT}""")
    for q in range(3, -1, -1):
        a(f"v_xor_b32 v{vWT+q}, {q << 14:#x}, v{vWT}\nv_add_u32 v{vWT+q}, {L_W:#x}, v{vWT+q}")
    def issue(j):
        for i in range(16):
            a(f"s_add_u32 m0, s{S_T2}, {L_W + (j % 2) * 65536 + i * 1024}")
            a(f"s_mov_b32 s{S_T4}, {(j * 64 + i * 4) * 8192:#x}")
            a(f"buffer_load_dwordx4 v{vD}, s[{S_W0}:{S_W0+3}], s{S_T4} offen lds")
    issue(0); issue(1)
    for j in range(4):
        a(f"s_waitcnt vmcnt({16 if j < 3 else 0})\ns_barrier")
        for q in range(4):
            for t in range(2):
                for v in range(4):
                    a(f"ds_read_b64_tr_b16 {ar(wreg(j+4*q,t)+2*v,2)}, v{vWT+q} offset:{(32*(v//2) + 2*(v%2))*256 + t*32}")
                a("s_waitcnt lgkmcnt(8)")
        a("s_waitcnt lgkmcnt(0)\ns_barrier")
        for q in range(4):
            a(f"v_add_u32 v{vWT+q}, {0x10000 if j % 2 == 0 else 0xffff0000:#x}, v{vWT+q}")
        if j + 2 < 4: issue(j + 2)
    sstamp(a, 6, cfg)

    a(f"""s_lshl_b32 s{S_T0}, s{S_WAVE}, 12
v_add_u32 v{vGW}, s{S_T0}, v{vL16}""")
    for q in range(1, 4):
        a(f"v_xor_b32 v{vA1+q-1}, {q*4096:#x}, v{vGW}")
    idx_reg(a, vIDX, vLANE, vT)
    a(f"""v_lshrrev_b32 v{vT}, 5, v{vLANE}
v_lshlrev_b32 v{vQKW}, 8, v{vT}
v_and_b32 v{vT}, 15, v{vLANE}
v_lshl_add_u32 v{vQKW}, v{vT}, 4, v{vQKW}
v_bfe_u32 v{vT}, v{vLANE}, 4, 1
v_lshl_add_u32 v{vQKW}, v{vT}, 3, v{vQKW}
s_lshl_b32 s{S_T0}, s{S_WAVE}, 9
v_add_u32 v{vQKW}, s{S_T0}, v{vQKW}
v_lshrrev_b32 v{vT}, 2, v{vLANE}
v_lshlrev_b32 v{vQKR}, 4, v{vT}
v_and_b32 v{vT}, 1, v{vLANE}
v_lshl_add_u32 v{vQKR}, v{vT}, 3, v{vQKR}
s_lshr_b32 s{S_T0}, s{S_WAVE}, 1
s_lshl_b32 s{S_T0}, s{S_T0}, 10
s_and_b32 s{S_T1}, s{S_WAVE}, 1
s_lshl_b32 s{S_T1}, s{S_T1}, 7
s_add_u32 s{S_T0}, s{S_T0}, s{S_T1}
s_add_u32 s{S_WOFF}, s{S_T0}, {WS_OM:#x}
s_lshl_b32 s{S_T0}, s{S_WAVE}, 9
v_add_u32 v{vVMO}, s{S_T0}, v{vL16}
v_mov_b32 v{vT}, {OOBV:#x}
v_cmp_gt_u32 vcc, 32, v{vLANE}
v_cndmask_b32 v{vVMO}, v{vT}, v{vVMO}, vcc
v_and_b32 v{vVM2}, 0xfffffdff, v{vVMO}
v_mov_b32 v{vT2}, 0xff800000""")
    for r in range(4): a(f"v_cndmask_b32 v{MK+r}, v{vT2}, 0, vcc")
    a(f"""v_lshrrev_b32 v{vT}, 4, v{vLANE}
v_lshlrev_b32 v{vKMO}, 7, v{vT}
v_lshlrev_b32 v{vT}, 2, v{vT}
v_and_b32 v{vOXO}, 15, v{vLANE}
v_sub_u32 v{vT}, v{vOXO}, v{vT}
s_and_b32 s{S_T3}, s{S_WAVE}, 1
s_lshl_b32 s{S_T0}, s{S_T3}, 4
v_add_u32 v{vT}, s{S_T0}, v{vT}""")
    for t in range(2):
        for r in range(4):
            a(f"v_cmp_le_i32 vcc, {16*t + r}, v{vT}\nv_cndmask_b32 v{MK+4+4*t+r}, v{vT2}, 0, vcc")
    a(f"""v_and_b32 v{vT}, 7, v{vLANE}
v_lshl_add_u32 v{vKMO}, v{vT}, 4, v{vKMO}
v_lshlrev_b32 v{vOXO}, 6, v{vOXO}
v_lshrrev_b32 v{vT}, 4, v{vLANE}
v_lshl_add_u32 v{vOXO}, v{vT}, 4, v{vOXO}
s_lshl_b32 s{S_T0}, s{S_HEAD}, 15
s_lshr_b32 s{S_T2}, s{S_WAVE}, 1
s_lshl_b32 s{S_T1}, s{S_T2}, 14
s_add_u32 s{S_T0}, s{S_T0}, s{S_T1}
s_lshl_b32 s{S_T1}, s{S_T3}, 10
s_add_u32 s{S_T0}, s{S_T0}, s{S_T1}
v_add_u32 v{vOXO}, s{S_T0}, v{vOXO}
s_lshl_b32 s89, s{S_T3}, 12
s_lshl_b32 s90, s{S_T2}, 12
s_lshl_b32 s91, s{S_HEAD}, 12
s_lshl_b32 s{S_T1}, s{S_T2}, 11
s_add_u32 s91, s91, s{S_T1}
s_lshl_b32 s{S_T1}, s{S_T3}, 17
s_add_u32 s91, s91, s{S_T1}
s_add_u32 s91, s91, {WS_OXF:#x}
v_mov_b32 v{vF}, 0""")
    for i in range(4): a(f"v_mov_b32 v{ONE+i}, 0x3f803f80\nv_mov_b32 v{SENT+i}, -1\nv_mov_b32 v{KD+8+i}, 0")
    a(f"v_mov_b32 v{HALF}, 0x3f003f00\nv_mov_b32 v{HALF+1}, 0x3f003f00")
    if cfg.get("stamps"): a(f"v_lshlrev_b32 v255, 2, v{vLANE}")
    cbits = f32bits(128 ** -0.5 * LOG2E)
    a(f"s_mov_b32 s{S_C}, {cbits:#x}\ns_mov_b32 s{S_C+1}, {cbits:#x}")
    a(f"""s_mov_b32 s{S_STEP}, 0
s_lshl_b32 s{S_OFF_A}, s{S_TEAM}, 20
s_add_u32 s{S_OFF_A}, s{S_OFF_A}, {WS_MEMT:#x}
s_lshl_b32 s{S_OFF_C}, s{S_HEAD}, 11""")
    startup_barrier(a, 244)
    a(f"""s_bcnt1_i32_b32 s{S_T0}, s{S_NEAR}
s_cmp_ge_u32 s{S_T0}, 4
s_cselect_b32 s{S_OFF_F}, 0x2000, 0
s_and_b32 s{S_T0}, s{S_J}, 1
s_lshl_b32 s{S_T0}, s{S_T0}, 12
s_add_u32 s{S_OFF_F}, s{S_OFF_F}, s{S_T0}
s_lshr_b32 s{S_T0}, s{S_J}, 1
s_lshl_b32 s{S_T0}, s{S_T0}, 14
s_add_u32 s{S_OFF_F}, s{S_OFF_F}, s{S_T0}
s_lshl_b32 s{S_T0}, s{S_TEAM}, 16
s_add_u32 s{S_OFF_F}, s{S_OFF_F}, s{S_T0}
s_lshl_b32 s{S_T0}, s{S_WAVE}, 10
s_add_u32 s{S_OFF_F}, s{S_OFF_F}, s{S_T0}
s_add_u32 s{S_OFF_F}, s{S_OFF_F}, {WS_PART:#x}
s_lshl_b32 s{S_OFF_E}, s{S_J}, 11
s_lshl_b32 s{S_T0}, s{S_WAVE}, 9
s_add_u32 s{S_OFF_E}, s{S_OFF_E}, s{S_T0}""")

    def x_dma(add):
        a(f"s_add_u32 s{S_OFF_B}, s{S_STEP}, {add}")
        if "wait_x" in hooks:
            a(f"s_mov_b32 s{S_T0}, s{S_OFF_B}")
            hooks["wait_x"](vT)
        a(f"""s_lshl_b32 s{S_T0}, s{S_OFF_B}, 18
s_lshl_b32 s{S_T1}, s{S_HEAD}, 13
s_add_u32 s{S_T0}, s{S_T0}, s{S_T1}
s_lshl_b32 s{S_T2}, s{S_WAVE}, 11
s_add_u32 s{S_T0}, s{S_T0}, s{S_T2}
s_cmp_ge_u32 s{S_OFF_B}, {NSEG}
s_cselect_b32 s{S_T0}, {OOBV:#x}, s{S_T0}
s_and_b32 s{S_T1}, s{S_OFF_B}, 3
s_lshl_b32 s{S_T1}, s{S_T1}, 15
s_add_u32 s{S_T1}, s{S_T1}, s{S_T2}""")
        for k, reg in enumerate((WS_QX, WS_KX, WS_VX)):
            a(f"s_add_u32 m0, s{S_T1}, {XRING + k * 8192:#x}\ns_add_u32 s{S_T3}, s{S_T0}, {reg:#x}")
            for f in range(2):
                a(f"buffer_load_dwordx4 v{vL16}, {WS}, s{S_T3} offen offset:{f*1024} sc1 lds")

    def chores():
        a(f"""s_xor_b32 s{S_T0}, s{S_OFF_F}, {JIT << 18:#x}
buffer_store_dwordx4 {vr(SENT,4)}, v{vL16}, {WS}, s{S_T0} offen sc1
s_xor_b32 s{S_T2}, s{S_OFF_C}, {JIT << 16:#x}
s_lshl_b32 s{S_T3}, s{S_WAVE}, 9
s_add_u32 s{S_T2}, s{S_T2}, s{S_T3}
s_add_u32 s{S_T0}, s{S_T2}, {WS_KM:#x}
s_add_u32 s{S_T1}, s{S_T2}, {WS_VM:#x}
s_add_u32 s{S_T2}, s{S_T2}, {WS_OM:#x}
s_xor_b32 s{S_T3}, s{S_OFF_A}, {JIT << 14:#x}
s_add_u32 s{S_T3}, s{S_T3}, s{S_OFF_E}
s_cmp_eq_u32 s{S_MODE}, 1
s_mov_b32 exec_hi, 0""")
        l1, l2 = a.uid("ji"), a.uid("ji")
        jit = lambda fl: "\n".join(f"buffer_store_dwordx4 {vr(SENT,4)}, v{vL16}, {WS}, s{t} offen {fl}" for t in (S_T0, S_T1, S_T2, S_T3))
        a(f"s_cbranch_scc0 {l1}\n{jit('')}\n{l2}:\ns_mov_b64 exec, -1")
        a.defer(lambda: a(f"{l1}:\n{jit('sc1')}\ns_branch {l2}"))

    pkfma = lambda r, nm: f"v_pk_fma_f32 {vr(r,2)}, {vr(r,2)}, s[{S_C}:{S_C+1}], {vr(nm,2)} op_sel_hi:[1,1,0] neg_lo:[0,0,1] neg_hi:[0,0,1]"
    x_dma(0); x_dma(1)
    a("s_waitcnt vmcnt(0)\ns_barrier")
    sstamp(a, 7, cfg)
    a.set_filler(vF)
    a.label("S_loop")
    stamp(a, 0, cfg)
    a(f"""s_and_b32 s{S_T0}, s{S_STEP}, 3
s_lshl_b32 s{S_T0}, s{S_T0}, 15
s_add_u32 s{S_T0}, s{S_T0}, {XRING:#x}
v_add_u32 v{vXR}, s{S_T0}, v{vL16}
s_lshl_b32 s{S_T1}, s{S_WAVE}, 11
v_add_u32 v{vT2}, s{S_T1}, v{vXR}""")
    for f in range(8): a(f"ds_read_b128 {vr(KX+4*f,4)}, v{vXR} offset:{8192 + f*1024}")
    for f in range(2): a(f"ds_read_b128 {vr(VX+4*f,4)}, v{vT2} offset:{16384 + f*1024}")
    for i in range(8): a(f"v_mov_b32 v{ACC+i}, 0")
    for i in range(16): a(f"v_mov_b32 v{G+i}, -1\nv_mov_b32 v{KMF+i}, -1")
    for i in range(4): a(f"v_mov_b32 v{VM+i}, -1")
    a(f"""s_add_u32 s{S_T5}, s{S_OFF_C}, {WS_VM:#x}
s_add_u32 s{S_T4}, s{S_OFF_C}, s{S_WOFF}
s_add_u32 s{S_OFF_D}, s{S_OFF_C}, {WS_KM:#x}
s_waitcnt lgkmcnt(0)""")
    L = Lds(a)
    loads = [f"buffer_load_dwordx4 {vr(G+4*i,4)}, v{vGW}, {WS}, s{S_OFF_A} offen offset:{1024*i} sc1" for i in range(4)]
    o = cfg.get("s_mem", {})
    sp = SPoll(a, loads, [G + 4 * i for i in range(4)], vT, cap=o.get("cap", 3), sleep=o.get("sleep", 3), respin=o.get("respin", 4))
    gw = lambda f: L.op(("GW", f), f"ds_write_b128 v{vGW}, {vr(G+4*f,4)} offset:{L_MEM + 1024*f}")
    areg = lambda s: G + 4 * s if s < 4 else AF + 4 * (s - 4)
    def mm(s, t):
        if s >= 4: L.wait(("A", s))
        a(f"v_smfmac_f32_16x16x64_bf16 {vr(ACC+4*t,4)}, {vr(areg(s),4)}, {ar(wreg(s,t),8)}, v{vIDX}")
    def ard(s): L.op(("A", s), f"ds_read_b128 {vr(areg(s),4)}, v{vA1 + s // 4 - 1} offset:{L_MEM + (s % 4) * 1024}")
    if cfg.get("s_sleep"): a(f"s_sleep {cfg['s_sleep']}")
    kml = [f"buffer_load_dwordx4 {vr(KMF+4*f,4)}, v{vKMO}, {WS}, s{S_OFF_D} offen offset:{f*512} sc1" for f in range(4)]
    vml = f"buffer_load_dwordx4 {vr(VM,4)}, v{vVMO}, {WS}, s{S_T5} offen sc1"
    if cfg.get("s_ring", 1):
        def consume(g, k, chk):
            a(f"ds_write_b128 v{vGW}, {vr(G+4*g,4)} offset:{L_MEM + 1024*g}")
            for x in chk[:3]: a(x)
            mm(g, 0)
            if chk: a(chk[3])
        ring_poll2(a, loads, [G + 4 * i for i in range(4)], vT, consume, a.uid("sj"), space=o.get("space", 4), on_first=lambda: stamp(a, 1, cfg), rfill=o.get("rfill", 3))
        mm(0, 1); mm(1, 1)
        a("s_waitcnt lgkmcnt(0)\ns_barrier")
        probe(a, "b1", cfg)
        rest = list(range(4, 16))
        ard(4); ard(5); ard(6); mm(2, 1); ard(7); ard(8); ard(9); mm(3, 1)
        for k, s in enumerate(rest):
            mm(s, 0)
            if 10 + k < 16: ard(10 + k)
            mm(s, 1)
    else:
        sp.first(prefill=False, arm=o.get("arm", 0), arm_fill=o.get("afill", 6), arm_cap=o.get("acap", 4))
        stamp(a, 1, cfg)
        gw(0); sp.pre(1); mm(0, 0); sp.br(1)
        gw(1); sp.pre(2); mm(0, 1); mm(1, 0); sp.br(2)
        sp.pre(3); mm(1, 1)
        L.wait(("GW", 1)); a("s_barrier")
        probe(a, "b1", cfg)
        e1 = [4, 8, 12, 5, 9, 13]; e2 = [6, 10, 14, 7, 11, 15]
        ard(4); ard(8); mm(2, 0); ard(12); ard(5); sp.br(3); mm(2, 1); ard(9); ard(13); mm(3, 0)
        gw(2); mm(3, 1); gw(3)
        for k, s in enumerate(e1):
            mm(s, 0)
            if k >= 3: ard(e2[2*(k-3)])
            mm(s, 1)
            if k >= 3: ard(e2[2*(k-3)+1])
            if k == 2:
                L.wait(("GW", 3)); a("s_barrier")
        for s in e2:
            mm(s, 0); mm(s, 1)

    stamp(a, 2, cfg)
    for r in range(4): a(f"v_permlane32_swap_b32 v{ACC+r}, v{ACC+4+r}")
    for r in range(4): a(f"v_add_f32 v{ACC+r}, v{ACC+r}, v{ACC+4+r}")
    a(f"v_cvt_pk_bf16_f32 v{ACC+4}, v{ACC}, v{ACC+1}\nv_cvt_pk_bf16_f32 v{ACC+5}, v{ACC+2}, v{ACC+3}")
    L.op("QW", f"ds_write_b64 v{vQKW}, {vr(ACC+4,2)} offset:{L_QK}")
    keep(); keep(); keep()
    L.wait("QW"); a("s_waitcnt vmcnt(0)\ns_barrier")
    probe(a, "s_b", cfg)
    for ks in range(4):
        for u in range(2):
            L.op(("QF", ks), f"ds_read_b64_tr_b16 {vr(QF+4*ks+2*u,2)}, v{vQKR} offset:{L_QK + (32*ks+16*u)*16}")
        if ks % 2 == 0: keep()
    if cfg.get("km1", 1):
        for x in kml: a(x)
    keep()
    X, T0 = T + 4, T
    def sc(ks, t, d, C0):
        A = KMF + 4 * ks if t == 0 else KX + 16 * (t - 1) + 4 * ks
        a(f"v_mfma_f32_16x16x32_bf16 {vr(d,4)}, {vr(A,4)}, {vr(QF+4*ks,4)}, {C0 if ks == 0 else vr(d,4)}")
    for ks in range(4):
        L.wait(("QF", ks))
        sc(ks, 1, X, "0"); sc(ks, 2, X + 4, "0")
        if ks == cfg.get("km2", 2):
            for x in kml: a(x)
        if cfg.get("kmsp"): a(kml[ks])
    probe(a, "s_x", cfg)
    mx, m2, nm, al = MI, MI + 1, MI + 2, MI + 4
    if cfg.get("online", 0):
        nmx, LM = ACC, ACC + 4
        a(f"""v_max3_f32 v{mx}, v{X}, v{X+1}, v{X+2}
v_max3_f32 v{m2}, v{X+4}, v{X+5}, v{X+6}
v_max3_f32 v{mx}, v{mx}, v{X+3}, v{X+7}
v_max_f32 v{al}, v{mx}, v{m2}
v_max_f32 v{m2}, v{mx}, v{m2}
v_permlane32_swap_b32 v{al}, v{m2}
v_max_f32 v{mx}, v{al}, v{m2}
v_max_f32 v{al}, v{al}, v{m2}
v_permlane16_swap_b32 v{mx}, v{al}
v_max_f32 v{mx}, v{mx}, v{al}
v_mul_f32 v{nmx}, s{S_C}, v{mx}""")
        if cfg.get("km3", 1):
            for x in kml: a(x)
        for i in range(0, 8, 2): a(pkfma(X + i, nmx))
        for i in range(8):
            a(f"v_exp_f32 v{X+i}, v{X+i}")
            if i >= 2 and i % 2 == 0: a(f"v_cvt_pk_bf16_f32 v{PX+i//2-1}, v{X+i-2}, v{X+i-1}")
        a(vml)
        a(f"v_cvt_pk_bf16_f32 v{PX+3}, v{X+6}, v{X+7}")
        kl, kr = a.uid("kl"), a.uid("kr")
        a.label(kl)
        for ks in range(4):
            b = KMF + 4 * ks
            a(f"v_max3_u32 v{vT}, v{b}, v{b+1}, v{b+2 if ks == 0 else vT}")
            a(f"v_max_u32 v{vT}, v{vT}, v{b+3}" if ks == 0 else f"v_max3_u32 v{vT}, v{b+2}, v{b+3}, v{vT}")
            if ks == 3: a(f"v_cmp_eq_u32 vcc, {chain.SENTINEL[0]}, v{vT}")
            sc(ks, 0, T0, "0")
        a(f"v_mfma_f32_16x16x32_bf16 {vr(LS,4)}, {vr(ONE,4)}, {vr(PX,4)}, 0")
        a(f"s_cbranch_vccnz {kr}")
        def kretry():
            a.label(kr)
            for x in kml: a(x)
            a(vml)
            budget_head(a)
            a(f"s_waitcnt vmcnt(15)\ns_branch {kl}")
        a.defer(kretry)
        probe(a, "s_km", cfg)
        a(vml)
        a(f"v_mfma_f32_16x16x32_bf16 {vr(O,4)}, {vr(VX,4)}, {vr(PX,4)}, 0")
        a(f"""v_max3_f32 v{m2}, v{T0}, v{T0+1}, v{T0+2}
v_max3_f32 v{al}, v{m2}, v{T0+3}, v{mx}
v_max3_f32 v{m2}, v{m2}, v{T0+3}, v{mx}""")
        a(f"v_mfma_f32_16x16x32_bf16 {vr(O+4,4)}, {vr(VX+4,4)}, {vr(PX,4)}, 0")
        a(f"""v_permlane16_swap_b32 v{m2}, v{al}
v_max_f32 v{m2}, v{m2}, v{al}""")
        stamp(a, 3, cfg)
        a(f"v_mul_f32 v{nm}, s{S_C}, v{m2}")
        for r in range(4): a(f"v_fma_f32 v{T0+r}, v{T0+r}, s{S_C}, -v{nm}")
        a(f"v_sub_f32 v{al}, v{nmx}, v{nm}")
        for r in range(4): a(f"v_exp_f32 v{T0+r}, v{T0+r}")
        a(f"v_cvt_pk_bf16_f32 v{PM}, v{T0}, v{T0+1}")
        a(f"v_exp_f32 v{al}, v{al}")
        a(f"v_cvt_pk_bf16_f32 v{PM+1}, v{T0+2}, v{T0+3}")
        vp = SPoll(a, [vml], [VM], vT, cap=3, sleep=1)
        chk = vp.pre3(0)
        a(chk[0]); a(chk[1])
        a(f"v_mfma_f32_16x16x16_bf16 {vr(LM,4)}, {vr(HALF,2)}, {vr(PM,2)}, 0")
        a(chk[2])
        probe(a, "s_pv", cfg)
        pv, rt = a.uid("pv"), a.uid("vr")
        a.label(pv)
        a(f"v_mfma_f32_16x16x16_bf16 {vr(O+8,4)}, {vr(VM,2)}, {vr(PM,2)}, 0")
        a(f"v_mfma_f32_16x16x16_bf16 {vr(O+12,4)}, {vr(VM+2,2)}, {vr(PM,2)}, 0")
        a(f"s_cbranch_vccnz {rt}")
        a.defer(lambda: (vp._body(0, rt), a(f"s_branch {pv}")))
        a(f"s_cmp_eq_u32 s{S_MODE}, 1")
        a(f"v_fma_f32 v{mx}, v{LS}, v{al}, v{LM}")
        a(f"v_rcp_f32 v{nm}, v{mx}")
        a("s_mov_b32 exec_lo, 0x00ff00ff\ns_mov_b32 exec_hi, 0x00ff00ff")
        for i in range(0, 8, 2):
            a(f"v_pk_fma_f32 {vr(O+8+i,2)}, {vr(O+i,2)}, {vr(al,2)}, {vr(O+8+i,2)} op_sel_hi:[1,0,1]")
        for i in range(0, 8, 2):
            a(f"v_pk_mul_f32 {vr(O+8+i,2)}, {vr(O+8+i,2)}, {vr(nm,2)} op_sel_hi:[1,0]")
            if i >= 2: a(f"v_cvt_pk_bf16_f32 v{PX+i//2-1}, v{O+8+i-2}, v{O+8+i-1}")
        a(f"v_cvt_pk_bf16_f32 v{PX+3}, v{O+14}, v{O+15}")
    else:
        a(f"""v_max3_f32 v{mx}, v{X}, v{X+1}, v{X+2}
v_max3_f32 v{m2}, v{X+4}, v{X+5}, v{X+6}
v_max3_f32 v{mx}, v{mx}, v{X+3}, v{X+7}
v_max_f32 v{al}, v{mx}, v{m2}
v_max_f32 v{m2}, v{mx}, v{m2}
v_permlane32_swap_b32 v{al}, v{m2}""")
        ok = cfg.get("s_km", {})
        kp = SPoll(a, ["\n".join(kml)], [list(range(KMF, KMF + 16))], vT, cap=ok.get("cap", 12), sleep=ok.get("sleep", 0), respin=ok.get("respin", 0))
        kp.pre(0); a(vml); a.fill(4); kp.br(0)
        probe(a, "s_km", cfg)
        for ks in range(4): sc(ks, 0, T0, "0")
        a(vml)
        a(f"""v_max3_f32 v{mx}, v{T0}, v{T0+1}, v{T0+2}
v_max3_f32 v{m2}, v{al}, v{m2}, v{T0+3}
v_max_f32 v{al}, v{mx}, v{m2}
v_max_f32 v{mx}, v{mx}, v{m2}
v_permlane16_swap_b32 v{mx}, v{al}
v_max_f32 v{m2}, v{mx}, v{al}""")
        stamp(a, 3, cfg)
        a(f"v_mul_f32 v{nm}, s{S_C}, v{m2}")
        for i in range(0, 8, 2): a(pkfma(X + i, nm))
        a(pkfma(T0, nm)); a(pkfma(T0 + 2, nm))
        a(vml)
        for i in range(8):
            a(f"v_exp_f32 v{X+i}, v{X+i}")
            if i >= 2 and i % 2 == 0: a(f"v_cvt_pk_bf16_f32 v{PX+i//2-1}, v{X+i-2}, v{X+i-1}")
        a(f"v_exp_f32 v{T0}, v{T0}")
        a(f"v_cvt_pk_bf16_f32 v{PX+3}, v{X+6}, v{X+7}")
        a(f"v_exp_f32 v{T0+1}, v{T0+1}\nv_exp_f32 v{T0+2}, v{T0+2}")
        a(f"v_mfma_f32_16x16x32_bf16 {vr(LS,4)}, {vr(ONE,4)}, {vr(PX,4)}, 0")
        a(f"v_exp_f32 v{T0+3}, v{T0+3}")
        a(f"v_mfma_f32_16x16x32_bf16 {vr(O,4)}, {vr(VX,4)}, {vr(PX,4)}, 0")
        a(f"v_cvt_pk_bf16_f32 v{PM}, v{T0}, v{T0+1}\nv_cvt_pk_bf16_f32 v{PM+1}, v{T0+2}, v{T0+3}")
        a(f"v_mfma_f32_16x16x32_bf16 {vr(O+4,4)}, {vr(VX+4,4)}, {vr(PX,4)}, 0")
        vp = SPoll(a, [vml], [VM], vT, cap=3, sleep=1)
        chk = vp.pre3(0)
        a(chk[0]); a(chk[1])
        a(f"v_mfma_f32_16x16x16_bf16 {vr(LS,4)}, {vr(HALF,2)}, {vr(PM,2)}, {vr(LS,4)}")
        a(chk[2])
        probe(a, "s_pv", cfg)
        pv, rt = a.uid("pv"), a.uid("vr")
        a.label(pv)
        a(f"v_mfma_f32_16x16x16_bf16 {vr(O+8,4)}, {vr(VM,2)}, {vr(PM,2)}, {vr(O,4)}")
        a(f"v_mfma_f32_16x16x16_bf16 {vr(O+12,4)}, {vr(VM+2,2)}, {vr(PM,2)}, {vr(O+4,4)}")
        a(f"s_cbranch_vccnz {rt}")
        a.defer(lambda: (vp._body(0, rt), a(f"s_branch {pv}")))
        a(f"s_cmp_eq_u32 s{S_MODE}, 1")
        a(f"v_rcp_f32 v{nm}, v{LS}")
        a("s_mov_b32 exec_lo, 0x00ff00ff\ns_mov_b32 exec_hi, 0x00ff00ff")
        for i in range(0, 8, 2):
            a(f"v_pk_mul_f32 {vr(O+8+i,2)}, {vr(O+8+i,2)}, {vr(nm,2)} op_sel_hi:[1,0]")
            if i >= 2: a(f"v_cvt_pk_bf16_f32 v{PX+i//2-1}, v{O+8+i-2}, v{O+8+i-1}")
        a(f"v_cvt_pk_bf16_f32 v{PX+3}, v{O+14}, v{O+15}")
    store_mode2(a, f"buffer_store_dwordx4 {vr(PX,4)}, v{vL16}, {WS}, s{S_T4} offen")
    a("s_mov_b64 exec, -1")
    stamp(a, 4, cfg)

    V4, VM2, P2, O2, D2 = AF, AF + 16, AF + 24, G, KD
    t0 = cfg.get("tail_seg0", 64)
    def ox_store(seg):
        l1, l2 = a.uid("ox"), a.uid("ox")
        a(f"""s_cmp_ge_u32 s{seg}, {t0}
s_cbranch_scc1 {l1}
s_lshr_b32 s{S_T2}, s{seg}, 2
s_lshl_b32 s{S_T2}, s{S_T2}, 20
s_and_b32 s{S_T1}, s{seg}, 3
s_lshl_b32 s{S_T1}, s{S_T1}, 11
s_add_u32 s{S_T2}, s{S_T2}, s{S_T1}
s_add_u32 s{S_T2}, s{S_T2}, {WS_OX:#x}
s_add_u32 s{S_T1}, s{S_T2}, 0x2000
buffer_store_dwordx4 {vr(D2,4)}, v{vOXO}, {WS}, s{S_T2} offen sc1
buffer_store_dwordx4 {vr(D2+4,4)}, v{vOXO}, {WS}, s{S_T1} offen sc1
{l2}:""")
        a.defer(lambda: a(f"""{l1}:
s_lshl_b32 s{S_T2}, s{seg}, 18
s_add_u32 s{S_T2}, s{S_T2}, s91
s_cmp_ge_u32 s{seg}, {NSEG}
s_cselect_b32 s{S_T2}, {OOBV:#x}, s{S_T2}
buffer_store_dwordx4 {vr(D2,4)}, v{vL16}, {WS}, s{S_T2} offen sc1
buffer_store_dwordx4 {vr(D2+4,4)}, v{vL16}, {WS}, s{S_T2} offen offset:1024 sc1
s_branch {l2}"""))
    vm2 = [f"buffer_load_dwordx4 {vr(VM2+4*i,4)}, v{vVM2}, {WS}, s{S_T5} offen offset:{512*i} sc1" for i in range(2)]
    for x in vm2: a(x)
    a(f"v_add_u32 v{vT2}, s89, v{vXR}\nv_add_u32 v{vT}, s90, v{vXR}")
    for ks in range(4): a(f"ds_read_b128 {vr(QF+4*ks,4)}, v{vT2} offset:{ks*1024}")
    for f in range(4): a(f"ds_read_b128 {vr(V4+4*f,4)}, v{vT} offset:{16384 + f*1024}")
    def burst():
        a(f"s_sub_u32 s92, s{S_STEP}, 1\ns_cmp_ge_u32 s92, {NSEG-cfg.get('early', 6)}\ns_cselect_b32 s92, -1, s92")
        ox_store(92)
        chores()
        x_dma(2)
    bp = cfg.get("burst", 2)
    if bp == 0: burst()
    for ks in range(4):
        a(f"s_waitcnt lgkmcnt({7 - ks})")
        for t in (1, 2, 0):
            A = KMF + 4 * ks if t == 0 else KX + 16 * (t - 1) + 4 * ks
            a(f"v_mfma_f32_16x16x32_bf16 {vr(T+4*t,4)}, {vr(A,4)}, {vr(QF+4*ks,4)}, {vr(MK+4*t,4) if ks == 0 else vr(T+4*t,4)}")
    if bp == 1: burst()
    a(f"s_waitcnt vmcnt({13 if bp < 2 else 0}) lgkmcnt(0)")
    if "post_om" in hooks: hooks["post_om"](MI)
    v2p = SPoll(a, ["\n".join(vm2)], [list(range(VM2, VM2 + 8))], vT, cap=0)
    v2p.pre(0); a.fill(4); v2p.br(0)
    regs = [T + 4 * t + r for t in (1, 2, 0) for r in range(4)]
    a(f"v_max3_f32 v{mx}, v{regs[0]}, v{regs[1]}, v{regs[2]}")
    rest = regs[3:]
    while rest:
        if len(rest) >= 2: a(f"v_max3_f32 v{mx}, v{mx}, v{rest[0]}, v{rest[1]}"); rest = rest[2:]
        else: a(f"v_max_f32 v{mx}, v{mx}, v{rest[0]}"); rest = rest[1:]
    xlane_reduce(a, "v_max_f32", mx, m2)
    a(f"v_mul_f32 v{nm}, s{S_C}, v{mx}")
    for i in range(0, 12, 2): a(pkfma(T + i, nm))
    if bp == 2: burst()
    for r in regs: a(f"v_exp_f32 v{r}, v{r}")
    for i in range(6): a(f"v_cvt_pk_bf16_f32 v{P2+i}, v{regs[2*i]}, v{regs[2*i+1]}")
    a(f"v_mfma_f32_16x16x32_bf16 {vr(LS,4)}, {vr(ONE,4)}, {vr(P2,4)}, 0")
    for f in range(4): a(f"v_mfma_f32_16x16x32_bf16 {vr(O2+4*f,4)}, {vr(V4+4*f,4)}, {vr(P2,4)}, 0")
    a(f"v_mfma_f32_16x16x16_bf16 {vr(LS,4)}, {vr(ONE,2)}, {vr(P2+4,2)}, {vr(LS,4)}")
    for f in range(4): a(f"v_mfma_f32_16x16x16_bf16 {vr(O2+4*f,4)}, {vr(VM2+2*f,2)}, {vr(P2+4,2)}, {vr(O2+4*f,4)}")
    a(f"v_rcp_f32 v{nm}, v{LS}")
    for i in range(0, 16, 2): a(f"v_pk_mul_f32 {vr(O2+i,2)}, {vr(O2+i,2)}, {vr(nm,2)} op_sel_hi:[1,0]")
    for i in range(8): a(f"v_cvt_pk_bf16_f32 v{D2+i}, v{O2+2*i}, v{O2+2*i+1}")
    e1, e2 = a.uid("ie"), a.uid("ie")
    a(f"s_cmp_ge_u32 s{S_STEP}, {NSEG-cfg.get('early', 6)}\ns_cbranch_scc1 {e1}\n{e2}:")
    def early_store():
        a.label(e1); ox_store(S_STEP); a(f"s_branch {e2}")
    a.defer(early_store)
    stamp(a, 5, cfg)
    stamp_flush(a, cfg)
    a(f"""s_add_u32 s{S_STEP}, s{S_STEP}, 1
s_cmp_eq_u32 s{S_STEP}, {NSEG}
s_cbranch_scc1 {hooks.get('exit', 'L_done')}
s_add_u32 s{S_OFF_A}, s{S_OFF_A}, 0x4000
s_bitset0_b32 s{S_OFF_A}, 17
s_add_u32 s{S_OFF_C}, s{S_OFF_C}, {32*2048:#x}
s_bitset0_b32 s{S_OFF_C}, 19
s_add_u32 s{S_OFF_F}, s{S_OFF_F}, 0x40000
s_bitset0_b32 s{S_OFF_F}, 21
s_branch S_loop""")
    a.flush_deferred()
    a.set_filler(None)


def v_cu(a, cfg, hooks=None):
    hooks = hooks or {}
    vLANE, vGOFF, vIDX, vL16, vT, vT2, vVMO, vOMO, vRW, vRR, vPO, vMO, vL4, vD, vI16 = range(0, 15)
    QF = 16
    G, ACC, ACC2, OF, RD, RP, MI, SENT = 32, 48, 64, 80, 96, 104, 112, 120
    vRV, vKO = 124, 125
    WV = 128
    cfg = dict(cfg); cfg["stamp_reg"] = MI + 5; cfg["lane4_reg"] = vL4
    a(f"""s_lshl_b32 s{S_HEAD}, s{S_TEAM}, 3
s_lshr_b32 s{S_T0}, s{S_J}, 1
s_add_u32 s{S_HEAD}, s{S_HEAD}, s{S_T0}""")
    srd(a, S_W0, 32, 1024 * 8192)
    srd(a, S_W1, 40, 4096 * 2048)
    srd(a, S_W2, 8, 8 * 2048)
    a(f"v_and_b32 v{vLANE}, 63, v0")
    a(f"v_lshlrev_b32 v{vL16}, 4, v{vLANE}")
    a(f"v_lshlrev_b32 v{vL4}, 2, v{vLANE}")
    for i in range(4): a(f"v_mov_b32 v{SENT+i}, -1")
    a(f"""s_lshl_b32 s{S_OFF_A}, s{S_TEAM}, 20
s_add_u32 s{S_OFF_A}, s{S_OFF_A}, {WS_MEMT:#x}
s_lshl_b32 s{S_T0}, s{S_J}, 10
s_add_u32 s{S_OFF_E}, s{S_OFF_A}, s{S_T0}
s_lshl_b32 s{S_OFF_C}, s{S_HEAD}, 11
s_and_b32 s{S_T1}, s{S_J}, 1
s_lshl_b32 s{S_T1}, s{S_T1}, 10
s_add_u32 s{S_OFF_B}, s{S_OFF_C}, s{S_T1}
s_and_b32 s{S_T0}, s{S_J}, 3
s_lshl_b32 s{S_OFF_D}, s{S_T0}, 11
s_lshr_b32 s{S_T0}, s{S_J}, 2
s_lshl_b32 s{S_T0}, s{S_T0}, 14
s_add_u32 s{S_OFF_D}, s{S_OFF_D}, s{S_T0}
s_add_u32 s{S_OFF_D}, s{S_OFF_D}, {WS_PART:#x}
s_lshl_b32 s{S_T0}, s{S_TEAM}, 16
s_add_u32 s{S_OFF_F}, s{S_OFF_D}, s{S_T0}""")

    for rep in range(2 if cfg.get('init8', 1) else 1):
        a(f"s_add_u32 s{S_T5}, s{S_WAVE}, {4*rep}")
        a(f"""s_lshl_b32 s{S_T0}, s{S_T5}, 14
s_add_u32 s{S_T0}, s{S_T0}, s{S_OFF_E}
buffer_store_dwordx4 {vr(SENT,4)}, v{vL16}, {WS}, s{S_T0} offen sc1
s_lshl_b32 s{S_T0}, s{S_T5}, 16
s_add_u32 s{S_T0}, s{S_T0}, s{S_OFF_B}
s_add_u32 s{S_T1}, s{S_T0}, {WS_VM:#x}
buffer_store_dwordx4 {vr(SENT,4)}, v{vL16}, {WS}, s{S_T1} offen sc1
s_add_u32 s{S_T1}, s{S_T0}, {WS_OM:#x}
buffer_store_dwordx4 {vr(SENT,4)}, v{vL16}, {WS}, s{S_T1} offen sc1
s_add_u32 s{S_T1}, s{S_T0}, {WS_KM:#x}
buffer_store_dwordx4 {vr(SENT,4)}, v{vL16}, {WS}, s{S_T1} offen sc1
s_lshl_b32 s{S_T0}, s{S_T5}, 18
s_add_u32 s{S_T0}, s{S_T0}, s{S_OFF_F}
buffer_store_dwordx4 {vr(SENT,4)}, v{vL16}, {WS}, s{S_T0} offen sc1
buffer_store_dwordx4 {vr(SENT,4)}, v{vL16}, {WS}, s{S_T0} offen offset:1024 sc1
s_add_u32 s{S_T0}, s{S_T0}, 0x2000
buffer_store_dwordx4 {vr(SENT,4)}, v{vL16}, {WS}, s{S_T0} offen sc1
buffer_store_dwordx4 {vr(SENT,4)}, v{vL16}, {WS}, s{S_T0} offen offset:1024 sc1""")

    a(f"""v_mov_b32 v{G}, 0
v_mov_b32 v{G+1}, 0
v_mov_b32 v{G+2}, 0
v_mov_b32 v{G+3}, 0
s_lshl_b32 s{S_T0}, s{S_TEAM}, 4
s_add_u32 s{S_T0}, s{S_T0}, s{S_J}
s_lshl_b32 s{S_T0}, s{S_T0}, 9
s_lshl_b32 s{S_T1}, s{S_WAVE}, 7
s_add_u32 s{S_T0}, s{S_T0}, s{S_T1}
s_add_u32 s{S_T0}, s{S_T0}, {WS_CNT:#x}
s_mov_b64 exec, 0xff
buffer_store_dwordx4 {vr(G,4)}, v{vL16}, {WS}, s{S_T0} offen sc1
s_mov_b64 exec, -1""")
    if not cfg.get("noprobe"):
        skip = a.uid("pr")
        a(f"""s_lshl_b32 s{S_T0}, s{S_TEAM}, 4
s_add_u32 s{S_T0}, s{S_T0}, s{S_J}
s_cmp_ge_u32 s{S_T0}, 8
s_cbranch_scc1 {skip}
s_cmp_lg_u32 s{S_WAVE}, 3
s_cbranch_scc1 {skip}
s_add_u32 s{S_T1}, s{S_OFF_F}, {7 << 18:#x}
s_add_u32 s{S_T2}, s{S_T1}, 0x2000
buffer_store_dwordx4 {vr(SENT,4)}, v{vL16}, {WS}, s{S_T1} offen sc1
buffer_store_dwordx4 {vr(SENT,4)}, v{vL16}, {WS}, s{S_T2} offen sc1
v_mov_b32 v{vT2}, 0
s_mov_b32 s60, -1
s_mov_b32 s61, -1
s_waitcnt vmcnt(0)""")
        for smp in range(8):
            for c in range(2):
                a(f"""s_memtime s[62:63]
s_waitcnt lgkmcnt(0)
buffer_load_dword v{vT}, v{vT2}, {WS}, s{S_T1+c} offen offset:{smp*128} sc1
s_waitcnt vmcnt(0)
s_memtime s[64:65]
s_waitcnt lgkmcnt(0)
s_sub_u32 s64, s64, s62
s_min_u32 s{60+c}, s{60+c}, s64""")
        a(f"""s_cmp_lt_u32 s61, s60
s_cselect_b32 s{S_T1}, 1, 0
s_lshl_b32 s{S_T1}, s{S_T1}, s{S_J}
v_mov_b32 v{vT}, s{S_T1}
s_mov_b64 exec, 1
buffer_atomic_or v{vT}, v{vT2}, {DBG}, 0 offen offset:12 sc1
s_mov_b64 exec, -1
{skip}:""")

    a("s_waitcnt vmcnt(0)\ns_barrier")
    arrive(a, G + 4)

    srd(a, 84, 24, 1024 * 8192)
    vD2, vWT = MI, MI + 1
    a(f"""v_lshrrev_b32 v{vT}, 3, v{vLANE}
v_lshlrev_b32 v{vD}, 13, v{vT}
v_lshlrev_b32 v{vD2}, 11, v{vT}
v_and_b32 v{vT}, 7, v{vLANE}
v_lshl_add_u32 v{vD}, v{vT}, 4, v{vD}
v_lshl_add_u32 v{vD2}, v{vT}, 4, v{vD2}
s_lshl_b32 s{S_T0}, s{S_HEAD}, 8
s_and_b32 s{S_T1}, s{S_J}, 1
s_lshl_b32 s{S_T1}, s{S_T1}, 7
s_add_u32 s{S_T0}, s{S_T0}, s{S_T1}
s_lshl_b32 s{S_T1}, s{S_WAVE}, 21
s_add_u32 s{S_T0}, s{S_T0}, s{S_T1}
v_add_u32 v{vD}, s{S_T0}, v{vD}
s_lshl_b32 s{S_T0}, s{S_TEAM}, 21
s_lshl_b32 s{S_T1}, s{S_J}, 7
s_add_u32 s{S_T0}, s{S_T0}, s{S_T1}
s_lshl_b32 s{S_T1}, s{S_WAVE}, 19
s_add_u32 s{S_T0}, s{S_T0}, s{S_T1}
v_add_u32 v{vD2}, s{S_T0}, v{vD2}
s_lshl_b32 s{S_T2}, s{S_WAVE}, 15
s_add_u32 s{S_T2}, s{S_T2}, {L_W:#x}""")
    for dst, bits in ((vWT, ((5, 11), (3, 10), (4, 9), (2, 7))), (vWT + 1, ((3, 12), (4, 11), (5, 9), (2, 7)))):
        a(f"v_and_b32 v{vT}, 3, v{vLANE}\nv_lshlrev_b32 v{dst}, 3, v{vT}")
        for b, sh in bits:
            a(f"v_bfe_u32 v{vT}, v{vLANE}, {b}, 1\nv_lshl_add_u32 v{dst}, v{vT}, {sh}, v{dst}")
        a(f"v_add_u32 v{dst}, s{S_T2}, v{dst}")
    units = [(m, f) for m in range(3) for f in range(4)]
    def issue(n):
        m, f = units[n]
        sr_, vo, pl = ((84, vD, 13), (S_W0, vD, 13), (S_W1, vD2, 11))[m]
        for i in range(8):
            a(f"s_add_u32 m0, s{S_T2}, {(n % 4) * 8192 + i * 1024}")
            a(f"s_mov_b32 s{S_T4}, {(f * 64 + i * 8) << pl:#x}")
            a(f"buffer_load_dwordx4 v{vo}, s[{sr_}:{sr_+3}], s{S_T4} offen lds")
    for n in range(4): issue(n)
    for n in range(12):
        m, f = units[n]
        a(f"s_waitcnt vmcnt({8 * min(3, 11 - n)})")
        for ct in range(4):
            k, b = (("a", 0), ("v", WV), ("a", 128))[m]
            for v in range(4):
                ro = (32 * (v // 2) + 2 * (v % 2)) if m < 2 else (8 * (v // 2) + 2 * (v % 2))
                a(f"ds_read_b64_tr_b16 {vr(b+(f*4+ct)*8+2*v,2,k)}, v{vWT + (m == 2)} offset:{(n % 4) * 8192 + ro * 128 + ct * 32}")
            if ct == 2: a("s_waitcnt lgkmcnt(4)")
        a("s_waitcnt lgkmcnt(0)")
        if n + 4 < 12: issue(n + 4)
        if n == 3: sstamp(a, 6, cfg)
    a(f"""s_lshl_b32 s{S_T0}, s{S_WAVE}, 12
v_add_u32 v{vGOFF}, s{S_T0}, v{vL16}""")
    idx_reg(a, vIDX, vLANE, vT)
    a(f"""v_and_b32 v{vT}, 31, v{vLANE}
v_lshlrev_b32 v{vVMO}, 4, v{vT}
v_lshrrev_b32 v{vT}, 5, v{vLANE}
v_lshl_add_u32 v{vVMO}, v{vT}, 2, v{vVMO}
s_lshr_b32 s{S_T0}, s{S_WAVE}, 1
s_lshl_b32 s{S_T0}, s{S_T0}, 9
s_and_b32 s{S_T1}, s{S_WAVE}, 1
s_lshl_b32 s{S_T1}, s{S_T1}, 3
s_add_u32 s{S_T0}, s{S_T0}, s{S_T1}
v_add_u32 v{vVMO}, s{S_T0}, v{vVMO}
s_lshl_b32 s{S_T0}, s{S_TEAM}, 14
v_add_u32 v{vOMO}, s{S_T0}, v{vGOFF}""")
    a(f"""s_lshl_b32 s{S_T0}, s{S_WAVE}, 11
v_add_u32 v{vRW}, s{S_T0}, v{vL4}""")
    a(f"""v_bfe_u32 v{vT}, v{vLANE}, 2, 2
v_lshlrev_b32 v{vRR}, 9, v{vT}
v_bfe_u32 v{vT}, v{vLANE}, 2, 1
v_lshl_add_u32 v{vRR}, v{vT}, 5, v{vRR}
v_bfe_u32 v{vT}, v{vLANE}, 3, 1
v_lshl_add_u32 v{vRR}, v{vT}, 7, v{vRR}
v_bfe_u32 v{vT}, v{vLANE}, 4, 1
v_lshl_add_u32 v{vRR}, v{vT}, 6, v{vRR}
v_lshrrev_b32 v{vT}, 5, v{vLANE}
v_lshl_add_u32 v{vRR}, v{vT}, 5, v{vRR}
v_and_b32 v{vT}, 3, v{vLANE}
v_lshl_add_u32 v{vRR}, v{vT}, 3, v{vRR}
s_lshr_b32 s{S_T0}, s{S_WAVE}, 1
s_lshl_b32 s{S_T0}, s{S_T0}, 11
s_and_b32 s{S_T1}, s{S_WAVE}, 1
s_lshl_b32 s{S_T1}, s{S_T1}, 7
s_add_u32 s{S_T0}, s{S_T0}, s{S_T1}
v_add_u32 v{vRR}, s{S_T0}, v{vRR}""")
    a(f"""v_and_b32 v{vT}, 31, v{vLANE}
v_lshlrev_b32 v{vRV}, 2, v{vT}
v_lshrrev_b32 v{vT}, 5, v{vLANE}
v_lshl_add_u32 v{vRV}, v{vT}, 10, v{vRV}
v_add_u32 v{vRV}, s{S_T0}, v{vRV}""")
    a(f"""v_bfe_u32 v{vT}, v{vLANE}, 2, 3
v_lshlrev_b32 v{vKO}, 4, v{vT}
v_lshrrev_b32 v{vT}, 5, v{vLANE}
v_lshl_add_u32 v{vKO}, v{vT}, 8, v{vKO}
v_bfe_u32 v{vT}, v{vLANE}, 1, 1
v_lshl_add_u32 v{vKO}, v{vT}, 7, v{vKO}
v_and_b32 v{vT}, 1, v{vLANE}
v_lshl_add_u32 v{vKO}, v{vT}, 2, v{vKO}
s_lshr_b32 s{S_T0}, s{S_WAVE}, 1
s_lshl_b32 s{S_T0}, s{S_T0}, 9
s_and_b32 s{S_T1}, s{S_WAVE}, 1
s_lshl_b32 s{S_T1}, s{S_T1}, 3
s_add_u32 s{S_T0}, s{S_T0}, s{S_T1}
v_add_u32 v{vKO}, s{S_T0}, v{vKO}""")
    a(f"""v_lshlrev_b32 v{vPO}, 3, v{vLANE}
s_lshl_b32 s{S_T0}, s{S_WAVE}, 9
v_add_u32 v{vPO}, s{S_T0}, v{vPO}
s_lshl_b32 s{S_T0}, s{S_WAVE}, 8
v_add_u32 v{vMO}, s{S_T0}, v{vL4}
v_add_u32 v{vI16}, s{S_T0}, v{vL16}""")
    M0R = RP
    a(f"""v_bfe_u32 v{vT}, v{vLANE}, 2, 3
v_lshlrev_b32 v{vT2}, 11, v{vT}
v_lshrrev_b32 v{vT}, 5, v{vLANE}
v_lshl_add_u32 v{vT2}, v{vT}, 4, v{vT2}
v_and_b32 v{vT}, 3, v{vLANE}
v_lshl_add_u32 v{vT2}, v{vT}, 2, v{vT2}
s_lshl_b32 s{S_T0}, s{S_J}, 7
s_lshl_b32 s{S_T1}, s{S_WAVE}, 5
s_add_u32 s{S_T0}, s{S_T0}, s{S_T1}
buffer_load_dword v{M0R}, v{vT2}, s[{S_W2}:{S_W2+3}], s{S_T0} offen
s_waitcnt vmcnt(0)""")
    sstamp(a, 7, cfg)
    a("s_waitcnt lgkmcnt(0)")
    startup_barrier(a, MI + 2)
    def keep32():
        a(f"v_mfma_f32_32x32x16_bf16 {vr(QF,16)}, {vr(SENT,4)}, {vr(SENT,4)}, {vr(QF,16)}")
    L_K = L_W

    def epi(AC, lbase, pad, keep, tag, extra=None):
        sw = lambda p, r: f"v_permlane32_swap_b32 v{AC+8*p+r}, v{AC+8*p+4+r}"
        ad = lambda p, r: f"v_add_f32 v{AC+8*p+r}, v{AC+8*p+r}, v{AC+8*p+4+r}"
        wr = lambda p, r: f"ds_write_addtid_b32 v{AC+8*p+r} offset:{lbase + (p*4+r)*512 + (pad and (r % 2) * 32 + (r // 2) * 128)}"
        ex = extra or (lambda k: None)
        ex(0)
        for r in range(4):
            a(sw(0, r))
            if r % 2: ex(1 + r // 2)
        for r in range(4): a(ad(0, r))
        ex(3)
        for r in range(4):
            a(sw(1, r)); a(wr(0, r))
            if r % 2: ex(4 + r // 2)
        for r in range(4): a(ad(1, r))
        keep(0)
        for r in range(4): a(wr(1, r))
        probe(a, tag + "w", cfg)
        keep(1)
        a("s_waitcnt lgkmcnt(0)\ns_barrier")
        probe(a, tag + "b", cfg)

    def sum4(reads, keep):
        a(reads[0]); a(reads[1]); keep(2); a(reads[2]); a(reads[3]); keep(3)
        a("s_waitcnt lgkmcnt(2)")
        a(f"v_add_f32 v{RD}, v{RD}, v{RD+2}\nv_add_f32 v{RD+1}, v{RD+1}, v{RD+3}")
        a("s_waitcnt lgkmcnt(0)")
        a(f"v_add_f32 v{RD+4}, v{RD+4}, v{RD+6}\nv_add_f32 v{RD+5}, v{RD+5}, v{RD+7}")
        a(f"v_add_f32 v{RD}, v{RD}, v{RD+4}\nv_add_f32 v{RD+1}, v{RD+1}, v{RD+5}")

    def kpoll(loads, F, wbase, stamp_idx, o):
        def mm(f, ct):
            a(f"v_smfmac_f32_16x16x64_bf16 {vr(ACC+4*ct,4)}, {vr(F+4*f,4)}, {ar(wbase+(f*4+ct)*8,8)}, v{vIDX}")
        if o.get("pre", 0): a.fill(o["pre"])
        def consume(g, k, chk):
            for ct in range(4):
                mm(g, ct)
                if chk: a(chk[ct])
        ring_poll2(a, loads, [F + 4 * f for f in range(4)], vT, consume, a.uid("kj"), space=o.get("space", 4), on_first=lambda: stamp(a, stamp_idx, cfg), rfill=o.get("rfill", 3))

    a(f"""s_bcnt1_i32_b32 s{S_T0}, s{S_NEAR}
s_cmp_ge_u32 s{S_T0}, 4
s_cselect_b32 s{S_T0}, 0x2000, 0
s_add_u32 s{S_OFF_F}, s{S_OFF_F}, s{S_T0}
s_lshl_b32 m0, s{S_WAVE}, 12
s_barrier""")
    a.set_filler(vD)
    store_mode(a, f"buffer_store_dword v{M0R}, v{vMO}, {WS}, s{S_OFF_E} offen")
    a(f"s_mov_b32 s{S_STEP}, 0")
    for i in range(32): a(f"v_mov_b32 v{ACC+i}, 0")
    for i in range(16): a(f"v_mov_b32 v{G+i}, -1")

    a.label("V_loop")
    stamp(a, 0, cfg)
    a(f"s_add_u32 s85, s{S_OFF_B}, {WS_KM:#x}\ns_add_u32 s86, s{S_OFF_B}, {WS_VM:#x}")
    kpoll([f"buffer_load_dwordx4 {vr(G+4*i,4)}, v{vGOFF}, {WS}, s{S_OFF_A} offen offset:{1024*i} sc1" for i in range(4)], G, 0, 1, cfg.get("v_mem", {}))
    vq = [(f, ct) for p in range(2) for f in range(4) for ct in (2 * p, 2 * p + 1)]
    def vm_(n):
        for _ in range(min(n, len(vq))):
            f, ct = vq.pop(0)
            a(f"v_smfmac_f32_16x16x64_bf16 {vr(ACC2+4*ct,4)}, {vr(G+4*f,4)}, {vr(WV+(f*4+ct)*8,8)}, v{vIDX}")
    if cfg.get("kvpipe", 0):
        def parts(AC, lbase, pad):
            sw = lambda p, r: f"v_permlane32_swap_b32 v{AC+8*p+r}, v{AC+8*p+4+r}"
            ad = lambda p, r: f"v_add_f32 v{AC+8*p+r}, v{AC+8*p+r}, v{AC+8*p+4+r}"
            wr = lambda p, r: f"ds_write_addtid_b32 v{AC+8*p+r} offset:{lbase + (p*4+r)*512 + (pad and (r % 2) * 32 + (r // 2) * 128)}"
            return sw, ad, wr
        sw, ad, wr = parts(ACC, L_K, 1)
        kseq = [sw(0, 0), sw(0, 1), sw(0, 2), sw(0, 3), ad(0, 0) + "\n" + ad(0, 1), ad(0, 2) + "\n" + ad(0, 3),
                sw(1, 0) + "\n" + wr(0, 0), sw(1, 1) + "\n" + wr(0, 1), sw(1, 2) + "\n" + wr(0, 2), sw(1, 3) + "\n" + wr(0, 3),
                ad(1, 0) + "\n" + ad(1, 1), ad(1, 2) + "\n" + ad(1, 3), "\n".join(wr(1, r) for r in range(4))]
        every = cfg.get("kvevery", 1)
        for k, x in enumerate(kseq):
            if k % every == 0: vm_(1)
            a(x)
        vm_(cfg.get("kvw", 3))
        a(f"s_waitcnt lgkmcnt(0)\ns_barrier\ns_cmp_eq_u32 s{S_MODE}, 1")
        for src in range(4): a(f"ds_read_b64 {vr(RD+2*src,2)}, v{vRR} offset:{L_K + src*4096}")
        vm_(16)
        sw, ad, wr = parts(ACC2, L_MEM, 0)
        for r in range(4): a(sw(0, r))
        a("s_waitcnt lgkmcnt(0)")
        a(f"""v_add_f32 v{RD}, v{RD}, v{RD+2}
v_add_f32 v{RD+1}, v{RD+1}, v{RD+3}
v_add_f32 v{RD+4}, v{RD+4}, v{RD+6}
v_add_f32 v{RD+5}, v{RD+5}, v{RD+7}
v_add_f32 v{RD}, v{RD}, v{RD+4}
v_add_f32 v{RD+1}, v{RD+1}, v{RD+5}
v_cvt_pk_bf16_f32 v{MI}, v{RD}, v{RD+1}""")
        store_mode2(a, f"buffer_store_dword v{MI}, v{vKO}, {WS}, s85 offen")
        stamp(a, 6, cfg)
        for r in range(4): a(ad(0, r))
        for r in range(4):
            a(sw(1, r)); a(wr(0, r))
        for r in range(4): a(ad(1, r))
        keep32()
        for r in range(4): a(wr(1, r))
        keep32()
        a("s_waitcnt lgkmcnt(0)\ns_barrier")
    else:
        nk = cfg.get("vk", (1, 3, 1, 3))
        ne = cfg.get("ve", (0, 0, 0, 0, 0, 0))
        epi(ACC, L_K, 1, lambda k: vm_(nk[k]), "kk", lambda k: vm_(ne[k]))
        a(f"s_cmp_eq_u32 s{S_MODE}, 1")
        sum4([f"ds_read_b64 {vr(RD+2*src,2)}, v{vRR} offset:{L_K + src*4096}" for src in range(4)], lambda k: vm_(nk[k]))
        a(f"v_cvt_pk_bf16_f32 v{MI}, v{RD}, v{RD+1}")
        store_mode2(a, f"buffer_store_dword v{MI}, v{vKO}, {WS}, s85 offen")
        stamp(a, 6, cfg)
        vm_(16)
        epi(ACC2, L_MEM, 0, lambda k: keep32(), "kv")
    sum4([f"ds_read2st64_b32 {vr(RD+2*src,2)}, v{vRV} offset0:{(L_MEM + src*4096)//256} offset1:{(L_MEM + src*4096)//256 + 2}" for src in range(4)], lambda k: keep32())
    a(f"v_cvt_pk_bf16_f32 v{MI+1}, v{RD}, v{RD+1}")
    store_mode2(a, f"buffer_store_dword v{MI+1}, v{vVMO}, {WS}, s86 offen")
    stamp(a, 2, cfg)
    if "post_vm" in hooks: hooks["post_vm"](MI + 2)
    a(f"""s_cmp_eq_u32 s{S_STEP}, {NSEG-1}
s_cbranch_scc1 L_done""")
    a("s_waitcnt vmcnt(2)")
    for i in range(32): a(f"v_mov_b32 v{ACC+i}, 0")
    for i in range(16): a(f"v_mov_b32 v{G+i}, -1\nv_mov_b32 v{OF+i}, -1")
    for i in range(6): a(f"v_mov_b32 v{RP+i}, -1")
    a(f"""s_and_b32 s88, s{S_STEP}, 7
s_lshl_b32 s88, s88, 16
s_add_u32 s88, s88, {WS_OM:#x}
s_mov_b32 s{S_PCUR}, s{S_OFF_F}""")
    for x in range(1, 4):
        a(f"s_xor_b32 s{S_T0+x}, s{S_PCUR}, {x << 16:#x}")
    if cfg.get("v_sleep"): a(f"s_sleep {cfg['v_sleep']}")
    kpoll([f"buffer_load_dwordx4 {vr(OF+4*f,4)}, v{vOMO}, {WS}, s88 offen offset:{1024*f} sc1" for f in range(4)], OF, 128, 3, cfg.get("v_om", {}))
    epi(ACC, L_RED, 1, lambda k: keep32(), "k3")
    sum4([f"ds_read_b64 {vr(RD+2*src,2)}, v{vRR} offset:{L_RED + src*4096}" for src in range(4)], lambda k: keep32())
    o = cfg.get("v_part", {})
    l3 = "\n".join(f"buffer_load_dwordx2 {vr(RP+2*(x-1),2)}, v{vPO}, {WS}, s{S_T0+x} offen sc1" for x in range(1, 4))
    a(f"buffer_store_dwordx2 {vr(RD,2)}, v{vPO}, {WS}, s{S_PCUR} offen sc1")
    stamp(a, 4, cfg)
    a(f"""s_add_u32 s{S_OFF_E}, s{S_OFF_E}, 0x4000
s_bitset0_b32 s{S_OFF_E}, 17
s_add_u32 s{S_OFF_A}, s{S_OFF_A}, 0x4000
s_bitset0_b32 s{S_OFF_A}, 17
s_add_u32 s{S_OFF_B}, s{S_OFF_B}, 0x10000
s_bitset0_b32 s{S_OFF_B}, 19
s_add_u32 s{S_OFF_F}, s{S_OFF_F}, 0x40000
s_bitset0_b32 s{S_OFF_F}, 21""")
    if o.get("presleep", 3): a(f"s_sleep {o.get('presleep', 3)}")
    for i in range(16): a(f"v_mov_b32 v{ACC+i}, 0")
    pp = SPoll(a, [l3], [list(range(RP, RP + 6))], vT, cap=o.get("cap", 30), sleep=o.get("sleep", 4), pre_sleep=o.get("pre", 12))
    pp.first(prefill=False)
    a(f"""s_cmp_eq_u32 s{S_MODE}, 1
v_pk_add_f32 {vr(RD,2)}, {vr(RD,2)}, {vr(RP,2)}
v_pk_add_f32 {vr(RD+2,2)}, {vr(RP+2,2)}, {vr(RP+4,2)}
v_pk_add_f32 {vr(RD,2)}, {vr(RD,2)}, {vr(RD+2,2)}
v_cvt_pk_bf16_f32 v{MI}, v{RD}, v{RD+1}""")
    store_mode2(a, f"buffer_store_dword v{MI}, v{vMO}, {WS}, s{S_OFF_E} offen")
    stamp(a, 5, cfg)
    stamp_flush(a, cfg)
    a(f"""s_add_u32 s{S_STEP}, s{S_STEP}, 1
s_branch V_loop""")
    a.flush_deferred()
    a.set_filler(None)
```

```python
import sys
from asmgen import *
from chain import *
from chain5 import s_cu, v_cu, DBG, WS, WS_CNT, wait_all_arrived
from gemm import *
from tail import tail_task
from battn import WS_QB, WS_KB, WS_VB, WS_OB
from battn2 import battn_task

PFX = "concat_heads__memory_aug_recurrent_mem_tr__mha_block__prompt"
NAME = PFX + "_kernel"
C_Q, C_TK, C_OVF = 32, 8, 42
C_QKV, C_BQKV, C_BAT, C_OXB, C_OXS, C_POOL = 0, 144, 148, 156, 168, 200
NOSIG = 255
S_INIT = 47
T_MQKV, T_BQKV, T_BB, T_ATT, T_OB, T_OA, T_OAM, T_PF, T_TAIL = range(9)
L_TICKET = 0x27f00
P_AX, P_WQ, P_WK, P_WV, P_WO, P_BX, P_BW, P_BO = 60, 62, 64, 66, 68, 70, 72, 74
S_D0, S_D1, S_D2, S_GRP, S_P1, S_P2, S_TYP, S_MAT, S_EB = 84, 85, 86, 58, 59, 88, 89, 93, 92
S_TAB = 90
S_OUT = 24


def desc(typ, p1, p2, wait=None, sig=NOSIG):
    wi, wt = wait if wait else (NOSIG, 0)
    return (typ | p1 << 4 | p2 << 12, wi | wt << 8 | sig << 20)


def coop(tiles, n=256):
    out = []
    kx = lambda d: (d[0] & 15, (d[0] >> 4) & 255)
    kw = lambda d: (d[0] & 15, (d[0] >> 12) & 255)
    def share(d, key):
        grp = [t for t in tiles if key(t) == key(d)]
        if len(grp) == 1: return 0, 0
        i = grp.index(d)
        lo, hi = i * n // len(grp), (i + 1) * n // len(grp)
        return lo, hi - lo
    for d in tiles:
        xf, xc = share(d, kx); wf, wc = share(d, kw)
        assert (xc + 63) // 64 + (wc + 63) // 64 <= 4
        out.append(d + (xf | xc << 8 | wf << 16 | wc << 24,))
    return out


def ox_counter(blk):
    return (C_OXB + blk, 128) if blk < 12 else None


def schedule(cfg):
    L = [[] for _ in range(8)]
    def mq(rb, x):
        return [desc(T_MQKV, rb, mat * 32 + 8 * x + i, sig=C_QKV + 16 + (8 * x + i) // 2) for i in range(8) for mat in (1, 2, 0)]
    def bq(mb, x):
        return [desc(T_BQKV, mb, mat * 16 + 4 * x + i, sig=C_QKV + (1 + mb) * 16 + 4 * x + i) for i in range(4) for mat in (1, 2, 0)]
    def bb(hg):
        return [desc(T_BB, mb, mat * 4 + hg, sig=C_BQKV + hg) for mat in (1, 2, 0) for mb in range(8)]
    def att(h):
        return [desc(T_ATT, h, qb, wait=(C_BQKV + h // 8, 24), sig=C_BAT + qb) for qb in range(8)]
    def ob(qb):
        return [desc(T_OB, 2 * qb, nb, wait=(C_BAT + qb, 32)) for nb in range(8)]
    def oxw(blk):
        return (C_OXB + blk, 256) if blk < 10 else (C_OXS + (blk - 10) * 4 + 3, 64)
    def oa(b2):
        return [desc(T_OA, 2 * b2, nb, wait=oxw(2 * b2 + 1)) for nb in range(8)]
    def oam(blk):
        return [desc(T_OAM, blk, nb, wait=oxw(blk)) for nb in range(8)]
    def bqr(mbs, x):
        cols = list(zip(*[bq(mb, x) for mb in mbs]))
        return [t for c in cols for t in c]
    def pf(mat, pat, off, rows=128):
        return (T_PF | mat << 4 | pat << 12, off, rows // 2)
    def slowcols(g, mats):
        return [pf(m, 0, (g * 1024 * 2048 + ln * 128) if m == 3 else (16 * g + ln) * 128) for m in mats for ln in (3, 11)]
    for g in range(4):
        L[g] += [pf(3, 1, (g * 1024 + k * 128) * 2048) for k in range(8)]
    t0 = cfg["tail_seg0"]
    nblk = t0 // 4
    def tail(cs, k): return desc(T_TAIL, cs, 2 * t0 + k)
    def attq(hg, qb):
        if cfg.get("pool", 1): return [desc(T_ATT, hg, qb, wait=(C_BQKV + hg, 24))] * 8
        return [desc(T_ATT, 8 * hg + i, qb, wait=(C_BQKV + hg, 24), sig=C_BAT + qb) for i in range(8)]
    for x in range(4):
        pools = {"A": [attq(x, q) for q in range(8)], "B": [coop(bqr((5, 6), x))], "C": [coop(bq(7, x))],
                 "O": [oa(x)], "M": [oam(b) for b in range(8 + x, nblk, 4)], "o": [ob(b) for b in (x, 4 + x)]}
        if cfg["tail_stride"] == 4: pools["T"] = [[tail(i, x) for i in range(8 * k, 8 * k + 8)] for k in range(4)]
        else: pools["T"] = [[tail(16 * (x // 2) + i, x % 2) for i in range(8 * k, 8 * k + 8)] for k in range(2)]
        allpf = [(5, r) for r in range(0, 2048, 128)] + [(6, r) for r in range(0, 3072, 128)] + [(7, r) for r in range(0, 1024, 128)] + [(4, r) for r in range(1280, 2048, 128)]
        bpf = [pf(m, 1, r * 2048, 128) for m, r in allpf[x::4]]
        L[x] += coop(bq(1, x)[8:]) + bpf[:cfg.get("nbpf", 12)] + [(15, 0)] * cfg.get("small_quit", 2)
        pools["C"] = [coop(bq(4, x)[8:] + bq(7, x)[8:]), coop(bq(7, x)[:8])]
        if cfg.get("pool", 1):
            for q in range(8): L[x] += attq(x, q)
            pools["A"] = [attq(x, q) for q in range(8)]
        else:
            take = cfg.get("small", ["A0", "A1"])
            for it in take:
                if int(it[1:]) < len(pools[it[0]]): L[x] += pools[it[0]][int(it[1:])]
            for k in pools:
                pools[k] = [b for i, b in enumerate(pools[k]) if f"{k}{i}" not in take]
        l = L[4 + x]
        xpf = [pf(4, 1, k * 32 * 2048, 32) for k in range(8)]
        nq = cfg.get("wpf_rows", 256)
        wpf = [pf(m, 1, (1024 - nq + h * nq // 2) * 8192 + x * 2048, nq // 2) for m in range(3) for h in range(2)]
        l += xpf + mq(0, x) + (wpf if cfg.get("wpf") else slowcols(x, (0, 1, 2))) + coop(bq(1, x)[:8]) + coop(bqr((2, 3), x)) + coop(bq(4, x)[:8]) + coop(bb(x))
        pools["c"] = []
        od = cfg.get("orders", {0: "CBOAAAAACAMoTTo", 1: "CBOAAAAACAMoTTo", 2: "CBAOAAAACAoMTTo", 3: "CBAAAAOACAoTMTo"})[x]
        if "c" in od:
            pools["C"] = [coop(bq(7, x)[:8])]; pools["c"] = [coop(bq(7, x)[8:])]
        for ch in od:
            if pools[ch]: l += pools[ch].pop(0)
        if cfg.get("pool", 1): pools["A"] = []
        assert not any(pools.values()), {k: len(v) for k, v in pools.items()}
    return L


def worker(a, cfg):
    big = Gemm(8, 8, 2, dict({"touch": True}, **cfg.get("big", {})))
    med = Gemm(4, 4, 4, cfg.get("med", {}))
    wid = Gemm(8, 4, 3, cfg.get("wid", {}))
    lists = schedule(cfg)
    MAXL = max(len(l) for l in lists)
    a(f"""v_and_b32 v0, 63, v0
v_lshlrev_b32 v{V_L16}, 4, v0
s_load_dwordx2 s[{P_AX}:{P_AX+1}], s[0:1], 0
s_load_dwordx2 s[{P_WQ}:{P_WQ+1}], s[0:1], 16
s_load_dwordx4 s[{P_WK}:{P_WK+3}], s[0:1], 24
s_load_dwordx2 s[{P_WO}:{P_WO+1}], s[0:1], 40
s_load_dwordx2 s[{P_BX}:{P_BX+1}], s[0:1], 56
s_load_dwordx4 s[{P_BW}:{P_BW+3}], s[0:1], 64
s_getpc_b64 s[{S_TAB}:{S_TAB+1}]
W_pc:
s_add_u32 s{S_TAB}, s{S_TAB}, W_table-W_pc
s_addc_u32 s{S_TAB+1}, s{S_TAB+1}, 0
s_waitcnt lgkmcnt(0)""")
    for p in range(P_AX, P_BO + 2, 2): a(f"s_and_b32 s{p+1}, s{p+1}, 0xffff")
    srd(a, S_OUT, 80, 2048 * 4096)
    row_voff(a)
    a(f"""s_mov_b32 s{G_SX+3}, 0x20000
s_mov_b32 s{G_SW+3}, 0x20000
s_mov_b32 s{G_NXOFF}, {OOB:#x}
s_mov_b32 s{G_NWOFF}, {OOB:#x}
v_mov_b32 v5, {L_TICKET:#x}
v_mov_b32 v6, 0""")
    a(f"s_mov_b32 s{S_INIT}, 0")
    def init_check(vt):
        sk = a.uid("ic")
        a(f"s_cmp_eq_u32 s{S_INIT}, 1\ns_cbranch_scc1 {sk}")
        wait_all_arrived(a, vt, 37)
        a(f"s_mov_b32 s{S_INIT}, 1")
        a.label(sk)
    S_PE, S_PEB, S_PSIG, S_PC, S_TKQ, S_RET = 32, 31, 49, 50, 29, 3
    a(f"""s_mov_b32 s{S_PE}, 0
s_mov_b32 s{S_PSIG}, {NOSIG}
s_mov_b32 s{S_TKQ}, 0""")
    def ticket_ool(back):
        lb = a.uid("tk")
        a.defer(lambda: a(f"""{lb}:
s_mov_b32 s{S_TKQ}, 1
s_cmp_lg_u32 s{S_WAVE}, 0
s_cbranch_scc1 {back}
v_mov_b32 v7, 1
s_lshl_b32 s38, s{S_GRP}, 2
s_mov_b64 exec, 1
buffer_atomic_add v7, v6, {DBG}, s38 offen offset:{C_Q*4} sc0 sc1
s_mov_b64 exec, -1
s_branch {back}"""))
        return lb
    def h_ticket(cnt):
        back = a.uid("tb")
        return f"s_cmp_eq_u32 s{G_CNT}, {cnt}\ns_cbranch_scc1 {ticket_ool(back)}\n{back}:"
    def h_ticket_now():
        back = a.uid("tb")
        return f"s_cmp_eq_u32 s{S_TKQ}, 0\ns_cbranch_scc1 {ticket_ool(back)}\n{back}:"
    def h_pre_bar():
        sk = a.uid("pb")
        return f"s_cmp_eq_u32 s{S_PSIG}, {NOSIG}\ns_cbranch_scc1 {sk}\ns_waitcnt vmcnt(0)\n{sk}:"
    def h_post_bar():
        lb, back = a.uid("sg"), a.uid("sb")
        def ool():
            a(f"""{lb}:
s_lshl_b32 s38, s{S_PSIG}, 7
s_mov_b32 s{S_PSIG}, {NOSIG}
s_cmp_lg_u32 s{S_WAVE}, 0
s_cbranch_scc1 {back}""")
            init_check(248)
            a(f"""s_add_u32 s38, s38, {WS_CNT:#x}
v_mov_b32 v3, 1
s_mov_b64 exec, 1
buffer_atomic_add v3, v6, {WS}, s38 offen sc1
s_mov_b64 exec, -1
s_branch {back}""")
        a.defer(ool)
        return f"s_cmp_lg_u32 s{S_PSIG}, {NOSIG}\ns_cbranch_scc1 {lb}\n{back}:"
    hooks = {"ticket": h_ticket, "ticket_now": h_ticket_now, "pre_bar": h_pre_bar, "post_bar": h_post_bar, "epi_first": cfg.get("epi_first", 1)}
    big.hooks = med.hooks = wid.hooks = hooks
    def run_pending(ret):
        a(f"s_mov_b32 s{S_RET}, {ret}\ns_cmp_lg_u32 s{S_PE}, 0\ns_cbranch_scc1 W_epi\nW_ret{ret}:")
    def flush():
        a("s_waitcnt vmcnt(0)\ns_barrier"); a(h_post_bar())

    a(f"""s_sub_u32 s37, s{S_J}, 24
s_cmp_lt_u32 s{S_GRP}, 4
s_cselect_b32 s36, s37, s{S_J}
s_cselect_b32 s{S_J}, 8, 32
s_branch W_have""")
    a.label("W_next")
    if cfg.get("wstamps"):
        sk = a.uid("ws")
        a(f"""s_cmp_lg_u32 s{S_WAVE}, 1
s_cbranch_scc1 {sk}
s_memrealtime s[44:45]
s_memtime s[98:99]
s_waitcnt lgkmcnt(0)
s_sub_u32 s98, s98, s76
v_mov_b32 v60, s40
v_mov_b32 v61, s42
v_mov_b32 v62, s44
v_mov_b32 v63, s98
s_lshl_b32 s36, s46, 4
s_add_u32 s36, s36, {0x8000000:#x}
s_mov_b64 exec, 1
buffer_store_dwordx4 v[60:63], v6, {WS}, s36 offen
s_mov_b64 exec, -1
{sk}:""")
    a(f"""s_lshr_b32 s{S_PSIG}, s{S_D1}, 20
s_mov_b32 s{S_TKQ}, 0
s_cmp_eq_u32 s{S_D0+3}, 0
s_cbranch_scc1 W_nu
s_waitcnt vmcnt(0)
W_nu:
s_cmp_lg_u32 s{S_WAVE}, 0
s_cbranch_scc1 W_tk
s_mov_b64 exec, 1
ds_write_b32 v5, v7
s_mov_b64 exec, -1
W_tk:
s_waitcnt lgkmcnt(0)
s_barrier
s_cmp_eq_u32 s{S_D0+3}, 0
s_cbranch_scc1 W_nu2""")
    a(h_post_bar())
    a(f"""W_nu2:
ds_read_b32 v1, v5
s_waitcnt lgkmcnt(0)
v_readfirstlane_b32 s36, v1
s_nop 3
s_add_u32 s36, s36, s{S_J}
W_have:
s_min_u32 s36, s36, {MAXL}
s_mul_i32 s37, s{S_GRP}, {MAXL+1}
s_add_u32 s36, s36, s37
s_lshl_b32 s36, s36, 4
s_load_dwordx4 s[{S_D0}:{S_D0+3}], s[{S_TAB}:{S_TAB+1}], s36
s_waitcnt lgkmcnt(0)
s_and_b32 s{S_TYP}, s{S_D0}, 15
s_bfe_u32 s{S_P1}, s{S_D0}, 0x80004
s_bfe_u32 s{S_P2}, s{S_D0}, 0x8000c""")
    if cfg.get("wstamps"):
        a(f"s_memrealtime s[40:41]\ns_lshr_b32 s46, s36, 4")
    a(f"""s_cmp_lt_u32 s{S_TYP}, {T_ATT}
s_cbranch_scc1 W_go""")
    a(f"""s_cmp_ge_u32 s{S_TYP}, {T_PF}
s_cbranch_scc1 W_slow
s_cmp_lg_u32 s{S_WAVE}, 0
s_cbranch_scc1 W_q2""")
    init_check(40)
    a(f"""s_and_b32 s39, s{S_D1}, 0xff
s_lshl_b32 s39, s39, 7
s_add_u32 s39, s39, {WS_CNT:#x}
buffer_load_dword v1, v6, {WS}, s39 offen sc1
s_waitcnt vmcnt(0)
s_mov_b64 exec, 1
ds_write_b32 v5, v1 offset:4
s_mov_b64 exec, -1
s_waitcnt lgkmcnt(0)
W_q2:
s_barrier
ds_read_b32 v1, v5 offset:4
s_bfe_u32 s38, s{S_D1}, 0xc0008
s_waitcnt lgkmcnt(0)
v_readfirstlane_b32 s36, v1
s_nop 3
s_cmp_ge_u32 s36, s38
s_cbranch_scc1 W_go
W_slow:""")
    run_pending(1)
    flush()
    a(f"""s_cmp_eq_u32 s{S_TYP}, 15
s_cbranch_scc1 L_done
s_cmp_eq_u32 s{S_TYP}, {T_PF}
s_cbranch_scc1 W_pf
s_cmp_eq_u32 s{S_TYP}, {T_TAIL}
s_cbranch_scc1 W_tail
s_cmp_lg_u32 s{S_WAVE}, 0
s_cbranch_scc1 W_go2""")
    init_check(200)
    a(f"""s_bfe_u32 s38, s{S_D1}, 0xc0008
s_and_b32 s39, s{S_D1}, 0xff
s_lshl_b32 s39, s39, 7
s_add_u32 s39, s39, {WS_CNT:#x}
W_dep:""")
    budget_head(a)
    a(f"""buffer_load_dword v1, v6, {WS}, s39 offen sc1
s_waitcnt vmcnt(0)
v_readfirstlane_b32 s36, v1
s_nop 3
s_cmp_ge_u32 s36, s38
s_cbranch_scc1 W_go2
s_sleep {cfg.get("dep_sleep", 16)}
s_branch W_dep
W_go2:
s_barrier
W_go:""")
    if cfg.get("wstamps"):
        a(f"s_memrealtime s[42:43]\ns_memtime s[76:77]\ns_waitcnt lgkmcnt(0)")
    a(f"""s_cmp_eq_u32 s{S_TYP}, {T_ATT}
s_cbranch_scc1 W_att
s_cmp_ge_u32 s{S_TYP}, {T_OB}
s_cbranch_scc1 W_out
s_mov_b32 s{G_NST}, 16
s_mov_b32 s{G_PX}, 2048
s_mov_b32 s{G_XSTEP}, 128
s_mov_b32 s{G_SX+2}, {2048*2048:#x}
s_cmp_eq_u32 s{S_TYP}, {T_BB}
s_cbranch_scc1 W_bb""")
    def sel_w():
        a(f"""s_mov_b32 s{G_SX}, s{P_AX}
s_mov_b32 s{G_SX+1}, s{P_AX+1}
s_cmp_eq_u32 s{S_MAT}, 1
s_cselect_b32 s{G_SW}, s{P_WK}, s{P_WQ}
s_cselect_b32 s{G_SW+1}, s{P_WK+1}, s{P_WQ+1}
s_cselect_b32 s36, {WS_KX:#x}, {WS_QX:#x}
s_cmp_eq_u32 s{S_MAT}, 2
s_cselect_b32 s{G_SW}, s{P_WV}, s{G_SW}
s_cselect_b32 s{G_SW+1}, s{P_WV+1}, s{G_SW+1}
s_cselect_b32 s36, {WS_VX:#x}, s36
s_add_u32 s{S_EB}, s{S_EB}, s36
s_mov_b32 s{G_SW+2}, {1024*8192:#x}
s_mov_b32 s{G_PW}, 8192""")
    a(f"""s_cmp_eq_u32 s{S_TYP}, {T_BQKV}
s_cbranch_scc1 W_abig""")
    a(f"""s_lshr_b32 s{S_MAT}, s{S_P2}, 5
s_and_b32 s38, s{S_P2}, 31
s_lshl_b32 s{G_XOFF}, s{S_P1}, 19
s_lshl_b32 s{G_WOFF}, s38, 8
s_lshl_b32 s36, s{S_P1}, 1
s_lshr_b32 s37, s{S_WAVE}, 1
s_add_u32 s36, s36, s37
s_lshl_b32 s{S_EB}, s36, 20
s_lshl_b32 s36, s38, 13
s_add_u32 s{S_EB}, s{S_EB}, s36
s_and_b32 s37, s{S_WAVE}, 1
s_cmp_eq_u32 s{S_MAT}, 2
s_cselect_b32 s36, 12, 11
s_lshl_b32 s37, s37, s36
s_add_u32 s{S_EB}, s{S_EB}, s37""")
    sel_w()
    def done(pe):
        a(f"""s_mov_b32 s{S_PE}, {pe}
s_mov_b32 s{S_PEB}, s{S_EB}
s_mov_b32 s{S_PC}, s{S_C}
s_mov_b32 s{S_PC+1}, s{S_C}
s_waitcnt vmcnt(0)""")
        if cfg.get("epi_first", 1): a(f"s_mov_b32 s{S_RET}, 6\ns_branch W_epi")
        else: a("s_branch W_next")
    wid.setup(a, S_WAVE, False)
    if wid.touch: wid.touch_setup(a, S_WAVE, S_D2)
    wid.prologue(a, False)
    run_pending(2)
    wid.prologue_wait(a, False)
    a(f"s_cmp_eq_u32 s{S_MAT}, 2\ns_cbranch_scc1 W_mv")
    wid.tile(a, "W", False); done(1)
    a.label("W_mv")
    wid.tile(a, "X", False); done(2)
    a.label("W_abig")
    a(f"""s_lshr_b32 s{S_MAT}, s{S_P2}, 4
s_and_b32 s38, s{S_P2}, 15
s_lshl_b32 s{G_XOFF}, s{S_P1}, 19
s_lshl_b32 s{G_WOFF}, s38, 9
s_lshl_b32 s36, s{S_P1}, 1
s_lshr_b32 s37, s{S_WAVE}, 1
s_add_u32 s36, s36, s37
s_lshl_b32 s{S_EB}, s36, 20
s_lshl_b32 s36, s38, 1
s_and_b32 s37, s{S_WAVE}, 1
s_add_u32 s36, s36, s37
s_lshl_b32 s36, s36, 13
s_add_u32 s{S_EB}, s{S_EB}, s36""")
    sel_w()
    a("s_branch W_biggo")
    a.label("W_bb")
    cb = f32bits(32 ** -0.5 * LOG2E)
    a(f"""s_lshr_b32 s{S_MAT}, s{S_P2}, 2
s_lshl_b32 s{G_XOFF}, s{S_P1}, 19
s_lshl_b32 s{G_WOFF}, s{S_P2}, 9
s_and_b32 s36, s{S_P2}, 3
s_lshl_b32 s36, s36, 1
s_and_b32 s37, s{S_WAVE}, 1
s_add_u32 s36, s36, s37
s_lshl_b32 s{S_EB}, s36, 19
s_lshl_b32 s36, s{S_P1}, 1
s_lshr_b32 s37, s{S_WAVE}, 1
s_add_u32 s36, s36, s37
s_lshl_b32 s36, s36, 13
s_add_u32 s{S_EB}, s{S_EB}, s36
s_lshl_b32 s36, s{S_MAT}, 22
s_add_u32 s{S_EB}, s{S_EB}, s36
s_add_u32 s{S_EB}, s{S_EB}, {WS_QB:#x}
s_cmp_eq_u32 s{S_MAT}, 0
s_cselect_b32 s{S_C}, {cb:#x}, 1.0
s_mov_b32 s{S_C+1}, s{S_C}
s_mov_b32 s{G_SX}, s{P_BX}
s_mov_b32 s{G_SX+1}, s{P_BX+1}
s_mov_b32 s{G_SW}, s{P_BW}
s_mov_b32 s{G_SW+1}, s{P_BW+1}
s_mov_b32 s{G_SW+2}, {1024*6144:#x}
s_mov_b32 s{G_PW}, 6144""")
    a.label("W_biggo")
    big.setup(a, S_WAVE, False)
    if big.touch: big.touch_setup(a, S_WAVE, S_D2)
    big.prologue(a, False)
    run_pending(3)
    big.prologue_wait(a, False)
    a(f"s_cmp_eq_u32 s{S_MAT}, 2\ns_cbranch_scc1 W_bv")
    big.tile(a, "W", False)
    a(f"s_add_u32 s36, s{S_TYP}, 2"); done("s36")
    a.label("W_bv")
    big.tile(a, "X", False)
    a(f"s_add_u32 s36, s{S_TYP}, 4"); done("s36")
    a.label("W_out")
    a(f"""s_mov_b32 s{G_SX}, s{S_WS}
s_mov_b32 s{G_SX+1}, s{S_WS+1}
s_mov_b32 s{G_SX+2}, s{S_WS+2}
s_mov_b32 s{G_PX}, 64
s_mov_b32 s{G_PW}, 2048
s_mov_b32 s{G_XSTEP}, 0x4000
s_lshl_b32 s{G_WOFF}, s{S_P2}, 8
s_lshl_b32 s{S_EB}, s{S_P1}, 19
s_lshr_b32 s37, s{S_WAVE}, 1
s_cmp_eq_u32 s{S_TYP}, {T_OAM}
s_cselect_b32 s36, 18, 19
s_lshl_b32 s37, s37, s36
s_add_u32 s{S_EB}, s{S_EB}, s37
s_lshl_b32 s36, s{S_P2}, 1
s_and_b32 s37, s{S_WAVE}, 1
s_add_u32 s36, s36, s37
s_lshl_b32 s36, s36, 7
s_add_u32 s{S_EB}, s{S_EB}, s36
s_cmp_lg_u32 s{S_TYP}, {T_OB}
s_cselect_b32 s{G_SW}, s{P_WO}, s{P_BO}
s_cselect_b32 s{G_SW+1}, s{P_WO+1}, s{P_BO+1}
s_mov_b32 s36, {1024*2048:#x}
s_cselect_b32 s{G_SW+2}, {4096*2048:#x}, s36
s_cselect_b32 s{G_NST}, 64, 16
s_cselect_b32 s36, 20, 18
s_mov_b32 s37, {WS_OB - 4096:#x}
s_cselect_b32 s37, {WS_OX - 4096:#x}, s37
s_cselect_b32 s38, 0, 2048
s_lshl_b32 s{G_XOFF}, s{S_P1}, s36
s_lshl_b32 s{G_BLK}, 1, s36
s_add_u32 s{G_XOFF}, s{G_XOFF}, s37
s_add_u32 s{S_EB}, s{S_EB}, s38
s_cmp_eq_u32 s{S_TYP}, {T_OAM}
s_cbranch_scc1 W_oam""")
    wid.setup(a, S_WAVE, True, half=True)
    wid.prologue(a, True, "sc1")
    run_pending(4)
    wid.prologue_wait(a, True)
    wid.tile(a, "W", True, "sc1"); done(8)
    a.label("W_oam")
    med.setup(a, S_WAVE, True, half=True)
    med.prologue(a, True, "sc1")
    med.prologue_wait(a, True)
    med.tile(a, "W", True, "sc1"); done(7)
    a.label("W_epi")
    for pe in range(1, 7): a(f"s_cmp_eq_u32 s{S_PE}, {pe}\ns_cbranch_scc1 W_epi{pe}")
    row_voff(a)
    a(f"s_cmp_eq_u32 s{S_PE}, 8\ns_cbranch_scc1 W_epi8")
    med.epilogue(a, med.ent_row(), S_OUT, S_PEB, V_ROW, swap=True)
    a("s_branch W_epiend")
    a.label("W_epi8")
    wid.epilogue(a, wid.ent_row(), S_OUT, S_PEB, V_ROW, swap=True)
    a.label("W_epiend")
    a(f"""s_mov_b32 s{S_PE}, 0
s_cmp_eq_u32 s{S_RET}, 6
s_cbranch_scc1 W_next
s_cmp_eq_u32 s{S_RET}, 1
s_cbranch_scc1 W_ret1
s_cmp_eq_u32 s{S_RET}, 2
s_cbranch_scc1 W_ret2
s_cmp_eq_u32 s{S_RET}, 4
s_cbranch_scc1 W_ret4
s_cmp_eq_u32 s{S_RET}, 5
s_cbranch_scc1 W_ret5
s_branch W_ret3""")
    for pe, g_, ent, vo, sc_ in ((1, wid, wid.ent_a_qk(), None, None), (2, wid, wid.ent_a_v(), None, None), (3, big, big.ent_a_qk(), None, None),
                                 (4, big, big.ent_b_qk32(), True, S_PC), (5, big, big.ent_a_v(), None, None), (6, big, big.ent_b_v32(), False, None)):
        a.label(f"W_epi{pe}")
        if vo is not None: b32_voff(a, 38, vo)
        g_.epilogue(a, ent, S_WS, S_PEB, V_L16 if vo is None else 38, "sc1", scale=sc_)
        a("s_branch W_epiend")
    a.label("W_pf")
    a(f"""s_cmp_eq_u32 s{S_P1}, 1
s_cselect_b32 s{G_SW}, s{P_WK}, s{P_WQ}
s_cselect_b32 s{G_SW+1}, s{P_WK+1}, s{P_WQ+1}
s_cmp_eq_u32 s{S_P1}, 2
s_cselect_b32 s{G_SW}, s{P_WV}, s{G_SW}
s_cselect_b32 s{G_SW+1}, s{P_WV+1}, s{G_SW+1}
s_cmp_eq_u32 s{S_P1}, 3
s_cselect_b32 s{G_SW}, s{P_WO}, s{G_SW}
s_cselect_b32 s{G_SW+1}, s{P_WO+1}, s{G_SW+1}
s_cselect_b32 s38, 11, 13
s_mov_b32 s{G_SW+2}, {1024*8192:#x}
s_cmp_eq_u32 s{S_P1}, 4
s_cselect_b32 s{G_SW}, s{P_AX}, s{G_SW}
s_cselect_b32 s{G_SW+1}, s{P_AX+1}, s{G_SW+1}
s_cselect_b32 s{G_SW+2}, {2048*2048:#x}, s{G_SW+2}
s_cmp_eq_u32 s{S_P1}, 5
s_cselect_b32 s{G_SW}, s{P_BX}, s{G_SW}
s_cselect_b32 s{G_SW+1}, s{P_BX+1}, s{G_SW+1}
s_cselect_b32 s{G_SW+2}, {2048*2048:#x}, s{G_SW+2}
s_cmp_eq_u32 s{S_P1}, 6
s_cselect_b32 s{G_SW}, s{P_BW}, s{G_SW}
s_cselect_b32 s{G_SW+1}, s{P_BW+1}, s{G_SW+1}
s_cselect_b32 s{G_SW+2}, {1024*6144:#x}, s{G_SW+2}
s_cmp_eq_u32 s{S_P1}, 7
s_cselect_b32 s{G_SW}, s{P_BO}, s{G_SW}
s_cselect_b32 s{G_SW+1}, s{P_BO+1}, s{G_SW+1}
s_cselect_b32 s{G_SW+2}, {1024*2048:#x}, s{G_SW+2}
s_cmp_ge_u32 s{S_P1}, 3
s_cselect_b32 s38, 11, s38
s_cmp_eq_u32 s{S_P2}, 1
s_cbranch_scc1 W_pf1
v_lshrrev_b32 v1, 3, v0
s_lshl_b32 s36, s{S_WAVE}, 3
v_add_u32 v1, s36, v1
v_lshlrev_b32 v1, s38, v1
v_and_b32 v2, 7, v0
v_lshl_add_u32 v1, v2, 4, v1
s_lshl_b32 s37, 32, s38
s_mov_b32 s39, 32
s_branch W_pfgo
W_pf1:
s_lshr_b32 s36, s{S_WAVE}, 1
s_lshl_b32 s36, s36, s38
s_and_b32 s37, s{S_WAVE}, 1
s_lshl_b32 s37, s37, 10
s_add_u32 s36, s36, s37
v_add_u32 v1, s36, v{V_L16}
s_lshl_b32 s37, 2, s38
s_mov_b32 s39, s{S_D2}
W_pfgo:
s_mov_b32 s36, s{S_D1}
W_pfl:
buffer_load_dwordx4 v[64:67], v1, s[{G_SW}:{G_SW+3}], s36 offen
s_add_u32 s36, s36, s37
s_waitcnt vmcnt(48)
s_sub_u32 s39, s39, 1
s_cmp_lg_u32 s39, 0
s_cbranch_scc1 W_pfl
s_mov_b32 s{S_D1}, {NOSIG << 20:#x}""")
    if cfg.get("wstamps"):
        a("s_waitcnt lgkmcnt(0)\ns_mov_b32 s42, s40")
    a(h_ticket_now())
    a("s_waitcnt vmcnt(0)\ns_branch W_next")
    a.label("W_tail")
    if cfg.get("wstamps"):
        a("s_waitcnt lgkmcnt(0)\ns_mov_b32 s42, s40")
    init_check(200)
    a(f"""s_mov_b32 s{G_SW}, s{P_WO}
s_mov_b32 s{G_SW+1}, s{P_WO+1}
s_mov_b32 s{G_SW+2}, {4096*2048:#x}""")
    tail_task(a, S_WS, G_SW, S_OUT, S_WAVE, S_P1, S_P2, WS_CNT + (C_OXS - 40) * 128, cfg)
    if not cfg.get("wstamps"): a("s_endpgm")
    a(h_ticket_now())
    a("s_waitcnt vmcnt(0)\ns_branch W_next")
    a.label("W_att")
    run_pending(5)
    if cfg.get("pool", 1):
        a(f"""s_cmp_lg_u32 s{S_WAVE}, 0
s_cbranch_scc1 W_p2
s_lshl_b32 s38, s{S_P1}, 7
s_add_u32 s38, s38, {WS_CNT + C_POOL*128:#x}
v_mov_b32 v1, 1
s_mov_b64 exec, 1
buffer_atomic_add v1, v6, {WS}, s38 offen sc0 sc1
s_waitcnt vmcnt(0)
ds_write_b32 v5, v1 offset:8
s_mov_b64 exec, -1
s_waitcnt lgkmcnt(0)
W_p2:
s_barrier
ds_read_b32 v1, v5 offset:8
s_waitcnt lgkmcnt(0)
v_readfirstlane_b32 s36, v1
s_nop 3
s_cmp_lt_u32 s36, 64
s_cbranch_scc1 W_p3""")
        flush()
        a(f"s_cmp_lt_u32 s{S_GRP}, 4\ns_cbranch_scc1 L_done")
        a(h_ticket_now())
        a(f"""s_mov_b32 s{S_D1}, {NOSIG << 20:#x}
s_waitcnt vmcnt(0)
s_branch W_next
W_p3:
s_lshr_b32 s{S_P2}, s36, 3
s_and_b32 s36, s36, 7
s_lshl_b32 s{S_P1}, s{S_P1}, 3
s_add_u32 s{S_P1}, s{S_P1}, s36
s_add_u32 s36, s{S_P2}, {C_BAT}
s_lshl_b32 s{S_D1}, s36, 20""")
    battn_task(a, S_WS, S_WAVE, S_P1, S_P2, cfg, "sc1", "sc1", hooks)
    a(f"s_mov_b32 s{G_NXOFF}, {OOB:#x}\ns_mov_b32 s{G_NWOFF}, {OOB:#x}")
    a("s_waitcnt vmcnt(4)\ns_branch W_next")
    a.flush_deferred()
    def urgent(d):
        t, p1 = d[0] & 15, (d[0] >> 4) & 255
        return t in (T_MQKV, T_BB) or (t == T_BQKV and p1 in cfg.get("urgent_blocks", (1, 2)))
    tab = []
    for l in lists:
        l = l + [(15, 0)] * (MAXL + 1 - len(l))
        tab += [f".long {d[0]:#x}, {d[1]:#x}, {d[2] if len(d) > 2 else 0:#x}, {int(urgent(d))}" for d in l]
    return tab


def chain_hooks(a, cfg):
    def wait_x(vt):
        sk, lp = a.uid("wx"), a.uid("wx")
        a(f"""s_cmp_ge_u32 s{S_T0}, {NSEG}
s_cbranch_scc1 {sk}
s_and_b32 s{S_T1}, s{S_T0}, 7
s_cmp_lg_u32 s{S_T1}, 0
s_cbranch_scc1 {sk}
s_lshr_b32 s{S_T1}, s{S_T0}, 3
s_add_u32 s{S_T1}, s{S_T1}, 1
s_cmp_lt_u32 s{S_T0}, 8
s_cselect_b32 s{S_T2}, 6, 3
s_lshl_b32 s{S_T1}, s{S_T1}, 4
s_lshr_b32 s{S_T3}, s{S_HEAD}, 1
s_add_u32 s{S_T1}, s{S_T1}, s{S_T3}
s_lshl_b32 s{S_T1}, s{S_T1}, 7
s_add_u32 s{S_T1}, s{S_T1}, {WS_CNT + C_QKV*128:#x}
{lp}:""")
        budget_head(a)
        a(f"""v_mov_b32 v{vt}, 0
buffer_load_dword v{vt}, v{vt}, {WS}, s{S_T1} offen sc1
s_waitcnt vmcnt(0)
v_readfirstlane_b32 s{S_T3}, v{vt}
s_nop 3
s_cmp_ge_u32 s{S_T3}, s{S_T2}
s_cbranch_scc1 {sk}
s_sleep 4
s_branch {lp}
{sk}:""")
    def signal(vt, seg_sgpr, n=1):
        a(f"""s_lshr_b32 s{S_T1}, s{seg_sgpr}, 2
s_add_u32 s{S_T1}, s{S_T1}, {C_OXB}
s_add_u32 s{S_T2}, s{seg_sgpr}, {C_OXS - 40}
s_cmp_lt_u32 s{seg_sgpr}, 40
s_cselect_b32 s{S_T1}, s{S_T1}, s{S_T2}
s_lshl_b32 s{S_T1}, s{S_T1}, 7
s_add_u32 s{S_T1}, s{S_T1}, {WS_CNT:#x}
v_mov_b32 v{vt}, {n}
v_mov_b32 v{vt+1}, 0
s_mov_b64 exec, 1
buffer_atomic_add v{vt}, v{vt+1}, {WS}, s{S_T1} offen sc1
s_mov_b64 exec, -1""")
    def post_om(vt):
        sk = a.uid("po")
        a(f"""s_cmp_lg_u32 s{S_WAVE}, 0
s_cbranch_scc1 {sk}
s_cmp_lt_u32 s{S_STEP}, {NSEG-cfg.get('early', 6)+1}
s_cbranch_scc1 {sk}
s_sub_u32 s{S_T0}, s{S_STEP}, 1""")
        signal(vt, S_T0, 2)
        a.label(sk)
        sk = a.uid("po")
        a(f"""s_lshl_b32 s{S_T0}, s{S_HEAD}, 2
s_add_u32 s{S_T0}, s{S_T0}, s{S_WAVE}
s_cmp_lg_u32 s{S_T0}, 3
s_cbranch_scc1 {sk}
s_cmp_lt_u32 s{S_STEP}, 3
s_cbranch_scc1 {sk}
s_cmp_ge_u32 s{S_STEP}, {NSEG-cfg.get('early', 6)+3}
s_cbranch_scc1 {sk}
s_sub_u32 s{S_T0}, s{S_STEP}, 3""")
        signal(vt, S_T0, 64)
        a.label(sk)
    return {"wait_x": wait_x, "post_om": post_om, "exit": "S_exit"}, {}, signal


def role_ticket(a, cfg):
    a(f"""v_mov_b32 v2, 0
s_cmp_lg_u32 s{S_WAVE}, 0
s_cbranch_scc1 R_join
s_getreg_b32 s36, hwreg(HW_REG_XCC_ID)
s_and_b32 s36, s36, {cfg.get("xcc_mask", 7)}
s_and_b32 s37, s36, 3
s_lshl_b32 s37, s37, 3
s_lshl_b32 s38, 1, s37
s_and_b32 s39, s36, 4
s_lshl_b32 s39, s39, 5
v_mov_b32 v3, s38
s_mov_b64 exec, 1
buffer_atomic_add v3, v2, {DBG}, s39 offen offset:{C_TK*4} sc0 sc1
s_waitcnt vmcnt(0)
v_readfirstlane_b32 s38, v3
s_nop 3
s_lshr_b32 s38, s38, s37
s_and_b32 s38, s38, 0xff
s_cmp_lt_u32 s38, 32
s_cbranch_scc1 R_have
v_mov_b32 v3, 1
buffer_atomic_add v3, v2, {DBG}, 0 offen offset:{C_OVF*4} sc0 sc1
s_waitcnt vmcnt(0)
v_readfirstlane_b32 s40, v3
R_wait:""")
    budget_head(a)
    a(f"""s_sleep 8
buffer_load_dword v4, v2, {DBG}, 0 offen offset:{C_TK*4} sc1
buffer_load_dword v5, v2, {DBG}, 0 offen offset:{C_TK*4+128} sc1
s_waitcnt vmcnt(0)
v_readfirstlane_b32 s42, v4
v_readfirstlane_b32 s43, v5
s_nop 3
s_mov_b32 s41, 0""")
    for x in range(8):
        a(f"s_bfe_u32 s37, s{42 + x // 4}, {(8 << 16) | (8 * (x % 4)):#x}\ns_add_u32 s41, s41, s37")
    a("""s_cmp_lt_u32 s41, 256
s_cbranch_scc1 R_wait""")
    for x in range(8):
        a(f"""s_bfe_u32 s37, s{42 + x // 4}, {(8 << 16) | (8 * (x % 4)):#x}
s_min_u32 s37, s37, 32
s_mov_b32 s36, {x}
s_add_u32 s38, s37, s40
s_cmp_lt_u32 s38, 32
s_cbranch_scc1 R_have
s_sub_u32 s40, s38, 32""")
    a(f"""s_mov_b32 s38, 0x1000
R_have:
s_lshl_b32 s38, s38, 3
s_add_u32 s38, s38, s36
v_mov_b32 v3, s38
ds_write_b32 v2, v3
s_mov_b64 exec, -1
s_waitcnt lgkmcnt(0)
R_join:
s_barrier
ds_read_b32 v3, v2
s_waitcnt lgkmcnt(0)
v_readfirstlane_b32 s2, v3
s_nop 3
s_cmp_ge_u32 s2, 256
s_cbranch_scc1 L_fail
s_barrier""")


def gen(cfg):
    cfg.setdefault("tail_seg0", 48)
    cfg.setdefault("tail_stride", 2)
    a = Asm()
    a(f"""s_cmp_ge_u32 s2, 256
s_cbranch_scc1 L_done
v_lshrrev_b32 v1, 6, v0
v_readfirstlane_b32 s{S_WAVE}, v1""")
    srd(a, S_WS, 96, WS_SIZE)
    srd(a, S_DBG, 88, 256)
    a(f"s_mov_b32 s{S_BUDGET}, {POLL_BUDGET}")
    if not cfg.get("static_roles"): role_ticket(a, cfg)
    a(f"""s_and_b32 s{S_TEAM}, s2, 7
s_mov_b32 s{S_GRP}, s{S_TEAM}
s_lshr_b32 s{S_J}, s2, 3
s_mov_b32 s{S_MODE}, 0
s_cmp_ge_u32 s{S_TEAM}, {NT}
s_cbranch_scc1 L_W
s_cmp_ge_u32 s{S_J}, 24
s_cbranch_scc1 L_W
s_cmp_lt_u32 s{S_J}, 8
s_cbranch_scc1 L_S
s_sub_u32 s{S_J}, s{S_J}, 8""")
    hooks, vhooks, signal = chain_hooks(a, cfg)
    v_cu(a, cfg, vhooks)
    a.label("L_S")
    s_cu(a, cfg, hooks)
    a.label("S_exit")
    a(f"""s_waitcnt vmcnt(0)
s_barrier
s_cmp_lg_u32 s{S_WAVE}, 0
s_cbranch_scc1 L_done
s_mov_b32 s{S_T0}, {NSEG-1}""")
    signal(60, S_T0, 2)
    a("s_endpgm")
    a.label("L_fail")
    a(f"""v_mov_b32 v1, 0xdead
v_mov_b32 v2, 0
s_mov_b64 exec, 1
buffer_store_dword v1, v2, {DBG}, 0 offen offset:8
s_endpgm""")
    a.label("L_W")
    tab = worker(a, cfg)
    a.label("L_done")
    a("s_endpgm")
    body = a.finalize()
    ref = open("cdna_kernels/" + PFX + ".s.ref").read().split("\n")
    hdr = [l for l in ref if l.startswith(";") and "@launch" not in l and "Override" not in l and "grid=ceil" not in l]
    out = "\n".join(hdr) + "\n"
    out += f"; @launch grid=(256,1,1) block=(256,1,1) lds={LDS_BYTES}\n"
    out += f""".amdgcn_target "amdgcn-amd-amdhsa--gfx950"
.text
.globl {NAME}
.p2align 8
.type {NAME},@function
{NAME}:
""" + body
    out += ".p2align 4\n.type W_table,@object\nW_table:\n" + "\n".join(tab) + f"\n.size W_table, {16*len(tab)}\n"
    out += f"""
.section .rodata,"a"
.p2align 6
.amdhsa_kernel {NAME}
  .amdhsa_next_free_vgpr 512
  .amdhsa_next_free_sgpr 102
  .amdhsa_accum_offset 256
  .amdhsa_group_segment_fixed_size 0
  .amdhsa_kernarg_size 104
  .amdhsa_user_sgpr_count 2
  .amdhsa_user_sgpr_kernarg_segment_ptr 1
  .amdhsa_system_sgpr_workgroup_id_x 1
.end_amdhsa_kernel
"""
    return out


def report(cfg, down):
    import numpy as np
    if cfg.get("stamps") and not cfg.get("rt"):
        T = down(WS_STAMP, np.uint32, (256, 4, 64, 64))[:, :, :, :8].astype(np.int64)
        ss = list(cfg["stamp_set"])
        Sw = [g + 8*j for g in range(4) for j in range(8)]
        Vw = [g + 8*j for g in range(4) for j in range(8, 24)]
        for nm_, W_ in (("S", Sw), ("V", Vw)):
            t = T[W_][:, :, 12:60]
            d = (t[..., ss[1:]] - t[..., ss[:-1]]) & 0xffffffff
            per = (T[W_][:, :, 13:61, ss[0]] - t[..., ss[0]]) & 0xffffffff
            print("  ", nm_, cfg.get("at"), "deltas med", np.median(d.reshape(-1, d.shape[-1]), 0).tolist(), "min", d.reshape(-1, d.shape[-1]).min(0).tolist(), "period median", np.median(per))
        return
    if cfg.get("hops"):
        T = down(WS_STAMP, np.uint32, (32, 8, 4, 64, 64))[..., :8].astype(np.int64) * 10
        S = T[:8, :4]; V = T[8:24, :4]
        st = np.arange(12, 60)
        q = lambda x: "med %4d p90 %4d max-mean %4d" % (np.median(x), np.percentile(x, 90), x.reshape(-1, x.shape[-1]).max(0).mean())
        prod = V[0::4, :, :, :, 5].max(2)[:, :, st - 1]
        print("   MEMT hop (frag0)  ", q(S[:, :, :, :, 1][..., st] - prod.transpose(1, 0, 2)[None]))
        allp = V[..., 5].max(2).max(0)[:, st - 1]
        print("   last MEMT pub -> S OM pub", q(S[..., 4][..., st] - allp[None, :, None]))
        print("   last MEMT pub -> VM pub", q(V[..., 2][..., st] - allp[None, :, None]))
        prod = S[0::2, :, :2, :, 4].max(2)[:, :, st]
        print("   OM hop (frag0)    ", q(V[..., 3][..., st] - prod.transpose(1, 0, 2)[None]))
        allo = S[..., 4].max(2).max(0)[:, st]
        print("   last OM pub -> PART pub", q(V[..., 4][..., st] - allo[None, :, None]))
        lastp = V[..., 4].max(1)[..., st]
        print("   last PART pub -> MEMT pub", q(V[..., 5][..., st] - lastp[:, None]))
        print("   spread of PART pub across teams", q(V[..., 4].max(1)[..., st] - V[..., 4].min(1)[..., st]))
        print("   spread MEMT pub within team", q(V[..., 5].max(2).max(0)[:, st] - V[..., 5].min(2).min(0)[:, st]))
        print("   spread OM pub within team", q(allo - S[..., 4].min(2).min(0)[:, st]))
        print("   period", (S[0, 0, 0, 60, 4] - S[0, 0, 0, 12, 4]) / 48)
        return
    if cfg.get("wstamps"):
        lists = schedule(cfg); MAXL = max(len(l) for l in lists)
        st = down(0x8000000, np.uint32, (8, MAXL + 1, 4)).astype(np.int64)
        t0 = min(st[g, :8, 0].min() for g in range(8))
        names = ["mqkv", "bqkv", "bb", "att", "ob", "oa", "oam", "pf", "tail"] + ["x"] * 8
        for g in cfg.get('show', (0, 4, 7)):
            l = lists[g]; i = 0
            while i < len(l):
                j = i
                key = lambda d: (d[0] & 15, (d[0] >> 4) & 255 if (d[0] & 15) not in (T_BB, T_BQKV, T_PF, T_TAIL, T_ATT) else ((d[0] >> 12) & 255 if (d[0] & 15) == T_ATT else 0))
                while j < len(l) and key(l[j]) == key(l[i]): j += 1
                x = (st[g, i:j, :3] - t0) / 100.0
                print(f"  g{g} {names[l[i][0]&15]:5s} p1={(l[i][0]>>4)&255:2d} n={j-i:2d} deq {x[:,0].min():6.1f}-{x[:,0].max():6.1f} start {x[:,1].min():6.1f}-{x[:,1].max():6.1f} end {x[:,2].min():6.1f}-{x[:,2].max():6.1f} dur {(x[:,2]-x[:,1]).mean():5.1f} kcyc {st[g, i:j, 3].mean()/1000:6.1f} GHz {st[g, i:j, 3].mean()/1000/(x[:,2]-x[:,1]).mean():4.2f}")
                i = j
        if cfg.get("stamps"):
            T = down(WS_STAMP, np.uint32, (256, 4, 64, 64))[:, :, :, :8].astype(np.int64)
            s4 = (T[0, 0, :, 4] - t0) / 100.0
            print("  chain OM publish times:", [float(round(x, 1)) for x in s4[[0, 1, 2, 3, 4, 5, 8, 9, 16, 17, 24, 32, 40, 48, 56, 63]]])
            Sw = [g + 8*j for g in range(4) for j in range(8)]
            Vw = [g + 8*j for g in range(4) for j in range(8, 24)]
            if cfg.get("sst"):
                for nm_, W_ in (("S", Sw), ("V", Vw)):
                    for i in (6, 7):
                        x = (T[W_][:, :, 1, i] - t0) / 100.0
                        print("  startup", nm_, i, x.min(), np.median(x), x.max())
                        np.set_printoptions(linewidth=250, precision=0, suppress=True)
                        if cfg.get('sst') == 2: print(x[:, 0].reshape(4, -1))
            print("  S loop first entry", (T[Sw][:, :, 0, 0].min() - t0) / 100.0, (T[Sw][:, :, 0, 0].max() - t0) / 100.0)
            if len(cfg.get("stamp_set", range(8))) > 3:
                for st_ in (21, 35, 58):
                    base = T[Vw][:, :, st_-1, 5].min()
                    tS = (T[Sw][:, :, st_, :8] - base) * 10; tV = (T[Vw][:, :, st_, :8] - base) * 10; tVp = (T[Vw][:, :, st_-1, 5] - base) * 10
                    print("  step", st_, "V pub(prev) min/med/max", tVp.min(), np.median(tVp), tVp.max())
                    for i in cfg["stamp_set"]: print("   S stamp", i, tS[:, :, i].min(), np.median(tS[:, :, i]), tS[:, :, i].max(), "   V stamp", i, tV[:, :, i].min(), np.median(tV[:, :, i]), tV[:, :, i].max())


if __name__ == "__main__":
    cfg = eval(sys.argv[2]) if len(sys.argv) > 2 else {}
    open(sys.argv[1] if len(sys.argv) > 1 else "cdna_kernels/" + PFX + ".s", "w").write(gen(cfg))
```

```python
from asmgen import *
from chain import f32bits
from battn import WS_QB, WS_KB, WS_VB, WS_OB

B_KOFF, B_VOFF, B_CNT, B_M0, B_FLOOR, B_THR, B_SAFE = 52, 53, 55, 82, 56, 57, 54
VL, V_L16 = 0, 4
vKA, vVA, vMX, vT1, vT2, vOO = 8, 9, 10, 11, 12, 13
DL = 14
ONES = 16
Q, KF, VF, P = 20, 36, 52, 68
NEGM, S0 = 84, 116
O, L = 180, 212
L_VOTE = 0x27f10
M32 = "v_mfma_f32_32x32x16_bf16"


def battn_task(a, ws, s_wave, s_head, s_qb, cfg, ldflags="", stflags="", hooks=None):
    WS = f"s[{ws}:{ws+3}]"
    T = cfg.get("thr", 16.0)
    restart = a.uid("br")
    a(f"s_mov_b32 s{B_SAFE}, {1 if cfg.get('att_safe') else 0}")
    a.label(restart)
    a(f"""s_lshl_b32 s36, s{s_head}, 17
s_lshl_b32 s37, s{s_wave}, 10
s_add_u32 s36, s36, s37
s_add_u32 s{B_KOFF}, s36, {WS_KB:#x}
s_add_u32 s{B_VOFF}, s36, {WS_VB:#x}
s_mov_b32 s{B_M0}, s37
s_lshl_b32 s37, s{s_wave}, 12""")

    def dma(isv):
        o = B_VOFF if isv else B_KOFF
        t = [f"s_add_u32 m0, s{B_M0}, {0x10000 * isv:#x}",
             f"buffer_load_dwordx4 v{V_L16}, {WS}, s{o} offen {ldflags} lds\ns_add_u32 s{o}, s{o}, 0x1000"]
        if isv: t[1] += f"\ns_add_u32 s{B_M0}, s{B_M0}, 0x1000\ns_and_b32 s{B_M0}, s{B_M0}, 0xffff"
        return t
    a(f"""s_lshl_b32 s36, s{s_head}, 17
s_lshl_b32 s38, s{s_qb}, 14
s_add_u32 s36, s36, s38
s_add_u32 s36, s36, s37
s_add_u32 s36, s36, {WS_QB:#x}""")
    for i in range(4):
        a(f"buffer_load_dwordx4 {vr(Q+4*i,4)}, v{V_L16}, {WS}, s36 offen offset:{i*1024} {ldflags}")
    for c in range(9):
        for d in dma(0) + dma(1): a(d)
    a(f"""v_lshrrev_b32 v{vT1}, 2, v{VL}
v_lshrrev_b32 v{vT2}, 4, v{VL}
v_xor_b32 v{vT1}, v{vT1}, v{vT2}
v_and_b32 v{vT1}, 1, v{vT1}
v_cmp_eq_u32 vcc, 0, v{vT1}
v_mov_b32 v{vT2}, 0x3f803f80""")
    for i in range(4): a(f"v_cndmask_b32 v{ONES+i}, 0, v{vT2}, vcc")
    for i in range(4): a(f"v_mov_b32 v{P+12+i}, 0\nv_mov_b32 v{VF+12+i}, 0")
    a(f"v_mov_b32 v{S0+62}, 0\nv_mov_b32 v{S0+63}, 0")
    for i in range(32): a(f"v_mov_b32 v{NEGM+i}, 0")
    for i in range(32): a(f"v_mov_b32 v{O+i}, 0")
    for i in range(4): a(f"v_mov_b32 v{L+i}, 0\nv_mov_b32 v{L+16+i}, 0")
    a(f"""v_mov_b32 v{vKA}, v{V_L16}
v_add_u32 v{vVA}, 0x10000, v{V_L16}
s_mov_b32 s{B_FLOOR}, 0xff800000
s_mov_b32 s{B_THR}, {f32bits(T):#x}
s_mov_b32 s{B_CNT}, 0
s_waitcnt vmcnt(10)
s_barrier""")
    if hooks: a(hooks["post_bar"]())

    def kread(par):
        return [f"ds_read_b128 {vr(KF+8*par+4*i,4)}, v{vKA} offset:{i*1024}" for i in range(2)] + \
               [f"v_add_u32 v{vKA}, 0x800, v{vKA}", f"v_and_b32 v{vKA}, 0xffff, v{vKA}"]
    def vread(par):
        return [f"ds_read_b128 {vr(VF+8*par+4*i,4)}, v{vVA} offset:{i*1024}" for i in range(2)] + \
               [f"v_add_u32 v{vVA}, 0x800, v{vVA}", f"v_and_or_b32 v{vVA}, v{vVA}, s39, v{vT2}"]
    def smf(par, qh, ks):
        d = S0 + 32 * par + 16 * qh
        C = vr(NEGM + 16 * qh, 16) if ks == 0 else vr(d, 16)
        return f"{M32} {vr(d,16)}, {vr(KF+8*par+4*ks,4)}, {vr(Q+8*qh+4*ks,4)}, {C}"
    def pvm(par, qh, ks):
        return f"{M32} {vr(O+16*qh,16)}, {vr(VF+8*par+4*ks,4)}, {vr(P+8*qh+4*ks,4)}, {vr(O+16*qh,16)}"
    def lsm(qh, ks):
        return f"v_mfma_f32_16x16x32_bf16 {vr(L+16*qh,4)}, {vr(ONES,4)}, {vr(P+8*qh+4*ks,4)}, {vr(L+16*qh,4)}"

    def rare(par, back_fast, back_safe):
        for qh in range(2):
            b = S0 + 32 * par + 16 * qh
            a(f"v_max3_f32 v{vT1}, v{b}, v{b+1}, v{b+2}")
            for i in range(3, 15, 2): a(f"v_max3_f32 v{vT1}, v{vT1}, v{b+i}, v{b+i+1}")
            a(f"""v_max_f32 v{vT1}, v{vT1}, v{b+15}
v_mov_b32 v{vMX}, v{vT1}
v_permlane32_swap_b32 v{vT1}, v{vMX}
v_max_f32 v{vT1}, v{vT1}, v{vMX}
v_max_f32 v{DL}, s{B_FLOOR}, v{vT1}
v_max_f32 v{vT1}, 0, v{vT1}
v_exp_f32 v{DL+1}, -v{vT1}""")
            for i in range(16): a(f"v_sub_f32 v{b+i}, v{b+i}, v{DL}")
            for i in range(16): a(f"v_sub_f32 v{NEGM+16*qh+i}, v{NEGM+16*qh+i}, v{DL}")
            for i in range(16): a(f"v_mul_f32 v{O+16*qh+i}, v{O+16*qh+i}, v{DL+1}")
            a(f"v_mul_f32 v{L+16*qh}, v{L+16*qh}, v{DL+1}")
        a(f"s_mov_b32 s{B_FLOOR}, 0")
        if back_fast:
            a(f"s_cmp_eq_u32 s{B_SAFE}, 0\ns_cbranch_scc1 {back_fast}")
        a(f"s_branch {back_safe}")

    a(f"s_mov_b32 s39, 0xffff\nv_mov_b32 v{vT2}, 0x10000")
    for x in kread(0) + kread(1) + vread(0): a(x)
    a("s_waitcnt lgkmcnt(0)")
    for qh in range(2):
        for ks in range(2): a(smf(0, qh, ks))
    r0, r1, fin = (a.uid("ba") for _ in range(3))
    if cfg.get("att_st") == 1: a("s_memtime s[76:77]\ns_waitcnt lgkmcnt(0)")
    a(f"s_branch {r0}")
    heads = {}
    if cfg.get("att_unroll", 1):
        lp = a.uid("bl")
        heads[0] = (lp, None)
        a.label(lp)
        a(f"v_mov_b32 v{vKA}, v{V_L16}\nv_add_u32 v{vVA}, 0x10000, v{V_L16}")
        lp2 = a.uid("bl")
        a.label(lp2)
        for i in range(8):
            par = i % 2
            pre = []
            if i == 6:
                a(f"""s_waitcnt vmcnt(8)
s_barrier
s_cmp_ge_u32 s{B_CNT}, 5
s_cselect_b32 s{B_KOFF}, 0x7f000000, s{B_KOFF}
s_cselect_b32 s{B_VOFF}, 0x7f000000, s{B_VOFF}""")
            a("s_waitcnt lgkmcnt(0)")
            ex = {}
            ex[0] = f"ds_read_b128 {vr(KF+8*par,4)}, v{vKA} offset:{((i+2)%8)*2048}"
            ex[1] = f"ds_read_b128 {vr(KF+8*par+4,4)}, v{vKA} offset:{((i+2)%8)*2048+1024}"
            ex[4] = f"ds_read_b128 {vr(VF+8*(1-par),4)}, v{vVA} offset:{((i+1)%8)*2048}"
            ex[5] = f"ds_read_b128 {vr(VF+8*(1-par)+4,4)}, v{vVA} offset:{((i+1)%8)*2048+1024}"
            if i == 5:
                ex[2] = f"v_add_u32 v{vKA}, 0x4000, v{vKA}"; ex[3] = f"v_and_b32 v{vKA}, 0xffff, v{vKA}"
            if i == 6:
                ex[6] = f"v_add_u32 v{vVA}, 0x4000, v{vVA}"; ex[7] = f"v_and_or_b32 v{vVA}, v{vVA}, s39, v{vT2}"
            items = []
            for g in range(8):
                b = S0 + 32 * par + 4 * g
                items.append((f"v_exp_f32 v{b}, v{b}", 8))
                if g > 0: items.append((f"v_cvt_pk_bf16_f32 v{P+2*g-1}, v{b-2}, v{b-1}", 4))
                else: items.append((f"v_cvt_pk_bf16_f32 v{P+15}, v{S0+32*(1-par)+30}, v{S0+32*(1-par)+31}", 4))
                items.append((f"v_exp_f32 v{b+1}, v{b+1}", 8))
                if g in ex: items.append((ex[g], 4))
                items.append((f"v_exp_f32 v{b+2}, v{b+2}", 8))
                items.append((f"v_cvt_pk_bf16_f32 v{P+2*g}, v{b}, v{b+1}", 4))
                items.append((f"v_exp_f32 v{b+3}, v{b+3}", 8))
                if g in (2, 3): items.append((dma(par)[g - 2], 0))
            ms = [(smf(1 - par, 0, 0), 0), (pvm(1 - par, 1, 1), 30), (lsm(1, 1), 58), (smf(1 - par, 0, 1), 74), (pvm(par, 0, 0), 104), (lsm(0, 0), 132),
                  (smf(1 - par, 1, 0), 148), (pvm(par, 0, 1), 186), (lsm(0, 1), 214), (smf(1 - par, 1, 1), 230), (pvm(par, 1, 0), 270), (lsm(1, 0), 300)]
            req = {1: 15, 2: 15, 4: 3, 5: 3, 7: 7, 8: 7, 10: 11, 11: 11}
            cost = 0; k = 0; seen = {}; last = -99
            for n, (ins, c) in enumerate(items):
                if k < 12 and cost >= ms[k][1] and (k not in req or n - seen.get(req[k], 99) >= 3) and cost - last >= (8 if k in (3, 6, 9) else 24):
                    a(ms[k][0]); k += 1; last = cost
                a(ins); cost += c
                if ins.startswith("v_cvt"): seen[int(ins.split()[1][1:-1]) - P] = n
            assert k == 12
        a(f"""s_add_u32 s{B_CNT}, s{B_CNT}, 1
s_cmp_lg_u32 s{B_CNT}, 8
s_cbranch_scc1 {lp2}
v_cvt_pk_bf16_f32 v{P+15}, v{S0+62}, v{S0+63}""")
        a(pvm(1, 1, 1)); a(lsm(1, 1))
        a(f"s_branch {fin}")
    for safe in ((1,) if cfg.get("att_unroll", 1) else (0, 1)):
        lp, b1 = a.uid("bl"), a.uid("bl")
        heads[safe] = (lp, b1)
        for par in range(2):
            a.label(lp if par == 0 else b1)
            if par == 0:
                sk, ck = a.uid("bs"), a.uid("bs")
                a(f"""s_and_b32 s36, s{B_CNT}, 3
s_cmp_eq_u32 s36, 3
s_cbranch_scc1 {ck}
{sk}:""")
                def chunk(sk=sk, ck=ck):
                    a(f"""{ck}:
s_waitcnt vmcnt(8)
s_barrier
s_cmp_ge_u32 s{B_CNT}, 23
s_cselect_b32 s{B_KOFF}, 0x7f000000, s{B_KOFF}
s_cselect_b32 s{B_VOFF}, 0x7f000000, s{B_VOFF}""")
                    a(f"s_branch {sk}")
                a.defer(chunk)
            a("s_waitcnt lgkmcnt(0)")
            extra = kread(par) + vread(1 - par)
            mf = {0: [smf(1 - par, 0, 0), None], 1: [smf(1 - par, 0, 1), None],
                  2: [smf(1 - par, 1, 0), pvm(par, 0, 0)], 3: [smf(1 - par, 1, 1), lsm(0, 0)],
                  4: [None, pvm(par, 0, 1)], 5: [None, lsm(0, 1)], 6: [None, pvm(par, 1, 0)], 7: [None, lsm(1, 0)]}
            if not safe:
                mf[0][1] = pvm(1 - par, 1, 1); mf[1][1] = lsm(1, 1)
            nb = S0 + 32 * (1 - par)
            mxs = [f"v_max_f32 v{vMX}, v{nb}, v{nb+1}"] + [f"v_max3_f32 v{vMX}, v{vMX}, v{nb+2*i}, v{nb+2*i+1}" for i in range(1, 16)]
            if not safe:
                items = []
                for g in range(8):
                    b = S0 + 32 * par + 4 * g
                    items.append((f"v_exp_f32 v{b}, v{b}", 8))
                    if g > 0: items.append((f"v_cvt_pk_bf16_f32 v{P+2*g-1}, v{b-2}, v{b-1}", 4))
                    items.append((f"v_exp_f32 v{b+1}, v{b+1}", 8))
                    items.append((extra.pop(0), 4))
                    items.append((f"v_exp_f32 v{b+2}, v{b+2}", 8))
                    items.append((f"v_cvt_pk_bf16_f32 v{P+2*g}, v{b}, v{b+1}", 4))
                    items.append((f"v_exp_f32 v{b+3}, v{b+3}", 8))
                    if g in (2, 3): items.append((dma(par)[g - 2], 0))
                ms = [smf(1 - par, 0, 0), pvm(1 - par, 1, 1), smf(1 - par, 0, 1), lsm(1, 1), pvm(par, 0, 0), smf(1 - par, 1, 0),
                      lsm(0, 0), pvm(par, 0, 1), smf(1 - par, 1, 1), lsm(0, 1), pvm(par, 1, 0), lsm(1, 0)]
                cost = 0; k = 0
                for ins, c in items:
                    if k < 12 and cost >= k * 29.5:
                        a(ms[k]); k += 1
                    a(ins); cost += c
                assert k == 12
            for g in range(8 if safe else 0):
                b = S0 + 32 * par + 4 * g
                m = mf[g]
                if m[0]: a(m[0])
                a(f"v_exp_f32 v{b}, v{b}")
                if g > 0: a(f"v_cvt_pk_bf16_f32 v{P+2*g-1}, v{b-2}, v{b-1}")
                a(f"v_exp_f32 v{b+1}, v{b+1}")
                if extra: a(extra.pop(0))
                a(f"v_exp_f32 v{b+2}, v{b+2}")
                if m[1]: a(m[1])
                a(f"v_cvt_pk_bf16_f32 v{P+2*g}, v{b}, v{b+1}")
                a(f"v_exp_f32 v{b+3}, v{b+3}")
                if g in (2, 3): a(dma(par)[g - 2])
                if g >= 3:
                    for _ in range(3 if g != 4 else 2):
                        if mxs and not (g < 5 and len(mxs) <= 8): a(mxs.pop(0))
            b = S0 + 32 * par + 28
            if par == 1: a(f"s_add_u32 s{B_CNT}, s{B_CNT}, 1")
            a(f"v_cvt_pk_bf16_f32 v{P+15}, v{b+2}, v{b+3}")
            if safe:
                for x in mxs: a(x)
                a(f"v_cmp_lt_f32 vcc, s{B_THR}, v{vMX}")
            if par == 1: a(f"s_cmp_eq_u32 s{B_CNT}, 32")
            if safe:
                a(pvm(par, 1, 1))
                a(lsm(1, 1))
            if par == 0:
                if safe: a(f"s_cbranch_vccnz {r1}")
            elif safe:
                a(f"s_cbranch_scc1 {fin}\ns_cbranch_vccz {lp}\ns_branch {r0}")
            else:
                a(f"s_cbranch_scc0 {lp}")
                a(pvm(1, 1, 1)); a(lsm(1, 1))
                a(f"s_branch {fin}")
    a.label(r0)
    rare(0, heads[0][0], heads[1][0])
    a.label(r1)
    rare(1, None, heads[1][1])
    a.flush_deferred()
    a.label(fin)
    if hooks: a(hooks["ticket_now"]())
    if cfg.get("att_st") == 2: a("s_memtime s[76:77]\ns_waitcnt lgkmcnt(0)")
    ok = a.uid("bo")
    lim = f32bits(cfg.get("att_lim", 2.0 ** 40))
    a(f"""s_cmp_eq_u32 s{B_SAFE}, 1
s_cbranch_scc1 {ok}
s_mov_b32 s36, {lim:#x}
v_max_f32 v{vT1}, v{L}, v{L+16}
v_cmp_ngt_f32 vcc, s36, v{L}
v_cmp_ngt_f32 s[38:39], s36, v{L+16}
s_or_b64 vcc, vcc, s[38:39]
s_cmp_lg_u64 vcc, 0
s_cselect_b32 s36, 1, 0
v_mov_b32 v{vT1}, s36
s_lshl_b32 s37, s{s_wave}, 2
s_add_u32 s37, s37, {L_VOTE:#x}
v_mov_b32 v{vT2}, s37
ds_write_b32 v{vT2}, v{vT1}
v_mov_b32 v{vT2}, {L_VOTE:#x}
s_waitcnt vmcnt(0) lgkmcnt(0)
s_barrier
ds_read_b128 {vr(KF,4)}, v{vT2}
s_waitcnt lgkmcnt(0)
v_or3_b32 v{vT1}, v{KF}, v{KF+1}, v{KF+2}
v_or_b32 v{vT1}, v{vT1}, v{KF+3}
v_readfirstlane_b32 s36, v{vT1}
s_nop 3
s_cmp_eq_u32 s36, 0
s_cbranch_scc1 {ok}
s_mov_b32 s{B_SAFE}, 1
s_branch {restart}
{ok}:""")
    a(f"""v_and_b32 v{vT1}, 7, v{VL}
v_lshlrev_b32 v{vOO}, 6, v{vT1}
v_bfe_u32 v{vT1}, v{VL}, 3, 1
v_lshl_add_u32 v{vOO}, v{vT1}, 10, v{vOO}
v_bfe_u32 v{vT1}, v{VL}, 4, 1
v_lshl_add_u32 v{vOO}, v{vT1}, 5, v{vOO}
v_lshrrev_b32 v{vT1}, 5, v{VL}
v_lshl_add_u32 v{vOO}, v{vT1}, 4, v{vOO}
s_lshl_b32 s36, s{s_qb}, 19
s_lshr_b32 s37, s{s_wave}, 1
s_lshl_b32 s37, s37, 18
s_add_u32 s36, s36, s37
s_and_b32 s37, s{s_wave}, 1
s_lshl_b32 s37, s37, 12
s_add_u32 s36, s36, s37
s_lshl_b32 s37, s{s_head}, 13
s_add_u32 s36, s36, s37
s_add_u32 s36, s36, {WS_OB:#x}""")
    for qh in range(2):
        a(f"v_rcp_f32 v{DL}, v{L+16*qh}")
        for i in range(0, 16, 2):
            a(f"v_pk_mul_f32 {vr(O+16*qh+i,2)}, {vr(O+16*qh+i,2)}, {vr(DL,2)} op_sel_hi:[1,0]")
        d = S0 + 8 * qh
        for j in range(2):
            for k, i in enumerate((j, j + 2)):
                for h in range(2):
                    a(f"v_cvt_pk_bf16_f32 v{d+4*j+2*k+h}, v{O+16*qh+4*i+2*h}, v{O+16*qh+4*i+2*h+1}")
        for r in range(4): a(f"v_permlane16_swap_b32 v{d+r}, v{d+4+r}")
        for j in range(2):
            a(f"buffer_store_dwordx4 {vr(d+4*j,4)}, v{vOO}, {WS}, s36 offen offset:{qh*2048 + j*512} {stflags}")
    a("s_waitcnt lgkmcnt(0)")
```

```python
from asmgen import *
import chain
from chain import *
from tail import WS_OXF
from chain4 import (S_NEAR, S_PCUR, JIT, WS, DBG, OOBV, WS_CNT, WS_KM, arrive, wait_all_arrived, startup_barrier, sstamp, probe,
                    store_mode2, SPoll, ring_poll, Lds)

XRING = L_W


def ring_poll2(a, loads, regs, vt, consume, join, space=4, on_first=None, rfill=3):
    R = [a.uid("rp") for _ in range(4)]
    C = [a.uid("rc") for _ in range(4)]
    def pre3(g):
        b = regs[g]
        return [f"v_max3_u32 v{vt}, v{b}, v{b+1}, v{b+2}", f"v_max_u32 v{vt}, v{vt}, v{b+3}", f"v_cmp_eq_u32 vcc, {chain.SENTINEL[0]}, v{vt}"]
    for f in range(3):
        a(loads[f]); a.fill(space)
    for f in range(4):
        a.label(R[f])
        a(loads[(f + 3) % 4])
        if f == 0: budget_head(a)
        a("s_waitcnt vmcnt(3)")
        for x in pre3(f): a(x)
        a.fill(5)
        a(f"s_cbranch_vccz {C[f]}" if f < 3 else f"s_cbranch_vccnz {R[0]}")
    def body(f):
        a.label(C[f])
        if on_first: on_first()
        for k in range(4):
            g = (f + k) % 4
            chk = []
            if k < 3:
                n = (g + 1) % 4
                rt, back = a.uid("rr"), a.uid("rb")
                chk = pre3(n) + [f"s_cbranch_vccnz {rt}\n{back}:"]
                def retry(n=n, rt=rt, back=back, k=k):
                    a.label(rt)
                    for j in range(3 - k): a(loads[(n + j) % 4])
                    for rep in range(3 - k):
                        for x in pre3(n): a(x)
                        a.fill(rfill + 2)
                        a(f"s_cbranch_vccz {back}")
                    budget_head(a)
                    a(f"s_waitcnt vmcnt(8)\ns_branch {rt}")
                a.defer(retry)
            consume(g, k, chk)
    body(3)
    for f in range(3):
        def ool(f=f):
            body(f); a(f"s_branch {join}")
        a.defer(ool)
    a.label(join)


def s_cu(a, cfg, hooks=None):
    hooks = hooks or {}
    vT, vL16, vGW, vA1, vA2, vA3, vQKW, vQKR, vIDX, vOXO, vVMO, vKMO, vXR, vF, vLANE, vT2 = range(16)
    KX, VX, G, AF, ACC, QF, KMF = 16, 48, 56, 72, 120, 128, 144
    T, VM, PX, PM, O, LS, ONE, HALF, MI, MK, vVM2, SENT = 160, 172, 176, 180, 184, 200, 204, 208, 210, 216, 228, 232
    KD = 240
    vD, vWT = 236, 237
    cfg = dict(cfg); cfg["stamp_reg"] = 254; cfg["lane4_reg"] = 255
    keep = lambda: a(f"v_mfma_f32_16x16x32_bf16 {vr(KD+8,4)}, {vr(ONE,4)}, {vr(ONE,4)}, {vr(KD+8,4)}")
    wreg = lambda s, t: (s * 2 + t) * 8

    a(f"""s_lshl_b32 s{S_HEAD}, s{S_TEAM}, 3
s_add_u32 s{S_HEAD}, s{S_HEAD}, s{S_J}""")
    srd(a, S_W0, 16, 1024 * 8192)
    arrive(a, 20)
    a(f"v_and_b32 v{vLANE}, 63, v0")
    a(f"v_lshlrev_b32 v{vL16}, 4, v{vLANE}")
    a(f"""v_lshrrev_b32 v{vT}, 4, v{vLANE}
v_lshlrev_b32 v{vD}, 13, v{vT}
v_and_b32 v{vT}, 15, v{vLANE}
v_lshl_add_u32 v{vD}, v{vT}, 4, v{vD}
s_lshl_b32 s{S_T0}, s{S_HEAD}, 8
s_lshl_b32 s{S_T1}, s{S_WAVE}, 21
s_add_u32 s{S_T0}, s{S_T0}, s{S_T1}
v_add_u32 v{vD}, s{S_T0}, v{vD}
s_lshl_b32 s{S_T2}, s{S_WAVE}, 14
v_bfe_u32 v{vT}, v{vLANE}, 5, 1
v_lshlrev_b32 v{vWT}, 12, v{vT}
v_bfe_u32 v{vT}, v{vLANE}, 3, 1
v_lshl_add_u32 v{vWT}, v{vT}, 11, v{vWT}
v_bfe_u32 v{vT}, v{vLANE}, 4, 1
v_lshl_add_u32 v{vWT}, v{vT}, 10, v{vWT}
v_bfe_u32 v{vT}, v{vLANE}, 2, 1
v_lshl_add_u32 v{vWT}, v{vT}, 8, v{vWT}
v_and_b32 v{vT}, 3, v{vLANE}
v_lshl_add_u32 v{vWT}, v{vT}, 3, v{vWT}
s_lshl_b32 s{S_T0}, s{S_WAVE}, 6
s_add_u32 s{S_T0}, s{S_T0}, s{S_T2}
v_add_u32 v{vWT}, s{S_T0}, v{vWT}""")
    for q in range(3, -1, -1):
        a(f"v_xor_b32 v{vWT+q}, {q << 14:#x}, v{vWT}\nv_add_u32 v{vWT+q}, {L_W:#x}, v{vWT+q}")
    def issue(j):
        for i in range(16):
            a(f"s_add_u32 m0, s{S_T2}, {L_W + (j % 2) * 65536 + i * 1024}")
            a(f"s_mov_b32 s{S_T4}, {(j * 64 + i * 4) * 8192:#x}")
            a(f"buffer_load_dwordx4 v{vD}, s[{S_W0}:{S_W0+3}], s{S_T4} offen lds")
    issue(0); issue(1)
    for j in range(4):
        a(f"s_waitcnt vmcnt({16 if j < 3 else 0})\ns_barrier")
        for q in range(4):
            for t in range(2):
                for v in range(4):
                    a(f"ds_read_b64_tr_b16 {ar(wreg(j+4*q,t)+2*v,2)}, v{vWT+q} offset:{(32*(v//2) + 2*(v%2))*256 + t*32}")
                a("s_waitcnt lgkmcnt(8)")
        a("s_waitcnt lgkmcnt(0)\ns_barrier")
        for q in range(4):
            a(f"v_add_u32 v{vWT+q}, {0x10000 if j % 2 == 0 else 0xffff0000:#x}, v{vWT+q}")
        if j + 2 < 4: issue(j + 2)
    sstamp(a, 6, cfg)

    a(f"""s_lshl_b32 s{S_T0}, s{S_WAVE}, 12
v_add_u32 v{vGW}, s{S_T0}, v{vL16}""")
    for q in range(1, 4):
        a(f"v_xor_b32 v{vA1+q-1}, {q*4096:#x}, v{vGW}")
    idx_reg(a, vIDX, vLANE, vT)
    a(f"""v_lshrrev_b32 v{vT}, 5, v{vLANE}
v_lshlrev_b32 v{vQKW}, 8, v{vT}
v_and_b32 v{vT}, 15, v{vLANE}
v_lshl_add_u32 v{vQKW}, v{vT}, 4, v{vQKW}
v_bfe_u32 v{vT}, v{vLANE}, 4, 1
v_lshl_add_u32 v{vQKW}, v{vT}, 3, v{vQKW}
s_lshl_b32 s{S_T0}, s{S_WAVE}, 9
v_add_u32 v{vQKW}, s{S_T0}, v{vQKW}
v_lshrrev_b32 v{vT}, 2, v{vLANE}
v_lshlrev_b32 v{vQKR}, 4, v{vT}
v_and_b32 v{vT}, 1, v{vLANE}
v_lshl_add_u32 v{vQKR}, v{vT}, 3, v{vQKR}
s_lshr_b32 s{S_T0}, s{S_WAVE}, 1
s_lshl_b32 s{S_T0}, s{S_T0}, 10
s_and_b32 s{S_T1}, s{S_WAVE}, 1
s_lshl_b32 s{S_T1}, s{S_T1}, 7
s_add_u32 s{S_T0}, s{S_T0}, s{S_T1}
s_add_u32 s{S_WOFF}, s{S_T0}, {WS_OM:#x}
s_lshl_b32 s{S_T0}, s{S_WAVE}, 9
v_add_u32 v{vVMO}, s{S_T0}, v{vL16}
v_mov_b32 v{vT}, {OOBV:#x}
v_cmp_gt_u32 vcc, 32, v{vLANE}
v_cndmask_b32 v{vVMO}, v{vT}, v{vVMO}, vcc
v_and_b32 v{vVM2}, 0xfffffdff, v{vVMO}
v_mov_b32 v{vT2}, 0xff800000""")
    for r in range(4): a(f"v_cndmask_b32 v{MK+r}, v{vT2}, 0, vcc")
    a(f"""v_lshrrev_b32 v{vT}, 4, v{vLANE}
v_lshlrev_b32 v{vKMO}, 7, v{vT}
v_lshlrev_b32 v{vT}, 2, v{vT}
v_and_b32 v{vOXO}, 15, v{vLANE}
v_sub_u32 v{vT}, v{vOXO}, v{vT}
s_and_b32 s{S_T3}, s{S_WAVE}, 1
s_lshl_b32 s{S_T0}, s{S_T3}, 4
v_add_u32 v{vT}, s{S_T0}, v{vT}""")
    for t in range(2):
        for r in range(4):
            a(f"v_cmp_le_i32 vcc, {16*t + r}, v{vT}\nv_cndmask_b32 v{MK+4+4*t+r}, v{vT2}, 0, vcc")
    a(f"""v_and_b32 v{vT}, 7, v{vLANE}
v_lshl_add_u32 v{vKMO}, v{vT}, 4, v{vKMO}
v_lshlrev_b32 v{vOXO}, 6, v{vOXO}
v_lshrrev_b32 v{vT}, 4, v{vLANE}
v_lshl_add_u32 v{vOXO}, v{vT}, 4, v{vOXO}
s_lshl_b32 s{S_T0}, s{S_HEAD}, 15
s_lshr_b32 s{S_T2}, s{S_WAVE}, 1
s_lshl_b32 s{S_T1}, s{S_T2}, 14
s_add_u32 s{S_T0}, s{S_T0}, s{S_T1}
s_lshl_b32 s{S_T1}, s{S_T3}, 10
s_add_u32 s{S_T0}, s{S_T0}, s{S_T1}
v_add_u32 v{vOXO}, s{S_T0}, v{vOXO}
s_lshl_b32 s89, s{S_T3}, 12
s_lshl_b32 s90, s{S_T2}, 12
s_lshl_b32 s91, s{S_HEAD}, 12
s_lshl_b32 s{S_T1}, s{S_T2}, 11
s_add_u32 s91, s91, s{S_T1}
s_lshl_b32 s{S_T1}, s{S_T3}, 17
s_add_u32 s91, s91, s{S_T1}
s_add_u32 s91, s91, {WS_OXF:#x}
s_cmp_eq_u32 s{S_T2}, 0
s_mov_b32 s93, {WS_VM:#x}
s_cselect_b32 s93, {WS_KM:#x}, s93
s_lshl_b32 s{S_T1}, s{S_T3}, 10
s_add_u32 s93, s93, s{S_T1}
v_mov_b32 v{vF}, 0""")
    for i in range(4): a(f"v_mov_b32 v{ONE+i}, 0x3f803f80\nv_mov_b32 v{SENT+i}, -1\nv_mov_b32 v{KD+8+i}, 0")
    a(f"v_mov_b32 v{HALF}, 0x3f003f00\nv_mov_b32 v{HALF+1}, 0x3f003f00")
    if cfg.get("stamps"): a(f"v_lshlrev_b32 v255, 2, v{vLANE}")
    cbits = f32bits(128 ** -0.5 * LOG2E)
    a(f"s_mov_b32 s{S_C}, {cbits:#x}\ns_mov_b32 s{S_C+1}, {cbits:#x}")
    a(f"""s_mov_b32 s{S_STEP}, 0
s_lshl_b32 s{S_OFF_A}, s{S_TEAM}, 20
s_add_u32 s{S_OFF_A}, s{S_OFF_A}, {WS_MEMT:#x}
s_lshl_b32 s{S_OFF_C}, s{S_HEAD}, 11""")
    startup_barrier(a, 244)
    a(f"""s_bcnt1_i32_b32 s{S_T0}, s{S_NEAR}
s_cmp_ge_u32 s{S_T0}, 4
s_cselect_b32 s{S_OFF_F}, 0x2000, 0
s_and_b32 s{S_T0}, s{S_J}, 1
s_lshl_b32 s{S_T0}, s{S_T0}, 12
s_add_u32 s{S_OFF_F}, s{S_OFF_F}, s{S_T0}
s_lshr_b32 s{S_T0}, s{S_J}, 1
s_lshl_b32 s{S_T0}, s{S_T0}, 14
s_add_u32 s{S_OFF_F}, s{S_OFF_F}, s{S_T0}
s_lshl_b32 s{S_T0}, s{S_TEAM}, 16
s_add_u32 s{S_OFF_F}, s{S_OFF_F}, s{S_T0}
s_lshl_b32 s{S_T0}, s{S_WAVE}, 10
s_add_u32 s{S_OFF_F}, s{S_OFF_F}, s{S_T0}
s_add_u32 s{S_OFF_F}, s{S_OFF_F}, {WS_PART:#x}
s_lshl_b32 s{S_OFF_E}, s{S_J}, 11
s_lshl_b32 s{S_T0}, s{S_WAVE}, 9
s_add_u32 s{S_OFF_E}, s{S_OFF_E}, s{S_T0}""")

    def x_dma(add, check=True):
        a(f"s_add_u32 s{S_OFF_B}, s{S_STEP}, {add}")
        if "wait_x" in hooks and check:
            a(f"s_mov_b32 s{S_T0}, s{S_OFF_B}")
            hooks["wait_x"](vT)
        a(f"""s_lshl_b32 s{S_T0}, s{S_OFF_B}, 18
s_lshl_b32 s{S_T1}, s{S_HEAD}, 13
s_add_u32 s{S_T0}, s{S_T0}, s{S_T1}
s_lshl_b32 s{S_T2}, s{S_WAVE}, 11
s_add_u32 s{S_T0}, s{S_T0}, s{S_T2}
s_cmp_ge_u32 s{S_OFF_B}, {NSEG}
s_cselect_b32 s{S_T0}, {OOBV:#x}, s{S_T0}
s_and_b32 s{S_T1}, s{S_OFF_B}, 3
s_lshl_b32 s{S_T1}, s{S_T1}, 15
s_add_u32 s{S_T1}, s{S_T1}, s{S_T2}""")
        for k, reg in enumerate((WS_QX, WS_KX, WS_VX)):
            a(f"s_add_u32 m0, s{S_T1}, {XRING + k * 8192:#x}\ns_add_u32 s{S_T3}, s{S_T0}, {reg:#x}")
            for f in range(2):
                a(f"buffer_load_dwordx4 v{vL16}, {WS}, s{S_T3} offen offset:{f*1024} sc1 lds")

    def chores():
        a(f"""s_xor_b32 s{S_T0}, s{S_OFF_F}, {JIT << 18:#x}
buffer_store_dwordx4 {vr(SENT,4)}, v{vL16}, {WS}, s{S_T0} offen sc1
s_xor_b32 s{S_T2}, s{S_OFF_C}, {JIT << 16:#x}
s_lshl_b32 s{S_T3}, s{S_WAVE}, 9
s_add_u32 s{S_T2}, s{S_T2}, s{S_T3}
s_add_u32 s{S_T0}, s{S_T2}, {WS_KM:#x}
s_add_u32 s{S_T1}, s{S_T2}, {WS_VM:#x}
s_add_u32 s{S_T2}, s{S_T2}, {WS_OM:#x}
s_xor_b32 s{S_T3}, s{S_OFF_A}, {JIT << 14:#x}
s_add_u32 s{S_T3}, s{S_T3}, s{S_OFF_E}
s_cmp_eq_u32 s{S_MODE}, 1
s_mov_b32 exec_hi, 0""")
        l1, l2 = a.uid("ji"), a.uid("ji")
        jit = lambda fl: "\n".join(f"buffer_store_dwordx4 {vr(SENT,4)}, v{vL16}, {WS}, s{t} offen {fl}" for t in (S_T0, S_T1, S_T2, S_T3))
        a(f"s_cbranch_scc0 {l1}\n{jit('')}\n{l2}:\ns_mov_b64 exec, -1")
        a.defer(lambda: a(f"{l1}:\n{jit('sc1')}\ns_branch {l2}"))

    pkfma = lambda r, nm: f"v_pk_fma_f32 {vr(r,2)}, {vr(r,2)}, s[{S_C}:{S_C+1}], {vr(nm,2)} op_sel_hi:[1,1,0] neg_lo:[0,0,1] neg_hi:[0,0,1]"
    if cfg.get("warm", 1):
        for k in range(2):
            a(f"""s_lshl_b32 s{S_T0}, s{S_WAVE}, 17
s_add_u32 s{S_T0}, s{S_T0}, s{S_OFF_C}
s_add_u32 s{S_T1}, s{S_T0}, {WS_KM + (k << 16):#x}
s_add_u32 s{S_T2}, s{S_T0}, {WS_VM + (k << 16):#x}""")
            for t in (S_T1, S_T2):
                for f in range(2): a(f"buffer_load_dwordx4 {vr(AF,4)}, v{vL16}, {WS}, s{t} offen offset:{f*1024} sc1")
    x_dma(0); x_dma(1)
    a("s_waitcnt vmcnt(6)\ns_barrier")
    sstamp(a, 7, cfg)
    a.set_filler(vF)
    a.label("S_loop")
    stamp(a, 0, cfg)
    a(f"""s_and_b32 s{S_T0}, s{S_STEP}, 3
s_lshl_b32 s{S_T0}, s{S_T0}, 15
s_add_u32 s{S_T0}, s{S_T0}, {XRING:#x}
v_add_u32 v{vXR}, s{S_T0}, v{vL16}
s_lshl_b32 s{S_T1}, s{S_WAVE}, 11
v_add_u32 v{vT2}, s{S_T1}, v{vXR}""")
    for f in range(8): a(f"ds_read_b128 {vr(KX+4*f,4)}, v{vXR} offset:{8192 + f*1024}")
    for f in range(2): a(f"ds_read_b128 {vr(VX+4*f,4)}, v{vT2} offset:{16384 + f*1024}")
    for i in range(8): a(f"v_mov_b32 v{ACC+i}, 0")
    for i in range(16): a(f"v_mov_b32 v{G+i}, -1\nv_mov_b32 v{KMF+i}, -1")
    for i in range(4): a(f"v_mov_b32 v{VM+i}, -1")
    a(f"""s_add_u32 s{S_T5}, s{S_OFF_C}, {WS_VM:#x}
s_add_u32 s{S_T4}, s{S_OFF_C}, s{S_WOFF}
s_add_u32 s{S_OFF_D}, s{S_OFF_C}, {WS_KM:#x}
s_waitcnt lgkmcnt(0)""")
    L = Lds(a)
    loads = [f"buffer_load_dwordx4 {vr(G+4*i,4)}, v{vGW}, {WS}, s{S_OFF_A} offen offset:{1024*i} sc1" for i in range(4)]
    o = cfg.get("s_mem", {})
    sp = SPoll(a, loads, [G + 4 * i for i in range(4)], vT, cap=o.get("cap", 3), sleep=o.get("sleep", 3), respin=o.get("respin", 4))
    gw = lambda f: L.op(("GW", f), f"ds_write_b128 v{vGW}, {vr(G+4*f,4)} offset:{L_MEM + 1024*f}")
    areg = lambda s: G + 4 * s if s < 4 else AF + 4 * (s - 4)
    def mm(s, t):
        if s >= 4: L.wait(("A", s))
        a(f"v_smfmac_f32_16x16x64_bf16 {vr(ACC+4*t,4)}, {vr(areg(s),4)}, {ar(wreg(s,t),8)}, v{vIDX}")
    def ard(s): L.op(("A", s), f"ds_read_b128 {vr(areg(s),4)}, v{vA1 + s // 4 - 1} offset:{L_MEM + (s % 4) * 1024}")
    if cfg.get("s_sleep"): a(f"s_sleep {cfg['s_sleep']}")
    kml = [f"buffer_load_dwordx4 {vr(KMF+4*f,4)}, v{vKMO}, {WS}, s{S_OFF_D} offen offset:{f*512} sc1" for f in range(4)]
    vml = f"buffer_load_dwordx4 {vr(VM,4)}, v{vVMO}, {WS}, s{S_T5} offen sc1"
    if cfg.get("s_ring", 1):
        def consume(g, k, chk):
            a(f"ds_write_b128 v{vGW}, {vr(G+4*g,4)} offset:{L_MEM + 1024*g}")
            for x in chk[:3]: a(x)
            mm(g, 0)
            if chk: a(chk[3])
        ring_poll2(a, loads, [G + 4 * i for i in range(4)], vT, consume, a.uid("sj"), space=o.get("space", 4), on_first=lambda: stamp(a, 1, cfg), rfill=o.get("rfill", 3))
        mm(0, 1); mm(1, 1)
        a("s_waitcnt lgkmcnt(0)\ns_barrier")
        probe(a, "b1", cfg)
        rest = list(range(4, 16))
        ard(4); ard(5); ard(6); mm(2, 1); ard(7); ard(8); ard(9); mm(3, 1)
        for k, s in enumerate(rest):
            mm(s, 0)
            if 10 + k < 16: ard(10 + k)
            mm(s, 1)
    else:
        sp.first(prefill=False, arm=o.get("arm", 0), arm_fill=o.get("afill", 6), arm_cap=o.get("acap", 4))
        stamp(a, 1, cfg)
        gw(0); sp.pre(1); mm(0, 0); sp.br(1)
        gw(1); sp.pre(2); mm(0, 1); mm(1, 0); sp.br(2)
        sp.pre(3); mm(1, 1)
        L.wait(("GW", 1)); a("s_barrier")
        probe(a, "b1", cfg)
        e1 = [4, 8, 12, 5, 9, 13]; e2 = [6, 10, 14, 7, 11, 15]
        ard(4); ard(8); mm(2, 0); ard(12); ard(5); sp.br(3); mm(2, 1); ard(9); ard(13); mm(3, 0)
        gw(2); mm(3, 1); gw(3)
        for k, s in enumerate(e1):
            mm(s, 0)
            if k >= 3: ard(e2[2*(k-3)])
            mm(s, 1)
            if k >= 3: ard(e2[2*(k-3)+1])
            if k == 2:
                L.wait(("GW", 3)); a("s_barrier")
        for s in e2:
            mm(s, 0); mm(s, 1)

    stamp(a, 2, cfg)
    for r in range(4): a(f"v_permlane32_swap_b32 v{ACC+r}, v{ACC+4+r}")
    for r in range(4): a(f"v_add_f32 v{ACC+r}, v{ACC+r}, v{ACC+4+r}")
    a(f"v_cvt_pk_bf16_f32 v{ACC+4}, v{ACC}, v{ACC+1}\nv_cvt_pk_bf16_f32 v{ACC+5}, v{ACC+2}, v{ACC+3}")
    L.op("QW", f"ds_write_b64 v{vQKW}, {vr(ACC+4,2)} offset:{L_QK}")
    keep(); keep(); keep()
    L.wait("QW"); a("s_waitcnt vmcnt(0)\ns_barrier")
    probe(a, "s_b", cfg)
    for ks in range(4):
        for u in range(2):
            L.op(("QF", ks), f"ds_read_b64_tr_b16 {vr(QF+4*ks+2*u,2)}, v{vQKR} offset:{L_QK + (32*ks+16*u)*16}")
        if ks % 2 == 0: keep()
    if cfg.get("km1", 1):
        for x in kml: a(x)
    keep()
    X, T0 = T + 4, T
    def sc(ks, t, d, C0):
        A = KMF + 4 * ks if t == 0 else KX + 16 * (t - 1) + 4 * ks
        a(f"v_mfma_f32_16x16x32_bf16 {vr(d,4)}, {vr(A,4)}, {vr(QF+4*ks,4)}, {C0 if ks == 0 else vr(d,4)}")
    for ks in range(4):
        L.wait(("QF", ks))
        sc(ks, 1, X, "0"); sc(ks, 2, X + 4, "0")
        if ks == cfg.get("km2", 2):
            for x in kml: a(x)
        if cfg.get("kmsp"): a(kml[ks])
    probe(a, "s_x", cfg)
    mx, m2, nm, al = MI, MI + 1, MI + 2, MI + 4
    if cfg.get("online", 0):
        nmx, LM = ACC, ACC + 4
        a(f"""v_max3_f32 v{mx}, v{X}, v{X+1}, v{X+2}
v_max3_f32 v{m2}, v{X+4}, v{X+5}, v{X+6}
v_max3_f32 v{mx}, v{mx}, v{X+3}, v{X+7}
v_max_f32 v{al}, v{mx}, v{m2}
v_max_f32 v{m2}, v{mx}, v{m2}
v_permlane32_swap_b32 v{al}, v{m2}
v_max_f32 v{mx}, v{al}, v{m2}
v_max_f32 v{al}, v{al}, v{m2}
v_permlane16_swap_b32 v{mx}, v{al}
v_max_f32 v{mx}, v{mx}, v{al}
v_mul_f32 v{nmx}, s{S_C}, v{mx}""")
        if cfg.get("km3", 1):
            for x in kml: a(x)
        for i in range(0, 8, 2): a(pkfma(X + i, nmx))
        for i in range(8):
            a(f"v_exp_f32 v{X+i}, v{X+i}")
            if i >= 2 and i % 2 == 0: a(f"v_cvt_pk_bf16_f32 v{PX+i//2-1}, v{X+i-2}, v{X+i-1}")
        a(vml)
        a(f"v_cvt_pk_bf16_f32 v{PX+3}, v{X+6}, v{X+7}")
        kl, kr = a.uid("kl"), a.uid("kr")
        a.label(kl)
        for ks in range(4):
            b = KMF + 4 * ks
            a(f"v_max3_u32 v{vT}, v{b}, v{b+1}, v{b+2 if ks == 0 else vT}")
            a(f"v_max_u32 v{vT}, v{vT}, v{b+3}" if ks == 0 else f"v_max3_u32 v{vT}, v{b+2}, v{b+3}, v{vT}")
            if ks == 3: a(f"v_cmp_eq_u32 vcc, {chain.SENTINEL[0]}, v{vT}")
            sc(ks, 0, T0, "0")
        a(f"v_mfma_f32_16x16x32_bf16 {vr(LS,4)}, {vr(ONE,4)}, {vr(PX,4)}, 0")
        a(f"s_cbranch_vccnz {kr}")
        def kretry():
            a.label(kr)
            for x in kml: a(x)
            a(vml)
            budget_head(a)
            a(f"s_waitcnt vmcnt(15)\ns_branch {kl}")
        a.defer(kretry)
        probe(a, "s_km", cfg)
        a(vml)
        a(f"v_mfma_f32_16x16x32_bf16 {vr(O,4)}, {vr(VX,4)}, {vr(PX,4)}, 0")
        a(f"""v_max3_f32 v{m2}, v{T0}, v{T0+1}, v{T0+2}
v_max3_f32 v{al}, v{m2}, v{T0+3}, v{mx}
v_max3_f32 v{m2}, v{m2}, v{T0+3}, v{mx}""")
        a(f"v_mfma_f32_16x16x32_bf16 {vr(O+4,4)}, {vr(VX+4,4)}, {vr(PX,4)}, 0")
        a(f"""v_permlane16_swap_b32 v{m2}, v{al}
v_max_f32 v{m2}, v{m2}, v{al}""")
        stamp(a, 3, cfg)
        a(f"v_mul_f32 v{nm}, s{S_C}, v{m2}")
        for r in range(4): a(f"v_fma_f32 v{T0+r}, v{T0+r}, s{S_C}, -v{nm}")
        a(f"v_sub_f32 v{al}, v{nmx}, v{nm}")
        for r in range(4): a(f"v_exp_f32 v{T0+r}, v{T0+r}")
        a(f"v_cvt_pk_bf16_f32 v{PM}, v{T0}, v{T0+1}")
        a(f"v_exp_f32 v{al}, v{al}")
        a(f"v_cvt_pk_bf16_f32 v{PM+1}, v{T0+2}, v{T0+3}")
        vp = SPoll(a, [vml], [VM], vT, cap=3, sleep=1)
        chk = vp.pre3(0)
        a(chk[0]); a(chk[1])
        a(f"v_mfma_f32_16x16x16_bf16 {vr(LM,4)}, {vr(HALF,2)}, {vr(PM,2)}, 0")
        a(chk[2])
        probe(a, "s_pv", cfg)
        pv, rt = a.uid("pv"), a.uid("vr")
        a.label(pv)
        a(f"v_mfma_f32_16x16x16_bf16 {vr(O+8,4)}, {vr(VM,2)}, {vr(PM,2)}, 0")
        a(f"v_mfma_f32_16x16x16_bf16 {vr(O+12,4)}, {vr(VM+2,2)}, {vr(PM,2)}, 0")
        a(f"s_cbranch_vccnz {rt}")
        a.defer(lambda: (vp._body(0, rt), a(f"s_branch {pv}")))
        a(f"s_cmp_eq_u32 s{S_MODE}, 1")
        a(f"v_fma_f32 v{mx}, v{LS}, v{al}, v{LM}")
        a(f"v_rcp_f32 v{nm}, v{mx}")
        a("s_mov_b32 exec_lo, 0x00ff00ff\ns_mov_b32 exec_hi, 0x00ff00ff")
        for i in range(0, 8, 2):
            a(f"v_pk_fma_f32 {vr(O+8+i,2)}, {vr(O+i,2)}, {vr(al,2)}, {vr(O+8+i,2)} op_sel_hi:[1,0,1]")
        for i in range(0, 8, 2):
            a(f"v_pk_mul_f32 {vr(O+8+i,2)}, {vr(O+8+i,2)}, {vr(nm,2)} op_sel_hi:[1,0]")
            if i >= 2: a(f"v_cvt_pk_bf16_f32 v{PX+i//2-1}, v{O+8+i-2}, v{O+8+i-1}")
        a(f"v_cvt_pk_bf16_f32 v{PX+3}, v{O+14}, v{O+15}")
    else:
        a(f"""v_max3_f32 v{mx}, v{X}, v{X+1}, v{X+2}
v_max3_f32 v{m2}, v{X+4}, v{X+5}, v{X+6}
v_max3_f32 v{mx}, v{mx}, v{X+3}, v{X+7}
v_max_f32 v{al}, v{mx}, v{m2}
v_max_f32 v{m2}, v{mx}, v{m2}
v_permlane32_swap_b32 v{al}, v{m2}""")
        ok = cfg.get("s_km", {})
        kp = SPoll(a, ["\n".join(kml)], [list(range(KMF, KMF + 16))], vT, cap=ok.get("cap", 12), sleep=ok.get("sleep", 0), respin=ok.get("respin", 0))
        kp.pre(0); a(vml); a.fill(4); kp.br(0)
        probe(a, "s_km", cfg)
        for ks in range(4): sc(ks, 0, T0, "0")
        a(vml)
        a(f"""v_max3_f32 v{mx}, v{T0}, v{T0+1}, v{T0+2}
v_max3_f32 v{m2}, v{al}, v{m2}, v{T0+3}
v_max_f32 v{al}, v{mx}, v{m2}
v_max_f32 v{mx}, v{mx}, v{m2}
v_permlane16_swap_b32 v{mx}, v{al}
v_max_f32 v{m2}, v{mx}, v{al}""")
        stamp(a, 3, cfg)
        a(f"v_mul_f32 v{nm}, s{S_C}, v{m2}")
        for i in range(0, 8, 2): a(pkfma(X + i, nm))
        a(pkfma(T0, nm)); a(pkfma(T0 + 2, nm))
        a(vml)
        for i in range(8):
            a(f"v_exp_f32 v{X+i}, v{X+i}")
            if i >= 2 and i % 2 == 0: a(f"v_cvt_pk_bf16_f32 v{PX+i//2-1}, v{X+i-2}, v{X+i-1}")
        a(f"v_exp_f32 v{T0}, v{T0}")
        a(f"v_cvt_pk_bf16_f32 v{PX+3}, v{X+6}, v{X+7}")
        a(f"v_exp_f32 v{T0+1}, v{T0+1}\nv_exp_f32 v{T0+2}, v{T0+2}")
        a(f"v_mfma_f32_16x16x32_bf16 {vr(LS,4)}, {vr(ONE,4)}, {vr(PX,4)}, 0")
        a(f"v_exp_f32 v{T0+3}, v{T0+3}")
        a(f"v_mfma_f32_16x16x32_bf16 {vr(O,4)}, {vr(VX,4)}, {vr(PX,4)}, 0")
        a(f"v_cvt_pk_bf16_f32 v{PM}, v{T0}, v{T0+1}\nv_cvt_pk_bf16_f32 v{PM+1}, v{T0+2}, v{T0+3}")
        a(f"v_mfma_f32_16x16x32_bf16 {vr(O+4,4)}, {vr(VX+4,4)}, {vr(PX,4)}, 0")
        vp = SPoll(a, [vml], [VM], vT, cap=3, sleep=1)
        chk = vp.pre3(0)
        a(chk[0]); a(chk[1])
        a(f"v_mfma_f32_16x16x16_bf16 {vr(LS,4)}, {vr(HALF,2)}, {vr(PM,2)}, {vr(LS,4)}")
        a(chk[2])
        probe(a, "s_pv", cfg)
        pv, rt = a.uid("pv"), a.uid("vr")
        a.label(pv)
        a(f"v_mfma_f32_16x16x16_bf16 {vr(O+8,4)}, {vr(VM,2)}, {vr(PM,2)}, {vr(O,4)}")
        a(f"v_mfma_f32_16x16x16_bf16 {vr(O+12,4)}, {vr(VM+2,2)}, {vr(PM,2)}, {vr(O+4,4)}")
        a(f"s_cbranch_vccnz {rt}")
        a.defer(lambda: (vp._body(0, rt), a(f"s_branch {pv}")))
        a(f"s_cmp_eq_u32 s{S_MODE}, 1")
        a(f"v_rcp_f32 v{nm}, v{LS}")
        a("s_mov_b32 exec_lo, 0x00ff00ff\ns_mov_b32 exec_hi, 0x00ff00ff")
        for i in range(0, 8, 2):
            a(f"v_pk_mul_f32 {vr(O+8+i,2)}, {vr(O+8+i,2)}, {vr(nm,2)} op_sel_hi:[1,0]")
            if i >= 2: a(f"v_cvt_pk_bf16_f32 v{PX+i//2-1}, v{O+8+i-2}, v{O+8+i-1}")
        a(f"v_cvt_pk_bf16_f32 v{PX+3}, v{O+14}, v{O+15}")
    store_mode2(a, f"buffer_store_dwordx4 {vr(PX,4)}, v{vL16}, {WS}, s{S_T4} offen")
    a("s_mov_b64 exec, -1")
    stamp(a, 4, cfg)

    V4, VM2, P2, O2, D2 = AF, AF + 16, AF + 24, G, KD
    t0 = cfg.get("tail_seg0", 64)
    def ox_store(seg):
        l1, l2 = a.uid("ox"), a.uid("ox")
        a(f"""s_cmp_ge_u32 s{seg}, {t0}
s_cbranch_scc1 {l1}
s_lshr_b32 s{S_T2}, s{seg}, 2
s_lshl_b32 s{S_T2}, s{S_T2}, 20
s_and_b32 s{S_T1}, s{seg}, 3
s_lshl_b32 s{S_T1}, s{S_T1}, 11
s_add_u32 s{S_T2}, s{S_T2}, s{S_T1}
s_add_u32 s{S_T2}, s{S_T2}, {WS_OX:#x}
s_add_u32 s{S_T1}, s{S_T2}, 0x2000
buffer_store_dwordx4 {vr(D2,4)}, v{vOXO}, {WS}, s{S_T2} offen sc1
buffer_store_dwordx4 {vr(D2+4,4)}, v{vOXO}, {WS}, s{S_T1} offen sc1
{l2}:""")
        a.defer(lambda: a(f"""{l1}:
s_lshl_b32 s{S_T2}, s{seg}, 18
s_add_u32 s{S_T2}, s{S_T2}, s91
s_cmp_ge_u32 s{seg}, {NSEG}
s_cselect_b32 s{S_T2}, {OOBV:#x}, s{S_T2}
buffer_store_dwordx4 {vr(D2,4)}, v{vL16}, {WS}, s{S_T2} offen sc1
buffer_store_dwordx4 {vr(D2+4,4)}, v{vL16}, {WS}, s{S_T2} offen offset:1024 sc1
s_branch {l2}"""))
    vm2 = [f"buffer_load_dwordx4 {vr(VM2+4*i,4)}, v{vVM2}, {WS}, s{S_T5} offen offset:{512*i} sc1" for i in range(2)]
    for x in vm2: a(x)
    a(f"v_add_u32 v{vT2}, s89, v{vXR}\nv_add_u32 v{vT}, s90, v{vXR}")
    for ks in range(4): a(f"ds_read_b128 {vr(QF+4*ks,4)}, v{vT2} offset:{ks*1024}")
    for f in range(4): a(f"ds_read_b128 {vr(V4+4*f,4)}, v{vT} offset:{16384 + f*1024}")
    def burst():
        if "wait_x" in hooks:
            a(f"s_add_u32 s{S_T0}, s{S_STEP}, 2")
            hooks["wait_x"](vT)
        a(f"s_sub_u32 s92, s{S_STEP}, 1\ns_cmp_ge_u32 s92, {NSEG-cfg.get('early', 6)}\ns_cselect_b32 s92, -1, s92")
        ox_store(92)
        if cfg.get("retouch", 1):
            a(f"""s_add_u32 s{S_T0}, s{S_OFF_C}, 0x10000
s_bitset0_b32 s{S_T0}, 19
s_add_u32 s{S_T0}, s{S_T0}, s93
buffer_load_dwordx4 {vr(AF+40,4)}, v{vL16}, {WS}, s{S_T0} offen sc1""")
        chores()
        x_dma(2, False)
    bp = cfg.get("burst", 2)
    if bp == 0: burst()
    for ks in range(4):
        a(f"s_waitcnt lgkmcnt({7 - ks})")
        for t in (1, 2, 0):
            A = KMF + 4 * ks if t == 0 else KX + 16 * (t - 1) + 4 * ks
            a(f"v_mfma_f32_16x16x32_bf16 {vr(T+4*t,4)}, {vr(A,4)}, {vr(QF+4*ks,4)}, {vr(MK+4*t,4) if ks == 0 else vr(T+4*t,4)}")
    if bp == 1: burst()
    a(f"s_waitcnt vmcnt({13 if bp < 2 else 0}) lgkmcnt(0)")
    if "post_om" in hooks: hooks["post_om"](MI)
    v2p = SPoll(a, ["\n".join(vm2)], [list(range(VM2, VM2 + 8))], vT, cap=0)
    v2p.pre(0); a.fill(4); v2p.br(0)
    regs = [T + 4 * t + r for t in (1, 2, 0) for r in range(4)]
    a(f"v_max3_f32 v{mx}, v{regs[0]}, v{regs[1]}, v{regs[2]}")
    rest = regs[3:]
    while rest:
        if len(rest) >= 2: a(f"v_max3_f32 v{mx}, v{mx}, v{rest[0]}, v{rest[1]}"); rest = rest[2:]
        else: a(f"v_max_f32 v{mx}, v{mx}, v{rest[0]}"); rest = rest[1:]
    xlane_reduce(a, "v_max_f32", mx, m2)
    a(f"v_mul_f32 v{nm}, s{S_C}, v{mx}")
    for i in range(0, 12, 2): a(pkfma(T + i, nm))
    if bp == 2: burst()
    for r in regs: a(f"v_exp_f32 v{r}, v{r}")
    for i in range(6): a(f"v_cvt_pk_bf16_f32 v{P2+i}, v{regs[2*i]}, v{regs[2*i+1]}")
    a(f"v_mfma_f32_16x16x32_bf16 {vr(LS,4)}, {vr(ONE,4)}, {vr(P2,4)}, 0")
    for f in range(4): a(f"v_mfma_f32_16x16x32_bf16 {vr(O2+4*f,4)}, {vr(V4+4*f,4)}, {vr(P2,4)}, 0")
    a(f"v_mfma_f32_16x16x16_bf16 {vr(LS,4)}, {vr(ONE,2)}, {vr(P2+4,2)}, {vr(LS,4)}")
    for f in range(4): a(f"v_mfma_f32_16x16x16_bf16 {vr(O2+4*f,4)}, {vr(VM2+2*f,2)}, {vr(P2+4,2)}, {vr(O2+4*f,4)}")
    a(f"v_rcp_f32 v{nm}, v{LS}")
    for i in range(0, 16, 2): a(f"v_pk_mul_f32 {vr(O2+i,2)}, {vr(O2+i,2)}, {vr(nm,2)} op_sel_hi:[1,0]")
    for i in range(8): a(f"v_cvt_pk_bf16_f32 v{D2+i}, v{O2+2*i}, v{O2+2*i+1}")
    e1, e2 = a.uid("ie"), a.uid("ie")
    a(f"s_cmp_ge_u32 s{S_STEP}, {NSEG-cfg.get('early', 6)}\ns_cbranch_scc1 {e1}\n{e2}:")
    def early_store():
        a.label(e1); ox_store(S_STEP); a(f"s_branch {e2}")
    a.defer(early_store)
    stamp(a, 5, cfg)
    stamp_flush(a, cfg)
    a(f"""s_add_u32 s{S_STEP}, s{S_STEP}, 1
s_cmp_eq_u32 s{S_STEP}, {NSEG}
s_cbranch_scc1 {hooks.get('exit', 'L_done')}
s_add_u32 s{S_OFF_A}, s{S_OFF_A}, 0x4000
s_bitset0_b32 s{S_OFF_A}, 17
s_add_u32 s{S_OFF_C}, s{S_OFF_C}, {32*2048:#x}
s_bitset0_b32 s{S_OFF_C}, 19
s_add_u32 s{S_OFF_F}, s{S_OFF_F}, 0x40000
s_bitset0_b32 s{S_OFF_F}, 21
s_branch S_loop""")
    a.flush_deferred()
    a.set_filler(None)


def v_cu(a, cfg, hooks=None):
    hooks = hooks or {}
    vLANE, vGOFF, vIDX, vL16, vT, vT2, vVMO, vOMO, vRW, vRR, vPO, vMO, vL4, vD, vI16 = range(0, 15)
    QF = 16
    G, ACC, ACC2, OF, RD, RP, MI, SENT = 32, 48, 64, 80, 96, 104, 112, 120
    vRV, vKO = 124, 125
    WV = 128
    cfg = dict(cfg); cfg["stamp_reg"] = MI + 5; cfg["lane4_reg"] = vL4
    a(f"""s_lshl_b32 s{S_HEAD}, s{S_TEAM}, 3
s_lshr_b32 s{S_T0}, s{S_J}, 1
s_add_u32 s{S_HEAD}, s{S_HEAD}, s{S_T0}""")
    srd(a, S_W0, 32, 1024 * 8192)
    srd(a, S_W1, 40, 4096 * 2048)
    srd(a, S_W2, 8, 8 * 2048)
    a(f"v_and_b32 v{vLANE}, 63, v0")
    a(f"v_lshlrev_b32 v{vL16}, 4, v{vLANE}")
    a(f"v_lshlrev_b32 v{vL4}, 2, v{vLANE}")
    for i in range(4): a(f"v_mov_b32 v{SENT+i}, -1")
    a(f"""s_lshl_b32 s{S_OFF_A}, s{S_TEAM}, 20
s_add_u32 s{S_OFF_A}, s{S_OFF_A}, {WS_MEMT:#x}
s_lshl_b32 s{S_T0}, s{S_J}, 10
s_add_u32 s{S_OFF_E}, s{S_OFF_A}, s{S_T0}
s_lshl_b32 s{S_OFF_C}, s{S_HEAD}, 11
s_and_b32 s{S_T1}, s{S_J}, 1
s_lshl_b32 s{S_T1}, s{S_T1}, 10
s_add_u32 s{S_OFF_B}, s{S_OFF_C}, s{S_T1}
s_and_b32 s{S_T0}, s{S_J}, 3
s_lshl_b32 s{S_OFF_D}, s{S_T0}, 11
s_lshr_b32 s{S_T0}, s{S_J}, 2
s_lshl_b32 s{S_T0}, s{S_T0}, 14
s_add_u32 s{S_OFF_D}, s{S_OFF_D}, s{S_T0}
s_add_u32 s{S_OFF_D}, s{S_OFF_D}, {WS_PART:#x}
s_lshl_b32 s{S_T0}, s{S_TEAM}, 16
s_add_u32 s{S_OFF_F}, s{S_OFF_D}, s{S_T0}""")

    for rep in range(2 if cfg.get('init8', 1) else 1):
        a(f"s_add_u32 s{S_T5}, s{S_WAVE}, {4*rep}")
        a(f"""s_lshl_b32 s{S_T0}, s{S_T5}, 14
s_add_u32 s{S_T0}, s{S_T0}, s{S_OFF_E}
buffer_store_dwordx4 {vr(SENT,4)}, v{vL16}, {WS}, s{S_T0} offen sc1
s_lshl_b32 s{S_T0}, s{S_T5}, 16
s_add_u32 s{S_T0}, s{S_T0}, s{S_OFF_B}
s_add_u32 s{S_T1}, s{S_T0}, {WS_VM:#x}
buffer_store_dwordx4 {vr(SENT,4)}, v{vL16}, {WS}, s{S_T1} offen sc1
s_add_u32 s{S_T1}, s{S_T0}, {WS_OM:#x}
buffer_store_dwordx4 {vr(SENT,4)}, v{vL16}, {WS}, s{S_T1} offen sc1
s_add_u32 s{S_T1}, s{S_T0}, {WS_KM:#x}
buffer_store_dwordx4 {vr(SENT,4)}, v{vL16}, {WS}, s{S_T1} offen sc1
s_lshl_b32 s{S_T0}, s{S_T5}, 18
s_add_u32 s{S_T0}, s{S_T0}, s{S_OFF_F}
buffer_store_dwordx4 {vr(SENT,4)}, v{vL16}, {WS}, s{S_T0} offen sc1
buffer_store_dwordx4 {vr(SENT,4)}, v{vL16}, {WS}, s{S_T0} offen offset:1024 sc1
s_add_u32 s{S_T0}, s{S_T0}, 0x2000
buffer_store_dwordx4 {vr(SENT,4)}, v{vL16}, {WS}, s{S_T0} offen sc1
buffer_store_dwordx4 {vr(SENT,4)}, v{vL16}, {WS}, s{S_T0} offen offset:1024 sc1""")

    a(f"""v_mov_b32 v{G}, 0
v_mov_b32 v{G+1}, 0
v_mov_b32 v{G+2}, 0
v_mov_b32 v{G+3}, 0
s_lshl_b32 s{S_T0}, s{S_TEAM}, 4
s_add_u32 s{S_T0}, s{S_T0}, s{S_J}
s_lshl_b32 s{S_T0}, s{S_T0}, 9
s_lshl_b32 s{S_T1}, s{S_WAVE}, 7
s_add_u32 s{S_T0}, s{S_T0}, s{S_T1}
s_add_u32 s{S_T0}, s{S_T0}, {WS_CNT:#x}
s_mov_b64 exec, 0xff
buffer_store_dwordx4 {vr(G,4)}, v{vL16}, {WS}, s{S_T0} offen sc1
s_mov_b64 exec, -1""")
    if not cfg.get("noprobe"):
        skip = a.uid("pr")
        a(f"""s_lshl_b32 s{S_T0}, s{S_TEAM}, 4
s_add_u32 s{S_T0}, s{S_T0}, s{S_J}
s_cmp_ge_u32 s{S_T0}, 8
s_cbranch_scc1 {skip}
s_cmp_lg_u32 s{S_WAVE}, 3
s_cbranch_scc1 {skip}
s_add_u32 s{S_T1}, s{S_OFF_F}, {7 << 18:#x}
s_add_u32 s{S_T2}, s{S_T1}, 0x2000
buffer_store_dwordx4 {vr(SENT,4)}, v{vL16}, {WS}, s{S_T1} offen sc1
buffer_store_dwordx4 {vr(SENT,4)}, v{vL16}, {WS}, s{S_T2} offen sc1
v_mov_b32 v{vT2}, 0
s_mov_b32 s60, -1
s_mov_b32 s61, -1
s_waitcnt vmcnt(0)""")
        pl = a.uid("pl")
        a(f"s_mov_b32 s66, 0\n{pl}:")
        for c in range(2):
            a(f"""s_memtime s[62:63]
s_waitcnt lgkmcnt(0)
buffer_load_dword v{vT}, v{vT2}, {WS}, s{S_T1+c} offen sc1
s_waitcnt vmcnt(0)
s_memtime s[64:65]
s_waitcnt lgkmcnt(0)
s_sub_u32 s64, s64, s62
s_min_u32 s{60+c}, s{60+c}, s64
s_add_u32 s{S_T1+c}, s{S_T1+c}, 128""")
        a(f"s_add_u32 s66, s66, 1\ns_cmp_lt_u32 s66, {cfg.get('nprobe', 4)}\ns_cbranch_scc1 {pl}")
        a(f"""s_cmp_lt_u32 s61, s60
s_cselect_b32 s{S_T1}, 1, 0
s_lshl_b32 s{S_T1}, s{S_T1}, s{S_J}
v_mov_b32 v{vT}, s{S_T1}
s_mov_b64 exec, 1
buffer_atomic_or v{vT}, v{vT2}, {DBG}, 0 offen offset:12 sc1
s_mov_b64 exec, -1
{skip}:""")

    a("s_waitcnt vmcnt(0)\ns_barrier")
    arrive(a, G + 4)

    srd(a, 84, 24, 1024 * 8192)
    vD2, vWT = MI, MI + 1
    a(f"""v_lshrrev_b32 v{vT}, 3, v{vLANE}
v_lshlrev_b32 v{vD}, 13, v{vT}
v_lshlrev_b32 v{vD2}, 11, v{vT}
v_and_b32 v{vT}, 7, v{vLANE}
v_lshl_add_u32 v{vD}, v{vT}, 4, v{vD}
v_lshl_add_u32 v{vD2}, v{vT}, 4, v{vD2}
s_lshl_b32 s{S_T0}, s{S_HEAD}, 8
s_and_b32 s{S_T1}, s{S_J}, 1
s_lshl_b32 s{S_T1}, s{S_T1}, 7
s_add_u32 s{S_T0}, s{S_T0}, s{S_T1}
s_lshl_b32 s{S_T1}, s{S_WAVE}, 21
s_add_u32 s{S_T0}, s{S_T0}, s{S_T1}
v_add_u32 v{vD}, s{S_T0}, v{vD}
s_lshl_b32 s{S_T0}, s{S_TEAM}, 21
s_lshl_b32 s{S_T1}, s{S_J}, 7
s_add_u32 s{S_T0}, s{S_T0}, s{S_T1}
s_lshl_b32 s{S_T1}, s{S_WAVE}, 19
s_add_u32 s{S_T0}, s{S_T0}, s{S_T1}
v_add_u32 v{vD2}, s{S_T0}, v{vD2}
s_lshl_b32 s{S_T2}, s{S_WAVE}, 15
s_add_u32 s{S_T2}, s{S_T2}, {L_W:#x}""")
    for dst, bits in ((vWT, ((5, 11), (3, 10), (4, 9), (2, 7))), (vWT + 1, ((3, 12), (4, 11), (5, 9), (2, 7)))):
        a(f"v_and_b32 v{vT}, 3, v{vLANE}\nv_lshlrev_b32 v{dst}, 3, v{vT}")
        for b, sh in bits:
            a(f"v_bfe_u32 v{vT}, v{vLANE}, {b}, 1\nv_lshl_add_u32 v{dst}, v{vT}, {sh}, v{dst}")
        a(f"v_add_u32 v{dst}, s{S_T2}, v{dst}")
    units = [(m, f) for m in range(3) for f in range(4)]
    def issue(n):
        m, f = units[n]
        sr_, vo, pl = ((84, vD, 13), (S_W0, vD, 13), (S_W1, vD2, 11))[m]
        for i in range(8):
            a(f"s_add_u32 m0, s{S_T2}, {(n % 4) * 8192 + i * 1024}")
            a(f"s_mov_b32 s{S_T4}, {(f * 64 + i * 8) << pl:#x}")
            a(f"buffer_load_dwordx4 v{vo}, s[{sr_}:{sr_+3}], s{S_T4} offen lds")
    for n in range(4): issue(n)
    for n in range(12):
        m, f = units[n]
        a(f"s_waitcnt vmcnt({8 * min(3, 11 - n)})")
        for ct in range(4):
            k, b = (("a", 0), ("v", WV), ("a", 128))[m]
            for v in range(4):
                ro = (32 * (v // 2) + 2 * (v % 2)) if m < 2 else (8 * (v // 2) + 2 * (v % 2))
                a(f"ds_read_b64_tr_b16 {vr(b+(f*4+ct)*8+2*v,2,k)}, v{vWT + (m == 2)} offset:{(n % 4) * 8192 + ro * 128 + ct * 32}")
            if ct == 2: a("s_waitcnt lgkmcnt(4)")
        a("s_waitcnt lgkmcnt(0)")
        if n + 4 < 12: issue(n + 4)
        if n == 3: sstamp(a, 6, cfg)
    a(f"""s_lshl_b32 s{S_T0}, s{S_WAVE}, 12
v_add_u32 v{vGOFF}, s{S_T0}, v{vL16}""")
    idx_reg(a, vIDX, vLANE, vT)
    a(f"""v_and_b32 v{vT}, 31, v{vLANE}
v_lshlrev_b32 v{vVMO}, 4, v{vT}
v_lshrrev_b32 v{vT}, 5, v{vLANE}
v_lshl_add_u32 v{vVMO}, v{vT}, 2, v{vVMO}
s_lshr_b32 s{S_T0}, s{S_WAVE}, 1
s_lshl_b32 s{S_T0}, s{S_T0}, 9
s_and_b32 s{S_T1}, s{S_WAVE}, 1
s_lshl_b32 s{S_T1}, s{S_T1}, 3
s_add_u32 s{S_T0}, s{S_T0}, s{S_T1}
v_add_u32 v{vVMO}, s{S_T0}, v{vVMO}
s_lshl_b32 s{S_T0}, s{S_TEAM}, 14
v_add_u32 v{vOMO}, s{S_T0}, v{vGOFF}""")
    a(f"""s_lshl_b32 s{S_T0}, s{S_WAVE}, 11
v_add_u32 v{vRW}, s{S_T0}, v{vL4}""")
    a(f"""v_bfe_u32 v{vT}, v{vLANE}, 2, 2
v_lshlrev_b32 v{vRR}, 9, v{vT}
v_bfe_u32 v{vT}, v{vLANE}, 2, 1
v_lshl_add_u32 v{vRR}, v{vT}, 5, v{vRR}
v_bfe_u32 v{vT}, v{vLANE}, 3, 1
v_lshl_add_u32 v{vRR}, v{vT}, 7, v{vRR}
v_bfe_u32 v{vT}, v{vLANE}, 4, 1
v_lshl_add_u32 v{vRR}, v{vT}, 6, v{vRR}
v_lshrrev_b32 v{vT}, 5, v{vLANE}
v_lshl_add_u32 v{vRR}, v{vT}, 5, v{vRR}
v_and_b32 v{vT}, 3, v{vLANE}
v_lshl_add_u32 v{vRR}, v{vT}, 3, v{vRR}
s_lshr_b32 s{S_T0}, s{S_WAVE}, 1
s_lshl_b32 s{S_T0}, s{S_T0}, 11
s_and_b32 s{S_T1}, s{S_WAVE}, 1
s_lshl_b32 s{S_T1}, s{S_T1}, 7
s_add_u32 s{S_T0}, s{S_T0}, s{S_T1}
v_add_u32 v{vRR}, s{S_T0}, v{vRR}""")
    a(f"""v_and_b32 v{vT}, 31, v{vLANE}
v_lshlrev_b32 v{vRV}, 2, v{vT}
v_lshrrev_b32 v{vT}, 5, v{vLANE}
v_lshl_add_u32 v{vRV}, v{vT}, 10, v{vRV}
v_add_u32 v{vRV}, s{S_T0}, v{vRV}""")
    a(f"""v_bfe_u32 v{vT}, v{vLANE}, 2, 3
v_lshlrev_b32 v{vKO}, 4, v{vT}
v_lshrrev_b32 v{vT}, 5, v{vLANE}
v_lshl_add_u32 v{vKO}, v{vT}, 8, v{vKO}
v_bfe_u32 v{vT}, v{vLANE}, 1, 1
v_lshl_add_u32 v{vKO}, v{vT}, 7, v{vKO}
v_and_b32 v{vT}, 1, v{vLANE}
v_lshl_add_u32 v{vKO}, v{vT}, 2, v{vKO}
s_lshr_b32 s{S_T0}, s{S_WAVE}, 1
s_lshl_b32 s{S_T0}, s{S_T0}, 9
s_and_b32 s{S_T1}, s{S_WAVE}, 1
s_lshl_b32 s{S_T1}, s{S_T1}, 3
s_add_u32 s{S_T0}, s{S_T0}, s{S_T1}
v_add_u32 v{vKO}, s{S_T0}, v{vKO}""")
    a(f"""v_lshlrev_b32 v{vPO}, 3, v{vLANE}
s_lshl_b32 s{S_T0}, s{S_WAVE}, 9
v_add_u32 v{vPO}, s{S_T0}, v{vPO}
s_lshl_b32 s{S_T0}, s{S_WAVE}, 8
v_add_u32 v{vMO}, s{S_T0}, v{vL4}
v_add_u32 v{vI16}, s{S_T0}, v{vL16}""")
    M0R = RP
    a(f"""v_bfe_u32 v{vT}, v{vLANE}, 2, 3
v_lshlrev_b32 v{vT2}, 11, v{vT}
v_lshrrev_b32 v{vT}, 5, v{vLANE}
v_lshl_add_u32 v{vT2}, v{vT}, 4, v{vT2}
v_and_b32 v{vT}, 3, v{vLANE}
v_lshl_add_u32 v{vT2}, v{vT}, 2, v{vT2}
s_lshl_b32 s{S_T0}, s{S_J}, 7
s_lshl_b32 s{S_T1}, s{S_WAVE}, 5
s_add_u32 s{S_T0}, s{S_T0}, s{S_T1}
buffer_load_dword v{M0R}, v{vT2}, s[{S_W2}:{S_W2+3}], s{S_T0} offen
s_waitcnt vmcnt(0)""")
    sstamp(a, 7, cfg)
    a("s_waitcnt lgkmcnt(0)")
    startup_barrier(a, MI + 2)
    def keep32():
        a(f"v_mfma_f32_32x32x16_bf16 {vr(QF,16)}, {vr(SENT,4)}, {vr(SENT,4)}, {vr(QF,16)}")
    L_K = L_W

    def epi(AC, lbase, pad, keep, tag, extra=None):
        sw = lambda p, r: f"v_permlane32_swap_b32 v{AC+8*p+r}, v{AC+8*p+4+r}"
        ad = lambda p, r: f"v_add_f32 v{AC+8*p+r}, v{AC+8*p+r}, v{AC+8*p+4+r}"
        wr = lambda p, r: f"ds_write_addtid_b32 v{AC+8*p+r} offset:{lbase + (p*4+r)*512 + (pad and (r % 2) * 32 + (r // 2) * 128)}"
        ex = extra or (lambda k: None)
        ex(0)
        for r in range(4):
            a(sw(0, r))
            if r % 2: ex(1 + r // 2)
        for r in range(4): a(ad(0, r))
        ex(3)
        for r in range(4):
            a(sw(1, r)); a(wr(0, r))
            if r % 2: ex(4 + r // 2)
        for r in range(4): a(ad(1, r))
        keep(0)
        for r in range(4): a(wr(1, r))
        probe(a, tag + "w", cfg)
        keep(1)
        a("s_waitcnt lgkmcnt(0)\ns_barrier")
        probe(a, tag + "b", cfg)

    def sum4(reads, keep):
        a(reads[0]); a(reads[1]); keep(2); a(reads[2]); a(reads[3]); keep(3)
        a("s_waitcnt lgkmcnt(2)")
        a(f"v_add_f32 v{RD}, v{RD}, v{RD+2}\nv_add_f32 v{RD+1}, v{RD+1}, v{RD+3}")
        a("s_waitcnt lgkmcnt(0)")
        a(f"v_add_f32 v{RD+4}, v{RD+4}, v{RD+6}\nv_add_f32 v{RD+5}, v{RD+5}, v{RD+7}")
        a(f"v_add_f32 v{RD}, v{RD}, v{RD+4}\nv_add_f32 v{RD+1}, v{RD+1}, v{RD+5}")

    def kpoll(loads, F, wbase, stamp_idx, o):
        def mm(f, ct):
            a(f"v_smfmac_f32_16x16x64_bf16 {vr(ACC+4*ct,4)}, {vr(F+4*f,4)}, {ar(wbase+(f*4+ct)*8,8)}, v{vIDX}")
        if o.get("pre", 0): a.fill(o["pre"])
        def consume(g, k, chk):
            for ct in range(4):
                mm(g, ct)
                if chk: a(chk[ct])
        ring_poll2(a, loads, [F + 4 * f for f in range(4)], vT, consume, a.uid("kj"), space=o.get("space", 4), on_first=lambda: stamp(a, stamp_idx, cfg), rfill=o.get("rfill", 3))

    a(f"""s_bcnt1_i32_b32 s{S_T0}, s{S_NEAR}
s_cmp_ge_u32 s{S_T0}, 4
s_cselect_b32 s{S_T0}, 0x2000, 0
s_add_u32 s{S_OFF_F}, s{S_OFF_F}, s{S_T0}
s_lshl_b32 m0, s{S_WAVE}, 12
s_barrier""")
    a.set_filler(vD)
    store_mode(a, f"buffer_store_dword v{M0R}, v{vMO}, {WS}, s{S_OFF_E} offen")
    a(f"s_mov_b32 s{S_STEP}, 0")
    for i in range(32): a(f"v_mov_b32 v{ACC+i}, 0")
    for i in range(16): a(f"v_mov_b32 v{G+i}, -1")

    a.label("V_loop")
    stamp(a, 0, cfg)
    a(f"s_add_u32 s85, s{S_OFF_B}, {WS_KM:#x}\ns_add_u32 s86, s{S_OFF_B}, {WS_VM:#x}")
    kpoll([f"buffer_load_dwordx4 {vr(G+4*i,4)}, v{vGOFF}, {WS}, s{S_OFF_A} offen offset:{1024*i} sc1" for i in range(4)], G, 0, 1, cfg.get("v_mem", {}))
    vq = [(f, ct) for p in range(2) for f in range(4) for ct in (2 * p, 2 * p + 1)]
    def vm_(n):
        for _ in range(min(n, len(vq))):
            f, ct = vq.pop(0)
            a(f"v_smfmac_f32_16x16x64_bf16 {vr(ACC2+4*ct,4)}, {vr(G+4*f,4)}, {vr(WV+(f*4+ct)*8,8)}, v{vIDX}")
    if cfg.get("kvpipe", 0):
        def parts(AC, lbase, pad):
            sw = lambda p, r: f"v_permlane32_swap_b32 v{AC+8*p+r}, v{AC+8*p+4+r}"
            ad = lambda p, r: f"v_add_f32 v{AC+8*p+r}, v{AC+8*p+r}, v{AC+8*p+4+r}"
            wr = lambda p, r: f"ds_write_addtid_b32 v{AC+8*p+r} offset:{lbase + (p*4+r)*512 + (pad and (r % 2) * 32 + (r // 2) * 128)}"
            return sw, ad, wr
        sw, ad, wr = parts(ACC, L_K, 1)
        kseq = [sw(0, 0), sw(0, 1), sw(0, 2), sw(0, 3), ad(0, 0) + "\n" + ad(0, 1), ad(0, 2) + "\n" + ad(0, 3),
                sw(1, 0) + "\n" + wr(0, 0), sw(1, 1) + "\n" + wr(0, 1), sw(1, 2) + "\n" + wr(0, 2), sw(1, 3) + "\n" + wr(0, 3),
                ad(1, 0) + "\n" + ad(1, 1), ad(1, 2) + "\n" + ad(1, 3), "\n".join(wr(1, r) for r in range(4))]
        every = cfg.get("kvevery", 1)
        for k, x in enumerate(kseq):
            if k % every == 0: vm_(1)
            a(x)
        vm_(cfg.get("kvw", 3))
        a(f"s_waitcnt lgkmcnt(0)\ns_barrier\ns_cmp_eq_u32 s{S_MODE}, 1")
        for src in range(4): a(f"ds_read_b64 {vr(RD+2*src,2)}, v{vRR} offset:{L_K + src*4096}")
        vm_(16)
        sw, ad, wr = parts(ACC2, L_MEM, 0)
        for r in range(4): a(sw(0, r))
        a("s_waitcnt lgkmcnt(0)")
        a(f"""v_add_f32 v{RD}, v{RD}, v{RD+2}
v_add_f32 v{RD+1}, v{RD+1}, v{RD+3}
v_add_f32 v{RD+4}, v{RD+4}, v{RD+6}
v_add_f32 v{RD+5}, v{RD+5}, v{RD+7}
v_add_f32 v{RD}, v{RD}, v{RD+4}
v_add_f32 v{RD+1}, v{RD+1}, v{RD+5}
v_cvt_pk_bf16_f32 v{MI}, v{RD}, v{RD+1}""")
        store_mode2(a, f"buffer_store_dword v{MI}, v{vKO}, {WS}, s85 offen")
        stamp(a, 6, cfg)
        for r in range(4): a(ad(0, r))
        for r in range(4):
            a(sw(1, r)); a(wr(0, r))
        for r in range(4): a(ad(1, r))
        keep32()
        for r in range(4): a(wr(1, r))
        keep32()
        a("s_waitcnt lgkmcnt(0)\ns_barrier")
    else:
        nk = cfg.get("vk", (1, 3, 1, 3))
        ne = cfg.get("ve", (0, 0, 0, 0, 0, 0))
        epi(ACC, L_K, 1, lambda k: vm_(nk[k]), "kk", lambda k: vm_(ne[k]))
        a(f"s_cmp_eq_u32 s{S_MODE}, 1")
        sum4([f"ds_read_b64 {vr(RD+2*src,2)}, v{vRR} offset:{L_K + src*4096}" for src in range(4)], lambda k: vm_(nk[k]))
        a(f"v_cvt_pk_bf16_f32 v{MI}, v{RD}, v{RD+1}")
        store_mode2(a, f"buffer_store_dword v{MI}, v{vKO}, {WS}, s85 offen")
        stamp(a, 6, cfg)
        vm_(16)
        epi(ACC2, L_MEM, 0, lambda k: keep32(), "kv")
    sum4([f"ds_read2st64_b32 {vr(RD+2*src,2)}, v{vRV} offset0:{(L_MEM + src*4096)//256} offset1:{(L_MEM + src*4096)//256 + 2}" for src in range(4)], lambda k: keep32())
    a(f"v_cvt_pk_bf16_f32 v{MI+1}, v{RD}, v{RD+1}")
    store_mode2(a, f"buffer_store_dword v{MI+1}, v{vVMO}, {WS}, s86 offen")
    stamp(a, 2, cfg)
    if "post_vm" in hooks: hooks["post_vm"](MI + 2)
    a(f"""s_cmp_eq_u32 s{S_STEP}, {NSEG-1}
s_cbranch_scc1 L_done""")
    a("s_waitcnt vmcnt(2)")
    for i in range(32): a(f"v_mov_b32 v{ACC+i}, 0")
    for i in range(16): a(f"v_mov_b32 v{G+i}, -1\nv_mov_b32 v{OF+i}, -1")
    for i in range(6): a(f"v_mov_b32 v{RP+i}, -1")
    a(f"""s_and_b32 s88, s{S_STEP}, 7
s_lshl_b32 s88, s88, 16
s_add_u32 s88, s88, {WS_OM:#x}
s_mov_b32 s{S_PCUR}, s{S_OFF_F}""")
    for x in range(1, 4):
        a(f"s_xor_b32 s{S_T0+x}, s{S_PCUR}, {x << 16:#x}")
    if cfg.get("v_sleep"): a(f"s_sleep {cfg['v_sleep']}")
    kpoll([f"buffer_load_dwordx4 {vr(OF+4*f,4)}, v{vOMO}, {WS}, s88 offen offset:{1024*f} sc1" for f in range(4)], OF, 128, 3, cfg.get("v_om", {}))
    epi(ACC, L_RED, 1, lambda k: keep32(), "k3")
    sum4([f"ds_read_b64 {vr(RD+2*src,2)}, v{vRR} offset:{L_RED + src*4096}" for src in range(4)], lambda k: keep32())
    o = cfg.get("v_part", {})
    l3 = "\n".join(f"buffer_load_dwordx2 {vr(RP+2*(x-1),2)}, v{vPO}, {WS}, s{S_T0+x} offen sc1" for x in range(1, 4))
    a(f"buffer_store_dwordx2 {vr(RD,2)}, v{vPO}, {WS}, s{S_PCUR} offen sc1")
    stamp(a, 4, cfg)
    a(f"""s_add_u32 s{S_OFF_E}, s{S_OFF_E}, 0x4000
s_bitset0_b32 s{S_OFF_E}, 17
s_add_u32 s{S_OFF_A}, s{S_OFF_A}, 0x4000
s_bitset0_b32 s{S_OFF_A}, 17
s_add_u32 s{S_OFF_B}, s{S_OFF_B}, 0x10000
s_bitset0_b32 s{S_OFF_B}, 19
s_add_u32 s{S_OFF_F}, s{S_OFF_F}, 0x40000
s_bitset0_b32 s{S_OFF_F}, 21""")
    if o.get("presleep", 3): a(f"s_sleep {o.get('presleep', 3)}")
    for i in range(16): a(f"v_mov_b32 v{ACC+i}, 0")
    pp = SPoll(a, [l3], [list(range(RP, RP + 6))], vT, cap=o.get("cap", 30), sleep=o.get("sleep", 4), pre_sleep=o.get("pre", 12))
    pp.first(prefill=False)
    a(f"""s_cmp_eq_u32 s{S_MODE}, 1
v_pk_add_f32 {vr(RD,2)}, {vr(RD,2)}, {vr(RP,2)}
v_pk_add_f32 {vr(RD+2,2)}, {vr(RP+2,2)}, {vr(RP+4,2)}
v_pk_add_f32 {vr(RD,2)}, {vr(RD,2)}, {vr(RD+2,2)}
v_cvt_pk_bf16_f32 v{MI}, v{RD}, v{RD+1}""")
    store_mode2(a, f"buffer_store_dword v{MI}, v{vMO}, {WS}, s{S_OFF_E} offen")
    stamp(a, 5, cfg)
    stamp_flush(a, cfg)
    a(f"""s_add_u32 s{S_STEP}, s{S_STEP}, 1
s_branch V_loop""")
    a.flush_deferred()
    a.set_filler(None)
```

```python
import sys
from asmgen import *
from chain import *
from chain5 import s_cu, v_cu, DBG, WS, WS_CNT, wait_all_arrived
from gemm import *
from tail import tail_task
from battn import WS_QB, WS_KB, WS_VB, WS_OB
from battn2 import battn_task

PFX = "concat_heads__memory_aug_recurrent_mem_tr__mha_block__prompt"
NAME = PFX + "_kernel"
C_Q, C_TK, C_OVF = 32, 8, 42
C_QKV, C_BQKV, C_BAT, C_OXB, C_OXS, C_POOL = 0, 144, 148, 156, 168, 200
NOSIG = 255
S_INIT = 47
T_MQKV, T_BQKV, T_BB, T_ATT, T_OB, T_OA, T_OAM, T_PF, T_TAIL = range(9)
L_TICKET = 0x27f00
P_AX, P_WQ, P_WK, P_WV, P_WO, P_BX, P_BW, P_BO = 60, 62, 64, 66, 68, 70, 72, 74
S_D0, S_D1, S_D2, S_GRP, S_P1, S_P2, S_TYP, S_MAT, S_EB = 84, 85, 86, 58, 59, 88, 89, 93, 92
S_TAB = 90
S_OUT = 24


def desc(typ, p1, p2, wait=None, sig=NOSIG):
    wi, wt = wait if wait else (NOSIG, 0)
    return (typ | p1 << 4 | p2 << 12, wi | wt << 8 | sig << 20)


def coop(tiles, n=256):
    out = []
    kx = lambda d: (d[0] & 15, (d[0] >> 4) & 255)
    kw = lambda d: (d[0] & 15, (d[0] >> 12) & 255)
    def share(d, key):
        grp = [t for t in tiles if key(t) == key(d)]
        if len(grp) == 1: return 0, 0
        i = grp.index(d)
        lo, hi = i * n // len(grp), (i + 1) * n // len(grp)
        return lo, hi - lo
    for d in tiles:
        xf, xc = share(d, kx); wf, wc = share(d, kw)
        assert (xc + 63) // 64 + (wc + 63) // 64 <= 4
        out.append(d + (xf | xc << 8 | wf << 16 | wc << 24,))
    return out


def ox_counter(blk):
    return (C_OXB + blk, 128) if blk < 12 else None


def schedule(cfg):
    L = [[] for _ in range(8)]
    def mq(rb, x):
        return [desc(T_MQKV, rb, mat * 32 + 8 * x + i, sig=C_QKV + (rb if cfg.get('medfirst') else 1) * 16 + (8 * x + i) // 2) for i in range(8) for mat in (1, 2, 0)]
    def bq(mb, x):
        return [desc(T_BQKV, mb, mat * 16 + 4 * x + i, sig=C_QKV + (1 + mb) * 16 + 4 * x + i) for i in range(4) for mat in (1, 2, 0)]
    def bb(hg):
        return [desc(T_BB, mb, mat * 4 + hg, sig=C_BQKV + hg) for mat in (1, 2, 0) for mb in range(8)]
    def att(h):
        return [desc(T_ATT, h, qb, wait=(C_BQKV + h // 8, 24), sig=C_BAT + qb) for qb in range(8)]
    def ob(qb):
        return [desc(T_OB, 2 * qb, nb, wait=(C_BAT + qb, 32)) for nb in range(8)]
    def oxw(blk):
        return (C_OXB + blk, 256) if blk < 10 else (C_OXS + (blk - 10) * 4 + 3, 64)
    def oa(b2):
        return [desc(T_OA, 2 * b2, nb, wait=oxw(2 * b2 + 1)) for nb in range(8)]
    def oam(blk):
        return [desc(T_OAM, blk, nb, wait=oxw(blk)) for nb in range(8)]
    def bqr(mbs, x):
        cols = list(zip(*[bq(mb, x) for mb in mbs]))
        return [t for c in cols for t in c]
    def pf(mat, pat, off, rows=128):
        return (T_PF | mat << 4 | pat << 12, off, rows // 2)
    def slowcols(g, mats):
        return [pf(m, 0, (g * 1024 * 2048 + ln * 128) if m == 3 else (16 * g + ln) * 128) for m in mats for ln in (3, 11)]
    for g in range(4):
        L[g] += [pf(3, 1, (g * 1024 + k * 128) * 2048) for k in range(8)]
    t0 = cfg["tail_seg0"]
    nblk = t0 // 4
    def tail(cs, k): return desc(T_TAIL, cs, 2 * t0 + k)
    def attq(hg, qb):
        if cfg.get("pool", 1): return [desc(T_ATT, hg, qb, wait=(C_BQKV + hg, 24))] * 8
        return [desc(T_ATT, 8 * hg + i, qb, wait=(C_BQKV + hg, 24), sig=C_BAT + qb) for i in range(8)]
    for x in range(4):
        pools = {"A": [attq(x, q) for q in range(8)], "B": [coop(bqr((5, 6), x))], "C": [coop(bq(7, x))],
                 "O": [oa(x)], "M": [oam(b) for b in range(8 + x, nblk, 4)], "o": [ob(b) for b in (x, 4 + x)]}
        if cfg["tail_stride"] == 4: pools["T"] = [[tail(i, x) for i in range(8 * k, 8 * k + 8)] for k in range(4)]
        else: pools["T"] = [[tail(16 * (x // 2) + i, x % 2) for i in range(8 * k, 8 * k + 8)] for k in range(2)]
        allpf = [(5, r) for r in range(0, 2048, 128)] + [(6, r) for r in range(0, 3072, 128)] + [(7, r) for r in range(0, 1024, 128)] + [(4, r) for r in range(1280, 2048, 128)]
        bpf = [pf(m, 1, r * 2048, 128) for m, r in allpf[x::4]]
        sb1 = cfg.get("small_b1", 1)
        L[x] += (coop(bq(1, x)[8:]) if sb1 else []) + bpf[:cfg.get("nbpf", 12)] + [(15, 0)] * cfg.get("small_quit", 1)
        pools["C"] = [coop(bq(4, x)[8:] + bq(7, x)[8:]), coop(bq(7, x)[:8])]
        for _ in range(cfg.get("small_c", 0)): L[x] += pools["C"].pop(0)
        if cfg.get("pool", 1):
            for q in range(8): L[x] += attq(x, q)
            pools["A"] = [attq(x, q) for q in range(8)]
        else:
            take = cfg.get("small", ["A0", "A1"])
            for it in take:
                if int(it[1:]) < len(pools[it[0]]): L[x] += pools[it[0]][int(it[1:])]
            for k in pools:
                pools[k] = [b for i, b in enumerate(pools[k]) if f"{k}{i}" not in take]
        l = L[4 + x]
        xpf = [pf(4, 1, k * 32 * 2048, 32) for k in range(8)]
        nq = cfg.get("wpf_rows", 256)
        wpf = [pf(m, 1, (1024 - nq + h * nq // 2) * 8192 + x * 2048, nq // 2) for m in range(3) for h in range(2)]
        l += xpf + mq(0, x) + (wpf if cfg.get("wpf") else slowcols(x, (0, 1, 2))) + coop(bq(1, x)[:8 if sb1 else 12]) + (mq(1, x) if cfg.get('medfirst') else []) + coop(bqr((2, 3), x)) + coop(bq(4, x)[:8]) + coop(bb(x))
        pools["c"] = []
        od = cfg.get("orders", {0: "CBOAACAAAAMoTTo", 1: "CBOAACAAAAMoTTo", 2: "CBAOACAAAAoMTTo", 3: "CBAAACOAAAoTMTo"})[x]
        if "c" in od:
            pools["C"] = [coop(bq(7, x)[:8])]; pools["c"] = [coop(bq(7, x)[8:])]
        for ch in od:
            if pools[ch]: l += pools[ch].pop(0)
        if cfg.get("pool", 1): pools["A"] = []
        assert not any(pools.values()), {k: len(v) for k, v in pools.items()}
    return L


def worker(a, cfg):
    big = Gemm(8, 8, 2, dict({"touch": True}, **cfg.get("big", {})))
    med = Gemm(4, 4, 4, cfg.get("med", {}))
    wid = Gemm(8, 4, 3, cfg.get("wid", {}))
    MF = cfg.get("medfirst", 0)
    fst = med if MF else wid
    lists = schedule(cfg)
    MAXL = max(len(l) for l in lists)
    a(f"""v_and_b32 v0, 63, v0
v_lshlrev_b32 v{V_L16}, 4, v0
s_load_dwordx2 s[{P_AX}:{P_AX+1}], s[0:1], 0
s_load_dwordx2 s[{P_WQ}:{P_WQ+1}], s[0:1], 16
s_load_dwordx4 s[{P_WK}:{P_WK+3}], s[0:1], 24
s_load_dwordx2 s[{P_WO}:{P_WO+1}], s[0:1], 40
s_load_dwordx2 s[{P_BX}:{P_BX+1}], s[0:1], 56
s_load_dwordx4 s[{P_BW}:{P_BW+3}], s[0:1], 64
s_getpc_b64 s[{S_TAB}:{S_TAB+1}]
W_pc:
s_add_u32 s{S_TAB}, s{S_TAB}, W_table-W_pc
s_addc_u32 s{S_TAB+1}, s{S_TAB+1}, 0
s_waitcnt lgkmcnt(0)""")
    for p in range(P_AX, P_BO + 2, 2): a(f"s_and_b32 s{p+1}, s{p+1}, 0xffff")
    srd(a, S_OUT, 80, 2048 * 4096)
    row_voff(a)
    a(f"""s_mov_b32 s{G_SX+3}, 0x20000
s_mov_b32 s{G_SW+3}, 0x20000
s_mov_b32 s{G_NXOFF}, {OOB:#x}
s_mov_b32 s{G_NWOFF}, {OOB:#x}
v_mov_b32 v5, {L_TICKET:#x}
v_mov_b32 v6, 0""")
    a(f"s_mov_b32 s{S_INIT}, 0")
    def init_check(vt):
        sk = a.uid("ic")
        a(f"s_cmp_eq_u32 s{S_INIT}, 1\ns_cbranch_scc1 {sk}")
        wait_all_arrived(a, vt, 37)
        a(f"s_mov_b32 s{S_INIT}, 1")
        a.label(sk)
    S_PE, S_PEB, S_PSIG, S_PC, S_TKQ, S_RET = 32, 31, 49, 50, 29, 3
    a(f"""s_mov_b32 s{S_PE}, 0
s_mov_b32 s{S_PSIG}, {NOSIG}
s_mov_b32 s{S_TKQ}, 0""")
    def ticket_ool(back):
        lb = a.uid("tk")
        a.defer(lambda: a(f"""{lb}:
s_mov_b32 s{S_TKQ}, 1
s_cmp_lg_u32 s{S_WAVE}, 0
s_cbranch_scc1 {back}
v_mov_b32 v7, 1
s_lshl_b32 s38, s{S_GRP}, 2
s_mov_b64 exec, 1
buffer_atomic_add v7, v6, {DBG}, s38 offen offset:{C_Q*4} sc0 sc1
s_mov_b64 exec, -1
s_branch {back}"""))
        return lb
    def h_ticket(cnt):
        back = a.uid("tb")
        return f"s_cmp_eq_u32 s{G_CNT}, {cnt}\ns_cbranch_scc1 {ticket_ool(back)}\n{back}:"
    def h_ticket_now():
        back = a.uid("tb")
        return f"s_cmp_eq_u32 s{S_TKQ}, 0\ns_cbranch_scc1 {ticket_ool(back)}\n{back}:"
    def h_pre_bar():
        sk = a.uid("pb")
        return f"s_cmp_eq_u32 s{S_PSIG}, {NOSIG}\ns_cbranch_scc1 {sk}\ns_waitcnt vmcnt(0)\n{sk}:"
    def h_post_bar():
        lb, back = a.uid("sg"), a.uid("sb")
        def ool():
            a(f"""{lb}:
s_lshl_b32 s38, s{S_PSIG}, 7
s_mov_b32 s{S_PSIG}, {NOSIG}
s_cmp_lg_u32 s{S_WAVE}, 0
s_cbranch_scc1 {back}""")
            init_check(248)
            a(f"""s_add_u32 s38, s38, {WS_CNT:#x}
v_mov_b32 v3, 1
s_mov_b64 exec, 1
buffer_atomic_add v3, v6, {WS}, s38 offen sc1
s_mov_b64 exec, -1
s_branch {back}""")
        a.defer(ool)
        return f"s_cmp_lg_u32 s{S_PSIG}, {NOSIG}\ns_cbranch_scc1 {lb}\n{back}:"
    hooks = {"ticket": h_ticket, "ticket_now": h_ticket_now, "pre_bar": h_pre_bar, "post_bar": h_post_bar, "epi_first": cfg.get("epi_first", 1)}
    big.hooks = med.hooks = wid.hooks = hooks
    def run_pending(ret):
        a(f"s_mov_b32 s{S_RET}, {ret}\ns_cmp_lg_u32 s{S_PE}, 0\ns_cbranch_scc1 W_epi\nW_ret{ret}:")
    def flush():
        a("s_waitcnt vmcnt(0)\ns_barrier"); a(h_post_bar())

    a(f"""s_sub_u32 s37, s{S_J}, 24
s_cmp_lt_u32 s{S_GRP}, 4
s_cselect_b32 s36, s37, s{S_J}
s_cselect_b32 s{S_J}, 8, 32
s_branch W_have""")
    a.label("W_next")
    if cfg.get("wstamps"):
        sk = a.uid("ws")
        a(f"""s_cmp_lg_u32 s{S_WAVE}, 1
s_cbranch_scc1 {sk}
s_memrealtime s[44:45]
s_memtime s[98:99]
s_waitcnt lgkmcnt(0)
s_sub_u32 s98, s98, s76
v_mov_b32 v60, s40
v_mov_b32 v61, s42
v_mov_b32 v62, s44
v_mov_b32 v63, s98
s_lshl_b32 s36, s46, 4
s_add_u32 s36, s36, {0x8000000:#x}
s_mov_b64 exec, 1
buffer_store_dwordx4 v[60:63], v6, {WS}, s36 offen
s_mov_b64 exec, -1
{sk}:""")
    a(f"""s_lshr_b32 s{S_PSIG}, s{S_D1}, 20
s_mov_b32 s{S_TKQ}, 0
s_cmp_eq_u32 s{S_D0+3}, 0
s_cbranch_scc1 W_nu
s_waitcnt vmcnt(0)
W_nu:
s_cmp_lg_u32 s{S_WAVE}, 0
s_cbranch_scc1 W_tk
s_mov_b64 exec, 1
ds_write_b32 v5, v7
s_mov_b64 exec, -1
W_tk:
s_waitcnt lgkmcnt(0)
s_barrier
s_cmp_eq_u32 s{S_D0+3}, 0
s_cbranch_scc1 W_nu2""")
    a(h_post_bar())
    a(f"""W_nu2:
ds_read_b32 v1, v5
s_waitcnt lgkmcnt(0)
v_readfirstlane_b32 s36, v1
s_nop 3
s_add_u32 s36, s36, s{S_J}
W_have:
s_min_u32 s36, s36, {MAXL}
s_mul_i32 s37, s{S_GRP}, {MAXL+1}
s_add_u32 s36, s36, s37
s_lshl_b32 s36, s36, 4
s_load_dwordx4 s[{S_D0}:{S_D0+3}], s[{S_TAB}:{S_TAB+1}], s36
s_waitcnt lgkmcnt(0)
s_and_b32 s{S_TYP}, s{S_D0}, 15
s_bfe_u32 s{S_P1}, s{S_D0}, 0x80004
s_bfe_u32 s{S_P2}, s{S_D0}, 0x8000c""")
    if cfg.get("wstamps"):
        a(f"s_memrealtime s[40:41]\ns_lshr_b32 s46, s36, 4")
    a(f"""s_cmp_lt_u32 s{S_TYP}, {T_ATT}
s_cbranch_scc1 W_go""")
    a(f"""s_cmp_ge_u32 s{S_TYP}, {T_PF}
s_cbranch_scc1 W_slow
s_cmp_lg_u32 s{S_WAVE}, 0
s_cbranch_scc1 W_q2""")
    init_check(40)
    a(f"""s_and_b32 s39, s{S_D1}, 0xff
s_lshl_b32 s39, s39, 7
s_add_u32 s39, s39, {WS_CNT:#x}
buffer_load_dword v1, v6, {WS}, s39 offen sc1
s_waitcnt vmcnt(0)
s_mov_b64 exec, 1
ds_write_b32 v5, v1 offset:4
s_mov_b64 exec, -1
s_waitcnt lgkmcnt(0)
W_q2:
s_barrier
ds_read_b32 v1, v5 offset:4
s_bfe_u32 s38, s{S_D1}, 0xc0008
s_waitcnt lgkmcnt(0)
v_readfirstlane_b32 s36, v1
s_nop 3
s_cmp_ge_u32 s36, s38
s_cbranch_scc1 W_go
W_slow:""")
    run_pending(1)
    flush()
    a(f"""s_cmp_eq_u32 s{S_TYP}, 15
s_cbranch_scc1 L_done
s_cmp_eq_u32 s{S_TYP}, {T_PF}
s_cbranch_scc1 W_pf
s_cmp_eq_u32 s{S_TYP}, {T_TAIL}
s_cbranch_scc1 W_tail
s_cmp_lg_u32 s{S_WAVE}, 0
s_cbranch_scc1 W_go2""")
    init_check(200)
    a(f"""s_bfe_u32 s38, s{S_D1}, 0xc0008
s_and_b32 s39, s{S_D1}, 0xff
s_lshl_b32 s39, s39, 7
s_add_u32 s39, s39, {WS_CNT:#x}
W_dep:""")
    budget_head(a)
    a(f"""buffer_load_dword v1, v6, {WS}, s39 offen sc1
s_waitcnt vmcnt(0)
v_readfirstlane_b32 s36, v1
s_nop 3
s_cmp_ge_u32 s36, s38
s_cbranch_scc1 W_go2
s_sleep {cfg.get("dep_sleep", 16)}
s_branch W_dep
W_go2:
s_barrier
W_go:""")
    if cfg.get("wstamps"):
        a(f"s_memrealtime s[42:43]\ns_memtime s[76:77]\ns_waitcnt lgkmcnt(0)")
    a(f"""s_cmp_eq_u32 s{S_TYP}, {T_ATT}
s_cbranch_scc1 W_att
s_cmp_ge_u32 s{S_TYP}, {T_OB}
s_cbranch_scc1 W_out
s_mov_b32 s{G_NST}, 16
s_mov_b32 s{G_PX}, 2048
s_mov_b32 s{G_XSTEP}, 128
s_mov_b32 s{G_SX+2}, {2048*2048:#x}
s_cmp_eq_u32 s{S_TYP}, {T_BB}
s_cbranch_scc1 W_bb""")
    def sel_w():
        a(f"""s_mov_b32 s{G_SX}, s{P_AX}
s_mov_b32 s{G_SX+1}, s{P_AX+1}
s_cmp_eq_u32 s{S_MAT}, 1
s_cselect_b32 s{G_SW}, s{P_WK}, s{P_WQ}
s_cselect_b32 s{G_SW+1}, s{P_WK+1}, s{P_WQ+1}
s_cselect_b32 s36, {WS_KX:#x}, {WS_QX:#x}
s_cmp_eq_u32 s{S_MAT}, 2
s_cselect_b32 s{G_SW}, s{P_WV}, s{G_SW}
s_cselect_b32 s{G_SW+1}, s{P_WV+1}, s{G_SW+1}
s_cselect_b32 s36, {WS_VX:#x}, s36
s_add_u32 s{S_EB}, s{S_EB}, s36
s_mov_b32 s{G_SW+2}, {1024*8192:#x}
s_mov_b32 s{G_PW}, 8192""")
    a(f"""s_cmp_eq_u32 s{S_TYP}, {T_BQKV}
s_cbranch_scc1 W_abig""")
    a(f"""s_lshr_b32 s{S_MAT}, s{S_P2}, 5
s_and_b32 s38, s{S_P2}, 31
s_lshl_b32 s{G_XOFF}, s{S_P1}, {18 if MF else 19}
s_lshl_b32 s{G_WOFF}, s38, 8
s_lshl_b32 s36, s{S_P1}, 1
s_lshr_b32 s37, s{S_WAVE}, 1
s_add_u32 s36, s36, s37
s_lshl_b32 s{S_EB}, s36, {19 if MF else 20}
s_lshl_b32 s36, s38, 13
s_add_u32 s{S_EB}, s{S_EB}, s36
s_and_b32 s37, s{S_WAVE}, 1
s_cmp_eq_u32 s{S_MAT}, 2
s_cselect_b32 s36, 12, 11
s_lshl_b32 s37, s37, s36
s_add_u32 s{S_EB}, s{S_EB}, s37""")
    sel_w()
    def done(pe):
        if cfg.get("big_st") == 2: a("s_memtime s[76:77]\ns_waitcnt lgkmcnt(0)")
        a(f"""s_mov_b32 s{S_PE}, {pe}
s_mov_b32 s{S_PEB}, s{S_EB}
s_mov_b32 s{S_PC}, s{S_C}
s_mov_b32 s{S_PC+1}, s{S_C}
s_waitcnt vmcnt(0)""")
        if cfg.get("epi_first", 1): a(f"s_mov_b32 s{S_RET}, 6\ns_branch W_epi")
        else: a("s_branch W_next")
    fst.setup(a, S_WAVE, False)
    if fst.touch: fst.touch_setup(a, S_WAVE, S_D2)
    fst.prologue(a, False)
    run_pending(2)
    fst.prologue_wait(a, False)
    a(f"s_cmp_eq_u32 s{S_MAT}, 2\ns_cbranch_scc1 W_mv")
    fst.tile(a, "W", False); done(1)
    a.label("W_mv")
    fst.tile(a, "X", False); done(2)
    a.label("W_abig")
    a(f"""s_lshr_b32 s{S_MAT}, s{S_P2}, 4
s_and_b32 s38, s{S_P2}, 15
s_lshl_b32 s{G_XOFF}, s{S_P1}, 19
s_lshl_b32 s{G_WOFF}, s38, 9
s_lshl_b32 s36, s{S_P1}, 1
s_lshr_b32 s37, s{S_WAVE}, 1
s_add_u32 s36, s36, s37
s_lshl_b32 s{S_EB}, s36, 20
s_lshl_b32 s36, s38, 1
s_and_b32 s37, s{S_WAVE}, 1
s_add_u32 s36, s36, s37
s_lshl_b32 s36, s36, 13
s_add_u32 s{S_EB}, s{S_EB}, s36""")
    sel_w()
    a("s_branch W_biggo")
    a.label("W_bb")
    cb = f32bits(32 ** -0.5 * LOG2E)
    a(f"""s_lshr_b32 s{S_MAT}, s{S_P2}, 2
s_lshl_b32 s{G_XOFF}, s{S_P1}, 19
s_lshl_b32 s{G_WOFF}, s{S_P2}, 9
s_and_b32 s36, s{S_P2}, 3
s_lshl_b32 s36, s36, 1
s_and_b32 s37, s{S_WAVE}, 1
s_add_u32 s36, s36, s37
s_lshl_b32 s{S_EB}, s36, 19
s_lshl_b32 s36, s{S_P1}, 1
s_lshr_b32 s37, s{S_WAVE}, 1
s_add_u32 s36, s36, s37
s_lshl_b32 s36, s36, 13
s_add_u32 s{S_EB}, s{S_EB}, s36
s_lshl_b32 s36, s{S_MAT}, 22
s_add_u32 s{S_EB}, s{S_EB}, s36
s_add_u32 s{S_EB}, s{S_EB}, {WS_QB:#x}
s_cmp_eq_u32 s{S_MAT}, 0
s_cselect_b32 s{S_C}, {cb:#x}, 1.0
s_mov_b32 s{S_C+1}, s{S_C}
s_mov_b32 s{G_SX}, s{P_BX}
s_mov_b32 s{G_SX+1}, s{P_BX+1}
s_mov_b32 s{G_SW}, s{P_BW}
s_mov_b32 s{G_SW+1}, s{P_BW+1}
s_mov_b32 s{G_SW+2}, {1024*6144:#x}
s_mov_b32 s{G_PW}, 6144""")
    a.label("W_biggo")
    big.setup(a, S_WAVE, False)
    if big.touch: big.touch_setup(a, S_WAVE, S_D2)
    big.prologue(a, False)
    run_pending(3)
    big.prologue_wait(a, False)
    if cfg.get("big_st") == 1: a("s_memtime s[76:77]\ns_waitcnt lgkmcnt(0)")
    a(f"s_cmp_eq_u32 s{S_MAT}, 2\ns_cbranch_scc1 W_bv")
    big.tile(a, "W", False)
    a(f"s_add_u32 s36, s{S_TYP}, 2"); done("s36")
    a.label("W_bv")
    big.tile(a, "X", False)
    a(f"s_add_u32 s36, s{S_TYP}, 4"); done("s36")
    a.label("W_out")
    a(f"""s_mov_b32 s{G_SX}, s{S_WS}
s_mov_b32 s{G_SX+1}, s{S_WS+1}
s_mov_b32 s{G_SX+2}, s{S_WS+2}
s_mov_b32 s{G_PX}, 64
s_mov_b32 s{G_PW}, 2048
s_mov_b32 s{G_XSTEP}, 0x4000
s_lshl_b32 s{G_WOFF}, s{S_P2}, 8
s_lshl_b32 s{S_EB}, s{S_P1}, 19
s_lshr_b32 s37, s{S_WAVE}, 1
s_cmp_eq_u32 s{S_TYP}, {T_OAM}
s_cselect_b32 s36, 18, 19
s_lshl_b32 s37, s37, s36
s_add_u32 s{S_EB}, s{S_EB}, s37
s_lshl_b32 s36, s{S_P2}, 1
s_and_b32 s37, s{S_WAVE}, 1
s_add_u32 s36, s36, s37
s_lshl_b32 s36, s36, 7
s_add_u32 s{S_EB}, s{S_EB}, s36
s_cmp_lg_u32 s{S_TYP}, {T_OB}
s_cselect_b32 s{G_SW}, s{P_WO}, s{P_BO}
s_cselect_b32 s{G_SW+1}, s{P_WO+1}, s{P_BO+1}
s_mov_b32 s36, {1024*2048:#x}
s_cselect_b32 s{G_SW+2}, {4096*2048:#x}, s36
s_cselect_b32 s{G_NST}, 64, 16
s_cselect_b32 s36, 20, 18
s_mov_b32 s37, {WS_OB - 4096:#x}
s_cselect_b32 s37, {WS_OX - 4096:#x}, s37
s_cselect_b32 s38, 0, 2048
s_lshl_b32 s{G_XOFF}, s{S_P1}, s36
s_lshl_b32 s{G_BLK}, 1, s36
s_add_u32 s{G_XOFF}, s{G_XOFF}, s37
s_add_u32 s{S_EB}, s{S_EB}, s38
s_cmp_eq_u32 s{S_TYP}, {T_OAM}
s_cbranch_scc1 W_oam""")
    wid.setup(a, S_WAVE, True, half=True)
    wid.prologue(a, True, "sc1")
    run_pending(4)
    wid.prologue_wait(a, True)
    wid.tile(a, "W", True, "sc1"); done(8)
    a.label("W_oam")
    med.setup(a, S_WAVE, True, half=True)
    med.prologue(a, True, "sc1")
    med.prologue_wait(a, True)
    med.tile(a, "W", True, "sc1"); done(7)
    a.label("W_epi")
    for pe in range(1, 7): a(f"s_cmp_eq_u32 s{S_PE}, {pe}\ns_cbranch_scc1 W_epi{pe}")
    row_voff(a)
    a(f"s_cmp_eq_u32 s{S_PE}, 8\ns_cbranch_scc1 W_epi8")
    med.epilogue(a, med.ent_row(), S_OUT, S_PEB, V_ROW, swap=True)
    a("s_branch W_epiend")
    a.label("W_epi8")
    wid.epilogue(a, wid.ent_row(), S_OUT, S_PEB, V_ROW, swap=True)
    a.label("W_epiend")
    a(f"""s_mov_b32 s{S_PE}, 0
s_cmp_eq_u32 s{S_RET}, 6
s_cbranch_scc1 W_next
s_cmp_eq_u32 s{S_RET}, 1
s_cbranch_scc1 W_ret1
s_cmp_eq_u32 s{S_RET}, 2
s_cbranch_scc1 W_ret2
s_cmp_eq_u32 s{S_RET}, 4
s_cbranch_scc1 W_ret4
s_cmp_eq_u32 s{S_RET}, 5
s_cbranch_scc1 W_ret5
s_branch W_ret3""")
    for pe, g_, ent, vo, sc_ in ((1, fst, fst.ent_a_qk(), None, None), (2, fst, fst.ent_a_v(), None, None), (3, big, big.ent_a_qk(), None, None),
                                 (4, big, big.ent_b_qk32(), True, S_PC), (5, big, big.ent_a_v(), None, None), (6, big, big.ent_b_v32(), False, None)):
        a.label(f"W_epi{pe}")
        if vo is not None: b32_voff(a, 38, vo)
        g_.epilogue(a, ent, S_WS, S_PEB, V_L16 if vo is None else 38, "sc1", scale=sc_)
        a("s_branch W_epiend")
    a.label("W_pf")
    a(f"""s_cmp_eq_u32 s{S_P1}, 1
s_cselect_b32 s{G_SW}, s{P_WK}, s{P_WQ}
s_cselect_b32 s{G_SW+1}, s{P_WK+1}, s{P_WQ+1}
s_cmp_eq_u32 s{S_P1}, 2
s_cselect_b32 s{G_SW}, s{P_WV}, s{G_SW}
s_cselect_b32 s{G_SW+1}, s{P_WV+1}, s{G_SW+1}
s_cmp_eq_u32 s{S_P1}, 3
s_cselect_b32 s{G_SW}, s{P_WO}, s{G_SW}
s_cselect_b32 s{G_SW+1}, s{P_WO+1}, s{G_SW+1}
s_cselect_b32 s38, 11, 13
s_mov_b32 s{G_SW+2}, {1024*8192:#x}
s_cmp_eq_u32 s{S_P1}, 4
s_cselect_b32 s{G_SW}, s{P_AX}, s{G_SW}
s_cselect_b32 s{G_SW+1}, s{P_AX+1}, s{G_SW+1}
s_cselect_b32 s{G_SW+2}, {2048*2048:#x}, s{G_SW+2}
s_cmp_eq_u32 s{S_P1}, 5
s_cselect_b32 s{G_SW}, s{P_BX}, s{G_SW}
s_cselect_b32 s{G_SW+1}, s{P_BX+1}, s{G_SW+1}
s_cselect_b32 s{G_SW+2}, {2048*2048:#x}, s{G_SW+2}
s_cmp_eq_u32 s{S_P1}, 6
s_cselect_b32 s{G_SW}, s{P_BW}, s{G_SW}
s_cselect_b32 s{G_SW+1}, s{P_BW+1}, s{G_SW+1}
s_cselect_b32 s{G_SW+2}, {1024*6144:#x}, s{G_SW+2}
s_cmp_eq_u32 s{S_P1}, 7
s_cselect_b32 s{G_SW}, s{P_BO}, s{G_SW}
s_cselect_b32 s{G_SW+1}, s{P_BO+1}, s{G_SW+1}
s_cselect_b32 s{G_SW+2}, {1024*2048:#x}, s{G_SW+2}
s_cmp_ge_u32 s{S_P1}, 3
s_cselect_b32 s38, 11, s38
s_cmp_eq_u32 s{S_P2}, 1
s_cbranch_scc1 W_pf1
v_lshrrev_b32 v1, 3, v0
s_lshl_b32 s36, s{S_WAVE}, 3
v_add_u32 v1, s36, v1
v_lshlrev_b32 v1, s38, v1
v_and_b32 v2, 7, v0
v_lshl_add_u32 v1, v2, 4, v1
s_lshl_b32 s37, 32, s38
s_mov_b32 s39, 32
s_branch W_pfgo
W_pf1:
s_lshr_b32 s36, s{S_WAVE}, 1
s_lshl_b32 s36, s36, s38
s_and_b32 s37, s{S_WAVE}, 1
s_lshl_b32 s37, s37, 10
s_add_u32 s36, s36, s37
v_add_u32 v1, s36, v{V_L16}
s_lshl_b32 s37, 2, s38
s_mov_b32 s39, s{S_D2}
W_pfgo:
s_mov_b32 s36, s{S_D1}
W_pfl:
buffer_load_dwordx4 v[64:67], v1, s[{G_SW}:{G_SW+3}], s36 offen
s_add_u32 s36, s36, s37
s_waitcnt vmcnt(48)
s_sub_u32 s39, s39, 1
s_cmp_lg_u32 s39, 0
s_cbranch_scc1 W_pfl
s_mov_b32 s{S_D1}, {NOSIG << 20:#x}""")
    if cfg.get("wstamps"):
        a("s_waitcnt lgkmcnt(0)\ns_mov_b32 s42, s40")
    a(h_ticket_now())
    a("s_waitcnt vmcnt(0)\ns_branch W_next")
    a.label("W_tail")
    if cfg.get("wstamps"):
        a("s_waitcnt lgkmcnt(0)\ns_mov_b32 s42, s40")
    init_check(200)
    a(f"""s_mov_b32 s{G_SW}, s{P_WO}
s_mov_b32 s{G_SW+1}, s{P_WO+1}
s_mov_b32 s{G_SW+2}, {4096*2048:#x}""")
    tail_task(a, S_WS, G_SW, S_OUT, S_WAVE, S_P1, S_P2, WS_CNT + (C_OXS - 40) * 128, cfg)
    if not cfg.get("wstamps"): a("s_endpgm")
    a(h_ticket_now())
    a("s_waitcnt vmcnt(0)\ns_branch W_next")
    a.label("W_att")
    run_pending(5)
    if cfg.get("pool", 1):
        a(f"""s_cmp_lg_u32 s{S_WAVE}, 0
s_cbranch_scc1 W_p2
s_lshl_b32 s38, s{S_P1}, 7
s_add_u32 s38, s38, {WS_CNT + C_POOL*128:#x}
v_mov_b32 v1, 1
s_mov_b64 exec, 1
buffer_atomic_add v1, v6, {WS}, s38 offen sc0 sc1
s_waitcnt vmcnt(0)
ds_write_b32 v5, v1 offset:8
s_mov_b64 exec, -1
s_waitcnt lgkmcnt(0)
W_p2:
s_barrier
ds_read_b32 v1, v5 offset:8
s_waitcnt lgkmcnt(0)
v_readfirstlane_b32 s36, v1
s_nop 3
s_cmp_lt_u32 s36, 64
s_cbranch_scc1 W_p3""")
        flush()
        a(f"s_cmp_lt_u32 s{S_GRP}, 4\ns_cbranch_scc1 L_done")
        a(h_ticket_now())
        a(f"""s_mov_b32 s{S_D1}, {NOSIG << 20:#x}
s_waitcnt vmcnt(0)
s_branch W_next
W_p3:
s_lshr_b32 s{S_P2}, s36, 3
s_and_b32 s36, s36, 7
s_lshl_b32 s{S_P1}, s{S_P1}, 3
s_add_u32 s{S_P1}, s{S_P1}, s36
s_add_u32 s36, s{S_P2}, {C_BAT}
s_lshl_b32 s{S_D1}, s36, 20""")
    battn_task(a, S_WS, S_WAVE, S_P1, S_P2, cfg, "sc1", "sc1", hooks)
    a(f"s_mov_b32 s{G_NXOFF}, {OOB:#x}\ns_mov_b32 s{G_NWOFF}, {OOB:#x}")
    a("s_waitcnt vmcnt(4)\ns_branch W_next")
    a.flush_deferred()
    def urgent(d):
        t, p1 = d[0] & 15, (d[0] >> 4) & 255
        return t in (T_MQKV, T_BB) or (t == T_BQKV and p1 in cfg.get("urgent_blocks", (1, 2)))
    tab = []
    for l in lists:
        l = l + [(15, 0)] * (MAXL + 1 - len(l))
        tab += [f".long {d[0]:#x}, {d[1]:#x}, {d[2] if len(d) > 2 else 0:#x}, {int(urgent(d))}" for d in l]
    return tab


def chain_hooks(a, cfg):
    def wait_x(vt):
        sk, lp = a.uid("wx"), a.uid("wx")
        a(f"""s_cmp_ge_u32 s{S_T0}, {NSEG}
s_cbranch_scc1 {sk}
s_cmp_lt_u32 s{S_T0}, 8
s_cselect_b32 s{S_T1}, {3 if cfg.get("medfirst") else 7}, 7
s_and_b32 s{S_T1}, s{S_T0}, s{S_T1}
s_cmp_lg_u32 s{S_T1}, 0
s_cbranch_scc1 {sk}
s_lshr_b32 s{S_T1}, s{S_T0}, 3
s_add_u32 s{S_T1}, s{S_T1}, 1
s_cmp_lt_u32 s{S_T0}, {4 if cfg.get("medfirst") else 0}
s_cselect_b32 s{S_T1}, 0, s{S_T1}
s_cmp_lt_u32 s{S_T0}, 8
s_cselect_b32 s{S_T2}, 6, 3
s_lshl_b32 s{S_T1}, s{S_T1}, 4
s_lshr_b32 s{S_T3}, s{S_HEAD}, 1
s_add_u32 s{S_T1}, s{S_T1}, s{S_T3}
s_lshl_b32 s{S_T1}, s{S_T1}, 7
s_add_u32 s{S_T1}, s{S_T1}, {WS_CNT + C_QKV*128:#x}
{lp}:""")
        budget_head(a)
        a(f"""v_mov_b32 v{vt}, 0
buffer_load_dword v{vt}, v{vt}, {WS}, s{S_T1} offen sc1
s_waitcnt vmcnt(0)
v_readfirstlane_b32 s{S_T3}, v{vt}
s_nop 3
s_cmp_ge_u32 s{S_T3}, s{S_T2}
s_cbranch_scc1 {sk}
s_sleep 4
s_branch {lp}
{sk}:""")
    def signal(vt, seg_sgpr, n=1):
        a(f"""s_lshr_b32 s{S_T1}, s{seg_sgpr}, 2
s_add_u32 s{S_T1}, s{S_T1}, {C_OXB}
s_add_u32 s{S_T2}, s{seg_sgpr}, {C_OXS - 40}
s_cmp_lt_u32 s{seg_sgpr}, 40
s_cselect_b32 s{S_T1}, s{S_T1}, s{S_T2}
s_lshl_b32 s{S_T1}, s{S_T1}, 7
s_add_u32 s{S_T1}, s{S_T1}, {WS_CNT:#x}
v_mov_b32 v{vt}, {n}
v_mov_b32 v{vt+1}, 0
s_mov_b64 exec, 1
buffer_atomic_add v{vt}, v{vt+1}, {WS}, s{S_T1} offen sc1
s_mov_b64 exec, -1""")
    def post_om(vt):
        sk = a.uid("po")
        a(f"""s_cmp_lg_u32 s{S_WAVE}, 0
s_cbranch_scc1 {sk}
s_cmp_lt_u32 s{S_STEP}, {NSEG-cfg.get('early', 6)+1}
s_cbranch_scc1 {sk}
s_sub_u32 s{S_T0}, s{S_STEP}, 1""")
        signal(vt, S_T0, 2)
        a.label(sk)
        sk = a.uid("po")
        a(f"""s_lshl_b32 s{S_T0}, s{S_HEAD}, 2
s_add_u32 s{S_T0}, s{S_T0}, s{S_WAVE}
s_cmp_lg_u32 s{S_T0}, 3
s_cbranch_scc1 {sk}
s_cmp_lt_u32 s{S_STEP}, 3
s_cbranch_scc1 {sk}
s_cmp_ge_u32 s{S_STEP}, {NSEG-cfg.get('early', 6)+3}
s_cbranch_scc1 {sk}
s_sub_u32 s{S_T0}, s{S_STEP}, 3""")
        signal(vt, S_T0, 64)
        a.label(sk)
    return {"wait_x": wait_x, "post_om": post_om, "exit": "S_exit"}, {}, signal


def role_ticket(a, cfg):
    a(f"""v_mov_b32 v2, 0
s_cmp_lg_u32 s{S_WAVE}, 0
s_cbranch_scc1 R_join
s_getreg_b32 s36, hwreg(HW_REG_XCC_ID)
s_and_b32 s36, s36, {cfg.get("xcc_mask", 7)}
s_and_b32 s37, s36, 3
s_lshl_b32 s37, s37, 3
s_lshl_b32 s38, 1, s37
s_and_b32 s39, s36, 4
s_lshl_b32 s39, s39, 5
v_mov_b32 v3, s38
s_mov_b64 exec, 1
buffer_atomic_add v3, v2, {DBG}, s39 offen offset:{C_TK*4} sc0 sc1
s_waitcnt vmcnt(0)
v_readfirstlane_b32 s38, v3
s_nop 3
s_lshr_b32 s38, s38, s37
s_and_b32 s38, s38, 0xff
s_cmp_lt_u32 s38, 32
s_cbranch_scc1 R_have
v_mov_b32 v3, 1
buffer_atomic_add v3, v2, {DBG}, 0 offen offset:{C_OVF*4} sc0 sc1
s_waitcnt vmcnt(0)
v_readfirstlane_b32 s40, v3
R_wait:""")
    budget_head(a)
    a(f"""s_sleep 8
buffer_load_dword v4, v2, {DBG}, 0 offen offset:{C_TK*4} sc1
buffer_load_dword v5, v2, {DBG}, 0 offen offset:{C_TK*4+128} sc1
s_waitcnt vmcnt(0)
v_readfirstlane_b32 s42, v4
v_readfirstlane_b32 s43, v5
s_nop 3
s_mov_b32 s41, 0""")
    for x in range(8):
        a(f"s_bfe_u32 s37, s{42 + x // 4}, {(8 << 16) | (8 * (x % 4)):#x}\ns_add_u32 s41, s41, s37")
    a("""s_cmp_lt_u32 s41, 256
s_cbranch_scc1 R_wait""")
    for x in range(8):
        a(f"""s_bfe_u32 s37, s{42 + x // 4}, {(8 << 16) | (8 * (x % 4)):#x}
s_min_u32 s37, s37, 32
s_mov_b32 s36, {x}
s_add_u32 s38, s37, s40
s_cmp_lt_u32 s38, 32
s_cbranch_scc1 R_have
s_sub_u32 s40, s38, 32""")
    a(f"""s_mov_b32 s38, 0x1000
R_have:
s_lshl_b32 s38, s38, 3
s_add_u32 s38, s38, s36
v_mov_b32 v3, s38
ds_write_b32 v2, v3
s_mov_b64 exec, -1
s_waitcnt lgkmcnt(0)
R_join:
s_barrier
ds_read_b32 v3, v2
s_waitcnt lgkmcnt(0)
v_readfirstlane_b32 s2, v3
s_nop 3
s_cmp_ge_u32 s2, 256
s_cbranch_scc1 L_fail
s_barrier""")


def gen(cfg):
    cfg.setdefault("tail_seg0", 48)
    cfg.setdefault("tail_stride", 2)
    cfg.setdefault("medfirst", 1)
    a = Asm()
    a(f"""s_cmp_ge_u32 s2, 256
s_cbranch_scc1 L_done
v_lshrrev_b32 v1, 6, v0
v_readfirstlane_b32 s{S_WAVE}, v1""")
    if cfg.get("cpf", 0):
        a(f"""s_getpc_b64 s[6:7]
C_pc:
s_sub_u32 s6, s6, C_pc-{NAME}
s_subb_u32 s7, s7, 0
s_bfe_u32 s36, s2, 0x50003
s_lshl_b32 s36, s36, 12
v_and_b32 v2, 31, v0
v_lshlrev_b32 v2, 7, v2
v_add_u32 v2, s36, v2
v_min_u32 v2, W_table-{NAME}, v2
s_cmp_lg_u32 s{S_WAVE}, 3
s_cbranch_scc1 C_skip
global_load_dword v253, v2, s[6:7]
C_skip:""")
    srd(a, S_WS, 96, WS_SIZE)
    srd(a, S_DBG, 88, 256)
    a(f"s_mov_b32 s{S_BUDGET}, {POLL_BUDGET}")
    if cfg.get("epf", 0):
        n = cfg.get("epf_n", 2)
        a(f"""s_cmp_eq_u32 s{S_WAVE}, 0
s_cbranch_scc1 E_skip
s_load_dwordx4 s[40:43], s[0:1], 16
s_load_dwordx2 s[44:45], s[0:1], 32
s_getreg_b32 s36, hwreg(HW_REG_XCC_ID)
s_and_b32 s36, s36, 3
s_lshl_b32 s36, s36, 11
s_bfe_u32 s37, s2, 0x50003
s_lshl_b32 s37, s37, 15
s_add_u32 s36, s36, s37
v_bfe_u32 v2, v0, 4, 2
v_lshlrev_b32 v2, 13, v2
v_and_b32 v3, 15, v0
v_lshl_add_u32 v2, v3, 7, v2
s_waitcnt lgkmcnt(0)
s_cmp_eq_u32 s{S_WAVE}, 2
s_cselect_b32 s{S_W0}, s42, s40
s_cselect_b32 s{S_W0+1}, s43, s41
s_cmp_eq_u32 s{S_WAVE}, 3
s_cselect_b32 s{S_W0}, s44, s{S_W0}
s_cselect_b32 s{S_W0+1}, s45, s{S_W0+1}
s_and_b32 s{S_W0+1}, s{S_W0+1}, 0xffff
s_mov_b32 s{S_W0+2}, {1024*8192:#x}
s_mov_b32 s{S_W0+3}, 0x20000""")
        for i in range(n):
            a(f"buffer_load_dword v253, v2, s[{S_W0}:{S_W0+3}], s36 offen\ns_add_u32 s36, s36, {128*8192:#x}")
        a.label("E_skip")
    if not cfg.get("static_roles"): role_ticket(a, cfg)
    a(f"""s_and_b32 s{S_TEAM}, s2, 7
s_mov_b32 s{S_GRP}, s{S_TEAM}
s_lshr_b32 s{S_J}, s2, 3
s_mov_b32 s{S_MODE}, 0
s_cmp_ge_u32 s{S_TEAM}, {NT}
s_cbranch_scc1 L_W
s_cmp_ge_u32 s{S_J}, 24
s_cbranch_scc1 L_W
s_cmp_lt_u32 s{S_J}, 8
s_cbranch_scc1 L_S
s_sub_u32 s{S_J}, s{S_J}, 8""")
    hooks, vhooks, signal = chain_hooks(a, cfg)
    v_cu(a, cfg, vhooks)
    a.label("L_S")
    s_cu(a, cfg, hooks)
    a.label("S_exit")
    a(f"""s_waitcnt vmcnt(0)
s_barrier
s_cmp_lg_u32 s{S_WAVE}, 0
s_cbranch_scc1 L_done
s_mov_b32 s{S_T0}, {NSEG-1}""")
    signal(60, S_T0, 2)
    a("s_endpgm")
    a.label("L_fail")
    a(f"""v_mov_b32 v1, 0xdead
v_mov_b32 v2, 0
s_mov_b64 exec, 1
buffer_store_dword v1, v2, {DBG}, 0 offen offset:8
s_endpgm""")
    a.label("L_W")
    tab = worker(a, cfg)
    a.label("L_done")
    a("s_endpgm")
    body = a.finalize()
    ref = open("cdna_kernels/" + PFX + ".s.ref").read().split("\n")
    hdr = [l for l in ref if l.startswith(";") and "@launch" not in l and "Override" not in l and "grid=ceil" not in l]
    out = "\n".join(hdr) + "\n"
    out += f"; @launch grid=(256,1,1) block=(256,1,1) lds={LDS_BYTES}\n"
    out += f""".amdgcn_target "amdgcn-amd-amdhsa--gfx950"
.text
.globl {NAME}
.p2align 8
.type {NAME},@function
{NAME}:
""" + body
    out += ".p2align 4\n.type W_table,@object\nW_table:\n" + "\n".join(tab) + f"\n.size W_table, {16*len(tab)}\n"
    out += f"""
.section .rodata,"a"
.p2align 6
.amdhsa_kernel {NAME}
  .amdhsa_next_free_vgpr 512
  .amdhsa_next_free_sgpr 102
  .amdhsa_accum_offset 256
  .amdhsa_group_segment_fixed_size 0
  .amdhsa_kernarg_size 104
  .amdhsa_user_sgpr_count 2
  .amdhsa_user_sgpr_kernarg_segment_ptr 1
  .amdhsa_system_sgpr_workgroup_id_x 1
.end_amdhsa_kernel
"""
    return out


def report(cfg, down):
    import numpy as np
    if cfg.get("stamps") and not cfg.get("rt"):
        T = down(WS_STAMP, np.uint32, (256, 4, 64, 64))[:, :, :, :8].astype(np.int64)
        ss = list(cfg["stamp_set"])
        Sw = [g + 8*j for g in range(4) for j in range(8)]
        Vw = [g + 8*j for g in range(4) for j in range(8, 24)]
        if cfg.get("early_rep"):
            for nm_, W_ in (("S", Sw), ("V", Vw)):
                for st_ in list(range(0, 12)) + [20]:
                    t = T[W_][:, :, st_]
                    d = (t[..., ss[1:]] - t[..., ss[:-1]]) & 0xffffffff
                    per = (T[W_][:, :, st_ + 1, ss[0]] - t[..., ss[0]]) & 0xffffffff
                    print("  ", nm_, st_, "med", np.median(d.reshape(-1, d.shape[-1]), 0).tolist(), "max", d.reshape(-1, d.shape[-1]).max(0).tolist(), "period", np.median(per))
        for nm_, W_ in (("S", Sw), ("V", Vw)):
            t = T[W_][:, :, 12:60]
            d = (t[..., ss[1:]] - t[..., ss[:-1]]) & 0xffffffff
            per = (T[W_][:, :, 13:61, ss[0]] - t[..., ss[0]]) & 0xffffffff
            print("  ", nm_, cfg.get("at"), "deltas med", np.median(d.reshape(-1, d.shape[-1]), 0).tolist(), "min", d.reshape(-1, d.shape[-1]).min(0).tolist(), "period median", np.median(per))
        return
    if cfg.get("hops"):
        T = down(WS_STAMP, np.uint32, (32, 8, 4, 64, 64))[..., :8].astype(np.int64) * 10
        S = T[:8, :4]; V = T[8:24, :4]
        st = np.arange(12, 60)
        q = lambda x: "med %4d p90 %4d max-mean %4d" % (np.median(x), np.percentile(x, 90), x.reshape(-1, x.shape[-1]).max(0).mean())
        prod = V[0::4, :, :, :, 5].max(2)[:, :, st - 1]
        print("   MEMT hop (frag0)  ", q(S[:, :, :, :, 1][..., st] - prod.transpose(1, 0, 2)[None]))
        allp = V[..., 5].max(2).max(0)[:, st - 1]
        print("   last MEMT pub -> S OM pub", q(S[..., 4][..., st] - allp[None, :, None]))
        print("   last MEMT pub -> VM pub", q(V[..., 2][..., st] - allp[None, :, None]))
        prod = S[0::2, :, :2, :, 4].max(2)[:, :, st]
        print("   OM hop (frag0)    ", q(V[..., 3][..., st] - prod.transpose(1, 0, 2)[None]))
        allo = S[..., 4].max(2).max(0)[:, st]
        print("   last OM pub -> PART pub", q(V[..., 4][..., st] - allo[None, :, None]))
        lastp = V[..., 4].max(1)[..., st]
        print("   last PART pub -> MEMT pub", q(V[..., 5][..., st] - lastp[:, None]))
        print("   spread of PART pub across teams", q(V[..., 4].max(1)[..., st] - V[..., 4].min(1)[..., st]))
        print("   spread MEMT pub within team", q(V[..., 5].max(2).max(0)[:, st] - V[..., 5].min(2).min(0)[:, st]))
        print("   spread OM pub within team", q(allo - S[..., 4].min(2).min(0)[:, st]))
        print("   period", (S[0, 0, 0, 60, 4] - S[0, 0, 0, 12, 4]) / 48)
        return
    if cfg.get("wstamps"):
        lists = schedule(cfg); MAXL = max(len(l) for l in lists)
        st = down(0x8000000, np.uint32, (8, MAXL + 1, 4)).astype(np.int64)
        t0 = min(st[g, :8, 0].min() for g in range(8))
        names = ["mqkv", "bqkv", "bb", "att", "ob", "oa", "oam", "pf", "tail"] + ["x"] * 8
        for g in cfg.get('show', (0, 4, 7)):
            l = lists[g]; i = 0
            while i < len(l):
                j = i
                key = lambda d: (d[0] & 15, (d[0] >> 4) & 255 if (d[0] & 15) not in (T_BB, T_BQKV, T_PF, T_TAIL, T_ATT) else ((d[0] >> 12) & 255 if (d[0] & 15) == T_ATT else 0))
                while j < len(l) and key(l[j]) == key(l[i]): j += 1
                x = (st[g, i:j, :3] - t0) / 100.0
                print(f"  g{g} {names[l[i][0]&15]:5s} p1={(l[i][0]>>4)&255:2d} n={j-i:2d} deq {x[:,0].min():6.1f}-{x[:,0].max():6.1f} start {x[:,1].min():6.1f}-{x[:,1].max():6.1f} end {x[:,2].min():6.1f}-{x[:,2].max():6.1f} dur {(x[:,2]-x[:,1]).mean():5.1f} kcyc {st[g, i:j, 3].mean()/1000:6.1f} GHz {st[g, i:j, 3].mean()/1000/(x[:,2]-x[:,1]).mean():4.2f}")
                i = j
        if cfg.get("stamps"):
            T = down(WS_STAMP, np.uint32, (256, 4, 64, 64))[:, :, :, :8].astype(np.int64)
            s4 = (T[0, 0, :, 4] - t0) / 100.0
            print("  chain OM publish times:", [float(round(x, 1)) for x in s4[[0, 1, 2, 3, 4, 5, 8, 9, 16, 17, 24, 32, 40, 48, 56, 63]]])
            Sw = [g + 8*j for g in range(4) for j in range(8)]
            Vw = [g + 8*j for g in range(4) for j in range(8, 24)]
            if cfg.get("sst"):
                for nm_, W_ in (("S", Sw), ("V", Vw)):
                    for i in (6, 7):
                        x = (T[W_][:, :, 1, i] - t0) / 100.0
                        print("  startup", nm_, i, x.min(), np.median(x), x.max())
                        np.set_printoptions(linewidth=250, precision=0, suppress=True)
                        if cfg.get('sst') == 2: print(x[:, 0].reshape(4, -1))
            print("  S loop first entry", (T[Sw][:, :, 0, 0].min() - t0) / 100.0, (T[Sw][:, :, 0, 0].max() - t0) / 100.0)
            if len(cfg.get("stamp_set", range(8))) > 3:
                for st_ in (21, 35, 58):
                    base = T[Vw][:, :, st_-1, 5].min()
                    tS = (T[Sw][:, :, st_, :8] - base) * 10; tV = (T[Vw][:, :, st_, :8] - base) * 10; tVp = (T[Vw][:, :, st_-1, 5] - base) * 10
                    print("  step", st_, "V pub(prev) min/med/max", tVp.min(), np.median(tVp), tVp.max())
                    for i in cfg["stamp_set"]: print("   S stamp", i, tS[:, :, i].min(), np.median(tS[:, :, i]), tS[:, :, i].max(), "   V stamp", i, tV[:, :, i].min(), np.median(tV[:, :, i]), tV[:, :, i].max())


if __name__ == "__main__":
    cfg = eval(sys.argv[2]) if len(sys.argv) > 2 else {}
    open(sys.argv[1] if len(sys.argv) > 1 else "cdna_kernels/" + PFX + ".s", "w").write(gen(cfg))
```

```python
from asmgen import *
import chain
from chain import *
from tail import WS_OXF
from chain4 import (S_NEAR, S_PCUR, JIT, WS, DBG, OOBV, WS_CNT, WS_KM, arrive, wait_all_arrived, startup_barrier, sstamp, probe,
                    store_mode2, SPoll, ring_poll, Lds)

XRING = L_W


def ring_poll2(a, loads, regs, vt, consume, join, space=4, on_first=None, rfill=3):
    R = [a.uid("rp") for _ in range(4)]
    C = [a.uid("rc") for _ in range(4)]
    def pre3(g):
        b = regs[g]
        return [f"v_max3_u32 v{vt}, v{b}, v{b+1}, v{b+2}", f"v_max_u32 v{vt}, v{vt}, v{b+3}", f"v_cmp_eq_u32 vcc, {chain.SENTINEL[0]}, v{vt}"]
    for f in range(3):
        a(loads[f]); a.fill(space)
    for f in range(4):
        a.label(R[f])
        a(loads[(f + 3) % 4])
        if f == 0: budget_head(a)
        a("s_waitcnt vmcnt(3)")
        for x in pre3(f): a(x)
        a.fill(5)
        a(f"s_cbranch_vccz {C[f]}" if f < 3 else f"s_cbranch_vccnz {R[0]}")
    def body(f):
        a.label(C[f])
        if on_first: on_first()
        for k in range(4):
            g = (f + k) % 4
            chk = []
            if k < 3:
                n = (g + 1) % 4
                rt, back = a.uid("rr"), a.uid("rb")
                chk = pre3(n) + [f"s_cbranch_vccnz {rt}\n{back}:"]
                def retry(n=n, rt=rt, back=back, k=k):
                    a.label(rt)
                    for j in range(3 - k): a(loads[(n + j) % 4])
                    for rep in range(3 - k):
                        for x in pre3(n): a(x)
                        a.fill(rfill + 2)
                        a(f"s_cbranch_vccz {back}")
                    budget_head(a)
                    a(f"s_waitcnt vmcnt(8)\ns_branch {rt}")
                a.defer(retry)
            consume(g, k, chk)
    body(3)
    for f in range(3):
        def ool(f=f):
            body(f); a(f"s_branch {join}")
        a.defer(ool)
    a.label(join)


def s_cu(a, cfg, hooks=None):
    hooks = hooks or {}
    vT, vL16, vGW, vA1, vA2, vA3, vQKW, vQKR, vIDX, vOXO, vVMO, vKMO, vXR, vF, vLANE, vT2 = range(16)
    KX, VX, G, AF, ACC, QF, KMF = 16, 48, 56, 72, 120, 128, 144
    T, VM, PX, PM, O, LS, ONE, HALF, MI, MK, vVM2, SENT = 160, 172, 176, 180, 184, 200, 204, 208, 210, 216, 228, 232
    KD = 240
    vD, vWT = 236, 237
    cfg = dict(cfg); cfg["stamp_reg"] = 254; cfg["lane4_reg"] = 255
    keep = lambda: a(f"v_mfma_f32_16x16x32_bf16 {vr(KD+8,4)}, {vr(ONE,4)}, {vr(ONE,4)}, {vr(KD+8,4)}")
    wreg = lambda s, t: (s * 2 + t) * 8

    a(f"""s_lshl_b32 s{S_HEAD}, s{S_TEAM}, 3
s_add_u32 s{S_HEAD}, s{S_HEAD}, s{S_J}""")
    srd(a, S_W0, 16, 1024 * 8192)
    arrive(a, 20)
    a(f"v_and_b32 v{vLANE}, 63, v0")
    a(f"v_lshlrev_b32 v{vL16}, 4, v{vLANE}")
    a(f"""v_lshrrev_b32 v{vT}, 4, v{vLANE}
v_lshlrev_b32 v{vD}, 13, v{vT}
v_and_b32 v{vT}, 15, v{vLANE}
v_lshl_add_u32 v{vD}, v{vT}, 4, v{vD}
s_lshl_b32 s{S_T0}, s{S_HEAD}, 8
s_lshl_b32 s{S_T1}, s{S_WAVE}, 21
s_add_u32 s{S_T0}, s{S_T0}, s{S_T1}
v_add_u32 v{vD}, s{S_T0}, v{vD}
s_lshl_b32 s{S_T2}, s{S_WAVE}, 14
v_bfe_u32 v{vT}, v{vLANE}, 5, 1
v_lshlrev_b32 v{vWT}, 12, v{vT}
v_bfe_u32 v{vT}, v{vLANE}, 3, 1
v_lshl_add_u32 v{vWT}, v{vT}, 11, v{vWT}
v_bfe_u32 v{vT}, v{vLANE}, 4, 1
v_lshl_add_u32 v{vWT}, v{vT}, 10, v{vWT}
v_bfe_u32 v{vT}, v{vLANE}, 2, 1
v_lshl_add_u32 v{vWT}, v{vT}, 8, v{vWT}
v_and_b32 v{vT}, 3, v{vLANE}
v_lshl_add_u32 v{vWT}, v{vT}, 3, v{vWT}
s_lshl_b32 s{S_T0}, s{S_WAVE}, 6
s_add_u32 s{S_T0}, s{S_T0}, s{S_T2}
v_add_u32 v{vWT}, s{S_T0}, v{vWT}""")
    for q in range(3, -1, -1):
        a(f"v_xor_b32 v{vWT+q}, {q << 14:#x}, v{vWT}\nv_add_u32 v{vWT+q}, {L_W:#x}, v{vWT+q}")
    def issue(j):
        for i in range(16):
            a(f"s_add_u32 m0, s{S_T2}, {L_W + (j % 2) * 65536 + i * 1024}")
            a(f"s_mov_b32 s{S_T4}, {(j * 64 + i * 4) * 8192:#x}")
            a(f"buffer_load_dwordx4 v{vD}, s[{S_W0}:{S_W0+3}], s{S_T4} offen lds")
    issue(0); issue(1)
    for j in range(4):
        a(f"s_waitcnt vmcnt({16 if j < 3 else 0})\ns_barrier")
        for q in range(4):
            for t in range(2):
                for v in range(4):
                    a(f"ds_read_b64_tr_b16 {ar(wreg(j+4*q,t)+2*v,2)}, v{vWT+q} offset:{(32*(v//2) + 2*(v%2))*256 + t*32}")
                a("s_waitcnt lgkmcnt(8)")
        a("s_waitcnt lgkmcnt(0)\ns_barrier")
        for q in range(4):
            a(f"v_add_u32 v{vWT+q}, {0x10000 if j % 2 == 0 else 0xffff0000:#x}, v{vWT+q}")
        if j + 2 < 4: issue(j + 2)
    sstamp(a, 6, cfg)

    a(f"""s_lshl_b32 s{S_T0}, s{S_WAVE}, 12
v_add_u32 v{vGW}, s{S_T0}, v{vL16}""")
    for q in range(1, 4):
        a(f"v_xor_b32 v{vA1+q-1}, {q*4096:#x}, v{vGW}")
    idx_reg(a, vIDX, vLANE, vT)
    a(f"""v_lshrrev_b32 v{vT}, 5, v{vLANE}
v_lshlrev_b32 v{vQKW}, 8, v{vT}
v_and_b32 v{vT}, 15, v{vLANE}
v_lshl_add_u32 v{vQKW}, v{vT}, 4, v{vQKW}
v_bfe_u32 v{vT}, v{vLANE}, 4, 1
v_lshl_add_u32 v{vQKW}, v{vT}, 3, v{vQKW}
s_lshl_b32 s{S_T0}, s{S_WAVE}, 9
v_add_u32 v{vQKW}, s{S_T0}, v{vQKW}
v_lshrrev_b32 v{vT}, 2, v{vLANE}
v_lshlrev_b32 v{vQKR}, 4, v{vT}
v_and_b32 v{vT}, 1, v{vLANE}
v_lshl_add_u32 v{vQKR}, v{vT}, 3, v{vQKR}
s_lshr_b32 s{S_T0}, s{S_WAVE}, 1
s_lshl_b32 s{S_T0}, s{S_T0}, 10
s_and_b32 s{S_T1}, s{S_WAVE}, 1
s_lshl_b32 s{S_T1}, s{S_T1}, 7
s_add_u32 s{S_T0}, s{S_T0}, s{S_T1}
s_add_u32 s{S_WOFF}, s{S_T0}, {WS_OM:#x}
s_lshl_b32 s{S_T0}, s{S_WAVE}, 9
v_add_u32 v{vVMO}, s{S_T0}, v{vL16}
v_mov_b32 v{vT}, {OOBV:#x}
v_cmp_gt_u32 vcc, 32, v{vLANE}
v_cndmask_b32 v{vVMO}, v{vT}, v{vVMO}, vcc
v_and_b32 v{vVM2}, 0xfffffdff, v{vVMO}
v_mov_b32 v{vT2}, 0xff800000""")
    for r in range(4): a(f"v_cndmask_b32 v{MK+r}, v{vT2}, 0, vcc")
    a(f"""v_lshrrev_b32 v{vT}, 4, v{vLANE}
v_lshlrev_b32 v{vKMO}, 7, v{vT}
v_lshlrev_b32 v{vT}, 2, v{vT}
v_and_b32 v{vOXO}, 15, v{vLANE}
v_sub_u32 v{vT}, v{vOXO}, v{vT}
s_and_b32 s{S_T3}, s{S_WAVE}, 1
s_lshl_b32 s{S_T0}, s{S_T3}, 4
v_add_u32 v{vT}, s{S_T0}, v{vT}""")
    for t in range(2):
        for r in range(4):
            a(f"v_cmp_le_i32 vcc, {16*t + r}, v{vT}\nv_cndmask_b32 v{MK+4+4*t+r}, v{vT2}, 0, vcc")
    a(f"""v_and_b32 v{vT}, 7, v{vLANE}
v_lshl_add_u32 v{vKMO}, v{vT}, 4, v{vKMO}
v_lshlrev_b32 v{vOXO}, 6, v{vOXO}
v_lshrrev_b32 v{vT}, 4, v{vLANE}
v_lshl_add_u32 v{vOXO}, v{vT}, 4, v{vOXO}
s_lshl_b32 s{S_T0}, s{S_HEAD}, 15
s_lshr_b32 s{S_T2}, s{S_WAVE}, 1
s_lshl_b32 s{S_T1}, s{S_T2}, 14
s_add_u32 s{S_T0}, s{S_T0}, s{S_T1}
s_lshl_b32 s{S_T1}, s{S_T3}, 10
s_add_u32 s{S_T0}, s{S_T0}, s{S_T1}
v_add_u32 v{vOXO}, s{S_T0}, v{vOXO}
s_lshl_b32 s89, s{S_T3}, 12
s_lshl_b32 s90, s{S_T2}, 12
s_lshl_b32 s91, s{S_HEAD}, 12
s_lshl_b32 s{S_T1}, s{S_T2}, 11
s_add_u32 s91, s91, s{S_T1}
s_lshl_b32 s{S_T1}, s{S_T3}, 17
s_add_u32 s91, s91, s{S_T1}
s_add_u32 s91, s91, {WS_OXF:#x}
s_cmp_eq_u32 s{S_T2}, 0
s_mov_b32 s93, {WS_VM:#x}
s_cselect_b32 s93, {WS_KM:#x}, s93
s_lshl_b32 s{S_T1}, s{S_T3}, 10
s_add_u32 s93, s93, s{S_T1}
v_mov_b32 v{vF}, 0""")
    for i in range(4): a(f"v_mov_b32 v{ONE+i}, 0x3f803f80\nv_mov_b32 v{SENT+i}, -1\nv_mov_b32 v{KD+8+i}, 0")
    a(f"v_mov_b32 v{HALF}, 0x3f003f00\nv_mov_b32 v{HALF+1}, 0x3f003f00")
    if cfg.get("stamps"): a(f"v_lshlrev_b32 v255, 2, v{vLANE}")
    cbits = f32bits(128 ** -0.5 * LOG2E)
    a(f"s_mov_b32 s{S_C}, {cbits:#x}\ns_mov_b32 s{S_C+1}, {cbits:#x}")
    a(f"""s_mov_b32 s{S_STEP}, 0
s_lshl_b32 s{S_OFF_A}, s{S_TEAM}, 20
s_add_u32 s{S_OFF_A}, s{S_OFF_A}, {WS_MEMT:#x}
s_lshl_b32 s{S_OFF_C}, s{S_HEAD}, 11""")
    startup_barrier(a, 244)
    a(f"""s_bcnt1_i32_b32 s{S_T0}, s{S_NEAR}
s_cmp_ge_u32 s{S_T0}, {cfg.get('near_thr', 4)}
s_cselect_b32 s{S_OFF_F}, 0x2000, 0
s_and_b32 s{S_T0}, s{S_J}, 1
s_lshl_b32 s{S_T0}, s{S_T0}, 12
s_add_u32 s{S_OFF_F}, s{S_OFF_F}, s{S_T0}
s_lshr_b32 s{S_T0}, s{S_J}, 1
s_lshl_b32 s{S_T0}, s{S_T0}, 14
s_add_u32 s{S_OFF_F}, s{S_OFF_F}, s{S_T0}
s_lshl_b32 s{S_T0}, s{S_TEAM}, 16
s_add_u32 s{S_OFF_F}, s{S_OFF_F}, s{S_T0}
s_lshl_b32 s{S_T0}, s{S_WAVE}, 10
s_add_u32 s{S_OFF_F}, s{S_OFF_F}, s{S_T0}
s_add_u32 s{S_OFF_F}, s{S_OFF_F}, {WS_PART:#x}
s_lshl_b32 s{S_OFF_E}, s{S_J}, 11
s_lshl_b32 s{S_T0}, s{S_WAVE}, 9
s_add_u32 s{S_OFF_E}, s{S_OFF_E}, s{S_T0}""")

    def x_dma(add, check=True, which=(0, 1, 2)):
        a(f"s_add_u32 s{S_OFF_B}, s{S_STEP}, {add}")
        if "wait_x" in hooks and check:
            a(f"s_mov_b32 s{S_T0}, s{S_OFF_B}")
            hooks["wait_x"](vT)
        a(f"""s_lshl_b32 s{S_T0}, s{S_OFF_B}, 18
s_lshl_b32 s{S_T1}, s{S_HEAD}, 13
s_add_u32 s{S_T0}, s{S_T0}, s{S_T1}
s_lshl_b32 s{S_T2}, s{S_WAVE}, 11
s_add_u32 s{S_T0}, s{S_T0}, s{S_T2}
s_cmp_ge_u32 s{S_OFF_B}, {NSEG}
s_cselect_b32 s{S_T0}, {OOBV:#x}, s{S_T0}
s_and_b32 s{S_T1}, s{S_OFF_B}, 3
s_lshl_b32 s{S_T1}, s{S_T1}, 15
s_add_u32 s{S_T1}, s{S_T1}, s{S_T2}""")
        for k, reg in enumerate((WS_QX, WS_KX, WS_VX)):
            if k not in which: continue
            a(f"s_add_u32 m0, s{S_T1}, {XRING + k * 8192:#x}\ns_add_u32 s{S_T3}, s{S_T0}, {reg:#x}")
            for f in range(2):
                a(f"buffer_load_dwordx4 v{vL16}, {WS}, s{S_T3} offen offset:{f*1024} sc1 lds")

    def chores():
        a(f"""s_xor_b32 s{S_T0}, s{S_OFF_F}, {JIT << 18:#x}
buffer_store_dwordx4 {vr(SENT,4)}, v{vL16}, {WS}, s{S_T0} offen sc1
s_xor_b32 s{S_T2}, s{S_OFF_C}, {JIT << 16:#x}
s_lshl_b32 s{S_T3}, s{S_WAVE}, 9
s_add_u32 s{S_T2}, s{S_T2}, s{S_T3}
s_add_u32 s{S_T0}, s{S_T2}, {WS_KM:#x}
s_add_u32 s{S_T1}, s{S_T2}, {WS_VM:#x}
s_add_u32 s{S_T2}, s{S_T2}, {WS_OM:#x}
s_xor_b32 s{S_T3}, s{S_OFF_A}, {JIT << 14:#x}
s_add_u32 s{S_T3}, s{S_T3}, s{S_OFF_E}
s_cmp_eq_u32 s{S_MODE}, 1
s_mov_b32 exec_hi, 0""")
        l1, l2 = a.uid("ji"), a.uid("ji")
        jit = lambda fl: "\n".join(f"buffer_store_dwordx4 {vr(SENT,4)}, v{vL16}, {WS}, s{t} offen {fl}" for t in (S_T0, S_T1, S_T2, S_T3))
        a(f"s_cbranch_scc0 {l1}\n{jit('')}\n{l2}:\ns_mov_b64 exec, -1")
        a.defer(lambda: a(f"{l1}:\n{jit('sc1')}\ns_branch {l2}"))

    pkfma = lambda r, nm: f"v_pk_fma_f32 {vr(r,2)}, {vr(r,2)}, s[{S_C}:{S_C+1}], {vr(nm,2)} op_sel_hi:[1,1,0] neg_lo:[0,0,1] neg_hi:[0,0,1]"
    if cfg.get("warm", 1):
        for k in range(2):
            a(f"""s_lshl_b32 s{S_T0}, s{S_WAVE}, 17
s_add_u32 s{S_T0}, s{S_T0}, s{S_OFF_C}
s_add_u32 s{S_T1}, s{S_T0}, {WS_KM + (k << 16):#x}
s_add_u32 s{S_T2}, s{S_T0}, {WS_VM + (k << 16):#x}""")
            for t in (S_T1, S_T2):
                for f in range(2): a(f"buffer_load_dwordx4 {vr(AF,4)}, v{vL16}, {WS}, s{t} offen offset:{f*1024} sc1")
    if "wait_q" in hooks:
        x_dma(0, True, (1, 2)); x_dma(1, False, (1, 2))
        a("s_waitcnt vmcnt(4)\ns_barrier")
    else:
        x_dma(0); x_dma(1)
        a("s_waitcnt vmcnt(6)\ns_barrier")
    sstamp(a, 7, cfg)
    a.set_filler(vF)
    a.label("S_loop")
    stamp(a, 0, cfg)
    a(f"""s_and_b32 s{S_T0}, s{S_STEP}, 3
s_lshl_b32 s{S_T0}, s{S_T0}, 15
s_add_u32 s{S_T0}, s{S_T0}, {XRING:#x}
v_add_u32 v{vXR}, s{S_T0}, v{vL16}
s_lshl_b32 s{S_T1}, s{S_WAVE}, 11
v_add_u32 v{vT2}, s{S_T1}, v{vXR}""")
    for f in range(8): a(f"ds_read_b128 {vr(KX+4*f,4)}, v{vXR} offset:{8192 + f*1024}")
    for f in range(2): a(f"ds_read_b128 {vr(VX+4*f,4)}, v{vT2} offset:{16384 + f*1024}")
    for i in range(8): a(f"v_mov_b32 v{ACC+i}, 0")
    for i in range(16): a(f"v_mov_b32 v{G+i}, -1\nv_mov_b32 v{KMF+i}, -1")
    for i in range(4): a(f"v_mov_b32 v{VM+i}, -1")
    a(f"""s_add_u32 s{S_T5}, s{S_OFF_C}, {WS_VM:#x}
s_add_u32 s{S_T4}, s{S_OFF_C}, s{S_WOFF}
s_add_u32 s{S_OFF_D}, s{S_OFF_C}, {WS_KM:#x}
s_waitcnt lgkmcnt(0)""")
    L = Lds(a)
    loads = [f"buffer_load_dwordx4 {vr(G+4*i,4)}, v{vGW}, {WS}, s{S_OFF_A} offen offset:{1024*i} sc1" for i in range(4)]
    o = cfg.get("s_mem", {})
    sp = SPoll(a, loads, [G + 4 * i for i in range(4)], vT, cap=o.get("cap", 3), sleep=o.get("sleep", 3), respin=o.get("respin", 4))
    gw = lambda f: L.op(("GW", f), f"ds_write_b128 v{vGW}, {vr(G+4*f,4)} offset:{L_MEM + 1024*f}")
    areg = lambda s: G + 4 * s if s < 4 else AF + 4 * (s - 4)
    def mm(s, t):
        if s >= 4: L.wait(("A", s))
        a(f"v_smfmac_f32_16x16x64_bf16 {vr(ACC+4*t,4)}, {vr(areg(s),4)}, {ar(wreg(s,t),8)}, v{vIDX}")
    def ard(s): L.op(("A", s), f"ds_read_b128 {vr(areg(s),4)}, v{vA1 + s // 4 - 1} offset:{L_MEM + (s % 4) * 1024}")
    if cfg.get("s_sleep"): a(f"s_sleep {cfg['s_sleep']}")
    kml = [f"buffer_load_dwordx4 {vr(KMF+4*f,4)}, v{vKMO}, {WS}, s{S_OFF_D} offen offset:{f*512} sc1" for f in range(4)]
    vml = f"buffer_load_dwordx4 {vr(VM,4)}, v{vVMO}, {WS}, s{S_T5} offen sc1"
    if cfg.get("s_ring", 1):
        def consume(g, k, chk):
            a(f"ds_write_b128 v{vGW}, {vr(G+4*g,4)} offset:{L_MEM + 1024*g}")
            for x in chk[:3]: a(x)
            mm(g, 0)
            if chk: a(chk[3])
        ring_poll2(a, loads, [G + 4 * i for i in range(4)], vT, consume, a.uid("sj"), space=o.get("space", 4), on_first=lambda: stamp(a, 1, cfg), rfill=o.get("rfill", 3))
        mm(0, 1); mm(1, 1)
        a("s_waitcnt lgkmcnt(0)\ns_barrier")
        probe(a, "b1", cfg)
        rest = list(range(4, 16))
        ard(4); ard(5); ard(6); mm(2, 1); ard(7); ard(8); ard(9); mm(3, 1)
        for k, s in enumerate(rest):
            mm(s, 0)
            if 10 + k < 16: ard(10 + k)
            mm(s, 1)
    else:
        sp.first(prefill=False, arm=o.get("arm", 0), arm_fill=o.get("afill", 6), arm_cap=o.get("acap", 4))
        stamp(a, 1, cfg)
        gw(0); sp.pre(1); mm(0, 0); sp.br(1)
        gw(1); sp.pre(2); mm(0, 1); mm(1, 0); sp.br(2)
        sp.pre(3); mm(1, 1)
        L.wait(("GW", 1)); a("s_barrier")
        probe(a, "b1", cfg)
        e1 = [4, 8, 12, 5, 9, 13]; e2 = [6, 10, 14, 7, 11, 15]
        ard(4); ard(8); mm(2, 0); ard(12); ard(5); sp.br(3); mm(2, 1); ard(9); ard(13); mm(3, 0)
        gw(2); mm(3, 1); gw(3)
        for k, s in enumerate(e1):
            mm(s, 0)
            if k >= 3: ard(e2[2*(k-3)])
            mm(s, 1)
            if k >= 3: ard(e2[2*(k-3)+1])
            if k == 2:
                L.wait(("GW", 3)); a("s_barrier")
        for s in e2:
            mm(s, 0); mm(s, 1)

    stamp(a, 2, cfg)
    for r in range(4): a(f"v_permlane32_swap_b32 v{ACC+r}, v{ACC+4+r}")
    for r in range(4): a(f"v_add_f32 v{ACC+r}, v{ACC+r}, v{ACC+4+r}")
    a(f"v_cvt_pk_bf16_f32 v{ACC+4}, v{ACC}, v{ACC+1}\nv_cvt_pk_bf16_f32 v{ACC+5}, v{ACC+2}, v{ACC+3}")
    L.op("QW", f"ds_write_b64 v{vQKW}, {vr(ACC+4,2)} offset:{L_QK}")
    keep(); keep(); keep()
    L.wait("QW"); a("s_waitcnt vmcnt(0)\ns_barrier")
    probe(a, "s_b", cfg)
    for ks in range(4):
        for u in range(2):
            L.op(("QF", ks), f"ds_read_b64_tr_b16 {vr(QF+4*ks+2*u,2)}, v{vQKR} offset:{L_QK + (32*ks+16*u)*16}")
        if ks % 2 == 0: keep()
    if cfg.get("km1", 1):
        for x in kml: a(x)
    keep()
    X, T0 = T + 4, T
    def sc(ks, t, d, C0):
        A = KMF + 4 * ks if t == 0 else KX + 16 * (t - 1) + 4 * ks
        a(f"v_mfma_f32_16x16x32_bf16 {vr(d,4)}, {vr(A,4)}, {vr(QF+4*ks,4)}, {C0 if ks == 0 else vr(d,4)}")
    for ks in range(4):
        L.wait(("QF", ks))
        sc(ks, 1, X, "0"); sc(ks, 2, X + 4, "0")
        if ks == cfg.get("km2", 2):
            for x in kml: a(x)
        if cfg.get("kmsp"): a(kml[ks])
    probe(a, "s_x", cfg)
    mx, m2, nm, al = MI, MI + 1, MI + 2, MI + 4
    if cfg.get("online", 0):
        nmx, LM = ACC, ACC + 4
        a(f"""v_max3_f32 v{mx}, v{X}, v{X+1}, v{X+2}
v_max3_f32 v{m2}, v{X+4}, v{X+5}, v{X+6}
v_max3_f32 v{mx}, v{mx}, v{X+3}, v{X+7}
v_max_f32 v{al}, v{mx}, v{m2}
v_max_f32 v{m2}, v{mx}, v{m2}
v_permlane32_swap_b32 v{al}, v{m2}
v_max_f32 v{mx}, v{al}, v{m2}
v_max_f32 v{al}, v{al}, v{m2}
v_permlane16_swap_b32 v{mx}, v{al}
v_max_f32 v{mx}, v{mx}, v{al}
v_mul_f32 v{nmx}, s{S_C}, v{mx}""")
        if cfg.get("km3", 1):
            for x in kml: a(x)
        for i in range(0, 8, 2): a(pkfma(X + i, nmx))
        for i in range(8):
            a(f"v_exp_f32 v{X+i}, v{X+i}")
            if i >= 2 and i % 2 == 0: a(f"v_cvt_pk_bf16_f32 v{PX+i//2-1}, v{X+i-2}, v{X+i-1}")
        a(vml)
        a(f"v_cvt_pk_bf16_f32 v{PX+3}, v{X+6}, v{X+7}")
        kl, kr = a.uid("kl"), a.uid("kr")
        a.label(kl)
        for ks in range(4):
            b = KMF + 4 * ks
            a(f"v_max3_u32 v{vT}, v{b}, v{b+1}, v{b+2 if ks == 0 else vT}")
            a(f"v_max_u32 v{vT}, v{vT}, v{b+3}" if ks == 0 else f"v_max3_u32 v{vT}, v{b+2}, v{b+3}, v{vT}")
            if ks == 3: a(f"v_cmp_eq_u32 vcc, {chain.SENTINEL[0]}, v{vT}")
            sc(ks, 0, T0, "0")
        a(f"v_mfma_f32_16x16x32_bf16 {vr(LS,4)}, {vr(ONE,4)}, {vr(PX,4)}, 0")
        a(f"s_cbranch_vccnz {kr}")
        def kretry():
            a.label(kr)
            for x in kml: a(x)
            a(vml)
            budget_head(a)
            a(f"s_waitcnt vmcnt(15)\ns_branch {kl}")
        a.defer(kretry)
        probe(a, "s_km", cfg)
        a(vml)
        a(f"v_mfma_f32_16x16x32_bf16 {vr(O,4)}, {vr(VX,4)}, {vr(PX,4)}, 0")
        a(f"""v_max3_f32 v{m2}, v{T0}, v{T0+1}, v{T0+2}
v_max3_f32 v{al}, v{m2}, v{T0+3}, v{mx}
v_max3_f32 v{m2}, v{m2}, v{T0+3}, v{mx}""")
        a(f"v_mfma_f32_16x16x32_bf16 {vr(O+4,4)}, {vr(VX+4,4)}, {vr(PX,4)}, 0")
        a(f"""v_permlane16_swap_b32 v{m2}, v{al}
v_max_f32 v{m2}, v{m2}, v{al}""")
        stamp(a, 3, cfg)
        a(f"v_mul_f32 v{nm}, s{S_C}, v{m2}")
        for r in range(4): a(f"v_fma_f32 v{T0+r}, v{T0+r}, s{S_C}, -v{nm}")
        a(f"v_sub_f32 v{al}, v{nmx}, v{nm}")
        for r in range(4): a(f"v_exp_f32 v{T0+r}, v{T0+r}")
        a(f"v_cvt_pk_bf16_f32 v{PM}, v{T0}, v{T0+1}")
        a(f"v_exp_f32 v{al}, v{al}")
        a(f"v_cvt_pk_bf16_f32 v{PM+1}, v{T0+2}, v{T0+3}")
        vp = SPoll(a, [vml], [VM], vT, cap=3, sleep=1)
        chk = vp.pre3(0)
        a(chk[0]); a(chk[1])
        a(f"v_mfma_f32_16x16x16_bf16 {vr(LM,4)}, {vr(HALF,2)}, {vr(PM,2)}, 0")
        a(chk[2])
        probe(a, "s_pv", cfg)
        pv, rt = a.uid("pv"), a.uid("vr")
        a.label(pv)
        a(f"v_mfma_f32_16x16x16_bf16 {vr(O+8,4)}, {vr(VM,2)}, {vr(PM,2)}, 0")
        a(f"v_mfma_f32_16x16x16_bf16 {vr(O+12,4)}, {vr(VM+2,2)}, {vr(PM,2)}, 0")
        a(f"s_cbranch_vccnz {rt}")
        a.defer(lambda: (vp._body(0, rt), a(f"s_branch {pv}")))
        a(f"s_cmp_eq_u32 s{S_MODE}, 1")
        a(f"v_fma_f32 v{mx}, v{LS}, v{al}, v{LM}")
        a(f"v_rcp_f32 v{nm}, v{mx}")
        a("s_mov_b32 exec_lo, 0x00ff00ff\ns_mov_b32 exec_hi, 0x00ff00ff")
        for i in range(0, 8, 2):
            a(f"v_pk_fma_f32 {vr(O+8+i,2)}, {vr(O+i,2)}, {vr(al,2)}, {vr(O+8+i,2)} op_sel_hi:[1,0,1]")
        for i in range(0, 8, 2):
            a(f"v_pk_mul_f32 {vr(O+8+i,2)}, {vr(O+8+i,2)}, {vr(nm,2)} op_sel_hi:[1,0]")
            if i >= 2: a(f"v_cvt_pk_bf16_f32 v{PX+i//2-1}, v{O+8+i-2}, v{O+8+i-1}")
        a(f"v_cvt_pk_bf16_f32 v{PX+3}, v{O+14}, v{O+15}")
    else:
        a(f"""v_max3_f32 v{mx}, v{X}, v{X+1}, v{X+2}
v_max3_f32 v{m2}, v{X+4}, v{X+5}, v{X+6}
v_max3_f32 v{mx}, v{mx}, v{X+3}, v{X+7}
v_max_f32 v{al}, v{mx}, v{m2}
v_max_f32 v{m2}, v{mx}, v{m2}
v_permlane32_swap_b32 v{al}, v{m2}""")
        ok = cfg.get("s_km", {})
        kp = SPoll(a, ["\n".join(kml)], [list(range(KMF, KMF + 16))], vT, cap=ok.get("cap", 12), sleep=ok.get("sleep", 0), respin=ok.get("respin", 0))
        kp.pre(0); a(vml); a.fill(4); kp.br(0)
        probe(a, "s_km", cfg)
        for ks in range(4): sc(ks, 0, T0, "0")
        a(vml)
        a(f"""v_max3_f32 v{mx}, v{T0}, v{T0+1}, v{T0+2}
v_max3_f32 v{m2}, v{al}, v{m2}, v{T0+3}
v_max_f32 v{al}, v{mx}, v{m2}
v_max_f32 v{mx}, v{mx}, v{m2}
v_permlane16_swap_b32 v{mx}, v{al}
v_max_f32 v{m2}, v{mx}, v{al}""")
        stamp(a, 3, cfg)
        a(f"v_mul_f32 v{nm}, s{S_C}, v{m2}")
        for i in range(0, 8, 2): a(pkfma(X + i, nm))
        a(pkfma(T0, nm)); a(pkfma(T0 + 2, nm))
        a(vml)
        for i in range(8):
            a(f"v_exp_f32 v{X+i}, v{X+i}")
            if i >= 2 and i % 2 == 0: a(f"v_cvt_pk_bf16_f32 v{PX+i//2-1}, v{X+i-2}, v{X+i-1}")
        a(f"v_exp_f32 v{T0}, v{T0}")
        a(f"v_cvt_pk_bf16_f32 v{PX+3}, v{X+6}, v{X+7}")
        a(f"v_exp_f32 v{T0+1}, v{T0+1}\nv_exp_f32 v{T0+2}, v{T0+2}")
        a(f"v_mfma_f32_16x16x32_bf16 {vr(LS,4)}, {vr(ONE,4)}, {vr(PX,4)}, 0")
        a(f"v_exp_f32 v{T0+3}, v{T0+3}")
        a(f"v_mfma_f32_16x16x32_bf16 {vr(O,4)}, {vr(VX,4)}, {vr(PX,4)}, 0")
        a(f"v_cvt_pk_bf16_f32 v{PM}, v{T0}, v{T0+1}\nv_cvt_pk_bf16_f32 v{PM+1}, v{T0+2}, v{T0+3}")
        a(f"v_mfma_f32_16x16x32_bf16 {vr(O+4,4)}, {vr(VX+4,4)}, {vr(PX,4)}, 0")
        vp = SPoll(a, [vml], [VM], vT, cap=3, sleep=1)
        chk = vp.pre3(0)
        a(chk[0]); a(chk[1])
        a(f"v_mfma_f32_16x16x16_bf16 {vr(LS,4)}, {vr(HALF,2)}, {vr(PM,2)}, {vr(LS,4)}")
        a(chk[2])
        probe(a, "s_pv", cfg)
        pv, rt = a.uid("pv"), a.uid("vr")
        a.label(pv)
        a(f"v_mfma_f32_16x16x16_bf16 {vr(O+8,4)}, {vr(VM,2)}, {vr(PM,2)}, {vr(O,4)}")
        a(f"v_mfma_f32_16x16x16_bf16 {vr(O+12,4)}, {vr(VM+2,2)}, {vr(PM,2)}, {vr(O+4,4)}")
        a(f"s_cbranch_vccnz {rt}")
        a.defer(lambda: (vp._body(0, rt), a(f"s_branch {pv}")))
        a(f"s_cmp_eq_u32 s{S_MODE}, 1")
        a(f"v_rcp_f32 v{nm}, v{LS}")
        a("s_mov_b32 exec_lo, 0x00ff00ff\ns_mov_b32 exec_hi, 0x00ff00ff")
        for i in range(0, 8, 2):
            a(f"v_pk_mul_f32 {vr(O+8+i,2)}, {vr(O+8+i,2)}, {vr(nm,2)} op_sel_hi:[1,0]")
            if i >= 2: a(f"v_cvt_pk_bf16_f32 v{PX+i//2-1}, v{O+8+i-2}, v{O+8+i-1}")
        a(f"v_cvt_pk_bf16_f32 v{PX+3}, v{O+14}, v{O+15}")
    store_mode2(a, f"buffer_store_dwordx4 {vr(PX,4)}, v{vL16}, {WS}, s{S_T4} offen")
    a("s_mov_b64 exec, -1")
    stamp(a, 4, cfg)

    V4, VM2, P2, O2, D2 = AF, AF + 16, AF + 24, G, KD
    t0 = cfg.get("tail_seg0", 64)
    def ox_store(seg):
        l1, l2 = a.uid("ox"), a.uid("ox")
        a(f"""s_cmp_ge_u32 s{seg}, {t0}
s_cbranch_scc1 {l1}
s_lshr_b32 s{S_T2}, s{seg}, 2
s_lshl_b32 s{S_T2}, s{S_T2}, 20
s_and_b32 s{S_T1}, s{seg}, 3
s_lshl_b32 s{S_T1}, s{S_T1}, 11
s_add_u32 s{S_T2}, s{S_T2}, s{S_T1}
s_add_u32 s{S_T2}, s{S_T2}, {WS_OX:#x}
s_add_u32 s{S_T1}, s{S_T2}, 0x2000
buffer_store_dwordx4 {vr(D2,4)}, v{vOXO}, {WS}, s{S_T2} offen sc1
buffer_store_dwordx4 {vr(D2+4,4)}, v{vOXO}, {WS}, s{S_T1} offen sc1
{l2}:""")
        a.defer(lambda: a(f"""{l1}:
s_lshl_b32 s{S_T2}, s{seg}, 18
s_add_u32 s{S_T2}, s{S_T2}, s91
s_cmp_ge_u32 s{seg}, {NSEG}
s_cselect_b32 s{S_T2}, {OOBV:#x}, s{S_T2}
buffer_store_dwordx4 {vr(D2,4)}, v{vL16}, {WS}, s{S_T2} offen sc1
buffer_store_dwordx4 {vr(D2+4,4)}, v{vL16}, {WS}, s{S_T2} offen offset:1024 sc1
s_branch {l2}"""))
    if "wait_q" in hooks:
        q1, q2 = a.uid("q0"), a.uid("q0")
        a(f"s_cmp_eq_u32 s{S_STEP}, 0\ns_cbranch_scc1 {q1}\n{q2}:")
        def first_q():
            a.label(q1)
            hooks["wait_q"](vT)
            x_dma(0, False, (0,)); x_dma(1, False, (0,))
            a(f"s_waitcnt vmcnt(0)\ns_barrier\ns_branch {q2}")
        a.defer(first_q)
    vm2 = [f"buffer_load_dwordx4 {vr(VM2+4*i,4)}, v{vVM2}, {WS}, s{S_T5} offen offset:{512*i} sc1" for i in range(2)]
    for x in vm2: a(x)
    a(f"v_add_u32 v{vT2}, s89, v{vXR}\nv_add_u32 v{vT}, s90, v{vXR}")
    for ks in range(4): a(f"ds_read_b128 {vr(QF+4*ks,4)}, v{vT2} offset:{ks*1024}")
    for f in range(4): a(f"ds_read_b128 {vr(V4+4*f,4)}, v{vT} offset:{16384 + f*1024}")
    def burst():
        if "wait_x" in hooks:
            a(f"s_add_u32 s{S_T0}, s{S_STEP}, 2")
            hooks["wait_x"](vT)
        a(f"s_sub_u32 s92, s{S_STEP}, 1\ns_cmp_ge_u32 s92, {NSEG-cfg.get('early', 6)}\ns_cselect_b32 s92, -1, s92")
        ox_store(92)
        if cfg.get("retouch", 1):
            a(f"""s_add_u32 s{S_T0}, s{S_OFF_C}, 0x10000
s_bitset0_b32 s{S_T0}, 19
s_add_u32 s{S_T0}, s{S_T0}, s93
buffer_load_dwordx4 {vr(AF+40,4)}, v{vL16}, {WS}, s{S_T0} offen sc1""")
        chores()
        x_dma(2, False)
    bp = cfg.get("burst", 2)
    if bp == 0: burst()
    for ks in range(4):
        a(f"s_waitcnt lgkmcnt({7 - ks})")
        for t in (1, 2, 0):
            A = KMF + 4 * ks if t == 0 else KX + 16 * (t - 1) + 4 * ks
            a(f"v_mfma_f32_16x16x32_bf16 {vr(T+4*t,4)}, {vr(A,4)}, {vr(QF+4*ks,4)}, {vr(MK+4*t,4) if ks == 0 else vr(T+4*t,4)}")
    if bp == 1: burst()
    a(f"s_waitcnt vmcnt({13 if bp < 2 else 0}) lgkmcnt(0)")
    if "post_om" in hooks: hooks["post_om"](MI)
    v2p = SPoll(a, ["\n".join(vm2)], [list(range(VM2, VM2 + 8))], vT, cap=0)
    v2p.pre(0); a.fill(4); v2p.br(0)
    regs = [T + 4 * t + r for t in (1, 2, 0) for r in range(4)]
    a(f"v_max3_f32 v{mx}, v{regs[0]}, v{regs[1]}, v{regs[2]}")
    rest = regs[3:]
    while rest:
        if len(rest) >= 2: a(f"v_max3_f32 v{mx}, v{mx}, v{rest[0]}, v{rest[1]}"); rest = rest[2:]
        else: a(f"v_max_f32 v{mx}, v{mx}, v{rest[0]}"); rest = rest[1:]
    xlane_reduce(a, "v_max_f32", mx, m2)
    a(f"v_mul_f32 v{nm}, s{S_C}, v{mx}")
    for i in range(0, 12, 2): a(pkfma(T + i, nm))
    if bp == 2: burst()
    for r in regs: a(f"v_exp_f32 v{r}, v{r}")
    for i in range(6): a(f"v_cvt_pk_bf16_f32 v{P2+i}, v{regs[2*i]}, v{regs[2*i+1]}")
    a(f"v_mfma_f32_16x16x32_bf16 {vr(LS,4)}, {vr(ONE,4)}, {vr(P2,4)}, 0")
    for f in range(4): a(f"v_mfma_f32_16x16x32_bf16 {vr(O2+4*f,4)}, {vr(V4+4*f,4)}, {vr(P2,4)}, 0")
    a(f"v_mfma_f32_16x16x16_bf16 {vr(LS,4)}, {vr(ONE,2)}, {vr(P2+4,2)}, {vr(LS,4)}")
    for f in range(4): a(f"v_mfma_f32_16x16x16_bf16 {vr(O2+4*f,4)}, {vr(VM2+2*f,2)}, {vr(P2+4,2)}, {vr(O2+4*f,4)}")
    a(f"v_rcp_f32 v{nm}, v{LS}")
    for i in range(0, 16, 2): a(f"v_pk_mul_f32 {vr(O2+i,2)}, {vr(O2+i,2)}, {vr(nm,2)} op_sel_hi:[1,0]")
    for i in range(8): a(f"v_cvt_pk_bf16_f32 v{D2+i}, v{O2+2*i}, v{O2+2*i+1}")
    e1, e2 = a.uid("ie"), a.uid("ie")
    a(f"s_cmp_ge_u32 s{S_STEP}, {NSEG-cfg.get('early', 6)}\ns_cbranch_scc1 {e1}\n{e2}:")
    def early_store():
        a.label(e1); ox_store(S_STEP); a(f"s_branch {e2}")
    a.defer(early_store)
    stamp(a, 5, cfg)
    stamp_flush(a, cfg)
    a(f"""s_add_u32 s{S_STEP}, s{S_STEP}, 1
s_cmp_eq_u32 s{S_STEP}, {NSEG}
s_cbranch_scc1 {hooks.get('exit', 'L_done')}
s_add_u32 s{S_OFF_A}, s{S_OFF_A}, 0x4000
s_bitset0_b32 s{S_OFF_A}, 17
s_add_u32 s{S_OFF_C}, s{S_OFF_C}, {32*2048:#x}
s_bitset0_b32 s{S_OFF_C}, 19
s_add_u32 s{S_OFF_F}, s{S_OFF_F}, 0x40000
s_bitset0_b32 s{S_OFF_F}, 21
s_branch S_loop""")
    a.flush_deferred()
    a.set_filler(None)


def v_cu(a, cfg, hooks=None):
    hooks = hooks or {}
    vLANE, vGOFF, vIDX, vL16, vT, vT2, vVMO, vOMO, vRW, vRR, vPO, vMO, vL4, vD, vI16 = range(0, 15)
    QF = 16
    G, ACC, ACC2, OF, RD, RP, MI, SENT = 32, 48, 64, 80, 96, 104, 112, 120
    vRV, vKO = 124, 125
    WV = 128
    cfg = dict(cfg); cfg["stamp_reg"] = MI + 5; cfg["lane4_reg"] = vL4
    a(f"""s_lshl_b32 s{S_HEAD}, s{S_TEAM}, 3
s_lshr_b32 s{S_T0}, s{S_J}, 1
s_add_u32 s{S_HEAD}, s{S_HEAD}, s{S_T0}""")
    srd(a, S_W0, 32, 1024 * 8192)
    srd(a, S_W1, 40, 4096 * 2048)
    srd(a, S_W2, 8, 8 * 2048)
    a(f"v_and_b32 v{vLANE}, 63, v0")
    a(f"v_lshlrev_b32 v{vL16}, 4, v{vLANE}")
    a(f"v_lshlrev_b32 v{vL4}, 2, v{vLANE}")
    for i in range(4): a(f"v_mov_b32 v{SENT+i}, -1")
    a(f"""s_lshl_b32 s{S_OFF_A}, s{S_TEAM}, 20
s_add_u32 s{S_OFF_A}, s{S_OFF_A}, {WS_MEMT:#x}
s_lshl_b32 s{S_T0}, s{S_J}, 10
s_add_u32 s{S_OFF_E}, s{S_OFF_A}, s{S_T0}
s_lshl_b32 s{S_OFF_C}, s{S_HEAD}, 11
s_and_b32 s{S_T1}, s{S_J}, 1
s_lshl_b32 s{S_T1}, s{S_T1}, 10
s_add_u32 s{S_OFF_B}, s{S_OFF_C}, s{S_T1}
s_and_b32 s{S_T0}, s{S_J}, 3
s_lshl_b32 s{S_OFF_D}, s{S_T0}, 11
s_lshr_b32 s{S_T0}, s{S_J}, 2
s_lshl_b32 s{S_T0}, s{S_T0}, 14
s_add_u32 s{S_OFF_D}, s{S_OFF_D}, s{S_T0}
s_add_u32 s{S_OFF_D}, s{S_OFF_D}, {WS_PART:#x}
s_lshl_b32 s{S_T0}, s{S_TEAM}, 16
s_add_u32 s{S_OFF_F}, s{S_OFF_D}, s{S_T0}""")

    for rep in range(2 if cfg.get('init8', 1) else 1):
        a(f"s_add_u32 s{S_T5}, s{S_WAVE}, {4*rep}")
        a(f"""s_lshl_b32 s{S_T0}, s{S_T5}, 14
s_add_u32 s{S_T0}, s{S_T0}, s{S_OFF_E}
buffer_store_dwordx4 {vr(SENT,4)}, v{vL16}, {WS}, s{S_T0} offen sc1
s_lshl_b32 s{S_T0}, s{S_T5}, 16
s_add_u32 s{S_T0}, s{S_T0}, s{S_OFF_B}
s_add_u32 s{S_T1}, s{S_T0}, {WS_VM:#x}
buffer_store_dwordx4 {vr(SENT,4)}, v{vL16}, {WS}, s{S_T1} offen sc1
s_add_u32 s{S_T1}, s{S_T0}, {WS_OM:#x}
buffer_store_dwordx4 {vr(SENT,4)}, v{vL16}, {WS}, s{S_T1} offen sc1
s_add_u32 s{S_T1}, s{S_T0}, {WS_KM:#x}
buffer_store_dwordx4 {vr(SENT,4)}, v{vL16}, {WS}, s{S_T1} offen sc1
s_lshl_b32 s{S_T0}, s{S_T5}, 18
s_add_u32 s{S_T0}, s{S_T0}, s{S_OFF_F}
buffer_store_dwordx4 {vr(SENT,4)}, v{vL16}, {WS}, s{S_T0} offen sc1
buffer_store_dwordx4 {vr(SENT,4)}, v{vL16}, {WS}, s{S_T0} offen offset:1024 sc1
s_add_u32 s{S_T0}, s{S_T0}, 0x2000
buffer_store_dwordx4 {vr(SENT,4)}, v{vL16}, {WS}, s{S_T0} offen sc1
buffer_store_dwordx4 {vr(SENT,4)}, v{vL16}, {WS}, s{S_T0} offen offset:1024 sc1""")

    a(f"""v_mov_b32 v{G}, 0
v_mov_b32 v{G+1}, 0
v_mov_b32 v{G+2}, 0
v_mov_b32 v{G+3}, 0
s_lshl_b32 s{S_T0}, s{S_TEAM}, 4
s_add_u32 s{S_T0}, s{S_T0}, s{S_J}
s_lshl_b32 s{S_T0}, s{S_T0}, 9
s_lshl_b32 s{S_T1}, s{S_WAVE}, 7
s_add_u32 s{S_T0}, s{S_T0}, s{S_T1}
s_add_u32 s{S_T0}, s{S_T0}, {WS_CNT:#x}
s_mov_b64 exec, 0xff
buffer_store_dwordx4 {vr(G,4)}, v{vL16}, {WS}, s{S_T0} offen sc1
s_mov_b64 exec, -1""")
    if not cfg.get("noprobe"):
        skip = a.uid("pr")
        a(f"""s_lshl_b32 s{S_T0}, s{S_TEAM}, 4
s_add_u32 s{S_T0}, s{S_T0}, s{S_J}
s_cmp_ge_u32 s{S_T0}, 8
s_cbranch_scc1 {skip}
s_cmp_lg_u32 s{S_WAVE}, 3
s_cbranch_scc1 {skip}
s_add_u32 s{S_T1}, s{S_OFF_F}, {7 << 18:#x}
s_add_u32 s{S_T2}, s{S_T1}, 0x2000
buffer_store_dwordx4 {vr(SENT,4)}, v{vL16}, {WS}, s{S_T1} offen sc1
buffer_store_dwordx4 {vr(SENT,4)}, v{vL16}, {WS}, s{S_T2} offen sc1
v_mov_b32 v{vT2}, 0
s_mov_b32 s60, -1
s_mov_b32 s61, -1
s_waitcnt vmcnt(0)""")
        pl = a.uid("pl")
        a(f"s_mov_b32 s66, 0\n{pl}:")
        for c in range(2):
            a(f"""s_memtime s[62:63]
s_waitcnt lgkmcnt(0)
buffer_load_dword v{vT}, v{vT2}, {WS}, s{S_T1+c} offen sc1
s_waitcnt vmcnt(0)
s_memtime s[64:65]
s_waitcnt lgkmcnt(0)
s_sub_u32 s64, s64, s62
s_min_u32 s{60+c}, s{60+c}, s64
s_add_u32 s{S_T1+c}, s{S_T1+c}, 256""")
        a(f"s_add_u32 s66, s66, 1\ns_cmp_lt_u32 s66, {cfg.get('nprobe', 8)}\ns_cbranch_scc1 {pl}")
        a(f"""s_cmp_lt_u32 s61, s60
s_cselect_b32 s{S_T1}, 1, 0
s_lshl_b32 s{S_T1}, s{S_T1}, s{S_J}
v_mov_b32 v{vT}, s{S_T1}
s_mov_b64 exec, 1
buffer_atomic_or v{vT}, v{vT2}, {DBG}, 0 offen offset:12 sc1
s_mov_b64 exec, -1
{skip}:""")

    a("s_waitcnt vmcnt(0)\ns_barrier")
    arrive(a, G + 4)

    srd(a, 84, 24, 1024 * 8192)
    vD2, vWT = MI, MI + 1
    a(f"""v_lshrrev_b32 v{vT}, 3, v{vLANE}
v_lshlrev_b32 v{vD}, 13, v{vT}
v_lshlrev_b32 v{vD2}, 11, v{vT}
v_and_b32 v{vT}, 7, v{vLANE}
v_lshl_add_u32 v{vD}, v{vT}, 4, v{vD}
v_lshl_add_u32 v{vD2}, v{vT}, 4, v{vD2}
s_lshl_b32 s{S_T0}, s{S_HEAD}, 8
s_and_b32 s{S_T1}, s{S_J}, 1
s_lshl_b32 s{S_T1}, s{S_T1}, 7
s_add_u32 s{S_T0}, s{S_T0}, s{S_T1}
s_lshl_b32 s{S_T1}, s{S_WAVE}, 21
s_add_u32 s{S_T0}, s{S_T0}, s{S_T1}
v_add_u32 v{vD}, s{S_T0}, v{vD}
s_lshl_b32 s{S_T0}, s{S_TEAM}, 21
s_lshl_b32 s{S_T1}, s{S_J}, 7
s_add_u32 s{S_T0}, s{S_T0}, s{S_T1}
s_lshl_b32 s{S_T1}, s{S_WAVE}, 19
s_add_u32 s{S_T0}, s{S_T0}, s{S_T1}
v_add_u32 v{vD2}, s{S_T0}, v{vD2}
s_lshl_b32 s{S_T2}, s{S_WAVE}, 15
s_add_u32 s{S_T2}, s{S_T2}, {L_W:#x}""")
    for dst, bits in ((vWT, ((5, 11), (3, 10), (4, 9), (2, 7))), (vWT + 1, ((3, 12), (4, 11), (5, 9), (2, 7)))):
        a(f"v_and_b32 v{vT}, 3, v{vLANE}\nv_lshlrev_b32 v{dst}, 3, v{vT}")
        for b, sh in bits:
            a(f"v_bfe_u32 v{vT}, v{vLANE}, {b}, 1\nv_lshl_add_u32 v{dst}, v{vT}, {sh}, v{dst}")
        a(f"v_add_u32 v{dst}, s{S_T2}, v{dst}")
    units = [(m, f) for m in range(3) for f in range(4)]
    def issue(n):
        m, f = units[n]
        sr_, vo, pl = ((84, vD, 13), (S_W0, vD, 13), (S_W1, vD2, 11))[m]
        for i in range(8):
            a(f"s_add_u32 m0, s{S_T2}, {(n % 4) * 8192 + i * 1024}")
            a(f"s_mov_b32 s{S_T4}, {(f * 64 + i * 8) << pl:#x}")
            a(f"buffer_load_dwordx4 v{vo}, s[{sr_}:{sr_+3}], s{S_T4} offen lds")
    for n in range(4): issue(n)
    for n in range(12):
        m, f = units[n]
        a(f"s_waitcnt vmcnt({8 * min(3, 11 - n)})")
        for ct in range(4):
            k, b = (("a", 0), ("v", WV), ("a", 128))[m]
            for v in range(4):
                ro = (32 * (v // 2) + 2 * (v % 2)) if m < 2 else (8 * (v // 2) + 2 * (v % 2))
                a(f"ds_read_b64_tr_b16 {vr(b+(f*4+ct)*8+2*v,2,k)}, v{vWT + (m == 2)} offset:{(n % 4) * 8192 + ro * 128 + ct * 32}")
            if ct == 2: a("s_waitcnt lgkmcnt(4)")
        a("s_waitcnt lgkmcnt(0)")
        if n + 4 < 12: issue(n + 4)
        if n == 3: sstamp(a, 6, cfg)
    a(f"""s_lshl_b32 s{S_T0}, s{S_WAVE}, 12
v_add_u32 v{vGOFF}, s{S_T0}, v{vL16}""")
    idx_reg(a, vIDX, vLANE, vT)
    a(f"""v_and_b32 v{vT}, 31, v{vLANE}
v_lshlrev_b32 v{vVMO}, 4, v{vT}
v_lshrrev_b32 v{vT}, 5, v{vLANE}
v_lshl_add_u32 v{vVMO}, v{vT}, 2, v{vVMO}
s_lshr_b32 s{S_T0}, s{S_WAVE}, 1
s_lshl_b32 s{S_T0}, s{S_T0}, 9
s_and_b32 s{S_T1}, s{S_WAVE}, 1
s_lshl_b32 s{S_T1}, s{S_T1}, 3
s_add_u32 s{S_T0}, s{S_T0}, s{S_T1}
v_add_u32 v{vVMO}, s{S_T0}, v{vVMO}
s_lshl_b32 s{S_T0}, s{S_TEAM}, 14
v_add_u32 v{vOMO}, s{S_T0}, v{vGOFF}""")
    a(f"""s_lshl_b32 s{S_T0}, s{S_WAVE}, 11
v_add_u32 v{vRW}, s{S_T0}, v{vL4}""")
    a(f"""v_bfe_u32 v{vT}, v{vLANE}, 2, 2
v_lshlrev_b32 v{vRR}, 9, v{vT}
v_bfe_u32 v{vT}, v{vLANE}, 2, 1
v_lshl_add_u32 v{vRR}, v{vT}, 5, v{vRR}
v_bfe_u32 v{vT}, v{vLANE}, 3, 1
v_lshl_add_u32 v{vRR}, v{vT}, 7, v{vRR}
v_bfe_u32 v{vT}, v{vLANE}, 4, 1
v_lshl_add_u32 v{vRR}, v{vT}, 6, v{vRR}
v_lshrrev_b32 v{vT}, 5, v{vLANE}
v_lshl_add_u32 v{vRR}, v{vT}, 5, v{vRR}
v_and_b32 v{vT}, 3, v{vLANE}
v_lshl_add_u32 v{vRR}, v{vT}, 3, v{vRR}
s_lshr_b32 s{S_T0}, s{S_WAVE}, 1
s_lshl_b32 s{S_T0}, s{S_T0}, 11
s_and_b32 s{S_T1}, s{S_WAVE}, 1
s_lshl_b32 s{S_T1}, s{S_T1}, 7
s_add_u32 s{S_T0}, s{S_T0}, s{S_T1}
v_add_u32 v{vRR}, s{S_T0}, v{vRR}""")
    a(f"""v_and_b32 v{vT}, 31, v{vLANE}
v_lshlrev_b32 v{vRV}, 2, v{vT}
v_lshrrev_b32 v{vT}, 5, v{vLANE}
v_lshl_add_u32 v{vRV}, v{vT}, 10, v{vRV}
v_add_u32 v{vRV}, s{S_T0}, v{vRV}""")
    a(f"""v_bfe_u32 v{vT}, v{vLANE}, 2, 3
v_lshlrev_b32 v{vKO}, 4, v{vT}
v_lshrrev_b32 v{vT}, 5, v{vLANE}
v_lshl_add_u32 v{vKO}, v{vT}, 8, v{vKO}
v_bfe_u32 v{vT}, v{vLANE}, 1, 1
v_lshl_add_u32 v{vKO}, v{vT}, 7, v{vKO}
v_and_b32 v{vT}, 1, v{vLANE}
v_lshl_add_u32 v{vKO}, v{vT}, 2, v{vKO}
s_lshr_b32 s{S_T0}, s{S_WAVE}, 1
s_lshl_b32 s{S_T0}, s{S_T0}, 9
s_and_b32 s{S_T1}, s{S_WAVE}, 1
s_lshl_b32 s{S_T1}, s{S_T1}, 3
s_add_u32 s{S_T0}, s{S_T0}, s{S_T1}
v_add_u32 v{vKO}, s{S_T0}, v{vKO}""")
    a(f"""v_lshlrev_b32 v{vPO}, 3, v{vLANE}
s_lshl_b32 s{S_T0}, s{S_WAVE}, 9
v_add_u32 v{vPO}, s{S_T0}, v{vPO}
s_lshl_b32 s{S_T0}, s{S_WAVE}, 8
v_add_u32 v{vMO}, s{S_T0}, v{vL4}
v_add_u32 v{vI16}, s{S_T0}, v{vL16}""")
    M0R = RP
    a(f"""v_bfe_u32 v{vT}, v{vLANE}, 2, 3
v_lshlrev_b32 v{vT2}, 11, v{vT}
v_lshrrev_b32 v{vT}, 5, v{vLANE}
v_lshl_add_u32 v{vT2}, v{vT}, 4, v{vT2}
v_and_b32 v{vT}, 3, v{vLANE}
v_lshl_add_u32 v{vT2}, v{vT}, 2, v{vT2}
s_lshl_b32 s{S_T0}, s{S_J}, 7
s_lshl_b32 s{S_T1}, s{S_WAVE}, 5
s_add_u32 s{S_T0}, s{S_T0}, s{S_T1}
buffer_load_dword v{M0R}, v{vT2}, s[{S_W2}:{S_W2+3}], s{S_T0} offen
s_waitcnt vmcnt(0)""")
    sstamp(a, 7, cfg)
    a("s_waitcnt lgkmcnt(0)")
    startup_barrier(a, MI + 2)
    def keep32():
        a(f"v_mfma_f32_32x32x16_bf16 {vr(QF,16)}, {vr(SENT,4)}, {vr(SENT,4)}, {vr(QF,16)}")
    L_K = L_W

    def epi(AC, lbase, pad, keep, tag, extra=None):
        sw = lambda p, r: f"v_permlane32_swap_b32 v{AC+8*p+r}, v{AC+8*p+4+r}"
        ad = lambda p, r: f"v_add_f32 v{AC+8*p+r}, v{AC+8*p+r}, v{AC+8*p+4+r}"
        wr = lambda p, r: f"ds_write_addtid_b32 v{AC+8*p+r} offset:{lbase + (p*4+r)*512 + (pad and (r % 2) * 32 + (r // 2) * 128)}"
        ex = extra or (lambda k: None)
        ex(0)
        for r in range(4):
            a(sw(0, r))
            if r % 2: ex(1 + r // 2)
        for r in range(4): a(ad(0, r))
        ex(3)
        for r in range(4):
            a(sw(1, r)); a(wr(0, r))
            if r % 2: ex(4 + r // 2)
        for r in range(4): a(ad(1, r))
        keep(0)
        for r in range(4): a(wr(1, r))
        probe(a, tag + "w", cfg)
        keep(1)
        a("s_waitcnt lgkmcnt(0)\ns_barrier")
        probe(a, tag + "b", cfg)

    def sum4(reads, keep):
        a(reads[0]); a(reads[1]); keep(2); a(reads[2]); a(reads[3]); keep(3)
        a("s_waitcnt lgkmcnt(2)")
        a(f"v_add_f32 v{RD}, v{RD}, v{RD+2}\nv_add_f32 v{RD+1}, v{RD+1}, v{RD+3}")
        a("s_waitcnt lgkmcnt(0)")
        a(f"v_add_f32 v{RD+4}, v{RD+4}, v{RD+6}\nv_add_f32 v{RD+5}, v{RD+5}, v{RD+7}")
        a(f"v_add_f32 v{RD}, v{RD}, v{RD+4}\nv_add_f32 v{RD+1}, v{RD+1}, v{RD+5}")

    def kpoll(loads, F, wbase, stamp_idx, o):
        def mm(f, ct):
            a(f"v_smfmac_f32_16x16x64_bf16 {vr(ACC+4*ct,4)}, {vr(F+4*f,4)}, {ar(wbase+(f*4+ct)*8,8)}, v{vIDX}")
        if o.get("pre", 0): a.fill(o["pre"])
        def consume(g, k, chk):
            for ct in range(4):
                mm(g, ct)
                if chk: a(chk[ct])
        ring_poll2(a, loads, [F + 4 * f for f in range(4)], vT, consume, a.uid("kj"), space=o.get("space", 4), on_first=lambda: stamp(a, stamp_idx, cfg), rfill=o.get("rfill", 3))

    a(f"""s_bcnt1_i32_b32 s{S_T0}, s{S_NEAR}
s_cmp_ge_u32 s{S_T0}, {cfg.get('near_thr', 4)}
s_cselect_b32 s{S_T0}, 0x2000, 0
s_add_u32 s{S_OFF_F}, s{S_OFF_F}, s{S_T0}
s_lshl_b32 m0, s{S_WAVE}, 12
s_barrier""")
    a.set_filler(vD)
    store_mode(a, f"buffer_store_dword v{M0R}, v{vMO}, {WS}, s{S_OFF_E} offen")
    a(f"s_mov_b32 s{S_STEP}, 0")
    for i in range(32): a(f"v_mov_b32 v{ACC+i}, 0")
    for i in range(16): a(f"v_mov_b32 v{G+i}, -1")

    a.label("V_loop")
    stamp(a, 0, cfg)
    a(f"s_add_u32 s85, s{S_OFF_B}, {WS_KM:#x}\ns_add_u32 s86, s{S_OFF_B}, {WS_VM:#x}")
    kpoll([f"buffer_load_dwordx4 {vr(G+4*i,4)}, v{vGOFF}, {WS}, s{S_OFF_A} offen offset:{1024*i} sc1" for i in range(4)], G, 0, 1, cfg.get("v_mem", {}))
    vq = [(f, ct) for p in range(2) for f in range(4) for ct in (2 * p, 2 * p + 1)]
    def vm_(n):
        for _ in range(min(n, len(vq))):
            f, ct = vq.pop(0)
            a(f"v_smfmac_f32_16x16x64_bf16 {vr(ACC2+4*ct,4)}, {vr(G+4*f,4)}, {vr(WV+(f*4+ct)*8,8)}, v{vIDX}")
    if cfg.get("kvpipe", 0):
        def parts(AC, lbase, pad):
            sw = lambda p, r: f"v_permlane32_swap_b32 v{AC+8*p+r}, v{AC+8*p+4+r}"
            ad = lambda p, r: f"v_add_f32 v{AC+8*p+r}, v{AC+8*p+r}, v{AC+8*p+4+r}"
            wr = lambda p, r: f"ds_write_addtid_b32 v{AC+8*p+r} offset:{lbase + (p*4+r)*512 + (pad and (r % 2) * 32 + (r // 2) * 128)}"
            return sw, ad, wr
        sw, ad, wr = parts(ACC, L_K, 1)
        kseq = [sw(0, 0), sw(0, 1), sw(0, 2), sw(0, 3), ad(0, 0) + "\n" + ad(0, 1), ad(0, 2) + "\n" + ad(0, 3),
                sw(1, 0) + "\n" + wr(0, 0), sw(1, 1) + "\n" + wr(0, 1), sw(1, 2) + "\n" + wr(0, 2), sw(1, 3) + "\n" + wr(0, 3),
                ad(1, 0) + "\n" + ad(1, 1), ad(1, 2) + "\n" + ad(1, 3), "\n".join(wr(1, r) for r in range(4))]
        every = cfg.get("kvevery", 1)
        for k, x in enumerate(kseq):
            if k % every == 0: vm_(1)
            a(x)
        vm_(cfg.get("kvw", 3))
        a(f"s_waitcnt lgkmcnt(0)\ns_barrier\ns_cmp_eq_u32 s{S_MODE}, 1")
        for src in range(4): a(f"ds_read_b64 {vr(RD+2*src,2)}, v{vRR} offset:{L_K + src*4096}")
        vm_(16)
        sw, ad, wr = parts(ACC2, L_MEM, 0)
        for r in range(4): a(sw(0, r))
        a("s_waitcnt lgkmcnt(0)")
        a(f"""v_add_f32 v{RD}, v{RD}, v{RD+2}
v_add_f32 v{RD+1}, v{RD+1}, v{RD+3}
v_add_f32 v{RD+4}, v{RD+4}, v{RD+6}
v_add_f32 v{RD+5}, v{RD+5}, v{RD+7}
v_add_f32 v{RD}, v{RD}, v{RD+4}
v_add_f32 v{RD+1}, v{RD+1}, v{RD+5}
v_cvt_pk_bf16_f32 v{MI}, v{RD}, v{RD+1}""")
        store_mode2(a, f"buffer_store_dword v{MI}, v{vKO}, {WS}, s85 offen")
        stamp(a, 6, cfg)
        for r in range(4): a(ad(0, r))
        for r in range(4):
            a(sw(1, r)); a(wr(0, r))
        for r in range(4): a(ad(1, r))
        keep32()
        for r in range(4): a(wr(1, r))
        keep32()
        a("s_waitcnt lgkmcnt(0)\ns_barrier")
    else:
        nk = cfg.get("vk", (1, 3, 1, 3))
        ne = cfg.get("ve", (0, 0, 0, 0, 0, 0))
        epi(ACC, L_K, 1, lambda k: vm_(nk[k]), "kk", lambda k: vm_(ne[k]))
        a(f"s_cmp_eq_u32 s{S_MODE}, 1")
        sum4([f"ds_read_b64 {vr(RD+2*src,2)}, v{vRR} offset:{L_K + src*4096}" for src in range(4)], lambda k: vm_(nk[k]))
        a(f"v_cvt_pk_bf16_f32 v{MI}, v{RD}, v{RD+1}")
        store_mode2(a, f"buffer_store_dword v{MI}, v{vKO}, {WS}, s85 offen")
        stamp(a, 6, cfg)
        vm_(16)
        epi(ACC2, L_MEM, 0, lambda k: keep32(), "kv")
    sum4([f"ds_read2st64_b32 {vr(RD+2*src,2)}, v{vRV} offset0:{(L_MEM + src*4096)//256} offset1:{(L_MEM + src*4096)//256 + 2}" for src in range(4)], lambda k: keep32())
    a(f"v_cvt_pk_bf16_f32 v{MI+1}, v{RD}, v{RD+1}")
    store_mode2(a, f"buffer_store_dword v{MI+1}, v{vVMO}, {WS}, s86 offen")
    stamp(a, 2, cfg)
    if "post_vm" in hooks: hooks["post_vm"](MI + 2)
    a(f"""s_cmp_eq_u32 s{S_STEP}, {NSEG-1}
s_cbranch_scc1 L_done""")
    a("s_waitcnt vmcnt(2)")
    for i in range(32): a(f"v_mov_b32 v{ACC+i}, 0")
    for i in range(16): a(f"v_mov_b32 v{G+i}, -1\nv_mov_b32 v{OF+i}, -1")
    for i in range(6): a(f"v_mov_b32 v{RP+i}, -1")
    a(f"""s_and_b32 s88, s{S_STEP}, 7
s_lshl_b32 s88, s88, 16
s_add_u32 s88, s88, {WS_OM:#x}
s_mov_b32 s{S_PCUR}, s{S_OFF_F}""")
    for x in range(1, 4):
        a(f"s_xor_b32 s{S_T0+x}, s{S_PCUR}, {x << 16:#x}")
    if cfg.get("v_sleep"): a(f"s_sleep {cfg['v_sleep']}")
    kpoll([f"buffer_load_dwordx4 {vr(OF+4*f,4)}, v{vOMO}, {WS}, s88 offen offset:{1024*f} sc1" for f in range(4)], OF, 128, 3, cfg.get("v_om", {}))
    epi(ACC, L_RED, 1, lambda k: keep32(), "k3")
    sum4([f"ds_read_b64 {vr(RD+2*src,2)}, v{vRR} offset:{L_RED + src*4096}" for src in range(4)], lambda k: keep32())
    o = cfg.get("v_part", {})
    l3 = "\n".join(f"buffer_load_dwordx2 {vr(RP+2*(x-1),2)}, v{vPO}, {WS}, s{S_T0+x} offen sc1" for x in range(1, 4))
    a(f"buffer_store_dwordx2 {vr(RD,2)}, v{vPO}, {WS}, s{S_PCUR} offen sc1")
    stamp(a, 4, cfg)
    a(f"""s_add_u32 s{S_OFF_E}, s{S_OFF_E}, 0x4000
s_bitset0_b32 s{S_OFF_E}, 17
s_add_u32 s{S_OFF_A}, s{S_OFF_A}, 0x4000
s_bitset0_b32 s{S_OFF_A}, 17
s_add_u32 s{S_OFF_B}, s{S_OFF_B}, 0x10000
s_bitset0_b32 s{S_OFF_B}, 19
s_add_u32 s{S_OFF_F}, s{S_OFF_F}, 0x40000
s_bitset0_b32 s{S_OFF_F}, 21""")
    if o.get("presleep", 3): a(f"s_sleep {o.get('presleep', 3)}")
    for i in range(16): a(f"v_mov_b32 v{ACC+i}, 0")
    pp = SPoll(a, [l3], [list(range(RP, RP + 6))], vT, cap=o.get("cap", 30), sleep=o.get("sleep", 4), pre_sleep=o.get("pre", 12))
    pp.first(prefill=False)
    a(f"""s_cmp_eq_u32 s{S_MODE}, 1
v_pk_add_f32 {vr(RD,2)}, {vr(RD,2)}, {vr(RP,2)}
v_pk_add_f32 {vr(RD+2,2)}, {vr(RP+2,2)}, {vr(RP+4,2)}
v_pk_add_f32 {vr(RD,2)}, {vr(RD,2)}, {vr(RD+2,2)}
v_cvt_pk_bf16_f32 v{MI}, v{RD}, v{RD+1}""")
    store_mode2(a, f"buffer_store_dword v{MI}, v{vMO}, {WS}, s{S_OFF_E} offen")
    stamp(a, 5, cfg)
    stamp_flush(a, cfg)
    a(f"""s_add_u32 s{S_STEP}, s{S_STEP}, 1
s_branch V_loop""")
    a.flush_deferred()
    a.set_filler(None)
```

```python
import sys
from asmgen import *
from chain import *
from chain5 import s_cu, v_cu, DBG, WS, WS_CNT, wait_all_arrived
from gemm import *
from tail import tail_task
from battn import WS_QB, WS_KB, WS_VB, WS_OB
from battn2 import battn_task

PFX = "concat_heads__memory_aug_recurrent_mem_tr__mha_block__prompt"
NAME = PFX + "_kernel"
C_Q, C_TK, C_OVF = 32, 8, 42
C_QKV, C_BQKV, C_BAT, C_OXB, C_OXS, C_POOL = 0, 144, 148, 156, 168, 200
NOSIG = 255
S_INIT = 47
T_MQKV, T_BQKV, T_BB, T_ATT, T_OB, T_OA, T_OAM, T_PF, T_TAIL = range(9)
L_TICKET = 0x27f00
P_AX, P_WQ, P_WK, P_WV, P_WO, P_BX, P_BW, P_BO = 60, 62, 64, 66, 68, 70, 72, 74
S_D0, S_D1, S_D2, S_GRP, S_P1, S_P2, S_TYP, S_MAT, S_EB = 84, 85, 86, 58, 59, 88, 89, 93, 92
S_TAB = 90
S_OUT = 24


def desc(typ, p1, p2, wait=None, sig=NOSIG):
    wi, wt = wait if wait else (NOSIG, 0)
    return (typ | p1 << 4 | p2 << 12, wi | wt << 8 | sig << 20)


def coop(tiles, n=256):
    out = []
    kx = lambda d: (d[0] & 15, (d[0] >> 4) & 255)
    kw = lambda d: (d[0] & 15, (d[0] >> 12) & 255)
    def share(d, key):
        grp = [t for t in tiles if key(t) == key(d)]
        if len(grp) == 1: return 0, 0
        i = grp.index(d)
        lo, hi = i * n // len(grp), (i + 1) * n // len(grp)
        return lo, hi - lo
    for d in tiles:
        xf, xc = share(d, kx); wf, wc = share(d, kw)
        assert (xc + 63) // 64 + (wc + 63) // 64 <= 4
        out.append(d + (xf | xc << 8 | wf << 16 | wc << 24,))
    return out


def ox_counter(blk):
    return (C_OXB + blk, 128) if blk < 12 else None


def schedule(cfg):
    L = [[] for _ in range(8)]
    def mq(rb, x):
        return [desc(T_MQKV, rb, mat * 32 + 8 * x + i, sig=C_QKV + (rb if cfg.get('medfirst') else 1) * 16 + (8 * x + i) // 2) for i in range(8) for mat in (1, 2, 0)]
    def bq(mb, x):
        return [desc(T_BQKV, mb, mat * 16 + 4 * x + i, sig=C_QKV + (1 + mb) * 16 + 4 * x + i) for i in range(4) for mat in (1, 2, 0)]
    def bb(hg):
        return [desc(T_BB, mb, mat * 4 + hg, sig=C_BQKV + hg) for mat in (1, 2, 0) for mb in range(8)]
    def att(h):
        return [desc(T_ATT, h, qb, wait=(C_BQKV + h // 8, 24), sig=C_BAT + qb) for qb in range(8)]
    def ob(qb):
        return [desc(T_OB, 2 * qb, nb, wait=(C_BAT + qb, 32)) for nb in range(8)]
    def oxw(blk):
        return (C_OXB + blk, 256) if blk < 10 else (C_OXS + (blk - 10) * 4 + 3, 64)
    def oa(b2):
        return [desc(T_OA, 2 * b2, nb, wait=oxw(2 * b2 + 1)) for nb in range(8)]
    def oam(blk):
        return [desc(T_OAM, blk, nb, wait=oxw(blk)) for nb in range(8)]
    def bqr(mbs, x):
        cols = list(zip(*[bq(mb, x) for mb in mbs]))
        return [t for c in cols for t in c]
    def pf(mat, pat, off, rows=128):
        return (T_PF | mat << 4 | pat << 12, off, rows // 2)
    def slowcols(g, mats):
        return [pf(m, 0, (g * 1024 * 2048 + ln * 128) if m == 3 else (16 * g + ln) * 128) for m in mats for ln in (3, 11)]
    for g in range(4):
        if not cfg.get("nowopf", 1): L[g] += [pf(3, 1, (g * 1024 + k * 128) * 2048) for k in range(8)]
    t0 = cfg["tail_seg0"]
    nblk = t0 // 4
    def tail(cs, k): return desc(T_TAIL, cs, 2 * t0 + k)
    def attq(hg, qb):
        if cfg.get("pool", 1): return [desc(T_ATT, hg, qb, wait=(C_BQKV + hg, 24))] * 8
        return [desc(T_ATT, 8 * hg + i, qb, wait=(C_BQKV + hg, 24), sig=C_BAT + qb) for i in range(8)]
    for x in range(4):
        pools = {"A": [attq(x, q) for q in range(8)], "B": [coop(bqr((5, 6), x))], "C": [coop(bq(7, x))],
                 "O": [oa(x)], "M": [oam(b) for b in range(8 + x, nblk, 4)], "o": [ob(b) for b in (x, 4 + x)]}
        if cfg["tail_stride"] == 4: pools["T"] = [[tail(i, x) for i in range(8 * k, 8 * k + 8)] for k in range(4)]
        else: pools["T"] = [[tail(16 * (x // 2) + i, x % 2) for i in range(8 * k, 8 * k + 8)] for k in range(2)]
        allpf = [(5, r) for r in range(0, 2048, 128)] + [(6, r) for r in range(0, 3072, 128)] + [(7, r) for r in range(0, 1024, 128)] + [(4, r) for r in range(1280, 2048, 128)]
        bpf = [pf(m, 1, r * 2048, 128) for m, r in allpf[x::4]]
        sb1 = 1
        if cfg.get("small8", 1):
            L[x] += coop(bq(1, x)[8:] + bq(4, x)[8:]) + bpf[:cfg.get("nbpf", 12)] + [(15, 0)] * cfg.get("small_quit", 2)
            pools["C"] = [coop(bq(7, x)[:8]), coop(bq(7, x)[8:])]
        else:
            L[x] += coop(bq(1, x)[8:]) + bpf[:cfg.get("nbpf", 12)] + [(15, 0)] * cfg.get("small_quit", 2)
            pools["C"] = [coop(bq(4, x)[8:] + bq(7, x)[8:]), coop(bq(7, x)[:8])]
        for _ in range(cfg.get("small_c", 0)): L[x] += pools["C"].pop(0)
        if cfg.get("pool", 1):
            for q in range(8): L[x] += attq(x, q)
            pools["A"] = [attq(x, q) for q in range(8)]
        else:
            take = cfg.get("small", ["A0", "A1"])
            for it in take:
                if int(it[1:]) < len(pools[it[0]]): L[x] += pools[it[0]][int(it[1:])]
            for k in pools:
                pools[k] = [b for i, b in enumerate(pools[k]) if f"{k}{i}" not in take]
        l = L[4 + x]
        xpf = [pf(4, 1, k * 32 * 2048, 32) for k in range(8)]
        nq = cfg.get("wpf_rows", 256)
        wpf = [pf(m, 1, (1024 - nq + h * nq // 2) * 8192 + x * 2048, nq // 2) for m in range(3) for h in range(2)]
        l += xpf + mq(0, x) + (wpf if cfg.get("wpf") else ([] if cfg.get("noslow") else slowcols(x, (0, 1, 2)))) + coop(bq(1, x)[:8 if sb1 else 12]) + (mq(1, x) if cfg.get('medfirst') else []) + coop(bqr((2, 3), x)) + coop(bq(4, x)[:8]) + coop(bb(x))
        pools["c"] = []
        od = cfg.get("orders", {0: "CBOAACAAAAMoTTo", 1: "CBOAACAAAAMoTTo", 2: "CBAOACAAAAoMTTo", 3: "CBAAACOAAAoTMTo"})[x]
        if "c" in od:
            pools["C"] = [coop(bq(7, x)[:8])]; pools["c"] = [coop(bq(7, x)[8:])]
        for ch in od:
            if pools[ch]: l += pools[ch].pop(0)
        if cfg.get("pool", 1): pools["A"] = []
        assert not any(pools.values()), {k: len(v) for k, v in pools.items()}
    return L


def worker(a, cfg):
    big = Gemm(8, 8, 2, dict({"touch": True}, **cfg.get("big", {})))
    med = Gemm(4, 4, 4, cfg.get("med", {}))
    wid = Gemm(8, 4, 3, cfg.get("wid", {}))
    MF = cfg.get("medfirst", 0)
    fst = med if MF else wid
    lists = schedule(cfg)
    MAXL = max(len(l) for l in lists)
    a(f"""v_and_b32 v0, 63, v0
v_lshlrev_b32 v{V_L16}, 4, v0
s_load_dwordx2 s[{P_AX}:{P_AX+1}], s[0:1], 0
s_load_dwordx2 s[{P_WQ}:{P_WQ+1}], s[0:1], 16
s_load_dwordx4 s[{P_WK}:{P_WK+3}], s[0:1], 24
s_load_dwordx2 s[{P_WO}:{P_WO+1}], s[0:1], 40
s_load_dwordx2 s[{P_BX}:{P_BX+1}], s[0:1], 56
s_load_dwordx4 s[{P_BW}:{P_BW+3}], s[0:1], 64
s_getpc_b64 s[{S_TAB}:{S_TAB+1}]
W_pc:
s_add_u32 s{S_TAB}, s{S_TAB}, W_table-W_pc
s_addc_u32 s{S_TAB+1}, s{S_TAB+1}, 0
s_waitcnt lgkmcnt(0)""")
    for p in range(P_AX, P_BO + 2, 2): a(f"s_and_b32 s{p+1}, s{p+1}, 0xffff")
    srd(a, S_OUT, 80, 2048 * 4096)
    row_voff(a)
    a(f"""s_mov_b32 s{G_SX+3}, 0x20000
s_mov_b32 s{G_SW+3}, 0x20000
s_mov_b32 s{G_NXOFF}, {OOB:#x}
s_mov_b32 s{G_NWOFF}, {OOB:#x}
v_mov_b32 v5, {L_TICKET:#x}
v_mov_b32 v6, 0""")
    a(f"s_mov_b32 s{S_INIT}, 0")
    def init_check(vt):
        sk = a.uid("ic")
        a(f"s_cmp_eq_u32 s{S_INIT}, 1\ns_cbranch_scc1 {sk}")
        wait_all_arrived(a, vt, 37)
        a(f"s_mov_b32 s{S_INIT}, 1")
        a.label(sk)
    S_PE, S_PEB, S_PSIG, S_PC, S_TKQ, S_RET = 32, 31, 49, 50, 29, 3
    a(f"""s_mov_b32 s{S_PE}, 0
s_mov_b32 s{S_PSIG}, {NOSIG}
s_mov_b32 s{S_TKQ}, 0""")
    def ticket_ool(back):
        lb = a.uid("tk")
        a.defer(lambda: a(f"""{lb}:
s_mov_b32 s{S_TKQ}, 1
s_cmp_lg_u32 s{S_WAVE}, 0
s_cbranch_scc1 {back}
v_mov_b32 v7, 1
s_lshl_b32 s38, s{S_GRP}, 2
s_mov_b64 exec, 1
buffer_atomic_add v7, v6, {DBG}, s38 offen offset:{C_Q*4} sc0 sc1
s_mov_b64 exec, -1
s_branch {back}"""))
        return lb
    def h_ticket(cnt):
        back = a.uid("tb")
        return f"s_cmp_eq_u32 s{G_CNT}, {cnt}\ns_cbranch_scc1 {ticket_ool(back)}\n{back}:"
    def h_ticket_now():
        back = a.uid("tb")
        return f"s_cmp_eq_u32 s{S_TKQ}, 0\ns_cbranch_scc1 {ticket_ool(back)}\n{back}:"
    def h_pre_bar():
        sk = a.uid("pb")
        return f"s_cmp_eq_u32 s{S_PSIG}, {NOSIG}\ns_cbranch_scc1 {sk}\ns_waitcnt vmcnt(0)\n{sk}:"
    def h_post_bar():
        lb, back = a.uid("sg"), a.uid("sb")
        def ool():
            a(f"""{lb}:
s_lshl_b32 s38, s{S_PSIG}, 7
s_mov_b32 s{S_PSIG}, {NOSIG}
s_cmp_lg_u32 s{S_WAVE}, 0
s_cbranch_scc1 {back}""")
            init_check(248)
            a(f"""s_add_u32 s38, s38, {WS_CNT:#x}
v_mov_b32 v3, 1
s_mov_b64 exec, 1
buffer_atomic_add v3, v6, {WS}, s38 offen sc1
s_mov_b64 exec, -1
s_branch {back}""")
        a.defer(ool)
        return f"s_cmp_lg_u32 s{S_PSIG}, {NOSIG}\ns_cbranch_scc1 {lb}\n{back}:"
    hooks = {"ticket": h_ticket, "ticket_now": h_ticket_now, "pre_bar": h_pre_bar, "post_bar": h_post_bar, "epi_first": cfg.get("epi_first", 1)}
    big.hooks = med.hooks = wid.hooks = hooks
    def run_pending(ret):
        a(f"s_mov_b32 s{S_RET}, {ret}\ns_cmp_lg_u32 s{S_PE}, 0\ns_cbranch_scc1 W_epi\nW_ret{ret}:")
    def flush():
        a("s_waitcnt vmcnt(0)\ns_barrier"); a(h_post_bar())

    a(f"""s_sub_u32 s37, s{S_J}, 24
s_cmp_lt_u32 s{S_GRP}, 4
s_cselect_b32 s36, s37, s{S_J}
s_cselect_b32 s{S_J}, 8, 32
s_branch W_have""")
    a.label("W_next")
    if cfg.get("wstamps"):
        sk = a.uid("ws")
        a(f"""s_cmp_lg_u32 s{S_WAVE}, 1
s_cbranch_scc1 {sk}
s_memrealtime s[44:45]
s_memtime s[98:99]
s_waitcnt lgkmcnt(0)
s_sub_u32 s98, s98, s76
v_mov_b32 v60, s40
v_mov_b32 v61, s42
v_mov_b32 v62, s44
v_mov_b32 v63, s98
s_lshl_b32 s36, s46, 4
s_add_u32 s36, s36, {0x8000000:#x}
s_mov_b64 exec, 1
buffer_store_dwordx4 v[60:63], v6, {WS}, s36 offen
s_mov_b64 exec, -1
{sk}:""")
    a(f"""s_lshr_b32 s{S_PSIG}, s{S_D1}, 20
s_mov_b32 s{S_TKQ}, 0
s_cmp_eq_u32 s{S_D0+3}, 0
s_cbranch_scc1 W_nu
s_waitcnt vmcnt(0)
W_nu:
s_cmp_lg_u32 s{S_WAVE}, 0
s_cbranch_scc1 W_tk
s_mov_b64 exec, 1
ds_write_b32 v5, v7
s_mov_b64 exec, -1
W_tk:
s_waitcnt lgkmcnt(0)
s_barrier
s_cmp_eq_u32 s{S_D0+3}, 0
s_cbranch_scc1 W_nu2""")
    a(h_post_bar())
    a(f"""W_nu2:
ds_read_b32 v1, v5
s_waitcnt lgkmcnt(0)
v_readfirstlane_b32 s36, v1
s_nop 3
s_add_u32 s36, s36, s{S_J}
W_have:
s_min_u32 s36, s36, {MAXL}
s_mul_i32 s37, s{S_GRP}, {MAXL+1}
s_add_u32 s36, s36, s37
s_lshl_b32 s36, s36, 4
s_load_dwordx4 s[{S_D0}:{S_D0+3}], s[{S_TAB}:{S_TAB+1}], s36
s_waitcnt lgkmcnt(0)
s_and_b32 s{S_TYP}, s{S_D0}, 15
s_bfe_u32 s{S_P1}, s{S_D0}, 0x80004
s_bfe_u32 s{S_P2}, s{S_D0}, 0x8000c""")
    if cfg.get("wstamps"):
        a(f"s_memrealtime s[40:41]\ns_lshr_b32 s46, s36, 4")
    a(f"""s_cmp_lt_u32 s{S_TYP}, {T_ATT}
s_cbranch_scc1 W_go""")
    a(f"""s_cmp_ge_u32 s{S_TYP}, {T_PF}
s_cbranch_scc1 W_slow
s_cmp_lg_u32 s{S_WAVE}, 0
s_cbranch_scc1 W_q2""")
    init_check(40)
    a(f"""s_and_b32 s39, s{S_D1}, 0xff
s_lshl_b32 s39, s39, 7
s_add_u32 s39, s39, {WS_CNT:#x}
buffer_load_dword v1, v6, {WS}, s39 offen sc1
s_waitcnt vmcnt(0)
s_mov_b64 exec, 1
ds_write_b32 v5, v1 offset:4
s_mov_b64 exec, -1
s_waitcnt lgkmcnt(0)
W_q2:
s_barrier
ds_read_b32 v1, v5 offset:4
s_bfe_u32 s38, s{S_D1}, 0xc0008
s_waitcnt lgkmcnt(0)
v_readfirstlane_b32 s36, v1
s_nop 3
s_cmp_ge_u32 s36, s38
s_cbranch_scc1 W_go
W_slow:""")
    run_pending(1)
    flush()
    a(f"""s_cmp_eq_u32 s{S_TYP}, 15
s_cbranch_scc1 L_done
s_cmp_eq_u32 s{S_TYP}, {T_PF}
s_cbranch_scc1 W_pf
s_cmp_eq_u32 s{S_TYP}, {T_TAIL}
s_cbranch_scc1 W_tail
s_cmp_lg_u32 s{S_WAVE}, 0
s_cbranch_scc1 W_go2""")
    init_check(200)
    a(f"""s_bfe_u32 s38, s{S_D1}, 0xc0008
s_and_b32 s39, s{S_D1}, 0xff
s_lshl_b32 s39, s39, 7
s_add_u32 s39, s39, {WS_CNT:#x}
W_dep:""")
    budget_head(a)
    a(f"""buffer_load_dword v1, v6, {WS}, s39 offen sc1
s_waitcnt vmcnt(0)
v_readfirstlane_b32 s36, v1
s_nop 3
s_cmp_ge_u32 s36, s38
s_cbranch_scc1 W_go2
s_sleep {cfg.get("dep_sleep", 16)}
s_branch W_dep
W_go2:
s_barrier
W_go:""")
    if cfg.get("wstamps"):
        a(f"s_memrealtime s[42:43]\ns_memtime s[76:77]\ns_waitcnt lgkmcnt(0)")
    a(f"""s_cmp_eq_u32 s{S_TYP}, {T_ATT}
s_cbranch_scc1 W_att
s_cmp_ge_u32 s{S_TYP}, {T_OB}
s_cbranch_scc1 W_out
s_mov_b32 s{G_NST}, 16
s_mov_b32 s{G_PX}, 2048
s_mov_b32 s{G_XSTEP}, 128
s_mov_b32 s{G_SX+2}, {2048*2048:#x}
s_cmp_eq_u32 s{S_TYP}, {T_BB}
s_cbranch_scc1 W_bb""")
    def sel_w():
        a(f"""s_mov_b32 s{G_SX}, s{P_AX}
s_mov_b32 s{G_SX+1}, s{P_AX+1}
s_cmp_eq_u32 s{S_MAT}, 1
s_cselect_b32 s{G_SW}, s{P_WK}, s{P_WQ}
s_cselect_b32 s{G_SW+1}, s{P_WK+1}, s{P_WQ+1}
s_cselect_b32 s36, {WS_KX:#x}, {WS_QX:#x}
s_cmp_eq_u32 s{S_MAT}, 2
s_cselect_b32 s{G_SW}, s{P_WV}, s{G_SW}
s_cselect_b32 s{G_SW+1}, s{P_WV+1}, s{G_SW+1}
s_cselect_b32 s36, {WS_VX:#x}, s36
s_add_u32 s{S_EB}, s{S_EB}, s36
s_mov_b32 s{G_SW+2}, {1024*8192:#x}
s_mov_b32 s{G_PW}, 8192""")
    a(f"""s_cmp_eq_u32 s{S_TYP}, {T_BQKV}
s_cbranch_scc1 W_abig""")
    a(f"""s_lshr_b32 s{S_MAT}, s{S_P2}, 5
s_and_b32 s38, s{S_P2}, 31
s_lshl_b32 s{G_XOFF}, s{S_P1}, {18 if MF else 19}
s_lshl_b32 s{G_WOFF}, s38, 8
s_lshl_b32 s36, s{S_P1}, 1
s_lshr_b32 s37, s{S_WAVE}, 1
s_add_u32 s36, s36, s37
s_lshl_b32 s{S_EB}, s36, {19 if MF else 20}
s_lshl_b32 s36, s38, 13
s_add_u32 s{S_EB}, s{S_EB}, s36
s_and_b32 s37, s{S_WAVE}, 1
s_cmp_eq_u32 s{S_MAT}, 2
s_cselect_b32 s36, 12, 11
s_lshl_b32 s37, s37, s36
s_add_u32 s{S_EB}, s{S_EB}, s37""")
    sel_w()
    def done(pe):
        if cfg.get("big_st") == 2: a("s_memtime s[76:77]\ns_waitcnt lgkmcnt(0)")
        a(f"""s_mov_b32 s{S_PE}, {pe}
s_mov_b32 s{S_PEB}, s{S_EB}
s_mov_b32 s{S_PC}, s{S_C}
s_mov_b32 s{S_PC+1}, s{S_C}
s_waitcnt vmcnt(0)""")
        if cfg.get("epi_first", 1): a(f"s_mov_b32 s{S_RET}, 6\ns_branch W_epi")
        else: a("s_branch W_next")
    fst.setup(a, S_WAVE, False)
    if fst.touch: fst.touch_setup(a, S_WAVE, S_D2)
    fst.prologue(a, False)
    run_pending(2)
    fst.prologue_wait(a, False)
    a(f"s_cmp_eq_u32 s{S_MAT}, 2\ns_cbranch_scc1 W_mv")
    fst.tile(a, "W", False); done(1)
    a.label("W_mv")
    fst.tile(a, "X", False); done(2)
    a.label("W_abig")
    a(f"""s_lshr_b32 s{S_MAT}, s{S_P2}, 4
s_and_b32 s38, s{S_P2}, 15
s_lshl_b32 s{G_XOFF}, s{S_P1}, 19
s_lshl_b32 s{G_WOFF}, s38, 9
s_lshl_b32 s36, s{S_P1}, 1
s_lshr_b32 s37, s{S_WAVE}, 1
s_add_u32 s36, s36, s37
s_lshl_b32 s{S_EB}, s36, 20
s_lshl_b32 s36, s38, 1
s_and_b32 s37, s{S_WAVE}, 1
s_add_u32 s36, s36, s37
s_lshl_b32 s36, s36, 13
s_add_u32 s{S_EB}, s{S_EB}, s36""")
    sel_w()
    a("s_branch W_biggo")
    a.label("W_bb")
    cb = f32bits(32 ** -0.5 * LOG2E)
    a(f"""s_lshr_b32 s{S_MAT}, s{S_P2}, 2
s_lshl_b32 s{G_XOFF}, s{S_P1}, 19
s_lshl_b32 s{G_WOFF}, s{S_P2}, 9
s_and_b32 s36, s{S_P2}, 3
s_lshl_b32 s36, s36, 1
s_and_b32 s37, s{S_WAVE}, 1
s_add_u32 s36, s36, s37
s_lshl_b32 s{S_EB}, s36, 19
s_lshl_b32 s36, s{S_P1}, 1
s_lshr_b32 s37, s{S_WAVE}, 1
s_add_u32 s36, s36, s37
s_lshl_b32 s36, s36, 13
s_add_u32 s{S_EB}, s{S_EB}, s36
s_lshl_b32 s36, s{S_MAT}, 22
s_add_u32 s{S_EB}, s{S_EB}, s36
s_add_u32 s{S_EB}, s{S_EB}, {WS_QB:#x}
s_cmp_eq_u32 s{S_MAT}, 0
s_cselect_b32 s{S_C}, {cb:#x}, 1.0
s_mov_b32 s{S_C+1}, s{S_C}
s_mov_b32 s{G_SX}, s{P_BX}
s_mov_b32 s{G_SX+1}, s{P_BX+1}
s_mov_b32 s{G_SW}, s{P_BW}
s_mov_b32 s{G_SW+1}, s{P_BW+1}
s_mov_b32 s{G_SW+2}, {1024*6144:#x}
s_mov_b32 s{G_PW}, 6144""")
    a.label("W_biggo")
    big.setup(a, S_WAVE, False)
    if big.touch: big.touch_setup(a, S_WAVE, S_D2)
    big.prologue(a, False)
    run_pending(3)
    big.prologue_wait(a, False)
    if cfg.get("big_st") == 1: a("s_memtime s[76:77]\ns_waitcnt lgkmcnt(0)")
    a(f"s_cmp_eq_u32 s{S_MAT}, 2\ns_cbranch_scc1 W_bv")
    big.tile(a, "W", False)
    a(f"s_add_u32 s36, s{S_TYP}, 2"); done("s36")
    a.label("W_bv")
    big.tile(a, "X", False)
    a(f"s_add_u32 s36, s{S_TYP}, 4"); done("s36")
    a.label("W_out")
    a(f"""s_mov_b32 s{G_SX}, s{S_WS}
s_mov_b32 s{G_SX+1}, s{S_WS+1}
s_mov_b32 s{G_SX+2}, s{S_WS+2}
s_mov_b32 s{G_PX}, 64
s_mov_b32 s{G_PW}, 2048
s_mov_b32 s{G_XSTEP}, 0x4000
s_lshl_b32 s{G_WOFF}, s{S_P2}, 8
s_lshl_b32 s{S_EB}, s{S_P1}, 19
s_lshr_b32 s37, s{S_WAVE}, 1
s_cmp_eq_u32 s{S_TYP}, {T_OAM}
s_cselect_b32 s36, 18, 19
s_lshl_b32 s37, s37, s36
s_add_u32 s{S_EB}, s{S_EB}, s37
s_lshl_b32 s36, s{S_P2}, 1
s_and_b32 s37, s{S_WAVE}, 1
s_add_u32 s36, s36, s37
s_lshl_b32 s36, s36, 7
s_add_u32 s{S_EB}, s{S_EB}, s36
s_cmp_lg_u32 s{S_TYP}, {T_OB}
s_cselect_b32 s{G_SW}, s{P_WO}, s{P_BO}
s_cselect_b32 s{G_SW+1}, s{P_WO+1}, s{P_BO+1}
s_mov_b32 s36, {1024*2048:#x}
s_cselect_b32 s{G_SW+2}, {4096*2048:#x}, s36
s_cselect_b32 s{G_NST}, 64, 16
s_cselect_b32 s36, 20, 18
s_mov_b32 s37, {WS_OB - 4096:#x}
s_cselect_b32 s37, {WS_OX - 4096:#x}, s37
s_cselect_b32 s38, 0, 2048
s_lshl_b32 s{G_XOFF}, s{S_P1}, s36
s_lshl_b32 s{G_BLK}, 1, s36
s_add_u32 s{G_XOFF}, s{G_XOFF}, s37
s_add_u32 s{S_EB}, s{S_EB}, s38
s_cmp_eq_u32 s{S_TYP}, {T_OAM}
s_cbranch_scc1 W_oam""")
    wid.setup(a, S_WAVE, True, half=True)
    wid.prologue(a, True, "sc1")
    run_pending(4)
    wid.prologue_wait(a, True)
    wid.tile(a, "W", True, "sc1"); done(8)
    a.label("W_oam")
    med.setup(a, S_WAVE, True, half=True)
    med.prologue(a, True, "sc1")
    med.prologue_wait(a, True)
    med.tile(a, "W", True, "sc1"); done(7)
    a.label("W_epi")
    for pe in range(1, 7): a(f"s_cmp_eq_u32 s{S_PE}, {pe}\ns_cbranch_scc1 W_epi{pe}")
    row_voff(a)
    a(f"s_cmp_eq_u32 s{S_PE}, 8\ns_cbranch_scc1 W_epi8")
    med.epilogue(a, med.ent_row(), S_OUT, S_PEB, V_ROW, swap=True)
    a("s_branch W_epiend")
    a.label("W_epi8")
    wid.epilogue(a, wid.ent_row(), S_OUT, S_PEB, V_ROW, swap=True)
    a.label("W_epiend")
    a(f"""s_mov_b32 s{S_PE}, 0
s_cmp_eq_u32 s{S_RET}, 6
s_cbranch_scc1 W_next
s_cmp_eq_u32 s{S_RET}, 1
s_cbranch_scc1 W_ret1
s_cmp_eq_u32 s{S_RET}, 2
s_cbranch_scc1 W_ret2
s_cmp_eq_u32 s{S_RET}, 4
s_cbranch_scc1 W_ret4
s_cmp_eq_u32 s{S_RET}, 5
s_cbranch_scc1 W_ret5
s_branch W_ret3""")
    for pe, g_, ent, vo, sc_ in ((1, fst, fst.ent_a_qk(), None, None), (2, fst, fst.ent_a_v(), None, None), (3, big, big.ent_a_qk(), None, None),
                                 (4, big, big.ent_b_qk32(), True, S_PC), (5, big, big.ent_a_v(), None, None), (6, big, big.ent_b_v32(), False, None)):
        a.label(f"W_epi{pe}")
        if vo is not None: b32_voff(a, 38, vo)
        g_.epilogue(a, ent, S_WS, S_PEB, V_L16 if vo is None else 38, "sc1", scale=sc_)
        a("s_branch W_epiend")
    a.label("W_pf")
    a(f"""s_cmp_eq_u32 s{S_P1}, 1
s_cselect_b32 s{G_SW}, s{P_WK}, s{P_WQ}
s_cselect_b32 s{G_SW+1}, s{P_WK+1}, s{P_WQ+1}
s_cmp_eq_u32 s{S_P1}, 2
s_cselect_b32 s{G_SW}, s{P_WV}, s{G_SW}
s_cselect_b32 s{G_SW+1}, s{P_WV+1}, s{G_SW+1}
s_cmp_eq_u32 s{S_P1}, 3
s_cselect_b32 s{G_SW}, s{P_WO}, s{G_SW}
s_cselect_b32 s{G_SW+1}, s{P_WO+1}, s{G_SW+1}
s_cselect_b32 s38, 11, 13
s_mov_b32 s{G_SW+2}, {1024*8192:#x}
s_cmp_eq_u32 s{S_P1}, 4
s_cselect_b32 s{G_SW}, s{P_AX}, s{G_SW}
s_cselect_b32 s{G_SW+1}, s{P_AX+1}, s{G_SW+1}
s_cselect_b32 s{G_SW+2}, {2048*2048:#x}, s{G_SW+2}
s_cmp_eq_u32 s{S_P1}, 5
s_cselect_b32 s{G_SW}, s{P_BX}, s{G_SW}
s_cselect_b32 s{G_SW+1}, s{P_BX+1}, s{G_SW+1}
s_cselect_b32 s{G_SW+2}, {2048*2048:#x}, s{G_SW+2}
s_cmp_eq_u32 s{S_P1}, 6
s_cselect_b32 s{G_SW}, s{P_BW}, s{G_SW}
s_cselect_b32 s{G_SW+1}, s{P_BW+1}, s{G_SW+1}
s_cselect_b32 s{G_SW+2}, {1024*6144:#x}, s{G_SW+2}
s_cmp_eq_u32 s{S_P1}, 7
s_cselect_b32 s{G_SW}, s{P_BO}, s{G_SW}
s_cselect_b32 s{G_SW+1}, s{P_BO+1}, s{G_SW+1}
s_cselect_b32 s{G_SW+2}, {1024*2048:#x}, s{G_SW+2}
s_cmp_ge_u32 s{S_P1}, 3
s_cselect_b32 s38, 11, s38
s_cmp_eq_u32 s{S_P2}, 1
s_cbranch_scc1 W_pf1
v_lshrrev_b32 v1, 3, v0
s_lshl_b32 s36, s{S_WAVE}, 3
v_add_u32 v1, s36, v1
v_lshlrev_b32 v1, s38, v1
v_and_b32 v2, 7, v0
v_lshl_add_u32 v1, v2, 4, v1
s_lshl_b32 s37, 32, s38
s_mov_b32 s39, 32
s_branch W_pfgo
W_pf1:
s_lshr_b32 s36, s{S_WAVE}, 1
s_lshl_b32 s36, s36, s38
s_and_b32 s37, s{S_WAVE}, 1
s_lshl_b32 s37, s37, 10
s_add_u32 s36, s36, s37
v_add_u32 v1, s36, v{V_L16}
s_lshl_b32 s37, 2, s38
s_mov_b32 s39, s{S_D2}
W_pfgo:
s_mov_b32 s36, s{S_D1}
W_pfl:
buffer_load_dwordx4 v[64:67], v1, s[{G_SW}:{G_SW+3}], s36 offen
s_add_u32 s36, s36, s37
s_waitcnt vmcnt(48)
s_sub_u32 s39, s39, 1
s_cmp_lg_u32 s39, 0
s_cbranch_scc1 W_pfl
s_mov_b32 s{S_D1}, {NOSIG << 20:#x}""")
    if cfg.get("wstamps"):
        a("s_waitcnt lgkmcnt(0)\ns_mov_b32 s42, s40")
    a(h_ticket_now())
    a("s_waitcnt vmcnt(0)\ns_branch W_next")
    a.label("W_tail")
    if cfg.get("wstamps"):
        a("s_waitcnt lgkmcnt(0)\ns_mov_b32 s42, s40")
    init_check(200)
    a(f"""s_mov_b32 s{G_SW}, s{P_WO}
s_mov_b32 s{G_SW+1}, s{P_WO+1}
s_mov_b32 s{G_SW+2}, {4096*2048:#x}""")
    tail_task(a, S_WS, G_SW, S_OUT, S_WAVE, S_P1, S_P2, WS_CNT + (C_OXS - 40) * 128, cfg)
    if not cfg.get("wstamps"): a("s_endpgm")
    a(h_ticket_now())
    a("s_waitcnt vmcnt(0)\ns_branch W_next")
    a.label("W_att")
    run_pending(5)
    if cfg.get("pool", 1):
        a(f"""s_cmp_lg_u32 s{S_WAVE}, 0
s_cbranch_scc1 W_p2
s_lshl_b32 s38, s{S_P1}, 7
s_add_u32 s38, s38, {WS_CNT + C_POOL*128:#x}
v_mov_b32 v1, 1
s_mov_b64 exec, 1
buffer_atomic_add v1, v6, {WS}, s38 offen sc0 sc1
s_waitcnt vmcnt(0)
ds_write_b32 v5, v1 offset:8
s_mov_b64 exec, -1
s_waitcnt lgkmcnt(0)
W_p2:
s_barrier
ds_read_b32 v1, v5 offset:8
s_waitcnt lgkmcnt(0)
v_readfirstlane_b32 s36, v1
s_nop 3
s_cmp_lt_u32 s36, 64
s_cbranch_scc1 W_p3""")
        flush()
        a(f"s_cmp_lt_u32 s{S_GRP}, 4\ns_cbranch_scc1 L_done")
        a(h_ticket_now())
        a(f"""s_mov_b32 s{S_D1}, {NOSIG << 20:#x}
s_waitcnt vmcnt(0)
s_branch W_next
W_p3:
s_lshr_b32 s{S_P2}, s36, 3
s_and_b32 s36, s36, 7
s_lshl_b32 s{S_P1}, s{S_P1}, 3
s_add_u32 s{S_P1}, s{S_P1}, s36
s_add_u32 s36, s{S_P2}, {C_BAT}
s_lshl_b32 s{S_D1}, s36, 20""")
    battn_task(a, S_WS, S_WAVE, S_P1, S_P2, cfg, "sc1", "sc1", hooks)
    a(f"s_mov_b32 s{G_NXOFF}, {OOB:#x}\ns_mov_b32 s{G_NWOFF}, {OOB:#x}")
    a("s_waitcnt vmcnt(4)\ns_branch W_next")
    a.flush_deferred()
    def urgent(d):
        t, p1 = d[0] & 15, (d[0] >> 4) & 255
        return t in (T_MQKV, T_BB) or (t == T_BQKV and p1 in cfg.get("urgent_blocks", (1, 2)))
    tab = []
    for l in lists:
        l = l + [(15, 0)] * (MAXL + 1 - len(l))
        tab += [f".long {d[0]:#x}, {d[1]:#x}, {d[2] if len(d) > 2 else 0:#x}, {int(urgent(d))}" for d in l]
    return tab


def chain_hooks(a, cfg):
    def wait_x(vt):
        sk, lp = a.uid("wx"), a.uid("wx")
        a(f"""s_cmp_ge_u32 s{S_T0}, {NSEG}
s_cbranch_scc1 {sk}
s_cmp_lt_u32 s{S_T0}, 8
s_cselect_b32 s{S_T1}, {3 if cfg.get("medfirst") else 7}, 7
s_and_b32 s{S_T1}, s{S_T0}, s{S_T1}
s_cmp_lg_u32 s{S_T1}, 0
s_cbranch_scc1 {sk}
s_lshr_b32 s{S_T1}, s{S_T0}, 3
s_add_u32 s{S_T1}, s{S_T1}, 1
s_cmp_lt_u32 s{S_T0}, {4 if cfg.get("medfirst") else 0}
s_cselect_b32 s{S_T1}, 0, s{S_T1}
s_cmp_lt_u32 s{S_T0}, 8
s_cselect_b32 s{S_T2}, 6, 3
s_lshl_b32 s{S_T1}, s{S_T1}, 4
s_lshr_b32 s{S_T3}, s{S_HEAD}, 1
s_add_u32 s{S_T1}, s{S_T1}, s{S_T3}
s_lshl_b32 s{S_T1}, s{S_T1}, 7
s_add_u32 s{S_T1}, s{S_T1}, {WS_CNT + C_QKV*128:#x}
{lp}:""")
        budget_head(a)
        a(f"""v_mov_b32 v{vt}, 0
buffer_load_dword v{vt}, v{vt}, {WS}, s{S_T1} offen sc1
s_waitcnt vmcnt(0)
v_readfirstlane_b32 s{S_T3}, v{vt}
s_nop 3
s_cmp_ge_u32 s{S_T3}, s{S_T2}
s_cbranch_scc1 {sk}
s_sleep 4
s_branch {lp}
{sk}:""")
    def signal(vt, seg_sgpr, n=1):
        a(f"""s_lshr_b32 s{S_T1}, s{seg_sgpr}, 2
s_add_u32 s{S_T1}, s{S_T1}, {C_OXB}
s_add_u32 s{S_T2}, s{seg_sgpr}, {C_OXS - 40}
s_cmp_lt_u32 s{seg_sgpr}, 40
s_cselect_b32 s{S_T1}, s{S_T1}, s{S_T2}
s_lshl_b32 s{S_T1}, s{S_T1}, 7
s_add_u32 s{S_T1}, s{S_T1}, {WS_CNT:#x}
v_mov_b32 v{vt}, {n}
v_mov_b32 v{vt+1}, 0
s_mov_b64 exec, 1
buffer_atomic_add v{vt}, v{vt+1}, {WS}, s{S_T1} offen sc1
s_mov_b64 exec, -1""")
    def post_om(vt):
        sk = a.uid("po")
        a(f"""s_cmp_lg_u32 s{S_WAVE}, 0
s_cbranch_scc1 {sk}
s_cmp_lt_u32 s{S_STEP}, {NSEG-cfg.get('early', 6)+1}
s_cbranch_scc1 {sk}
s_sub_u32 s{S_T0}, s{S_STEP}, 1""")
        signal(vt, S_T0, 2)
        a.label(sk)
        sk = a.uid("po")
        a(f"""s_lshl_b32 s{S_T0}, s{S_HEAD}, 2
s_add_u32 s{S_T0}, s{S_T0}, s{S_WAVE}
s_cmp_lg_u32 s{S_T0}, 3
s_cbranch_scc1 {sk}
s_cmp_lt_u32 s{S_STEP}, 3
s_cbranch_scc1 {sk}
s_cmp_ge_u32 s{S_STEP}, {NSEG-cfg.get('early', 6)+3}
s_cbranch_scc1 {sk}
s_sub_u32 s{S_T0}, s{S_STEP}, 3""")
        signal(vt, S_T0, 64)
        a.label(sk)
    return {"wait_x": wait_x, "post_om": post_om, "exit": "S_exit"}, {}, signal


def role_ticket(a, cfg):
    a(f"""v_mov_b32 v2, 0
s_cmp_lg_u32 s{S_WAVE}, 0
s_cbranch_scc1 R_join
s_getreg_b32 s36, hwreg(HW_REG_XCC_ID)
s_and_b32 s36, s36, {cfg.get("xcc_mask", 7)}
s_and_b32 s37, s36, 3
s_lshl_b32 s37, s37, 3
s_lshl_b32 s38, 1, s37
s_and_b32 s39, s36, 4
s_lshl_b32 s39, s39, 5
v_mov_b32 v3, s38
s_mov_b64 exec, 1
buffer_atomic_add v3, v2, {DBG}, s39 offen offset:{C_TK*4} sc0 sc1
s_waitcnt vmcnt(0)
v_readfirstlane_b32 s38, v3
s_nop 3
s_lshr_b32 s38, s38, s37
s_and_b32 s38, s38, 0xff
s_cmp_lt_u32 s38, 32
s_cbranch_scc1 R_have
v_mov_b32 v3, 1
buffer_atomic_add v3, v2, {DBG}, 0 offen offset:{C_OVF*4} sc0 sc1
s_waitcnt vmcnt(0)
v_readfirstlane_b32 s40, v3
R_wait:""")
    budget_head(a)
    a(f"""s_sleep 8
buffer_load_dword v4, v2, {DBG}, 0 offen offset:{C_TK*4} sc1
buffer_load_dword v5, v2, {DBG}, 0 offen offset:{C_TK*4+128} sc1
s_waitcnt vmcnt(0)
v_readfirstlane_b32 s42, v4
v_readfirstlane_b32 s43, v5
s_nop 3
s_mov_b32 s41, 0""")
    for x in range(8):
        a(f"s_bfe_u32 s37, s{42 + x // 4}, {(8 << 16) | (8 * (x % 4)):#x}\ns_add_u32 s41, s41, s37")
    a("""s_cmp_lt_u32 s41, 256
s_cbranch_scc1 R_wait""")
    for x in range(8):
        a(f"""s_bfe_u32 s37, s{42 + x // 4}, {(8 << 16) | (8 * (x % 4)):#x}
s_min_u32 s37, s37, 32
s_mov_b32 s36, {x}
s_add_u32 s38, s37, s40
s_cmp_lt_u32 s38, 32
s_cbranch_scc1 R_have
s_sub_u32 s40, s38, 32""")
    a(f"""s_mov_b32 s38, 0x1000
R_have:
s_lshl_b32 s38, s38, 3
s_add_u32 s38, s38, s36
v_mov_b32 v3, s38
ds_write_b32 v2, v3
s_mov_b64 exec, -1
s_waitcnt lgkmcnt(0)
R_join:
s_barrier
ds_read_b32 v3, v2
s_waitcnt lgkmcnt(0)
v_readfirstlane_b32 s2, v3
s_nop 3
s_cmp_ge_u32 s2, 256
s_cbranch_scc1 L_fail
s_barrier""")


def gen(cfg):
    cfg.setdefault("tail_seg0", 48)
    cfg.setdefault("tail_stride", 2)
    cfg.setdefault("medfirst", 1)
    a = Asm()
    a(f"""s_cmp_ge_u32 s2, 256
s_cbranch_scc1 L_done
v_lshrrev_b32 v1, 6, v0
v_readfirstlane_b32 s{S_WAVE}, v1""")
    if cfg.get("cpf", 0):
        a(f"""s_getpc_b64 s[6:7]
C_pc:
s_sub_u32 s6, s6, C_pc-{NAME}
s_subb_u32 s7, s7, 0
s_bfe_u32 s36, s2, 0x50003
s_lshl_b32 s36, s36, 12
v_and_b32 v2, 31, v0
v_lshlrev_b32 v2, 7, v2
v_add_u32 v2, s36, v2
v_min_u32 v2, W_table-{NAME}, v2
s_cmp_lg_u32 s{S_WAVE}, 3
s_cbranch_scc1 C_skip
global_load_dword v253, v2, s[6:7]
C_skip:""")
    srd(a, S_WS, 96, WS_SIZE)
    srd(a, S_DBG, 88, 256)
    a(f"s_mov_b32 s{S_BUDGET}, {POLL_BUDGET}")
    if cfg.get("epf", 0):
        n = cfg.get("epf_n", 2)
        a(f"""s_cmp_eq_u32 s{S_WAVE}, 0
s_cbranch_scc1 E_skip
s_load_dwordx4 s[40:43], s[0:1], 16
s_load_dwordx2 s[44:45], s[0:1], 32
s_getreg_b32 s36, hwreg(HW_REG_XCC_ID)
s_and_b32 s36, s36, 3
s_lshl_b32 s36, s36, 11
s_bfe_u32 s37, s2, 0x50003
s_lshl_b32 s37, s37, 15
s_add_u32 s36, s36, s37
v_bfe_u32 v2, v0, 4, 2
v_lshlrev_b32 v2, 13, v2
v_and_b32 v3, 15, v0
v_lshl_add_u32 v2, v3, 7, v2
s_waitcnt lgkmcnt(0)
s_cmp_eq_u32 s{S_WAVE}, 2
s_cselect_b32 s{S_W0}, s42, s40
s_cselect_b32 s{S_W0+1}, s43, s41
s_cmp_eq_u32 s{S_WAVE}, 3
s_cselect_b32 s{S_W0}, s44, s{S_W0}
s_cselect_b32 s{S_W0+1}, s45, s{S_W0+1}
s_and_b32 s{S_W0+1}, s{S_W0+1}, 0xffff
s_mov_b32 s{S_W0+2}, {1024*8192:#x}
s_mov_b32 s{S_W0+3}, 0x20000""")
        for i in range(n):
            a(f"buffer_load_dword v253, v2, s[{S_W0}:{S_W0+3}], s36 offen\ns_add_u32 s36, s36, {128*8192:#x}")
        a.label("E_skip")
    if not cfg.get("static_roles"): role_ticket(a, cfg)
    a(f"""s_and_b32 s{S_TEAM}, s2, 7
s_mov_b32 s{S_GRP}, s{S_TEAM}
s_lshr_b32 s{S_J}, s2, 3
s_mov_b32 s{S_MODE}, 0
s_cmp_ge_u32 s{S_TEAM}, {NT}
s_cbranch_scc1 L_W
s_cmp_ge_u32 s{S_J}, 24
s_cbranch_scc1 L_W
s_cmp_lt_u32 s{S_J}, 8
s_cbranch_scc1 L_S
s_sub_u32 s{S_J}, s{S_J}, 8""")
    hooks, vhooks, signal = chain_hooks(a, cfg)
    v_cu(a, cfg, vhooks)
    a.label("L_S")
    s_cu(a, cfg, hooks)
    a.label("S_exit")
    a(f"""s_waitcnt vmcnt(0)
s_barrier
s_cmp_lg_u32 s{S_WAVE}, 0
s_cbranch_scc1 L_done
s_mov_b32 s{S_T0}, {NSEG-1}""")
    signal(60, S_T0, 2)
    a("s_endpgm")
    a.label("L_fail")
    a(f"""v_mov_b32 v1, 0xdead
v_mov_b32 v2, 0
s_mov_b64 exec, 1
buffer_store_dword v1, v2, {DBG}, 0 offen offset:8
s_endpgm""")
    a.label("L_W")
    tab = worker(a, cfg)
    a.label("L_done")
    a("s_endpgm")
    body = a.finalize()
    ref = open("cdna_kernels/" + PFX + ".s.ref").read().split("\n")
    hdr = [l for l in ref if l.startswith(";") and "@launch" not in l and "Override" not in l and "grid=ceil" not in l]
    out = "\n".join(hdr) + "\n"
    out += f"; @launch grid=(256,1,1) block=(256,1,1) lds={LDS_BYTES}\n"
    out += f""".amdgcn_target "amdgcn-amd-amdhsa--gfx950"
.text
.globl {NAME}
.p2align 8
.type {NAME},@function
{NAME}:
""" + body
    out += ".p2align 4\n.type W_table,@object\nW_table:\n" + "\n".join(tab) + f"\n.size W_table, {16*len(tab)}\n"
    out += f"""
.section .rodata,"a"
.p2align 6
.amdhsa_kernel {NAME}
  .amdhsa_next_free_vgpr 512
  .amdhsa_next_free_sgpr 102
  .amdhsa_accum_offset 256
  .amdhsa_group_segment_fixed_size 0
  .amdhsa_kernarg_size 104
  .amdhsa_user_sgpr_count 2
  .amdhsa_user_sgpr_kernarg_segment_ptr 1
  .amdhsa_system_sgpr_workgroup_id_x 1
.end_amdhsa_kernel
"""
    return out


def report(cfg, down):
    import numpy as np
    if cfg.get("stamps") and not cfg.get("rt"):
        T = down(WS_STAMP, np.uint32, (256, 4, 64, 64))[:, :, :, :8].astype(np.int64)
        ss = list(cfg["stamp_set"])
        Sw = [g + 8*j for g in range(4) for j in range(8)]
        Vw = [g + 8*j for g in range(4) for j in range(8, 24)]
        if cfg.get("early_rep"):
            for nm_, W_ in (("S", Sw), ("V", Vw)):
                for st_ in list(range(0, 12)) + [20]:
                    t = T[W_][:, :, st_]
                    d = (t[..., ss[1:]] - t[..., ss[:-1]]) & 0xffffffff
                    per = (T[W_][:, :, st_ + 1, ss[0]] - t[..., ss[0]]) & 0xffffffff
                    print("  ", nm_, st_, "med", np.median(d.reshape(-1, d.shape[-1]), 0).tolist(), "max", d.reshape(-1, d.shape[-1]).max(0).tolist(), "period", np.median(per))
        for nm_, W_ in (("S", Sw), ("V", Vw)):
            t = T[W_][:, :, 12:60]
            d = (t[..., ss[1:]] - t[..., ss[:-1]]) & 0xffffffff
            per = (T[W_][:, :, 13:61, ss[0]] - t[..., ss[0]]) & 0xffffffff
            print("  ", nm_, cfg.get("at"), "deltas med", np.median(d.reshape(-1, d.shape[-1]), 0).tolist(), "min", d.reshape(-1, d.shape[-1]).min(0).tolist(), "period median", np.median(per))
        return
    if cfg.get("hops"):
        T = down(WS_STAMP, np.uint32, (32, 8, 4, 64, 64))[..., :8].astype(np.int64) * 10
        S = T[:8, :4]; V = T[8:24, :4]
        st = np.arange(12, 60)
        q = lambda x: "med %4d p90 %4d max-mean %4d" % (np.median(x), np.percentile(x, 90), x.reshape(-1, x.shape[-1]).max(0).mean())
        prod = V[0::4, :, :, :, 5].max(2)[:, :, st - 1]
        print("   MEMT hop (frag0)  ", q(S[:, :, :, :, 1][..., st] - prod.transpose(1, 0, 2)[None]))
        allp = V[..., 5].max(2).max(0)[:, st - 1]
        print("   last MEMT pub -> S OM pub", q(S[..., 4][..., st] - allp[None, :, None]))
        print("   last MEMT pub -> VM pub", q(V[..., 2][..., st] - allp[None, :, None]))
        prod = S[0::2, :, :2, :, 4].max(2)[:, :, st]
        print("   OM hop (frag0)    ", q(V[..., 3][..., st] - prod.transpose(1, 0, 2)[None]))
        allo = S[..., 4].max(2).max(0)[:, st]
        print("   last OM pub -> PART pub", q(V[..., 4][..., st] - allo[None, :, None]))
        lastp = V[..., 4].max(1)[..., st]
        print("   last PART pub -> MEMT pub", q(V[..., 5][..., st] - lastp[:, None]))
        print("   spread of PART pub across teams", q(V[..., 4].max(1)[..., st] - V[..., 4].min(1)[..., st]))
        print("   spread MEMT pub within team", q(V[..., 5].max(2).max(0)[:, st] - V[..., 5].min(2).min(0)[:, st]))
        print("   spread OM pub within team", q(allo - S[..., 4].min(2).min(0)[:, st]))
        print("   period", (S[0, 0, 0, 60, 4] - S[0, 0, 0, 12, 4]) / 48)
        return
    if cfg.get("wstamps"):
        lists = schedule(cfg); MAXL = max(len(l) for l in lists)
        st = down(0x8000000, np.uint32, (8, MAXL + 1, 4)).astype(np.int64)
        t0 = min(st[g, :8, 0].min() for g in range(8))
        names = ["mqkv", "bqkv", "bb", "att", "ob", "oa", "oam", "pf", "tail"] + ["x"] * 8
        for g in cfg.get('show', (0, 4, 7)):
            l = lists[g]; i = 0
            while i < len(l):
                j = i
                key = lambda d: (d[0] & 15, (d[0] >> 4) & 255 if (d[0] & 15) not in (T_BB, T_BQKV, T_PF, T_TAIL, T_ATT) else ((d[0] >> 12) & 255 if (d[0] & 15) == T_ATT else 0))
                while j < len(l) and key(l[j]) == key(l[i]): j += 1
                x = (st[g, i:j, :3] - t0) / 100.0
                print(f"  g{g} {names[l[i][0]&15]:5s} p1={(l[i][0]>>4)&255:2d} n={j-i:2d} deq {x[:,0].min():6.1f}-{x[:,0].max():6.1f} start {x[:,1].min():6.1f}-{x[:,1].max():6.1f} end {x[:,2].min():6.1f}-{x[:,2].max():6.1f} dur {(x[:,2]-x[:,1]).mean():5.1f} kcyc {st[g, i:j, 3].mean()/1000:6.1f} GHz {st[g, i:j, 3].mean()/1000/(x[:,2]-x[:,1]).mean():4.2f}")
                i = j
        if cfg.get("stamps"):
            T = down(WS_STAMP, np.uint32, (256, 4, 64, 64))[:, :, :, :8].astype(np.int64)
            s4 = (T[0, 0, :, 4] - t0) / 100.0
            print("  chain OM publish times:", [float(round(x, 1)) for x in s4[[0, 1, 2, 3, 4, 5, 8, 9, 16, 17, 24, 32, 40, 48, 56, 63]]])
            Sw = [g + 8*j for g in range(4) for j in range(8)]
            Vw = [g + 8*j for g in range(4) for j in range(8, 24)]
            if cfg.get("sst"):
                for nm_, W_ in (("S", Sw), ("V", Vw)):
                    for i in (6, 7):
                        x = (T[W_][:, :, 1, i] - t0) / 100.0
                        print("  startup", nm_, i, x.min(), np.median(x), x.max())
                        np.set_printoptions(linewidth=250, precision=0, suppress=True)
                        if cfg.get('sst') == 2: print(x[:, 0].reshape(4, -1))
            print("  S loop first entry", (T[Sw][:, :, 0, 0].min() - t0) / 100.0, (T[Sw][:, :, 0, 0].max() - t0) / 100.0)
            if len(cfg.get("stamp_set", range(8))) > 3:
                for st_ in (21, 35, 58):
                    base = T[Vw][:, :, st_-1, 5].min()
                    tS = (T[Sw][:, :, st_, :8] - base) * 10; tV = (T[Vw][:, :, st_, :8] - base) * 10; tVp = (T[Vw][:, :, st_-1, 5] - base) * 10
                    print("  step", st_, "V pub(prev) min/med/max", tVp.min(), np.median(tVp), tVp.max())
                    for i in cfg["stamp_set"]: print("   S stamp", i, tS[:, :, i].min(), np.median(tS[:, :, i]), tS[:, :, i].max(), "   V stamp", i, tV[:, :, i].min(), np.median(tV[:, :, i]), tV[:, :, i].max())


if __name__ == "__main__":
    cfg = eval(sys.argv[2]) if len(sys.argv) > 2 else {}
    open(sys.argv[1] if len(sys.argv) > 1 else "cdna_kernels/" + PFX + ".s", "w").write(gen(cfg))
```
